```python
import torch

def _softmax(x, axis=-1):
    return torch.softmax(x, dim=axis)

def _gelu(x):
    return torch.nn.functional.gelu(x, approximate='tanh')

def _silu(x):
    return torch.nn.functional.silu(x)

def _sigmoid(x):
    return torch.sigmoid(x)

def _layernorm(x, axis=-1, eps=1e-05):
    m = x.mean(dim=axis, keepdim=True)
    v = x.var(dim=axis, keepdim=True, unbiased=False)
    return (x - m) / torch.sqrt(v + eps)

def _scatter_add(tgt, idx, src, axis=0):
    return tgt.clone().index_add_(axis, idx, src)

def _segment_sum(src, seg, n):
    out = torch.zeros((n,) + src.shape[1:], dtype=src.dtype)
    return out.index_add_(0, seg, src)

def _pad(x, pw):
    flat = tuple((v for pair in reversed(pw) for v in pair))
    return torch.nn.functional.pad(x, flat)
kernel_name = 'gated_mix__sliding_local_dilated__mixer_gmlp__prompt'

def setup_inputs():

    _w = lambda a: (lambda t: t.to(torch.bfloat16) if t.is_floating_point() else t)(torch.as_tensor(a))

    def _A_setup():
        B, S, D = (1, 2048, 640)
        return {'x': _w((lambda *s: torch.randn(*s, dtype=torch.bfloat16) * 0.05)(B, S, D)), 'wqkv': _w((lambda *s: torch.randn(*s, dtype=torch.bfloat16) * 0.8)(D, 3 * D)), 'wo': _w((lambda *s: torch.randn(*s, dtype=torch.bfloat16) * 0.05)(D, D))}
    _A_in = _A_setup()

    def _B_setup():
        B, S, D, F = (1, 2048, 640, 1536)
        Fh = F // 2
        return {'x': _w((lambda *s: torch.randn(*s, dtype=torch.bfloat16) * 0.05)(B, S, D)), 'w_in': _w((lambda *s: torch.randn(*s, dtype=torch.bfloat16) * 0.8)(D, 2 * Fh)), 'w_sp': _w(0.01 * (lambda *s: torch.randn(*s, dtype=torch.bfloat16) * 0.8)(S, S)), 'b_sp': _w(1.0 + 0.01 * (lambda *s: torch.randn(*s, dtype=torch.bfloat16) * 0.05)(S)), 'w_out': _w((lambda *s: torch.randn(*s, dtype=torch.bfloat16) * 0.05)(Fh, D))}
    _B_in = _B_setup()
    return {'A_x': _A_in['x'], 'A_wqkv': _A_in['wqkv'], 'A_wo': _A_in['wo'], 'B_x': _B_in['x'], 'B_w_in': _B_in['w_in'], 'B_w_sp': _B_in['w_sp'], 'B_b_sp': _B_in['b_sp'], 'B_w_out': _B_in['w_out'], 'gate_w': _w((lambda *s: torch.randn(*s, dtype=torch.bfloat16) * 0.05)(640) * 16.0)}

def reference(A_x, A_wqkv, A_wo, B_x, B_w_in, B_w_sp, B_b_sp, B_w_out, gate_w):

    def _A_ref(x, wqkv, wo):
        B, S, D = x.shape
        H = 32
        Dh = D // H
        W, dil = (8, 2)
        qkv = (lambda x, *d: x.permute(*d))((x @ wqkv).reshape(B, S, 3, H, Dh), 2, 0, 3, 1, 4)
        q, k, v = (qkv[0], qkv[1], qkv[2])
        scale = Dh ** (-0.5)
        pos = torch.arange(S)
        off = torch.arange(W) * dil
        idx = pos[:, None] - off[None, :]
        mask = idx >= 0
        idx_c = torch.where(mask, idx, 0).reshape(-1)
        kg = k[:, :, idx_c, :].reshape(B, H, S, W, Dh)
        vg = v[:, :, idx_c, :].reshape(B, H, S, W, Dh)
        logits = torch.einsum('bhsd,bhswd->bhsw', q, kg) * scale
        logits = torch.where(mask[None, None, :, :], logits, -1000000000.0)
        attn = _softmax(logits, axis=-1)
        o = torch.einsum('bhsw,bhswd->bhsd', attn, vg)
        return (lambda x, *d: x.permute(*d))(o, 0, 2, 1, 3).reshape(B, S, D) @ wo

    def _B_ref(x, w_in, w_sp, b_sp, w_out):
        B, S, D = x.shape
        F = w_in.shape[-1]
        Fh = F // 2
        z = _gelu(torch.einsum('bsd,df->bsf', x, w_in))
        z1 = z[..., :Fh].clone()
        z2 = _layernorm(z[..., Fh:], axis=-1)
        g = torch.einsum('ts,bsf->btf', w_sp, z2) + b_sp[None, :, None]
        return torch.einsum('bsf,fd->bsd', z1 * g, w_out)
    x = A_x
    g = _sigmoid((x * gate_w).sum(-1, keepdims=True))
    a = _A_ref(x, A_wqkv, A_wo)
    b = _B_ref(x, B_w_in, B_w_sp, B_b_sp, B_w_out)
    return g * a + (1 - g) * b
```

```python
class Asm:
    def __init__(self):
        self.lines = []
        self._lbl = 0
    def __call__(self, s=""):
        import re
        m = re.search(r"offset:(\d+)", s)
        if m:
            o = int(m.group(1))
            st = s.strip()
            if st.startswith("buffer_"): assert o < 4096, s
            if st.startswith("ds_"): assert o < 65536, s
            if st.startswith("global_"): assert o < 4096, s
        for l in s.split("\n"):
            self.lines.append("    " + l.strip() if l.strip() and not l.strip().endswith(":") else l.strip())
    def label(self, name): self.lines.append(name + ":")
    def newlabel(self, p="L"):
        self._lbl += 1
        return f"{p}_{self._lbl}"
    def c(self, s): self.lines.append("    ; " + s)
    def text(self): return "\n".join(self.lines) + "\n"

def v(i, n=1):
    return f"v{i}" if n == 1 else f"v[{i}:{i+n-1}]"
def s(i, n=1):
    return f"s{i}" if n == 1 else f"s[{i}:{i+n-1}]"
def a(i, n=1):
    return f"a{i}" if n == 1 else f"a[{i}:{i+n-1}]"

def kernel_begin(A, name):
    A.lines.append(".p2align 8")
    A.lines.append(f".globl {name}")
    A.lines.append(f".type {name},@function")
    A.lines.append(f"{name}:")

def kernel_desc(name, vgpr, sgpr=96, accum=None):
    if accum is None: accum = (vgpr + 3) // 4 * 4
    return f""".p2align 6
.amdhsa_kernel {name}
  .amdhsa_next_free_vgpr {vgpr}
  .amdhsa_next_free_sgpr {sgpr}
  .amdhsa_accum_offset {accum}
  .amdhsa_group_segment_fixed_size 0
  .amdhsa_kernarg_size 96
  .amdhsa_user_sgpr_count 2
  .amdhsa_user_sgpr_kernarg_segment_ptr 1
  .amdhsa_system_sgpr_workgroup_id_x 1
  .amdhsa_float_denorm_mode_32 3
  .amdhsa_float_denorm_mode_16_64 3
.end_amdhsa_kernel
"""

def srd(A, sd, sptr, nbytes, off=0):
    if off:
        A(f"s_add_u32 s{sd}, s{sptr}, {off}")
        A(f"s_addc_u32 s{sd+1}, s{sptr+1}, 0")
    else:
        A(f"s_mov_b32 s{sd}, s{sptr}")
        A(f"s_mov_b32 s{sd+1}, s{sptr+1}")
    A(f"s_mov_b32 s{sd+2}, {nbytes}")
    A(f"s_mov_b32 s{sd+3}, 0x20000")
```

```python
import re
REG = re.compile(r'\b([vsa])(\d+)\b|\b([vsa])\[(\d+):(\d+)\]')
def regs(tok):
    out = set()
    for m in REG.finditer(tok):
        if m.group(1): out.add((m.group(1), int(m.group(2))))
        else:
            for i in range(int(m.group(4)), int(m.group(5)) + 1): out.add((m.group(3), i))
    if re.search(r'\bvcc\b', tok): out |= {('s', 'vcc')}
    if re.search(r'\bm0\b', tok): out |= {('s', 'm0')}
    if re.search(r'\bexec\b', tok): out |= {('s', 'exec')}
    return out
TRANS = ('v_exp_f32', 'v_log_f32', 'v_rcp_f32', 'v_rsq_f32', 'v_sqrt_f32', 'v_sin_f32', 'v_cos_f32', 'v_rcp_iflag_f32')
def split_ops(rest):
    ops = []; depth = 0; cur = ''
    for ch in rest:
        if ch == '[': depth += 1
        if ch == ']': depth -= 1
        if ch == ',' and depth == 0: ops.append(cur.strip()); cur = ''
        else: cur += ch
    if cur.strip(): ops.append(cur.strip())
    return ops
class I:
    def __init__(self, line):
        self.line = line
        t = line.split(';')[0].strip()
        self.text = t
        self.is_label = t.endswith(':')
        self.empty = (t == '') or t.startswith('.')
        if self.is_label or self.empty: self.m = ''; return
        p = t.split(None, 1)
        self.m = p[0]; rest = p[1] if len(p) > 1 else ''
        self.ops = split_ops(rest)
        m = self.m
        self.mfma = m.startswith('v_mfma')
        self.valu = m.startswith('v_') and not self.mfma
        self.trans = any(m.startswith(x) for x in TRANS)
        self.dpp = ('_dpp' in m) or bool(re.search(r'\b(row_shr|row_shl|row_ror|quad_perm|row_bcast|row_mirror|row_half_mirror|wave_shr|row_newbcast)', t))
        self.permlane = m.startswith('v_permlane')
        self.vmem = m.startswith('buffer_') or m.startswith('global_') or m.startswith('flat_')
        self.ds = m.startswith('ds_')
        self.salu = m.startswith('s_')
        self.dma = self.vmem and re.search(r'\blds\b', t) is not None or m.startswith('global_load_lds')
        self.w = set(); self.r = set()
        ops = self.ops
        if self.mfma:
            self.w = regs(ops[0]); self.rA = regs(ops[1]) | regs(ops[2]); self.rC = regs(ops[3]); self.r = self.rA | self.rC
            self.passes = {'16x16x32': 4, '32x32x16': 8, '4x4x4': 2, '16x16x16': 4}[re.search(r'(16x16x32|32x32x16|4x4x4|16x16x16)', m).group(1)]
        elif self.valu:
            if m.startswith('v_cmp'):
                self.w = regs(ops[0]); self.r = set().union(*[regs(o) for o in ops[1:]])
            elif m.startswith('v_readfirstlane') or m.startswith('v_readlane'):
                self.w = regs(ops[0]); self.r = set().union(*[regs(o) for o in ops[1:]])
            elif self.permlane and 'swap' in m:
                self.w = regs(ops[0]) | regs(ops[1]); self.r = set(self.w)
            elif m.startswith('v_add_co') or m.startswith('v_sub_co') or m.startswith('v_addc_co'):
                self.w = regs(ops[0]) | regs(ops[1]); self.r = set().union(*[regs(o) for o in ops[2:]])
            else:
                self.w = regs(ops[0]); self.r = set().union(*[regs(o) for o in ops[1:]]) if len(ops) > 1 else set()
                if m.startswith('v_fmac') or m.startswith('v_dot2c') or m.startswith('v_pk_fmac') or self.dpp or 'sdwa' in m:
                    self.r |= self.w
                if m.startswith('v_cndmask') and len(ops) == 3: self.r |= {('s', 'vcc')}
                if m.startswith('v_cndmask_b32_e32'): self.r |= {('s', 'vcc')}
        elif self.vmem:
            if 'store' in m or ('atomic' in m):
                self.r = set().union(*[regs(o) for o in ops])
                if 'atomic' in m and 'sc0' in t: self.w = regs(ops[0])
            elif self.dma:
                self.r = set().union(*[regs(o) for o in ops]) | {('s', 'm0')}
            elif m.startswith('buffer_wbl2') or m.startswith('buffer_inv'):
                pass
            else:
                self.w = regs(ops[0]); self.r = set().union(*[regs(o) for o in ops[1:]])
        elif self.ds:
            if 'read' in m or 'bpermute' in m or 'swizzle' in m or 'permute' in m:
                self.w = regs(ops[0]); self.r = set().union(*[regs(o) for o in ops[1:]])
            else:
                self.r = set().union(*[regs(o) for o in ops])
        elif self.salu:
            if m in ('s_nop', 's_waitcnt', 's_barrier', 's_endpgm', 's_sleep', 's_setprio') or m.startswith('s_cbranch') or m == 's_branch' or m.startswith('s_cmp'):
                self.r = set().union(*[regs(o) for o in ops]) if ops else set()
            else:
                self.w = regs(ops[0]) if ops else set(); self.r = set().union(*[regs(o) for o in ops[1:]]) if len(ops) > 1 else set()
                if 'saveexec' in m: self.w |= {('s', 'exec')}
    def states(self):
        if self.m == 's_nop': return int(self.ops[0], 0) + 1
        return 1
def vonly(S): return {x for x in S if x[0] in 'va'}
def sonly(S): return {x for x in S if x[0] == 's'}
def need(p, c):
    n = 0
    if p.valu:
        pv = vonly(p.w); ps = sonly(p.w)
        if c.mfma and pv & c.r: n = max(n, 2)
        if p.trans and c.valu and not c.trans and pv & c.r: n = max(n, 1)
        if p.trans and c.mfma and pv & c.r: n = max(n, 2)
        if c.valu and c.dpp and pv & c.r: n = max(n, 2)
        if c.valu and c.permlane and pv & c.r: n = max(n, 2)
        if c.valu and (c.m.startswith('v_readfirstlane') or c.m.startswith('v_readlane')) and pv & c.r: n = max(n, 1)
        if ps:
            if c.valu and ps & c.r: n = max(n, 2)
            if c.vmem and ps & c.r: n = max(n, 5)
            if c.salu and ps & c.r: n = max(n, 1)
            if c.valu and (c.m.startswith('v_readlane') or c.m.startswith('v_writelane')) and ps & c.r: n = max(n, 4)
    if p.mfma:
        P = p.passes
        rd = {2: 5, 4: 8, 8: 12}[P]
        if (c.valu or c.vmem or c.ds) and (p.w & (c.r | c.w)): n = max(n, rd)
        if c.mfma:
            if p.w & c.rA: n = max(n, rd)
            if p.w & c.rC:
                if p.w == c.rC and p.passes == c.passes: n = max(n, 2 if P == 2 else 0)
                else: n = max(n, {2: 4, 4: 6, 8: 10}[P])
            elif p.w & c.w:
                n = max(n, {2: 4, 4: 6, 8: 10}[P])
        if c.valu and (p.rC & c.w): n = max(n, {2: 1, 4: 3, 8: 7}[P])
    if p.salu and ('s', 'm0') in p.w and (c.dma or 'addtid' in c.m): n = max(n, 1)
    if p.vmem and 'store' in p.m and ('x4' in p.m or 'x3' in p.m):
        if vonly(p.r) & c.w and (c.valu or c.mfma): n = max(n, 2)
        elif vonly(p.r) & c.w: n = max(n, 1)
    if p.ds and ('write_b128' in p.m or 'write_b96' in p.m):
        if vonly(p.r) & c.w and (c.valu or c.mfma): n = max(n, 2)
    return n
def fix(lines, verbose=False):
    out = []; hist = []
    added = 0
    for line in lines:
        ins = I(line)
        if ins.empty: out.append(line); continue
        if ins.is_label:
            out.append(line); continue
        req = 0; dist = 0
        for p in reversed(hist):
            if dist >= 20: break
            nn = need(p, ins)
            if nn > dist: req = max(req, nn - dist)
            dist += p.states()
        if req > 0:
            k = req
            while k > 0:
                q = min(k, 16)
                nl = f"    s_nop {q-1}"
                out.append(nl); hist.append(I(nl)); k -= q
            added += 1
        out.append(line); hist.append(ins)
        if len(hist) > 40: hist = hist[-40:]
        if ins.m in ('s_endpgm', 's_branch'): hist = []
    if verbose: print("hazard nops added:", added)
    return out
```

```python
import sys
from asmlib import *
import hazard
NAME = "gated_mix__sliding_local_dilated__mixer_gmlp__prompt"
KA = dict(x=0, wqkv=8, wo=16, bx=24, win=32, wsp=40, bsp=48, wout=56, gw=64, out=72, dbg=80, ws=88)
WS_QKV = 0;          SZ_QKV = 2048*1920*2
WS_Z1  = 0x800000;   SZ_Z1 = 2048*768*2
WS_Z2P = 0xB00000;   SZ_Z2P = 2048*768*2
WS_AU  = 0xE00000;   SZ_AU = 2048*1408*2
WS_WP  = 0x1400000;  SZ_WP = 1408*640*2
WS_ST  = 0x1600000;  SZ_ST = 8*2048*8
WS_G   = 0x1640000;  SZ_G = 2048*4
KILL = 0x40000000

C0 = -2.0*0.7978845608028654*1.4426950408889634
C1 = C0*0.044715
import struct
def f2u(f): return struct.unpack('<I', struct.pack('<f', f))[0]

def load_ptr(A, sd, key): A(f"s_load_dwordx2 s[{sd}:{sd+1}], s[0:1], {KA[key]}")

def wave_lane(A, s_w, v_lane=0):
    A(f"v_lshrrev_b32 v1, 6, v0")
    A(f"v_readfirstlane_b32 s{s_w}, v1")
    A(f"v_and_b32 v{v_lane}, 63, v0")

class E1:
    def __init__(self, A, NT, nstg, pitchP, tmode, pitchW=0):
        self.A = A; self.NT = NT; self.nstg = nstg; self.pitchP = pitchP; self.tmode = tmode; self.pitchW = pitchW
        self.nit = (nstg + 3)//4
        self.SLOT = 8192 + NT*2048
        self.WREG = 2*self.SLOT
        self.sP = 4; self.sT = 8
        self.s_w = 16; self.s_prow = 17; self.s_tb = 18; self.s_st = 19; self.s_t0 = 20; self.s_t1 = 21; self.s_lb = 22; self.s_pk = 23; self.s_tk = 24
        self.vPg = 2; self.vTg = 3; self.vPr0 = 4; self.vPr1 = 5; self.vTr = 6
        self.FP = 8
        self.FT = self.FP + 32
        self.ACC = self.FT + NT*8
        self.vend = self.ACC + 16*NT
    def acc(self, m, t): return self.ACC + 4*(m*self.NT + t)
    def setup(self):
        A = self.A; NT = self.NT
        A("v_lshrrev_b32 v7, 3, v0")
        A("v_and_b32 v2, 7, v0")
        A("v_xor_b32 v2, v2, v7")
        A(f"s_mov_b32 s{self.s_t0}, {self.pitchP}")
        A(f"v_mul_lo_u32 v7, v7, s{self.s_t0}")
        A(f"v_lshl_add_u32 v{self.vPg}, v2, 4, v7")
        if self.tmode == 'packed':
            A(f"v_lshlrev_b32 v{self.vTg}, 4, v0")
        else:
            A("v_lshrrev_b32 v7, 1, v0")
            A("v_and_b32 v3, 19, v7")
            A("v_and_b32 v4, 4, v7")
            A("v_lshl_or_b32 v3, v4, 1, v3")
            A("v_and_b32 v4, 8, v7")
            A("v_lshrrev_b32 v4, 1, v4")
            A("v_or_b32 v3, v3, v4")
            A(f"s_mov_b32 s{self.s_t0}, {self.pitchW}")
            A(f"v_mul_lo_u32 v3, v3, s{self.s_t0}")
            A("v_and_b32 v4, 1, v0")
            A(f"v_lshl_add_u32 v{self.vTg}, v4, 4, v3")
        A(f"s_mul_i32 s{self.s_lb}, s{self.s_w}, {self.WREG}")
        A("v_and_b32 v4, 15, v0")
        A("v_lshrrev_b32 v5, 4, v0")
        A("v_and_b32 v6, 7, v4")
        A("v_xor_b32 v5, v5, v6")
        A("v_lshlrev_b32 v4, 7, v4")
        A(f"v_lshl_add_u32 v4, v5, 4, v4")
        A(f"v_xor_b32 v5, 64, v4")
        A(f"v_add_u32 v{self.vPr0}, s{self.s_lb}, v4")
        A(f"v_add_u32 v{self.vPr1}, s{self.s_lb}, v5")
        A("v_and_b32 v6, 15, v0")
        A("v_lshlrev_b32 v6, 3, v6")
        A("v_and_b32 v7, 16, v0")
        A("v_lshl_add_u32 v6, v7, 3, v6")
        A("v_and_b32 v7, 32, v0")
        A("v_lshl_add_u32 v6, v7, 4, v6")
        A(f"v_add_u32 v{self.vTr}, s{self.s_lb}, v6")
        for i in range(self.ACC, self.vend): A(f"v_mov_b32 v{i}, 0")
    def dma_groups(self, it):
        NT = self.NT; sl = it & 1
        g = []
        pre = []
        pre.append(f"s_add_u32 s{self.s_st}, s{self.s_w}, {4*it}")
        pre.append(f"s_cmp_lt_u32 s{self.s_st}, {self.nstg}")
        pre.append(f"s_cselect_b32 s{self.s_t1}, 0, {KILL}")
        pre.append(f"s_lshl_b32 s{self.s_pk}, s{self.s_st}, 7")
        pre.append(f"s_add_u32 s{self.s_pk}, s{self.s_pk}, s{self.s_prow}")
        pre.append(f"s_add_u32 s{self.s_pk}, s{self.s_pk}, s{self.s_t1}")
        if self.tmode == 'packed':
            pre.append(f"s_mul_i32 s{self.s_tk}, s{self.s_st}, {NT*2048}")
        else:
            pre.append(f"s_mul_i32 s{self.s_tk}, s{self.s_st}, {64*self.pitchW}")
        pre.append(f"s_add_u32 s{self.s_tk}, s{self.s_tk}, s{self.s_tb}")
        pre.append(f"s_add_u32 s{self.s_tk}, s{self.s_tk}, s{self.s_t1}")
        g.append(pre)
        for n in range(8):
            g.append([f"s_add_u32 m0, s{self.s_lb}, {sl*self.SLOT + n*1024}",
                      f"s_add_u32 s{self.s_t0}, s{self.s_pk}, {n*8*self.pitchP}",
                      f"buffer_load_dwordx4 v{self.vPg}, s[{self.sP}:{self.sP+3}], s{self.s_t0} offen lds"])
        if self.tmode == 'packed':
            for n in range(2*NT):
                g.append([f"s_add_u32 m0, s{self.s_lb}, {sl*self.SLOT + 8192 + n*1024}",
                          f"s_add_u32 s{self.s_t0}, s{self.s_tk}, {n*1024}",
                          f"buffer_load_dwordx4 v{self.vTg}, s[{self.sT}:{self.sT+3}], s{self.s_t0} offen lds"])
        else:
            for t in range(NT):
                for kk in range(2):
                    g.append([f"s_add_u32 m0, s{self.s_lb}, {sl*self.SLOT + 8192 + t*2048 + kk*1024}",
                              f"s_add_u32 s{self.s_t0}, s{self.s_tk}, {kk*32*self.pitchW + t*32}",
                              f"buffer_load_dwordx4 v{self.vTg}, s[{self.sT}:{self.sT+3}], s{self.s_t0} offen lds"])
        return g
    def ndma(self): return 8 + 2*self.NT
    def prologue(self):
        A = self.A
        for it in range(min(2, self.nit)):
            for grp in self.dma_groups(it):
                for x in grp: A(x)
    def loop(self):
        A = self.A; NT = self.NT
        for it in range(self.nit):
            sl = it & 1
            out_next = self.ndma() if it + 1 < self.nit else 0
            A(f"s_waitcnt vmcnt({out_next})")
            for kk in range(2):
                vp = self.vPr0 if kk == 0 else self.vPr1
                for m in range(4):
                    r = self.FP + 4*(kk*4 + m)
                    A(f"ds_read_b128 v[{r}:{r+3}], v{vp} offset:{sl*self.SLOT + m*2048}")
                for t in range(NT):
                    r = self.FT + 4*(kk*NT + t)
                    for h in range(2):
                        A(f"ds_read_b64_tr_b16 v[{r+2*h}:{r+2*h+1}], v{self.vTr} offset:{sl*self.SLOT + 8192 + t*2048 + kk*1024 + h*256}")
            A("s_waitcnt lgkmcnt(0)")
            groups = self.dma_groups(it + 2) if it + 2 < self.nit else []
            n = 0
            for kk in range(2):
                for m in range(4):
                    for t in range(NT):
                        rp = self.FP + 4*(kk*4 + m); rt = self.FT + 4*(kk*NT + t); ac = self.acc(m, t)
                        A(f"v_mfma_f32_16x16x32_bf16 v[{ac}:{ac+3}], v[{rt}:{rt+3}], v[{rp}:{rp+3}], v[{ac}:{ac+3}]")
                        n += 1
                        if n % 2 == 0 and groups:
                            for x in groups.pop(0): A(x)
            while groups:
                for x in groups.pop(0): A(x)
    def reduce(self):
        A = self.A; NT = self.NT
        A("s_barrier")
        A(f"s_mul_i32 s{self.s_t0}, s{self.s_w}, {NT*1024}")
        A("v_lshlrev_b32 v7, 4, v0")
        A(f"v_add_u32 v2, s{self.s_t0}, v7")
        for m in range(4):
            for t in range(NT):
                ac = self.acc(m, t)
                off = m*4*NT*1024 + t*1024
                base = 2
                if off >= 65536:
                    pass
                A(f"ds_write_b128 v2, v[{ac}:{ac+3}] offset:{off % 65536}" if off < 65536 else f"ds_write_b128 v3, v[{ac}:{ac+3}] offset:{off - 65536}")
                if m == 0 and t == 0:
                    A("v_add_u32 v3, 0x10000, v2")
        A(f"s_mul_i32 s{self.s_t0}, s{self.s_w}, {4*NT*1024}")
        A(f"v_add_u32 v2, s{self.s_t0}, v7")
        A("s_waitcnt lgkmcnt(0)")
        A("s_barrier")
        R = self.FP
        for src in range(4):
            for t in range(NT):
                r = R + 4*(src*NT + t)
                A(f"ds_read_b128 v[{r}:{r+3}], v2 offset:{src*NT*1024 + t*1024}")
        A("s_waitcnt lgkmcnt(0)")
        for t in range(NT):
            for i in range(4):
                d = R + 4*t + i
                A(f"v_add_f32 v{d}, v{d}, v{R + 4*(NT+t) + i}")
                A(f"v_add_f32 v{R + 4*(2*NT+t) + i}, v{R + 4*(2*NT+t) + i}, v{R + 4*(3*NT+t) + i}")
            for i in range(4):
                d = R + 4*t + i
                A(f"v_add_f32 v{d}, v{d}, v{R + 4*(2*NT+t) + i}")
        return R

def gelu_inplace(A, regs, tmp, sC0, sC1):
    n = len(regs)
    for i, r in enumerate(regs): A(f"v_mul_f32 v{tmp+i}, v{r}, v{r}")
    for i, r in enumerate(regs): A(f"v_fma_f32 v{tmp+i}, v{tmp+i}, s{sC1}, v{sC0}")
    for i, r in enumerate(regs): A(f"v_mul_f32 v{tmp+i}, v{tmp+i}, v{r}")
    for i, r in enumerate(regs): A(f"v_exp_f32 v{tmp+i}, v{tmp+i}")
    for i, r in enumerate(regs): A(f"v_add_f32 v{tmp+i}, 1.0, v{tmp+i}")
    for i, r in enumerate(regs): A(f"v_rcp_f32 v{tmp+i}, v{tmp+i}")
    for i, r in enumerate(regs): A(f"v_mul_f32 v{r}, v{r}, v{tmp+i}")

def k1(A):
    name = "k1_kernel"
    kernel_begin(A, name)
    NG = 1152
    A(f"s_cmp_ge_u32 s2, {NG + 32 + 176}")
    A("s_cbranch_scc1 K1_end")
    load_ptr(A, 26, 'x'); load_ptr(A, 28, 'wqkv'); load_ptr(A, 30, 'win'); load_ptr(A, 32, 'ws')
    load_ptr(A, 34, 'gw'); load_ptr(A, 36, 'wo'); load_ptr(A, 38, 'wout')
    wave_lane(A, 16)
    A("s_waitcnt lgkmcnt(0)")
    A(f"s_cmp_ge_u32 s2, {NG + 32}")
    A("s_cbranch_scc1 K1_pack")
    A(f"s_cmp_ge_u32 s2, {NG}")
    A("s_cbranch_scc1 K1_gate")
    A(f"s_mul_hi_u32 s40, s2, {(2**32 + 35)//36}")
    A("s_mul_i32 s41, s40, 36")
    A("s_sub_u32 s41, s2, s41")
    srd(A, 4, 26, 2048*640*2)
    A("s_cmp_ge_u32 s41, 20")
    A("s_cbranch_scc1 K1_z")
    for typ in ("qkv", "z"):
        pitchW = 3840 if typ == "qkv" else 3072
        E = E1(A, 6, 10, 1280, 'gather', pitchW)
        if typ == "qkv":
            srd(A, 8, 28, 640*1920*2)
            A("s_mul_i32 s18, s41, 192")
        else:
            A.label("K1_z")
            srd(A, 8, 30, 640*1536*2)
            A("s_sub_u32 s42, s41, 20")
            A("s_mul_i32 s18, s42, 192")
        A(f"s_mul_i32 s17, s40, {64*1280}")
        E.setup(); E.prologue(); E.loop()
        R = E.reduce()
        A("s_lshl_b32 s43, s40, 6")
        A("s_lshl_b32 s44, s16, 4")
        A("s_add_u32 s43, s43, s44")
        A("v_and_b32 v2, 15, v0")
        A("v_add_u32 v2, s43, v2")
        A("v_lshrrev_b32 v3, 4, v0")
        PK = R + 24*2
        if typ == "qkv":
            srd(A, 12, 32, SZ_QKV, WS_QKV)
            A("s_mov_b32 s45, 3840")
            A("v_mul_lo_u32 v4, v2, s45")
            A("v_lshl_add_u32 v4, v3, 3, v4")
            A("s_mul_i32 s46, s41, 192")
            A("v_add_u32 v4, s46, v4")
            for t in range(6):
                A(f"v_cvt_pk_bf16_f32 v{PK+2*t}, v{R+4*t}, v{R+4*t+1}")
                A(f"v_cvt_pk_bf16_f32 v{PK+2*t+1}, v{R+4*t+2}, v{R+4*t+3}")
            for t in range(6):
                A(f"buffer_store_dwordx2 v[{PK+2*t}:{PK+2*t+1}], v4, s[12:15], 0 offen offset:{t*32}")
            A("s_branch K1_end")
        else:
            A(f"s_mov_b32 s47, {f2u(C1)}")
            A(f"v_mov_b32 v5, {f2u(C0)}")
            gelu_inplace(A, [R+i for i in range(24)], R+24, 5, 47)
            for t in range(6):
                A(f"v_cvt_pk_bf16_f32 v{PK+2*t}, v{R+4*t}, v{R+4*t+1}")
                A(f"v_cvt_pk_bf16_f32 v{PK+2*t+1}, v{R+4*t+2}, v{R+4*t+3}")
            A("s_cmp_ge_u32 s42, 8")
            A("s_cbranch_scc1 K1_z2")
            srd(A, 12, 32, SZ_Z1, WS_Z1)
            A("s_mov_b32 s45, 1536")
            A("v_mul_lo_u32 v4, v2, s45")
            A("v_lshl_add_u32 v4, v3, 3, v4")
            A("s_mul_i32 s46, s42, 192")
            A("v_add_u32 v4, s46, v4")
            for t in range(6):
                A(f"buffer_store_dwordx2 v[{PK+2*t}:{PK+2*t+1}], v4, s[12:15], 0 offen offset:{t*32}")
            A("s_branch K1_end")
            A.label("K1_z2")
            srd(A, 12, 32, SZ_Z2P, WS_Z2P)
            A("s_sub_u32 s48, s42, 8")
            A("s_lshl_b32 s46, s48, 5")
            A("s_add_u32 s46, s46, s40")
            A(f"s_mul_i32 s46, s46, {6*2048}")
            A("s_lshl_b32 s44, s16, 9")
            A("s_add_u32 s46, s46, s44")
            A("v_and_b32 v6, 15, v0")
            A("v_and_b32 v7, 3, v6")
            A("v_and_b32 v4, 4, v6")
            A("v_lshl_or_b32 v7, v4, 1, v7")
            A("v_and_b32 v4, 8, v6")
            A("v_lshrrev_b32 v4, 1, v4")
            A("v_or_b32 v7, v7, v4")
            A("v_lshlrev_b32 v7, 5, v7")
            A("v_lshl_add_u32 v4, v3, 3, v7")
            A("v_add_u32 v4, s46, v4")
            for t in range(6):
                A(f"s_mov_b32 s44, {t*2048}")
                A(f"buffer_store_dwordx2 v[{PK+2*t}:{PK+2*t+1}], v4, s[12:15], s44 offen")
            S1 = R + 24; S2 = R + 25; T1 = R + 26; T2 = R + 27
            A(f"v_mov_b32 v{S1}, v{R}")
            A(f"v_mul_f32 v{S2}, v{R}, v{R}")
            for i in range(1, 24):
                A(f"v_add_f32 v{S1}, v{S1}, v{R+i}")
                A(f"v_fmac_f32 v{S2}, v{R+i}, v{R+i}")
            for sh in (16, 32):
                A(f"v_xor_b32 v6, {sh}, v0")
                A("v_lshlrev_b32 v6, 2, v6")
                A(f"ds_bpermute_b32 v{T1}, v6, v{S1}")
                A(f"ds_bpermute_b32 v{T2}, v6, v{S2}")
                A("s_waitcnt lgkmcnt(0)")
                A(f"v_add_f32 v{S1}, v{S1}, v{T1}")
                A(f"v_add_f32 v{S2}, v{S2}, v{T2}")
            srd(A, 12, 32, SZ_ST, WS_ST)
            A("s_lshl_b32 s46, s48, 14")
            A("v_lshlrev_b32 v4, 3, v2")
            A("v_add_u32 v4, s46, v4")
            A("v_cmp_gt_u32 vcc, 16, v0")
            A("s_and_saveexec_b64 s[50:51], vcc")
            A(f"buffer_store_dwordx2 v[{S1}:{S2}], v4, s[12:15], 0 offen")
            A("s_branch K1_end")
    A.label("K1_gate")
    srd(A, 4, 26, 2048*640*2)
    srd(A, 8, 34, 640*2)
    srd(A, 12, 32, SZ_G, WS_G)
    A(f"s_sub_u32 s40, s2, {NG}")
    A("s_lshl_b32 s40, s40, 6")
    A("s_lshl_b32 s41, s16, 4")
    A("s_add_u32 s40, s40, s41")
    A("v_lshlrev_b32 v2, 2, v0")
    for i in range(5): A(f"buffer_load_dword v{8+i}, v2, s[8:11], 0 offen offset:{256*i}")
    A("s_mul_i32 s42, s40, 1280")
    for r in range(16):
        A(f"s_add_u32 s43, s42, {r*1280}")
        for i in range(5): A(f"buffer_load_dword v{16+5*r+i}, v2, s[4:7], s43 offen offset:{256*i}")
    A("s_waitcnt vmcnt(0)")
    for r in range(16):
        A(f"v_mov_b32 v{100+r}, 0")
        for i in range(5): A(f"v_dot2_f32_bf16 v{100+r}, v{16+5*r+i}, v{8+i}, v{100+r}")
    for sh in (1, 2, 4, 8, 16, 32):
        A(f"v_xor_b32 v6, {sh}, v0")
        A("v_lshlrev_b32 v6, 2, v6")
        for r in range(16): A(f"ds_bpermute_b32 v{120+r}, v6, v{100+r}")
        A("s_waitcnt lgkmcnt(0)")
        for r in range(16): A(f"v_add_f32 v{100+r}, v{100+r}, v{120+r}")
    A("v_mov_b32 v3, v100")
    for r in range(1, 16):
        A(f"v_cmp_eq_u32 vcc, {r}, v0")
        A(f"v_cndmask_b32 v3, v3, v{100+r}, vcc")
    A(f"v_mul_f32 v3, {f2u(-1.4426950408889634)}, v3")
    A("v_exp_f32 v3, v3")
    A("v_add_f32 v3, 1.0, v3")
    A("v_rcp_f32 v3, v3")
    A("v_add_u32 v4, s40, v0")
    A("v_lshlrev_b32 v4, 2, v4")
    A("v_cmp_gt_u32 vcc, 16, v0")
    A("s_and_saveexec_b64 s[50:51], vcc")
    A("buffer_store_dword v3, v4, s[12:15], 0 offen")
    A("s_branch K1_end")
    A.label("K1_pack")
    A("s_cmp_ge_u32 s16, 2")
    A("s_cbranch_scc1 K1_end")
    A(f"s_sub_u32 s40, s2, {NG+32}")
    A(f"s_mul_hi_u32 s41, s40, {(2**32 + 21)//22}")
    A("s_mul_i32 s42, s41, 22")
    A("s_sub_u32 s42, s40, s42")
    srd(A, 12, 32, SZ_WP, WS_WP)
    A("s_cmp_lt_u32 s42, 10")
    A("s_cselect_b32 s4, s36, s38")
    A("s_cselect_b32 s5, s37, s39")
    A(f"s_mov_b32 s6, {768*640*2}")
    A(f"s_cselect_b32 s6, {640*640*2}, s6")
    A("s_mov_b32 s7, 0x20000")
    A("s_cselect_b32 s43, 0, 10")
    A("s_sub_u32 s43, s42, s43")
    A(f"s_mul_i32 s43, s43, {64*1280}")
    A("s_mul_i32 s44, s41, 160")
    A("s_add_u32 s43, s43, s44")
    A("s_lshl_b32 s45, s16, 6")
    A("v_add_u32 v2, s45, v0")
    A("v_lshrrev_b32 v3, 1, v2")
    A("v_and_b32 v4, 0x33, v3")
    A("v_and_b32 v5, 4, v3")
    A("v_lshl_or_b32 v4, v5, 1, v4")
    A("v_and_b32 v5, 8, v3")
    A("v_lshrrev_b32 v5, 1, v5")
    A("v_or_b32 v4, v4, v5")
    A("s_mov_b32 s46, 1280")
    A("v_mul_lo_u32 v4, v4, s46")
    A("v_and_b32 v5, 1, v2")
    A("v_lshl_add_u32 v4, v5, 4, v4")
    for t in range(5): A(f"buffer_load_dwordx4 v[{8+4*t}:{11+4*t}], v4, s[4:7], s43 offen offset:{32*t}")
    A(f"s_mul_i32 s47, s40, {5*2048}")
    A("v_lshlrev_b32 v5, 4, v2")
    A("s_waitcnt vmcnt(0)")
    for t in range(5):
        A(f"s_add_u32 s48, s47, {t*2048}")
        A(f"buffer_store_dwordx4 v[{8+4*t}:{11+4*t}], v5, s[12:15], s48 offen")
    A.label("K1_end")
    A("s_endpgm")
    return name, NG+32+176, 256, 163840, 200

def k2(A):
    name = "k2_kernel"
    kernel_begin(A, name)
    A("s_cmp_ge_u32 s2, 512")
    A("s_cbranch_scc1 K2_end")
    load_ptr(A, 32, 'ws')
    wave_lane(A, 16)
    A("s_waitcnt lgkmcnt(0)")
    A("s_cmp_ge_u32 s2, 256")
    A("s_cbranch_scc1 K2_ln")
    A("s_lshr_b32 s40, s2, 3")
    A("s_and_b32 s41, s2, 7")
    srd(A, 4, 32, SZ_QKV, WS_QKV)
    srd(A, 8, 32, SZ_AU, WS_AU)
    srd(A, 12, 32, SZ_G, WS_G)
    PITCH = 480
    for i in range(10):
        A(f"s_lshl_b32 s42, s16, 6")
        A(f"s_add_u32 s42, s42, {i*256}")
        A("v_add_u32 v2, s42, v0")
        A(f"s_mov_b32 s43, {(2**32 + 29)//30}")
        A("v_mul_hi_u32 v3, v2, s43")
        A("v_mul_u32_u24 v4, 30, v3")
        A("v_sub_u32 v4, v2, v4")
        A(f"s_mov_b32 s43, {(2**32 + 9)//10}")
        A("v_mul_hi_u32 v5, v4, s43")
        A("v_mul_u32_u24 v6, 10, v5")
        A("v_sub_u32 v6, v4, v6")
        A("v_mul_u32_u24 v5, 1280, v5")
        A("v_lshl_add_u32 v5, v6, 4, v5")
        A("s_lshl_b32 s44, s40, 6")
        A("v_add_u32 v3, s44, v3")
        A("v_subrev_u32 v3, 16, v3")
        A("s_mov_b32 s43, 3840")
        A("v_mul_lo_u32 v7, v3, s43")
        A("v_add_u32 v7, v7, v5")
        A("s_mul_i32 s45, s41, 160")
        A("v_add_u32 v7, s45, v7")
        A("v_cmp_gt_i32 vcc, 0, v3")
        A(f"v_mov_b32 v6, {KILL}")
        A("v_cndmask_b32 v7, v7, v6, vcc")
        A("v_cmp_le_u32 vcc, 2400, v2")
        A("v_cndmask_b32 v7, v7, v6, vcc")
        A("s_lshl_b32 m0, s42, 4")
        A("buffer_load_dwordx4 v7, s[4:7], 0 offen lds")
    A("s_lshl_b32 s44, s40, 6")
    A("v_add_u32 v9, s44, v0")
    A("v_lshlrev_b32 v2, 2, v9")
    A("buffer_load_dword v10, v2, s[12:15], 0 offen")
    A("s_waitcnt vmcnt(0)")
    A("s_barrier")
    A("s_mul_i32 s45, s16, 40")
    A(f"v_mul_u32_u24 v2, {PITCH}, v0")
    A(f"v_add_u32 v2, s45, v2")
    Q = 12; KK = 24; L = 40
    for i in range(5): A(f"ds_read_b64 v[{Q+2*i}:{Q+2*i+1}], v2 offset:{16*PITCH + 8*i}")
    for j in range(8):
        for i in range(5): A(f"ds_read_b64 v[{KK+2*i}:{KK+2*i+1}], v2 offset:{(16-2*j)*PITCH + 160 + 8*i}")
        A("s_waitcnt lgkmcnt(0)")
        A(f"v_mov_b32 v{L+j}, 0")
        for i in range(10): A(f"v_dot2_f32_bf16 v{L+j}, v{Q+i}, v{KK+i}, v{L+j}")
    A(f"v_mov_b32 v11, {f2u(-1e30)}")
    for j in range(1, 8):
        A(f"v_cmp_gt_u32 vcc, {2*j}, v9")
        A(f"v_cndmask_b32 v{L+j}, v{L+j}, v11, vcc")
    A(f"v_max3_f32 v50, v{L}, v{L+1}, v{L+2}")
    A(f"v_max3_f32 v50, v50, v{L+3}, v{L+4}")
    A(f"v_max3_f32 v50, v50, v{L+5}, v{L+6}")
    A(f"v_max_f32 v50, v50, v{L+7}")
    SC = (20 ** -0.5) * 1.4426950408889634
    A(f"s_mov_b32 s46, {f2u(SC)}")
    for j in range(8): A(f"v_sub_f32 v{L+j}, v{L+j}, v50")
    for j in range(8): A(f"v_mul_f32 v{L+j}, s46, v{L+j}")
    for j in range(8): A(f"v_exp_f32 v{L+j}, v{L+j}")
    A(f"v_add_f32 v51, v{L}, v{L+1}")
    for j in range(2, 8): A(f"v_add_f32 v51, v51, v{L+j}")
    A("v_rcp_f32 v51, v51")
    A("v_mul_f32 v51, v51, v10")
    for j in range(8): A(f"v_mul_f32 v{L+j}, v{L+j}, v51")
    O = 60
    for d in range(20): A(f"v_mov_b32 v{O+d}, 0")
    for j in range(8):
        for i in range(5): A(f"ds_read_b64 v[{KK+2*i}:{KK+2*i+1}], v2 offset:{(16-2*j)*PITCH + 320 + 8*i}")
        A("s_waitcnt lgkmcnt(0)")
        for i in range(10):
            A(f"v_lshlrev_b32 v52, 16, v{KK+i}")
            A(f"v_and_b32 v53, 0xffff0000, v{KK+i}")
            A(f"v_fmac_f32 v{O+2*i}, v{L+j}, v52")
            A(f"v_fmac_f32 v{O+2*i+1}, v{L+j}, v53")
    for i in range(10): A(f"v_cvt_pk_bf16_f32 v{84+i}, v{O+2*i}, v{O+2*i+1}")
    A("s_mov_b32 s43, 2816")
    A("v_mul_lo_u32 v2, v9, s43")
    A("s_lshl_b32 s45, s41, 2")
    A("s_add_u32 s45, s45, s16")
    A("s_mul_i32 s45, s45, 40")
    A("v_add_u32 v2, s45, v2")
    for i in range(5): A(f"buffer_store_dwordx2 v[{84+2*i}:{85+2*i}], v2, s[8:11], 0 offen offset:{8*i}")
    A("s_branch K2_end")
    A.label("K2_ln")
    A("s_sub_u32 s40, s2, 256")
    A("s_and_b32 s41, s40, 7")
    A("s_lshr_b32 s40, s40, 3")
    srd(A, 4, 32, SZ_ST, WS_ST)
    srd(A, 8, 32, SZ_Z2P, WS_Z2P)
    A("s_lshl_b32 s45, s16, 6")
    A("v_add_u32 v2, s45, v0")
    A("v_lshrrev_b32 v3, 1, v2")
    A("v_and_b32 v3, 63, v3")
    A("v_and_b32 v4, 0x33, v3")
    A("v_and_b32 v5, 4, v3")
    A("v_lshl_or_b32 v4, v5, 1, v4")
    A("v_and_b32 v5, 8, v3")
    A("v_lshrrev_b32 v5, 1, v5")
    A("v_or_b32 v4, v4, v5")
    A("s_lshl_b32 s44, s40, 6")
    A("v_add_u32 v4, s44, v4")
    A("v_lshlrev_b32 v4, 3, v4")
    for jj in range(8):
        A(f"s_mov_b32 s46, {jj*16384}")
        A(f"buffer_load_dwordx2 v[{8+2*jj}:{9+2*jj}], v4, s[4:7], s46 offen")
    A("s_lshl_b32 s46, s41, 5")
    A("s_add_u32 s46, s46, s40")
    A(f"s_mul_i32 s46, s46, {6*2048}")
    A("v_lshlrev_b32 v5, 4, v2")
    for i in range(3): A(f"s_add_u32 s{47+i}, s46, {i*4096}")
    for i in range(3): A(f"buffer_load_dwordx4 v[{24+4*i}:{27+4*i}], v5, s[8:11], s{47+i} offen")
    A("s_waitcnt vmcnt(0)")
    for jj in range(1, 8):
        A(f"v_add_f32 v8, v8, v{8+2*jj}")
        A(f"v_add_f32 v9, v9, v{9+2*jj}")
    A(f"v_mul_f32 v8, {f2u(1/768)}, v8")
    A(f"v_mul_f32 v9, {f2u(1/768)}, v9")
    A("v_fma_f32 v9, -v8, v8, v9")
    A("v_max_f32 v9, 0, v9")
    A(f"v_add_f32 v9, {f2u(1e-5)}, v9")
    A("v_rsq_f32 v9, v9")
    A("v_mul_f32 v10, v8, v9")
    A("v_sub_f32 v10, 0, v10")
    for i in range(3):
        for q in range(4):
            r = 24 + 4*i + q
            A(f"v_lshlrev_b32 v12, 16, v{r}")
            A(f"v_and_b32 v13, 0xffff0000, v{r}")
            A("v_fma_f32 v12, v12, v9, v10")
            A("v_fma_f32 v13, v13, v9, v10")
            A(f"v_cvt_pk_bf16_f32 v{r}, v12, v13")
    for i in range(3): A(f"buffer_store_dwordx4 v[{24+4*i}:{27+4*i}], v5, s[8:11], s{47+i} offen")
    A.label("K2_end")
    A("s_endpgm")
    return name, 512, 256, 40960, 100

def tile_map(A):
    A("s_and_b32 s42, s2, 7")
    A("s_lshr_b32 s43, s2, 3")
    A("s_lshr_b32 s40, s42, 1")
    A("s_lshl_b32 s40, s40, 3")
    A("s_and_b32 s44, s43, 7")
    A("s_add_u32 s40, s40, s44")
    A("s_and_b32 s41, s42, 1")
    A("s_lshl_b32 s41, s41, 2")
    A("s_lshr_b32 s44, s43, 3")
    A("s_add_u32 s41, s41, s44")

def k3(A):
    name = "k3_kernel"
    kernel_begin(A, name)
    A("s_cmp_ge_u32 s2, 256")
    A("s_cbranch_scc1 K3_end")
    load_ptr(A, 26, 'wsp'); load_ptr(A, 28, 'bsp'); load_ptr(A, 32, 'ws')
    wave_lane(A, 16)
    tile_map(A)
    A("s_waitcnt lgkmcnt(0)")
    srd(A, 4, 26, 2048*2048*2)
    srd(A, 8, 32, SZ_Z2P, WS_Z2P)
    E = E1(A, 6, 32, 4096, 'packed')
    A(f"s_mul_i32 s17, s40, {64*4096}")
    A(f"s_mul_i32 s18, s41, {32*6*2048}")
    E.setup(); E.prologue(); E.loop()
    R = E.reduce()
    A("s_lshl_b32 s43, s40, 6")
    A("s_lshl_b32 s44, s16, 4")
    A("s_add_u32 s43, s43, s44")
    A("v_and_b32 v2, 15, v0")
    A("v_add_u32 v2, s43, v2")
    A("v_lshrrev_b32 v3, 4, v0")
    srd(A, 4, 32, SZ_Z1, WS_Z1)
    srd(A, 8, 32, SZ_G, WS_G)
    srd(A, 12, 28, 2048*2)
    Z = R + 24
    A("s_mov_b32 s45, 1536")
    A("v_mul_lo_u32 v4, v2, s45")
    A("v_lshl_add_u32 v4, v3, 3, v4")
    A("s_mul_i32 s46, s41, 192")
    A("v_add_u32 v4, s46, v4")
    for t in range(6): A(f"buffer_load_dwordx2 v[{Z+2*t}:{Z+2*t+1}], v4, s[4:7], 0 offen offset:{t*32}")
    A("v_lshlrev_b32 v5, 2, v2")
    A("buffer_load_dword v6, v5, s[8:11], 0 offen")
    A("v_lshlrev_b32 v5, 1, v2")
    A("buffer_load_ushort v7, v5, s[12:15], 0 offen")
    A("s_waitcnt vmcnt(0)")
    A("v_lshlrev_b32 v7, 16, v7")
    A("v_sub_f32 v6, 1.0, v6")
    srd(A, 12, 32, SZ_AU, WS_AU)
    for t in range(6):
        for q in range(2):
            z = Z + 2*t + q
            A(f"v_lshlrev_b32 v100, 16, v{z}")
            A(f"v_and_b32 v101, 0xffff0000, v{z}")
            A(f"v_add_f32 v102, v{R+4*t+2*q}, v7")
            A(f"v_add_f32 v103, v{R+4*t+2*q+1}, v7")
            A("v_mul_f32 v100, v100, v6")
            A("v_mul_f32 v101, v101, v6")
            A("v_mul_f32 v102, v102, v100")
            A("v_mul_f32 v103, v103, v101")
            A(f"v_cvt_pk_bf16_f32 v{z}, v102, v103")
    A("s_mov_b32 s45, 2816")
    A("v_mul_lo_u32 v4, v2, s45")
    A("v_lshl_add_u32 v4, v3, 3, v4")
    A("s_mul_i32 s46, s41, 192")
    A("s_add_u32 s46, s46, 1280")
    A("v_add_u32 v4, s46, v4")
    for t in range(6): A(f"buffer_store_dwordx2 v[{Z+2*t}:{Z+2*t+1}], v4, s[12:15], 0 offen offset:{t*32}")
    A.label("K3_end")
    A("s_endpgm")
    return name, 256, 256, 163840, 200

def k4(A):
    name = "k4_kernel"
    kernel_begin(A, name)
    A("s_cmp_ge_u32 s2, 256")
    A("s_cbranch_scc1 K4_end")
    load_ptr(A, 26, 'out'); load_ptr(A, 32, 'ws')
    wave_lane(A, 16)
    tile_map(A)
    A("s_waitcnt lgkmcnt(0)")
    srd(A, 4, 32, SZ_AU, WS_AU)
    srd(A, 8, 32, SZ_WP, WS_WP)
    E = E1(A, 5, 22, 2816, 'packed')
    A(f"s_mul_i32 s17, s40, {64*2816}")
    A(f"s_mul_i32 s18, s41, {22*5*2048}")
    E.setup(); E.prologue(); E.loop()
    R = E.reduce()
    A("s_lshl_b32 s43, s40, 6")
    A("s_lshl_b32 s44, s16, 4")
    A("s_add_u32 s43, s43, s44")
    A("v_and_b32 v2, 15, v0")
    A("v_add_u32 v2, s43, v2")
    A("v_lshrrev_b32 v3, 4, v0")
    srd(A, 12, 26, 2048*640*2)
    PK = R + 20
    for t in range(5):
        A(f"v_cvt_pk_bf16_f32 v{PK+2*t}, v{R+4*t}, v{R+4*t+1}")
        A(f"v_cvt_pk_bf16_f32 v{PK+2*t+1}, v{R+4*t+2}, v{R+4*t+3}")
    A("s_mov_b32 s45, 1280")
    A("v_mul_lo_u32 v4, v2, s45")
    A("v_lshl_add_u32 v4, v3, 3, v4")
    A("s_mul_i32 s46, s41, 160")
    A("v_add_u32 v4, s46, v4")
    for t in range(5): A(f"buffer_store_dwordx2 v[{PK+2*t}:{PK+2*t+1}], v4, s[12:15], 0 offen offset:{t*32}")
    A.label("K4_end")
    A("s_endpgm")
    return name, 256, 256, 163840, 200

def main(out):
    body = Asm()
    ks = []
    for f in (k1, k2, k3, k4):
        ks.append(f(body))
    hdr = []
    for (n, g, b, lds, vg) in ks:
        hdr.append(f"; @launch kernel={n} grid=({g},1,1) block=({b},1,1) lds={lds}")
    hdr.append('.amdgcn_target "amdgcn-amd-amdhsa--gfx950"')
    hdr.append(".text")
    lines = hazard.fix(body.lines, verbose=True)
    txt = "\n".join(hdr) + "\n" + "\n".join(lines) + "\n" + '.section .rodata,"a"\n'
    for (n, g, b, lds, vg) in ks: txt += kernel_desc(n, vg, 96)
    open(out, "w").write(txt)
if __name__ == "__main__":
    main(sys.argv[1] if len(sys.argv) > 1 else "cdna_kernels/" + NAME + ".s")
```

```python
import sys
from asmlib import *
import hazard
NAME = "gated_mix__sliding_local_dilated__mixer_gmlp__prompt"
KA = dict(x=0, wqkv=8, wo=16, bx=24, win=32, wsp=40, bsp=48, wout=56, gw=64, out=72, dbg=80, ws=88)
WS_QKV = 0;          SZ_QKV = 2048*1920*2
WS_Z1  = 0x800000;   SZ_Z1 = 2048*768*2
WS_Z2P = 0xB00000;   SZ_Z2P = 2048*768*2
WS_AU  = 0xE00000;   SZ_AU = 2048*1408*2
WS_WP  = 0x1400000;  SZ_WP = 1408*640*2
WS_ST  = 0x1600000;  SZ_ST = 8*2048*8
WS_G   = 0x1640000;  SZ_G = 2048*4
KILL = 0x40000000

C0 = -2.0*0.7978845608028654*1.4426950408889634
C1 = C0*0.044715
import struct
def f2u(f): return struct.unpack('<I', struct.pack('<f', f))[0]

def load_ptr(A, sd, key): A(f"s_load_dwordx2 s[{sd}:{sd+1}], s[0:1], {KA[key]}")

def wave_lane(A, s_w, v_lane=0):
    A(f"v_lshrrev_b32 v1, 6, v0")
    A(f"v_readfirstlane_b32 s{s_w}, v1")
    A(f"v_and_b32 v{v_lane}, 63, v0")

STAMP = False
WS_TS = 0x2000000
class Stamps:
    def __init__(self, A, kidx): self.A = A; self.n = 0; self.k = kidx
    def __call__(self):
        if not STAMP: return
        assert self.n < 16
        self.A(f"s_memtime s[{60+2*self.n}:{61+2*self.n}]")
        self.n += 1
    def flush(self, s_w, s_ws, rt=True):
        if not STAMP: return
        A = self.A
        A(f"s_memrealtime s[{92}:{93}]")
        A("s_waitcnt lgkmcnt(0)")
        srd(A, 56, s_ws, 0x100000, WS_TS + self.k*0x40000)
        A(f"s_lshl_b32 s54, s2, 2")
        A(f"s_add_u32 s54, s54, s{s_w}")
        A(f"s_lshl_b32 s54, s54, 7")
        A("s_mov_b64 exec, 1")
        for i in range(self.n):
            A(f"v_mov_b32 v250, s{60+2*i}")
            A(f"v_mov_b32 v251, {4*i}")
            A(f"buffer_store_dword v250, v251, s[56:59], s54 offen")
        A(f"v_mov_b32 v250, s92")
        A(f"v_mov_b32 v251, 124")
        A(f"buffer_store_dword v250, v251, s[56:59], s54 offen")
        A("s_mov_b64 exec, -1")
class E1:
    def __init__(self, A, NT, nstg, pitchP, tmode, pitchW=0):
        self.A = A; self.NT = NT; self.nstg = nstg; self.pitchP = pitchP; self.tmode = tmode; self.pitchW = pitchW
        self.nit = (nstg + 3)//4
        self.SLOT = 8192 + NT*2048
        self.WREG = 2*self.SLOT
        self.sP = 4; self.sT = 8
        self.s_w = 16; self.s_prow = 17; self.s_tb = 18; self.s_st = 19; self.s_t0 = 20; self.s_t1 = 21; self.s_lb = 22; self.s_pk = 23; self.s_tk = 24
        self.vPg = 2; self.vTg = 3; self.vPr0 = 4; self.vPr1 = 5; self.vTr = 6
        self.FP = 8
        self.FT = self.FP + 32
        self.ACC = self.FT + NT*8
        self.vend = self.ACC + 16*NT
    def acc(self, m, t): return self.ACC + 4*(m*self.NT + t)
    def setup(self):
        A = self.A; NT = self.NT
        A("v_lshrrev_b32 v7, 3, v0")
        A("v_and_b32 v2, 7, v0")
        A("v_xor_b32 v2, v2, v7")
        A(f"s_mov_b32 s{self.s_t0}, {self.pitchP}")
        A(f"v_mul_lo_u32 v7, v7, s{self.s_t0}")
        A(f"v_lshl_add_u32 v{self.vPg}, v2, 4, v7")
        if self.tmode == 'packed':
            A(f"v_lshlrev_b32 v{self.vTg}, 4, v0")
        else:
            A("v_lshrrev_b32 v7, 1, v0")
            A("v_and_b32 v3, 19, v7")
            A("v_and_b32 v4, 4, v7")
            A("v_lshl_or_b32 v3, v4, 1, v3")
            A("v_and_b32 v4, 8, v7")
            A("v_lshrrev_b32 v4, 1, v4")
            A("v_or_b32 v3, v3, v4")
            A(f"s_mov_b32 s{self.s_t0}, {self.pitchW}")
            A(f"v_mul_lo_u32 v3, v3, s{self.s_t0}")
            A("v_and_b32 v4, 1, v0")
            A(f"v_lshl_add_u32 v{self.vTg}, v4, 4, v3")
        A(f"s_mul_i32 s{self.s_lb}, s{self.s_w}, {self.WREG}")
        A("v_and_b32 v4, 15, v0")
        A("v_lshrrev_b32 v5, 4, v0")
        A("v_and_b32 v6, 7, v4")
        A("v_xor_b32 v5, v5, v6")
        A("v_lshlrev_b32 v4, 7, v4")
        A(f"v_lshl_add_u32 v4, v5, 4, v4")
        A(f"v_xor_b32 v5, 64, v4")
        A(f"v_add_u32 v{self.vPr0}, s{self.s_lb}, v4")
        A(f"v_add_u32 v{self.vPr1}, s{self.s_lb}, v5")
        A("v_and_b32 v6, 15, v0")
        A("v_lshlrev_b32 v6, 3, v6")
        A("v_and_b32 v7, 16, v0")
        A("v_lshl_add_u32 v6, v7, 3, v6")
        A("v_and_b32 v7, 32, v0")
        A("v_lshl_add_u32 v6, v7, 4, v6")
        A(f"v_add_u32 v{self.vTr}, s{self.s_lb}, v6")
        for i in range(self.ACC, self.vend): A(f"v_mov_b32 v{i}, 0")
    def dma_groups(self, it):
        NT = self.NT; sl = it & 1
        g = []
        pre = []
        pre.append(f"s_add_u32 s{self.s_st}, s{self.s_w}, {4*it}")
        pre.append(f"s_cmp_lt_u32 s{self.s_st}, {self.nstg}")
        pre.append(f"s_cselect_b32 s{self.s_t1}, 0, {KILL}")
        pre.append(f"s_lshl_b32 s{self.s_pk}, s{self.s_st}, 7")
        pre.append(f"s_add_u32 s{self.s_pk}, s{self.s_pk}, s{self.s_prow}")
        pre.append(f"s_add_u32 s{self.s_pk}, s{self.s_pk}, s{self.s_t1}")
        if self.tmode == 'packed':
            pre.append(f"s_mul_i32 s{self.s_tk}, s{self.s_st}, {NT*2048}")
        else:
            pre.append(f"s_mul_i32 s{self.s_tk}, s{self.s_st}, {64*self.pitchW}")
        pre.append(f"s_add_u32 s{self.s_tk}, s{self.s_tk}, s{self.s_tb}")
        pre.append(f"s_add_u32 s{self.s_tk}, s{self.s_tk}, s{self.s_t1}")
        g.append(pre)
        for n in range(8):
            g.append([f"s_add_u32 m0, s{self.s_lb}, {sl*self.SLOT + n*1024}",
                      f"s_add_u32 s{self.s_t0}, s{self.s_pk}, {n*8*self.pitchP}",
                      f"buffer_load_dwordx4 v{self.vPg}, s[{self.sP}:{self.sP+3}], s{self.s_t0} offen lds"])
        if self.tmode == 'packed':
            for n in range(2*NT):
                g.append([f"s_add_u32 m0, s{self.s_lb}, {sl*self.SLOT + 8192 + n*1024}",
                          f"s_add_u32 s{self.s_t0}, s{self.s_tk}, {n*1024}",
                          f"buffer_load_dwordx4 v{self.vTg}, s[{self.sT}:{self.sT+3}], s{self.s_t0} offen lds"])
        else:
            for t in range(NT):
                for kk in range(2):
                    g.append([f"s_add_u32 m0, s{self.s_lb}, {sl*self.SLOT + 8192 + t*2048 + kk*1024}",
                              f"s_add_u32 s{self.s_t0}, s{self.s_tk}, {kk*32*self.pitchW + t*32}",
                              f"buffer_load_dwordx4 v{self.vTg}, s[{self.sT}:{self.sT+3}], s{self.s_t0} offen lds"])
        return g
    def ndma(self): return 8 + 2*self.NT
    def prologue(self):
        A = self.A
        for it in range(min(2, self.nit)):
            for grp in self.dma_groups(it):
                for x in grp: A(x)
    def loop(self, st=None):
        A = self.A; NT = self.NT
        for it in range(self.nit):
            sl = it & 1
            out_next = self.ndma() if it + 1 < self.nit else 0
            A(f"s_waitcnt vmcnt({out_next})")
            if st: st()
            for kk in range(2):
                vp = self.vPr0 if kk == 0 else self.vPr1
                for m in range(4):
                    r = self.FP + 4*(kk*4 + m)
                    A(f"ds_read_b128 v[{r}:{r+3}], v{vp} offset:{sl*self.SLOT + m*2048}")
                for t in range(NT):
                    r = self.FT + 4*(kk*NT + t)
                    for h in range(2):
                        A(f"ds_read_b64_tr_b16 v[{r+2*h}:{r+2*h+1}], v{self.vTr} offset:{sl*self.SLOT + 8192 + t*2048 + kk*1024 + h*256}")
            A("s_waitcnt lgkmcnt(0)")
            groups = self.dma_groups(it + 2) if it + 2 < self.nit else []
            n = 0
            for kk in range(2):
                for m in range(4):
                    for t in range(NT):
                        rp = self.FP + 4*(kk*4 + m); rt = self.FT + 4*(kk*NT + t); ac = self.acc(m, t)
                        A(f"v_mfma_f32_16x16x32_bf16 v[{ac}:{ac+3}], v[{rt}:{rt+3}], v[{rp}:{rp+3}], v[{ac}:{ac+3}]")
                        n += 1
                        if n % 2 == 0 and groups:
                            for x in groups.pop(0): A(x)
            while groups:
                for x in groups.pop(0): A(x)
    def reduce(self):
        A = self.A; NT = self.NT
        A("s_barrier")
        A(f"s_mul_i32 s{self.s_t0}, s{self.s_w}, {NT*1024}")
        A("v_lshlrev_b32 v7, 4, v0")
        A(f"v_add_u32 v2, s{self.s_t0}, v7")
        for m in range(4):
            for t in range(NT):
                ac = self.acc(m, t)
                off = m*4*NT*1024 + t*1024
                base = 2
                if off >= 65536:
                    pass
                A(f"ds_write_b128 v2, v[{ac}:{ac+3}] offset:{off % 65536}" if off < 65536 else f"ds_write_b128 v3, v[{ac}:{ac+3}] offset:{off - 65536}")
                if m == 0 and t == 0:
                    A("v_add_u32 v3, 0x10000, v2")
        A(f"s_mul_i32 s{self.s_t0}, s{self.s_w}, {4*NT*1024}")
        A(f"v_add_u32 v2, s{self.s_t0}, v7")
        A("s_waitcnt lgkmcnt(0)")
        A("s_barrier")
        R = self.FP
        for src in range(4):
            for t in range(NT):
                r = R + 4*(src*NT + t)
                A(f"ds_read_b128 v[{r}:{r+3}], v2 offset:{src*NT*1024 + t*1024}")
        A("s_waitcnt lgkmcnt(0)")
        for t in range(NT):
            for i in range(4):
                d = R + 4*t + i
                A(f"v_add_f32 v{d}, v{d}, v{R + 4*(NT+t) + i}")
                A(f"v_add_f32 v{R + 4*(2*NT+t) + i}, v{R + 4*(2*NT+t) + i}, v{R + 4*(3*NT+t) + i}")
            for i in range(4):
                d = R + 4*t + i
                A(f"v_add_f32 v{d}, v{d}, v{R + 4*(2*NT+t) + i}")
        return R

def gelu_inplace(A, regs, tmp, sC0, sC1):
    n = len(regs)
    for i, r in enumerate(regs): A(f"v_mul_f32 v{tmp+i}, v{r}, v{r}")
    for i, r in enumerate(regs): A(f"v_fma_f32 v{tmp+i}, v{tmp+i}, s{sC1}, v{sC0}")
    for i, r in enumerate(regs): A(f"v_mul_f32 v{tmp+i}, v{tmp+i}, v{r}")
    for i, r in enumerate(regs): A(f"v_exp_f32 v{tmp+i}, v{tmp+i}")
    for i, r in enumerate(regs): A(f"v_add_f32 v{tmp+i}, 1.0, v{tmp+i}")
    for i, r in enumerate(regs): A(f"v_rcp_f32 v{tmp+i}, v{tmp+i}")
    for i, r in enumerate(regs): A(f"v_mul_f32 v{r}, v{r}, v{tmp+i}")

def k1(A):
    name = "k1_kernel"
    kernel_begin(A, name)
    NG = 1152
    A(f"s_cmp_ge_u32 s2, {NG + 32 + 176}")
    A("s_cbranch_scc1 K1_end")
    load_ptr(A, 26, 'x'); load_ptr(A, 28, 'wqkv'); load_ptr(A, 30, 'win'); load_ptr(A, 32, 'ws')
    load_ptr(A, 34, 'gw'); load_ptr(A, 36, 'wo'); load_ptr(A, 38, 'wout')
    wave_lane(A, 16)
    A("s_waitcnt lgkmcnt(0)")
    A(f"s_cmp_ge_u32 s2, {NG + 32}")
    A("s_cbranch_scc1 K1_pack")
    A(f"s_cmp_ge_u32 s2, {NG}")
    A("s_cbranch_scc1 K1_gate")
    A(f"s_mul_hi_u32 s40, s2, {(2**32 + 35)//36}")
    A("s_mul_i32 s41, s40, 36")
    A("s_sub_u32 s41, s2, s41")
    srd(A, 4, 26, 2048*640*2)
    A("s_cmp_ge_u32 s41, 20")
    A("s_cbranch_scc1 K1_z")
    for typ in ("qkv", "z"):
        pitchW = 3840 if typ == "qkv" else 3072
        E = E1(A, 6, 10, 1280, 'gather', pitchW)
        if typ == "qkv":
            srd(A, 8, 28, 640*1920*2)
            A("s_mul_i32 s18, s41, 192")
        else:
            A.label("K1_z")
            srd(A, 8, 30, 640*1536*2)
            A("s_sub_u32 s42, s41, 20")
            A("s_mul_i32 s18, s42, 192")
        A(f"s_mul_i32 s17, s40, {64*1280}")
        E.setup(); E.prologue(); E.loop()
        R = E.reduce()
        A("s_lshl_b32 s43, s40, 6")
        A("s_lshl_b32 s44, s16, 4")
        A("s_add_u32 s43, s43, s44")
        A("v_and_b32 v2, 15, v0")
        A("v_add_u32 v2, s43, v2")
        A("v_lshrrev_b32 v3, 4, v0")
        PK = R + 24*2
        if typ == "qkv":
            srd(A, 12, 32, SZ_QKV, WS_QKV)
            A("s_mov_b32 s45, 3840")
            A("v_mul_lo_u32 v4, v2, s45")
            A("v_lshl_add_u32 v4, v3, 3, v4")
            A("s_mul_i32 s46, s41, 192")
            A("v_add_u32 v4, s46, v4")
            for t in range(6):
                A(f"v_cvt_pk_bf16_f32 v{PK+2*t}, v{R+4*t}, v{R+4*t+1}")
                A(f"v_cvt_pk_bf16_f32 v{PK+2*t+1}, v{R+4*t+2}, v{R+4*t+3}")
            for t in range(6):
                A(f"buffer_store_dwordx2 v[{PK+2*t}:{PK+2*t+1}], v4, s[12:15], 0 offen offset:{t*32}")
            A("s_branch K1_end")
        else:
            A(f"s_mov_b32 s47, {f2u(C1)}")
            A(f"v_mov_b32 v5, {f2u(C0)}")
            gelu_inplace(A, [R+i for i in range(24)], R+24, 5, 47)
            for t in range(6):
                A(f"v_cvt_pk_bf16_f32 v{PK+2*t}, v{R+4*t}, v{R+4*t+1}")
                A(f"v_cvt_pk_bf16_f32 v{PK+2*t+1}, v{R+4*t+2}, v{R+4*t+3}")
            A("s_cmp_ge_u32 s42, 8")
            A("s_cbranch_scc1 K1_z2")
            srd(A, 12, 32, SZ_Z1, WS_Z1)
            A("s_mov_b32 s45, 1536")
            A("v_mul_lo_u32 v4, v2, s45")
            A("v_lshl_add_u32 v4, v3, 3, v4")
            A("s_mul_i32 s46, s42, 192")
            A("v_add_u32 v4, s46, v4")
            for t in range(6):
                A(f"buffer_store_dwordx2 v[{PK+2*t}:{PK+2*t+1}], v4, s[12:15], 0 offen offset:{t*32}")
            A("s_branch K1_end")
            A.label("K1_z2")
            srd(A, 12, 32, SZ_Z2P, WS_Z2P)
            A("s_sub_u32 s48, s42, 8")
            A("s_lshl_b32 s46, s48, 5")
            A("s_add_u32 s46, s46, s40")
            A(f"s_mul_i32 s46, s46, {6*2048}")
            A("s_lshl_b32 s44, s16, 9")
            A("s_add_u32 s46, s46, s44")
            A("v_and_b32 v6, 15, v0")
            A("v_and_b32 v7, 3, v6")
            A("v_and_b32 v4, 4, v6")
            A("v_lshl_or_b32 v7, v4, 1, v7")
            A("v_and_b32 v4, 8, v6")
            A("v_lshrrev_b32 v4, 1, v4")
            A("v_or_b32 v7, v7, v4")
            A("v_lshlrev_b32 v7, 5, v7")
            A("v_lshl_add_u32 v4, v3, 3, v7")
            A("v_add_u32 v4, s46, v4")
            for t in range(6):
                A(f"s_mov_b32 s44, {t*2048}")
                A(f"buffer_store_dwordx2 v[{PK+2*t}:{PK+2*t+1}], v4, s[12:15], s44 offen")
            S1 = R + 24; S2 = R + 25; T1 = R + 26; T2 = R + 27
            A(f"v_mov_b32 v{S1}, v{R}")
            A(f"v_mul_f32 v{S2}, v{R}, v{R}")
            for i in range(1, 24):
                A(f"v_add_f32 v{S1}, v{S1}, v{R+i}")
                A(f"v_fmac_f32 v{S2}, v{R+i}, v{R+i}")
            for sh in (16, 32):
                A(f"v_xor_b32 v6, {sh}, v0")
                A("v_lshlrev_b32 v6, 2, v6")
                A(f"ds_bpermute_b32 v{T1}, v6, v{S1}")
                A(f"ds_bpermute_b32 v{T2}, v6, v{S2}")
                A("s_waitcnt lgkmcnt(0)")
                A(f"v_add_f32 v{S1}, v{S1}, v{T1}")
                A(f"v_add_f32 v{S2}, v{S2}, v{T2}")
            srd(A, 12, 32, SZ_ST, WS_ST)
            A("s_lshl_b32 s46, s48, 14")
            A("v_lshlrev_b32 v4, 3, v2")
            A("v_add_u32 v4, s46, v4")
            A("v_cmp_gt_u32 vcc, 16, v0")
            A("s_and_saveexec_b64 s[50:51], vcc")
            A(f"buffer_store_dwordx2 v[{S1}:{S2}], v4, s[12:15], 0 offen")
            A("s_branch K1_end")
    A.label("K1_gate")
    srd(A, 4, 26, 2048*640*2)
    srd(A, 8, 34, 640*2)
    srd(A, 12, 32, SZ_G, WS_G)
    A(f"s_sub_u32 s40, s2, {NG}")
    A("s_lshl_b32 s40, s40, 6")
    A("s_lshl_b32 s41, s16, 4")
    A("s_add_u32 s40, s40, s41")
    A("v_lshlrev_b32 v2, 2, v0")
    for i in range(5): A(f"buffer_load_dword v{8+i}, v2, s[8:11], 0 offen offset:{256*i}")
    A("s_mul_i32 s42, s40, 1280")
    for r in range(16):
        A(f"s_add_u32 s43, s42, {r*1280}")
        for i in range(5): A(f"buffer_load_dword v{16+5*r+i}, v2, s[4:7], s43 offen offset:{256*i}")
    A("s_waitcnt vmcnt(0)")
    for r in range(16):
        A(f"v_mov_b32 v{100+r}, 0")
        for i in range(5): A(f"v_dot2_f32_bf16 v{100+r}, v{16+5*r+i}, v{8+i}, v{100+r}")
    for sh in (1, 2, 4, 8, 16, 32):
        A(f"v_xor_b32 v6, {sh}, v0")
        A("v_lshlrev_b32 v6, 2, v6")
        for r in range(16): A(f"ds_bpermute_b32 v{120+r}, v6, v{100+r}")
        A("s_waitcnt lgkmcnt(0)")
        for r in range(16): A(f"v_add_f32 v{100+r}, v{100+r}, v{120+r}")
    A("v_mov_b32 v3, v100")
    for r in range(1, 16):
        A(f"v_cmp_eq_u32 vcc, {r}, v0")
        A(f"v_cndmask_b32 v3, v3, v{100+r}, vcc")
    A(f"v_mul_f32 v3, {f2u(-1.4426950408889634)}, v3")
    A("v_exp_f32 v3, v3")
    A("v_add_f32 v3, 1.0, v3")
    A("v_rcp_f32 v3, v3")
    A("v_add_u32 v4, s40, v0")
    A("v_lshlrev_b32 v4, 2, v4")
    A("v_cmp_gt_u32 vcc, 16, v0")
    A("s_and_saveexec_b64 s[50:51], vcc")
    A("buffer_store_dword v3, v4, s[12:15], 0 offen")
    A("s_branch K1_end")
    A.label("K1_pack")
    A("s_cmp_ge_u32 s16, 2")
    A("s_cbranch_scc1 K1_end")
    A(f"s_sub_u32 s40, s2, {NG+32}")
    A(f"s_mul_hi_u32 s41, s40, {(2**32 + 21)//22}")
    A("s_mul_i32 s42, s41, 22")
    A("s_sub_u32 s42, s40, s42")
    srd(A, 12, 32, SZ_WP, WS_WP)
    A("s_cmp_lt_u32 s42, 10")
    A("s_cselect_b32 s4, s36, s38")
    A("s_cselect_b32 s5, s37, s39")
    A(f"s_mov_b32 s6, {768*640*2}")
    A(f"s_cselect_b32 s6, {640*640*2}, s6")
    A("s_mov_b32 s7, 0x20000")
    A("s_cselect_b32 s43, 0, 10")
    A("s_sub_u32 s43, s42, s43")
    A(f"s_mul_i32 s43, s43, {64*1280}")
    A("s_mul_i32 s44, s41, 160")
    A("s_add_u32 s43, s43, s44")
    A("s_lshl_b32 s45, s16, 6")
    A("v_add_u32 v2, s45, v0")
    A("v_lshrrev_b32 v3, 1, v2")
    A("v_and_b32 v4, 0x33, v3")
    A("v_and_b32 v5, 4, v3")
    A("v_lshl_or_b32 v4, v5, 1, v4")
    A("v_and_b32 v5, 8, v3")
    A("v_lshrrev_b32 v5, 1, v5")
    A("v_or_b32 v4, v4, v5")
    A("s_mov_b32 s46, 1280")
    A("v_mul_lo_u32 v4, v4, s46")
    A("v_and_b32 v5, 1, v2")
    A("v_lshl_add_u32 v4, v5, 4, v4")
    for t in range(5): A(f"buffer_load_dwordx4 v[{8+4*t}:{11+4*t}], v4, s[4:7], s43 offen offset:{32*t}")
    A(f"s_mul_i32 s47, s40, {5*2048}")
    A("v_lshlrev_b32 v5, 4, v2")
    A("s_waitcnt vmcnt(0)")
    for t in range(5):
        A(f"s_add_u32 s48, s47, {t*2048}")
        A(f"buffer_store_dwordx4 v[{8+4*t}:{11+4*t}], v5, s[12:15], s48 offen")
    A.label("K1_end")
    A("s_endpgm")
    return name, NG+32+176, 256, 163840, 200

def k2(A):
    name = "k2_kernel"
    kernel_begin(A, name)
    A("s_cmp_ge_u32 s2, 512")
    A("s_cbranch_scc1 K2_end")
    load_ptr(A, 32, 'ws')
    wave_lane(A, 16)
    A("s_waitcnt lgkmcnt(0)")
    A("s_cmp_ge_u32 s2, 256")
    A("s_cbranch_scc1 K2_ln")
    A("s_lshr_b32 s40, s2, 3")
    A("s_and_b32 s41, s2, 7")
    srd(A, 4, 32, SZ_QKV, WS_QKV)
    srd(A, 8, 32, SZ_AU, WS_AU)
    srd(A, 12, 32, SZ_G, WS_G)
    PITCH = 480
    for i in range(10):
        A(f"s_lshl_b32 s42, s16, 6")
        A(f"s_add_u32 s42, s42, {i*256}")
        A("v_add_u32 v2, s42, v0")
        A(f"s_mov_b32 s43, {(2**32 + 29)//30}")
        A("v_mul_hi_u32 v3, v2, s43")
        A("v_mul_u32_u24 v4, 30, v3")
        A("v_sub_u32 v4, v2, v4")
        A(f"s_mov_b32 s43, {(2**32 + 9)//10}")
        A("v_mul_hi_u32 v5, v4, s43")
        A("v_mul_u32_u24 v6, 10, v5")
        A("v_sub_u32 v6, v4, v6")
        A("v_mul_u32_u24 v5, 1280, v5")
        A("v_lshl_add_u32 v5, v6, 4, v5")
        A("s_lshl_b32 s44, s40, 6")
        A("v_add_u32 v3, s44, v3")
        A("v_subrev_u32 v3, 16, v3")
        A("s_mov_b32 s43, 3840")
        A("v_mul_lo_u32 v7, v3, s43")
        A("v_add_u32 v7, v7, v5")
        A("s_mul_i32 s45, s41, 160")
        A("v_add_u32 v7, s45, v7")
        A("v_cmp_gt_i32 vcc, 0, v3")
        A(f"v_mov_b32 v6, {KILL}")
        A("v_cndmask_b32 v7, v7, v6, vcc")
        A("v_cmp_le_u32 vcc, 2400, v2")
        A("v_cndmask_b32 v7, v7, v6, vcc")
        A("s_lshl_b32 m0, s42, 4")
        A("buffer_load_dwordx4 v7, s[4:7], 0 offen lds")
    A("s_lshl_b32 s44, s40, 6")
    A("v_add_u32 v9, s44, v0")
    A("v_lshlrev_b32 v2, 2, v9")
    A("buffer_load_dword v10, v2, s[12:15], 0 offen")
    A("s_waitcnt vmcnt(0)")
    A("s_barrier")
    A("s_mul_i32 s45, s16, 40")
    A(f"v_mul_u32_u24 v2, {PITCH}, v0")
    A(f"v_add_u32 v2, s45, v2")
    Q = 12; KK = 24; L = 40
    for i in range(5): A(f"ds_read_b64 v[{Q+2*i}:{Q+2*i+1}], v2 offset:{16*PITCH + 8*i}")
    for j in range(8):
        for i in range(5): A(f"ds_read_b64 v[{KK+2*i}:{KK+2*i+1}], v2 offset:{(16-2*j)*PITCH + 160 + 8*i}")
        A("s_waitcnt lgkmcnt(0)")
        A(f"v_mov_b32 v{L+j}, 0")
        for i in range(10): A(f"v_dot2_f32_bf16 v{L+j}, v{Q+i}, v{KK+i}, v{L+j}")
    A(f"v_mov_b32 v11, {f2u(-1e30)}")
    for j in range(1, 8):
        A(f"v_cmp_gt_u32 vcc, {2*j}, v9")
        A(f"v_cndmask_b32 v{L+j}, v{L+j}, v11, vcc")
    A(f"v_max3_f32 v50, v{L}, v{L+1}, v{L+2}")
    A(f"v_max3_f32 v50, v50, v{L+3}, v{L+4}")
    A(f"v_max3_f32 v50, v50, v{L+5}, v{L+6}")
    A(f"v_max_f32 v50, v50, v{L+7}")
    SC = (20 ** -0.5) * 1.4426950408889634
    A(f"s_mov_b32 s46, {f2u(SC)}")
    for j in range(8): A(f"v_sub_f32 v{L+j}, v{L+j}, v50")
    for j in range(8): A(f"v_mul_f32 v{L+j}, s46, v{L+j}")
    for j in range(8): A(f"v_exp_f32 v{L+j}, v{L+j}")
    A(f"v_add_f32 v51, v{L}, v{L+1}")
    for j in range(2, 8): A(f"v_add_f32 v51, v51, v{L+j}")
    A("v_rcp_f32 v51, v51")
    A("v_mul_f32 v51, v51, v10")
    for j in range(8): A(f"v_mul_f32 v{L+j}, v{L+j}, v51")
    O = 60
    for d in range(20): A(f"v_mov_b32 v{O+d}, 0")
    for j in range(8):
        for i in range(5): A(f"ds_read_b64 v[{KK+2*i}:{KK+2*i+1}], v2 offset:{(16-2*j)*PITCH + 320 + 8*i}")
        A("s_waitcnt lgkmcnt(0)")
        for i in range(10):
            A(f"v_lshlrev_b32 v52, 16, v{KK+i}")
            A(f"v_and_b32 v53, 0xffff0000, v{KK+i}")
            A(f"v_fmac_f32 v{O+2*i}, v{L+j}, v52")
            A(f"v_fmac_f32 v{O+2*i+1}, v{L+j}, v53")
    for i in range(10): A(f"v_cvt_pk_bf16_f32 v{84+i}, v{O+2*i}, v{O+2*i+1}")
    A("s_mov_b32 s43, 2816")
    A("v_mul_lo_u32 v2, v9, s43")
    A("s_lshl_b32 s45, s41, 2")
    A("s_add_u32 s45, s45, s16")
    A("s_mul_i32 s45, s45, 40")
    A("v_add_u32 v2, s45, v2")
    for i in range(5): A(f"buffer_store_dwordx2 v[{84+2*i}:{85+2*i}], v2, s[8:11], 0 offen offset:{8*i}")
    A("s_branch K2_end")
    A.label("K2_ln")
    A("s_sub_u32 s40, s2, 256")
    A("s_and_b32 s41, s40, 7")
    A("s_lshr_b32 s40, s40, 3")
    srd(A, 4, 32, SZ_ST, WS_ST)
    srd(A, 8, 32, SZ_Z2P, WS_Z2P)
    A("s_lshl_b32 s45, s16, 6")
    A("v_add_u32 v2, s45, v0")
    A("v_lshrrev_b32 v3, 1, v2")
    A("v_and_b32 v3, 63, v3")
    A("v_and_b32 v4, 0x33, v3")
    A("v_and_b32 v5, 4, v3")
    A("v_lshl_or_b32 v4, v5, 1, v4")
    A("v_and_b32 v5, 8, v3")
    A("v_lshrrev_b32 v5, 1, v5")
    A("v_or_b32 v4, v4, v5")
    A("s_lshl_b32 s44, s40, 6")
    A("v_add_u32 v4, s44, v4")
    A("v_lshlrev_b32 v4, 3, v4")
    for jj in range(8):
        A(f"s_mov_b32 s46, {jj*16384}")
        A(f"buffer_load_dwordx2 v[{8+2*jj}:{9+2*jj}], v4, s[4:7], s46 offen")
    A("s_lshl_b32 s46, s41, 5")
    A("s_add_u32 s46, s46, s40")
    A(f"s_mul_i32 s46, s46, {6*2048}")
    A("v_lshlrev_b32 v5, 4, v2")
    for i in range(3): A(f"s_add_u32 s{47+i}, s46, {i*4096}")
    for i in range(3): A(f"buffer_load_dwordx4 v[{24+4*i}:{27+4*i}], v5, s[8:11], s{47+i} offen")
    A("s_waitcnt vmcnt(0)")
    for jj in range(1, 8):
        A(f"v_add_f32 v8, v8, v{8+2*jj}")
        A(f"v_add_f32 v9, v9, v{9+2*jj}")
    A(f"v_mul_f32 v8, {f2u(1/768)}, v8")
    A(f"v_mul_f32 v9, {f2u(1/768)}, v9")
    A("v_fma_f32 v9, -v8, v8, v9")
    A("v_max_f32 v9, 0, v9")
    A(f"v_add_f32 v9, {f2u(1e-5)}, v9")
    A("v_rsq_f32 v9, v9")
    A("v_mul_f32 v10, v8, v9")
    A("v_sub_f32 v10, 0, v10")
    for i in range(3):
        for q in range(4):
            r = 24 + 4*i + q
            A(f"v_lshlrev_b32 v12, 16, v{r}")
            A(f"v_and_b32 v13, 0xffff0000, v{r}")
            A("v_fma_f32 v12, v12, v9, v10")
            A("v_fma_f32 v13, v13, v9, v10")
            A(f"v_cvt_pk_bf16_f32 v{r}, v12, v13")
    for i in range(3): A(f"buffer_store_dwordx4 v[{24+4*i}:{27+4*i}], v5, s[8:11], s{47+i} offen")
    A.label("K2_end")
    A("s_endpgm")
    return name, 512, 256, 40960, 100

def tile_map(A):
    A("s_and_b32 s42, s2, 7")
    A("s_lshr_b32 s43, s2, 3")
    A("s_lshr_b32 s40, s42, 1")
    A("s_lshl_b32 s40, s40, 3")
    A("s_and_b32 s44, s43, 7")
    A("s_add_u32 s40, s40, s44")
    A("s_and_b32 s41, s42, 1")
    A("s_lshl_b32 s41, s41, 2")
    A("s_lshr_b32 s44, s43, 3")
    A("s_add_u32 s41, s41, s44")

def k3(A):
    name = "k3_kernel"
    kernel_begin(A, name)
    A("s_cmp_ge_u32 s2, 256")
    A("s_cbranch_scc1 K3_end")
    load_ptr(A, 26, 'wsp'); load_ptr(A, 28, 'bsp'); load_ptr(A, 32, 'ws')
    wave_lane(A, 16)
    tile_map(A)
    A("s_waitcnt lgkmcnt(0)")
    srd(A, 4, 26, 2048*2048*2)
    srd(A, 8, 32, SZ_Z2P, WS_Z2P)
    E = E1(A, 6, 32, 4096, 'packed')
    A(f"s_mul_i32 s17, s40, {64*4096}")
    A(f"s_mul_i32 s18, s41, {32*6*2048}")
    st = Stamps(A, 2); st()
    E.setup(); E.prologue(); st(); E.loop(st); st()
    R = E.reduce(); st()
    A("s_lshl_b32 s43, s40, 6")
    A("s_lshl_b32 s44, s16, 4")
    A("s_add_u32 s43, s43, s44")
    A("v_and_b32 v2, 15, v0")
    A("v_add_u32 v2, s43, v2")
    A("v_lshrrev_b32 v3, 4, v0")
    srd(A, 4, 32, SZ_Z1, WS_Z1)
    srd(A, 8, 32, SZ_G, WS_G)
    srd(A, 12, 28, 2048*2)
    Z = R + 24
    A("s_mov_b32 s45, 1536")
    A("v_mul_lo_u32 v4, v2, s45")
    A("v_lshl_add_u32 v4, v3, 3, v4")
    A("s_mul_i32 s46, s41, 192")
    A("v_add_u32 v4, s46, v4")
    for t in range(6): A(f"buffer_load_dwordx2 v[{Z+2*t}:{Z+2*t+1}], v4, s[4:7], 0 offen offset:{t*32}")
    A("v_lshlrev_b32 v5, 2, v2")
    A("buffer_load_dword v6, v5, s[8:11], 0 offen")
    A("v_lshlrev_b32 v5, 1, v2")
    A("buffer_load_ushort v7, v5, s[12:15], 0 offen")
    A("s_waitcnt vmcnt(0)")
    A("v_lshlrev_b32 v7, 16, v7")
    A("v_sub_f32 v6, 1.0, v6")
    srd(A, 12, 32, SZ_AU, WS_AU)
    for t in range(6):
        for q in range(2):
            z = Z + 2*t + q
            A(f"v_lshlrev_b32 v100, 16, v{z}")
            A(f"v_and_b32 v101, 0xffff0000, v{z}")
            A(f"v_add_f32 v102, v{R+4*t+2*q}, v7")
            A(f"v_add_f32 v103, v{R+4*t+2*q+1}, v7")
            A("v_mul_f32 v100, v100, v6")
            A("v_mul_f32 v101, v101, v6")
            A("v_mul_f32 v102, v102, v100")
            A("v_mul_f32 v103, v103, v101")
            A(f"v_cvt_pk_bf16_f32 v{z}, v102, v103")
    A("s_mov_b32 s45, 2816")
    A("v_mul_lo_u32 v4, v2, s45")
    A("v_lshl_add_u32 v4, v3, 3, v4")
    A("s_mul_i32 s46, s41, 192")
    A("s_add_u32 s46, s46, 1280")
    A("v_add_u32 v4, s46, v4")
    for t in range(6): A(f"buffer_store_dwordx2 v[{Z+2*t}:{Z+2*t+1}], v4, s[12:15], 0 offen offset:{t*32}")
    if STAMP: A("s_waitcnt vmcnt(0)")
    st(); st.flush(16, 32)
    A.label("K3_end")
    A("s_endpgm")
    return name, 256, 256, 163840, 200

def k4(A):
    name = "k4_kernel"
    kernel_begin(A, name)
    A("s_cmp_ge_u32 s2, 256")
    A("s_cbranch_scc1 K4_end")
    load_ptr(A, 26, 'out'); load_ptr(A, 32, 'ws')
    wave_lane(A, 16)
    tile_map(A)
    A("s_waitcnt lgkmcnt(0)")
    srd(A, 4, 32, SZ_AU, WS_AU)
    srd(A, 8, 32, SZ_WP, WS_WP)
    E = E1(A, 5, 22, 2816, 'packed')
    A(f"s_mul_i32 s17, s40, {64*2816}")
    A(f"s_mul_i32 s18, s41, {22*5*2048}")
    st = Stamps(A, 3); st()
    E.setup(); E.prologue(); st(); E.loop(st); st()
    R = E.reduce(); st()
    A("s_lshl_b32 s43, s40, 6")
    A("s_lshl_b32 s44, s16, 4")
    A("s_add_u32 s43, s43, s44")
    A("v_and_b32 v2, 15, v0")
    A("v_add_u32 v2, s43, v2")
    A("v_lshrrev_b32 v3, 4, v0")
    srd(A, 12, 26, 2048*640*2)
    PK = R + 20
    for t in range(5):
        A(f"v_cvt_pk_bf16_f32 v{PK+2*t}, v{R+4*t}, v{R+4*t+1}")
        A(f"v_cvt_pk_bf16_f32 v{PK+2*t+1}, v{R+4*t+2}, v{R+4*t+3}")
    A("s_mov_b32 s45, 1280")
    A("v_mul_lo_u32 v4, v2, s45")
    A("v_lshl_add_u32 v4, v3, 3, v4")
    A("s_mul_i32 s46, s41, 160")
    A("v_add_u32 v4, s46, v4")
    for t in range(5): A(f"buffer_store_dwordx2 v[{PK+2*t}:{PK+2*t+1}], v4, s[12:15], 0 offen offset:{t*32}")
    if STAMP: A("s_waitcnt vmcnt(0)")
    st(); st.flush(16, 32)
    A.label("K4_end")
    A("s_endpgm")
    return name, 256, 256, 163840, 200

def main(out):
    body = Asm()
    ks = []
    for f in (k1, k2, k3, k4):
        ks.append(f(body))
    hdr = []
    for (n, g, b, lds, vg) in ks:
        hdr.append(f"; @launch kernel={n} grid=({g},1,1) block=({b},1,1) lds={lds}")
    hdr.append('.amdgcn_target "amdgcn-amd-amdhsa--gfx950"')
    hdr.append(".text")
    lines = hazard.fix(body.lines, verbose=True)
    txt = "\n".join(hdr) + "\n" + "\n".join(lines) + "\n" + '.section .rodata,"a"\n'
    for (n, g, b, lds, vg) in ks: txt += kernel_desc(n, 256 if STAMP else vg, 96)
    open(out, "w").write(txt)
if __name__ == "__main__":
    if '--stamp' in sys.argv: STAMP = True
    main(sys.argv[1] if len(sys.argv) > 1 else "cdna_kernels/" + NAME + ".s")
```

```python
import sys
from asmlib import *
import hazard
import gen0
from gen0 import *

class E2:
    def __init__(self, A, pfx, NT, nsteps, pitchP, wave_m, wave_n, NS=7, kidx=2):
        self.kidx = kidx
        self.A = A; self.pfx = pfx; self.NT = NT; self.n = nsteps; self.pitchP = pitchP
        self.mP = wave_m; self.nT = wave_n
        self.NS = NS; self.SLOT = 20480
        self.sP = 4; self.sT = 8
        self.s_w = 16; self.s_prow = 17; self.s_tb = 18; self.s_i = 19; self.s_t0 = 20; self.s_t1 = 21; self.s_slot = 22
        self.s_pk = 23; self.s_tk = 24; self.s_tk2 = 25
        self.vPg = 2; self.vTg = 3; self.bPr0 = 2; self.bPr1 = 3; self.bTr = 4; self.vPr0 = 5; self.vPr1 = 6; self.vTr = 7
        self.F = [8, 8 + 8*(wave_m + wave_n)]
        self.ACC = 8 + 16*(wave_m + wave_n)
        self.vend = self.ACC + 4*wave_m*wave_n
    def fP(self, s, kk, m): return self.F[s] + 4*(kk*(self.mP+self.nT) + m)
    def fT(self, s, kk, t): return self.F[s] + 4*(kk*(self.mP+self.nT) + self.mP + t)
    def acc(self, m, t): return self.ACC + 4*(m*self.nT + t)
    def loader(self, st=None):
        A = self.A; NS = self.NS
        lw = self.s_t1
        A(f"s_sub_u32 s{lw}, s{self.s_w}, 4")
        A("v_lshrrev_b32 v7, 3, v0")
        A("v_and_b32 v2, 7, v0")
        A("v_xor_b32 v2, v2, v7")
        A(f"s_mov_b32 s{self.s_t0}, {self.pitchP}")
        A(f"v_mul_lo_u32 v7, v7, s{self.s_t0}")
        A(f"v_lshl_add_u32 v{self.vPg}, v2, 4, v7")
        A(f"v_lshlrev_b32 v{self.vTg}, 4, v0")
        A(f"s_mul_i32 s{self.s_t0}, s{lw}, {16*self.pitchP}")
        A(f"s_add_u32 s{self.s_pk}, s{self.s_prow}, s{self.s_t0}")
        A(f"s_mul_i32 s{self.s_t0}, s{lw}, 3072")
        A(f"s_add_u32 s{self.s_tk}, s{self.s_tb}, s{self.s_t0}")
        A(f"s_add_u32 s26, s{self.s_t0}, 8192")
        A(f"s_lshl_b32 s27, s{lw}, 11")
        A(f"s_mov_b32 s28, 0")
        A(f"s_mov_b32 s29, 0")
        if 2*self.NT < 12:
            A(f"s_mul_i32 s{self.s_t0}, s{lw}, 3")
            A(f"s_cmp_ge_u32 s{self.s_t0}, {2*self.NT - 1}")
            A(f"s_cselect_b32 s28, {KILL}, 0")
            A(f"s_cmp_ge_u32 s{self.s_t0}, {2*self.NT - 2}")
            A(f"s_cselect_b32 s29, {KILL}, 0")
        A(f"s_mov_b32 s{self.s_slot}, 0")
        A(f"s_mov_b32 s{self.s_i}, 0")
        def issue():
            A(f"s_add_u32 m0, s{self.s_slot}, s27")
            A(f"s_add_u32 s{self.s_t0}, s{self.s_pk}, {8*self.pitchP - 1024}")
            A(f"buffer_load_dwordx4 v{self.vPg}, s[{self.sP}:{self.sP+3}], s{self.s_pk} offen lds")
            A(f"buffer_load_dwordx4 v{self.vPg}, s[{self.sP}:{self.sP+3}], s{self.s_t0} offen offset:1024 lds")
            A(f"s_add_u32 m0, s{self.s_slot}, s26")
            A(f"s_add_u32 s{self.s_tk2}, s{self.s_tk}, s28")
            A(f"s_add_u32 s15, s{self.s_tk}, s29")
            A(f"buffer_load_dwordx4 v{self.vTg}, s[{self.sT}:{self.sT+3}], s{self.s_tk} offen lds")
            A(f"buffer_load_dwordx4 v{self.vTg}, s[{self.sT}:{self.sT+3}], s{self.s_tk2} offen offset:1024 lds")
            A(f"buffer_load_dwordx4 v{self.vTg}, s[{self.sT}:{self.sT+3}], s15 offen offset:2048 lds")
            A(f"s_add_u32 s{self.s_i}, s{self.s_i}, 1")
            A(f"s_add_u32 s{self.s_pk}, s{self.s_pk}, 128")
            A(f"s_add_u32 s{self.s_tk}, s{self.s_tk}, {self.NT*2048}")
            A(f"s_cmp_eq_u32 s{self.s_i}, {self.n}")
            A(f"s_cselect_b32 s{self.s_t0}, {KILL}, 0")
            A(f"s_add_u32 s{self.s_pk}, s{self.s_pk}, s{self.s_t0}")
            A(f"s_add_u32 s{self.s_tk}, s{self.s_tk}, s{self.s_t0}")
            A(f"s_add_u32 s{self.s_slot}, s{self.s_slot}, {self.SLOT}")
            A(f"s_cmp_eq_u32 s{self.s_slot}, {NS*self.SLOT}")
            A(f"s_cselect_b32 s{self.s_slot}, 0, s{self.s_slot}")
        for i in range(NS): issue()
        A(f"s_waitcnt vmcnt({(NS-1)*5})")
        A("s_barrier")
        L = self.pfx + "_lloop"
        A("s_mov_b32 s14, 0")
        if gen0.STAMP:
            for i in range(80, 84): A(f"s_mov_b32 s{i}, 0")
        A.label(L)
        if gen0.STAMP: A("s_memtime s[84:85]\ns_waitcnt lgkmcnt(0)")
        A(f"s_waitcnt vmcnt({(NS-2)*5})")
        if gen0.STAMP: A("s_memtime s[86:87]\ns_waitcnt lgkmcnt(0)\ns_sub_u32 s84, s86, s84\ns_add_u32 s80, s80, s84")
        A("s_barrier")
        if gen0.STAMP: A("s_memtime s[88:89]\ns_waitcnt lgkmcnt(0)\ns_sub_u32 s86, s88, s86\ns_add_u32 s81, s81, s86")
        issue()
        if gen0.STAMP: A("s_memtime s[84:85]\ns_waitcnt lgkmcnt(0)\ns_sub_u32 s84, s84, s88\ns_add_u32 s82, s82, s84")
        A("s_add_u32 s14, s14, 1")
        A(f"s_cmp_lt_u32 s14, {self.n}")
        A(f"s_cbranch_scc1 {L}")
        A("s_waitcnt vmcnt(0)")
        if gen0.STAMP:
            srd(A, 56, 32, 0x200000, WS_TS + (self.kidx+2)*0x40000)
            A(f"s_lshl_b32 s54, s2, 2")
            A(f"s_add_u32 s54, s54, s{self.s_w}")
            A(f"s_sub_u32 s54, s54, 4")
            A(f"s_lshl_b32 s54, s54, 7")
            A("s_mov_b64 exec, 1")
            A("v_mov_b32 v250, 0\nv_mov_b32 v251, 0")
            A(f"buffer_store_dword v250, v251, s[56:59], s54 offen")
            for i in range(3):
                A(f"v_mov_b32 v250, s{80+i}")
                A(f"v_mov_b32 v251, {4*(i+1)}")
                A(f"buffer_store_dword v250, v251, s[56:59], s54 offen")
    def compute_setup(self, row_off_expr, t_off_expr):
        A = self.A
        A("v_and_b32 v4, 15, v0")
        A("v_lshrrev_b32 v5, 4, v0")
        A("v_and_b32 v6, 7, v4")
        A("v_xor_b32 v5, v5, v6")
        A("v_lshlrev_b32 v4, 7, v4")
        A(f"v_lshl_add_u32 v4, v5, 4, v4")
        A(f"s_lshl_b32 s{self.s_t0}, s{row_off_expr}, 7")
        A(f"v_add_u32 v{self.bPr0}, s{self.s_t0}, v4")
        A(f"v_xor_b32 v{self.bPr1}, 64, v{self.bPr0}")
        A("v_and_b32 v6, 15, v0")
        A("v_lshlrev_b32 v6, 3, v6")
        A("v_and_b32 v7, 16, v0")
        A("v_lshl_add_u32 v6, v7, 3, v6")
        A("v_and_b32 v7, 32, v0")
        A("v_lshl_add_u32 v6, v7, 4, v6")
        A(f"s_lshl_b32 s{self.s_t0}, s{t_off_expr}, 11")
        A(f"s_add_u32 s{self.s_t0}, s{self.s_t0}, 8192")
        A(f"v_add_u32 v{self.bTr}, s{self.s_t0}, v6")
        for i in range(self.ACC, self.vend): A(f"v_mov_b32 v{i}, 0")
        A(f"s_mov_b32 s{self.s_slot}, 0")
    def reads(self, s):
        r = []
        for kk in range(2):
            vp = self.vPr0 if kk == 0 else self.vPr1
            for m in range(self.mP):
                f = self.fP(s, kk, m); r.append(f"ds_read_b128 v[{f}:{f+3}], v{vp} offset:{m*2048}")
            for t in range(self.nT):
                f = self.fT(s, kk, t)
                for h in range(2): r.append(f"ds_read_b64_tr_b16 v[{f+2*h}:{f+2*h+1}], v{self.vTr} offset:{t*2048 + kk*1024 + h*256}")
        return r
    def addr_update(self):
        A = self.A
        A(f"v_add_u32 v{self.vPr0}, s{self.s_slot}, v{self.bPr0}")
        A(f"v_add_u32 v{self.vPr1}, s{self.s_slot}, v{self.bPr1}")
        A(f"v_add_u32 v{self.vTr}, s{self.s_slot}, v{self.bTr}")
        A(f"s_add_u32 s{self.s_slot}, s{self.s_slot}, {self.SLOT}")
        A(f"s_cmp_eq_u32 s{self.s_slot}, {self.NS*self.SLOT}")
        A(f"s_cselect_b32 s{self.s_slot}, 0, s{self.s_slot}")
    def compute(self, st=None):
        A = self.A
        A("s_barrier")
        self.addr_update()
        for x in self.reads(0): A(x)
        A("s_waitcnt lgkmcnt(0)")
        if st: st()
        L = self.pfx + "_cloop"
        A(f"s_mov_b32 s{self.s_i}, 0")
        A.label(L)
        for s in range(2):
            A("s_barrier")
            self.addr_update()
            rd = self.reads(1 - s)
            mf = []
            for kk in range(2):
                for m in range(self.mP):
                    for t in range(self.nT):
                        ac = self.acc(m, t); fp = self.fP(s, kk, m); ft = self.fT(s, kk, t)
                        mf.append(f"v_mfma_f32_16x16x32_bf16 v[{ac}:{ac+3}], v[{ft}:{ft+3}], v[{fp}:{fp+3}], v[{ac}:{ac+3}]")
            per = (len(rd) + len(mf) - 1)//len(mf)
            for x in mf:
                for _ in range(per):
                    if rd: A(rd.pop(0))
                A(x)
            A("s_waitcnt lgkmcnt(0)")
        A(f"s_add_u32 s{self.s_i}, s{self.s_i}, 2")
        A(f"s_cmp_lt_u32 s{self.s_i}, {self.n}")
        A(f"s_cbranch_scc1 {L}")

def k3(A):
    name = "k3_kernel"
    kernel_begin(A, name)
    A("s_cmp_ge_u32 s2, 256")
    A("s_cbranch_scc1 K3_end")
    load_ptr(A, 30, 'wsp'); load_ptr(A, 32, 'ws'); load_ptr(A, 34, 'bsp')
    wave_lane(A, 16)
    tile_map(A)
    st = Stamps(A, 2); st()
    E = E2(A, "K3", 6, 32, 4096, 2, 3)
    A(f"s_mul_i32 s17, s40, {64*4096}")
    A(f"s_mul_i32 s18, s41, {32*6*2048}")
    A("s_waitcnt lgkmcnt(0)")
    A("s_cmp_lt_u32 s16, 4")
    A("s_cbranch_scc1 K3_comp")
    srd(A, 4, 30, 2048*2048*2)
    srd(A, 8, 32, SZ_Z2P, WS_Z2P)
    E.loader()
    A("s_branch K3_end")
    A.label("K3_comp")
    A("s_and_b32 s46, s16, 1")
    A("s_lshl_b32 s46, s46, 5")
    A("s_lshr_b32 s47, s16, 1")
    A("s_mul_i32 s47, s47, 3")
    PF = 116
    srd(A, 4, 32, SZ_Z1, WS_Z1)
    srd(A, 8, 32, SZ_G, WS_G)
    srd(A, 12, 34, 2048*2)
    A("s_lshl_b32 s43, s40, 6")
    A("s_add_u32 s43, s43, s46")
    A("v_and_b32 v112, 15, v0")
    A("v_add_u32 v112, s43, v112")
    A("v_lshrrev_b32 v113, 4, v0")
    A("s_mov_b32 s45, 1536")
    A("v_mul_lo_u32 v114, v112, s45")
    A("v_lshl_add_u32 v114, v113, 3, v114")
    A("s_mul_i32 s48, s41, 192")
    A("s_lshl_b32 s49, s47, 5")
    A("s_add_u32 s48, s48, s49")
    A("v_add_u32 v114, s48, v114")
    A(f"s_mov_b32 s49, {16*1536}")
    for m in range(2):
        for t in range(3):
            A(f"buffer_load_dwordx2 v[{PF+2*(3*m+t)}:{PF+2*(3*m+t)+1}], v114, s[4:7], {'s49' if m else '0'} offen offset:{t*32}")
    A("v_lshlrev_b32 v115, 2, v112")
    A(f"buffer_load_dword v{PF+12}, v115, s[8:11], 0 offen")
    A(f"buffer_load_dword v{PF+13}, v115, s[8:11], 0 offen offset:64")
    A("v_lshlrev_b32 v115, 1, v112")
    A(f"buffer_load_ushort v{PF+14}, v115, s[12:15], 0 offen")
    A(f"buffer_load_ushort v{PF+15}, v115, s[12:15], 0 offen offset:32")
    E.compute_setup(46, 47)
    st()
    E.compute(st)
    st()
    A("s_waitcnt vmcnt(0)")
    srd(A, 12, 32, SZ_AU, WS_AU)
    for m in range(2):
        A(f"v_lshlrev_b32 v{PF+14+m}, 16, v{PF+14+m}")
        A(f"v_sub_f32 v{PF+12+m}, 1.0, v{PF+12+m}")
    T = 132
    for m in range(2):
        for t in range(3):
            ac = E.acc(m, t)
            for q in range(2):
                z = PF + 2*(3*m+t) + q
                A(f"v_lshlrev_b32 v{T}, 16, v{z}")
                A(f"v_and_b32 v{T+1}, 0xffff0000, v{z}")
                A(f"v_add_f32 v{T+2}, v{ac+2*q}, v{PF+14+m}")
                A(f"v_add_f32 v{T+3}, v{ac+2*q+1}, v{PF+14+m}")
                A(f"v_mul_f32 v{T}, v{T}, v{PF+12+m}")
                A(f"v_mul_f32 v{T+1}, v{T+1}, v{PF+12+m}")
                A(f"v_mul_f32 v{T+2}, v{T+2}, v{T}")
                A(f"v_mul_f32 v{T+3}, v{T+3}, v{T+1}")
                A(f"v_cvt_pk_bf16_f32 v{z}, v{T+2}, v{T+3}")
    A("s_mov_b32 s45, 2816")
    A("v_mul_lo_u32 v114, v112, s45")
    A("v_lshl_add_u32 v114, v113, 3, v114")
    A("s_add_u32 s48, s48, 1280")
    A("v_add_u32 v114, s48, v114")
    A(f"s_mov_b32 s49, {16*2816}")
    for m in range(2):
        for t in range(3):
            A(f"buffer_store_dwordx2 v[{PF+2*(3*m+t)}:{PF+2*(3*m+t)+1}], v114, s[12:15], {'s49' if m else '0'} offen offset:{t*32}")
    if gen0.STAMP: A("s_waitcnt vmcnt(0)")
    st(); st.flush(16, 32)
    A.label("K3_end")
    A("s_endpgm")
    return name, 256, 512, 7*20480, 140

def k4(A):
    name = "k4_kernel"
    kernel_begin(A, name)
    A("s_cmp_ge_u32 s2, 256")
    A("s_cbranch_scc1 K4_end")
    load_ptr(A, 30, 'out'); load_ptr(A, 32, 'ws')
    wave_lane(A, 16)
    tile_map(A)
    st = Stamps(A, 3); st()
    E = E2(A, "K4", 5, 22, 2816, 1, 5, kidx=3)
    A(f"s_mul_i32 s17, s40, {64*2816}")
    A(f"s_mul_i32 s18, s41, {22*5*2048}")
    A("s_waitcnt lgkmcnt(0)")
    A("s_cmp_lt_u32 s16, 4")
    A("s_cbranch_scc1 K4_comp")
    srd(A, 4, 32, SZ_AU, WS_AU)
    srd(A, 8, 32, SZ_WP, WS_WP)
    E.loader()
    A("s_branch K4_end")
    A.label("K4_comp")
    A("s_lshl_b32 s46, s16, 4")
    A("s_mov_b32 s47, 0")
    E.compute_setup(46, 47)
    st()
    E.compute(st)
    st()
    A("s_lshl_b32 s43, s40, 6")
    A("s_add_u32 s43, s43, s46")
    A("v_and_b32 v2, 15, v0")
    A("v_add_u32 v2, s43, v2")
    A("v_lshrrev_b32 v3, 4, v0")
    srd(A, 12, 30, 2048*640*2)
    PK = 8
    for t in range(5):
        ac = E.acc(0, t)
        A(f"v_cvt_pk_bf16_f32 v{PK+2*t}, v{ac}, v{ac+1}")
        A(f"v_cvt_pk_bf16_f32 v{PK+2*t+1}, v{ac+2}, v{ac+3}")
    A("s_mov_b32 s45, 1280")
    A("v_mul_lo_u32 v4, v2, s45")
    A("v_lshl_add_u32 v4, v3, 3, v4")
    A("s_mul_i32 s46, s41, 160")
    A("v_add_u32 v4, s46, v4")
    for t in range(5): A(f"buffer_store_dwordx2 v[{PK+2*t}:{PK+2*t+1}], v4, s[12:15], 0 offen offset:{t*32}")
    if gen0.STAMP: A("s_waitcnt vmcnt(0)")
    st(); st.flush(16, 32)
    A.label("K4_end")
    A("s_endpgm")
    return name, 256, 512, 7*20480, 128

def main(out, kernels):
    body = Asm()
    ks = []
    for f in kernels: ks.append(f(body))
    hdr = []
    for (n, g, b, lds, vg) in ks:
        hdr.append(f"; @launch kernel={n} grid=({g},1,1) block=({b},1,1) lds={lds}")
    hdr.append('.amdgcn_target "amdgcn-amd-amdhsa--gfx950"')
    hdr.append(".text")
    lines = hazard.fix(body.lines, verbose=True)
    txt = "\n".join(hdr) + "\n" + "\n".join(lines) + "\n" + '.section .rodata,"a"\n'
    for (n, g, b, lds, vg) in ks: txt += kernel_desc(n, 256 if gen0.STAMP else vg, 96)
    open(out, "w").write(txt)
if __name__ == "__main__":
    if '--stamp' in sys.argv: gen0.STAMP = True
    main(sys.argv[1], [gen0.k1, gen0.k2, k3, k4])
```

```python
import sys
from asmlib import *
import hazard
import gen0, gen1
from gen0 import *

PREFETCH = True
STARTPF = False
ITSTAMP = False
NOBAR = False
NOLGKM = False
NODMA = False
ADDR_EARLY = True
FINE = False
CTIMER = False
LTIMER = True
WAITPF = False
PACKEARLY = True
WS_Z1P = WS_Z1

class K1Cfg:
    pass

def k1_loader(A, typ, st=None):
    pitchW = 3840 if typ == 'q' else 3072
    PROWS = 256 if typ == 'q' else 128
    PSLOT = PROWS*128; NPS = 3
    TSLOT = 8192 if typ == 'q' else 16384; R = 6
    TBASE = NPS*PSLOT
    lw = 21
    A(f"s_sub_u32 s{lw}, s16, 4")
    A("v_lshrrev_b32 v7, 3, v0")
    A("v_and_b32 v2, 7, v0")
    A("v_xor_b32 v2, v2, v7")
    A("v_mul_u32_u24 v7, 1280, v7")
    A("v_lshl_add_u32 v2, v2, 4, v7")
    A("v_lshrrev_b32 v4, 4, v0")
    A(f"s_and_b32 s20, s{lw}, 1")
    A("s_lshl_b32 s20, s20, 2")
    A("v_add_u32 v5, s20, v4")
    A("v_lshlrev_b32 v5, 1, v5")
    A("v_and_b32 v6, 15, v0")
    A("v_xor_b32 v6, v6, v5")
    A(f"v_mul_u32_u24 v4, {pitchW}, v4")
    A("v_lshl_add_u32 v3, v6, 4, v4")
    if typ == 'z':
        A("v_cmp_le_u32 vcc, 12, v6")
        A(f"v_mov_b32 v5, {KILL}")
        A("v_cndmask_b32 v3, v3, v5, vcc")
    nP = 4 if typ == 'q' else 2
    half_rows = PROWS//2
    A(f"s_mul_i32 s20, s{lw}, {nP*8*1280}")
    A("s_add_u32 s22, s17, s20")
    A(f"s_mul_i32 s23, s{lw}, {nP*1024}")
    A(f"s_mul_i32 s20, s{lw}, {8*pitchW}")
    A("s_add_u32 s24, s18, s20")
    if typ == 'z': A("s_add_u32 s25, s19, s20")
    A(f"s_lshl_b32 s26, s{lw}, 11")
    A(f"s_add_u32 s26, s26, {TBASE}")
    issued = []
    def issueP(s, h2):
        slot = s % NPS
        A(f"s_add_u32 m0, s23, {slot*PSLOT + h2*half_rows*128}")
        A(f"s_add_u32 s27, s28, {s}")
        A(f"s_cmp_ge_u32 s27, 10")
        A(f"s_cselect_b32 s29, 10, 0")
        A(f"s_sub_u32 s27, s27, s29")
        A(f"s_lshl_b32 s27, s27, 7")
        A(f"s_add_u32 s27, s27, s22")
        for i in range(nP):
            off = h2*half_rows*1280 + i*(8*1280 - 1024)
            A(f"s_add_u32 s20, s27, {off}")
            A(f"buffer_load_dwordx4 v2, s[4:7], s20 offen offset:{i*1024} lds")
            issued.append(('P', s))
    def issueT(b):
        slot = b % R
        subs = [24] if typ == 'q' else [24, 25]
        A(f"s_lshl_b32 s27, s28, 1")
        A(f"s_add_u32 s27, s27, {b}")
        A(f"s_cmp_ge_u32 s27, 20")
        A(f"s_cselect_b32 s29, 20, 0")
        A(f"s_sub_u32 s27, s27, s29")
        A(f"s_mul_i32 s27, s27, {32*pitchW}")
        for u, sb in enumerate(subs):
            A(f"s_add_u32 m0, s26, {slot*TSLOT + u*8192}")
            A(f"s_add_u32 s29, s27, s{sb}")
            for i in range(2):
                off = i*(4*pitchW - 1024)
                A(f"s_add_u32 s20, s29, {off}")
                A(f"buffer_load_dwordx4 v3, s[8:11], s20 offen offset:{i*1024} lds")
                issued.append(('T', b))
    def wait_for(needs):
        last = -1
        for idx, tg in enumerate(issued):
            if tg in needs: last = idx
        if last < 0: return
        n = len(issued) - 1 - last
        A(f"s_waitcnt vmcnt({min(n, 63)})")
    NB = 20
    if gen0.STAMP:
        for i in range(80, 84): A(f"s_mov_b32 s{i}, 0")
    issueP(0, 0); issueP(0, 1); issueT(0); issueT(1)
    issueP(1, 0); issueP(1, 1); issueT(2)
    wait_for([('P', 0), ('T', 0)])
    A("s_barrier")
    if st: st()
    extra = {0: [('T', 3), ('P', 2, 0)], 1: [('P', 2, 1), ('T', 4)], 2: [('T', 5)]}
    for b in range(NB):
        if gen0.STAMP and LTIMER: A("s_memtime s[84:85]\ns_waitcnt lgkmcnt(0)")
        needs = []
        if b + 1 < NB:
            needs.append(('T', b+1))
            needs.append(('P', (b+1)//2))
        if NOBAR and b >= 1: continue
        if needs: wait_for(needs)
        if gen0.STAMP and LTIMER: A("s_memtime s[86:87]\ns_waitcnt lgkmcnt(0)\ns_sub_u32 s84, s86, s84\ns_add_u32 s80, s80, s84")
        A("s_barrier")
        if gen0.STAMP and LTIMER: A("s_memtime s[88:89]\ns_waitcnt lgkmcnt(0)\ns_sub_u32 s86, s88, s86\ns_add_u32 s81, s81, s86")
        if NODMA: continue
        for e in extra.get(b, []):
            if e[0] == 'T': issueT(e[1])
            else: issueP(e[1], e[2])
        if b + R < NB: issueT(b + R)
        if b % 2 == 1:
            s = (b - 1)//2 + NPS
            if s < NB//2: issueP(s, 0)
        elif b >= 2:
            s = (b - 2)//2 + NPS
            if s < NB//2: issueP(s, 1)
        if gen0.STAMP and LTIMER: A("s_memtime s[84:85]\ns_waitcnt lgkmcnt(0)\ns_sub_u32 s84, s84, s88\ns_add_u32 s82, s82, s84")
        if b == 15 and PREFETCH:
            k1_wsp_prefetch(A, 0); issued.append(('W', 0))
        if b == 16 and PREFETCH:
            k1_wsp_prefetch(A, 1); issued.append(('W', 1))
    if not NOBAR: A("s_barrier")
    if WAITPF: A("s_waitcnt vmcnt(0)")
    if gen0.STAMP:
        srd(A, 56, 32, 0x200000, WS_TS + 6*0x40000)
        A(f"s_lshl_b32 s54, s2, 2")
        A(f"s_add_u32 s54, s54, s16")
        A(f"s_sub_u32 s54, s54, 4")
        A(f"s_lshl_b32 s54, s54, 7")
        A("s_mov_b64 exec, 1")
        A("v_mov_b32 v250, 0\nv_mov_b32 v251, 0")
        A(f"buffer_store_dword v250, v251, s[56:59], s54 offen")
        for i in range(3):
            A(f"v_mov_b32 v250, s{80+i}")
            A(f"v_mov_b32 v251, {4*(i+1)}")
            A(f"buffer_store_dword v250, v251, s[56:59], s54 offen")
        A("s_mov_b64 exec, -1")
    if st: st()

def k1_compute(A, typ, st=None):
    PROWS = 256 if typ == 'q' else 128
    PSLOT = PROWS*128; NPS = 3
    TSLOT = 8192 if typ == 'q' else 16384; R = 6
    TBASE = NPS*PSLOT
    mP = 8 if typ == 'q' else 4
    nT = 4 if typ == 'q' else 6
    nA = 4 if typ == 'q' else 3
    bP = 2
    bT = 6
    F = [16, 16 + 4*(mP+nT)]
    ACC = 16 + 8*(mP+nT)
    A("s_and_b32 s20, s16, 1")
    A("s_lshr_b32 s21, s16, 1")
    A(f"s_mul_i32 s21, s21, {nA}")
    A("v_and_b32 v14, 15, v0")
    A("v_lshrrev_b32 v15, 4, v0")
    A("v_and_b32 v6, 7, v14")
    A("v_xor_b32 v6, v15, v6")
    A("v_lshlrev_b32 v14, 7, v14")
    A("v_lshl_add_u32 v14, v6, 4, v14")
    A(f"s_mul_i32 s22, s20, {mP*2048}")
    A(f"v_add_u32 v{bP}, s22, v14")
    A(f"v_xor_b32 v{bP+1}, 64, v{bP}")
    A(f"v_add_u32 v{bP+2}, 0x10000, v{bP}")
    A(f"v_add_u32 v{bP+3}, 0x10000, v{bP+1}")
    A("v_lshrrev_b32 v14, 2, v0")
    A("v_and_b32 v14, 3, v14")
    A("v_lshl_add_u32 v13, v15, 3, v14")
    A("v_lshlrev_b32 v13, 8, v13")
    A("v_and_b32 v12, 3, v0")
    A("v_lshl_add_u32 v13, v12, 3, v13")
    A("v_and_b32 v12, 1, v15")
    A("v_lshl_add_u32 v14, v12, 2, v14")
    A(f"v_add_u32 v15, {TBASE}, v13")
    for tl in range(nA):
        A(f"s_add_u32 s23, s21, {tl}")
        A(f"v_xor_b32 v13, s23, v14")
        A(f"v_lshl_add_u32 v{bT+tl}, v13, 5, v15")
    if typ == 'z':
        for tl in range(nA): A(f"v_add_u32 v{bT+nA+tl}, 0x10000, v{bT+tl}")
    if STARTPF:
        A("s_lshl_b32 s22, s2, 8")
        A("s_lshl_b32 s23, s16, 6")
        A("s_add_u32 s22, s22, s23")
        A("v_add_u32 v15, s22, v0")
        A("v_lshlrev_b32 v15, 7, v15")
        srd(A, 4, 30, 2048*640*2)
        srd(A, 8, 34, 640*1920*2)
        srd(A, 12, 36, 640*1536*2)
        A(f"v_subrev_u32 v14, {20480*128}, v15")
        A(f"v_subrev_u32 v13, {39680*128}, v15")
        A("buffer_load_dword v254, v15, s[4:7], 0 offen")
        A("buffer_load_dword v254, v14, s[8:11], 0 offen")
        A("buffer_load_dword v254, v13, s[12:15], 0 offen")
    for i in range(ACC, ACC + 4*mP*nT): A(f"v_mov_b32 v{i}, 0")
    def fP(s, m): return F[s] + 4*m
    def fT(s, t): return F[s] + 4*(mP + t)
    def acc(m, t): return ACC + 4*(m*nT + t)
    def reads(b):
        s = b & 1; kk = b & 1; ps = (b//2) % NPS; ts = b % R
        r = []
        for m in range(mP):
            f = fP(s, m); off = ps*PSLOT + m*2048; hi = off >> 16
            r.append(f"ds_read_b128 v[{f}:{f+3}], v{bP + kk + 2*hi} offset:{off & 0xffff}")
        for t in range(nT):
            f = fT(s, t); tl = t % nA; u = t // nA
            for h in range(2):
                off = ts*TSLOT + u*8192 + h*1024; hi = off >> 16
                assert hi == 0 or typ == 'z'
                r.append(f"ds_read_b64_tr_b16 v[{f+2*h}:{f+2*h+1}], v{bT + tl + nA*hi} offset:{off & 0xffff}")
        return r
    A("s_barrier")
    for x in reads(0): A(x)
    k1_pack_load(A, 240, 252 - 0) if False else None
    PD, PT = (240, 252) if typ == 'q' else (224, 236)
    k1_pack_load(A, PD, PT) if typ == 'z' else k1_pack_load_q(A)
    A("s_waitcnt lgkmcnt(0)")
    if st: st()
    A("s_barrier")
    TAILM = 8 if typ == 'q' else 6
    def beat(b, last=False):
        s = b & 1
        mf = []
        for m in range(mP):
            for t in range(nT):
                a_ = acc(m, t); mf.append(f"v_mfma_f32_16x16x32_bf16 v[{a_}:{a_+3}], v[{fT(s,t)}:{fT(s,t)+3}], v[{fP(s,m)}:{fP(s,m)+3}], v[{a_}:{a_+3}]")
        rd = [] if last else reads(b + 1)
        nm = len(mf); nfront = nm - TAILM
        for i, x in enumerate(mf):
            A(x)
            if rd: A(rd.pop(0))
            if i == nfront - 1:
                assert not rd
                if not NOLGKM: A("s_waitcnt lgkmcnt(0)")
                if not NOBAR: A("s_barrier")
    L = f"K1{typ}_cloop"
    A("s_mov_b32 s26, 0")
    A.label(L)
    if ITSTAMP:
        A("s_memtime s[76:77]\ns_waitcnt lgkmcnt(0)")
        for k in range(3):
            A(f"s_cmp_eq_u32 s26, {k}\ns_cselect_b32 s{70+k}, s76, s{70+k}")
    for b in range(6): beat(b)
    A("s_add_u32 s26, s26, 1")
    A("s_cmp_lt_u32 s26, 3")
    A(f"s_cbranch_scc1 {L}")
    if ITSTAMP: A("s_memtime s[76:77]\ns_waitcnt lgkmcnt(0)\ns_mov_b32 s73, s76")
    beat(18); beat(19, last=True)
    if ITSTAMP:
        A("s_memtime s[76:77]\ns_waitcnt lgkmcnt(0)\ns_mov_b32 s74, s76")
        srd(A, 56, 32, 0x200000, WS_TS + 7*0x40000)
        A(f"s_lshl_b32 s54, s2, 2")
        A(f"s_add_u32 s54, s54, s16")
        A(f"s_lshl_b32 s54, s54, 7")
        A("s_mov_b64 exec, 1")
        for i in range(5):
            A(f"v_mov_b32 v14, s{70+i}")
            A(f"v_mov_b32 v15, {4*i}")
            A(f"buffer_store_dword v14, v15, s[56:59], s54 offen")
        A("s_mov_b64 exec, -1")
    return acc, F, ACC

def widen_pairs(A, a0, a1):
    pass

ROT = True
def rot_table(A):
    A("s_and_b32 s28, s28, 3")
    A("s_lshl_b32 s28, s28, 2")
    A(f"s_lshr_b32 s28, {0x8530 if ROT else 0}, s28")
    A("s_and_b32 s28, s28, 15")

def k1(A):
    name = "k1_kernel"
    kernel_begin(A, name)
    A("s_cmp_ge_u32 s2, 256")
    A("s_cbranch_scc1 K1_end")
    load_ptr(A, 30, 'x'); load_ptr(A, 32, 'ws'); load_ptr(A, 34, 'wqkv'); load_ptr(A, 36, 'win')
    load_ptr(A, 38, 'gw'); load_ptr(A, 44, 'wo'); load_ptr(A, 46, 'wout'); load_ptr(A, 52, 'wsp')
    wave_lane(A, 16)
    st = Stamps(A, 0); st()
    A("s_and_b32 s40, s2, 7")
    A("s_lshr_b32 s41, s2, 3")
    A("s_lshr_b32 s42, s40, 1")
    A("s_and_b32 s43, s40, 1")
    A("s_cmp_lt_u32 s41, 16")
    A("s_cbranch_scc1 K1_ztype")
    A("s_sub_u32 s41, s41, 16")
    A("s_cmp_lt_u32 s42, 3")
    A("s_cbranch_scc1 K1_qtype")
    A("s_cmp_ge_u32 s41, 12")
    A("s_cbranch_scc1 K1_side")
    A.label("K1_qtype")
    A("s_and_b32 s48, s41, 3")
    A("s_lshl_b32 s49, s43, 2")
    A("s_add_u32 s48, s48, s49")
    A("s_lshr_b32 s49, s41, 2")
    A("s_lshl_b32 s50, s42, 2")
    A("s_add_u32 s49, s49, s50")
    A(f"s_mul_i32 s17, s48, {256*1280}")
    A("s_lshl_b32 s18, s49, 8")
    A("s_and_b32 s28, s41, 3")
    A("s_lshr_b32 s29, s41, 2")
    A("s_add_u32 s28, s28, s29")
    rot_table(A)
    A("s_waitcnt lgkmcnt(0)")
    A("s_cmp_lt_u32 s16, 4")
    A("s_cbranch_scc1 K1_qcomp")
    srd(A, 4, 30, 2048*640*2)
    srd(A, 8, 34, 640*1920*2)
    k1_loader(A, 'q')
    A("s_branch K1_end")
    A.label("K1_qcomp")
    st()
    acc, F, ACC = k1_compute(A, 'q', st)
    st()
    k1_pack_store(A, 240, 252)
    srd(A, 12, 32, SZ_QKV, WS_QKV)
    A("s_and_b32 s20, s16, 1")
    A("s_lshr_b32 s21, s16, 1")
    A("s_lshl_b32 s22, s48, 8")
    A("s_lshl_b32 s23, s20, 7")
    A("s_add_u32 s22, s22, s23")
    A("v_and_b32 v2, 15, v0")
    A("v_add_u32 v2, s22, v2")
    A("s_mov_b32 s23, 3840")
    A("v_mul_lo_u32 v2, v2, s23")
    A("v_lshrrev_b32 v3, 4, v0")
    A("v_and_b32 v4, 1, v3")
    A("v_lshlrev_b32 v4, 5, v4")
    A("v_lshrrev_b32 v5, 1, v3")
    A("v_lshl_add_u32 v4, v5, 4, v4")
    A("v_add_u32 v2, v2, v4")
    A("s_lshl_b32 s23, s21, 7")
    A("s_add_u32 s23, s23, s18")
    A("v_add_u32 v2, s23, v2")
    P = 16
    for m in range(8):
        for p in range(2):
            d = P + 4*(2*m+p)
            a0 = acc(m, 2*p); a1 = acc(m, 2*p+1)
            A(f"v_cvt_pk_bf16_f32 v{d}, v{a0}, v{a0+1}")
            A(f"v_cvt_pk_bf16_f32 v{d+1}, v{a0+2}, v{a0+3}")
            A(f"v_cvt_pk_bf16_f32 v{d+2}, v{a1}, v{a1+1}")
            A(f"v_cvt_pk_bf16_f32 v{d+3}, v{a1+2}, v{a1+3}")
    for m in range(8):
        A(f"s_mov_b32 s24, {m*16*3840}")
        for p in range(2):
            d = P + 4*(2*m+p)
            A(f"v_permlane16_swap_b32 v{d}, v{d+2}")
            A(f"v_permlane16_swap_b32 v{d+1}, v{d+3}")
        for p in range(2):
            d = P + 4*(2*m+p)
            A(f"buffer_store_dwordx4 v[{d}:{d+3}], v2, s[12:15], s24 offen offset:{p*64}")
    if gen0.STAMP: A("s_waitcnt vmcnt(0)")
    st(); st.flush(16, 32)
    A("s_branch K1_end")
    A.label("K1_ztype")
    A("s_and_b32 s48, s41, 7")
    A("s_lshl_b32 s49, s43, 3")
    A("s_add_u32 s48, s48, s49")
    A("s_lshr_b32 s49, s41, 3")
    A("s_lshl_b32 s50, s42, 1")
    A("s_add_u32 s49, s49, s50")
    A(f"s_mul_i32 s17, s48, {128*1280}")
    A("s_lshr_b32 s28, s41, 3")
    A("s_lshl_b32 s28, s28, 1")
    A("s_add_u32 s28, s28, s41")
    rot_table(A)
    A("s_mul_i32 s19, s49, 192")
    A("s_add_u32 s18, s19, 1536")
    A("s_waitcnt lgkmcnt(0)")
    A("s_cmp_lt_u32 s16, 4")
    A("s_cbranch_scc1 K1_zcomp")
    srd(A, 4, 30, 2048*640*2)
    srd(A, 8, 36, 640*1536*2)
    k1_loader(A, 'z')
    A("s_branch K1_end")
    A.label("K1_zcomp")
    st2 = Stamps(A, 0); st2.n = 1; st2()
    acc, F, ACC = k1_compute(A, 'z', st2)
    st2()
    k1_pack_store(A, 224, 236)
    A(f"s_mov_b32 s27, {f2u(C1)}")
    A(f"v_mov_b32 v5, {f2u(C0)}")
    TMP = 16
    z2 = [acc(m, t) + r for m in range(4) for t in range(3) for r in range(4)]
    z1 = [acc(m, t) + r for m in range(4) for t in range(3, 6) for r in range(4)]
    gelu_inplace(A, z2, TMP, 5, 27)
    A("s_and_b32 s20, s16, 1")
    A("s_lshr_b32 s21, s16, 1")
    S = 70
    for m in range(4):
        vals = [acc(m, t) + r for t in range(3) for r in range(4)]
        A(f"v_add_f32 v{S+2*m}, v{vals[0]}, v{vals[1]}")
        A(f"v_mul_f32 v{S+2*m+1}, v{vals[0]}, v{vals[0]}")
        A(f"v_fmac_f32 v{S+2*m+1}, v{vals[1]}, v{vals[1]}")
        for x in vals[2:]:
            A(f"v_add_f32 v{S+2*m}, v{S+2*m}, v{x}")
            A(f"v_fmac_f32 v{S+2*m+1}, v{x}, v{x}")
    for i in range(8): A(f"v_mov_b32 v{S+8+i}, v{S+i}")
    for i in range(8): A(f"v_permlane16_swap_b32 v{S+i}, v{S+8+i}")
    for i in range(8): A(f"v_add_f32 v{S+i}, v{S+i}, v{S+8+i}")
    for i in range(8): A(f"v_mov_b32 v{S+8+i}, v{S+i}")
    for i in range(8): A(f"v_permlane32_swap_b32 v{S+i}, v{S+8+i}")
    for i in range(8): A(f"v_add_f32 v{S+i}, v{S+i}, v{S+8+i}")
    A("v_lshrrev_b32 v3, 4, v0")
    for m in range(1, 4):
        A(f"v_cmp_eq_u32 vcc, {m}, v3")
        A(f"v_cndmask_b32 v{S}, v{S}, v{S+2*m}, vcc")
        A(f"v_cndmask_b32 v{S+1}, v{S+1}, v{S+2*m+1}, vcc")
    A("v_lshlrev_b32 v6, 3, v0")
    A("s_lshl_b32 s22, s16, 9")
    A("v_add_u32 v7, s22, v6")
    A(f"ds_write_b64 v7, v[{S}:{S+1}]")
    A("s_waitcnt lgkmcnt(0)")
    A("s_barrier")
    A("v_xor_b32 v7, 1024, v7")
    A(f"ds_read_b64 v[{S+2}:{S+3}], v7")
    PK = 16
    for m in range(4):
        for t in range(3):
            a_ = acc(m, t); i = m*3 + t
            A(f"v_cvt_pk_bf16_f32 v{PK+2*i}, v{a_}, v{a_+1}")
            A(f"v_cvt_pk_bf16_f32 v{PK+2*i+1}, v{a_+2}, v{a_+3}")
    A("s_waitcnt lgkmcnt(0)")
    A(f"v_add_f32 v{S}, v{S}, v{S+2}")
    A(f"v_add_f32 v{S+1}, v{S+1}, v{S+3}")
    A("s_cmp_lg_u32 s21, 0")
    A("s_cbranch_scc1 K1_z_nostat")
    srd(A, 8, 32, SZ_ST, WS_ST)
    A("s_lshl_b32 s22, s49, 14")
    A("s_lshl_b32 s23, s48, 10")
    A("s_add_u32 s22, s22, s23")
    A("s_lshl_b32 s23, s20, 9")
    A("s_add_u32 s22, s22, s23")
    A(f"buffer_store_dwordx2 v[{S}:{S+1}], v6, s[8:11], s22 offen")
    A.label("K1_z_nostat")
    srd(A, 12, 32, SZ_Z2P, WS_Z2P)
    A("s_lshl_b32 s22, s49, 5")
    A("s_lshl_b32 s23, s48, 1")
    A("s_add_u32 s22, s22, s23")
    A("s_add_u32 s22, s22, s20")
    A("s_mul_i32 s22, s22, 6")
    A("s_mul_i32 s23, s21, 3")
    A("s_add_u32 s22, s22, s23")
    A("s_lshl_b32 s22, s22, 11")
    A("v_and_b32 v6, 15, v0")
    A("v_and_b32 v7, 3, v6")
    A("v_and_b32 v4, 4, v6")
    A("v_lshl_or_b32 v7, v4, 1, v7")
    A("v_and_b32 v4, 8, v6")
    A("v_lshrrev_b32 v4, 1, v4")
    A("v_or_b32 v7, v7, v4")
    A("v_lshlrev_b32 v7, 5, v7")
    A("v_lshl_add_u32 v4, v3, 3, v7")
    for m in range(4):
        for t in range(3):
            A(f"s_add_u32 s23, s22, {t*2048 + m*512}")
            i = m*3 + t
            A(f"buffer_store_dwordx2 v[{PK+2*i}:{PK+2*i+1}], v4, s[12:15], s23 offen")
    TMP = 44
    gelu_inplace(A, z1, TMP, 5, 27)
    srd(A, 12, 32, SZ_Z1, WS_Z1)
    A("s_lshl_b32 s22, s48, 2")
    A("s_lshl_b32 s23, s20, 1")
    A("s_add_u32 s22, s22, s23")
    A("s_mul_i32 s22, s22, 48")
    A("s_mul_i32 s23, s49, 6")
    A("s_add_u32 s22, s22, s23")
    A("s_mul_i32 s23, s21, 3")
    A("s_add_u32 s22, s22, s23")
    A("s_lshl_b32 s22, s22, 10")
    A("v_lshlrev_b32 v4, 4, v0")
    Q = 16 + 80
    Q = 200
    for mp in range(2):
        for t in range(3):
            d = Q + 4*(mp*3+t)
            a0 = acc(2*mp, 3+t); a1 = acc(2*mp+1, 3+t)
            A(f"v_cvt_pk_bf16_f32 v{d}, v{a0}, v{a0+1}")
            A(f"v_cvt_pk_bf16_f32 v{d+1}, v{a0+2}, v{a0+3}")
            A(f"v_cvt_pk_bf16_f32 v{d+2}, v{a1}, v{a1+1}")
            A(f"v_cvt_pk_bf16_f32 v{d+3}, v{a1+2}, v{a1+3}")
    for mp in range(2):
        for t in range(3):
            d = Q + 4*(mp*3+t)
            A(f"s_add_u32 s23, s22, {mp*48*1024 + t*1024}")
            A(f"buffer_store_dwordx4 v[{d}:{d+3}], v4, s[12:15], s23 offen")
    if gen0.STAMP: A("s_waitcnt vmcnt(0)")
    st2(); st2.flush(16, 32)
    A("s_branch K1_end")
    A.label("K1_side")
    A("s_waitcnt lgkmcnt(0)")
    A("s_sub_u32 s41, s41, 12")
    A("s_lshl_b32 s48, s43, 2")
    A("s_add_u32 s48, s48, s41")
    srd(A, 4, 30, 2048*640*2)
    srd(A, 8, 38, 640*2)
    srd(A, 12, 32, SZ_G, WS_G)
    A("s_lshl_b32 s40, s48, 8")
    A("s_lshl_b32 s41, s16, 5")
    A("s_add_u32 s40, s40, s41")
    A("v_lshlrev_b32 v2, 2, v0")
    for i in range(5): A(f"buffer_load_dword v{8+i}, v2, s[8:11], 0 offen offset:{256*i}")
    A("s_mul_i32 s42, s40, 1280")
    for r in range(32):
        A(f"s_add_u32 s43, s42, {r*1280}")
        for i in range(5): A(f"buffer_load_dword v{16+5*r+i}, v2, s[4:7], s43 offen offset:{256*i}")
        if r % 8 == 7: A("s_waitcnt vmcnt(20)")
    A("s_waitcnt vmcnt(0)")
    for r in range(32):
        A(f"v_mov_b32 v{180+r}, 0")
        for i in range(5): A(f"v_dot2_f32_bf16 v{180+r}, v{16+5*r+i}, v{8+i}, v{180+r}")
    for sh in (1, 2, 4, 8, 16, 32):
        A(f"v_xor_b32 v6, {sh}, v0")
        A("v_lshlrev_b32 v6, 2, v6")
        for r0 in (0, 8, 16, 24):
            for r in range(r0, r0+8): A(f"ds_bpermute_b32 v{212+r}, v6, v{180+r}")
            A("s_waitcnt lgkmcnt(0)")
        for r in range(32): A(f"v_add_f32 v{180+r}, v{180+r}, v{212+r}")
    A("v_mov_b32 v3, v180")
    for r in range(1, 32):
        A(f"v_cmp_eq_u32 vcc, {r}, v0")
        A(f"v_cndmask_b32 v3, v3, v{180+r}, vcc")
    A(f"v_mul_f32 v3, {f2u(-1.4426950408889634)}, v3")
    A("v_exp_f32 v3, v3")
    A("v_add_f32 v3, 1.0, v3")
    A("v_rcp_f32 v3, v3")
    A("v_add_u32 v4, s40, v0")
    A("v_lshlrev_b32 v4, 2, v4")
    A("v_cmp_gt_u32 vcc, 32, v0")
    A("s_and_saveexec_b64 s[50:51], vcc")
    A("buffer_store_dword v3, v4, s[12:15], 0 offen")
    A.label("K1_end")
    A("s_endpgm")
    return name, 256, 512, 147456, 256

def k1_pack_load(A, D, T):
    A(f"s_mul_hi_u32 s41, s2, {(2**32 + 21)//22}")
    A("s_mul_i32 s42, s41, 22")
    A("s_sub_u32 s42, s2, s42")
    A("s_cmp_lt_u32 s42, 10")
    A("s_cselect_b32 s12, s44, s46")
    A("s_cselect_b32 s13, s45, s47")
    A(f"s_mov_b32 s14, {768*640*2}")
    A(f"s_cselect_b32 s14, {640*640*2}, s14")
    A("s_mov_b32 s15, 0x20000")
    A("s_cselect_b32 s43, 0, 10")
    A("s_sub_u32 s43, s42, s43")
    A(f"s_mul_i32 s43, s43, {64*1280}")
    A("s_mul_i32 s40, s41, 160")
    A("s_add_u32 s43, s43, s40")
    A("s_cmp_ge_u32 s2, 176")
    A(f"s_cselect_b32 s40, {KILL}, 0")
    A("s_add_u32 s43, s43, s40")
    A("s_lshl_b32 s40, s16, 6")
    c, cc, t2, p_, k_, x_ = T+2, T+3, T+4, T+5, T+6, T+7
    A(f"v_add_u32 v{c}, s40, v0")
    A(f"v_and_b32 v{cc}, 127, v{c}")
    A(f"v_lshrrev_b32 v{t2}, 7, v{c}")
    A(f"v_lshrrev_b32 v{p_}, 1, v{cc}")
    A(f"v_and_b32 v{k_}, 0x33, v{p_}")
    A(f"v_and_b32 v{x_}, 4, v{p_}")
    A(f"v_lshl_or_b32 v{k_}, v{x_}, 1, v{k_}")
    A(f"v_and_b32 v{x_}, 8, v{p_}")
    A(f"v_lshrrev_b32 v{x_}, 1, v{x_}")
    A(f"v_or_b32 v{k_}, v{k_}, v{x_}")
    A(f"v_mul_u32_u24 v{k_}, 1280, v{k_}")
    A(f"v_and_b32 v{x_}, 1, v{cc}")
    A(f"v_lshl_add_u32 v{k_}, v{x_}, 4, v{k_}")
    A(f"v_lshl_add_u32 v{k_}, v{t2}, 5, v{k_}")
    A(f"v_lshlrev_b32 v{T}, 4, v{cc}")
    A(f"v_lshl_add_u32 v{T}, v{t2}, 11, v{T}")
    A(f"v_mov_b32 v{x_}, {KILL}")
    A(f"v_cmp_eq_u32 vcc, 1, v{t2}")
    A(f"v_cndmask_b32 v{T+1}, v{T}, v{x_}, vcc")
    A(f"v_cndmask_b32 v{p_}, v{k_}, v{x_}, vcc")
    A(f"buffer_load_dwordx4 v[{D}:{D+3}], v{k_}, s[12:15], s43 offen")
    A(f"buffer_load_dwordx4 v[{D+4}:{D+7}], v{k_}, s[12:15], s43 offen offset:64")
    A(f"buffer_load_dwordx4 v[{D+8}:{D+11}], v{p_}, s[12:15], s43 offen offset:128")

def k1_pack_store(A, D, T):
    A("s_waitcnt vmcnt(0)")
    srd(A, 12, 32, SZ_WP, WS_WP)
    A(f"s_mul_i32 s41, s2, {5*2048}")
    A("s_cmp_ge_u32 s2, 176")
    A(f"s_cselect_b32 s42, {KILL}, 0")
    A("s_add_u32 s41, s41, s42")
    A("s_add_u32 s42, s41, 4096")
    A("s_add_u32 s43, s41, 8192")
    A(f"buffer_store_dwordx4 v[{D}:{D+3}], v{T}, s[12:15], s41 offen")
    A(f"buffer_store_dwordx4 v[{D+4}:{D+7}], v{T}, s[12:15], s42 offen")
    A(f"buffer_store_dwordx4 v[{D+8}:{D+11}], v{T+1}, s[12:15], s43 offen")

def k1_pack_load_q(A):
    k1_pack_load(A, 240, 64)
    A("v_mov_b32 v252, v64")
    A("v_mov_b32 v253, v65")

def k1_wsp_prefetch(A, part):
    if part == 0:
        srd(A, 4, 52, 2048*2048*2)
        A("s_and_b32 s40, s2, 7")
        A("s_lshr_b32 s40, s40, 1")
        A("s_lshl_b32 s40, s40, 14")
        A("s_lshr_b32 s41, s2, 3")
        A("s_lshl_b32 s41, s41, 9")
        A("s_add_u32 s40, s40, s41")
        A("s_sub_u32 s41, s16, 4")
        A("s_lshl_b32 s41, s41, 7")
        A("s_add_u32 s40, s40, s41")
        A("s_lshl_b32 s40, s40, 7")
        A("v_lshlrev_b32 v32, 7, v0")
        A("buffer_load_dword v33, v32, s[4:7], s40 offen")
    else:
        A("s_add_u32 s40, s40, 8192")
        A("buffer_load_dword v34, v32, s[4:7], s40 offen")

def k3(A):
    name = "k3_kernel"
    kernel_begin(A, name)
    A("s_cmp_ge_u32 s2, 256")
    A("s_cbranch_scc1 K3_end")
    load_ptr(A, 30, 'wsp'); load_ptr(A, 32, 'ws'); load_ptr(A, 34, 'bsp')
    wave_lane(A, 16)
    tile_map(A)
    st = Stamps(A, 2); st()
    E = gen1.E2(A, "K3", 6, 32, 4096, 2, 3)
    A(f"s_mul_i32 s17, s40, {64*4096}")
    A(f"s_mul_i32 s18, s41, {32*6*2048}")
    A("s_waitcnt lgkmcnt(0)")
    A("s_cmp_lt_u32 s16, 4")
    A("s_cbranch_scc1 K3_comp")
    srd(A, 4, 30, 2048*2048*2)
    srd(A, 8, 32, SZ_Z2P, WS_Z2P)
    E.loader()
    A("s_branch K3_end")
    A.label("K3_comp")
    A("s_and_b32 s46, s16, 1")
    A("s_lshl_b32 s46, s46, 5")
    A("s_lshr_b32 s47, s16, 1")
    A("s_mul_i32 s47, s47, 3")
    PF = 116
    srd(A, 4, 32, SZ_Z1, WS_Z1)
    srd(A, 8, 32, SZ_G, WS_G)
    srd(A, 12, 34, 2048*2)
    A("s_lshl_b32 s43, s40, 6")
    A("s_add_u32 s43, s43, s46")
    A("v_and_b32 v112, 15, v0")
    A("v_add_u32 v112, s43, v112")
    A("v_lshrrev_b32 v113, 4, v0")
    A("s_lshr_b32 s48, s43, 5")
    A("s_mul_i32 s48, s48, 48")
    A("s_mul_i32 s49, s41, 6")
    A("s_add_u32 s48, s48, s49")
    A("s_add_u32 s48, s48, s47")
    A("s_lshl_b32 s48, s48, 10")
    A("v_lshlrev_b32 v114, 4, v0")
    for t in range(3):
        A(f"buffer_load_dwordx4 v[{PF+4*t}:{PF+4*t+3}], v114, s[4:7], s48 offen offset:{t*1024}")
    A("v_lshlrev_b32 v115, 2, v112")
    A(f"buffer_load_dword v{PF+12}, v115, s[8:11], 0 offen")
    A(f"buffer_load_dword v{PF+13}, v115, s[8:11], 0 offen offset:64")
    A("v_lshlrev_b32 v115, 1, v112")
    A(f"buffer_load_ushort v{PF+14}, v115, s[12:15], 0 offen")
    A(f"buffer_load_ushort v{PF+15}, v115, s[12:15], 0 offen offset:32")
    E.compute_setup(46, 47)
    st()
    E.compute(st)
    st()
    A("s_waitcnt vmcnt(0)")
    srd(A, 12, 32, SZ_AU, WS_AU)
    for m in range(2):
        A(f"v_lshlrev_b32 v{PF+14+m}, 16, v{PF+14+m}")
        A(f"v_sub_f32 v{PF+12+m}, 1.0, v{PF+12+m}")
    T = 132
    for m in range(2):
        for t in range(3):
            ac = E.acc(m, t)
            for q in range(2):
                z = PF + 4*t + 2*m + q
                A(f"v_lshlrev_b32 v{T}, 16, v{z}")
                A(f"v_and_b32 v{T+1}, 0xffff0000, v{z}")
                A(f"v_add_f32 v{T+2}, v{ac+2*q}, v{PF+14+m}")
                A(f"v_add_f32 v{T+3}, v{ac+2*q+1}, v{PF+14+m}")
                A(f"v_mul_f32 v{T}, v{T}, v{PF+12+m}")
                A(f"v_mul_f32 v{T+1}, v{T+1}, v{PF+12+m}")
                A(f"v_mul_f32 v{T+2}, v{T+2}, v{T}")
                A(f"v_mul_f32 v{T+3}, v{T+3}, v{T+1}")
                A(f"v_cvt_pk_bf16_f32 v{z}, v{T+2}, v{T+3}")
    A("s_mov_b32 s45, 2816")
    A("v_mul_lo_u32 v114, v112, s45")
    A("v_lshl_add_u32 v114, v113, 3, v114")
    A("s_mul_i32 s48, s41, 192")
    A("s_lshl_b32 s49, s47, 5")
    A("s_add_u32 s48, s48, s49")
    A("s_add_u32 s48, s48, 1280")
    A("v_add_u32 v114, s48, v114")
    A(f"s_mov_b32 s49, {16*2816}")
    for m in range(2):
        for t in range(3):
            z = PF + 4*t + 2*m
            A(f"buffer_store_dwordx2 v[{z}:{z+1}], v114, s[12:15], {'s49' if m else '0'} offen offset:{t*32}")
    if gen0.STAMP: A("s_waitcnt vmcnt(0)")
    st(); st.flush(16, 32)
    A.label("K3_end")
    A("s_endpgm")
    return name, 256, 512, 7*20480, 140

if __name__ == "__main__":
    if '--stamp' in sys.argv: gen0.STAMP = True
    if '--waitpf' in sys.argv: WAITPF = True
    if '--nopf' in sys.argv: PREFETCH = False
    if '--norot' in sys.argv: ROT = False
    if '--startpf' in sys.argv: STARTPF = True
    if '--itstamp' in sys.argv: ITSTAMP = True
    if '--nobar' in sys.argv: NOBAR = True
    if '--nolgkm' in sys.argv: NOLGKM = True
    if '--nodma' in sys.argv: NODMA = True
    if '--fine' in sys.argv: FINE = True
    if '--ctimer' in sys.argv: CTIMER = True
    if '--noltimer' in sys.argv: LTIMER = False
    gen1.main(sys.argv[1], [k1, gen0.k2, k3, gen1.k4])
```

```python
import sys, struct
from asmlib import *
import hazard
NAME = "gated_mix__sliding_local_dilated__mixer_gmlp__prompt"
KA = dict(x=0, wqkv=8, wo=16, bx=24, win=32, wsp=40, bsp=48, wout=56, gw=64, out=72, dbg=80, ws=88)
QP = 496
HGS = 2048*QP
WS_QKVG = 0;          SZ_QKVG = 8*HGS
WS_Z1  = 0x900000;    SZ_Z1 = 2048*768*2
WS_Z2P = 0xC00000;    SZ_Z2P = 2048*768*2
WS_AU  = 0xF00000;    SZ_AU = 2048*1408*2
WS_WP  = 0x1500000;   SZ_WP = 1408*640*2
WS_ST  = 0x1700000;   SZ_ST = 8*2048*8
WS_G   = 0x1740000;   SZ_G = 2048*4
WS_TS  = 0x2000000
KILL = 0x40000000
C0 = -2.0*0.7978845608028654*1.4426950408889634
C1 = C0*0.044715
def f2u(f): return struct.unpack('<I', struct.pack('<f', f))[0]
class Opt:
    stamp = False; rot = True; wsp_pf = True; la = 5; itstamp = False; pfg = False; pfg2 = 2; fullring = True; tla = 6
O = Opt()

def load_ptr(A, sd, key): A(f"s_load_dwordx2 s[{sd}:{sd+1}], s[0:1], {KA[key]}")
def wave_lane(A, s_w):
    A("v_lshrrev_b32 v1, 6, v0")
    A(f"v_readfirstlane_b32 s{s_w}, v1")
    A("v_and_b32 v0, 63, v0")

class Stamps:
    def __init__(self, A, kidx, n0=0): self.A = A; self.n = n0; self.k = kidx
    def __call__(self):
        if not O.stamp: return
        assert self.n < 16
        self.A(f"s_memtime s[{60+2*self.n}:{61+2*self.n}]"); self.n += 1
    def flush(self, s_w, s_ws, vt=250):
        if not O.stamp: return
        A = self.A
        A("s_waitcnt vmcnt(0)")
        A("s_memrealtime s[92:93]")
        A("s_waitcnt lgkmcnt(0)")
        srd(A, 56, s_ws, 0x100000, WS_TS + self.k*0x40000)
        A(f"s_lshl_b32 s54, s2, 2\ns_add_u32 s54, s54, s{s_w}\ns_lshl_b32 s54, s54, 7")
        A("s_mov_b64 exec, 1")
        for i in range(self.n):
            A(f"v_mov_b32 v{vt}, s{60+2*i}\nv_mov_b32 v{vt+1}, {4*i}")
            A(f"buffer_store_dword v{vt}, v{vt+1}, s[56:59], s54 offen")
        A(f"v_mov_b32 v{vt}, s92\nv_mov_b32 v{vt+1}, 124")
        A(f"buffer_store_dword v{vt}, v{vt+1}, s[56:59], s54 offen")
        A("s_mov_b64 exec, -1")


def it_top(A):
    if not O.itstamp: return
    A("s_memtime s[76:77]\ns_waitcnt lgkmcnt(0)")
    for k in range(3): A(f"s_cmp_eq_u32 s26, {k}\ns_cselect_b32 s{80+k}, s76, s{80+k}")
def it_mid(A):
    if O.itstamp: A("s_memtime s[76:77]\ns_waitcnt lgkmcnt(0)\ns_mov_b32 s83, s76")
def it_end(A, va, vb):
    if not O.itstamp: return
    A("s_memtime s[76:77]\ns_waitcnt lgkmcnt(0)\ns_mov_b32 s84, s76")
    srd(A, 56, 32, 0x200000, WS_TS + 7*0x40000)
    A("s_lshl_b32 s54, s2, 2\ns_add_u32 s54, s54, s16\ns_lshl_b32 s54, s54, 7")
    A("s_mov_b64 exec, 1")
    for i in range(11):
        A(f"v_mov_b32 v{va}, s{80+i}\nv_mov_b32 v{vb}, {4*i}")
        A(f"buffer_store_dword v{va}, v{vb}, s[56:59], s54 offen")
    A("s_mov_b64 exec, -1")

def gelu_pk(A, regs, tmp, sC):
    n = len(regs)
    for i, r in enumerate(regs): A(f"v_pk_mul_f32 v[{tmp+2*i}:{tmp+2*i+1}], v[{r}:{r+1}], v[{r}:{r+1}]")
    for i, r in enumerate(regs): A(f"v_pk_fma_f32 v[{tmp+2*i}:{tmp+2*i+1}], v[{tmp+2*i}:{tmp+2*i+1}], s[{sC}:{sC+1}], v[6:7]")
    for i, r in enumerate(regs): A(f"v_pk_mul_f32 v[{tmp+2*i}:{tmp+2*i+1}], v[{tmp+2*i}:{tmp+2*i+1}], v[{r}:{r+1}]")
    for i in range(2*n): A(f"v_exp_f32 v{tmp+i}, v{tmp+i}")
    for i, r in enumerate(regs): A(f"v_pk_add_f32 v[{tmp+2*i}:{tmp+2*i+1}], v[{tmp+2*i}:{tmp+2*i+1}], 1.0 op_sel_hi:[1,0]")
    for i in range(2*n): A(f"v_rcp_f32 v{tmp+i}, v{tmp+i}")
    for i, r in enumerate(regs): A(f"v_pk_mul_f32 v[{r}:{r+1}], v[{r}:{r+1}], v[{tmp+2*i}:{tmp+2*i+1}]")

def k1_geom(typ):
    if typ == 'q':
        return dict(pitchW=3840, PROWS=144, PSLOT=144*128, NPS=3, TSLOT=15360, R=6, TBASE=3*144*128)
    return dict(pitchW=3072, PROWS=128, PSLOT=128*128, NPS=3, TSLOT=16384, R=6, TBASE=3*128*128)

def k1_wsp_prefetch(A, part):
    if part == 0:
        srd(A, 4, 52, 2048*2048*2)
        A("s_and_b32 s40, s2, 7\ns_lshr_b32 s40, s40, 1\ns_lshl_b32 s40, s40, 14")
        A("s_lshr_b32 s41, s2, 3\ns_lshl_b32 s41, s41, 9\ns_add_u32 s40, s40, s41")
        A("s_sub_u32 s41, s16, 4\ns_lshl_b32 s41, s41, 7\ns_add_u32 s40, s40, s41")
        A("s_lshl_b32 s40, s40, 7")
        A("v_lshlrev_b32 v249, 7, v0")
        A("buffer_load_dword v250, v249, s[4:7], s40 offen")
    else:
        A("s_add_u32 s40, s40, 8192")
        A("buffer_load_dword v251, v249, s[4:7], s40 offen")

def pf_setup(A):
    A("s_cmp_lt_u32 s21, 2\ns_cselect_b32 s84, s30, s34\ns_cselect_b32 s85, s31, s35")
    A(f"s_mov_b32 s86, {640*1920*2}\ns_cselect_b32 s86, {2048*640*2}, s86")
    A("s_cmp_eq_u32 s21, 3\ns_cselect_b32 s84, s36, s84\ns_cselect_b32 s85, s37, s85")
    A(f"s_cselect_b32 s86, {640*1536*2}, s86\ns_mov_b32 s87, 0x20000")
    A("s_lshr_b32 s88, s2, 3\ns_and_b32 s89, s2, 7\ns_lshr_b32 s90, s89, 1\ns_and_b32 s89, s89, 1")
    A("s_lshl_b32 s91, s89, 10\ns_lshl_b32 s92, s88, 5\ns_add_u32 s91, s91, s92\ns_lshl_b32 s92, s21, 4\ns_add_u32 s91, s91, s92")
    A("v_lshrrev_b32 v20, 2, v0\nv_add_u32 v20, s91, v20\nv_mul_u32_u24 v20, 1280, v20\nv_and_b32 v21, 3, v0\nv_lshl_add_u32 v20, v21, 7, v20\nv_add_u32 v20, 384, v20")
    A("v_mul_u32_u24 v21, 57, v0\nv_lshrrev_b32 v21, 9, v21\nv_mul_u32_u24 v22, 9, v21\nv_sub_u32 v22, v0, v22")
    A("s_mul_i32 s91, s88, 7\ns_add_u32 s91, s91, 192\nv_add_u32 v21, s91, v21\nv_mul_u32_u24 v21, 3840, v21")
    A("v_mul_u32_u24 v23, 171, v22\nv_lshrrev_b32 v23, 9, v23\nv_mul_u32_u24 v25, 3, v23\nv_sub_u32 v22, v22, v25")
    A("s_lshl_b32 s91, s90, 2\ns_lshr_b32 s91, 0x7520, s91\ns_and_b32 s91, s91, 15")
    A("v_add_u32 v22, s91, v22\nv_lshlrev_b32 v22, 7, v22\nv_mul_u32_u24 v23, 1280, v23\nv_add3_u32 v21, v21, v22, v23")
    A(f"v_mov_b32 v25, {KILL}\nv_cmp_le_u32 vcc, 63, v0\nv_cndmask_b32 v21, v21, v25, vcc")
    A("v_mul_u32_u24 v22, 43, v0\nv_lshrrev_b32 v22, 8, v22\nv_mul_u32_u24 v23, 6, v22\nv_sub_u32 v23, v0, v23")
    A("s_mul_i32 s91, s88, 7\ns_add_u32 s91, s91, 192\nv_add_u32 v22, s91, v22\nv_mul_u32_u24 v22, 3072, v22")
    A("v_mul_u32_u24 v26, 171, v23\nv_lshrrev_b32 v26, 9, v26\nv_mul_u32_u24 v27, 3, v26\nv_sub_u32 v23, v23, v27")
    A("v_lshlrev_b32 v23, 7, v23\nv_mul_u32_u24 v26, 1536, v26\nv_add3_u32 v22, v22, v23, v26\ns_mul_i32 s91, s90, 384\nv_add_u32 v22, s91, v22")
    A("v_cmp_le_u32 vcc, 42, v0\nv_cndmask_b32 v22, v22, v25, vcc")
    A("s_cmp_lt_u32 s21, 2\ns_cselect_b64 s[90:91], -1, 0\ns_cselect_b32 s88, 384, 0")
    A("v_cndmask_b32 v24, v21, v20, s[90:91]")
    A(f"s_cmp_eq_u32 s21, 2\ns_cselect_b32 s88, {224*3840}, s88")
    A(f"s_cmp_eq_u32 s21, 3\ns_cselect_b32 s88, {224*3072}, s88\ns_cselect_b64 s[90:91], -1, 0")
    A("v_cndmask_b32 v24, v24, v22, s[90:91]")

def pf_group(A, g):
    if g == 0: A("buffer_load_dword v252, v24, s[84:87], 0 offen")
    else: A("buffer_load_dword v252, v24, s[84:87], s88 offen")

def run_loader_schedule(A, issueP, issueT, issued, hooks=None):
    NB = 20; NPS = 3; R = 6
    def wait_for(needs):
        last = -1
        for idx, tg in enumerate(issued):
            if tg in needs: last = idx
        if last < 0: return
        A(f"s_waitcnt vmcnt({min(len(issued) - 1 - last, 63)})")
    TLA = O.tla
    issueP(0, 0); issueP(0, 1); issueT(0); issueT(1)
    issueP(1, 0); issueP(1, 1)
    for t in range(2, TLA): issueT(t)
    if O.fullring: issueP(2, 0); issueP(2, 1)
    if O.pfg:
        pf_setup(A); pf_group(A, 0); issued.append(('F', 0))
    wait_for([('P', 0), ('T', 0)])
    A("s_barrier")
    if not O.fullring: issueP(2, 0)
    for b in range(NB):
        needs = []
        if b + 1 < NB: needs = [('T', b+1), ('P', (b+1)//2)]
        if needs: wait_for(needs)
        A("s_barrier")
        if b + TLA < NB: issueT(b + TLA)
        if b == 0 and not O.fullring: issueP(2, 1)
        if b % 2 == 1:
            s = (b - 1)//2 + NPS
            if s < NB//2: issueP(s, 0)
        elif b >= 2:
            s = (b - 2)//2 + NPS
            if s < NB//2: issueP(s, 1)
        if O.pfg and b == O.pfg2: pf_group(A, 1); issued.append(('F', 1))
        if hooks and b in hooks: hooks[b](issued)
        if b == 15 and O.wsp_pf: k1_wsp_prefetch(A, 0); issued.append(('W', 0))
        if b == 16 and O.wsp_pf: k1_wsp_prefetch(A, 1); issued.append(('W', 1))
    A("s_barrier")

def rot_stage(A, s, dst):
    A(f"s_add_u32 s{dst}, s28, {s}\ns_cmp_ge_u32 s{dst}, 10\ns_cselect_b32 s29, 10, 0\ns_sub_u32 s{dst}, s{dst}, s29")
def rot_beat(A, b, dst):
    A(f"s_lshl_b32 s{dst}, s28, 1\ns_add_u32 s{dst}, s{dst}, {b}\ns_cmp_ge_u32 s{dst}, 20\ns_cselect_b32 s29, 20, 0\ns_sub_u32 s{dst}, s{dst}, s29")

def k1_loader_z(A):
    G = k1_geom('z'); pitchW = G['pitchW']; PSLOT = G['PSLOT']; TSLOT = G['TSLOT']; TBASE = G['TBASE']
    lw = 21
    A(f"s_sub_u32 s{lw}, s16, 4")
    A("v_lshrrev_b32 v7, 3, v0\nv_and_b32 v2, 7, v0\nv_xor_b32 v2, v2, v7\nv_mul_u32_u24 v7, 1280, v7\nv_lshl_add_u32 v2, v2, 4, v7")
    A("v_lshrrev_b32 v4, 4, v0")
    A(f"s_and_b32 s20, s{lw}, 1\ns_lshl_b32 s20, s20, 2")
    A("v_add_u32 v5, s20, v4\nv_lshlrev_b32 v5, 1, v5\nv_and_b32 v6, 15, v0\nv_xor_b32 v6, v6, v5")
    A(f"v_mul_u32_u24 v4, {pitchW}, v4\nv_lshl_add_u32 v3, v6, 4, v4")
    A(f"v_cmp_le_u32 vcc, 12, v6\nv_mov_b32 v5, {KILL}\nv_cndmask_b32 v3, v3, v5, vcc")
    nP = 2; half_rows = 64
    A(f"s_mul_i32 s20, s{lw}, {nP*8*1280}\ns_add_u32 s22, s17, s20")
    A(f"s_mul_i32 s23, s{lw}, {nP*1024}")
    A(f"s_mul_i32 s20, s{lw}, {8*pitchW}\ns_add_u32 s24, s18, s20\ns_add_u32 s25, s19, s20")
    A(f"s_lshl_b32 s26, s{lw}, 11\ns_add_u32 s26, s26, {TBASE}")
    issued = []
    def issueP(s, h2):
        slot = s % 3
        rot_stage(A, s, 27)
        A("s_lshl_b32 s27, s27, 7\ns_add_u32 s27, s27, s22")
        A(f"s_add_u32 m0, s23, {slot*PSLOT + h2*half_rows*128}")
        for i in range(nP):
            A(f"s_add_u32 s20, s27, {h2*half_rows*1280 + i*(8*1280 - 1024)}")
            A(f"buffer_load_dwordx4 v2, s[4:7], s20 offen offset:{i*1024} lds")
            issued.append(('P', s))
    def issueT(b):
        slot = b % 6
        rot_beat(A, b, 27)
        A(f"s_mul_i32 s27, s27, {32*pitchW}")
        for u, sb in enumerate([24, 25]):
            A(f"s_add_u32 m0, s26, {slot*TSLOT + u*8192}")
            A(f"s_add_u32 s29, s27, s{sb}")
            for i in range(2):
                A(f"s_add_u32 s20, s29, {i*(4*pitchW - 1024)}")
                A(f"buffer_load_dwordx4 v3, s[8:11], s20 offen offset:{i*1024} lds")
                issued.append(('T', b))
    def gate_load(issued):
        srd(A, 12, 38, 640*2)
        A("v_lshlrev_b32 v10, 2, v0")
        for i in range(5): A(f"buffer_load_dword v{40+i}, v10, s[12:15], 0 offen offset:{256*i}")
        A("s_lshl_b32 s58, s48, 7\ns_lshl_b32 s59, s49, 4\ns_add_u32 s58, s58, s59\ns_lshl_b32 s59, s21, 2\ns_add_u32 s58, s58, s59")
        A("s_mul_i32 s59, s58, 1280")
        for r in range(4):
            A(f"s_add_u32 s57, s59, {r*1280}")
            for i in range(5): A(f"buffer_load_dword v{48+5*r+i}, v10, s[4:7], s57 offen offset:{256*i}")
        issued.extend([('G', 0)]*25)
    def gate_finish(issued):
        last = max(i for i, t in enumerate(issued) if t == ('G', 0))
        A(f"s_waitcnt vmcnt({len(issued) - 1 - last})")
        for r in range(4):
            A(f"v_mov_b32 v{70+r}, 0")
            for i in range(5): A(f"v_dot2_f32_bf16 v{70+r}, v{48+5*r+i}, v{40+i}, v{70+r}")
        for ctl in ("row_shr:1 row_mask:0xf bank_mask:0xf bound_ctrl:0", "row_shr:2 row_mask:0xf bank_mask:0xf bound_ctrl:0", "row_shr:4 row_mask:0xf bank_mask:0xf bound_ctrl:0",
                    "row_shr:8 row_mask:0xf bank_mask:0xf bound_ctrl:0", "row_bcast:15 row_mask:0xa bank_mask:0xf", "row_bcast:31 row_mask:0xc bank_mask:0xf"):
            for r in range(4): A(f"v_add_f32_dpp v{70+r}, v{70+r}, v{70+r} {ctl}")
        for r in range(4): A(f"v_mul_f32 v{70+r}, {f2u(-1.4426950408889634)}, v{70+r}")
        for r in range(4): A(f"v_exp_f32 v{70+r}, v{70+r}")
        for r in range(4): A(f"v_add_f32 v{70+r}, 1.0, v{70+r}")
        for r in range(4): A(f"v_rcp_f32 v{70+r}, v{70+r}")
        srd(A, 12, 32, SZ_G, WS_G)
        A("s_lshl_b32 s58, s58, 2\nv_mov_b32 v10, 0")
        A("s_mov_b32 s42, 0\ns_mov_b32 s43, 0x80000000\ns_mov_b64 exec, s[42:43]")
        for r in range(4): A(f"buffer_store_dword v{70+r}, v10, s[12:15], s58 offen offset:{4*r}")
        A("s_mov_b64 exec, -1")
        issued.extend([('S', 0)]*4)
    run_loader_schedule(A, issueP, issueT, issued, {14: gate_load, 17: gate_finish})

def k1_loader_q(A, last):
    G = k1_geom('q'); PSLOT = G['PSLOT']; TSLOT = G['TSLOT']; TBASE = G['TBASE']
    nP = 3 if last else 2
    nTi = 3 if last else 4
    A("s_sub_u32 s21, s16, 4")
    A("v_lshrrev_b32 v7, 3, v0\nv_and_b32 v6, 7, v0\nv_xor_b32 v6, v6, v7")
    A("s_lshl_b32 s20, s48, 7\ns_sub_u32 s20, s20, 16\ns_lshl_b32 s22, s21, 4\ns_add_u32 s20, s20, s22")
    A("v_add_u32 v7, s20, v7")
    A("v_mov_b32 v12, v7")
    A("s_mov_b32 s20, 1280\nv_mul_lo_u32 v7, v7, s20\nv_lshl_add_u32 v2, v6, 4, v7")
    for h2 in range(2):
        for i in range(nP):
            if h2 == 0 and i == 0: continue
            A(f"v_add_u32 v{2 + h2*3 + i}, {(72*h2 + 8*i)*1280}, v2")
    A(f"v_mov_b32 v13, {KILL}")
    for i in range(2):
        A(f"v_add_u32 v14, {8*i}, v12\nv_cmp_gt_i32 vcc, 0, v14\nv_cndmask_b32 v{2+i}, v{2+i}, v13, vcc")
    A("s_lshl_b32 s20, s21, 8")
    for i in range(nTi):
        d = 8 + i
        A(f"v_add_u32 v12, s20, v0\nv_add_u32 v12, {64*i}, v12")
        A("v_mul_u32_u24 v13, 2185, v12\nv_lshrrev_b32 v13, 16, v13")
        A("v_mul_u32_u24 v14, 30, v13\nv_sub_u32 v14, v12, v14")
        A("v_and_b32 v15, 0x13, v13\nv_and_b32 v16, 4, v13\nv_lshl_or_b32 v15, v16, 1, v15\nv_and_b32 v16, 8, v13\nv_lshrrev_b32 v16, 1, v16\nv_or_b32 v15, v15, v16")
        A("v_mul_u32_u24 v16, 205, v14\nv_lshrrev_b32 v16, 11, v16")
        A("v_mul_u32_u24 v17, 10, v16\nv_sub_u32 v14, v14, v17")
        A("v_mul_u32_u24 v15, 3840, v15\nv_mul_u32_u24 v16, 1280, v16\nv_lshlrev_b32 v14, 4, v14")
        A(f"v_add3_u32 v{d}, v15, v16, v14")
    A("s_mul_i32 s24, s49, 160")
    A("s_lshl_b32 s23, s21, 11")
    A(f"s_lshl_b32 s26, s21, 12\ns_add_u32 s26, s26, {TBASE}")
    issued = []
    def issueP(s, h2):
        slot = s % 3
        rot_stage(A, s, 27)
        A("s_lshl_b32 s27, s27, 7")
        A(f"s_add_u32 m0, s23, {slot*PSLOT + h2*72*128}")
        for i in range(nP):
            if i: A("s_add_u32 m0, m0, 1024\ns_nop 0")
            A(f"buffer_load_dwordx4 v{2 + h2*3 + i}, s[4:7], s27 offen lds")
            issued.append(('P', s))
    def issueT(b):
        slot = b % 6
        rot_beat(A, b, 27)
        A(f"s_mul_i32 s27, s27, {32*3840}\ns_add_u32 s27, s27, s24")
        A(f"s_add_u32 m0, s26, {slot*TSLOT}")
        for i in range(nTi):
            if i: A("s_add_u32 m0, m0, 1024\ns_nop 0")
            A(f"buffer_load_dwordx4 v{8 + i}, s[8:11], s27 offen lds")
            issued.append(('T', b))
    run_loader_schedule(A, issueP, issueT, issued)

def k1_pack_load(A):
    T = 56
    c, cc, t2, p_, k_, x_ = T+2, T+3, T+4, T+5, T+6, T+7
    A("s_lshl_b32 s40, s16, 6")
    A(f"v_add_u32 v{c}, s40, v0\nv_and_b32 v{cc}, 127, v{c}\nv_lshrrev_b32 v{t2}, 7, v{c}\nv_lshrrev_b32 v{p_}, 1, v{cc}")
    A(f"v_and_b32 v{k_}, 0x33, v{p_}\nv_and_b32 v{x_}, 4, v{p_}\nv_lshl_or_b32 v{k_}, v{x_}, 1, v{k_}")
    A(f"v_and_b32 v{x_}, 8, v{p_}\nv_lshrrev_b32 v{x_}, 1, v{x_}\nv_or_b32 v{k_}, v{k_}, v{x_}")
    A(f"v_mul_u32_u24 v{k_}, 1280, v{k_}\nv_and_b32 v{x_}, 1, v{cc}\nv_lshl_add_u32 v{k_}, v{x_}, 4, v{k_}\nv_lshl_add_u32 v{k_}, v{t2}, 5, v{k_}")
    A(f"v_lshlrev_b32 v252, 4, v{cc}\nv_lshl_add_u32 v252, v{t2}, 11, v252")
    A(f"v_mov_b32 v{x_}, {KILL}\nv_cmp_eq_u32 vcc, 1, v{t2}\nv_cndmask_b32 v253, v252, v{x_}, vcc\nv_cndmask_b32 v{p_}, v{k_}, v{x_}, vcc")
    A("s_lshl_b32 s54, s48, 3\ns_add_u32 s54, s54, s49")
    for u, D in ((0, 224), (1, 236)):
        A(f"s_add_u32 s55, s54, {128*u}")
        A(f"s_mul_hi_u32 s41, s55, {(2**32 + 21)//22}\ns_mul_i32 s42, s41, 22\ns_sub_u32 s42, s55, s42")
        A("s_cmp_lt_u32 s42, 10\ns_cselect_b32 s12, s44, s46\ns_cselect_b32 s13, s45, s47")
        A(f"s_mov_b32 s14, {768*640*2}\ns_cselect_b32 s14, {640*640*2}, s14\ns_mov_b32 s15, 0x20000")
        A("s_cselect_b32 s43, 0, 10\ns_sub_u32 s43, s42, s43")
        A(f"s_mul_i32 s43, s43, {64*1280}\ns_mul_i32 s40, s41, 160\ns_add_u32 s43, s43, s40")
        A(f"s_cmp_ge_u32 s55, 176\ns_cselect_b32 s40, {KILL}, 0\ns_add_u32 s43, s43, s40")
        A(f"buffer_load_dwordx4 v[{D}:{D+3}], v{k_}, s[12:15], s43 offen")
        A(f"buffer_load_dwordx4 v[{D+4}:{D+7}], v{k_}, s[12:15], s43 offen offset:64")
        A(f"buffer_load_dwordx4 v[{D+8}:{D+11}], v{p_}, s[12:15], s43 offen offset:128")

def k1_pack_store(A):
    A("s_waitcnt vmcnt(6)")
    srd(A, 12, 32, SZ_WP, WS_WP)
    for u, D in ((0, 224), (1, 236)):
        A(f"s_add_u32 s55, s54, {128*u}")
        A(f"s_mul_i32 s41, s55, {5*2048}\ns_cmp_ge_u32 s55, 176\ns_cselect_b32 s42, {KILL}, 0\ns_add_u32 s41, s41, s42")
        A("s_add_u32 s42, s41, 4096\ns_add_u32 s43, s41, 8192")
        A(f"buffer_store_dwordx4 v[{D}:{D+3}], v252, s[12:15], s41 offen")
        A(f"buffer_store_dwordx4 v[{D+4}:{D+7}], v252, s[12:15], s42 offen")
        A(f"buffer_store_dwordx4 v[{D+8}:{D+11}], v253, s[12:15], s43 offen")

def k1_compute_z(A, st):
    G = k1_geom('z'); PSLOT = G['PSLOT']; NPS = 3; TSLOT = G['TSLOT']; R = 6; TBASE = G['TBASE']
    mP = 4; nT = 6; nA = 3
    bP = 2; bT = 6
    F = [16, 16 + 4*(mP+nT)]
    ACC = 16 + 8*(mP+nT)
    A(f"s_and_b32 s20, s16, 1\ns_lshr_b32 s21, s16, 1\ns_mul_i32 s21, s21, {nA}")
    A("v_and_b32 v14, 15, v0\nv_lshrrev_b32 v15, 4, v0\nv_and_b32 v6, 7, v14\nv_xor_b32 v6, v15, v6\nv_lshlrev_b32 v14, 7, v14\nv_lshl_add_u32 v14, v6, 4, v14")
    A(f"s_mul_i32 s22, s20, {mP*2048}")
    A(f"v_add_u32 v{bP}, s22, v14\nv_xor_b32 v{bP+1}, 64, v{bP}")
    A("v_lshrrev_b32 v14, 2, v0\nv_and_b32 v14, 3, v14\nv_lshl_add_u32 v13, v15, 3, v14\nv_lshlrev_b32 v13, 8, v13")
    A("v_and_b32 v12, 3, v0\nv_lshl_add_u32 v13, v12, 3, v13\nv_and_b32 v12, 1, v15\nv_lshl_add_u32 v14, v12, 2, v14")
    A(f"v_add_u32 v15, {TBASE}, v13")
    for tl in range(nA):
        A(f"s_add_u32 s23, s21, {tl}\nv_xor_b32 v13, s23, v14\nv_lshl_add_u32 v{bT+tl}, v13, 5, v15")
    for tl in range(nA): A(f"v_add_u32 v{bT+nA+tl}, 0x10000, v{bT+tl}")
    for i in range(ACC, ACC + 4*mP*nT): A(f"v_mov_b32 v{i}, 0")
    def fP(s, m): return F[s] + 4*m
    def fT(s, t): return F[s] + 4*(mP + t)
    def acc(m, t): return ACC + 4*(m*nT + t)
    def reads(b):
        s = b & 1; kk = b & 1; ps = (b//2) % NPS; ts = b % R
        r = []
        for m in range(mP):
            f = fP(s, m); off = ps*PSLOT + m*2048
            r.append(f"ds_read_b128 v[{f}:{f+3}], v{bP + kk} offset:{off}")
        for t in range(nT):
            f = fT(s, t); tl = t % nA; u = t // nA
            for h in range(2):
                off = ts*TSLOT + u*8192 + h*1024; hi = off >> 16
                r.append(f"ds_read_b64_tr_b16 v[{f+2*h}:{f+2*h+1}], v{bT + tl + nA*hi} offset:{off & 0xffff}")
        return r
    A("s_barrier")
    for x in reads(0): A(x)
    k1_pack_load(A)
    A("s_waitcnt lgkmcnt(0)")
    st()
    A("s_barrier")
    TAILM = 6
    def beat(b, last=False):
        s = b & 1
        mf = [f"v_mfma_f32_16x16x32_bf16 v[{acc(m,t)}:{acc(m,t)+3}], v[{fT(s,t)}:{fT(s,t)+3}], v[{fP(s,m)}:{fP(s,m)+3}], v[{acc(m,t)}:{acc(m,t)+3}]" for m in range(mP) for t in range(nT)]
        rd = [] if last else reads(b + 1)
        nfront = len(mf) - TAILM
        for i, x in enumerate(mf):
            A(x)
            if rd: A(rd.pop(0))
            if i == nfront - 1:
                assert not rd
                A("s_waitcnt lgkmcnt(0)\ns_barrier")
    L = "K1z_cloop"
    A("s_mov_b32 s26, 0")
    A.label(L)
    it_top(A)
    for b in range(6): beat(b)
    A(f"s_add_u32 s26, s26, 1\ns_cmp_lt_u32 s26, 3\ns_cbranch_scc1 {L}")
    it_mid(A)
    beat(18); beat(19, last=True)
    it_end(A, 14, 15)
    if O.itstamp: A("s_lshl_b32 s54, s48, 3\ns_add_u32 s54, s54, s49")
    return acc

def k1_compute_q(A, wm, wn, st):
    G = k1_geom('q'); PSLOT = G['PSLOT']; TSLOT = G['TSLOT']; TBASE = G['TBASE']
    tiles = list(range(0, 8)) if wn == 0 else list(range(8, 15))
    halo = {(0, 0): [5, 6], (1, 0): [7], (0, 1): [8, 9, 10, 11], (1, 1): [12, 13, 14]}[(wm, wn)]
    nT = len(tiles); mP = 5
    F = [16, 16 + 4*(5 + 8)]
    ACC = 16 + 8*(5 + 8)
    A("v_and_b32 v14, 15, v0\nv_lshrrev_b32 v15, 4, v0\nv_and_b32 v6, 7, v14\nv_xor_b32 v6, v15, v6\nv_lshlrev_b32 v14, 7, v14\nv_lshl_add_u32 v2, v6, 4, v14")
    A("v_xor_b32 v3, 64, v2")
    A("v_lshrrev_b32 v6, 1, v15\nv_lshlrev_b32 v6, 4, v6\nv_and_b32 v7, 1, v15\nv_lshl_add_u32 v6, v7, 2, v6")
    A("v_lshrrev_b32 v7, 2, v0\nv_and_b32 v7, 3, v7\nv_add_u32 v6, v6, v7\nv_mul_u32_u24 v6, 480, v6\nv_and_b32 v7, 3, v0\nv_lshl_add_u32 v6, v7, 3, v6")
    A(f"v_add_u32 v4, {TBASE}, v6\nv_add_u32 v5, {TBASE + 3*TSLOT}, v6")
    accs = {}
    n = ACC
    for m in range(4):
        for t in tiles: accs[(m, t)] = n; n += 4
    for t in halo: accs[('h', t)] = n; n += 4
    assert n <= 256, n
    for i in range(ACC, n): A(f"v_mov_b32 v{i}, 0")
    def fP(s, m): return F[s] + 4*m
    def fT(s, t): return F[s] + 4*(5 + tiles.index(t))
    def reads(b):
        s = b & 1; kk = b & 1; ps = (b//2) % 3; ts = b % 6
        r = []
        for m in range(4):
            f = fP(s, m); r.append(f"ds_read_b128 v[{f}:{f+3}], v{2+kk} offset:{ps*PSLOT + (16 + 64*wm + 16*m)*128}")
        f = fP(s, 4); r.append(f"ds_read_b128 v[{f}:{f+3}], v{2+kk} offset:{ps*PSLOT}")
        for t in tiles:
            f = fT(s, t)
            for h in range(2):
                hi = 1 if ts >= 3 else 0
                r.append(f"ds_read_b64_tr_b16 v[{f+2*h}:{f+2*h+1}], v{4+hi} offset:{(ts - 3*hi)*TSLOT + h*8*480 + t*32}")
        return r
    A("s_barrier")
    for x in reads(0): A(x)
    A("s_waitcnt lgkmcnt(0)")
    st()
    A("s_barrier")
    def beat(b, last=False):
        s = b & 1
        mf = []
        for m in range(4):
            for t in tiles:
                a_ = accs[(m, t)]; mf.append(f"v_mfma_f32_16x16x32_bf16 v[{a_}:{a_+3}], v[{fT(s,t)}:{fT(s,t)+3}], v[{fP(s,m)}:{fP(s,m)+3}], v[{a_}:{a_+3}]")
        for t in halo:
            a_ = accs[('h', t)]; mf.append(f"v_mfma_f32_16x16x32_bf16 v[{a_}:{a_+3}], v[{fT(s,t)}:{fT(s,t)+3}], v[{fP(s,4)}:{fP(s,4)+3}], v[{a_}:{a_+3}]")
        rd = [] if last else reads(b + 1)
        nfront = len(mf) - 8
        for i, x in enumerate(mf):
            A(x)
            if rd: A(rd.pop(0))
            if i == nfront - 1:
                assert not rd, (len(rd), nfront)
                A("s_waitcnt lgkmcnt(0)\ns_barrier")
    L = f"K1q{wm}{wn}_cloop"
    A("s_mov_b32 s26, 0")
    A.label(L)
    it_top(A)
    for b in range(6):
        if O.itstamp: A(f"s_memtime s[76:77]\ns_waitcnt lgkmcnt(0)\ns_cmp_eq_u32 s26, 0\ns_cselect_b32 s{85+b}, s76, s{85+b}")
        beat(b)
    A(f"s_add_u32 s26, s26, 1\ns_cmp_lt_u32 s26, 3\ns_cbranch_scc1 {L}")
    it_mid(A)
    beat(18); beat(19, last=True)
    it_end(A, 14, 15)
    st()
    A(f"v_and_b32 v6, 15, v0\nv_mul_u32_u24 v6, {QP}, v6\nv_lshrrev_b32 v7, 4, v0\nv_lshl_add_u32 v6, v7, 3, v6")
    k = 0
    items = list(accs.items())
    for (key, a_) in items:
        A(f"v_cvt_pk_bf16_f32 v{16+2*k}, v{a_}, v{a_+1}\nv_cvt_pk_bf16_f32 v{17+2*k}, v{a_+2}, v{a_+3}")
        k += 1
    A(f"v_add_u32 v7, 0x8000, v6")
    k = 0
    for (key, a_) in items:
        m, t = key
        row = 0 if m == 'h' else 16 + 64*wm + 16*m
        off = row*QP + t*32
        if off < 65536: A(f"ds_write_b64 v6, v[{16+2*k}:{17+2*k}] offset:{off}")
        else: A(f"ds_write_b64 v7, v[{16+2*k}:{17+2*k}] offset:{off - 0x8000}")
        k += 1
    A("s_waitcnt lgkmcnt(0)")

def rot_table(A):
    A(f"s_and_b32 s28, s28, 3\ns_lshl_b32 s28, s28, 2\ns_lshr_b32 s28, {0x8530 if O.rot else 0}, s28\ns_and_b32 s28, s28, 15")

def k1(A):
    name = "k1_kernel"
    kernel_begin(A, name)
    A("s_cmp_ge_u32 s2, 256\ns_cbranch_scc1 K1_end")
    load_ptr(A, 30, 'x'); load_ptr(A, 32, 'ws'); load_ptr(A, 34, 'wqkv'); load_ptr(A, 36, 'win')
    load_ptr(A, 38, 'gw'); load_ptr(A, 44, 'wo'); load_ptr(A, 46, 'wout'); load_ptr(A, 52, 'wsp'); load_ptr(A, 50, 'dbg')
    wave_lane(A, 16)
    st = Stamps(A, 0); st()
    A("s_and_b32 s40, s2, 7\ns_lshr_b32 s41, s2, 3\ns_and_b32 s48, s40, 1\ns_lshl_b32 s48, s48, 3\ns_and_b32 s42, s41, 7\ns_add_u32 s48, s48, s42")
    A("s_lshr_b32 s49, s40, 1\ns_lshl_b32 s49, s49, 1\ns_lshr_b32 s43, s41, 3\ns_and_b32 s43, s43, 1\ns_add_u32 s49, s49, s43")
    A("s_lshl_b32 s28, s43, 1\ns_add_u32 s28, s28, s42")
    rot_table(A)
    A("s_cmp_lt_u32 s41, 16\ns_cbranch_scc1 K1_ztype")
    A("s_waitcnt lgkmcnt(0)")
    A("s_cmp_lt_u32 s16, 4\ns_cbranch_scc1 K1_qcomp")
    srd(A, 4, 30, 2048*640*2); srd(A, 8, 34, 640*1920*2)
    A("s_cmp_eq_u32 s16, 7\ns_cbranch_scc1 K1_qload3")
    k1_loader_q(A, False)
    A("s_branch K1_att")
    A.label("K1_qload3")
    k1_loader_q(A, True)
    A("s_branch K1_att")
    A.label("K1_qcomp")
    st()
    A("s_cmp_eq_u32 s16, 1\ns_cbranch_scc1 K1_q10\ns_cmp_eq_u32 s16, 2\ns_cbranch_scc1 K1_q01\ns_cmp_eq_u32 s16, 3\ns_cbranch_scc1 K1_q11")
    for (wm, wn) in ((0, 0), (1, 0), (0, 1), (1, 1)):
        if (wm, wn) != (0, 0): A.label(f"K1_q{wm}{wn}")
        stv = Stamps(A, 0, 2)
        k1_compute_q(A, wm, wn, stv)
        if (wm, wn) != (1, 1): A("s_branch K1_att")
    A.label("K1_att")
    st3 = Stamps(A, 0, 4)
    A("s_barrier")
    st3()
    A(f"s_and_b32 s46, s16, 3\ns_lshr_b32 s47, s16, 2\ns_mul_i32 s45, s46, 40\ns_mul_i32 s43, s47, {64*QP}\ns_add_u32 s45, s45, s43")
    A("s_or_b32 s43, s48, s47")
    attention(A, 16, 45, 43)
    A("s_waitcnt lgkmcnt(0)\ns_barrier")
    st3()
    srd(A, 12, 32, SZ_AU, WS_AU)
    T = 18
    A(f"s_lshl_b32 s20, s16, 6\nv_add_u32 v{T}, s20, v0")
    for i in range(3):
        c, r, q, la, ga = T+1, T+2, T+3, T+4+2*i, T+5+2*i
        A(f"v_add_u32 v{c}, {512*i}, v{T}")
        A(f"v_mul_u32_u24 v{r}, 6554, v{c}\nv_lshrrev_b32 v{r}, 16, v{r}")
        A(f"v_mul_u32_u24 v{q}, 10, v{r}\nv_sub_u32 v{q}, v{c}, v{q}")
        A(f"v_mul_u32_u24 v{la}, {QP}, v{r}\nv_lshl_add_u32 v{la}, v{q}, 4, v{la}\nv_add_u32 v{la}, {16*QP}, v{la}")
        A(f"s_lshl_b32 s20, s48, 7\nv_add_u32 v{ga}, s20, v{r}\nv_mul_u32_u24 v{ga}, 2816, v{ga}\nv_lshl_add_u32 v{ga}, v{q}, 4, v{ga}")
        A(f"s_mul_i32 s20, s49, 160\nv_add_u32 v{ga}, s20, v{ga}")
        if i == 2:
            A(f"v_mov_b32 v{q}, {KILL}\nv_cmp_le_u32 vcc, 1280, v{c}\nv_cndmask_b32 v{ga}, v{ga}, v{q}, vcc")
            A(f"v_mov_b32 v{q}, 0\nv_cndmask_b32 v{la}, v{la}, v{q}, vcc")
    D = 32
    for i in range(3): A(f"ds_read_b128 v[{D+4*i}:{D+4*i+3}], v{T+4+2*i}")
    A("s_waitcnt lgkmcnt(0)")
    for i in range(3): A(f"buffer_store_dwordx4 v[{D+4*i}:{D+4*i+3}], v{T+5+2*i}, s[12:15], 0 offen")
    if O.stamp:
        A("s_cmp_ge_u32 s16, 4\ns_cbranch_scc1 K1_end")
        A("s_waitcnt vmcnt(0)")
    st3(); st3.flush(16, 32)
    A("s_branch K1_end")
    A.label("K1_ztype")
    A(f"s_mul_i32 s17, s48, {128*1280}")
    A("s_mul_i32 s19, s49, 192\ns_add_u32 s18, s19, 1536")
    A("s_waitcnt lgkmcnt(0)")
    A("s_cmp_lt_u32 s16, 4\ns_cbranch_scc1 K1_zcomp")
    srd(A, 4, 30, 2048*640*2); srd(A, 8, 36, 640*1536*2)
    k1_loader_z(A)
    A("s_branch K1_end")
    A.label("K1_zcomp")
    st2 = Stamps(A, 0, 1); st2()
    acc = k1_compute_z(A, st2)
    st2()
    A(f"s_mov_b32 s56, {f2u(C1)}\ns_mov_b32 s57, {f2u(C1)}")
    A(f"v_mov_b32 v6, {f2u(C0)}\nv_mov_b32 v7, {f2u(C0)}")
    z2 = [acc(m, t) + 2*q for m in range(4) for t in range(3) for q in range(2)]
    z1 = [acc(m, t) + 2*q for m in range(4) for t in range(3, 6) for q in range(2)]
    gelu_pk(A, z2, 16, 56)
    A("s_and_b32 s20, s16, 1\ns_lshr_b32 s21, s16, 1")
    S = 70
    for m in range(4):
        vals = [acc(m, t) + r for t in range(3) for r in range(4)]
        A(f"v_pk_add_f32 v[{S+2*m}:{S+2*m+1}], v[{vals[0]}:{vals[1]}], v[{vals[2]}:{vals[3]}]")
        A(f"v_pk_mul_f32 v[{S+8+2*m}:{S+8+2*m+1}], v[{vals[0]}:{vals[1]}], v[{vals[0]}:{vals[1]}]")
        A(f"v_pk_fma_f32 v[{S+8+2*m}:{S+8+2*m+1}], v[{vals[2]}:{vals[3]}], v[{vals[2]}:{vals[3]}], v[{S+8+2*m}:{S+8+2*m+1}]")
        for q in range(2, 6):
            A(f"v_pk_add_f32 v[{S+2*m}:{S+2*m+1}], v[{S+2*m}:{S+2*m+1}], v[{vals[2*q]}:{vals[2*q+1]}]")
            A(f"v_pk_fma_f32 v[{S+8+2*m}:{S+8+2*m+1}], v[{vals[2*q]}:{vals[2*q+1]}], v[{vals[2*q]}:{vals[2*q+1]}], v[{S+8+2*m}:{S+8+2*m+1}]")
    for m in range(4):
        A(f"v_add_f32 v{S+2*m}, v{S+2*m}, v{S+2*m+1}\nv_add_f32 v{S+2*m+1}, v{S+8+2*m}, v{S+8+2*m+1}")
    for i in range(8): A(f"v_mov_b32 v{S+8+i}, v{S+i}")
    for i in range(8): A(f"v_permlane16_swap_b32 v{S+i}, v{S+8+i}")
    for i in range(8): A(f"v_add_f32 v{S+i}, v{S+i}, v{S+8+i}")
    for i in range(8): A(f"v_mov_b32 v{S+8+i}, v{S+i}")
    for i in range(8): A(f"v_permlane32_swap_b32 v{S+i}, v{S+8+i}")
    for i in range(8): A(f"v_add_f32 v{S+i}, v{S+i}, v{S+8+i}")
    A("v_lshrrev_b32 v3, 4, v0")
    for m in range(1, 4):
        A(f"v_cmp_eq_u32 vcc, {m}, v3\nv_cndmask_b32 v{S}, v{S}, v{S+2*m}, vcc\nv_cndmask_b32 v{S+1}, v{S+1}, v{S+2*m+1}, vcc")
    A("v_lshlrev_b32 v4, 3, v0\ns_lshl_b32 s22, s16, 9\nv_add_u32 v5, s22, v4")
    A(f"ds_write_b64 v5, v[{S}:{S+1}]")
    A("s_waitcnt lgkmcnt(0)\ns_barrier")
    A("v_xor_b32 v5, 1024, v5")
    A(f"ds_read_b64 v[{S+2}:{S+3}], v5")
    srd(A, 8, 32, SZ_ST, WS_ST)
    A("s_lshl_b32 s22, s49, 14\ns_lshl_b32 s23, s48, 10\ns_add_u32 s22, s22, s23\ns_lshl_b32 s23, s20, 9\ns_add_u32 s22, s22, s23")
    A("s_waitcnt lgkmcnt(0)")
    A(f"v_add_f32 v{S}, v{S}, v{S+2}\nv_add_f32 v{S+1}, v{S+1}, v{S+3}")
    A("s_cmp_lg_u32 s21, 0\ns_cbranch_scc1 K1_z_nostat")
    A(f"buffer_store_dwordx2 v[{S}:{S+1}], v4, s[8:11], s22 offen sc1")
    A("s_waitcnt vmcnt(0)")
    A.label("K1_z_nostat")
    A("s_barrier")
    srd(A, 12, 50, 256)
    A("s_cmp_lg_u32 s16, 0\ns_cbranch_scc1 K1_z_nosig")
    A("s_lshl_b32 s22, s48, 4\nv_mov_b32 v8, s22\nv_mov_b32 v9, 1")
    A("s_mov_b64 exec, 1")
    A("buffer_atomic_add v9, v8, s[12:15], 0 offen sc1")
    A("s_mov_b64 exec, -1")
    A.label("K1_z_nosig")
    st2()
    gelu_pk(A, z1, 16, 56)
    srd(A, 4, 32, SZ_Z1, WS_Z1)
    A("s_lshl_b32 s22, s48, 2\ns_lshl_b32 s23, s20, 1\ns_add_u32 s22, s22, s23\ns_mul_i32 s22, s22, 48")
    A("s_mul_i32 s23, s49, 6\ns_add_u32 s22, s22, s23\ns_mul_i32 s23, s21, 3\ns_add_u32 s22, s22, s23\ns_lshl_b32 s22, s22, 10")
    A("v_lshlrev_b32 v4, 4, v0")
    Q = 200
    for mp in range(2):
        for t in range(3):
            d = Q + 4*(mp*3+t); a0 = acc(2*mp, 3+t); a1 = acc(2*mp+1, 3+t)
            A(f"v_cvt_pk_bf16_f32 v{d}, v{a0}, v{a0+1}\nv_cvt_pk_bf16_f32 v{d+1}, v{a0+2}, v{a0+3}\nv_cvt_pk_bf16_f32 v{d+2}, v{a1}, v{a1+1}\nv_cvt_pk_bf16_f32 v{d+3}, v{a1+2}, v{a1+3}")
    for mp in range(2):
        for t in range(3):
            d = Q + 4*(mp*3+t)
            A(f"s_add_u32 s23, s22, {mp*48*1024 + t*1024}")
            A(f"buffer_store_dwordx4 v[{d}:{d+3}], v4, s[4:7], s23 offen")
    k1_pack_store(A)
    st2()
    A("s_lshl_b32 s22, s48, 4\nv_mov_b32 v8, s22")
    srd(A, 12, 50, 256)
    A("s_mov_b32 s24, 0")
    A.label("K1_poll")
    A("buffer_load_dword v9, v8, s[12:15], 0 offen sc1")
    A("s_waitcnt vmcnt(0)")
    A("v_readfirstlane_b32 s25, v9")
    A("s_add_u32 s24, s24, 1")
    A("s_cmp_ge_u32 s25, 8\ns_cbranch_scc1 K1_polled")
    A("s_sleep 1")
    A("s_cmp_lt_u32 s24, 0x40000\ns_cbranch_scc1 K1_poll")
    A.label("K1_polled")
    st2()
    A("s_lshl_b32 s22, s48, 10\ns_lshl_b32 s23, s20, 9\ns_add_u32 s22, s22, s23")
    A("v_lshlrev_b32 v4, 3, v0")
    for jj in range(8):
        A(f"s_add_u32 s23, s22, {jj*16384}")
        A(f"buffer_load_dwordx2 v[{16+2*jj}:{17+2*jj}], v4, s[8:11], s23 offen sc1")
    A("s_waitcnt vmcnt(0)")
    for jj in range(1, 8): A(f"v_add_f32 v16, v16, v{16+2*jj}\nv_add_f32 v17, v17, v{17+2*jj}")
    A(f"v_mul_f32 v16, {f2u(1/768)}, v16\nv_mul_f32 v17, {f2u(1/768)}, v17")
    A("v_fma_f32 v17, -v16, v16, v17\nv_max_f32 v17, 0, v17")
    A(f"v_add_f32 v17, {f2u(1e-5)}, v17\nv_rsq_f32 v17, v17")
    A("v_mul_f32 v16, v16, v17\nv_sub_f32 v16, 0, v16")
    A("v_and_b32 v5, 15, v0\nv_lshlrev_b32 v5, 2, v5")
    for m in range(4):
        A(f"v_add_u32 v8, {64*m}, v5")
        A(f"ds_bpermute_b32 v{32+2*m}, v8, v17\nds_bpermute_b32 v{33+2*m}, v8, v16")
    A("s_waitcnt lgkmcnt(0)")
    PK = 44
    for m in range(4):
        for t in range(3):
            a_ = acc(m, t); i = m*3 + t
            for r in range(4): A(f"v_fma_f32 v{a_+r}, v{a_+r}, v{32+2*m}, v{33+2*m}")
            A(f"v_cvt_pk_bf16_f32 v{PK+2*i}, v{a_}, v{a_+1}\nv_cvt_pk_bf16_f32 v{PK+2*i+1}, v{a_+2}, v{a_+3}")
    srd(A, 12, 32, SZ_Z2P, WS_Z2P)
    A("s_lshl_b32 s22, s49, 5\ns_lshl_b32 s23, s48, 1\ns_add_u32 s22, s22, s23\ns_add_u32 s22, s22, s20\ns_mul_i32 s22, s22, 6")
    A("s_mul_i32 s23, s21, 3\ns_add_u32 s22, s22, s23\ns_lshl_b32 s22, s22, 11")
    A("v_and_b32 v6, 15, v0\nv_and_b32 v7, 3, v6\nv_and_b32 v4, 4, v6\nv_lshl_or_b32 v7, v4, 1, v7\nv_and_b32 v4, 8, v6\nv_lshrrev_b32 v4, 1, v4\nv_or_b32 v7, v7, v4")
    A("v_lshlrev_b32 v7, 5, v7\nv_lshl_add_u32 v4, v3, 3, v7")
    for m in range(4):
        for t in range(3):
            i = m*3 + t
            A(f"s_add_u32 s23, s22, {t*2048 + m*512}")
            A(f"buffer_store_dwordx2 v[{PK+2*i}:{PK+2*i+1}], v4, s[12:15], s23 offen")
    st2(); st2.flush(16, 32)
    A.label("K1_end")
    A("s_endpgm")
    return name, 256, 512, 147456, 256

SLOT = 20480
class E2:
    def __init__(self, A, pfx, NT, nsteps, pitchP, wave_m, wave_n, NS=6):
        self.A = A; self.pfx = pfx; self.NT = NT; self.n = nsteps; self.pitchP = pitchP
        self.mP = wave_m; self.nT = wave_n; self.NS = NS
        self.F = [8, 8 + 8*(wave_m + wave_n)]
        self.ACC = 8 + 16*(wave_m + wave_n)
        self.vend = self.ACC + 4*wave_m*wave_n
    def fP(self, s, kk, m): return self.F[s] + 4*(kk*(self.mP+self.nT) + m)
    def fT(self, s, kk, t): return self.F[s] + 4*(kk*(self.mP+self.nT) + self.mP + t)
    def acc(self, m, t): return self.ACC + 4*(m*self.nT + t)
    def loader_setup(self):
        A = self.A
        A("s_sub_u32 s21, s16, 4")
        A("v_lshrrev_b32 v7, 3, v0\nv_and_b32 v2, 7, v0\nv_xor_b32 v2, v2, v7")
        A(f"s_mov_b32 s20, {self.pitchP}\nv_mul_lo_u32 v7, v7, s20\nv_lshl_add_u32 v2, v2, 4, v7\nv_lshlrev_b32 v3, 4, v0")
        A(f"s_mul_i32 s20, s21, {16*self.pitchP}\ns_add_u32 s23, s17, s20")
        A("s_mul_i32 s20, s21, 3072\ns_add_u32 s24, s18, s20\ns_add_u32 s26, s20, 8192\ns_lshl_b32 s27, s21, 11")
        A("s_mov_b32 s28, 0\ns_mov_b32 s29, 0")
        if 2*self.NT < 12:
            A(f"s_mul_i32 s20, s21, 3\ns_cmp_ge_u32 s20, {2*self.NT - 1}\ns_cselect_b32 s28, {KILL}, 0\ns_cmp_ge_u32 s20, {2*self.NT - 2}\ns_cselect_b32 s29, {KILL}, 0")
        A("s_mov_b32 s22, 0")
    def issue(self):
        A = self.A
        A("s_add_u32 m0, s22, s27")
        A(f"s_add_u32 s20, s23, {8*self.pitchP - 1024}")
        A("buffer_load_dwordx4 v2, s[4:7], s23 offen lds")
        A("buffer_load_dwordx4 v2, s[4:7], s20 offen offset:1024 lds")
        A("s_add_u32 m0, s22, s26")
        if 2*self.NT < 12:
            A("s_add_u32 s25, s24, s28\ns_add_u32 s15, s24, s29")
            A("buffer_load_dwordx4 v3, s[8:11], s24 offen lds")
            A("buffer_load_dwordx4 v3, s[8:11], s25 offen offset:1024 lds")
            A("buffer_load_dwordx4 v3, s[8:11], s15 offen offset:2048 lds")
        else:
            A("buffer_load_dwordx4 v3, s[8:11], s24 offen lds")
            A("buffer_load_dwordx4 v3, s[8:11], s24 offen offset:1024 lds")
            A("buffer_load_dwordx4 v3, s[8:11], s24 offen offset:2048 lds")
        A(f"s_add_u32 s23, s23, 128\ns_add_u32 s24, s24, {self.NT*2048}")
        A(f"s_add_u32 s22, s22, {SLOT}\ns_cmp_eq_u32 s22, {self.NS*SLOT}\ns_cselect_b32 s22, 0, s22")
    def loader_main(self, pre_issued):
        A = self.A; NS = self.NS; n = self.n
        for i in range(pre_issued, NS - 1): self.issue()
        A(f"s_waitcnt vmcnt({(NS - 2)*5})")
        A("s_barrier")
        self.issue()
        L = self.pfx + "_lloop"
        A("s_mov_b32 s14, 0")
        A.label(L)
        A(f"s_waitcnt vmcnt({(NS-2)*5})\ns_barrier")
        self.issue()
        A(f"s_add_u32 s14, s14, 1\ns_cmp_lt_u32 s14, {n - NS}\ns_cbranch_scc1 {L}")
        for t in range(NS):
            i = n - NS + t
            rem = max(0, (n - 1) - (i + 1))
            A(f"s_waitcnt vmcnt({rem*5})\ns_barrier")
    def compute_setup(self, s_row, s_tile):
        A = self.A
        A("v_and_b32 v4, 15, v0\nv_lshrrev_b32 v5, 4, v0\nv_and_b32 v6, 7, v4\nv_xor_b32 v5, v5, v6\nv_lshlrev_b32 v4, 7, v4\nv_lshl_add_u32 v4, v5, 4, v4")
        A(f"s_lshl_b32 s20, s{s_row}, 7\nv_add_u32 v2, s20, v4\nv_xor_b32 v3, 64, v2")
        A("v_and_b32 v6, 15, v0\nv_lshlrev_b32 v6, 3, v6\nv_and_b32 v7, 16, v0\nv_lshl_add_u32 v6, v7, 3, v6\nv_and_b32 v7, 32, v0\nv_lshl_add_u32 v6, v7, 4, v6")
        A(f"s_lshl_b32 s20, s{s_tile}, 11\ns_add_u32 s20, s20, 8192\nv_add_u32 v4, s20, v6")
        A(f"v_add_u32 v5, {3*SLOT}, v2\nv_add_u32 v6, {3*SLOT}, v3\nv_add_u32 v7, {3*SLOT}, v4")
        for i in range(self.ACC, self.vend): A(f"v_mov_b32 v{i}, 0")
    def reads(self, step):
        s = step & 1; sl = step % self.NS; hi = 3 if sl >= 3 else 0; so = (sl - hi)*SLOT
        b = 3 if hi else 0
        r = []
        for kk in range(2):
            for m in range(self.mP):
                f = self.fP(s, kk, m); r.append(f"ds_read_b128 v[{f}:{f+3}], v{2+kk+b} offset:{so + m*2048}")
            for t in range(self.nT):
                f = self.fT(s, kk, t)
                for h in range(2): r.append(f"ds_read_b64_tr_b16 v[{f+2*h}:{f+2*h+1}], v{4+b} offset:{so + t*2048 + kk*1024 + h*256}")
        return r
    def step(self, i, last=False):
        A = self.A; s = i & 1
        rd = [] if last else self.reads(i + 1)
        mf = [f"v_mfma_f32_16x16x32_bf16 v[{self.acc(m,t)}:{self.acc(m,t)+3}], v[{self.fT(s,kk,t)}:{self.fT(s,kk,t)+3}], v[{self.fP(s,kk,m)}:{self.fP(s,kk,m)+3}], v[{self.acc(m,t)}:{self.acc(m,t)+3}]"
              for kk in range(2) for m in range(self.mP) for t in range(self.nT)]
        A("s_barrier")
        per = (len(rd) + len(mf) - 1)//len(mf) if rd else 0
        for x in mf:
            for _ in range(per):
                if rd: A(rd.pop(0))
            A(x)
        A("s_waitcnt lgkmcnt(0)")
    def compute(self, st, unroll=False, hooks=None):
        A = self.A; NS = self.NS; n = self.n
        assert NS % 2 == 0
        A("s_barrier")
        for x in self.reads(0): A(x)
        A("s_waitcnt lgkmcnt(0)")
        st()
        if unroll:
            for i in range(n):
                self.step(i, last=(i == n - 1))
                if hooks and i in hooks: hooks[i]()
            return
        nfull = (n - 1)//NS
        L = self.pfx + "_cloop"
        A("s_mov_b32 s19, 0")
        A.label(L)
        for i in range(NS): self.step(i)
        A(f"s_add_u32 s19, s19, 1\ns_cmp_lt_u32 s19, {nfull}\ns_cbranch_scc1 {L}")
        for i in range(nfull*NS, n): self.step(i, last=(i == n - 1))

def tile_map(A):
    A("s_and_b32 s42, s2, 7\ns_lshr_b32 s43, s2, 3\ns_lshr_b32 s40, s42, 1\ns_lshl_b32 s40, s40, 3\ns_and_b32 s44, s43, 7\ns_add_u32 s40, s40, s44")
    A("s_and_b32 s41, s42, 1\ns_lshl_b32 s41, s41, 2\ns_lshr_b32 s44, s43, 3\ns_add_u32 s41, s41, s44")

ATT_LDS = 6*SLOT
def attention(A, V, s_off, s_bound):
    g = V
    aQ, aK, aV = V+1, V+2, V+5
    t0, t1, t2 = V+8, V+9, V+10
    M20, M21, N20, N21 = V+11, V+12, V+13, V+14
    S = V+16
    assert S % 4 == 0
    QF = S+12
    KF = QF+10
    A(f"v_lshrrev_b32 v{t0}, 3, v0\nv_lshlrev_b32 v{t0}, 2, v{t0}\nv_and_b32 v{t1}, 3, v0\nv_add_u32 v{t0}, v{t0}, v{t1}")
    A(f"v_lshrrev_b32 v{t1}, 2, v0\nv_and_b32 v{t1}, 1, v{t1}\nv_lshl_add_u32 v{t0}, v{t0}, 1, v{t1}")
    A(f"v_mul_u32_u24 v{t0}, {QP}, v{t0}")
    A(f"s_mov_b32 s20, s{s_off}")
    A(f"v_add_u32 v{t0}, s20, v{t0}")
    A(f"v_add_u32 v{aQ}, {16*QP}, v{t0}")
    A(f"v_lshrrev_b32 v{t1}, 4, v0\nv_lshlrev_b32 v{t1}, 2, v{t1}\nv_and_b32 v{t2}, 3, v0\nv_add_u32 v{t1}, v{t1}, v{t2}")
    A(f"v_lshrrev_b32 v{t2}, 1, v{t1}\nv_lshlrev_b32 v{t2}, 2, v{t2}")
    A(f"v_and_b32 v{t1}, 1, v{t1}")
    A(f"v_lshrrev_b32 v{aV}, 2, v0\nv_and_b32 v{aV}, 3, v{aV}\nv_add_u32 v{aV}, v{aV}, v{t2}\nv_lshl_add_u32 v{aV}, v{aV}, 1, v{t1}")
    A(f"v_mul_u32_u24 v{aV}, {QP}, v{aV}\nv_add_u32 v{aV}, s20, v{aV}")
    for dg in range(5): A(f"ds_read_b64 v[{QF+2*dg}:{QF+2*dg+1}], v{aQ} offset:{8*dg}")
    for c in range(3):
        for dg in range(5): A(f"ds_read_b64 v[{KF+2*(5*c+dg)}:{KF+2*(5*c+dg)+1}], v{t0} offset:{8*c*QP + 160 + 8*dg}")
    A(f"v_and_b32 v{t1}, 3, v0")
    A(f"v_mov_b32 v{M20}, 0xffff\nv_mov_b32 v{t2}, -1\nv_cmp_le_u32 vcc, 1, v{t1}\nv_cndmask_b32 v{M20}, v{M20}, v{t2}, vcc")
    A(f"v_mov_b32 v{M21}, 0\nv_mov_b32 v{t2}, 0xffff\nv_cmp_le_u32 vcc, 2, v{t1}\nv_cndmask_b32 v{M21}, v{M21}, v{t2}, vcc")
    A(f"v_mov_b32 v{t2}, -1\nv_cmp_eq_u32 vcc, 3, v{t1}\nv_cndmask_b32 v{M21}, v{M21}, v{t2}, vcc")
    A(f"v_not_b32 v{N20}, v{M20}\nv_not_b32 v{N21}, v{M21}")
    for i in range(12): A(f"v_mov_b32 v{S+i}, 0")
    A("s_waitcnt lgkmcnt(0)")
    for dg in range(5):
        for c in range(3):
            A(f"v_mfma_f32_4x4x4_16b_bf16 v[{S+4*c}:{S+4*c+3}], v[{KF+2*(5*c+dg)}:{KF+2*(5*c+dg)+1}], v[{QF+2*dg}:{QF+2*dg+1}], v[{S+4*c}:{S+4*c+3}]")
    for c in range(3):
        for dg in range(5): A(f"ds_read_b64_tr_b16 v[{KF+2*(5*c+dg)}:{KF+2*(5*c+dg)+1}], v{aV} offset:{8*c*QP + 320 + 8*dg}")
    Lb = A.newlabel("att_nomask")
    A(f"s_cmp_lg_u32 s{s_bound}, 0\ns_cbranch_scc1 {Lb}")
    A(f"v_mov_b32 v{t2}, {f2u(-1e30)}")
    A("v_cmp_gt_u32 vcc, 16, v0")
    for i in range(4): A(f"v_cndmask_b32 v{S+i}, v{S+i}, v{t2}, vcc")
    A("v_cmp_gt_u32 vcc, 8, v0")
    for i in range(4): A(f"v_cndmask_b32 v{S+4+i}, v{S+4+i}, v{t2}, vcc")
    A.label(Lb)
    A("s_mov_b32 s20, 0xeeeeeeee\ns_mov_b32 s21, 0xeeeeeeee\ns_mov_b32 s22, 0xcccccccc\ns_mov_b32 s23, 0xcccccccc\ns_mov_b32 s24, 0x88888888\ns_mov_b32 s25, 0x88888888")
    for i in range(1, 4): A(f"v_cndmask_b32 v{S+8+i}, v{S+i}, v{S+8+i}, s[{18+2*i}:{19+2*i}]")
    vals = [S+4+i for i in range(8)]
    A(f"v_max3_f32 v{t0}, v{vals[0]}, v{vals[1]}, v{vals[2]}\nv_max3_f32 v{t1}, v{vals[3]}, v{vals[4]}, v{vals[5]}\nv_max3_f32 v{t0}, v{t0}, v{vals[6]}, v{vals[7]}\nv_max_f32 v{t0}, v{t0}, v{t1}")
    SC = (20 ** -0.5) * 1.4426950408889634
    A(f"s_mov_b32 s20, {f2u(SC)}")
    A(f"v_mul_f32 v{t0}, s20, v{t0}")
    for x in vals: A(f"v_fma_f32 v{x}, v{x}, s20, -v{t0}")
    for x in vals: A(f"v_exp_f32 v{x}, v{x}")
    A(f"v_add_f32 v{t0}, v{vals[0]}, v{vals[1]}\nv_add_f32 v{t1}, v{vals[2]}, v{vals[3]}\nv_add_f32 v{t2}, v{vals[4]}, v{vals[5]}\nv_add_f32 v{t0}, v{t0}, v{t1}")
    A(f"v_add_f32 v{t1}, v{vals[6]}, v{vals[7]}\nv_add_f32 v{t0}, v{t0}, v{t2}\nv_add_f32 v{t0}, v{t0}, v{t1}")
    A(f"v_rcp_f32 v{t0}, v{t0}")
    for x in vals: A(f"v_mul_f32 v{x}, v{x}, v{t0}")
    PP = QF
    A(f"v_cvt_pk_bf16_f32 v{PP+2}, v{S+4}, v{S+5}\nv_cvt_pk_bf16_f32 v{PP+3}, v{S+6}, v{S+7}")
    A(f"v_cvt_pk_bf16_f32 v{t1}, v{S+8}, v{S+9}\nv_cvt_pk_bf16_f32 v{t2}, v{S+10}, v{S+11}")
    A(f"v_and_b32 v{PP+4}, v{t1}, v{M20}\nv_and_b32 v{PP+5}, v{t2}, v{M21}\nv_and_b32 v{PP}, v{t1}, v{N20}\nv_and_b32 v{PP+1}, v{t2}, v{N21}")
    OO = KF + 30
    OO = (OO + 3)//4*4
    for i in range(20): A(f"v_mov_b32 v{OO+i}, 0")
    A("s_waitcnt lgkmcnt(0)")
    for c in range(3):
        for dg in range(5):
            A(f"v_mfma_f32_4x4x4_16b_bf16 v[{OO+4*dg}:{OO+4*dg+3}], v[{KF+2*(5*c+dg)}:{KF+2*(5*c+dg)+1}], v[{PP+2*c}:{PP+2*c+1}], v[{OO+4*dg}:{OO+4*dg+3}]")
    for dg in range(5):
        A(f"v_cvt_pk_bf16_f32 v{KF+2*dg}, v{OO+4*dg}, v{OO+4*dg+1}\nv_cvt_pk_bf16_f32 v{KF+2*dg+1}, v{OO+4*dg+2}, v{OO+4*dg+3}")
    for dg in range(5): A(f"ds_write_b64 v{aQ}, v[{KF+2*dg}:{KF+2*dg+1}] offset:{8*dg}")
    return OO + 20

def k3(A):
    name = "k3_kernel"
    kernel_begin(A, name)
    A("s_cmp_ge_u32 s2, 256\ns_cbranch_scc1 K3_end")
    load_ptr(A, 30, 'wsp'); load_ptr(A, 32, 'ws'); load_ptr(A, 34, 'bsp')
    wave_lane(A, 16)
    tile_map(A)
    st = Stamps(A, 2); st()
    E = E2(A, "K3", 6, 32, 4096, 2, 3)
    A(f"s_mul_i32 s17, s40, {64*4096}\ns_mul_i32 s18, s41, {32*6*2048}")
    A("s_waitcnt lgkmcnt(0)")
    A("s_cmp_lt_u32 s16, 4\ns_cbranch_scc1 K3_comp")
    srd(A, 4, 30, 2048*2048*2); srd(A, 8, 32, SZ_Z2P, WS_Z2P)
    E.loader_setup()
    E.loader_main(0)
    A("s_branch K3_end")
    A.label("K3_comp")
    A("s_and_b32 s46, s16, 1\ns_lshl_b32 s46, s46, 5\ns_lshr_b32 s47, s16, 1\ns_mul_i32 s47, s47, 3")
    PF = 116
    srd(A, 4, 32, SZ_Z1, WS_Z1); srd(A, 8, 32, SZ_G, WS_G); srd(A, 12, 34, 2048*2)
    A("s_lshl_b32 s43, s40, 6\ns_add_u32 s43, s43, s46")
    A("v_and_b32 v112, 15, v0\nv_add_u32 v112, s43, v112\nv_lshrrev_b32 v113, 4, v0")
    A("s_lshr_b32 s48, s43, 5\ns_mul_i32 s48, s48, 48\ns_mul_i32 s49, s41, 6\ns_add_u32 s48, s48, s49\ns_add_u32 s48, s48, s47\ns_lshl_b32 s48, s48, 10")
    A("v_lshlrev_b32 v114, 4, v0")
    for t in range(3): A(f"buffer_load_dwordx4 v[{PF+4*t}:{PF+4*t+3}], v114, s[4:7], s48 offen offset:{t*1024}")
    A("v_lshlrev_b32 v115, 2, v112")
    A(f"buffer_load_dword v{PF+12}, v115, s[8:11], 0 offen\nbuffer_load_dword v{PF+13}, v115, s[8:11], 0 offen offset:64")
    A("v_lshlrev_b32 v115, 1, v112")
    A(f"buffer_load_ushort v{PF+14}, v115, s[12:15], 0 offen\nbuffer_load_ushort v{PF+15}, v115, s[12:15], 0 offen offset:32")
    E.compute_setup(46, 47)
    st()
    E.compute(st)
    st()
    A("s_waitcnt vmcnt(0)")
    srd(A, 12, 32, SZ_AU, WS_AU)
    for m in range(2): A(f"v_lshlrev_b32 v{PF+14+m}, 16, v{PF+14+m}\nv_sub_f32 v{PF+12+m}, 1.0, v{PF+12+m}")
    T = 132
    for m in range(2):
        for t in range(3):
            ac = E.acc(m, t)
            for q in range(2):
                z = PF + 4*t + 2*m + q
                A(f"v_lshlrev_b32 v{T}, 16, v{z}\nv_and_b32 v{T+1}, 0xffff0000, v{z}")
                A(f"v_add_f32 v{T+2}, v{ac+2*q}, v{PF+14+m}\nv_add_f32 v{T+3}, v{ac+2*q+1}, v{PF+14+m}")
                A(f"v_mul_f32 v{T}, v{T}, v{PF+12+m}\nv_mul_f32 v{T+1}, v{T+1}, v{PF+12+m}")
                A(f"v_mul_f32 v{T+2}, v{T+2}, v{T}\nv_mul_f32 v{T+3}, v{T+3}, v{T+1}")
                A(f"v_cvt_pk_bf16_f32 v{z}, v{T+2}, v{T+3}")
    A("s_mov_b32 s45, 2816\nv_mul_lo_u32 v114, v112, s45\nv_lshl_add_u32 v114, v113, 3, v114")
    A("s_mul_i32 s48, s41, 192\ns_lshl_b32 s49, s47, 5\ns_add_u32 s48, s48, s49\ns_add_u32 s48, s48, 1280\nv_add_u32 v114, s48, v114")
    A(f"s_mov_b32 s49, {16*2816}")
    for m in range(2):
        for t in range(3):
            z = PF + 4*t + 2*m
            A(f"buffer_store_dwordx2 v[{z}:{z+1}], v114, s[12:15], {'s49' if m else '0'} offen offset:{t*32}")
    st(); st.flush(16, 32)
    A.label("K3_end")
    A("s_endpgm")
    return name, 256, 512, 6*SLOT, 140

def k4(A):
    name = "k4_kernel"
    kernel_begin(A, name)
    A("s_cmp_ge_u32 s2, 256\ns_cbranch_scc1 K4_end")
    load_ptr(A, 30, 'out'); load_ptr(A, 32, 'ws')
    wave_lane(A, 16)
    tile_map(A)
    st = Stamps(A, 3); st()
    E = E2(A, "K4", 5, 22, 2816, 1, 5)
    A(f"s_mul_i32 s17, s40, {64*2816}\ns_mul_i32 s18, s41, {22*5*2048}")
    A("s_waitcnt lgkmcnt(0)")
    A("s_cmp_lt_u32 s16, 4\ns_cbranch_scc1 K4_comp")
    srd(A, 4, 32, SZ_AU, WS_AU); srd(A, 8, 32, SZ_WP, WS_WP)
    E.loader_setup()
    E.loader_main(0)
    A("s_branch K4_end")
    A.label("K4_comp")
    A("s_lshl_b32 s46, s16, 4\ns_mov_b32 s47, 0")
    srd(A, 8, 32, SZ_G, WS_G)
    A("s_lshl_b32 s43, s40, 6\ns_add_u32 s43, s43, s46\nv_and_b32 v126, 15, v0\nv_add_u32 v126, s43, v126\nv_lshlrev_b32 v126, 2, v126")
    A("buffer_load_dword v125, v126, s[8:11], 0 offen")
    E.compute_setup(46, 47)
    st()
    def scale():
        A("s_waitcnt vmcnt(0)")
        for t in range(5):
            for r in range(4): A(f"v_mul_f32 v{E.acc(0,t)+r}, v{E.acc(0,t)+r}, v125")
    E.compute(st, unroll=True, hooks={9: scale})
    st()
    A("s_lshl_b32 s43, s40, 6\ns_add_u32 s43, s43, s46\nv_and_b32 v2, 15, v0\nv_add_u32 v2, s43, v2\nv_lshrrev_b32 v3, 4, v0")
    srd(A, 12, 30, 2048*640*2)
    PK = 8
    for t in range(5):
        ac = E.acc(0, t)
        A(f"v_cvt_pk_bf16_f32 v{PK+2*t}, v{ac}, v{ac+1}\nv_cvt_pk_bf16_f32 v{PK+2*t+1}, v{ac+2}, v{ac+3}")
    A("s_mov_b32 s45, 1280\nv_mul_lo_u32 v4, v2, s45\nv_lshl_add_u32 v4, v3, 3, v4\ns_mul_i32 s46, s41, 160\nv_add_u32 v4, s46, v4")
    for t in range(5): A(f"buffer_store_dwordx2 v[{PK+2*t}:{PK+2*t+1}], v4, s[12:15], 0 offen offset:{t*32}")
    st(); st.flush(16, 32)
    A.label("K4_end")
    A("s_endpgm")
    return name, 256, 512, 6*SLOT, 128

def main(out, kernels):
    body = Asm(); ks = []
    for f in kernels: ks.append(f(body))
    hdr = [f"; @launch kernel={n} grid=({g},1,1) block=({b},1,1) lds={lds}" for (n, g, b, lds, vg) in ks]
    hdr.append('.amdgcn_target "amdgcn-amd-amdhsa--gfx950"'); hdr.append(".text")
    lines = hazard.fix(body.lines, verbose=True)
    txt = "\n".join(hdr) + "\n" + "\n".join(lines) + "\n" + '.section .rodata,"a"\n'
    for (n, g, b, lds, vg) in ks: txt += kernel_desc(n, 256 if O.stamp else vg, 96)
    open(out, "w").write(txt)
if __name__ == "__main__":
    if '--stamp' in sys.argv: O.stamp = True
    if '--norot' in sys.argv: O.rot = False
    if '--pfg' in sys.argv: O.pfg = True
    if '--nofull' in sys.argv: O.fullring = False
    for a_ in sys.argv:
        if a_.startswith('--tla='): O.tla = int(a_[6:])
    for a_ in sys.argv:
        if a_.startswith('--pfg2='): O.pfg2 = int(a_[7:])
    if '--itstamp' in sys.argv: O.itstamp = True
    if '--nowsp' in sys.argv: O.wsp_pf = False
    main(sys.argv[1], [k1, k3, k4])
```

```python
import sys, struct
from asmlib import *
import hazard
NAME = "gated_mix__sliding_local_dilated__mixer_gmlp__prompt"
KA = dict(x=0, wqkv=8, wo=16, bx=24, win=32, wsp=40, bsp=48, wout=56, gw=64, out=72, dbg=80, ws=88)
QP = 496
HGS = 2048*QP
WS_QKVG = 0;          SZ_QKVG = 8*HGS
WS_Z1  = 0x900000;    SZ_Z1 = 2048*768*2
WS_Z2P = 0xC00000;    SZ_Z2P = 2048*768*2
WS_AU  = 0xF00000;    SZ_AU = 2048*1408*2
WS_WP  = 0x1500000;   SZ_WP = 1408*640*2
WS_ST  = 0x1700000;   SZ_ST = 8*2048*8
WS_G   = 0x1740000;   SZ_G = 2048*4
WS_U   = 0x1800000;   SZ_U = 2048*768*2
WS_TS  = 0x2000000
KILL = 0x40000000
C0 = -2.0*0.7978845608028654*1.4426950408889634
C1 = C0*0.044715
def f2u(f): return struct.unpack('<I', struct.pack('<f', f))[0]
class Opt:
    stamp = False; rot = True; wsp_pf = True; la = 5; itstamp = False; pfg = False; pfg2 = 2; fullring = False; tla = 5; poll_i = 38; sig_i = 33; fuse = True; usc1 = True
O = Opt()

def load_ptr(A, sd, key): A(f"s_load_dwordx2 s[{sd}:{sd+1}], s[0:1], {KA[key]}")
def wave_lane(A, s_w):
    A("v_lshrrev_b32 v1, 6, v0")
    A(f"v_readfirstlane_b32 s{s_w}, v1")
    A("v_and_b32 v0, 63, v0")

class Stamps:
    def __init__(self, A, kidx, n0=0): self.A = A; self.n = n0; self.k = kidx
    def __call__(self):
        if not O.stamp: return
        assert self.n < 16
        self.A(f"s_memtime s[{60+2*self.n}:{61+2*self.n}]"); self.n += 1
    def flush(self, s_w, s_ws, vt=250):
        if not O.stamp: return
        A = self.A
        A("s_waitcnt vmcnt(0)")
        A("s_memrealtime s[92:93]")
        A("s_waitcnt lgkmcnt(0)")
        srd(A, 56, s_ws, 0x100000, WS_TS + self.k*0x40000)
        A(f"s_lshl_b32 s54, s2, 2\ns_add_u32 s54, s54, s{s_w}\ns_lshl_b32 s54, s54, 7")
        A("s_mov_b64 exec, 1")
        for i in range(self.n):
            A(f"v_mov_b32 v{vt}, s{60+2*i}\nv_mov_b32 v{vt+1}, {4*i}")
            A(f"buffer_store_dword v{vt}, v{vt+1}, s[56:59], s54 offen")
        A(f"v_mov_b32 v{vt}, s92\nv_mov_b32 v{vt+1}, 124")
        A(f"buffer_store_dword v{vt}, v{vt+1}, s[56:59], s54 offen")
        A("s_mov_b64 exec, -1")


def it_top(A):
    if not O.itstamp: return
    A("s_memtime s[76:77]\ns_waitcnt lgkmcnt(0)")
    for k in range(3): A(f"s_cmp_eq_u32 s26, {k}\ns_cselect_b32 s{80+k}, s76, s{80+k}")
def it_mid(A):
    if O.itstamp: A("s_memtime s[76:77]\ns_waitcnt lgkmcnt(0)\ns_mov_b32 s83, s76")
def it_end(A, va, vb):
    if not O.itstamp: return
    A("s_memtime s[76:77]\ns_waitcnt lgkmcnt(0)\ns_mov_b32 s84, s76")
    srd(A, 56, 32, 0x200000, WS_TS + 7*0x40000)
    A("s_lshl_b32 s54, s2, 2\ns_add_u32 s54, s54, s16\ns_lshl_b32 s54, s54, 7")
    A("s_mov_b64 exec, 1")
    for i in range(11):
        A(f"v_mov_b32 v{va}, s{80+i}\nv_mov_b32 v{vb}, {4*i}")
        A(f"buffer_store_dword v{va}, v{vb}, s[56:59], s54 offen")
    A("s_mov_b64 exec, -1")

def gelu_pk(A, regs, tmp, sC):
    n = len(regs)
    for i, r in enumerate(regs): A(f"v_pk_mul_f32 v[{tmp+2*i}:{tmp+2*i+1}], v[{r}:{r+1}], v[{r}:{r+1}]")
    for i, r in enumerate(regs): A(f"v_pk_fma_f32 v[{tmp+2*i}:{tmp+2*i+1}], v[{tmp+2*i}:{tmp+2*i+1}], s[{sC}:{sC+1}], v[6:7]")
    for i, r in enumerate(regs): A(f"v_pk_mul_f32 v[{tmp+2*i}:{tmp+2*i+1}], v[{tmp+2*i}:{tmp+2*i+1}], v[{r}:{r+1}]")
    for i in range(2*n): A(f"v_exp_f32 v{tmp+i}, v{tmp+i}")
    for i, r in enumerate(regs): A(f"v_pk_add_f32 v[{tmp+2*i}:{tmp+2*i+1}], v[{tmp+2*i}:{tmp+2*i+1}], 1.0 op_sel_hi:[1,0]")
    for i in range(2*n): A(f"v_rcp_f32 v{tmp+i}, v{tmp+i}")
    for i, r in enumerate(regs): A(f"v_pk_mul_f32 v[{r}:{r+1}], v[{r}:{r+1}], v[{tmp+2*i}:{tmp+2*i+1}]")

def k1_geom(typ):
    if typ == 'q':
        return dict(pitchW=3840, PROWS=144, PSLOT=144*128, NPS=3, TSLOT=15360, R=6, TBASE=3*144*128)
    return dict(pitchW=3072, PROWS=128, PSLOT=128*128, NPS=3, TSLOT=16384, R=6, TBASE=3*128*128)

def k1_wsp_prefetch(A, part):
    if part == 0:
        srd(A, 4, 52, 2048*2048*2)
        A("s_and_b32 s40, s2, 7\ns_lshr_b32 s40, s40, 1\ns_lshl_b32 s40, s40, 14")
        A("s_lshr_b32 s41, s2, 3\ns_lshl_b32 s41, s41, 9\ns_add_u32 s40, s40, s41")
        A("s_sub_u32 s41, s16, 4\ns_lshl_b32 s41, s41, 7\ns_add_u32 s40, s40, s41")
        A("s_lshl_b32 s40, s40, 7")
        A("v_lshlrev_b32 v249, 7, v0")
        A("buffer_load_dword v250, v249, s[4:7], s40 offen")
    else:
        A("s_add_u32 s40, s40, 8192")
        A("buffer_load_dword v251, v249, s[4:7], s40 offen")

def pf_setup(A):
    A("s_cmp_lt_u32 s21, 2\ns_cselect_b32 s84, s30, s34\ns_cselect_b32 s85, s31, s35")
    A(f"s_mov_b32 s86, {640*1920*2}\ns_cselect_b32 s86, {2048*640*2}, s86")
    A("s_cmp_eq_u32 s21, 3\ns_cselect_b32 s84, s36, s84\ns_cselect_b32 s85, s37, s85")
    A(f"s_cselect_b32 s86, {640*1536*2}, s86\ns_mov_b32 s87, 0x20000")
    A("s_lshr_b32 s88, s2, 3\ns_and_b32 s89, s2, 7\ns_lshr_b32 s90, s89, 1\ns_and_b32 s89, s89, 1")
    A("s_lshl_b32 s91, s89, 10\ns_lshl_b32 s92, s88, 5\ns_add_u32 s91, s91, s92\ns_lshl_b32 s92, s21, 4\ns_add_u32 s91, s91, s92")
    A("v_lshrrev_b32 v20, 2, v0\nv_add_u32 v20, s91, v20\nv_mul_u32_u24 v20, 1280, v20\nv_and_b32 v21, 3, v0\nv_lshl_add_u32 v20, v21, 7, v20\nv_add_u32 v20, 384, v20")
    A("v_mul_u32_u24 v21, 57, v0\nv_lshrrev_b32 v21, 9, v21\nv_mul_u32_u24 v22, 9, v21\nv_sub_u32 v22, v0, v22")
    A("s_mul_i32 s91, s88, 7\ns_add_u32 s91, s91, 192\nv_add_u32 v21, s91, v21\nv_mul_u32_u24 v21, 3840, v21")
    A("v_mul_u32_u24 v23, 171, v22\nv_lshrrev_b32 v23, 9, v23\nv_mul_u32_u24 v25, 3, v23\nv_sub_u32 v22, v22, v25")
    A("s_lshl_b32 s91, s90, 2\ns_lshr_b32 s91, 0x7520, s91\ns_and_b32 s91, s91, 15")
    A("v_add_u32 v22, s91, v22\nv_lshlrev_b32 v22, 7, v22\nv_mul_u32_u24 v23, 1280, v23\nv_add3_u32 v21, v21, v22, v23")
    A(f"v_mov_b32 v25, {KILL}\nv_cmp_le_u32 vcc, 63, v0\nv_cndmask_b32 v21, v21, v25, vcc")
    A("v_mul_u32_u24 v22, 43, v0\nv_lshrrev_b32 v22, 8, v22\nv_mul_u32_u24 v23, 6, v22\nv_sub_u32 v23, v0, v23")
    A("s_mul_i32 s91, s88, 7\ns_add_u32 s91, s91, 192\nv_add_u32 v22, s91, v22\nv_mul_u32_u24 v22, 3072, v22")
    A("v_mul_u32_u24 v26, 171, v23\nv_lshrrev_b32 v26, 9, v26\nv_mul_u32_u24 v27, 3, v26\nv_sub_u32 v23, v23, v27")
    A("v_lshlrev_b32 v23, 7, v23\nv_mul_u32_u24 v26, 1536, v26\nv_add3_u32 v22, v22, v23, v26\ns_mul_i32 s91, s90, 384\nv_add_u32 v22, s91, v22")
    A("v_cmp_le_u32 vcc, 42, v0\nv_cndmask_b32 v22, v22, v25, vcc")
    A("s_cmp_lt_u32 s21, 2\ns_cselect_b64 s[90:91], -1, 0\ns_cselect_b32 s88, 384, 0")
    A("v_cndmask_b32 v24, v21, v20, s[90:91]")
    A(f"s_cmp_eq_u32 s21, 2\ns_cselect_b32 s88, {224*3840}, s88")
    A(f"s_cmp_eq_u32 s21, 3\ns_cselect_b32 s88, {224*3072}, s88\ns_cselect_b64 s[90:91], -1, 0")
    A("v_cndmask_b32 v24, v24, v22, s[90:91]")

def pf_group(A, g):
    if g == 0: A("buffer_load_dword v252, v24, s[84:87], 0 offen")
    else: A("buffer_load_dword v252, v24, s[84:87], s88 offen")

def run_loader_schedule(A, issueP, issueT, issued, hooks=None):
    NB = 20; NPS = 3; R = 6
    def wait_for(needs):
        last = -1
        for idx, tg in enumerate(issued):
            if tg in needs: last = idx
        if last < 0: return
        A(f"s_waitcnt vmcnt({min(len(issued) - 1 - last, 63)})")
    TLA = O.tla
    issueP(0, 0); issueP(0, 1); issueT(0); issueT(1)
    issueP(1, 0); issueP(1, 1)
    for t in range(2, TLA): issueT(t)
    if O.fullring: issueP(2, 0); issueP(2, 1)
    if O.pfg:
        pf_setup(A); pf_group(A, 0); issued.append(('F', 0))
    wait_for([('P', 0), ('T', 0)])
    A("s_barrier")
    if not O.fullring: issueP(2, 0)
    for b in range(NB):
        needs = []
        if b + 1 < NB: needs = [('T', b+1), ('P', (b+1)//2)]
        if needs: wait_for(needs)
        A("s_barrier")
        if b + TLA < NB: issueT(b + TLA)
        if b == 0 and not O.fullring: issueP(2, 1)
        if b % 2 == 1:
            s = (b - 1)//2 + NPS
            if s < NB//2: issueP(s, 0)
        elif b >= 2:
            s = (b - 2)//2 + NPS
            if s < NB//2: issueP(s, 1)
        if O.pfg and b == O.pfg2: pf_group(A, 1); issued.append(('F', 1))
        if hooks and b in hooks: hooks[b](issued)
        if b == 15 and O.wsp_pf: k1_wsp_prefetch(A, 0); issued.append(('W', 0))
        if b == 16 and O.wsp_pf: k1_wsp_prefetch(A, 1); issued.append(('W', 1))
    A("s_barrier")

def rot_stage(A, s, dst):
    A(f"s_add_u32 s{dst}, s28, {s}\ns_cmp_ge_u32 s{dst}, 10\ns_cselect_b32 s29, 10, 0\ns_sub_u32 s{dst}, s{dst}, s29")
def rot_beat(A, b, dst):
    A(f"s_lshl_b32 s{dst}, s28, 1\ns_add_u32 s{dst}, s{dst}, {b}\ns_cmp_ge_u32 s{dst}, 20\ns_cselect_b32 s29, 20, 0\ns_sub_u32 s{dst}, s{dst}, s29")

def k1_loader_z(A):
    G = k1_geom('z'); pitchW = G['pitchW']; PSLOT = G['PSLOT']; TSLOT = G['TSLOT']; TBASE = G['TBASE']
    lw = 21
    A(f"s_sub_u32 s{lw}, s16, 4")
    A("v_lshrrev_b32 v7, 3, v0\nv_and_b32 v2, 7, v0\nv_xor_b32 v2, v2, v7\nv_mul_u32_u24 v7, 1280, v7\nv_lshl_add_u32 v2, v2, 4, v7")
    A("v_lshrrev_b32 v4, 4, v0")
    A(f"s_and_b32 s20, s{lw}, 1\ns_lshl_b32 s20, s20, 2")
    A("v_add_u32 v5, s20, v4\nv_lshlrev_b32 v5, 1, v5\nv_and_b32 v6, 15, v0\nv_xor_b32 v6, v6, v5")
    A(f"v_mul_u32_u24 v4, {pitchW}, v4\nv_lshl_add_u32 v3, v6, 4, v4")
    A(f"v_cmp_le_u32 vcc, 12, v6\nv_mov_b32 v5, {KILL}\nv_cndmask_b32 v3, v3, v5, vcc")
    nP = 2; half_rows = 64
    A(f"s_mul_i32 s20, s{lw}, {nP*8*1280}\ns_add_u32 s22, s17, s20")
    A(f"s_mul_i32 s23, s{lw}, {nP*1024}")
    A(f"s_mul_i32 s20, s{lw}, {8*pitchW}\ns_add_u32 s24, s18, s20\ns_add_u32 s25, s19, s20")
    A(f"s_lshl_b32 s26, s{lw}, 11\ns_add_u32 s26, s26, {TBASE}")
    issued = []
    def issueP(s, h2):
        slot = s % 3
        rot_stage(A, s, 27)
        A("s_lshl_b32 s27, s27, 7\ns_add_u32 s27, s27, s22")
        A(f"s_add_u32 m0, s23, {slot*PSLOT + h2*half_rows*128}")
        for i in range(nP):
            A(f"s_add_u32 s20, s27, {h2*half_rows*1280 + i*(8*1280 - 1024)}")
            A(f"buffer_load_dwordx4 v2, s[4:7], s20 offen offset:{i*1024} lds")
            issued.append(('P', s))
    def issueT(b):
        slot = b % 6
        rot_beat(A, b, 27)
        A(f"s_mul_i32 s27, s27, {32*pitchW}")
        for u, sb in enumerate([24, 25]):
            A(f"s_add_u32 m0, s26, {slot*TSLOT + u*8192}")
            A(f"s_add_u32 s29, s27, s{sb}")
            for i in range(2):
                A(f"s_add_u32 s20, s29, {i*(4*pitchW - 1024)}")
                A(f"buffer_load_dwordx4 v3, s[8:11], s20 offen offset:{i*1024} lds")
                issued.append(('T', b))
    def gate_load(issued):
        srd(A, 12, 38, 640*2)
        A("v_lshlrev_b32 v10, 2, v0")
        for i in range(5): A(f"buffer_load_dword v{40+i}, v10, s[12:15], 0 offen offset:{256*i}")
        A("s_lshl_b32 s58, s48, 7\ns_lshl_b32 s59, s49, 4\ns_add_u32 s58, s58, s59\ns_lshl_b32 s59, s21, 2\ns_add_u32 s58, s58, s59")
        A("s_mul_i32 s59, s58, 1280")
        for r in range(4):
            A(f"s_add_u32 s57, s59, {r*1280}")
            for i in range(5): A(f"buffer_load_dword v{48+5*r+i}, v10, s[4:7], s57 offen offset:{256*i}")
        issued.extend([('G', 0)]*25)
    def gate_finish(issued):
        last = max(i for i, t in enumerate(issued) if t == ('G', 0))
        A(f"s_waitcnt vmcnt({len(issued) - 1 - last})")
        for r in range(4):
            A(f"v_mov_b32 v{70+r}, 0")
            for i in range(5): A(f"v_dot2_f32_bf16 v{70+r}, v{48+5*r+i}, v{40+i}, v{70+r}")
        for ctl in ("row_shr:1 row_mask:0xf bank_mask:0xf bound_ctrl:0", "row_shr:2 row_mask:0xf bank_mask:0xf bound_ctrl:0", "row_shr:4 row_mask:0xf bank_mask:0xf bound_ctrl:0",
                    "row_shr:8 row_mask:0xf bank_mask:0xf bound_ctrl:0", "row_bcast:15 row_mask:0xa bank_mask:0xf", "row_bcast:31 row_mask:0xc bank_mask:0xf"):
            for r in range(4): A(f"v_add_f32_dpp v{70+r}, v{70+r}, v{70+r} {ctl}")
        for r in range(4): A(f"v_mul_f32 v{70+r}, {f2u(-1.4426950408889634)}, v{70+r}")
        for r in range(4): A(f"v_exp_f32 v{70+r}, v{70+r}")
        for r in range(4): A(f"v_add_f32 v{70+r}, 1.0, v{70+r}")
        for r in range(4): A(f"v_rcp_f32 v{70+r}, v{70+r}")
        srd(A, 12, 32, SZ_G, WS_G)
        A("s_lshl_b32 s58, s58, 2\nv_mov_b32 v10, 0")
        A("s_mov_b32 s42, 0\ns_mov_b32 s43, 0x80000000\ns_mov_b64 exec, s[42:43]")
        for r in range(4): A(f"buffer_store_dword v{70+r}, v10, s[12:15], s58 offen offset:{4*r}")
        A("s_mov_b64 exec, -1")
        issued.extend([('S', 0)]*4)
    run_loader_schedule(A, issueP, issueT, issued, {14: gate_load, 17: gate_finish})

def k1_loader_q(A, last):
    G = k1_geom('q'); PSLOT = G['PSLOT']; TSLOT = G['TSLOT']; TBASE = G['TBASE']
    nP = 3 if last else 2
    nTi = 3 if last else 4
    A("s_sub_u32 s21, s16, 4")
    A("v_lshrrev_b32 v7, 3, v0\nv_and_b32 v6, 7, v0\nv_xor_b32 v6, v6, v7")
    A("s_lshl_b32 s20, s48, 7\ns_sub_u32 s20, s20, 16\ns_lshl_b32 s22, s21, 4\ns_add_u32 s20, s20, s22")
    A("v_add_u32 v7, s20, v7")
    A("v_mov_b32 v12, v7")
    A("s_mov_b32 s20, 1280\nv_mul_lo_u32 v7, v7, s20\nv_lshl_add_u32 v2, v6, 4, v7")
    for h2 in range(2):
        for i in range(nP):
            if h2 == 0 and i == 0: continue
            A(f"v_add_u32 v{2 + h2*3 + i}, {(72*h2 + 8*i)*1280}, v2")
    A(f"v_mov_b32 v13, {KILL}")
    for i in range(2):
        A(f"v_add_u32 v14, {8*i}, v12\nv_cmp_gt_i32 vcc, 0, v14\nv_cndmask_b32 v{2+i}, v{2+i}, v13, vcc")
    A("s_lshl_b32 s20, s21, 8")
    for i in range(nTi):
        d = 8 + i
        A(f"v_add_u32 v12, s20, v0\nv_add_u32 v12, {64*i}, v12")
        A("v_mul_u32_u24 v13, 2185, v12\nv_lshrrev_b32 v13, 16, v13")
        A("v_mul_u32_u24 v14, 30, v13\nv_sub_u32 v14, v12, v14")
        A("v_and_b32 v15, 0x13, v13\nv_and_b32 v16, 4, v13\nv_lshl_or_b32 v15, v16, 1, v15\nv_and_b32 v16, 8, v13\nv_lshrrev_b32 v16, 1, v16\nv_or_b32 v15, v15, v16")
        A("v_mul_u32_u24 v16, 205, v14\nv_lshrrev_b32 v16, 11, v16")
        A("v_mul_u32_u24 v17, 10, v16\nv_sub_u32 v14, v14, v17")
        A("v_mul_u32_u24 v15, 3840, v15\nv_mul_u32_u24 v16, 1280, v16\nv_lshlrev_b32 v14, 4, v14")
        A(f"v_add3_u32 v{d}, v15, v16, v14")
    A("s_mul_i32 s24, s49, 160")
    A("s_lshl_b32 s23, s21, 11")
    A(f"s_lshl_b32 s26, s21, 12\ns_add_u32 s26, s26, {TBASE}")
    issued = []
    def issueP(s, h2):
        slot = s % 3
        rot_stage(A, s, 27)
        A("s_lshl_b32 s27, s27, 7")
        A(f"s_add_u32 m0, s23, {slot*PSLOT + h2*72*128}")
        for i in range(nP):
            if i: A("s_add_u32 m0, m0, 1024\ns_nop 0")
            A(f"buffer_load_dwordx4 v{2 + h2*3 + i}, s[4:7], s27 offen lds")
            issued.append(('P', s))
    def issueT(b):
        slot = b % 6
        rot_beat(A, b, 27)
        A(f"s_mul_i32 s27, s27, {32*3840}\ns_add_u32 s27, s27, s24")
        A(f"s_add_u32 m0, s26, {slot*TSLOT}")
        for i in range(nTi):
            if i: A("s_add_u32 m0, m0, 1024\ns_nop 0")
            A(f"buffer_load_dwordx4 v{8 + i}, s[8:11], s27 offen lds")
            issued.append(('T', b))
    run_loader_schedule(A, issueP, issueT, issued)

def k1_pack_load(A):
    T = 56
    c, cc, t2, p_, k_, x_ = T+2, T+3, T+4, T+5, T+6, T+7
    A("s_lshl_b32 s40, s16, 6")
    A(f"v_add_u32 v{c}, s40, v0\nv_and_b32 v{cc}, 127, v{c}\nv_lshrrev_b32 v{t2}, 7, v{c}\nv_lshrrev_b32 v{p_}, 1, v{cc}")
    A(f"v_and_b32 v{k_}, 0x33, v{p_}\nv_and_b32 v{x_}, 4, v{p_}\nv_lshl_or_b32 v{k_}, v{x_}, 1, v{k_}")
    A(f"v_and_b32 v{x_}, 8, v{p_}\nv_lshrrev_b32 v{x_}, 1, v{x_}\nv_or_b32 v{k_}, v{k_}, v{x_}")
    A(f"v_mul_u32_u24 v{k_}, 1280, v{k_}\nv_and_b32 v{x_}, 1, v{cc}\nv_lshl_add_u32 v{k_}, v{x_}, 4, v{k_}\nv_lshl_add_u32 v{k_}, v{t2}, 5, v{k_}")
    A(f"v_lshlrev_b32 v252, 4, v{cc}\nv_lshl_add_u32 v252, v{t2}, 11, v252")
    A(f"v_mov_b32 v{x_}, {KILL}\nv_cmp_eq_u32 vcc, 1, v{t2}\nv_cndmask_b32 v253, v252, v{x_}, vcc\nv_cndmask_b32 v{p_}, v{k_}, v{x_}, vcc")
    A("s_lshl_b32 s54, s48, 3\ns_add_u32 s54, s54, s49")
    for u, D in ((0, 224), (1, 236)):
        A(f"s_add_u32 s55, s54, {128*u}")
        A(f"s_mul_hi_u32 s41, s55, {(2**32 + 21)//22}\ns_mul_i32 s42, s41, 22\ns_sub_u32 s42, s55, s42")
        A("s_cmp_lt_u32 s42, 10\ns_cselect_b32 s12, s44, s46\ns_cselect_b32 s13, s45, s47")
        A(f"s_mov_b32 s14, {768*640*2}\ns_cselect_b32 s14, {640*640*2}, s14\ns_mov_b32 s15, 0x20000")
        A("s_cselect_b32 s43, 0, 10\ns_sub_u32 s43, s42, s43")
        A(f"s_mul_i32 s43, s43, {64*1280}\ns_mul_i32 s40, s41, 160\ns_add_u32 s43, s43, s40")
        A(f"s_cmp_ge_u32 s55, 176\ns_cselect_b32 s40, {KILL}, 0\ns_add_u32 s43, s43, s40")
        A(f"buffer_load_dwordx4 v[{D}:{D+3}], v{k_}, s[12:15], s43 offen")
        A(f"buffer_load_dwordx4 v[{D+4}:{D+7}], v{k_}, s[12:15], s43 offen offset:64")
        A(f"buffer_load_dwordx4 v[{D+8}:{D+11}], v{p_}, s[12:15], s43 offen offset:128")

def k1_pack_store(A):
    A("s_waitcnt vmcnt(6)")
    srd(A, 12, 32, SZ_WP, WS_WP)
    for u, D in ((0, 224), (1, 236)):
        A(f"s_add_u32 s55, s54, {128*u}")
        A(f"s_mul_i32 s41, s55, {5*2048}\ns_cmp_ge_u32 s55, 176\ns_cselect_b32 s42, {KILL}, 0\ns_add_u32 s41, s41, s42")
        A("s_add_u32 s42, s41, 4096\ns_add_u32 s43, s41, 8192")
        A(f"buffer_store_dwordx4 v[{D}:{D+3}], v252, s[12:15], s41 offen")
        A(f"buffer_store_dwordx4 v[{D+4}:{D+7}], v252, s[12:15], s42 offen")
        A(f"buffer_store_dwordx4 v[{D+8}:{D+11}], v253, s[12:15], s43 offen")

def k1_compute_z(A, st):
    G = k1_geom('z'); PSLOT = G['PSLOT']; NPS = 3; TSLOT = G['TSLOT']; R = 6; TBASE = G['TBASE']
    mP = 4; nT = 6; nA = 3
    bP = 2; bT = 6
    F = [16, 16 + 4*(mP+nT)]
    ACC = 16 + 8*(mP+nT)
    A(f"s_and_b32 s20, s16, 1\ns_lshr_b32 s21, s16, 1\ns_mul_i32 s21, s21, {nA}")
    A("v_and_b32 v14, 15, v0\nv_lshrrev_b32 v15, 4, v0\nv_and_b32 v6, 7, v14\nv_xor_b32 v6, v15, v6\nv_lshlrev_b32 v14, 7, v14\nv_lshl_add_u32 v14, v6, 4, v14")
    A(f"s_mul_i32 s22, s20, {mP*2048}")
    A(f"v_add_u32 v{bP}, s22, v14\nv_xor_b32 v{bP+1}, 64, v{bP}")
    A("v_lshrrev_b32 v14, 2, v0\nv_and_b32 v14, 3, v14\nv_lshl_add_u32 v13, v15, 3, v14\nv_lshlrev_b32 v13, 8, v13")
    A("v_and_b32 v12, 3, v0\nv_lshl_add_u32 v13, v12, 3, v13\nv_and_b32 v12, 1, v15\nv_lshl_add_u32 v14, v12, 2, v14")
    A(f"v_add_u32 v15, {TBASE}, v13")
    for tl in range(nA):
        A(f"s_add_u32 s23, s21, {tl}\nv_xor_b32 v13, s23, v14\nv_lshl_add_u32 v{bT+tl}, v13, 5, v15")
    for tl in range(nA): A(f"v_add_u32 v{bT+nA+tl}, 0x10000, v{bT+tl}")
    for i in range(ACC, ACC + 4*mP*nT): A(f"v_mov_b32 v{i}, 0")
    def fP(s, m): return F[s] + 4*m
    def fT(s, t): return F[s] + 4*(mP + t)
    def acc(m, t): return ACC + 4*(m*nT + t)
    def reads(b):
        s = b & 1; kk = b & 1; ps = (b//2) % NPS; ts = b % R
        r = []
        for m in range(mP):
            f = fP(s, m); off = ps*PSLOT + m*2048
            r.append(f"ds_read_b128 v[{f}:{f+3}], v{bP + kk} offset:{off}")
        for t in range(nT):
            f = fT(s, t); tl = t % nA; u = t // nA
            for h in range(2):
                off = ts*TSLOT + u*8192 + h*1024; hi = off >> 16
                r.append(f"ds_read_b64_tr_b16 v[{f+2*h}:{f+2*h+1}], v{bT + tl + nA*hi} offset:{off & 0xffff}")
        return r
    A("s_barrier")
    for x in reads(0): A(x)
    k1_pack_load(A)
    A("s_waitcnt lgkmcnt(0)")
    st()
    A("s_barrier")
    TAILM = 6
    def beat(b, last=False):
        s = b & 1
        mf = [f"v_mfma_f32_16x16x32_bf16 v[{acc(m,t)}:{acc(m,t)+3}], v[{fT(s,t)}:{fT(s,t)+3}], v[{fP(s,m)}:{fP(s,m)+3}], v[{acc(m,t)}:{acc(m,t)+3}]" for m in range(mP) for t in range(nT)]
        rd = [] if last else reads(b + 1)
        nfront = len(mf) - TAILM
        for i, x in enumerate(mf):
            A(x)
            if rd: A(rd.pop(0))
            if i == nfront - 1:
                assert not rd
                A("s_waitcnt lgkmcnt(0)\ns_barrier")
    L = "K1z_cloop"
    A("s_mov_b32 s26, 0")
    A.label(L)
    it_top(A)
    for b in range(6): beat(b)
    A(f"s_add_u32 s26, s26, 1\ns_cmp_lt_u32 s26, 3\ns_cbranch_scc1 {L}")
    it_mid(A)
    beat(18); beat(19, last=True)
    it_end(A, 14, 15)
    if O.itstamp: A("s_lshl_b32 s54, s48, 3\ns_add_u32 s54, s54, s49")
    return acc

def k1_compute_q(A, wm, wn, st):
    G = k1_geom('q'); PSLOT = G['PSLOT']; TSLOT = G['TSLOT']; TBASE = G['TBASE']
    tiles = list(range(0, 8)) if wn == 0 else list(range(8, 15))
    halo = {(0, 0): [5, 6], (1, 0): [7], (0, 1): [8, 9, 10, 11], (1, 1): [12, 13, 14]}[(wm, wn)]
    nT = len(tiles); mP = 5
    F = [16, 16 + 4*(5 + 8)]
    ACC = 16 + 8*(5 + 8)
    A("v_and_b32 v14, 15, v0\nv_lshrrev_b32 v15, 4, v0\nv_and_b32 v6, 7, v14\nv_xor_b32 v6, v15, v6\nv_lshlrev_b32 v14, 7, v14\nv_lshl_add_u32 v2, v6, 4, v14")
    A("v_xor_b32 v3, 64, v2")
    A("v_lshrrev_b32 v6, 1, v15\nv_lshlrev_b32 v6, 4, v6\nv_and_b32 v7, 1, v15\nv_lshl_add_u32 v6, v7, 2, v6")
    A("v_lshrrev_b32 v7, 2, v0\nv_and_b32 v7, 3, v7\nv_add_u32 v6, v6, v7\nv_mul_u32_u24 v6, 480, v6\nv_and_b32 v7, 3, v0\nv_lshl_add_u32 v6, v7, 3, v6")
    A(f"v_add_u32 v4, {TBASE}, v6\nv_add_u32 v5, {TBASE + 3*TSLOT}, v6")
    accs = {}
    n = ACC
    for m in range(4):
        for t in tiles: accs[(m, t)] = n; n += 4
    for t in halo: accs[('h', t)] = n; n += 4
    assert n <= 256, n
    for i in range(ACC, n): A(f"v_mov_b32 v{i}, 0")
    def fP(s, m): return F[s] + 4*m
    def fT(s, t): return F[s] + 4*(5 + tiles.index(t))
    def reads(b):
        s = b & 1; kk = b & 1; ps = (b//2) % 3; ts = b % 6
        r = []
        for m in range(4):
            f = fP(s, m); r.append(f"ds_read_b128 v[{f}:{f+3}], v{2+kk} offset:{ps*PSLOT + (16 + 64*wm + 16*m)*128}")
        f = fP(s, 4); r.append(f"ds_read_b128 v[{f}:{f+3}], v{2+kk} offset:{ps*PSLOT}")
        for t in tiles:
            f = fT(s, t)
            for h in range(2):
                hi = 1 if ts >= 3 else 0
                r.append(f"ds_read_b64_tr_b16 v[{f+2*h}:{f+2*h+1}], v{4+hi} offset:{(ts - 3*hi)*TSLOT + h*8*480 + t*32}")
        return r
    A("s_barrier")
    for x in reads(0): A(x)
    A("s_waitcnt lgkmcnt(0)")
    st()
    A("s_barrier")
    def beat(b, last=False):
        s = b & 1
        mf = []
        for m in range(4):
            for t in tiles:
                a_ = accs[(m, t)]; mf.append(f"v_mfma_f32_16x16x32_bf16 v[{a_}:{a_+3}], v[{fT(s,t)}:{fT(s,t)+3}], v[{fP(s,m)}:{fP(s,m)+3}], v[{a_}:{a_+3}]")
        for t in halo:
            a_ = accs[('h', t)]; mf.append(f"v_mfma_f32_16x16x32_bf16 v[{a_}:{a_+3}], v[{fT(s,t)}:{fT(s,t)+3}], v[{fP(s,4)}:{fP(s,4)+3}], v[{a_}:{a_+3}]")
        rd = [] if last else reads(b + 1)
        nfront = len(mf) - 8
        for i, x in enumerate(mf):
            A(x)
            if rd: A(rd.pop(0))
            if i == nfront - 1:
                assert not rd, (len(rd), nfront)
                A("s_waitcnt lgkmcnt(0)\ns_barrier")
    L = f"K1q{wm}{wn}_cloop"
    A("s_mov_b32 s26, 0")
    A.label(L)
    it_top(A)
    for b in range(6):
        if O.itstamp: A(f"s_memtime s[76:77]\ns_waitcnt lgkmcnt(0)\ns_cmp_eq_u32 s26, 0\ns_cselect_b32 s{85+b}, s76, s{85+b}")
        beat(b)
    A(f"s_add_u32 s26, s26, 1\ns_cmp_lt_u32 s26, 3\ns_cbranch_scc1 {L}")
    it_mid(A)
    beat(18); beat(19, last=True)
    it_end(A, 14, 15)
    st()
    A(f"v_and_b32 v6, 15, v0\nv_mul_u32_u24 v6, {QP}, v6\nv_lshrrev_b32 v7, 4, v0\nv_lshl_add_u32 v6, v7, 3, v6")
    k = 0
    items = list(accs.items())
    for (key, a_) in items:
        A(f"v_cvt_pk_bf16_f32 v{16+2*k}, v{a_}, v{a_+1}\nv_cvt_pk_bf16_f32 v{17+2*k}, v{a_+2}, v{a_+3}")
        k += 1
    A(f"v_add_u32 v7, 0x8000, v6")
    k = 0
    for (key, a_) in items:
        m, t = key
        row = 0 if m == 'h' else 16 + 64*wm + 16*m
        off = row*QP + t*32
        if off < 65536: A(f"ds_write_b64 v6, v[{16+2*k}:{17+2*k}] offset:{off}")
        else: A(f"ds_write_b64 v7, v[{16+2*k}:{17+2*k}] offset:{off - 0x8000}")
        k += 1
    A("s_waitcnt lgkmcnt(0)")

def rot_table(A):
    A(f"s_and_b32 s28, s28, 3\ns_lshl_b32 s28, s28, 2\ns_lshr_b32 s28, {0x8530 if O.rot else 0}, s28\ns_and_b32 s28, s28, 15")

def k1(A):
    name = "k1_kernel"
    kernel_begin(A, name)
    A("s_cmp_ge_u32 s2, 256\ns_cbranch_scc1 K1_end")
    load_ptr(A, 30, 'x'); load_ptr(A, 32, 'ws'); load_ptr(A, 34, 'wqkv'); load_ptr(A, 36, 'win')
    load_ptr(A, 38, 'gw'); load_ptr(A, 44, 'wo'); load_ptr(A, 46, 'wout'); load_ptr(A, 52, 'wsp'); load_ptr(A, 50, 'dbg')
    wave_lane(A, 16)
    st = Stamps(A, 0); st()
    A("s_and_b32 s40, s2, 7\ns_lshr_b32 s41, s2, 3\ns_and_b32 s48, s40, 1\ns_lshl_b32 s48, s48, 3\ns_and_b32 s42, s41, 7\ns_add_u32 s48, s48, s42")
    A("s_lshr_b32 s49, s40, 1\ns_lshl_b32 s49, s49, 1\ns_lshr_b32 s43, s41, 3\ns_and_b32 s43, s43, 1\ns_add_u32 s49, s49, s43")
    A("s_lshl_b32 s28, s43, 1\ns_add_u32 s28, s28, s42")
    rot_table(A)
    A("s_cmp_lt_u32 s41, 16\ns_cbranch_scc1 K1_ztype")
    A("s_waitcnt lgkmcnt(0)")
    A("s_cmp_lt_u32 s16, 4\ns_cbranch_scc1 K1_qcomp")
    srd(A, 4, 30, 2048*640*2); srd(A, 8, 34, 640*1920*2)
    A("s_cmp_eq_u32 s16, 7\ns_cbranch_scc1 K1_qload3")
    k1_loader_q(A, False)
    A("s_branch K1_att")
    A.label("K1_qload3")
    k1_loader_q(A, True)
    A("s_branch K1_att")
    A.label("K1_qcomp")
    st()
    A("s_cmp_eq_u32 s16, 1\ns_cbranch_scc1 K1_q10\ns_cmp_eq_u32 s16, 2\ns_cbranch_scc1 K1_q01\ns_cmp_eq_u32 s16, 3\ns_cbranch_scc1 K1_q11")
    for (wm, wn) in ((0, 0), (1, 0), (0, 1), (1, 1)):
        if (wm, wn) != (0, 0): A.label(f"K1_q{wm}{wn}")
        stv = Stamps(A, 0, 2)
        k1_compute_q(A, wm, wn, stv)
        if (wm, wn) != (1, 1): A("s_branch K1_att")
    A.label("K1_att")
    st3 = Stamps(A, 0, 4)
    A("s_barrier")
    st3()
    A(f"s_and_b32 s46, s16, 3\ns_lshr_b32 s47, s16, 2\ns_mul_i32 s45, s46, 40\ns_mul_i32 s43, s47, {64*QP}\ns_add_u32 s45, s45, s43")
    A("s_or_b32 s43, s48, s47")
    attention(A, 16, 45, 43)
    A("s_waitcnt lgkmcnt(0)\ns_barrier")
    st3()
    srd(A, 12, 32, SZ_AU, WS_AU)
    T = 18
    A(f"s_lshl_b32 s20, s16, 6\nv_add_u32 v{T}, s20, v0")
    for i in range(3):
        c, r, q, la, ga = T+1, T+2, T+3, T+4+2*i, T+5+2*i
        A(f"v_add_u32 v{c}, {512*i}, v{T}")
        A(f"v_mul_u32_u24 v{r}, 6554, v{c}\nv_lshrrev_b32 v{r}, 16, v{r}")
        A(f"v_mul_u32_u24 v{q}, 10, v{r}\nv_sub_u32 v{q}, v{c}, v{q}")
        A(f"v_mul_u32_u24 v{la}, {QP}, v{r}\nv_lshl_add_u32 v{la}, v{q}, 4, v{la}\nv_add_u32 v{la}, {16*QP}, v{la}")
        A(f"s_lshl_b32 s20, s48, 7\nv_add_u32 v{ga}, s20, v{r}\nv_mul_u32_u24 v{ga}, 2816, v{ga}\nv_lshl_add_u32 v{ga}, v{q}, 4, v{ga}")
        A(f"s_mul_i32 s20, s49, 160\nv_add_u32 v{ga}, s20, v{ga}")
        if i == 2:
            A(f"v_mov_b32 v{q}, {KILL}\nv_cmp_le_u32 vcc, 1280, v{c}\nv_cndmask_b32 v{ga}, v{ga}, v{q}, vcc")
            A(f"v_mov_b32 v{q}, 0\nv_cndmask_b32 v{la}, v{la}, v{q}, vcc")
    D = 32
    for i in range(3): A(f"ds_read_b128 v[{D+4*i}:{D+4*i+3}], v{T+4+2*i}")
    A("s_waitcnt lgkmcnt(0)")
    for i in range(3): A(f"buffer_store_dwordx4 v[{D+4*i}:{D+4*i+3}], v{T+5+2*i}, s[12:15], 0 offen")
    if O.stamp:
        A("s_cmp_ge_u32 s16, 4\ns_cbranch_scc1 K1_end")
        A("s_waitcnt vmcnt(0)")
    st3(); st3.flush(16, 32)
    A("s_branch K1_end")
    A.label("K1_ztype")
    A(f"s_mul_i32 s17, s48, {128*1280}")
    A("s_mul_i32 s19, s49, 192\ns_add_u32 s18, s19, 1536")
    A("s_waitcnt lgkmcnt(0)")
    A("s_cmp_lt_u32 s16, 4\ns_cbranch_scc1 K1_zcomp")
    srd(A, 4, 30, 2048*640*2); srd(A, 8, 36, 640*1536*2)
    k1_loader_z(A)
    A("s_branch K1_end")
    A.label("K1_zcomp")
    st2 = Stamps(A, 0, 1); st2()
    acc = k1_compute_z(A, st2)
    st2()
    A(f"s_mov_b32 s56, {f2u(C1)}\ns_mov_b32 s57, {f2u(C1)}")
    A(f"v_mov_b32 v6, {f2u(C0)}\nv_mov_b32 v7, {f2u(C0)}")
    z2 = [acc(m, t) + 2*q for m in range(4) for t in range(3) for q in range(2)]
    z1 = [acc(m, t) + 2*q for m in range(4) for t in range(3, 6) for q in range(2)]
    gelu_pk(A, z2, 16, 56)
    A("s_and_b32 s20, s16, 1\ns_lshr_b32 s21, s16, 1")
    S = 70
    for m in range(4):
        vals = [acc(m, t) + r for t in range(3) for r in range(4)]
        A(f"v_pk_add_f32 v[{S+2*m}:{S+2*m+1}], v[{vals[0]}:{vals[1]}], v[{vals[2]}:{vals[3]}]")
        A(f"v_pk_mul_f32 v[{S+8+2*m}:{S+8+2*m+1}], v[{vals[0]}:{vals[1]}], v[{vals[0]}:{vals[1]}]")
        A(f"v_pk_fma_f32 v[{S+8+2*m}:{S+8+2*m+1}], v[{vals[2]}:{vals[3]}], v[{vals[2]}:{vals[3]}], v[{S+8+2*m}:{S+8+2*m+1}]")
        for q in range(2, 6):
            A(f"v_pk_add_f32 v[{S+2*m}:{S+2*m+1}], v[{S+2*m}:{S+2*m+1}], v[{vals[2*q]}:{vals[2*q+1]}]")
            A(f"v_pk_fma_f32 v[{S+8+2*m}:{S+8+2*m+1}], v[{vals[2*q]}:{vals[2*q+1]}], v[{vals[2*q]}:{vals[2*q+1]}], v[{S+8+2*m}:{S+8+2*m+1}]")
    for m in range(4):
        A(f"v_add_f32 v{S+2*m}, v{S+2*m}, v{S+2*m+1}\nv_add_f32 v{S+2*m+1}, v{S+8+2*m}, v{S+8+2*m+1}")
    for i in range(8): A(f"v_mov_b32 v{S+8+i}, v{S+i}")
    for i in range(8): A(f"v_permlane16_swap_b32 v{S+i}, v{S+8+i}")
    for i in range(8): A(f"v_add_f32 v{S+i}, v{S+i}, v{S+8+i}")
    for i in range(8): A(f"v_mov_b32 v{S+8+i}, v{S+i}")
    for i in range(8): A(f"v_permlane32_swap_b32 v{S+i}, v{S+8+i}")
    for i in range(8): A(f"v_add_f32 v{S+i}, v{S+i}, v{S+8+i}")
    A("v_lshrrev_b32 v3, 4, v0")
    for m in range(1, 4):
        A(f"v_cmp_eq_u32 vcc, {m}, v3\nv_cndmask_b32 v{S}, v{S}, v{S+2*m}, vcc\nv_cndmask_b32 v{S+1}, v{S+1}, v{S+2*m+1}, vcc")
    A("v_lshlrev_b32 v4, 3, v0\ns_lshl_b32 s22, s16, 9\nv_add_u32 v5, s22, v4")
    A(f"ds_write_b64 v5, v[{S}:{S+1}]")
    A("s_waitcnt lgkmcnt(0)\ns_barrier")
    A("v_xor_b32 v5, 1024, v5")
    A(f"ds_read_b64 v[{S+2}:{S+3}], v5")
    srd(A, 8, 32, SZ_ST, WS_ST)
    A("s_lshl_b32 s22, s49, 14\ns_lshl_b32 s23, s48, 10\ns_add_u32 s22, s22, s23\ns_lshl_b32 s23, s20, 9\ns_add_u32 s22, s22, s23")
    A("s_waitcnt lgkmcnt(0)")
    A(f"v_add_f32 v{S}, v{S}, v{S+2}\nv_add_f32 v{S+1}, v{S+1}, v{S+3}")
    A("s_cmp_lg_u32 s21, 0\ns_cbranch_scc1 K1_z_nostat")
    A(f"buffer_store_dwordx2 v[{S}:{S+1}], v4, s[8:11], s22 offen sc1")
    A("s_waitcnt vmcnt(0)")
    A.label("K1_z_nostat")
    A("s_barrier")
    srd(A, 12, 50, 256)
    A("s_cmp_lg_u32 s16, 0\ns_cbranch_scc1 K1_z_nosig")
    A("s_lshl_b32 s22, s48, 4\nv_mov_b32 v8, s22\nv_mov_b32 v9, 1")
    A("s_mov_b64 exec, 1")
    A("buffer_atomic_add v9, v8, s[12:15], 0 offen sc1")
    A("s_mov_b64 exec, -1")
    A.label("K1_z_nosig")
    st2()
    gelu_pk(A, z1, 16, 56)
    srd(A, 4, 32, SZ_Z1, WS_Z1)
    A("s_lshl_b32 s22, s48, 2\ns_lshl_b32 s23, s20, 1\ns_add_u32 s22, s22, s23\ns_mul_i32 s22, s22, 48")
    A("s_mul_i32 s23, s49, 6\ns_add_u32 s22, s22, s23\ns_mul_i32 s23, s21, 3\ns_add_u32 s22, s22, s23\ns_lshl_b32 s22, s22, 10")
    A("v_lshlrev_b32 v4, 4, v0")
    Q = 200
    for mp in range(2):
        for t in range(3):
            d = Q + 4*(mp*3+t); a0 = acc(2*mp, 3+t); a1 = acc(2*mp+1, 3+t)
            A(f"v_cvt_pk_bf16_f32 v{d}, v{a0}, v{a0+1}\nv_cvt_pk_bf16_f32 v{d+1}, v{a0+2}, v{a0+3}\nv_cvt_pk_bf16_f32 v{d+2}, v{a1}, v{a1+1}\nv_cvt_pk_bf16_f32 v{d+3}, v{a1+2}, v{a1+3}")
    for mp in range(2):
        for t in range(3):
            d = Q + 4*(mp*3+t)
            A(f"s_add_u32 s23, s22, {mp*48*1024 + t*1024}")
            A(f"buffer_store_dwordx4 v[{d}:{d+3}], v4, s[4:7], s23 offen")
    k1_pack_store(A)
    st2()
    A("s_lshl_b32 s22, s48, 4\nv_mov_b32 v8, s22")
    srd(A, 12, 50, 256)
    A("s_mov_b32 s24, 0")
    A.label("K1_poll")
    A("buffer_load_dword v9, v8, s[12:15], 0 offen sc1")
    A("s_waitcnt vmcnt(0)")
    A("v_readfirstlane_b32 s25, v9")
    A("s_add_u32 s24, s24, 1")
    A("s_cmp_ge_u32 s25, 8\ns_cbranch_scc1 K1_polled")
    A("s_sleep 1")
    A("s_cmp_lt_u32 s24, 0x40000\ns_cbranch_scc1 K1_poll")
    A.label("K1_polled")
    st2()
    A("s_lshl_b32 s22, s48, 10\ns_lshl_b32 s23, s20, 9\ns_add_u32 s22, s22, s23")
    A("v_lshlrev_b32 v4, 3, v0")
    for jj in range(8):
        A(f"s_add_u32 s23, s22, {jj*16384}")
        A(f"buffer_load_dwordx2 v[{16+2*jj}:{17+2*jj}], v4, s[8:11], s23 offen sc1")
    A("s_waitcnt vmcnt(0)")
    for jj in range(1, 8): A(f"v_add_f32 v16, v16, v{16+2*jj}\nv_add_f32 v17, v17, v{17+2*jj}")
    A(f"v_mul_f32 v16, {f2u(1/768)}, v16\nv_mul_f32 v17, {f2u(1/768)}, v17")
    A("v_fma_f32 v17, -v16, v16, v17\nv_max_f32 v17, 0, v17")
    A(f"v_add_f32 v17, {f2u(1e-5)}, v17\nv_rsq_f32 v17, v17")
    A("v_mul_f32 v16, v16, v17\nv_sub_f32 v16, 0, v16")
    A("v_and_b32 v5, 15, v0\nv_lshlrev_b32 v5, 2, v5")
    for m in range(4):
        A(f"v_add_u32 v8, {64*m}, v5")
        A(f"ds_bpermute_b32 v{32+2*m}, v8, v17\nds_bpermute_b32 v{33+2*m}, v8, v16")
    A("s_waitcnt lgkmcnt(0)")
    PK = 44
    for m in range(4):
        for t in range(3):
            a_ = acc(m, t); i = m*3 + t
            for r in range(4): A(f"v_fma_f32 v{a_+r}, v{a_+r}, v{32+2*m}, v{33+2*m}")
            A(f"v_cvt_pk_bf16_f32 v{PK+2*i}, v{a_}, v{a_+1}\nv_cvt_pk_bf16_f32 v{PK+2*i+1}, v{a_+2}, v{a_+3}")
    srd(A, 12, 32, SZ_Z2P, WS_Z2P)
    A("s_lshl_b32 s22, s49, 5\ns_lshl_b32 s23, s48, 1\ns_add_u32 s22, s22, s23\ns_add_u32 s22, s22, s20\ns_mul_i32 s22, s22, 6")
    A("s_mul_i32 s23, s21, 3\ns_add_u32 s22, s22, s23\ns_lshl_b32 s22, s22, 11")
    A("v_and_b32 v6, 15, v0\nv_and_b32 v7, 3, v6\nv_and_b32 v4, 4, v6\nv_lshl_or_b32 v7, v4, 1, v7\nv_and_b32 v4, 8, v6\nv_lshrrev_b32 v4, 1, v4\nv_or_b32 v7, v7, v4")
    A("v_lshlrev_b32 v7, 5, v7\nv_lshl_add_u32 v4, v3, 3, v7")
    for m in range(4):
        for t in range(3):
            i = m*3 + t
            A(f"s_add_u32 s23, s22, {t*2048 + m*512}")
            A(f"buffer_store_dwordx2 v[{PK+2*i}:{PK+2*i+1}], v4, s[12:15], s23 offen")
    st2(); st2.flush(16, 32)
    A.label("K1_end")
    A("s_endpgm")
    return name, 256, 512, 147456, 256

SLOT = 20480
class E2:
    def __init__(self, A, pfx, NT, nsteps, pitchP, wave_m, wave_n, NS=6):
        self.A = A; self.pfx = pfx; self.NT = NT; self.n = nsteps; self.pitchP = pitchP
        self.mP = wave_m; self.nT = wave_n; self.NS = NS
        self.F = [8, 8 + 8*(wave_m + wave_n)]
        self.ACC = 8 + 16*(wave_m + wave_n)
        self.vend = self.ACC + 4*wave_m*wave_n
    def fP(self, s, kk, m): return self.F[s] + 4*(kk*(self.mP+self.nT) + m)
    def fT(self, s, kk, t): return self.F[s] + 4*(kk*(self.mP+self.nT) + self.mP + t)
    def acc(self, m, t): return self.ACC + 4*(m*self.nT + t)
    def loader_setup(self):
        A = self.A
        A("s_sub_u32 s21, s16, 4")
        A("v_lshrrev_b32 v7, 3, v0\nv_and_b32 v2, 7, v0\nv_xor_b32 v2, v2, v7")
        A(f"s_mov_b32 s20, {self.pitchP}\nv_mul_lo_u32 v7, v7, s20\nv_lshl_add_u32 v2, v2, 4, v7\nv_lshlrev_b32 v3, 4, v0")
        A(f"s_mul_i32 s20, s21, {16*self.pitchP}\ns_add_u32 s23, s17, s20")
        A("s_mul_i32 s20, s21, 3072\ns_add_u32 s24, s18, s20\ns_add_u32 s26, s20, 8192\ns_lshl_b32 s27, s21, 11")
        A("s_mov_b32 s28, 0\ns_mov_b32 s29, 0")
        if 2*self.NT < 12:
            A(f"s_mul_i32 s20, s21, 3\ns_cmp_ge_u32 s20, {2*self.NT - 1}\ns_cselect_b32 s28, {KILL}, 0\ns_cmp_ge_u32 s20, {2*self.NT - 2}\ns_cselect_b32 s29, {KILL}, 0")
        A("s_mov_b32 s22, 0")
    def issue(self):
        A = self.A
        A("s_add_u32 m0, s22, s27")
        A(f"s_add_u32 s20, s23, {8*self.pitchP - 1024}")
        A("buffer_load_dwordx4 v2, s[4:7], s23 offen lds")
        A("buffer_load_dwordx4 v2, s[4:7], s20 offen offset:1024 lds")
        A("s_add_u32 m0, s22, s26")
        if 2*self.NT < 12:
            A("s_add_u32 s25, s24, s28\ns_add_u32 s15, s24, s29")
            A("buffer_load_dwordx4 v3, s[8:11], s24 offen lds")
            A("buffer_load_dwordx4 v3, s[8:11], s25 offen offset:1024 lds")
            A("buffer_load_dwordx4 v3, s[8:11], s15 offen offset:2048 lds")
        else:
            A("buffer_load_dwordx4 v3, s[8:11], s24 offen lds")
            A("buffer_load_dwordx4 v3, s[8:11], s24 offen offset:1024 lds")
            A("buffer_load_dwordx4 v3, s[8:11], s24 offen offset:2048 lds")
        A(f"s_add_u32 s23, s23, 128\ns_add_u32 s24, s24, {self.NT*2048}")
        A(f"s_add_u32 s22, s22, {SLOT}\ns_cmp_eq_u32 s22, {self.NS*SLOT}\ns_cselect_b32 s22, 0, s22")
    def loader_main(self, pre_issued):
        A = self.A; NS = self.NS; n = self.n
        for i in range(pre_issued, NS - 1): self.issue()
        A(f"s_waitcnt vmcnt({(NS - 2)*5})")
        A("s_barrier")
        self.issue()
        L = self.pfx + "_lloop"
        A("s_mov_b32 s14, 0")
        A.label(L)
        A(f"s_waitcnt vmcnt({(NS-2)*5})\ns_barrier")
        self.issue()
        A(f"s_add_u32 s14, s14, 1\ns_cmp_lt_u32 s14, {n - NS}\ns_cbranch_scc1 {L}")
        for t in range(NS):
            i = n - NS + t
            rem = max(0, (n - 1) - (i + 1))
            A(f"s_waitcnt vmcnt({rem*5})\ns_barrier")
    def compute_setup(self, s_row, s_tile):
        A = self.A
        A("v_and_b32 v4, 15, v0\nv_lshrrev_b32 v5, 4, v0\nv_and_b32 v6, 7, v4\nv_xor_b32 v5, v5, v6\nv_lshlrev_b32 v4, 7, v4\nv_lshl_add_u32 v4, v5, 4, v4")
        A(f"s_lshl_b32 s20, s{s_row}, 7\nv_add_u32 v2, s20, v4\nv_xor_b32 v3, 64, v2")
        A("v_and_b32 v6, 15, v0\nv_lshlrev_b32 v6, 3, v6\nv_and_b32 v7, 16, v0\nv_lshl_add_u32 v6, v7, 3, v6\nv_and_b32 v7, 32, v0\nv_lshl_add_u32 v6, v7, 4, v6")
        A(f"s_lshl_b32 s20, s{s_tile}, 11\ns_add_u32 s20, s20, 8192\nv_add_u32 v4, s20, v6")
        A(f"v_add_u32 v5, {3*SLOT}, v2\nv_add_u32 v6, {3*SLOT}, v3\nv_add_u32 v7, {3*SLOT}, v4")
        for i in range(self.ACC, self.vend): A(f"v_mov_b32 v{i}, 0")
    def reads(self, step):
        s = step & 1; sl = step % self.NS; hi = 3 if sl >= 3 else 0; so = (sl - hi)*SLOT
        b = 3 if hi else 0
        r = []
        for kk in range(2):
            for m in range(self.mP):
                f = self.fP(s, kk, m); r.append(f"ds_read_b128 v[{f}:{f+3}], v{2+kk+b} offset:{so + m*2048}")
            for t in range(self.nT):
                f = self.fT(s, kk, t)
                for h in range(2): r.append(f"ds_read_b64_tr_b16 v[{f+2*h}:{f+2*h+1}], v{4+b} offset:{so + t*2048 + kk*1024 + h*256}")
        return r
    def step(self, i, last=False):
        A = self.A; s = i & 1
        rd = [] if last else self.reads(i + 1)
        mf = [f"v_mfma_f32_16x16x32_bf16 v[{self.acc(m,t)}:{self.acc(m,t)+3}], v[{self.fT(s,kk,t)}:{self.fT(s,kk,t)+3}], v[{self.fP(s,kk,m)}:{self.fP(s,kk,m)+3}], v[{self.acc(m,t)}:{self.acc(m,t)+3}]"
              for kk in range(2) for m in range(self.mP) for t in range(self.nT)]
        A("s_barrier")
        per = (len(rd) + len(mf) - 1)//len(mf) if rd else 0
        for x in mf:
            for _ in range(per):
                if rd: A(rd.pop(0))
            A(x)
        A("s_waitcnt lgkmcnt(0)")
    def compute(self, st, unroll=False, hooks=None):
        A = self.A; NS = self.NS; n = self.n
        assert NS % 2 == 0
        A("s_barrier")
        for x in self.reads(0): A(x)
        A("s_waitcnt lgkmcnt(0)")
        st()
        if unroll:
            for i in range(n):
                self.step(i, last=(i == n - 1))
                if hooks and i in hooks: hooks[i]()
            return
        nfull = (n - 1)//NS
        L = self.pfx + "_cloop"
        A("s_mov_b32 s19, 0")
        A.label(L)
        for i in range(NS): self.step(i)
        A(f"s_add_u32 s19, s19, 1\ns_cmp_lt_u32 s19, {nfull}\ns_cbranch_scc1 {L}")
        for i in range(nfull*NS, n): self.step(i, last=(i == n - 1))

def tile_map(A):
    A("s_and_b32 s42, s2, 7\ns_lshr_b32 s43, s2, 3\ns_lshr_b32 s40, s42, 1\ns_lshl_b32 s40, s40, 3\ns_and_b32 s44, s43, 7\ns_add_u32 s40, s40, s44")
    A("s_and_b32 s41, s42, 1\ns_lshl_b32 s41, s41, 2\ns_lshr_b32 s44, s43, 3\ns_add_u32 s41, s41, s44")

ATT_LDS = 6*SLOT
def attention(A, V, s_off, s_bound):
    g = V
    aQ, aK, aV = V+1, V+2, V+5
    t0, t1, t2 = V+8, V+9, V+10
    M20, M21, N20, N21 = V+11, V+12, V+13, V+14
    S = V+16
    assert S % 4 == 0
    QF = S+12
    KF = QF+10
    A(f"v_lshrrev_b32 v{t0}, 3, v0\nv_lshlrev_b32 v{t0}, 2, v{t0}\nv_and_b32 v{t1}, 3, v0\nv_add_u32 v{t0}, v{t0}, v{t1}")
    A(f"v_lshrrev_b32 v{t1}, 2, v0\nv_and_b32 v{t1}, 1, v{t1}\nv_lshl_add_u32 v{t0}, v{t0}, 1, v{t1}")
    A(f"v_mul_u32_u24 v{t0}, {QP}, v{t0}")
    A(f"s_mov_b32 s20, s{s_off}")
    A(f"v_add_u32 v{t0}, s20, v{t0}")
    A(f"v_add_u32 v{aQ}, {16*QP}, v{t0}")
    A(f"v_lshrrev_b32 v{t1}, 4, v0\nv_lshlrev_b32 v{t1}, 2, v{t1}\nv_and_b32 v{t2}, 3, v0\nv_add_u32 v{t1}, v{t1}, v{t2}")
    A(f"v_lshrrev_b32 v{t2}, 1, v{t1}\nv_lshlrev_b32 v{t2}, 2, v{t2}")
    A(f"v_and_b32 v{t1}, 1, v{t1}")
    A(f"v_lshrrev_b32 v{aV}, 2, v0\nv_and_b32 v{aV}, 3, v{aV}\nv_add_u32 v{aV}, v{aV}, v{t2}\nv_lshl_add_u32 v{aV}, v{aV}, 1, v{t1}")
    A(f"v_mul_u32_u24 v{aV}, {QP}, v{aV}\nv_add_u32 v{aV}, s20, v{aV}")
    for dg in range(5): A(f"ds_read_b64 v[{QF+2*dg}:{QF+2*dg+1}], v{aQ} offset:{8*dg}")
    for c in range(3):
        for dg in range(5): A(f"ds_read_b64 v[{KF+2*(5*c+dg)}:{KF+2*(5*c+dg)+1}], v{t0} offset:{8*c*QP + 160 + 8*dg}")
    A(f"v_and_b32 v{t1}, 3, v0")
    A(f"v_mov_b32 v{M20}, 0xffff\nv_mov_b32 v{t2}, -1\nv_cmp_le_u32 vcc, 1, v{t1}\nv_cndmask_b32 v{M20}, v{M20}, v{t2}, vcc")
    A(f"v_mov_b32 v{M21}, 0\nv_mov_b32 v{t2}, 0xffff\nv_cmp_le_u32 vcc, 2, v{t1}\nv_cndmask_b32 v{M21}, v{M21}, v{t2}, vcc")
    A(f"v_mov_b32 v{t2}, -1\nv_cmp_eq_u32 vcc, 3, v{t1}\nv_cndmask_b32 v{M21}, v{M21}, v{t2}, vcc")
    A(f"v_not_b32 v{N20}, v{M20}\nv_not_b32 v{N21}, v{M21}")
    for i in range(12): A(f"v_mov_b32 v{S+i}, 0")
    A("s_waitcnt lgkmcnt(0)")
    for dg in range(5):
        for c in range(3):
            A(f"v_mfma_f32_4x4x4_16b_bf16 v[{S+4*c}:{S+4*c+3}], v[{KF+2*(5*c+dg)}:{KF+2*(5*c+dg)+1}], v[{QF+2*dg}:{QF+2*dg+1}], v[{S+4*c}:{S+4*c+3}]")
    for c in range(3):
        for dg in range(5): A(f"ds_read_b64_tr_b16 v[{KF+2*(5*c+dg)}:{KF+2*(5*c+dg)+1}], v{aV} offset:{8*c*QP + 320 + 8*dg}")
    Lb = A.newlabel("att_nomask")
    A(f"s_cmp_lg_u32 s{s_bound}, 0\ns_cbranch_scc1 {Lb}")
    A(f"v_mov_b32 v{t2}, {f2u(-1e30)}")
    A("v_cmp_gt_u32 vcc, 16, v0")
    for i in range(4): A(f"v_cndmask_b32 v{S+i}, v{S+i}, v{t2}, vcc")
    A("v_cmp_gt_u32 vcc, 8, v0")
    for i in range(4): A(f"v_cndmask_b32 v{S+4+i}, v{S+4+i}, v{t2}, vcc")
    A.label(Lb)
    A("s_mov_b32 s20, 0xeeeeeeee\ns_mov_b32 s21, 0xeeeeeeee\ns_mov_b32 s22, 0xcccccccc\ns_mov_b32 s23, 0xcccccccc\ns_mov_b32 s24, 0x88888888\ns_mov_b32 s25, 0x88888888")
    for i in range(1, 4): A(f"v_cndmask_b32 v{S+8+i}, v{S+i}, v{S+8+i}, s[{18+2*i}:{19+2*i}]")
    vals = [S+4+i for i in range(8)]
    A(f"v_max3_f32 v{t0}, v{vals[0]}, v{vals[1]}, v{vals[2]}\nv_max3_f32 v{t1}, v{vals[3]}, v{vals[4]}, v{vals[5]}\nv_max3_f32 v{t0}, v{t0}, v{vals[6]}, v{vals[7]}\nv_max_f32 v{t0}, v{t0}, v{t1}")
    SC = (20 ** -0.5) * 1.4426950408889634
    A(f"s_mov_b32 s20, {f2u(SC)}")
    A(f"v_mul_f32 v{t0}, s20, v{t0}")
    for x in vals: A(f"v_fma_f32 v{x}, v{x}, s20, -v{t0}")
    for x in vals: A(f"v_exp_f32 v{x}, v{x}")
    A(f"v_add_f32 v{t0}, v{vals[0]}, v{vals[1]}\nv_add_f32 v{t1}, v{vals[2]}, v{vals[3]}\nv_add_f32 v{t2}, v{vals[4]}, v{vals[5]}\nv_add_f32 v{t0}, v{t0}, v{t1}")
    A(f"v_add_f32 v{t1}, v{vals[6]}, v{vals[7]}\nv_add_f32 v{t0}, v{t0}, v{t2}\nv_add_f32 v{t0}, v{t0}, v{t1}")
    A(f"v_rcp_f32 v{t0}, v{t0}")
    for x in vals: A(f"v_mul_f32 v{x}, v{x}, v{t0}")
    PP = QF
    A(f"v_cvt_pk_bf16_f32 v{PP+2}, v{S+4}, v{S+5}\nv_cvt_pk_bf16_f32 v{PP+3}, v{S+6}, v{S+7}")
    A(f"v_cvt_pk_bf16_f32 v{t1}, v{S+8}, v{S+9}\nv_cvt_pk_bf16_f32 v{t2}, v{S+10}, v{S+11}")
    A(f"v_and_b32 v{PP+4}, v{t1}, v{M20}\nv_and_b32 v{PP+5}, v{t2}, v{M21}\nv_and_b32 v{PP}, v{t1}, v{N20}\nv_and_b32 v{PP+1}, v{t2}, v{N21}")
    OO = KF + 30
    OO = (OO + 3)//4*4
    for i in range(20): A(f"v_mov_b32 v{OO+i}, 0")
    A("s_waitcnt lgkmcnt(0)")
    for c in range(3):
        for dg in range(5):
            A(f"v_mfma_f32_4x4x4_16b_bf16 v[{OO+4*dg}:{OO+4*dg+3}], v[{KF+2*(5*c+dg)}:{KF+2*(5*c+dg)+1}], v[{PP+2*c}:{PP+2*c+1}], v[{OO+4*dg}:{OO+4*dg+3}]")
    for dg in range(5):
        A(f"v_cvt_pk_bf16_f32 v{KF+2*dg}, v{OO+4*dg}, v{OO+4*dg+1}\nv_cvt_pk_bf16_f32 v{KF+2*dg+1}, v{OO+4*dg+2}, v{OO+4*dg+3}")
    for dg in range(5): A(f"ds_write_b64 v{aQ}, v[{KF+2*dg}:{KF+2*dg+1}] offset:{8*dg}")
    return OO + 20

def k3(A):
    name = "k3_kernel"
    kernel_begin(A, name)
    A("s_cmp_ge_u32 s2, 256\ns_cbranch_scc1 K3_end")
    load_ptr(A, 30, 'wsp'); load_ptr(A, 32, 'ws'); load_ptr(A, 34, 'bsp')
    wave_lane(A, 16)
    tile_map(A)
    st = Stamps(A, 2); st()
    E = E2(A, "K3", 6, 32, 4096, 2, 3)
    A(f"s_mul_i32 s17, s40, {64*4096}\ns_mul_i32 s18, s41, {32*6*2048}")
    A("s_waitcnt lgkmcnt(0)")
    A("s_cmp_lt_u32 s16, 4\ns_cbranch_scc1 K3_comp")
    srd(A, 4, 30, 2048*2048*2); srd(A, 8, 32, SZ_Z2P, WS_Z2P)
    E.loader_setup()
    E.loader_main(0)
    A("s_branch K3_end")
    A.label("K3_comp")
    A("s_and_b32 s46, s16, 1\ns_lshl_b32 s46, s46, 5\ns_lshr_b32 s47, s16, 1\ns_mul_i32 s47, s47, 3")
    PF = 116
    srd(A, 4, 32, SZ_Z1, WS_Z1); srd(A, 8, 32, SZ_G, WS_G); srd(A, 12, 34, 2048*2)
    A("s_lshl_b32 s43, s40, 6\ns_add_u32 s43, s43, s46")
    A("v_and_b32 v112, 15, v0\nv_add_u32 v112, s43, v112\nv_lshrrev_b32 v113, 4, v0")
    A("s_lshr_b32 s48, s43, 5\ns_mul_i32 s48, s48, 48\ns_mul_i32 s49, s41, 6\ns_add_u32 s48, s48, s49\ns_add_u32 s48, s48, s47\ns_lshl_b32 s48, s48, 10")
    A("v_lshlrev_b32 v114, 4, v0")
    for t in range(3): A(f"buffer_load_dwordx4 v[{PF+4*t}:{PF+4*t+3}], v114, s[4:7], s48 offen offset:{t*1024}")
    A("v_lshlrev_b32 v115, 2, v112")
    A(f"buffer_load_dword v{PF+12}, v115, s[8:11], 0 offen\nbuffer_load_dword v{PF+13}, v115, s[8:11], 0 offen offset:64")
    A("v_lshlrev_b32 v115, 1, v112")
    A(f"buffer_load_ushort v{PF+14}, v115, s[12:15], 0 offen\nbuffer_load_ushort v{PF+15}, v115, s[12:15], 0 offen offset:32")
    E.compute_setup(46, 47)
    st()
    E.compute(st)
    st()
    A("s_waitcnt vmcnt(0)")
    srd(A, 12, 32, SZ_AU, WS_AU)
    for m in range(2): A(f"v_lshlrev_b32 v{PF+14+m}, 16, v{PF+14+m}\nv_sub_f32 v{PF+12+m}, 1.0, v{PF+12+m}")
    T = 132
    for m in range(2):
        for t in range(3):
            ac = E.acc(m, t)
            for q in range(2):
                z = PF + 4*t + 2*m + q
                A(f"v_lshlrev_b32 v{T}, 16, v{z}\nv_and_b32 v{T+1}, 0xffff0000, v{z}")
                A(f"v_add_f32 v{T+2}, v{ac+2*q}, v{PF+14+m}\nv_add_f32 v{T+3}, v{ac+2*q+1}, v{PF+14+m}")
                A(f"v_mul_f32 v{T}, v{T}, v{PF+12+m}\nv_mul_f32 v{T+1}, v{T+1}, v{PF+12+m}")
                A(f"v_mul_f32 v{T+2}, v{T+2}, v{T}\nv_mul_f32 v{T+3}, v{T+3}, v{T+1}")
                A(f"v_cvt_pk_bf16_f32 v{z}, v{T+2}, v{T+3}")
    A("s_mov_b32 s45, 2816\nv_mul_lo_u32 v114, v112, s45\nv_lshl_add_u32 v114, v113, 3, v114")
    A("s_mul_i32 s48, s41, 192\ns_lshl_b32 s49, s47, 5\ns_add_u32 s48, s48, s49\ns_add_u32 s48, s48, 1280\nv_add_u32 v114, s48, v114")
    A(f"s_mov_b32 s49, {16*2816}")
    for m in range(2):
        for t in range(3):
            z = PF + 4*t + 2*m
            A(f"buffer_store_dwordx2 v[{z}:{z+1}], v114, s[12:15], {'s49' if m else '0'} offen offset:{t*32}")
    st(); st.flush(16, 32)
    A.label("K3_end")
    A("s_endpgm")
    return name, 256, 512, 6*SLOT, 140

def k4(A):
    name = "k4_kernel"
    kernel_begin(A, name)
    A("s_cmp_ge_u32 s2, 256\ns_cbranch_scc1 K4_end")
    load_ptr(A, 30, 'out'); load_ptr(A, 32, 'ws')
    wave_lane(A, 16)
    tile_map(A)
    st = Stamps(A, 3); st()
    E = E2(A, "K4", 5, 22, 2816, 1, 5)
    A(f"s_mul_i32 s17, s40, {64*2816}\ns_mul_i32 s18, s41, {22*5*2048}")
    A("s_waitcnt lgkmcnt(0)")
    A("s_cmp_lt_u32 s16, 4\ns_cbranch_scc1 K4_comp")
    srd(A, 4, 32, SZ_AU, WS_AU); srd(A, 8, 32, SZ_WP, WS_WP)
    E.loader_setup()
    E.loader_main(0)
    A("s_branch K4_end")
    A.label("K4_comp")
    A("s_lshl_b32 s46, s16, 4\ns_mov_b32 s47, 0")
    srd(A, 8, 32, SZ_G, WS_G)
    A("s_lshl_b32 s43, s40, 6\ns_add_u32 s43, s43, s46\nv_and_b32 v126, 15, v0\nv_add_u32 v126, s43, v126\nv_lshlrev_b32 v126, 2, v126")
    A("buffer_load_dword v125, v126, s[8:11], 0 offen")
    E.compute_setup(46, 47)
    st()
    def scale():
        A("s_waitcnt vmcnt(0)")
        for t in range(5):
            for r in range(4): A(f"v_mul_f32 v{E.acc(0,t)+r}, v{E.acc(0,t)+r}, v125")
    E.compute(st, unroll=True, hooks={9: scale})
    st()
    A("s_lshl_b32 s43, s40, 6\ns_add_u32 s43, s43, s46\nv_and_b32 v2, 15, v0\nv_add_u32 v2, s43, v2\nv_lshrrev_b32 v3, 4, v0")
    srd(A, 12, 30, 2048*640*2)
    PK = 8
    for t in range(5):
        ac = E.acc(0, t)
        A(f"v_cvt_pk_bf16_f32 v{PK+2*t}, v{ac}, v{ac+1}\nv_cvt_pk_bf16_f32 v{PK+2*t+1}, v{ac+2}, v{ac+3}")
    A("s_mov_b32 s45, 1280\nv_mul_lo_u32 v4, v2, s45\nv_lshl_add_u32 v4, v3, 3, v4\ns_mul_i32 s46, s41, 160\nv_add_u32 v4, s46, v4")
    for t in range(5): A(f"buffer_store_dwordx2 v[{PK+2*t}:{PK+2*t+1}], v4, s[12:15], 0 offen offset:{t*32}")
    st(); st.flush(16, 32)
    A.label("K4_end")
    A("s_endpgm")
    return name, 256, 512, 6*SLOT, 128

def k34(A):
    name = "k34_kernel"
    NS = 6; N1 = 32; N2 = 22; N = N1 + N2
    USTG = NS*SLOT
    LCNT = USTG + 64*208
    kernel_begin(A, name)
    A("s_cmp_ge_u32 s2, 256\ns_cbranch_scc1 K34_end")
    load_ptr(A, 30, 'wsp'); load_ptr(A, 32, 'ws'); load_ptr(A, 34, 'bsp'); load_ptr(A, 36, 'out'); load_ptr(A, 38, 'dbg')
    wave_lane(A, 16)
    tile_map(A)
    st = Stamps(A, 2); st()
    E1 = E2(A, "K34a", 6, N1, 4096, 2, 3)
    A("s_waitcnt lgkmcnt(0)")
    A("s_cmp_lt_u32 s16, 4\ns_cbranch_scc1 K34_comp")
    srd(A, 4, 30, 2048*2048*2); srd(A, 8, 32, SZ_Z2P, WS_Z2P)
    A(f"s_mul_i32 s17, s40, {64*4096}\ns_mul_i32 s18, s41, {32*6*2048}")
    E1.loader_setup()
    A("v_lshrrev_b32 v7, 3, v0\nv_and_b32 v4, 7, v0\nv_xor_b32 v4, v4, v7\nv_mul_u32_u24 v7, 2816, v7\nv_lshl_add_u32 v4, v4, 4, v7")
    A("v_lshrrev_b32 v7, 3, v0\nv_and_b32 v5, 7, v0\nv_xor_b32 v5, v5, v7\nv_mul_u32_u24 v7, 384, v7\nv_lshl_add_u32 v10, v5, 4, v7")
    for i in range(NS - 1): E1.issue()
    A(f"s_waitcnt vmcnt({(NS - 2)*5})\ns_barrier")
    E1.issue()
    A("s_mov_b32 s14, 0")
    A.label("K34_lloop")
    A(f"s_waitcnt vmcnt({(NS-2)*5})\ns_barrier")
    E1.issue()
    A(f"s_add_u32 s14, s14, 1\ns_cmp_lt_u32 s14, {N1 - NS}\ns_cbranch_scc1 K34_lloop")
    srd(A, 4, 32, SZ_AU, WS_AU); srd(A, 8, 32, SZ_WP, WS_WP); srd(A, 12, 38, 256)
    A(f"s_mul_i32 s17, s40, {64*2816}\ns_mul_i32 s20, s21, {16*2816}\ns_add_u32 s23, s17, s20")
    A(f"s_mul_i32 s18, s41, {22*5*2048}\ns_mul_i32 s20, s21, 3072\ns_add_u32 s24, s18, s20")
    A(f"s_mul_i32 s20, s21, 3\ns_cmp_ge_u32 s20, 9\ns_cselect_b32 s28, {KILL}, 0\ns_cmp_ge_u32 s20, 8\ns_cselect_b32 s29, {KILL}, 0")
    A("s_lshl_b32 s44, s40, 3\nv_mov_b32 v8, s44")
    srd(A, 48, 32, SZ_U, WS_U)
    A(f"s_mul_i32 s52, s40, {4*24576}\ns_mul_i32 s20, s21, {16*384}\ns_add_u32 s52, s52, s20")
    issued = [('S', s) for s in range(N1 - NS + 2 - 1, N1) for _ in range(5)]
    def issueP(s):
        sl = s % NS; s2_ = s - N1
        fl = " sc1" if (s2_ >= 10 and O.usc1) else ""
        A(f"s_add_u32 m0, s27, {sl*SLOT}")
        if s2_ < 10:
            A(f"s_add_u32 s20, s23, {s2_*128}\ns_add_u32 s25, s23, {s2_*128 + 8*2816 - 1024}")
            A(f"buffer_load_dwordx4 v4, s[4:7], s20 offen lds")
            A(f"buffer_load_dwordx4 v4, s[4:7], s25 offen offset:1024 lds")
        else:
            a_, b_ = divmod(s2_ - 10, 3)
            A(f"s_add_u32 s20, s52, {a_*24576 + b_*128}\ns_add_u32 s25, s52, {a_*24576 + b_*128 + 8*384 - 1024}")
            A(f"buffer_load_dwordx4 v10, s[48:51], s20 offen{fl} lds")
            A(f"buffer_load_dwordx4 v10, s[48:51], s25 offen offset:1024{fl} lds")
        issued.extend([('P', s)]*2)
    def issueT(s):
        sl = s % NS; s2_ = s - N1
        A(f"s_add_u32 m0, s26, {sl*SLOT}")
        A(f"s_add_u32 s20, s24, {s2_*10240}\ns_add_u32 s25, s20, s28\ns_add_u32 s45, s20, s29")
        A("buffer_load_dwordx4 v3, s[8:11], s20 offen lds")
        A("buffer_load_dwordx4 v3, s[8:11], s25 offen offset:1024 lds")
        A("buffer_load_dwordx4 v3, s[8:11], s45 offen offset:2048 lds")
        issued.extend([('T', s)]*3)
    def wait_for(needs):
        last = -1
        for idx, tg in enumerate(issued):
            if tg in needs: last = idx
        if last < 0: return
        A(f"s_waitcnt vmcnt({min(len(issued) - 1 - last, 63)})")
    FIRSTU = N1 + 10
    POLL_I = O.poll_i
    deferred = []
    gate_open = False
    for i in range(N1 - NS, N):
        nxt = i + 1
        if nxt < N:
            wait_for([('S', nxt), ('P', nxt), ('T', nxt)])
        A("s_barrier")
        if i == POLL_I + 1:
            wait_for([('X', 0)])
            A("v_readfirstlane_b32 s46, v9")
            A("s_cmp_ge_u32 s46, 8\ns_cbranch_scc1 K34_ready")
            A("s_mov_b32 s47, 0")
            A.label("K34_poll")
            A("buffer_load_dword v9, v8, s[12:15], 0 offen sc1")
            A("s_waitcnt vmcnt(0)")
            A("v_readfirstlane_b32 s46, v9")
            A("s_add_u32 s47, s47, 1")
            A("s_cmp_ge_u32 s46, 8\ns_cbranch_scc1 K34_ready")
            A("s_cmp_lt_u32 s47, 0x40000\ns_cbranch_scc1 K34_poll")
            A.label("K34_ready")
            gate_open = True
            for s in deferred: issueP(s)
            deferred = []
        s = i + NS
        if s < N:
            issueT(s)
            if s >= FIRSTU and not gate_open: deferred.append(s)
            else: issueP(s)
        if i == POLL_I:
            A("buffer_load_dword v9, v8, s[12:15], 0 offen sc1")
            issued.append(('X', 0))
    assert not deferred
    A("s_branch K34_end")
    A.label("K34_comp")
    A("s_and_b32 s46, s16, 1\ns_lshl_b32 s46, s46, 5\ns_lshr_b32 s47, s16, 1\ns_mul_i32 s47, s47, 3")
    PF = 116
    C1R = 212
    C1R = 140
    C1R = 188
    BB = 132
    COA = 88
    srd(A, 4, 32, SZ_Z1, WS_Z1); srd(A, 8, 32, SZ_G, WS_G); srd(A, 12, 34, 2048*2)
    A("s_lshl_b32 s43, s40, 6\ns_add_u32 s43, s43, s46")
    A("v_and_b32 v112, 15, v0\nv_add_u32 v112, s43, v112\nv_lshrrev_b32 v113, 4, v0")
    A("s_lshr_b32 s48, s43, 5\ns_mul_i32 s48, s48, 48\ns_mul_i32 s49, s41, 6\ns_add_u32 s48, s48, s49\ns_add_u32 s48, s48, s47\ns_lshl_b32 s48, s48, 10")
    A("v_lshlrev_b32 v114, 4, v0")
    for t in range(3): A(f"buffer_load_dwordx4 v[{PF+4*t}:{PF+4*t+3}], v114, s[4:7], s48 offen offset:{t*1024}")
    A("v_lshlrev_b32 v115, 2, v112")
    A(f"buffer_load_dword v{PF+12}, v115, s[8:11], 0 offen\nbuffer_load_dword v{PF+13}, v115, s[8:11], 0 offen offset:64")
    A("v_lshlrev_b32 v115, 1, v112")
    A(f"buffer_load_ushort v{PF+14}, v115, s[12:15], 0 offen\nbuffer_load_ushort v{PF+15}, v115, s[12:15], 0 offen offset:32")
    A("s_lshl_b32 s50, s40, 6\ns_lshl_b32 s51, s16, 4\ns_add_u32 s50, s50, s51\nv_and_b32 v137, 15, v0\nv_add_u32 v137, s50, v137\nv_lshlrev_b32 v138, 2, v137")
    A("buffer_load_dword v136, v138, s[8:11], 0 offen")
    A(f"s_mov_b32 s53, {USTG}")
    A(f"v_mov_b32 v138, {LCNT}\nv_mov_b32 v139, 0\nds_write_b32 v138, v139")
    E1.compute_setup(46, 47)
    E2b = E2(A, "K34b", 5, N2, 2816, 1, 5)
    E2b.F = [140, 188]; E2b.ACC = 236; E2b.vend = 256
    st()
    A("s_barrier")
    for x in E1.reads(0): A(x)
    A("s_waitcnt vmcnt(0)")
    for m in range(2):
        A(f"v_lshlrev_b32 v{BB+2*m}, 16, v{PF+14+m}\nv_mov_b32 v{BB+2*m+1}, v{BB+2*m}\nv_sub_f32 v{PF+12+m}, 1.0, v{PF+12+m}")
    for m in range(2):
        for t in range(3):
            c = C1R + 4*(3*m + t)
            for q in range(2):
                z = PF + 4*t + 2*m + q
                A(f"v_lshlrev_b32 v{c+2*q}, 16, v{z}\nv_and_b32 v{c+2*q+1}, 0xffff0000, v{z}")
    for m in range(2):
        for t in range(3):
            c = C1R + 4*(3*m + t)
            for r in range(4): A(f"v_mul_f32 v{c+r}, v{c+r}, v{PF+12+m}")
    A("s_waitcnt lgkmcnt(0)")
    st()
    A("s_mov_b32 s19, 0")
    A.label("K34_cloop")
    for i in range(NS): E1.step(i)
    A(f"s_add_u32 s19, s19, 1\ns_cmp_lt_u32 s19, 5\ns_cbranch_scc1 K34_cloop")
    E1.step(30)
    A("v_and_b32 v4, 15, v0\nv_lshrrev_b32 v5, 4, v0\nv_and_b32 v6, 7, v4\nv_xor_b32 v5, v5, v6\nv_lshlrev_b32 v4, 7, v4\nv_lshl_add_u32 v4, v5, 4, v4")
    A("s_lshl_b32 s20, s16, 11\nv_add_u32 v2, s20, v4\nv_xor_b32 v3, 64, v2")
    A("v_and_b32 v6, 15, v0\nv_lshlrev_b32 v6, 3, v6\nv_and_b32 v7, 16, v0\nv_lshl_add_u32 v6, v7, 3, v6\nv_and_b32 v7, 32, v0\nv_lshl_add_u32 v6, v7, 4, v6")
    A("v_add_u32 v4, 8192, v6")
    A(f"v_add_u32 v5, {3*SLOT}, v2\nv_add_u32 v6, {3*SLOT}, v3\nv_add_u32 v7, {3*SLOT}, v4")
    for i in range(236, 256): A(f"v_mov_b32 v{i}, 0")
    def mixed_step(Ecur, icur, Enext, inext):
        s = icur & 1
        rd = Enext.reads(inext) if Enext else []
        mf = [f"v_mfma_f32_16x16x32_bf16 v[{Ecur.acc(m,t)}:{Ecur.acc(m,t)+3}], v[{Ecur.fT(s,kk,t)}:{Ecur.fT(s,kk,t)+3}], v[{Ecur.fP(s,kk,m)}:{Ecur.fP(s,kk,m)+3}], v[{Ecur.acc(m,t)}:{Ecur.acc(m,t)+3}]"
              for kk in range(2) for m in range(Ecur.mP) for t in range(Ecur.nT)]
        A("s_barrier")
        per = (len(rd) + len(mf) - 1)//len(mf) if rd else 0
        for x in mf:
            for _ in range(per):
                if rd: A(rd.pop(0))
            A(x)
        A("s_waitcnt lgkmcnt(0)")
    mixed_step(E1, 31, E2b, 32)
    st()
    for m in range(2):
        for t in range(3):
            ac = E1.acc(m, t); c = C1R + 4*(3*m + t)
            for q in range(2):
                A(f"v_pk_add_f32 v[{ac+2*q}:{ac+2*q+1}], v[{ac+2*q}:{ac+2*q+1}], v[{PF+14+m-(PF+14+m)%2 if False else BB+2*m}:{BB+2*m+1}]")
    for m in range(2):
        for t in range(3):
            ac = E1.acc(m, t); c = C1R + 4*(3*m + t)
            for q in range(2):
                A(f"v_pk_mul_f32 v[{ac+2*q}:{ac+2*q+1}], v[{ac+2*q}:{ac+2*q+1}], v[{c+2*q}:{c+2*q+1}]")
    for m in range(2):
        for t in range(3):
            ac = E1.acc(m, t); z = PF + 4*t + 2*m
            A(f"v_cvt_pk_bf16_f32 v{z}, v{ac}, v{ac+1}\nv_cvt_pk_bf16_f32 v{z+1}, v{ac+2}, v{ac+3}")
    A("v_and_b32 v114, 15, v0\nv_add_u32 v114, s46, v114\nv_mul_u32_u24 v114, 208, v114\nv_lshl_add_u32 v114, v113, 3, v114")
    A(f"s_lshl_b32 s48, s47, 5\ns_add_u32 s48, s48, {USTG}\nv_add_u32 v114, s48, v114")
    for m in range(2):
        for t in range(3):
            z = PF + 4*t + 2*m
            A(f"ds_write_b64 v114, v[{z}:{z+1}] offset:{m*16*208 + t*32}")
    A("s_mul_i32 s20, s16, 192\nv_add_u32 v138, s20, v0")
    for q in range(3):
        A(f"v_add_u32 v139, {64*q}, v138\nv_mul_u32_u24 v114, 5462, v139\nv_lshrrev_b32 v114, 16, v114")
        A(f"v_mul_u32_u24 v115, 12, v114\nv_sub_u32 v115, v139, v115\nv_lshlrev_b32 v115, 4, v115")
        A(f"v_mul_u32_u24 v139, 208, v114\nv_add3_u32 v{COA+q}, v139, v115, s53\nv_mul_u32_u24 v139, 384, v114\nv_add_u32 v{COA+3+q}, v139, v115")
    A("s_waitcnt lgkmcnt(0)")
    st()
    def signal():
        A("s_waitcnt vmcnt(0)")
        A(f"v_mov_b32 v138, {LCNT}\nv_mov_b32 v139, 1")
        A("s_mov_b64 exec, 1")
        A("ds_add_rtn_u32 v139, v138, v139")
        A("s_waitcnt lgkmcnt(0)")
        A("v_readfirstlane_b32 s20, v139")
        A("s_cmp_lg_u32 s20, 3\ns_cbranch_scc1 K34_nosig")
        srd(A, 12, 38, 256)
        A("s_lshl_b32 s20, s40, 3\nv_mov_b32 v138, s20\nv_mov_b32 v139, 1")
        A("buffer_atomic_add v139, v138, s[12:15], 0 offen sc1")
        A.label("K34_nosig")
        A("s_mov_b64 exec, -1")
    for i in range(N1, N):
        last = (i == N - 1)
        mixed_step(E2b, i, None if last else E2b, i + 1)
        if i == N1:
            srd(A, 12, 32, SZ_U, WS_U)
            for q in range(3): A(f"ds_read_b128 v[{PF+4*q}:{PF+4*q+3}], v{COA+q}")
            A("s_lshl_b32 s48, s40, 2\ns_lshr_b32 s49, s41, 1\ns_add_u32 s48, s48, s49\ns_mul_i32 s48, s48, 24576\ns_and_b32 s49, s41, 1\ns_mul_i32 s49, s49, 192\ns_add_u32 s48, s48, s49")
            A("s_waitcnt lgkmcnt(0)")
            for q in range(3): A(f"buffer_store_dwordx4 v[{PF+4*q}:{PF+4*q+3}], v{COA+3+q}, s[12:15], s48 offen sc1")
        if i in (33, 36, 38, 40, 41, 42, 45, 49): st()
        if i == O.sig_i: signal()
        if i == N1 + 9:
            for t in range(5):
                for r in range(4): A(f"v_mul_f32 v{E2b.acc(0,t)+r}, v{E2b.acc(0,t)+r}, v136")
    st()
    srd(A, 12, 36, 2048*640*2)
    PK = 8
    for t in range(5):
        ac = E2b.acc(0, t)
        A(f"v_cvt_pk_bf16_f32 v{PK+2*t}, v{ac}, v{ac+1}\nv_cvt_pk_bf16_f32 v{PK+2*t+1}, v{ac+2}, v{ac+3}")
    A("v_lshrrev_b32 v3, 4, v0\ns_mov_b32 s45, 1280\nv_mul_lo_u32 v4, v137, s45\nv_lshl_add_u32 v4, v3, 3, v4\ns_mul_i32 s46, s41, 160\nv_add_u32 v4, s46, v4")
    for t in range(5): A(f"buffer_store_dwordx2 v[{PK+2*t}:{PK+2*t+1}], v4, s[12:15], 0 offen offset:{t*32}")
    st(); st.flush(16, 32, 20)
    A.label("K34_end")
    A("s_endpgm")
    return name, 256, 512, NS*SLOT + 64*208 + 64, 256

def main(out, kernels):
    body = Asm(); ks = []
    for f in kernels: ks.append(f(body))
    hdr = [f"; @launch kernel={n} grid=({g},1,1) block=({b},1,1) lds={lds}" for (n, g, b, lds, vg) in ks]
    hdr.append('.amdgcn_target "amdgcn-amd-amdhsa--gfx950"'); hdr.append(".text")
    lines = hazard.fix(body.lines, verbose=True)
    txt = "\n".join(hdr) + "\n" + "\n".join(lines) + "\n" + '.section .rodata,"a"\n'
    for (n, g, b, lds, vg) in ks: txt += kernel_desc(n, 256 if O.stamp else vg, 96)
    open(out, "w").write(txt)
if __name__ == "__main__":
    if '--stamp' in sys.argv: O.stamp = True
    if '--norot' in sys.argv: O.rot = False
    if '--pfg' in sys.argv: O.pfg = True
    if '--nofull' in sys.argv: O.fullring = False
    for a_ in sys.argv:
        if a_.startswith('--tla='): O.tla = int(a_[6:])
    for a_ in sys.argv:
        if a_.startswith('--pfg2='): O.pfg2 = int(a_[7:])
    if '--itstamp' in sys.argv: O.itstamp = True
    if '--nowsp' in sys.argv: O.wsp_pf = False
    for a_ in sys.argv:
        if a_.startswith('--poll='): O.poll_i = int(a_[7:])
        if a_.startswith('--sig='): O.sig_i = int(a_[6:])
    if '--full' in sys.argv: O.fullring = True; O.tla = 6
    if '--nofuse' in sys.argv: O.fuse = False
    if '--nosc1' in sys.argv: O.usc1 = False
    main(sys.argv[1], [k1, k34] if O.fuse else [k1, k3, k4])
```

```python
import sys, struct
from asmlib import *
import hazard
NAME = "gated_mix__sliding_local_dilated__mixer_gmlp__prompt"
KA = dict(x=0, wqkv=8, wo=16, bx=24, win=32, wsp=40, bsp=48, wout=56, gw=64, out=72, dbg=80, ws=88)
QP = 504
HGS = 2048*QP
WS_QKVG = 0;          SZ_QKVG = 8*HGS
WS_Z1  = 0x900000;    SZ_Z1 = 2048*768*2
WS_Z2P = 0xC00000;    SZ_Z2P = 2048*768*2
WS_AU  = 0xF00000;    SZ_AU = 2048*1408*2
WS_WP  = 0x1500000;   SZ_WP = 1408*640*2
WS_ST  = 0x1700000;   SZ_ST = 8*2048*16
WS_G   = 0x1740000;   SZ_G = 2048*4
WS_FL  = 0x1750000;   SZ_FL = 32*128
WS_U   = 0x1800000;   SZ_U = 2048*768*2
WS_TS  = 0x2000000
KILL = 0x40000000
C0 = -2.0*0.7978845608028654*1.4426950408889634
C1 = C0*0.044715
def f2u(f): return struct.unpack('<I', struct.pack('<f', f))[0]
class Opt:
    stamp = False; rot = True; wsp_pf = True; la = 5; itstamp = False; pfg = False; pfg2 = 2; fullring = False; tla = 5; poll_i = 38; sig_i = 33; fuse = True; usc1 = True; sleep = 4
O = Opt()

def load_ptr(A, sd, key): A(f"s_load_dwordx2 s[{sd}:{sd+1}], s[0:1], {KA[key]}")
def wave_lane(A, s_w):
    A("v_lshrrev_b32 v1, 6, v0")
    A(f"v_readfirstlane_b32 s{s_w}, v1")
    A("v_and_b32 v0, 63, v0")

class Stamps:
    def __init__(self, A, kidx, n0=0): self.A = A; self.n = n0; self.k = kidx
    def __call__(self):
        if not O.stamp: return
        assert self.n < 16
        self.A(f"s_memtime s[{60+2*self.n}:{61+2*self.n}]"); self.n += 1
    def flush(self, s_w, s_ws, vt=250):
        if not O.stamp: return
        A = self.A
        A("s_waitcnt vmcnt(0)")
        A("s_memrealtime s[92:93]")
        A("s_waitcnt lgkmcnt(0)")
        srd(A, 56, s_ws, 0x100000, WS_TS + self.k*0x40000)
        A(f"s_lshl_b32 s54, s2, 2\ns_add_u32 s54, s54, s{s_w}\ns_lshl_b32 s54, s54, 7")
        A("s_mov_b64 exec, 1")
        for i in range(self.n):
            A(f"v_mov_b32 v{vt}, s{60+2*i}\nv_mov_b32 v{vt+1}, {4*i}")
            A(f"buffer_store_dword v{vt}, v{vt+1}, s[56:59], s54 offen")
        A(f"v_mov_b32 v{vt}, s92\nv_mov_b32 v{vt+1}, 124")
        A(f"buffer_store_dword v{vt}, v{vt+1}, s[56:59], s54 offen")
        A("s_mov_b64 exec, -1")


def it_top(A):
    if not O.itstamp: return
    A("s_memtime s[76:77]\ns_waitcnt lgkmcnt(0)")
    for k in range(3): A(f"s_cmp_eq_u32 s26, {k}\ns_cselect_b32 s{80+k}, s76, s{80+k}")
def it_mid(A):
    if O.itstamp: A("s_memtime s[76:77]\ns_waitcnt lgkmcnt(0)\ns_mov_b32 s83, s76")
def it_end(A, va, vb):
    if not O.itstamp: return
    A("s_memtime s[76:77]\ns_waitcnt lgkmcnt(0)\ns_mov_b32 s84, s76")
    srd(A, 56, 32, 0x200000, WS_TS + 7*0x40000)
    A("s_lshl_b32 s54, s2, 2\ns_add_u32 s54, s54, s16\ns_lshl_b32 s54, s54, 7")
    A("s_mov_b64 exec, 1")
    for i in range(11):
        A(f"v_mov_b32 v{va}, s{80+i}\nv_mov_b32 v{vb}, {4*i}")
        A(f"buffer_store_dword v{va}, v{vb}, s[56:59], s54 offen")
    A("s_mov_b64 exec, -1")

def gelu_pk(A, regs, tmp, sC):
    n = len(regs)
    for i, r in enumerate(regs): A(f"v_pk_mul_f32 v[{tmp+2*i}:{tmp+2*i+1}], v[{r}:{r+1}], v[{r}:{r+1}]")
    for i, r in enumerate(regs): A(f"v_pk_fma_f32 v[{tmp+2*i}:{tmp+2*i+1}], v[{tmp+2*i}:{tmp+2*i+1}], s[{sC}:{sC+1}], v[6:7]")
    for i, r in enumerate(regs): A(f"v_pk_mul_f32 v[{tmp+2*i}:{tmp+2*i+1}], v[{tmp+2*i}:{tmp+2*i+1}], v[{r}:{r+1}]")
    for i in range(2*n): A(f"v_exp_f32 v{tmp+i}, v{tmp+i}")
    for i, r in enumerate(regs): A(f"v_pk_add_f32 v[{tmp+2*i}:{tmp+2*i+1}], v[{tmp+2*i}:{tmp+2*i+1}], 1.0 op_sel_hi:[1,0]")
    for i in range(2*n): A(f"v_rcp_f32 v{tmp+i}, v{tmp+i}")
    for i, r in enumerate(regs): A(f"v_pk_mul_f32 v[{r}:{r+1}], v[{r}:{r+1}], v[{tmp+2*i}:{tmp+2*i+1}]")

def k1_geom(typ):
    if typ == 'q':
        return dict(pitchW=3840, PROWS=144, PSLOT=144*128, NPS=3, TSLOT=15360, R=6, TBASE=3*144*128)
    return dict(pitchW=3072, PROWS=128, PSLOT=128*128, NPS=3, TSLOT=16384, R=6, TBASE=3*128*128)

def k1_wsp_prefetch(A, part):
    if part == 0:
        srd(A, 4, 52, 2048*2048*2)
        A("s_and_b32 s40, s2, 7\ns_lshr_b32 s40, s40, 1\ns_lshl_b32 s40, s40, 14")
        A("s_lshr_b32 s41, s2, 3\ns_and_b32 s41, s41, 15\ns_lshl_b32 s41, s41, 10\ns_add_u32 s40, s40, s41")
        A("s_sub_u32 s41, s16, 4\ns_lshl_b32 s41, s41, 8\ns_add_u32 s40, s40, s41")
        A("s_lshl_b32 s40, s40, 7")
        A("v_lshlrev_b32 v249, 7, v0")
    else:
        A("s_add_u32 s40, s40, 8192")
    A(f"buffer_load_dword v{250 + (part & 1)}, v249, s[4:7], s40 offen")

def pf_setup(A):
    A("s_cmp_lt_u32 s21, 2\ns_cselect_b32 s84, s30, s34\ns_cselect_b32 s85, s31, s35")
    A(f"s_mov_b32 s86, {640*1920*2}\ns_cselect_b32 s86, {2048*640*2}, s86")
    A("s_cmp_eq_u32 s21, 3\ns_cselect_b32 s84, s36, s84\ns_cselect_b32 s85, s37, s85")
    A(f"s_cselect_b32 s86, {640*1536*2}, s86\ns_mov_b32 s87, 0x20000")
    A("s_lshr_b32 s88, s2, 3\ns_and_b32 s89, s2, 7\ns_lshr_b32 s90, s89, 1\ns_and_b32 s89, s89, 1")
    A("s_lshl_b32 s91, s89, 10\ns_lshl_b32 s92, s88, 5\ns_add_u32 s91, s91, s92\ns_lshl_b32 s92, s21, 4\ns_add_u32 s91, s91, s92")
    A("v_lshrrev_b32 v20, 2, v0\nv_add_u32 v20, s91, v20\nv_mul_u32_u24 v20, 1280, v20\nv_and_b32 v21, 3, v0\nv_lshl_add_u32 v20, v21, 7, v20\nv_add_u32 v20, 384, v20")
    A("v_mul_u32_u24 v21, 57, v0\nv_lshrrev_b32 v21, 9, v21\nv_mul_u32_u24 v22, 9, v21\nv_sub_u32 v22, v0, v22")
    A("s_mul_i32 s91, s88, 7\ns_add_u32 s91, s91, 192\nv_add_u32 v21, s91, v21\nv_mul_u32_u24 v21, 3840, v21")
    A("v_mul_u32_u24 v23, 171, v22\nv_lshrrev_b32 v23, 9, v23\nv_mul_u32_u24 v25, 3, v23\nv_sub_u32 v22, v22, v25")
    A("s_lshl_b32 s91, s90, 2\ns_lshr_b32 s91, 0x7520, s91\ns_and_b32 s91, s91, 15")
    A("v_add_u32 v22, s91, v22\nv_lshlrev_b32 v22, 7, v22\nv_mul_u32_u24 v23, 1280, v23\nv_add3_u32 v21, v21, v22, v23")
    A(f"v_mov_b32 v25, {KILL}\nv_cmp_le_u32 vcc, 63, v0\nv_cndmask_b32 v21, v21, v25, vcc")
    A("v_mul_u32_u24 v22, 43, v0\nv_lshrrev_b32 v22, 8, v22\nv_mul_u32_u24 v23, 6, v22\nv_sub_u32 v23, v0, v23")
    A("s_mul_i32 s91, s88, 7\ns_add_u32 s91, s91, 192\nv_add_u32 v22, s91, v22\nv_mul_u32_u24 v22, 3072, v22")
    A("v_mul_u32_u24 v26, 171, v23\nv_lshrrev_b32 v26, 9, v26\nv_mul_u32_u24 v27, 3, v26\nv_sub_u32 v23, v23, v27")
    A("v_lshlrev_b32 v23, 7, v23\nv_mul_u32_u24 v26, 1536, v26\nv_add3_u32 v22, v22, v23, v26\ns_mul_i32 s91, s90, 384\nv_add_u32 v22, s91, v22")
    A("v_cmp_le_u32 vcc, 42, v0\nv_cndmask_b32 v22, v22, v25, vcc")
    A("s_cmp_lt_u32 s21, 2\ns_cselect_b64 s[90:91], -1, 0\ns_cselect_b32 s88, 384, 0")
    A("v_cndmask_b32 v24, v21, v20, s[90:91]")
    A(f"s_cmp_eq_u32 s21, 2\ns_cselect_b32 s88, {224*3840}, s88")
    A(f"s_cmp_eq_u32 s21, 3\ns_cselect_b32 s88, {224*3072}, s88\ns_cselect_b64 s[90:91], -1, 0")
    A("v_cndmask_b32 v24, v24, v22, s[90:91]")

def pf_group(A, g):
    if g == 0: A("buffer_load_dword v248, v24, s[84:87], 0 offen")
    else: A("buffer_load_dword v248, v24, s[84:87], s88 offen")

def run_loader_schedule(A, issueP, issueT, issued, hooks=None, wsp=False):
    NB = 20; NPS = 3; R = 6
    def wait_for(needs):
        last = -1
        for idx, tg in enumerate(issued):
            if tg in needs: last = idx
        if last < 0: return
        A(f"s_waitcnt vmcnt({min(len(issued) - 1 - last, 63)})")
    TLA = O.tla
    issueP(0, 0); issueP(0, 1); issueT(0); issueT(1)
    issueP(1, 0); issueP(1, 1)
    for t in range(2, TLA): issueT(t)
    if O.fullring: issueP(2, 0); issueP(2, 1)
    if O.pfg:
        pf_setup(A); pf_group(A, 0); issued.append(('F', 0))
    wait_for([('P', 0), ('T', 0)])
    A("s_barrier")
    if not O.fullring: issueP(2, 0)
    for b in range(NB):
        needs = []
        if b + 1 < NB: needs = [('T', b+1), ('P', (b+1)//2)]
        if needs: wait_for(needs)
        A("s_barrier")
        if b + TLA < NB: issueT(b + TLA)
        if b == 0 and not O.fullring: issueP(2, 1)
        if b % 2 == 1:
            s = (b - 1)//2 + NPS
            if s < NB//2: issueP(s, 0)
        elif b >= 2:
            s = (b - 2)//2 + NPS
            if s < NB//2: issueP(s, 1)
        if O.pfg and b == O.pfg2: pf_group(A, 1); issued.append(('F', 1))
        if hooks and b in hooks: hooks[b](issued)
        if wsp and O.wsp_pf and b in (14, 15, 16, 17): k1_wsp_prefetch(A, b - 14); issued.append(('W', b))
    A("s_barrier")

def rot_stage(A, s, dst):
    A(f"s_add_u32 s{dst}, s28, {s}\ns_cmp_ge_u32 s{dst}, 10\ns_cselect_b32 s29, 10, 0\ns_sub_u32 s{dst}, s{dst}, s29")
def rot_beat(A, b, dst):
    A(f"s_lshl_b32 s{dst}, s28, 1\ns_add_u32 s{dst}, s{dst}, {b}\ns_cmp_ge_u32 s{dst}, 20\ns_cselect_b32 s29, 20, 0\ns_sub_u32 s{dst}, s{dst}, s29")

def k1_loader_z(A):
    G = k1_geom('z'); pitchW = G['pitchW']; PSLOT = G['PSLOT']; TSLOT = G['TSLOT']; TBASE = G['TBASE']
    lw = 21
    A(f"s_sub_u32 s{lw}, s16, 4")
    A("v_lshrrev_b32 v7, 3, v0\nv_and_b32 v2, 7, v0\nv_xor_b32 v2, v2, v7\nv_mul_u32_u24 v7, 1280, v7\nv_lshl_add_u32 v2, v2, 4, v7")
    A("v_lshrrev_b32 v4, 4, v0")
    A(f"s_and_b32 s20, s{lw}, 1\ns_lshl_b32 s20, s20, 2")
    A("v_add_u32 v5, s20, v4\nv_lshlrev_b32 v5, 1, v5\nv_and_b32 v6, 15, v0\nv_xor_b32 v6, v6, v5")
    A(f"v_mul_u32_u24 v4, {pitchW}, v4\nv_lshl_add_u32 v3, v6, 4, v4")
    A(f"v_cmp_le_u32 vcc, 12, v6\nv_mov_b32 v5, {KILL}\nv_cndmask_b32 v3, v3, v5, vcc")
    nP = 2; half_rows = 64
    A(f"s_mul_i32 s20, s{lw}, {nP*8*1280}\ns_add_u32 s22, s17, s20")
    A(f"s_mul_i32 s23, s{lw}, {nP*1024}")
    A(f"s_mul_i32 s20, s{lw}, {8*pitchW}\ns_add_u32 s24, s18, s20\ns_add_u32 s25, s19, s20")
    A(f"s_lshl_b32 s26, s{lw}, 11\ns_add_u32 s26, s26, {TBASE}")
    issued = []
    def issueP(s, h2):
        slot = s % 3
        rot_stage(A, s, 27)
        A("s_lshl_b32 s27, s27, 7\ns_add_u32 s27, s27, s22")
        A(f"s_add_u32 m0, s23, {slot*PSLOT + h2*half_rows*128}")
        for i in range(nP):
            A(f"s_add_u32 s20, s27, {h2*half_rows*1280 + i*(8*1280 - 1024)}")
            A(f"buffer_load_dwordx4 v2, s[4:7], s20 offen offset:{i*1024} lds")
            issued.append(('P', s))
    def issueT(b):
        slot = b % 6
        rot_beat(A, b, 27)
        A(f"s_mul_i32 s27, s27, {32*pitchW}")
        for u, sb in enumerate([24, 25]):
            A(f"s_add_u32 m0, s26, {slot*TSLOT + u*8192}")
            A(f"s_add_u32 s29, s27, s{sb}")
            for i in range(2):
                A(f"s_add_u32 s20, s29, {i*(4*pitchW - 1024)}")
                A(f"buffer_load_dwordx4 v3, s[8:11], s20 offen offset:{i*1024} lds")
                issued.append(('T', b))
    def gate_load(issued):
        srd(A, 12, 38, 640*2)
        A("v_lshlrev_b32 v10, 2, v0")
        for i in range(5): A(f"buffer_load_dword v{40+i}, v10, s[12:15], 0 offen offset:{256*i}")
        A("s_lshl_b32 s58, s48, 7\ns_lshl_b32 s59, s49, 4\ns_add_u32 s58, s58, s59\ns_lshl_b32 s59, s21, 2\ns_add_u32 s58, s58, s59")
        A("s_mul_i32 s59, s58, 1280")
        for r in range(4):
            A(f"s_add_u32 s57, s59, {r*1280}")
            for i in range(5): A(f"buffer_load_dword v{48+5*r+i}, v10, s[4:7], s57 offen offset:{256*i}")
        issued.extend([('G', 0)]*25)
    def gate_finish(issued):
        last = max(i for i, t in enumerate(issued) if t == ('G', 0))
        A(f"s_waitcnt vmcnt({len(issued) - 1 - last})")
        for r in range(4):
            A(f"v_mov_b32 v{70+r}, 0")
            for i in range(5): A(f"v_dot2_f32_bf16 v{70+r}, v{48+5*r+i}, v{40+i}, v{70+r}")
        for ctl in ("row_shr:1 row_mask:0xf bank_mask:0xf bound_ctrl:0", "row_shr:2 row_mask:0xf bank_mask:0xf bound_ctrl:0", "row_shr:4 row_mask:0xf bank_mask:0xf bound_ctrl:0",
                    "row_shr:8 row_mask:0xf bank_mask:0xf bound_ctrl:0", "row_bcast:15 row_mask:0xa bank_mask:0xf", "row_bcast:31 row_mask:0xc bank_mask:0xf"):
            for r in range(4): A(f"v_add_f32_dpp v{70+r}, v{70+r}, v{70+r} {ctl}")
        for r in range(4): A(f"v_mul_f32 v{70+r}, {f2u(-1.4426950408889634)}, v{70+r}")
        for r in range(4): A(f"v_exp_f32 v{70+r}, v{70+r}")
        for r in range(4): A(f"v_add_f32 v{70+r}, 1.0, v{70+r}")
        for r in range(4): A(f"v_rcp_f32 v{70+r}, v{70+r}")
        srd(A, 12, 32, SZ_G, WS_G)
        A("s_lshl_b32 s58, s58, 2\nv_mov_b32 v10, 0")
        A("s_mov_b32 s42, 0\ns_mov_b32 s43, 0x80000000\ns_mov_b64 exec, s[42:43]")
        for r in range(4): A(f"buffer_store_dword v{70+r}, v10, s[12:15], s58 offen offset:{4*r}")
        A("s_mov_b64 exec, -1")
        issued.extend([('S', 0)]*4)
    def oldtags(issued):
        z_r32(A, 42); z_oldtags(A, 42); issued.extend([('O', 0)]*9)
    def late_loads(issued):
        gate_load(issued)
        k1_pack_load(A); issued.extend([('K', 0)]*6)
    run_loader_schedule(A, issueP, issueT, issued, {0: oldtags, 14: late_loads, 17: gate_finish})

def k1_loader_q(A, last):
    G = k1_geom('q'); PSLOT = G['PSLOT']; TSLOT = G['TSLOT']; TBASE = G['TBASE']
    nP = 3 if last else 2
    nTi = 3 if last else 4
    A("s_sub_u32 s21, s16, 4")
    A("v_lshrrev_b32 v7, 3, v0\nv_and_b32 v6, 7, v0\nv_xor_b32 v6, v6, v7")
    A("s_lshl_b32 s20, s48, 7\ns_sub_u32 s20, s20, 16\ns_lshl_b32 s22, s21, 4\ns_add_u32 s20, s20, s22")
    A("v_add_u32 v7, s20, v7")
    A("v_mov_b32 v12, v7")
    A("s_mov_b32 s20, 1280\nv_mul_lo_u32 v7, v7, s20\nv_lshl_add_u32 v2, v6, 4, v7")
    for h2 in range(2):
        for i in range(nP):
            if h2 == 0 and i == 0: continue
            A(f"v_add_u32 v{2 + h2*3 + i}, {(72*h2 + 8*i)*1280}, v2")
    A(f"v_mov_b32 v13, {KILL}")
    for i in range(2):
        A(f"v_add_u32 v14, {8*i}, v12\nv_cmp_gt_i32 vcc, 0, v14\nv_cndmask_b32 v{2+i}, v{2+i}, v13, vcc")
    A("s_lshl_b32 s20, s21, 8")
    for i in range(nTi):
        d = 8 + i
        A(f"v_add_u32 v12, s20, v0\nv_add_u32 v12, {64*i}, v12")
        A("v_mul_u32_u24 v13, 2185, v12\nv_lshrrev_b32 v13, 16, v13")
        A("v_mul_u32_u24 v14, 30, v13\nv_sub_u32 v14, v12, v14")
        A("v_and_b32 v15, 0x13, v13\nv_and_b32 v16, 4, v13\nv_lshl_or_b32 v15, v16, 1, v15\nv_and_b32 v16, 8, v13\nv_lshrrev_b32 v16, 1, v16\nv_or_b32 v15, v15, v16")
        A("v_mul_u32_u24 v16, 205, v14\nv_lshrrev_b32 v16, 11, v16")
        A("v_mul_u32_u24 v17, 10, v16\nv_sub_u32 v14, v14, v17")
        A("v_mul_u32_u24 v15, 3840, v15\nv_mul_u32_u24 v16, 1280, v16\nv_lshlrev_b32 v14, 4, v14")
        A(f"v_add3_u32 v{d}, v15, v16, v14")
    A("s_mul_i32 s24, s49, 160")
    A("s_lshl_b32 s23, s21, 11")
    A(f"s_lshl_b32 s26, s21, 12\ns_add_u32 s26, s26, {TBASE}")
    issued = []
    def issueP(s, h2):
        slot = s % 3
        rot_stage(A, s, 27)
        A("s_lshl_b32 s27, s27, 7")
        A(f"s_add_u32 m0, s23, {slot*PSLOT + h2*72*128}")
        for i in range(nP):
            if i: A("s_add_u32 m0, m0, 1024\ns_nop 0")
            A(f"buffer_load_dwordx4 v{2 + h2*3 + i}, s[4:7], s27 offen lds")
            issued.append(('P', s))
    def issueT(b):
        slot = b % 6
        rot_beat(A, b, 27)
        A(f"s_mul_i32 s27, s27, {32*3840}\ns_add_u32 s27, s27, s24")
        A(f"s_add_u32 m0, s26, {slot*TSLOT}")
        for i in range(nTi):
            if i: A("s_add_u32 m0, m0, 1024\ns_nop 0")
            A(f"buffer_load_dwordx4 v{8 + i}, s[8:11], s27 offen lds")
            issued.append(('T', b))
    run_loader_schedule(A, issueP, issueT, issued, None, True)


OT = 212
def z_oldtags(A, r32_sreg):
    srd(A, 12, 32, SZ_ST, WS_ST)
    A(f"s_lshl_b32 s40, s48, 11\ns_lshl_b32 s41, s{r32_sreg}, 9\ns_add_u32 s40, s40, s41\ns_add_u32 s40, s40, 8")
    A("v_and_b32 v221, 31, v0\nv_lshlrev_b32 v221, 4, v221")
    for jj in range(8):
        A(f"s_add_u32 s41, s40, {jj*32768}")
        A(f"buffer_load_dword v{OT+jj}, v221, s[12:15], s41 offen sc1")
    A("s_lshl_b32 s41, s49, 15\ns_add_u32 s41, s41, s40")
    A(f"buffer_load_dword v{OT+8}, v221, s[12:15], s41 offen sc1")
def z_r32(A, dst):
    A(f"s_and_b32 s{dst}, s16, 1\ns_lshl_b32 s{dst}, s{dst}, 1\ns_lshr_b32 s41, s16, 2\ns_add_u32 s{dst}, s{dst}, s41")

def k1_pack_load(A):
    T = 150
    c, cc, t2, p_, k_, x_ = T+2, T+3, T+4, T+5, T+6, T+7
    A("s_sub_u32 s40, s16, 4\ns_lshl_b32 s40, s40, 6")
    A(f"v_add_u32 v{c}, s40, v0\nv_and_b32 v{cc}, 127, v{c}\nv_lshrrev_b32 v{t2}, 7, v{c}\nv_lshrrev_b32 v{p_}, 1, v{cc}")
    A(f"v_and_b32 v{k_}, 0x33, v{p_}\nv_and_b32 v{x_}, 4, v{p_}\nv_lshl_or_b32 v{k_}, v{x_}, 1, v{k_}")
    A(f"v_and_b32 v{x_}, 8, v{p_}\nv_lshrrev_b32 v{x_}, 1, v{x_}\nv_or_b32 v{k_}, v{k_}, v{x_}")
    A(f"v_mul_u32_u24 v{k_}, 1280, v{k_}\nv_and_b32 v{x_}, 1, v{cc}\nv_lshl_add_u32 v{k_}, v{x_}, 4, v{k_}\nv_lshl_add_u32 v{k_}, v{t2}, 5, v{k_}")
    A(f"v_lshlrev_b32 v252, 4, v{cc}\nv_lshl_add_u32 v252, v{t2}, 11, v252")
    A(f"v_mov_b32 v{x_}, {KILL}\nv_cmp_eq_u32 vcc, 1, v{t2}\nv_cndmask_b32 v253, v252, v{x_}, vcc\nv_cndmask_b32 v{p_}, v{k_}, v{x_}, vcc")
    A("s_lshl_b32 s54, s48, 3\ns_add_u32 s54, s54, s49")
    for u, D in ((0, 224), (1, 236)):
        A(f"s_add_u32 s55, s54, {128*u}")
        A(f"s_mul_hi_u32 s41, s55, {(2**32 + 21)//22}\ns_mul_i32 s42, s41, 22\ns_sub_u32 s42, s55, s42")
        A("s_cmp_lt_u32 s42, 10\ns_cselect_b32 s12, s44, s46\ns_cselect_b32 s13, s45, s47")
        A(f"s_mov_b32 s14, {768*640*2}\ns_cselect_b32 s14, {640*640*2}, s14\ns_mov_b32 s15, 0x20000")
        A("s_cselect_b32 s43, 0, 10\ns_sub_u32 s43, s42, s43")
        A(f"s_mul_i32 s43, s43, {64*1280}\ns_mul_i32 s40, s41, 160\ns_add_u32 s43, s43, s40")
        A(f"s_cmp_ge_u32 s55, 176\ns_cselect_b32 s40, {KILL}, 0\ns_add_u32 s43, s43, s40")
        A(f"buffer_load_dwordx4 v[{D}:{D+3}], v{k_}, s[12:15], s43 offen")
        A(f"buffer_load_dwordx4 v[{D+4}:{D+7}], v{k_}, s[12:15], s43 offen offset:64")
        A(f"buffer_load_dwordx4 v[{D+8}:{D+11}], v{p_}, s[12:15], s43 offen offset:128")

def k1_pack_store(A):
    srd(A, 12, 32, SZ_WP, WS_WP)
    for u, D in ((0, 224), (1, 236)):
        A(f"s_add_u32 s55, s54, {128*u}")
        A(f"s_mul_i32 s41, s55, {5*2048}\ns_cmp_ge_u32 s55, 176\ns_cselect_b32 s42, {KILL}, 0\ns_add_u32 s41, s41, s42")
        A("s_add_u32 s42, s41, 4096\ns_add_u32 s43, s41, 8192")
        A(f"buffer_store_dwordx4 v[{D}:{D+3}], v252, s[12:15], s41 offen")
        A(f"buffer_store_dwordx4 v[{D+4}:{D+7}], v252, s[12:15], s42 offen")
        A(f"buffer_store_dwordx4 v[{D+8}:{D+11}], v253, s[12:15], s43 offen")

def k1_compute_z(A, st):
    G = k1_geom('z'); PSLOT = G['PSLOT']; NPS = 3; TSLOT = G['TSLOT']; R = 6; TBASE = G['TBASE']
    mP = 4; nT = 6; nA = 3
    bP = 2; bT = 6
    F = [16, 16 + 4*(mP+nT)]
    ACC = 16 + 8*(mP+nT)
    A(f"s_and_b32 s20, s16, 1\ns_lshr_b32 s21, s16, 1\ns_mul_i32 s21, s21, {nA}")
    A("v_and_b32 v14, 15, v0\nv_lshrrev_b32 v15, 4, v0\nv_and_b32 v6, 7, v14\nv_xor_b32 v6, v15, v6\nv_lshlrev_b32 v14, 7, v14\nv_lshl_add_u32 v14, v6, 4, v14")
    A(f"s_mul_i32 s22, s20, {mP*2048}")
    A(f"v_add_u32 v{bP}, s22, v14\nv_xor_b32 v{bP+1}, 64, v{bP}")
    A("v_lshrrev_b32 v14, 2, v0\nv_and_b32 v14, 3, v14\nv_lshl_add_u32 v13, v15, 3, v14\nv_lshlrev_b32 v13, 8, v13")
    A("v_and_b32 v12, 3, v0\nv_lshl_add_u32 v13, v12, 3, v13\nv_and_b32 v12, 1, v15\nv_lshl_add_u32 v14, v12, 2, v14")
    A(f"v_add_u32 v15, {TBASE}, v13")
    for tl in range(nA):
        A(f"s_add_u32 s23, s21, {tl}\nv_xor_b32 v13, s23, v14\nv_lshl_add_u32 v{bT+tl}, v13, 5, v15")
    for tl in range(nA): A(f"v_add_u32 v{bT+nA+tl}, 0x10000, v{bT+tl}")
    for i in range(ACC, ACC + 4*mP*nT): A(f"v_mov_b32 v{i}, 0")
    def fP(s, m): return F[s] + 4*m
    def fT(s, t): return F[s] + 4*(mP + t)
    def acc(m, t): return ACC + 4*(m*nT + t)
    def reads(b):
        s = b & 1; kk = b & 1; ps = (b//2) % NPS; ts = b % R
        r = []
        for m in range(mP):
            f = fP(s, m); off = ps*PSLOT + m*2048
            r.append(f"ds_read_b128 v[{f}:{f+3}], v{bP + kk} offset:{off}")
        for t in range(nT):
            f = fT(s, t); tl = t % nA; u = t // nA
            for h in range(2):
                off = ts*TSLOT + u*8192 + h*1024; hi = off >> 16
                r.append(f"ds_read_b64_tr_b16 v[{f+2*h}:{f+2*h+1}], v{bT + tl + nA*hi} offset:{off & 0xffff}")
        return r
    A("s_barrier")
    for x in reads(0): A(x)
    z_r32(A, 42); z_oldtags(A, 42)
    A("s_waitcnt lgkmcnt(0)")
    st()
    A("s_barrier")
    TAILM = 6
    def beat(b, last=False):
        s = b & 1
        mf = [f"v_mfma_f32_16x16x32_bf16 v[{acc(m,t)}:{acc(m,t)+3}], v[{fT(s,t)}:{fT(s,t)+3}], v[{fP(s,m)}:{fP(s,m)+3}], v[{acc(m,t)}:{acc(m,t)+3}]" for m in range(mP) for t in range(nT)]
        rd = [] if last else reads(b + 1)
        nfront = len(mf) - TAILM
        for i, x in enumerate(mf):
            A(x)
            if rd: A(rd.pop(0))
            if i == nfront - 1:
                assert not rd
                A("s_waitcnt lgkmcnt(0)\ns_barrier")
    L = "K1z_cloop"
    A("s_mov_b32 s26, 0")
    A.label(L)
    A("s_cmp_eq_u32 s26, 0\ns_cbranch_scc1 K1_z_noreg")
    A("s_waitcnt vmcnt(0)")
    A("s_cmp_lg_u32 s26, 2\ns_cbranch_scc1 K1_z_noreg\ns_cmp_lg_u32 s16, 0\ns_cbranch_scc1 K1_z_noreg")
    srd(A, 12, 50, 256)
    A("s_lshl_b32 s22, s48, 4\nv_mov_b32 v14, s22\nv_mov_b32 v15, 1")
    A("s_mov_b64 exec, 1")
    A("buffer_atomic_add v15, v14, s[12:15], 0 offen sc1")
    A("s_mov_b64 exec, -1")
    A.label("K1_z_noreg")
    it_top(A)
    for b in range(6): beat(b)
    A(f"s_add_u32 s26, s26, 1\ns_cmp_lt_u32 s26, 3\ns_cbranch_scc1 {L}")
    it_mid(A)
    beat(18); beat(19, last=True)
    it_end(A, 14, 15)
    if O.itstamp: A("s_lshl_b32 s54, s48, 3\ns_add_u32 s54, s54, s49")
    return acc

def k1_compute_q(A, wm, wn, st):
    G = k1_geom('q'); PSLOT = G['PSLOT']; TSLOT = G['TSLOT']; TBASE = G['TBASE']
    tiles = list(range(0, 8)) if wn == 0 else list(range(8, 15))
    halo = {(0, 0): [5, 6], (1, 0): [7], (0, 1): [8, 9, 10, 11], (1, 1): [12, 13, 14]}[(wm, wn)]
    nT = len(tiles); mP = 5
    F = [16, 16 + 4*(5 + 8)]
    ACC = 16 + 8*(5 + 8)
    A("v_and_b32 v14, 15, v0\nv_lshrrev_b32 v15, 4, v0\nv_and_b32 v6, 7, v14\nv_xor_b32 v6, v15, v6\nv_lshlrev_b32 v14, 7, v14\nv_lshl_add_u32 v2, v6, 4, v14")
    A("v_xor_b32 v3, 64, v2")
    A("v_lshrrev_b32 v6, 1, v15\nv_lshlrev_b32 v6, 4, v6\nv_and_b32 v7, 1, v15\nv_lshl_add_u32 v6, v7, 2, v6")
    A("v_lshrrev_b32 v7, 2, v0\nv_and_b32 v7, 3, v7\nv_add_u32 v6, v6, v7\nv_mul_u32_u24 v6, 480, v6\nv_and_b32 v7, 3, v0\nv_lshl_add_u32 v6, v7, 3, v6")
    A(f"v_add_u32 v4, {TBASE}, v6\nv_add_u32 v5, {TBASE + 3*TSLOT}, v6")
    accs = {}
    n = ACC
    for m in range(4):
        for t in tiles: accs[(m, t)] = n; n += 4
    for t in halo: accs[('h', t)] = n; n += 4
    assert n <= 256, n
    for i in range(ACC, n): A(f"v_mov_b32 v{i}, 0")
    def fP(s, m): return F[s] + 4*m
    def fT(s, t): return F[s] + 4*(5 + tiles.index(t))
    def reads(b):
        s = b & 1; kk = b & 1; ps = (b//2) % 3; ts = b % 6
        r = []
        for m in range(4):
            f = fP(s, m); r.append(f"ds_read_b128 v[{f}:{f+3}], v{2+kk} offset:{ps*PSLOT + (16 + 64*wm + 16*m)*128}")
        f = fP(s, 4); r.append(f"ds_read_b128 v[{f}:{f+3}], v{2+kk} offset:{ps*PSLOT}")
        for t in tiles:
            f = fT(s, t)
            for h in range(2):
                hi = 1 if ts >= 3 else 0
                r.append(f"ds_read_b64_tr_b16 v[{f+2*h}:{f+2*h+1}], v{4+hi} offset:{(ts - 3*hi)*TSLOT + h*8*480 + t*32}")
        return r
    A("s_barrier")
    for x in reads(0): A(x)
    A("s_waitcnt lgkmcnt(0)")
    st()
    A("s_barrier")
    def beat(b, last=False):
        s = b & 1
        mf = []
        for m in range(4):
            for t in tiles:
                a_ = accs[(m, t)]; mf.append(f"v_mfma_f32_16x16x32_bf16 v[{a_}:{a_+3}], v[{fT(s,t)}:{fT(s,t)+3}], v[{fP(s,m)}:{fP(s,m)+3}], v[{a_}:{a_+3}]")
        for t in halo:
            a_ = accs[('h', t)]; mf.append(f"v_mfma_f32_16x16x32_bf16 v[{a_}:{a_+3}], v[{fT(s,t)}:{fT(s,t)+3}], v[{fP(s,4)}:{fP(s,4)+3}], v[{a_}:{a_+3}]")
        rd = [] if last else reads(b + 1)
        nfront = len(mf) - 8
        for i, x in enumerate(mf):
            A(x)
            if rd: A(rd.pop(0))
            if i == nfront - 1:
                assert not rd, (len(rd), nfront)
                A("s_waitcnt lgkmcnt(0)\ns_barrier")
    L = f"K1q{wm}{wn}_cloop"
    A("s_mov_b32 s26, 0")
    A.label(L)
    it_top(A)
    for b in range(6):
        if O.itstamp: A(f"s_memtime s[76:77]\ns_waitcnt lgkmcnt(0)\ns_cmp_eq_u32 s26, 0\ns_cselect_b32 s{85+b}, s76, s{85+b}")
        beat(b)
    A(f"s_add_u32 s26, s26, 1\ns_cmp_lt_u32 s26, 3\ns_cbranch_scc1 {L}")
    it_mid(A)
    beat(18); beat(19, last=True)
    it_end(A, 14, 15)
    st()
    A(f"v_and_b32 v6, 15, v0\nv_mul_u32_u24 v6, {QP}, v6\nv_lshrrev_b32 v7, 4, v0\nv_lshl_add_u32 v6, v7, 3, v6")
    k = 0
    items = list(accs.items())
    for (key, a_) in items:
        A(f"v_cvt_pk_bf16_f32 v{16+2*k}, v{a_}, v{a_+1}\nv_cvt_pk_bf16_f32 v{17+2*k}, v{a_+2}, v{a_+3}")
        k += 1
    A(f"v_add_u32 v7, 0x8000, v6")
    k = 0
    for (key, a_) in items:
        m, t = key
        row = 0 if m == 'h' else 16 + 64*wm + 16*m
        off = row*QP + t*32
        if off < 65536: A(f"ds_write_b64 v6, v[{16+2*k}:{17+2*k}] offset:{off}")
        else: A(f"ds_write_b64 v7, v[{16+2*k}:{17+2*k}] offset:{off - 0x8000}")
        k += 1

def rot_table(A):
    A(f"s_and_b32 s28, s28, 3\ns_lshl_b32 s28, s28, 2\ns_lshr_b32 s28, {0x8530 if O.rot else 0}, s28\ns_and_b32 s28, s28, 15")

def k1(A):
    name = "k1_kernel"
    kernel_begin(A, name)
    A("s_cmp_ge_u32 s2, 256\ns_cbranch_scc1 K1_end")
    load_ptr(A, 30, 'x'); load_ptr(A, 32, 'ws'); load_ptr(A, 34, 'wqkv'); load_ptr(A, 36, 'win')
    load_ptr(A, 38, 'gw'); load_ptr(A, 44, 'wo'); load_ptr(A, 46, 'wout'); load_ptr(A, 52, 'wsp'); load_ptr(A, 50, 'dbg')
    wave_lane(A, 16)
    st = Stamps(A, 0); st()
    A("s_and_b32 s40, s2, 7\ns_lshr_b32 s41, s2, 3\ns_and_b32 s48, s40, 1\ns_lshl_b32 s48, s48, 3\ns_and_b32 s42, s41, 7\ns_add_u32 s48, s48, s42")
    A("s_lshr_b32 s49, s40, 1\ns_lshl_b32 s49, s49, 1\ns_lshr_b32 s43, s41, 3\ns_and_b32 s43, s43, 1\ns_add_u32 s49, s49, s43")
    A("s_lshl_b32 s28, s43, 1\ns_add_u32 s28, s28, s42")
    rot_table(A)
    A("s_cmp_lt_u32 s41, 16\ns_cbranch_scc1 K1_ztype")
    A("s_waitcnt lgkmcnt(0)")
    A("s_cmp_lt_u32 s16, 4\ns_cbranch_scc1 K1_qcomp")
    srd(A, 4, 30, 2048*640*2); srd(A, 8, 34, 640*1920*2)
    A("s_cmp_eq_u32 s16, 7\ns_cbranch_scc1 K1_qload3")
    k1_loader_q(A, False)
    A("s_branch K1_att")
    A.label("K1_qload3")
    k1_loader_q(A, True)
    A("s_branch K1_att")
    A.label("K1_qcomp")
    st()
    srd(A, 12, 32, SZ_FL, WS_FL)
    A("s_lshl_b32 s20, s48, 3\ns_add_u32 s20, s20, s49\ns_lshl_b32 s20, s20, 5\nv_lshlrev_b32 v14, 2, v0\nv_mov_b32 v15, 0")
    A("s_mov_b64 exec, 0xff")
    A("buffer_store_dword v15, v14, s[12:15], s20 offen")
    A("s_mov_b64 exec, -1")
    A("s_cmp_eq_u32 s16, 1\ns_cbranch_scc1 K1_q10\ns_cmp_eq_u32 s16, 2\ns_cbranch_scc1 K1_q01\ns_cmp_eq_u32 s16, 3\ns_cbranch_scc1 K1_q11")
    for (wm, wn) in ((0, 0), (1, 0), (0, 1), (1, 1)):
        if (wm, wn) != (0, 0): A.label(f"K1_q{wm}{wn}")
        stv = Stamps(A, 0, 2)
        k1_compute_q(A, wm, wn, stv)
        if (wm, wn) != (1, 1): A("s_branch K1_att")
    A.label("K1_att")
    st3 = Stamps(A, 0, 4)
    AV = 100
    A(f"s_and_b32 s46, s16, 3\ns_lshr_b32 s47, s16, 2\ns_mul_i32 s45, s46, 40\ns_mul_i32 s43, s47, {64*QP}\ns_add_u32 s45, s45, s43")
    A("s_or_b32 s43, s48, s47")
    attention_prep(A, AV, 45)
    T = 86
    A(f"s_lshl_b32 s20, s16, 6\nv_add_u32 v{T}, s20, v0")
    for i in range(3):
        c, r, q, la, ga = T+1, T+2, T+3, T+4+2*i, T+5+2*i
        A(f"v_add_u32 v{c}, {512*i}, v{T}")
        A(f"v_mul_u32_u24 v{r}, 6554, v{c}\nv_lshrrev_b32 v{r}, 16, v{r}")
        A(f"v_mul_u32_u24 v{q}, 10, v{r}\nv_sub_u32 v{q}, v{c}, v{q}")
        A(f"v_mul_u32_u24 v{la}, {QP}, v{r}\nv_lshl_add_u32 v{la}, v{q}, 4, v{la}\nv_add_u32 v{la}, {16*QP}, v{la}")
        A(f"s_lshl_b32 s20, s48, 7\nv_add_u32 v{ga}, s20, v{r}\nv_mul_u32_u24 v{ga}, 2816, v{ga}\nv_lshl_add_u32 v{ga}, v{q}, 4, v{ga}")
        A(f"s_mul_i32 s20, s49, 160\nv_add_u32 v{ga}, s20, v{ga}")
        if i == 2:
            A(f"v_mov_b32 v{q}, {KILL}\nv_cmp_le_u32 vcc, 1280, v{c}\nv_cndmask_b32 v{ga}, v{ga}, v{q}, vcc")
            A(f"v_mov_b32 v{q}, 0\nv_cndmask_b32 v{la}, v{la}, v{q}, vcc")
    srd(A, 12, 32, SZ_AU, WS_AU)
    A("s_waitcnt lgkmcnt(0)\ns_barrier")
    st3()
    attention_main(A, AV, 43)
    A("s_waitcnt lgkmcnt(0)\ns_barrier")
    st3()
    D = 16
    for i in range(3):
        A(f"ds_read_b64 v[{D+4*i}:{D+4*i+1}], v{T+4+2*i}\nds_read_b64 v[{D+4*i+2}:{D+4*i+3}], v{T+4+2*i} offset:8")
    A("s_waitcnt lgkmcnt(0)")
    for i in range(3): A(f"buffer_store_dwordx4 v[{D+4*i}:{D+4*i+3}], v{T+5+2*i}, s[12:15], 0 offen")
    if O.stamp:
        A("s_cmp_ge_u32 s16, 4\ns_cbranch_scc1 K1_end")
        A("s_waitcnt vmcnt(0)")
    st3(); st3.flush(16, 32)
    A("s_branch K1_end")
    A.label("K1_ztype")
    A(f"s_mul_i32 s17, s48, {128*1280}")
    A("s_mul_i32 s19, s49, 192\ns_add_u32 s18, s19, 1536")
    A("s_waitcnt lgkmcnt(0)")
    A("s_cmp_lt_u32 s16, 4\ns_cbranch_scc1 K1_zcomp")
    srd(A, 4, 30, 2048*640*2); srd(A, 8, 36, 640*1536*2)
    k1_loader_z(A)
    ACCZ = 96
    A("s_barrier")
    A("s_sub_u32 s20, s16, 4\ns_mul_i32 s20, s20, 12288\nv_lshlrev_b32 v4, 4, v0\nv_add_u32 v4, s20, v4")
    for k in range(12): A(f"ds_read_b128 v[{ACCZ+4*k}:{ACCZ+4*k+3}], v4 offset:{k*1024}")
    A("s_waitcnt lgkmcnt(0)")
    A("s_branch K1_zepi")
    A.label("K1_zcomp")
    st2 = Stamps(A, 0, 1); st2()
    acc = k1_compute_z(A, st2)
    st2()
    A(f"v_mov_b32 v252, {KILL}\nv_mov_b32 v253, {KILL}\ns_mov_b32 s54, 0")
    assert acc(0, 0) == ACCZ
    A("s_mul_i32 s20, s16, 12288\nv_lshlrev_b32 v4, 4, v0\nv_add_u32 v4, s20, v4")
    for k in range(12): A(f"ds_write_b128 v4, v[{acc(2,0)+4*k}:{acc(2,0)+4*k+3}] offset:{k*1024}")
    A("s_waitcnt lgkmcnt(0)\ns_barrier")
    A.label("K1_zepi")
    A("s_and_b32 s20, s16, 1\ns_lshr_b32 s21, s16, 1\ns_and_b32 s21, s21, 1\ns_lshr_b32 s59, s16, 2")
    A("s_lshl_b32 s58, s20, 1\ns_add_u32 s58, s58, s59")
    A(f"s_mov_b32 s56, {f2u(C1)}\ns_mov_b32 s57, {f2u(C1)}")
    A(f"v_mov_b32 v6, {f2u(C0)}\nv_mov_b32 v7, {f2u(C0)}")
    z2 = [acc(m, t) + 2*q for m in range(2) for t in range(3) for q in range(2)]
    z1 = [acc(m, t) + 2*q for m in range(2) for t in range(3, 6) for q in range(2)]
    srd(A, 12, 50, 256)
    A("s_lshl_b32 s22, s48, 4\nv_mov_b32 v8, s22")
    A("buffer_load_dword v9, v8, s[12:15], 0 offen sc1")
    st2()
    gelu_pk(A, z2, 16, 56)
    A("s_waitcnt vmcnt(0)")
    st2()
    S = 70
    for m in range(2):
        vals = [acc(m, t) + r for t in range(3) for r in range(4)]
        A(f"v_pk_add_f32 v[{S+2*m}:{S+2*m+1}], v[{vals[0]}:{vals[1]}], v[{vals[2]}:{vals[3]}]")
        A(f"v_pk_mul_f32 v[{S+4+2*m}:{S+4+2*m+1}], v[{vals[0]}:{vals[1]}], v[{vals[0]}:{vals[1]}]")
        A(f"v_pk_fma_f32 v[{S+4+2*m}:{S+4+2*m+1}], v[{vals[2]}:{vals[3]}], v[{vals[2]}:{vals[3]}], v[{S+4+2*m}:{S+4+2*m+1}]")
        for q in range(2, 6):
            A(f"v_pk_add_f32 v[{S+2*m}:{S+2*m+1}], v[{S+2*m}:{S+2*m+1}], v[{vals[2*q]}:{vals[2*q+1]}]")
            A(f"v_pk_fma_f32 v[{S+4+2*m}:{S+4+2*m+1}], v[{vals[2*q]}:{vals[2*q+1]}], v[{vals[2*q]}:{vals[2*q+1]}], v[{S+4+2*m}:{S+4+2*m+1}]")
    for m in range(2):
        A(f"v_add_f32 v{S+2*m}, v{S+2*m}, v{S+2*m+1}\nv_add_f32 v{S+2*m+1}, v{S+4+2*m}, v{S+4+2*m+1}")
    for i in range(4): A(f"v_mov_b32 v{S+4+i}, v{S+i}")
    for i in range(4): A(f"v_permlane16_swap_b32 v{S+i}, v{S+4+i}")
    for i in range(4): A(f"v_add_f32 v{S+i}, v{S+i}, v{S+4+i}")
    for i in range(4): A(f"v_mov_b32 v{S+4+i}, v{S+i}")
    for i in range(4): A(f"v_permlane32_swap_b32 v{S+i}, v{S+4+i}")
    for i in range(4): A(f"v_add_f32 v{S+i}, v{S+i}, v{S+4+i}")
    A("v_lshrrev_b32 v3, 4, v0")
    A(f"v_and_b32 v5, 16, v0\nv_cmp_ne_u32 vcc, 0, v5\nv_cndmask_b32 v{S}, v{S}, v{S+2}, vcc\nv_cndmask_b32 v{S+1}, v{S+1}, v{S+3}, vcc")
    A("v_lshlrev_b32 v4, 3, v0\ns_lshl_b32 s22, s16, 9\ns_add_u32 s22, s22, 49152\nv_add_u32 v5, s22, v4")
    A(f"ds_write_b64 v5, v[{S}:{S+1}]")
    A("s_waitcnt lgkmcnt(0)\ns_barrier")
    A("v_xor_b32 v5, 1024, v5")
    A(f"ds_read_b64 v[{S+2}:{S+3}], v5")
    srd(A, 8, 32, SZ_ST, WS_ST)
    A("s_lshl_b32 s22, s49, 15\ns_lshl_b32 s23, s48, 11\ns_add_u32 s22, s22, s23\ns_lshl_b32 s23, s58, 9\ns_add_u32 s22, s22, s23")
    A("s_waitcnt lgkmcnt(0)")
    A(f"v_add_f32 v{S}, v{S}, v{S+2}\nv_add_f32 v{S+1}, v{S+1}, v{S+3}")
    st2()
    A("s_cmp_lg_u32 s21, 0\ns_cbranch_scc1 K1_z_nostat")
    A("s_mov_b32 s24, 0")
    A.label("K1_regpoll")
    A("v_readfirstlane_b32 s25, v9\ns_cmp_ge_u32 s25, 8\ns_cbranch_scc1 K1_regok")
    A("buffer_load_dword v9, v8, s[12:15], 0 offen sc1\ns_waitcnt vmcnt(0)")
    A("s_add_u32 s24, s24, 1\ns_cmp_lt_u32 s24, 0x40000\ns_cbranch_scc1 K1_regpoll")
    A.label("K1_regok")
    A(f"v_add_u32 v{S+2}, 1, v{OT+8}\nv_mov_b32 v{S+3}, 0\nv_lshlrev_b32 v4, 4, v0")
    A("v_cmp_gt_u32 vcc, 32, v0\ns_and_saveexec_b64 s[24:25], vcc")
    A(f"buffer_store_dwordx4 v[{S}:{S+3}], v4, s[8:11], s22 offen sc1")
    A("s_mov_b64 exec, s[24:25]")
    A.label("K1_z_nostat")
    st2()
    gelu_pk(A, z1, 16, 56)
    srd(A, 4, 32, SZ_Z1, WS_Z1)
    A("s_lshl_b32 s22, s48, 2\ns_add_u32 s22, s22, s58\ns_mul_i32 s22, s22, 48")
    A("s_mul_i32 s23, s49, 6\ns_add_u32 s22, s22, s23\ns_mul_i32 s23, s21, 3\ns_add_u32 s22, s22, s23\ns_lshl_b32 s26, s22, 10")
    A("v_lshlrev_b32 v11, 4, v0")
    Q = 200
    for t in range(3):
        d = Q + 4*t; a0 = acc(0, 3+t); a1 = acc(1, 3+t)
        A(f"v_cvt_pk_bf16_f32 v{d}, v{a0}, v{a0+1}\nv_cvt_pk_bf16_f32 v{d+1}, v{a0+2}, v{a0+3}\nv_cvt_pk_bf16_f32 v{d+2}, v{a1}, v{a1+1}\nv_cvt_pk_bf16_f32 v{d+3}, v{a1+2}, v{a1+3}")
    st2()
    A("s_lshl_b32 s22, s48, 11\ns_lshl_b32 s23, s58, 9\ns_add_u32 s22, s22, s23")
    A("v_and_b32 v4, 31, v0\nv_lshlrev_b32 v4, 4, v4")
    for jj in range(8): A(f"v_add_u32 v{OT+jj}, 1, v{OT+jj}")
    A("s_mov_b32 s24, 0")
    A.label("K1_poll")
    for jj in range(8):
        A(f"s_add_u32 s23, s22, {jj*32768}")
        A(f"buffer_load_dwordx4 v[{16+4*jj}:{19+4*jj}], v4, s[8:11], s23 offen sc1")
    A("s_waitcnt vmcnt(0)")
    A(f"v_xor_b32 v48, v18, v{OT}")
    for jj in range(1, 8): A(f"v_xor_b32 v49, v{18+4*jj}, v{OT+jj}\nv_or_b32 v48, v48, v49")
    A("v_cmp_ne_u32 vcc, 0, v48")
    A("s_add_u32 s24, s24, 1\ns_nop 3")
    A("s_cbranch_vccz K1_polled")
    A(f"s_sleep {O.sleep}")
    A("s_cmp_lt_u32 s24, 0x10000\ns_cbranch_scc1 K1_poll")
    A.label("K1_polled")
    st2()
    for t in range(3): A(f"buffer_store_dwordx4 v[{Q+4*t}:{Q+4*t+3}], v11, s[4:7], s26 offen offset:{t*1024}")
    A("s_cmp_lt_u32 s16, 4\ns_cbranch_scc1 K1_nopack")
    k1_pack_store(A)
    A("s_branch K1_packed")
    A.label("K1_nopack")
    A.label("K1_packed")
    srd(A, 12, 32, SZ_Z2P, WS_Z2P)
    A("s_lshl_b32 s22, s49, 5\ns_lshl_b32 s23, s48, 1\ns_add_u32 s22, s22, s23\ns_add_u32 s22, s22, s20\ns_mul_i32 s22, s22, 6")
    A("s_mul_i32 s23, s21, 3\ns_add_u32 s22, s22, s23\ns_lshl_b32 s22, s22, 11\ns_lshl_b32 s23, s59, 10\ns_add_u32 s22, s22, s23")
    A("v_and_b32 v6, 15, v0\nv_and_b32 v7, 3, v6\nv_and_b32 v10, 4, v6\nv_lshl_or_b32 v7, v10, 1, v7\nv_and_b32 v10, 8, v6\nv_lshrrev_b32 v10, 1, v10\nv_or_b32 v7, v7, v10")
    A("v_and_b32 v10, 1, v3\nv_lshl_add_u32 v7, v10, 4, v7\nv_lshlrev_b32 v7, 5, v7\nv_lshrrev_b32 v10, 1, v3\nv_lshl_add_u32 v10, v10, 4, v7")
    for jj in range(1, 8): A(f"v_add_f32 v16, v16, v{16+4*jj}\nv_add_f32 v17, v17, v{17+4*jj}")
    A(f"v_mul_f32 v16, {f2u(1/768)}, v16\nv_mul_f32 v17, {f2u(1/768)}, v17")
    A("v_fma_f32 v17, -v16, v16, v17\nv_max_f32 v17, 0, v17")
    A(f"v_add_f32 v17, {f2u(1e-5)}, v17\nv_rsq_f32 v17, v17")
    A("v_mul_f32 v16, v16, v17\nv_sub_f32 v16, 0, v16")
    A("v_and_b32 v5, 15, v0\nv_lshlrev_b32 v5, 2, v5")
    for m in range(2):
        A(f"v_add_u32 v8, {64*m}, v5")
        A(f"ds_bpermute_b32 v{32+2*m}, v8, v17\nds_bpermute_b32 v{33+2*m}, v8, v16")
    A("s_waitcnt lgkmcnt(0)")
    PK = 44
    for m in range(2):
        for t in range(3):
            a_ = acc(m, t)
            for r in range(4): A(f"v_fma_f32 v{a_+r}, v{a_+r}, v{32+2*m}, v{33+2*m}")
    for t in range(3):
        d = PK + 4*t; a0 = acc(0, t); a1 = acc(1, t)
        A(f"v_cvt_pk_bf16_f32 v{d}, v{a0}, v{a0+1}\nv_cvt_pk_bf16_f32 v{d+1}, v{a0+2}, v{a0+3}\nv_cvt_pk_bf16_f32 v{d+2}, v{a1}, v{a1+1}\nv_cvt_pk_bf16_f32 v{d+3}, v{a1+2}, v{a1+3}")
    for t in range(3):
        d = PK + 4*t
        A(f"v_permlane16_swap_b32 v{d}, v{d+2}\nv_permlane16_swap_b32 v{d+1}, v{d+3}")
    for t in range(3):
        A(f"s_add_u32 s23, s22, {t*2048}")
        A(f"buffer_store_dwordx4 v[{PK+4*t}:{PK+4*t+3}], v10, s[12:15], s23 offen")
    if O.stamp:
        A("s_cmp_ge_u32 s16, 4\ns_cbranch_scc1 K1_end")
    st2(); st2.flush(16, 32)
    A.label("K1_end")
    A("s_endpgm")
    return name, 256, 512, 147456, 256

SLOT = 20480
class E2:
    def __init__(self, A, pfx, NT, nsteps, pitchP, wave_m, wave_n, NS=6):
        self.A = A; self.pfx = pfx; self.NT = NT; self.n = nsteps; self.pitchP = pitchP
        self.mP = wave_m; self.nT = wave_n; self.NS = NS
        self.F = [8, 8 + 8*(wave_m + wave_n)]
        self.ACC = 8 + 16*(wave_m + wave_n)
        self.vend = self.ACC + 4*wave_m*wave_n
    def fP(self, s, kk, m): return self.F[s] + 4*(kk*(self.mP+self.nT) + m)
    def fT(self, s, kk, t): return self.F[s] + 4*(kk*(self.mP+self.nT) + self.mP + t)
    def acc(self, m, t): return self.ACC + 4*(m*self.nT + t)
    def loader_setup(self):
        A = self.A
        A("s_sub_u32 s21, s16, 4")
        A("v_lshrrev_b32 v7, 3, v0\nv_and_b32 v2, 7, v0\nv_xor_b32 v2, v2, v7")
        A(f"s_mov_b32 s20, {self.pitchP}\nv_mul_lo_u32 v7, v7, s20\nv_lshl_add_u32 v2, v2, 4, v7\nv_lshlrev_b32 v3, 4, v0")
        A(f"s_mul_i32 s20, s21, {16*self.pitchP}\ns_add_u32 s23, s17, s20")
        A("s_mul_i32 s20, s21, 3072\ns_add_u32 s24, s18, s20\ns_add_u32 s26, s20, 8192\ns_lshl_b32 s27, s21, 11")
        A("s_mov_b32 s28, 0\ns_mov_b32 s29, 0")
        if 2*self.NT < 12:
            A(f"s_mul_i32 s20, s21, 3\ns_cmp_ge_u32 s20, {2*self.NT - 1}\ns_cselect_b32 s28, {KILL}, 0\ns_cmp_ge_u32 s20, {2*self.NT - 2}\ns_cselect_b32 s29, {KILL}, 0")
        A("s_mov_b32 s22, 0")
    def issue(self):
        A = self.A
        A("s_add_u32 m0, s22, s27")
        A(f"s_add_u32 s20, s23, {8*self.pitchP - 1024}")
        A("buffer_load_dwordx4 v2, s[4:7], s23 offen lds")
        A("buffer_load_dwordx4 v2, s[4:7], s20 offen offset:1024 lds")
        A("s_add_u32 m0, s22, s26")
        if 2*self.NT < 12:
            A("s_add_u32 s25, s24, s28\ns_add_u32 s15, s24, s29")
            A("buffer_load_dwordx4 v3, s[8:11], s24 offen lds")
            A("buffer_load_dwordx4 v3, s[8:11], s25 offen offset:1024 lds")
            A("buffer_load_dwordx4 v3, s[8:11], s15 offen offset:2048 lds")
        else:
            A("buffer_load_dwordx4 v3, s[8:11], s24 offen lds")
            A("buffer_load_dwordx4 v3, s[8:11], s24 offen offset:1024 lds")
            A("buffer_load_dwordx4 v3, s[8:11], s24 offen offset:2048 lds")
        A(f"s_add_u32 s23, s23, 128\ns_add_u32 s24, s24, {self.NT*2048}")
        A(f"s_add_u32 s22, s22, {SLOT}\ns_cmp_eq_u32 s22, {self.NS*SLOT}\ns_cselect_b32 s22, 0, s22")
    def loader_main(self, pre_issued):
        A = self.A; NS = self.NS; n = self.n
        for i in range(pre_issued, NS - 1): self.issue()
        A(f"s_waitcnt vmcnt({(NS - 2)*5})")
        A("s_barrier")
        self.issue()
        L = self.pfx + "_lloop"
        A("s_mov_b32 s14, 0")
        A.label(L)
        A(f"s_waitcnt vmcnt({(NS-2)*5})\ns_barrier")
        self.issue()
        A(f"s_add_u32 s14, s14, 1\ns_cmp_lt_u32 s14, {n - NS}\ns_cbranch_scc1 {L}")
        for t in range(NS):
            i = n - NS + t
            rem = max(0, (n - 1) - (i + 1))
            A(f"s_waitcnt vmcnt({rem*5})\ns_barrier")
    def compute_setup(self, s_row, s_tile):
        A = self.A
        A("v_and_b32 v4, 15, v0\nv_lshrrev_b32 v5, 4, v0\nv_and_b32 v6, 7, v4\nv_xor_b32 v5, v5, v6\nv_lshlrev_b32 v4, 7, v4\nv_lshl_add_u32 v4, v5, 4, v4")
        A(f"s_lshl_b32 s20, s{s_row}, 7\nv_add_u32 v2, s20, v4\nv_xor_b32 v3, 64, v2")
        A("v_and_b32 v6, 15, v0\nv_lshlrev_b32 v6, 3, v6\nv_and_b32 v7, 16, v0\nv_lshl_add_u32 v6, v7, 3, v6\nv_and_b32 v7, 32, v0\nv_lshl_add_u32 v6, v7, 4, v6")
        A(f"s_lshl_b32 s20, s{s_tile}, 11\ns_add_u32 s20, s20, 8192\nv_add_u32 v4, s20, v6")
        A(f"v_add_u32 v5, {3*SLOT}, v2\nv_add_u32 v6, {3*SLOT}, v3\nv_add_u32 v7, {3*SLOT}, v4")
        for i in range(self.ACC, self.vend): A(f"v_mov_b32 v{i}, 0")
    def reads(self, step):
        s = step & 1; sl = step % self.NS; hi = 3 if sl >= 3 else 0; so = (sl - hi)*SLOT
        b = 3 if hi else 0
        r = []
        for kk in range(2):
            for m in range(self.mP):
                f = self.fP(s, kk, m); r.append(f"ds_read_b128 v[{f}:{f+3}], v{2+kk+b} offset:{so + m*2048}")
            for t in range(self.nT):
                f = self.fT(s, kk, t)
                for h in range(2): r.append(f"ds_read_b64_tr_b16 v[{f+2*h}:{f+2*h+1}], v{4+b} offset:{so + t*2048 + kk*1024 + h*256}")
        return r
    def step(self, i, last=False):
        A = self.A; s = i & 1
        rd = [] if last else self.reads(i + 1)
        mf = [f"v_mfma_f32_16x16x32_bf16 v[{self.acc(m,t)}:{self.acc(m,t)+3}], v[{self.fT(s,kk,t)}:{self.fT(s,kk,t)+3}], v[{self.fP(s,kk,m)}:{self.fP(s,kk,m)+3}], v[{self.acc(m,t)}:{self.acc(m,t)+3}]"
              for kk in range(2) for m in range(self.mP) for t in range(self.nT)]
        A("s_barrier")
        per = (len(rd) + len(mf) - 1)//len(mf) if rd else 0
        for x in mf:
            for _ in range(per):
                if rd: A(rd.pop(0))
            A(x)
        A("s_waitcnt lgkmcnt(0)")
    def compute(self, st, unroll=False, hooks=None):
        A = self.A; NS = self.NS; n = self.n
        assert NS % 2 == 0
        A("s_barrier")
        for x in self.reads(0): A(x)
        A("s_waitcnt lgkmcnt(0)")
        st()
        if unroll:
            for i in range(n):
                self.step(i, last=(i == n - 1))
                if hooks and i in hooks: hooks[i]()
            return
        nfull = (n - 1)//NS
        L = self.pfx + "_cloop"
        A("s_mov_b32 s19, 0")
        A.label(L)
        for i in range(NS): self.step(i)
        A(f"s_add_u32 s19, s19, 1\ns_cmp_lt_u32 s19, {nfull}\ns_cbranch_scc1 {L}")
        for i in range(nfull*NS, n): self.step(i, last=(i == n - 1))

def tile_map(A):
    A("s_and_b32 s42, s2, 7\ns_lshr_b32 s43, s2, 3\ns_lshr_b32 s40, s42, 1\ns_lshl_b32 s40, s40, 3\ns_and_b32 s44, s43, 7\ns_add_u32 s40, s40, s44")
    A("s_and_b32 s41, s42, 1\ns_lshl_b32 s41, s41, 2\ns_lshr_b32 s44, s43, 3\ns_add_u32 s41, s41, s44")

ATT_LDS = 6*SLOT
def attention_regs(V):
    R = dict(aQ=V+1, aK=V+2, aV=V+3, t0=V+4, t1=V+5, t2=V+6, M20=V+7, M21=V+8, N20=V+9, N21=V+10)
    S = (V + 12 + 3)//4*4
    R.update(S=S, QF=S+12, KF=S+22, VF=S+52, OO=(S+82+3)//4*4)
    return R
def attention_prep(A, V, s_off):
    R = attention_regs(V); aQ, aK, aV, t0, t1, t2 = R['aQ'], R['aK'], R['aV'], R['t0'], R['t1'], R['t2']
    M20, M21, N20, N21, S, OO = R['M20'], R['M21'], R['N20'], R['N21'], R['S'], R['OO']
    A(f"v_lshrrev_b32 v{t0}, 3, v0\nv_lshlrev_b32 v{t0}, 2, v{t0}\nv_and_b32 v{t1}, 3, v0\nv_add_u32 v{t0}, v{t0}, v{t1}")
    A(f"v_lshrrev_b32 v{t1}, 2, v0\nv_and_b32 v{t1}, 1, v{t1}\nv_lshl_add_u32 v{t0}, v{t0}, 1, v{t1}")
    A(f"v_mul_u32_u24 v{t0}, {QP}, v{t0}\nv_add_u32 v{aK}, s{s_off}, v{t0}\nv_add_u32 v{aQ}, {16*QP}, v{aK}")
    A(f"v_lshrrev_b32 v{t1}, 4, v0\nv_lshlrev_b32 v{t1}, 2, v{t1}\nv_and_b32 v{t2}, 3, v0\nv_add_u32 v{t1}, v{t1}, v{t2}")
    A(f"v_lshrrev_b32 v{t2}, 1, v{t1}\nv_lshlrev_b32 v{t2}, 2, v{t2}\nv_and_b32 v{t1}, 1, v{t1}")
    A(f"v_lshrrev_b32 v{aV}, 2, v0\nv_and_b32 v{aV}, 3, v{aV}\nv_add_u32 v{aV}, v{aV}, v{t2}\nv_lshl_add_u32 v{aV}, v{aV}, 1, v{t1}")
    A(f"v_mul_u32_u24 v{aV}, {QP}, v{aV}\nv_add_u32 v{aV}, s{s_off}, v{aV}")
    A(f"v_and_b32 v{t1}, 3, v0")
    A(f"v_mov_b32 v{M20}, 0xffff\nv_mov_b32 v{t2}, -1\nv_cmp_le_u32 vcc, 1, v{t1}\nv_cndmask_b32 v{M20}, v{M20}, v{t2}, vcc")
    A(f"v_mov_b32 v{M21}, 0\nv_mov_b32 v{t2}, 0xffff\nv_cmp_le_u32 vcc, 2, v{t1}\nv_cndmask_b32 v{M21}, v{M21}, v{t2}, vcc")
    A(f"v_mov_b32 v{t2}, -1\nv_cmp_eq_u32 vcc, 3, v{t1}\nv_cndmask_b32 v{M21}, v{M21}, v{t2}, vcc")
    A(f"v_not_b32 v{N20}, v{M20}\nv_not_b32 v{N21}, v{M21}")
    for i in range(12): A(f"v_mov_b32 v{S+i}, 0")
    for i in range(20): A(f"v_mov_b32 v{OO+i}, 0")
    A("s_mov_b32 s22, 0xeeeeeeee\ns_mov_b32 s23, 0xeeeeeeee\ns_mov_b32 s24, 0xcccccccc\ns_mov_b32 s25, 0xcccccccc\ns_mov_b32 s26, 0x88888888\ns_mov_b32 s27, 0x88888888")
def attention_main(A, V, s_bound):
    R = attention_regs(V); aQ, aK, aV, t0, t1, t2 = R['aQ'], R['aK'], R['aV'], R['t0'], R['t1'], R['t2']
    M20, M21, N20, N21, S, QF, KF, VF, OO = R['M20'], R['M21'], R['N20'], R['N21'], R['S'], R['QF'], R['KF'], R['VF'], R['OO']
    for dg in range(5):
        A(f"ds_read_b64 v[{QF+2*dg}:{QF+2*dg+1}], v{aQ} offset:{8*dg}")
        for c in range(3): A(f"ds_read_b64 v[{KF+2*(5*c+dg)}:{KF+2*(5*c+dg)+1}], v{aK} offset:{8*c*QP + 160 + 8*dg}")
    for dg in range(5):
        if dg == 0:
            A("s_waitcnt lgkmcnt(15)")
        rem = 20 - 4*(dg+1)
        A(f"s_waitcnt lgkmcnt({min(rem, 15)})")
        for c in range(3):
            A(f"v_mfma_f32_4x4x4_16b_bf16 v[{S+4*c}:{S+4*c+3}], v[{KF+2*(5*c+dg)}:{KF+2*(5*c+dg)+1}], v[{QF+2*dg}:{QF+2*dg+1}], v[{S+4*c}:{S+4*c+3}]")
    for c in range(3):
        for dg in range(5): A(f"ds_read_b64_tr_b16 v[{VF+2*(5*c+dg)}:{VF+2*(5*c+dg)+1}], v{aV} offset:{8*c*QP + 320 + 8*dg}")
    Lb = A.newlabel("att_nomask")
    A(f"s_cmp_lg_u32 s{s_bound}, 0\ns_cbranch_scc1 {Lb}")
    A(f"v_mov_b32 v{t2}, {f2u(-1e30)}")
    A("v_cmp_gt_u32 vcc, 16, v0")
    for i in range(4): A(f"v_cndmask_b32 v{S+i}, v{S+i}, v{t2}, vcc")
    A("v_cmp_gt_u32 vcc, 8, v0")
    for i in range(4): A(f"v_cndmask_b32 v{S+4+i}, v{S+4+i}, v{t2}, vcc")
    A("s_nop 4")
    A.label(Lb)
    A("s_nop 4")
    for i in range(1, 4): A(f"v_cndmask_b32 v{S+8+i}, v{S+i}, v{S+8+i}, s[{20+2*i}:{21+2*i}]")
    vals = [S+4+i for i in range(8)]
    A(f"v_max3_f32 v{t0}, v{vals[0]}, v{vals[1]}, v{vals[2]}\nv_max3_f32 v{t1}, v{vals[3]}, v{vals[4]}, v{vals[5]}\nv_max3_f32 v{t0}, v{t0}, v{vals[6]}, v{vals[7]}\nv_max_f32 v{t0}, v{t0}, v{t1}")
    SC = (20 ** -0.5) * 1.4426950408889634
    A(f"s_mov_b32 s20, {f2u(SC)}")
    A(f"v_mul_f32 v{t0}, s20, v{t0}")
    for x in vals: A(f"v_fma_f32 v{x}, v{x}, s20, -v{t0}")
    for x in vals: A(f"v_exp_f32 v{x}, v{x}")
    A(f"v_add_f32 v{t0}, v{vals[0]}, v{vals[1]}\nv_add_f32 v{t1}, v{vals[2]}, v{vals[3]}\nv_add_f32 v{t2}, v{vals[4]}, v{vals[5]}\nv_add_f32 v{t0}, v{t0}, v{t1}")
    A(f"v_add_f32 v{t1}, v{vals[6]}, v{vals[7]}\nv_add_f32 v{t0}, v{t0}, v{t2}\nv_add_f32 v{t0}, v{t0}, v{t1}")
    A(f"v_rcp_f32 v{t0}, v{t0}")
    for x in vals: A(f"v_mul_f32 v{x}, v{x}, v{t0}")
    PP = QF
    A(f"v_cvt_pk_bf16_f32 v{PP+2}, v{S+4}, v{S+5}\nv_cvt_pk_bf16_f32 v{PP+3}, v{S+6}, v{S+7}")
    A(f"v_cvt_pk_bf16_f32 v{t1}, v{S+8}, v{S+9}\nv_cvt_pk_bf16_f32 v{t2}, v{S+10}, v{S+11}")
    A(f"v_and_b32 v{PP+4}, v{t1}, v{M20}\nv_and_b32 v{PP+5}, v{t2}, v{M21}\nv_and_b32 v{PP}, v{t1}, v{N20}\nv_and_b32 v{PP+1}, v{t2}, v{N21}")
    A("s_waitcnt lgkmcnt(0)")
    for c in (1, 0, 2):
        for dg in range(5):
            A(f"v_mfma_f32_4x4x4_16b_bf16 v[{OO+4*dg}:{OO+4*dg+3}], v[{VF+2*(5*c+dg)}:{VF+2*(5*c+dg)+1}], v[{PP+2*c}:{PP+2*c+1}], v[{OO+4*dg}:{OO+4*dg+3}]")
    for dg in range(5):
        A(f"v_cvt_pk_bf16_f32 v{KF+2*dg}, v{OO+4*dg}, v{OO+4*dg+1}\nv_cvt_pk_bf16_f32 v{KF+2*dg+1}, v{OO+4*dg+2}, v{OO+4*dg+3}")
    for dg in range(5): A(f"ds_write_b64 v{aQ}, v[{KF+2*dg}:{KF+2*dg+1}] offset:{8*dg}")

def k3(A):
    name = "k3_kernel"
    kernel_begin(A, name)
    A("s_cmp_ge_u32 s2, 256\ns_cbranch_scc1 K3_end")
    load_ptr(A, 30, 'wsp'); load_ptr(A, 32, 'ws'); load_ptr(A, 34, 'bsp')
    wave_lane(A, 16)
    tile_map(A)
    st = Stamps(A, 2); st()
    E = E2(A, "K3", 6, 32, 4096, 2, 3)
    A(f"s_mul_i32 s17, s40, {64*4096}\ns_mul_i32 s18, s41, {32*6*2048}")
    A("s_waitcnt lgkmcnt(0)")
    A("s_cmp_lt_u32 s16, 4\ns_cbranch_scc1 K3_comp")
    srd(A, 4, 30, 2048*2048*2); srd(A, 8, 32, SZ_Z2P, WS_Z2P)
    E.loader_setup()
    E.loader_main(0)
    A("s_branch K3_end")
    A.label("K3_comp")
    A("s_and_b32 s46, s16, 1\ns_lshl_b32 s46, s46, 5\ns_lshr_b32 s47, s16, 1\ns_mul_i32 s47, s47, 3")
    PF = 116
    srd(A, 4, 32, SZ_Z1, WS_Z1); srd(A, 8, 32, SZ_G, WS_G); srd(A, 12, 34, 2048*2)
    A("s_lshl_b32 s43, s40, 6\ns_add_u32 s43, s43, s46")
    A("v_and_b32 v112, 15, v0\nv_add_u32 v112, s43, v112\nv_lshrrev_b32 v113, 4, v0")
    A("s_lshr_b32 s48, s43, 5\ns_mul_i32 s48, s48, 48\ns_mul_i32 s49, s41, 6\ns_add_u32 s48, s48, s49\ns_add_u32 s48, s48, s47\ns_lshl_b32 s48, s48, 10")
    A("v_lshlrev_b32 v114, 4, v0")
    for t in range(3): A(f"buffer_load_dwordx4 v[{PF+4*t}:{PF+4*t+3}], v114, s[4:7], s48 offen offset:{t*1024}")
    A("v_lshlrev_b32 v115, 2, v112")
    A(f"buffer_load_dword v{PF+12}, v115, s[8:11], 0 offen\nbuffer_load_dword v{PF+13}, v115, s[8:11], 0 offen offset:64")
    A("v_lshlrev_b32 v115, 1, v112")
    A(f"buffer_load_ushort v{PF+14}, v115, s[12:15], 0 offen\nbuffer_load_ushort v{PF+15}, v115, s[12:15], 0 offen offset:32")
    E.compute_setup(46, 47)
    st()
    E.compute(st)
    st()
    A("s_waitcnt vmcnt(0)")
    srd(A, 12, 32, SZ_AU, WS_AU)
    for m in range(2): A(f"v_lshlrev_b32 v{PF+14+m}, 16, v{PF+14+m}\nv_sub_f32 v{PF+12+m}, 1.0, v{PF+12+m}")
    T = 132
    for m in range(2):
        for t in range(3):
            ac = E.acc(m, t)
            for q in range(2):
                z = PF + 4*t + 2*m + q
                A(f"v_lshlrev_b32 v{T}, 16, v{z}\nv_and_b32 v{T+1}, 0xffff0000, v{z}")
                A(f"v_add_f32 v{T+2}, v{ac+2*q}, v{PF+14+m}\nv_add_f32 v{T+3}, v{ac+2*q+1}, v{PF+14+m}")
                A(f"v_mul_f32 v{T}, v{T}, v{PF+12+m}\nv_mul_f32 v{T+1}, v{T+1}, v{PF+12+m}")
                A(f"v_mul_f32 v{T+2}, v{T+2}, v{T}\nv_mul_f32 v{T+3}, v{T+3}, v{T+1}")
                A(f"v_cvt_pk_bf16_f32 v{z}, v{T+2}, v{T+3}")
    A("s_mov_b32 s45, 2816\nv_mul_lo_u32 v114, v112, s45\nv_lshl_add_u32 v114, v113, 3, v114")
    A("s_mul_i32 s48, s41, 192\ns_lshl_b32 s49, s47, 5\ns_add_u32 s48, s48, s49\ns_add_u32 s48, s48, 1280\nv_add_u32 v114, s48, v114")
    A(f"s_mov_b32 s49, {16*2816}")
    for m in range(2):
        for t in range(3):
            z = PF + 4*t + 2*m
            A(f"buffer_store_dwordx2 v[{z}:{z+1}], v114, s[12:15], {'s49' if m else '0'} offen offset:{t*32}")
    st(); st.flush(16, 32)
    A.label("K3_end")
    A("s_endpgm")
    return name, 256, 512, 6*SLOT, 140

def k4(A):
    name = "k4_kernel"
    kernel_begin(A, name)
    A("s_cmp_ge_u32 s2, 256\ns_cbranch_scc1 K4_end")
    load_ptr(A, 30, 'out'); load_ptr(A, 32, 'ws')
    wave_lane(A, 16)
    tile_map(A)
    st = Stamps(A, 3); st()
    E = E2(A, "K4", 5, 22, 2816, 1, 5)
    A(f"s_mul_i32 s17, s40, {64*2816}\ns_mul_i32 s18, s41, {22*5*2048}")
    A("s_waitcnt lgkmcnt(0)")
    A("s_cmp_lt_u32 s16, 4\ns_cbranch_scc1 K4_comp")
    srd(A, 4, 32, SZ_AU, WS_AU); srd(A, 8, 32, SZ_WP, WS_WP)
    E.loader_setup()
    E.loader_main(0)
    A("s_branch K4_end")
    A.label("K4_comp")
    A("s_lshl_b32 s46, s16, 4\ns_mov_b32 s47, 0")
    srd(A, 8, 32, SZ_G, WS_G)
    A("s_lshl_b32 s43, s40, 6\ns_add_u32 s43, s43, s46\nv_and_b32 v126, 15, v0\nv_add_u32 v126, s43, v126\nv_lshlrev_b32 v126, 2, v126")
    A("buffer_load_dword v125, v126, s[8:11], 0 offen")
    E.compute_setup(46, 47)
    st()
    def scale():
        A("s_waitcnt vmcnt(0)")
        for t in range(5):
            for r in range(4): A(f"v_mul_f32 v{E.acc(0,t)+r}, v{E.acc(0,t)+r}, v125")
    E.compute(st, unroll=True, hooks={9: scale})
    st()
    A("s_lshl_b32 s43, s40, 6\ns_add_u32 s43, s43, s46\nv_and_b32 v2, 15, v0\nv_add_u32 v2, s43, v2\nv_lshrrev_b32 v3, 4, v0")
    srd(A, 12, 30, 2048*640*2)
    PK = 8
    for t in range(5):
        ac = E.acc(0, t)
        A(f"v_cvt_pk_bf16_f32 v{PK+2*t}, v{ac}, v{ac+1}\nv_cvt_pk_bf16_f32 v{PK+2*t+1}, v{ac+2}, v{ac+3}")
    A("s_mov_b32 s45, 1280\nv_mul_lo_u32 v4, v2, s45\nv_lshl_add_u32 v4, v3, 3, v4\ns_mul_i32 s46, s41, 160\nv_add_u32 v4, s46, v4")
    for t in range(5): A(f"buffer_store_dwordx2 v[{PK+2*t}:{PK+2*t+1}], v4, s[12:15], 0 offen offset:{t*32}")
    st(); st.flush(16, 32)
    A.label("K4_end")
    A("s_endpgm")
    return name, 256, 512, 6*SLOT, 128

def k34(A):
    name = "k34_kernel"
    NS = 6; N1 = 32; N2 = 22; N = N1 + N2
    USTG = NS*SLOT
    LCNT = USTG + 64*208
    kernel_begin(A, name)
    A("s_cmp_ge_u32 s2, 256\ns_cbranch_scc1 K34_end")
    load_ptr(A, 30, 'wsp'); load_ptr(A, 32, 'ws'); load_ptr(A, 34, 'bsp'); load_ptr(A, 36, 'out'); load_ptr(A, 38, 'dbg')
    wave_lane(A, 16)
    tile_map(A)
    st = Stamps(A, 2); st()
    E1 = E2(A, "K34a", 6, N1, 4096, 2, 3)
    A("s_waitcnt lgkmcnt(0)")
    A("s_cmp_lt_u32 s16, 4\ns_cbranch_scc1 K34_comp")
    srd(A, 4, 30, 2048*2048*2); srd(A, 8, 32, SZ_Z2P, WS_Z2P)
    A(f"s_mul_i32 s17, s40, {64*4096}\ns_mul_i32 s18, s41, {32*6*2048}")
    E1.loader_setup()
    A("v_lshrrev_b32 v7, 3, v0\nv_and_b32 v4, 7, v0\nv_xor_b32 v4, v4, v7\nv_mul_u32_u24 v7, 2816, v7\nv_lshl_add_u32 v4, v4, 4, v7")
    A("v_lshrrev_b32 v7, 3, v0\nv_and_b32 v5, 7, v0\nv_xor_b32 v5, v5, v7\nv_mul_u32_u24 v7, 384, v7\nv_lshl_add_u32 v10, v5, 4, v7")
    for i in range(NS - 1): E1.issue()
    A(f"s_waitcnt vmcnt({(NS - 2)*5})\ns_barrier")
    E1.issue()
    A("s_mov_b32 s14, 0")
    A.label("K34_lloop")
    A(f"s_waitcnt vmcnt({(NS-2)*5})\ns_barrier")
    E1.issue()
    A(f"s_add_u32 s14, s14, 1\ns_cmp_lt_u32 s14, {N1 - NS}\ns_cbranch_scc1 K34_lloop")
    srd(A, 4, 32, SZ_AU, WS_AU); srd(A, 8, 32, SZ_WP, WS_WP); srd(A, 12, 32, SZ_FL, WS_FL)
    A(f"s_mul_i32 s17, s40, {64*2816}\ns_mul_i32 s20, s21, {16*2816}\ns_add_u32 s23, s17, s20")
    A(f"s_mul_i32 s18, s41, {22*5*2048}\ns_mul_i32 s20, s21, 3072\ns_add_u32 s24, s18, s20")
    A(f"s_mul_i32 s20, s21, 3\ns_cmp_ge_u32 s20, 9\ns_cselect_b32 s28, {KILL}, 0\ns_cmp_ge_u32 s20, 8\ns_cselect_b32 s29, {KILL}, 0")
    A("s_lshl_b32 s44, s40, 7\nv_and_b32 v8, 7, v0\nv_lshlrev_b32 v8, 2, v8\nv_add_u32 v8, s44, v8")
    srd(A, 48, 32, SZ_U, WS_U)
    A(f"s_mul_i32 s52, s40, {4*24576}\ns_mul_i32 s20, s21, {16*384}\ns_add_u32 s52, s52, s20")
    issued = [('S', s) for s in range(N1 - NS + 2 - 1, N1) for _ in range(5)]
    def issueP(s):
        sl = s % NS; s2_ = s - N1
        fl = " sc1" if (s2_ >= 10 and O.usc1) else ""
        A(f"s_add_u32 m0, s27, {sl*SLOT}")
        if s2_ < 10:
            A(f"s_add_u32 s20, s23, {s2_*128}\ns_add_u32 s25, s23, {s2_*128 + 8*2816 - 1024}")
            A(f"buffer_load_dwordx4 v4, s[4:7], s20 offen lds")
            A(f"buffer_load_dwordx4 v4, s[4:7], s25 offen offset:1024 lds")
        else:
            a_, b_ = divmod(s2_ - 10, 3)
            A(f"s_add_u32 s20, s52, {a_*24576 + b_*128}\ns_add_u32 s25, s52, {a_*24576 + b_*128 + 8*384 - 1024}")
            A(f"buffer_load_dwordx4 v10, s[48:51], s20 offen{fl} lds")
            A(f"buffer_load_dwordx4 v10, s[48:51], s25 offen offset:1024{fl} lds")
        issued.extend([('P', s)]*2)
    def issueT(s):
        sl = s % NS; s2_ = s - N1
        A(f"s_add_u32 m0, s26, {sl*SLOT}")
        A(f"s_add_u32 s20, s24, {s2_*10240}\ns_add_u32 s25, s20, s28\ns_add_u32 s45, s20, s29")
        A("buffer_load_dwordx4 v3, s[8:11], s20 offen lds")
        A("buffer_load_dwordx4 v3, s[8:11], s25 offen offset:1024 lds")
        A("buffer_load_dwordx4 v3, s[8:11], s45 offen offset:2048 lds")
        issued.extend([('T', s)]*3)
    def wait_for(needs):
        last = -1
        for idx, tg in enumerate(issued):
            if tg in needs: last = idx
        if last < 0: return
        A(f"s_waitcnt vmcnt({min(len(issued) - 1 - last, 63)})")
    FIRSTU = N1 + 10
    POLL_I = O.poll_i
    deferred = []
    gate_open = False
    for i in range(N1 - NS, N):
        nxt = i + 1
        if nxt < N:
            wait_for([('S', nxt), ('P', nxt), ('T', nxt)])
        A("s_barrier")
        if i == POLL_I + 1:
            wait_for([('X', 0)])
            A("v_cmp_ne_u32 vcc, 1, v9\ns_nop 4")
            A("s_cbranch_vccz K34_ready")
            A("s_mov_b32 s47, 0")
            A.label("K34_poll")
            A(f"s_sleep {O.sleep}")
            A("buffer_load_dword v9, v8, s[12:15], 0 offen sc1")
            A("s_waitcnt vmcnt(0)")
            A("v_cmp_ne_u32 vcc, 1, v9")
            A("s_add_u32 s47, s47, 1\ns_nop 3")
            A("s_cbranch_vccz K34_ready")
            A("s_cmp_lt_u32 s47, 0x40000\ns_cbranch_scc1 K34_poll")
            A.label("K34_ready")
            gate_open = True
            for s in deferred: issueP(s)
            deferred = []
        s = i + NS
        if s < N:
            issueT(s)
            if s >= FIRSTU and not gate_open: deferred.append(s)
            else: issueP(s)
        if i == POLL_I:
            A("buffer_load_dword v9, v8, s[12:15], 0 offen sc1")
            issued.append(('X', 0))
    assert not deferred
    A("s_branch K34_end")
    A.label("K34_comp")
    A("s_and_b32 s46, s16, 1\ns_lshl_b32 s46, s46, 5\ns_lshr_b32 s47, s16, 1\ns_mul_i32 s47, s47, 3")
    PF = 116
    C1R = 212
    C1R = 140
    C1R = 188
    BB = 132
    COA = 88
    srd(A, 4, 32, SZ_Z1, WS_Z1); srd(A, 8, 32, SZ_G, WS_G); srd(A, 12, 34, 2048*2)
    A("s_lshl_b32 s43, s40, 6\ns_add_u32 s43, s43, s46")
    A("v_and_b32 v112, 15, v0\nv_add_u32 v112, s43, v112\nv_lshrrev_b32 v113, 4, v0")
    A("s_lshr_b32 s48, s43, 5\ns_mul_i32 s48, s48, 48\ns_mul_i32 s49, s41, 6\ns_add_u32 s48, s48, s49\ns_add_u32 s48, s48, s47\ns_lshl_b32 s48, s48, 10")
    A("v_lshlrev_b32 v114, 4, v0")
    for t in range(3): A(f"buffer_load_dwordx4 v[{PF+4*t}:{PF+4*t+3}], v114, s[4:7], s48 offen offset:{t*1024}")
    A("v_lshlrev_b32 v115, 2, v112")
    A(f"buffer_load_dword v{PF+12}, v115, s[8:11], 0 offen\nbuffer_load_dword v{PF+13}, v115, s[8:11], 0 offen offset:64")
    A("v_lshlrev_b32 v115, 1, v112")
    A(f"buffer_load_ushort v{PF+14}, v115, s[12:15], 0 offen\nbuffer_load_ushort v{PF+15}, v115, s[12:15], 0 offen offset:32")
    A("s_lshl_b32 s50, s40, 6\ns_lshl_b32 s51, s16, 4\ns_add_u32 s50, s50, s51\nv_and_b32 v137, 15, v0\nv_add_u32 v137, s50, v137\nv_lshlrev_b32 v138, 2, v137")
    A("buffer_load_dword v136, v138, s[8:11], 0 offen")
    A(f"s_mov_b32 s53, {USTG}")
    A(f"v_mov_b32 v138, {LCNT}\nv_mov_b32 v139, 0\nds_write_b32 v138, v139")
    E1.compute_setup(46, 47)
    E2b = E2(A, "K34b", 5, N2, 2816, 1, 5)
    E2b.F = [140, 188]; E2b.ACC = 236; E2b.vend = 256
    st()
    A("s_barrier")
    for x in E1.reads(0): A(x)
    A("s_waitcnt vmcnt(0)")
    for m in range(2):
        A(f"v_lshlrev_b32 v{BB+2*m}, 16, v{PF+14+m}\nv_mov_b32 v{BB+2*m+1}, v{BB+2*m}\nv_sub_f32 v{PF+12+m}, 1.0, v{PF+12+m}")
    for m in range(2):
        for t in range(3):
            c = C1R + 4*(3*m + t)
            for q in range(2):
                z = PF + 4*t + 2*m + q
                A(f"v_lshlrev_b32 v{c+2*q}, 16, v{z}\nv_and_b32 v{c+2*q+1}, 0xffff0000, v{z}")
    for m in range(2):
        for t in range(3):
            c = C1R + 4*(3*m + t)
            for r in range(4): A(f"v_mul_f32 v{c+r}, v{c+r}, v{PF+12+m}")
    A("s_waitcnt lgkmcnt(0)")
    st()
    A("s_mov_b32 s19, 0")
    A.label("K34_cloop")
    for i in range(NS): E1.step(i)
    A(f"s_add_u32 s19, s19, 1\ns_cmp_lt_u32 s19, 5\ns_cbranch_scc1 K34_cloop")
    E1.step(30)
    A("v_and_b32 v4, 15, v0\nv_lshrrev_b32 v5, 4, v0\nv_and_b32 v6, 7, v4\nv_xor_b32 v5, v5, v6\nv_lshlrev_b32 v4, 7, v4\nv_lshl_add_u32 v4, v5, 4, v4")
    A("s_lshl_b32 s20, s16, 11\nv_add_u32 v2, s20, v4\nv_xor_b32 v3, 64, v2")
    A("v_and_b32 v6, 15, v0\nv_lshlrev_b32 v6, 3, v6\nv_and_b32 v7, 16, v0\nv_lshl_add_u32 v6, v7, 3, v6\nv_and_b32 v7, 32, v0\nv_lshl_add_u32 v6, v7, 4, v6")
    A("v_add_u32 v4, 8192, v6")
    A(f"v_add_u32 v5, {3*SLOT}, v2\nv_add_u32 v6, {3*SLOT}, v3\nv_add_u32 v7, {3*SLOT}, v4")
    for i in range(236, 256): A(f"v_mov_b32 v{i}, 0")
    def mixed_step(Ecur, icur, Enext, inext):
        s = icur & 1
        rd = Enext.reads(inext) if Enext else []
        mf = [f"v_mfma_f32_16x16x32_bf16 v[{Ecur.acc(m,t)}:{Ecur.acc(m,t)+3}], v[{Ecur.fT(s,kk,t)}:{Ecur.fT(s,kk,t)+3}], v[{Ecur.fP(s,kk,m)}:{Ecur.fP(s,kk,m)+3}], v[{Ecur.acc(m,t)}:{Ecur.acc(m,t)+3}]"
              for kk in range(2) for m in range(Ecur.mP) for t in range(Ecur.nT)]
        A("s_barrier")
        per = (len(rd) + len(mf) - 1)//len(mf) if rd else 0
        for x in mf:
            for _ in range(per):
                if rd: A(rd.pop(0))
            A(x)
        A("s_waitcnt lgkmcnt(0)")
    mixed_step(E1, 31, E2b, 32)
    st()
    for m in range(2):
        for t in range(3):
            ac = E1.acc(m, t); c = C1R + 4*(3*m + t)
            for q in range(2):
                A(f"v_pk_add_f32 v[{ac+2*q}:{ac+2*q+1}], v[{ac+2*q}:{ac+2*q+1}], v[{PF+14+m-(PF+14+m)%2 if False else BB+2*m}:{BB+2*m+1}]")
    for m in range(2):
        for t in range(3):
            ac = E1.acc(m, t); c = C1R + 4*(3*m + t)
            for q in range(2):
                A(f"v_pk_mul_f32 v[{ac+2*q}:{ac+2*q+1}], v[{ac+2*q}:{ac+2*q+1}], v[{c+2*q}:{c+2*q+1}]")
    for m in range(2):
        for t in range(3):
            ac = E1.acc(m, t); z = PF + 4*t + 2*m
            A(f"v_cvt_pk_bf16_f32 v{z}, v{ac}, v{ac+1}\nv_cvt_pk_bf16_f32 v{z+1}, v{ac+2}, v{ac+3}")
    A("v_and_b32 v114, 15, v0\nv_add_u32 v114, s46, v114\nv_mul_u32_u24 v114, 208, v114\nv_lshl_add_u32 v114, v113, 3, v114")
    A(f"s_lshl_b32 s48, s47, 5\ns_add_u32 s48, s48, {USTG}\nv_add_u32 v114, s48, v114")
    for m in range(2):
        for t in range(3):
            z = PF + 4*t + 2*m
            A(f"ds_write_b64 v114, v[{z}:{z+1}] offset:{m*16*208 + t*32}")
    A("s_mul_i32 s20, s16, 192\nv_add_u32 v138, s20, v0")
    for q in range(3):
        A(f"v_add_u32 v139, {64*q}, v138\nv_mul_u32_u24 v114, 5462, v139\nv_lshrrev_b32 v114, 16, v114")
        A(f"v_mul_u32_u24 v115, 12, v114\nv_sub_u32 v115, v139, v115\nv_lshlrev_b32 v115, 4, v115")
        A(f"v_mul_u32_u24 v139, 208, v114\nv_add3_u32 v{COA+q}, v139, v115, s53\nv_mul_u32_u24 v139, 384, v114\nv_add_u32 v{COA+3+q}, v139, v115")
    A("s_waitcnt lgkmcnt(0)")
    st()
    def signal():
        A("s_waitcnt vmcnt(0)")
        A(f"v_mov_b32 v138, {LCNT}\nv_mov_b32 v139, 1")
        A("s_mov_b64 exec, 1")
        A("ds_add_rtn_u32 v139, v138, v139")
        A("s_waitcnt lgkmcnt(0)")
        A("v_readfirstlane_b32 s20, v139")
        A("s_cmp_lg_u32 s20, 3\ns_cbranch_scc1 K34_nosig")
        srd(A, 12, 32, SZ_FL, WS_FL)
        A("s_lshl_b32 s20, s40, 7\ns_lshl_b32 s21, s41, 2\ns_add_u32 s20, s20, s21\nv_mov_b32 v138, s20\nv_mov_b32 v139, 1")
        A("buffer_store_dword v139, v138, s[12:15], 0 offen sc1")
        A.label("K34_nosig")
        A("s_mov_b64 exec, -1")
    for i in range(N1, N):
        last = (i == N - 1)
        mixed_step(E2b, i, None if last else E2b, i + 1)
        if i == N1:
            srd(A, 12, 32, SZ_U, WS_U)
            for q in range(3): A(f"ds_read_b128 v[{PF+4*q}:{PF+4*q+3}], v{COA+q}")
            A("s_lshl_b32 s48, s40, 2\ns_lshr_b32 s49, s41, 1\ns_add_u32 s48, s48, s49\ns_mul_i32 s48, s48, 24576\ns_and_b32 s49, s41, 1\ns_mul_i32 s49, s49, 192\ns_add_u32 s48, s48, s49")
            A("s_waitcnt lgkmcnt(0)")
            for q in range(3): A(f"buffer_store_dwordx4 v[{PF+4*q}:{PF+4*q+3}], v{COA+3+q}, s[12:15], s48 offen sc1")
        if i in (33, 36, 38, 40, 41, 42, 45, 49): st()
        if i == O.sig_i: signal()
        if i == N1 + 9:
            for t in range(5):
                for r in range(4): A(f"v_mul_f32 v{E2b.acc(0,t)+r}, v{E2b.acc(0,t)+r}, v136")
    st()
    srd(A, 12, 36, 2048*640*2)
    PK = 8
    for t in range(5):
        ac = E2b.acc(0, t)
        A(f"v_cvt_pk_bf16_f32 v{PK+2*t}, v{ac}, v{ac+1}\nv_cvt_pk_bf16_f32 v{PK+2*t+1}, v{ac+2}, v{ac+3}")
    A("v_lshrrev_b32 v3, 4, v0\ns_mov_b32 s45, 1280\nv_mul_lo_u32 v4, v137, s45\nv_lshl_add_u32 v4, v3, 3, v4\ns_mul_i32 s46, s41, 160\nv_add_u32 v4, s46, v4")
    for t in range(5): A(f"buffer_store_dwordx2 v[{PK+2*t}:{PK+2*t+1}], v4, s[12:15], 0 offen offset:{t*32}")
    st(); st.flush(16, 32, 20)
    A.label("K34_end")
    A("s_endpgm")
    return name, 256, 512, NS*SLOT + 64*208 + 64, 256

def main(out, kernels):
    body = Asm(); ks = []
    for f in kernels: ks.append(f(body))
    hdr = [f"; @launch kernel={n} grid=({g},1,1) block=({b},1,1) lds={lds}" for (n, g, b, lds, vg) in ks]
    hdr.append('.amdgcn_target "amdgcn-amd-amdhsa--gfx950"'); hdr.append(".text")
    lines = hazard.fix(body.lines, verbose=True)
    txt = "\n".join(hdr) + "\n" + "\n".join(lines) + "\n" + '.section .rodata,"a"\n'
    for (n, g, b, lds, vg) in ks: txt += kernel_desc(n, 256 if O.stamp else vg, 96)
    open(out, "w").write(txt)
if __name__ == "__main__":
    if '--stamp' in sys.argv: O.stamp = True
    if '--norot' in sys.argv: O.rot = False
    if '--pfg' in sys.argv: O.pfg = True
    if '--nofull' in sys.argv: O.fullring = False
    for a_ in sys.argv:
        if a_.startswith('--tla='): O.tla = int(a_[6:])
    for a_ in sys.argv:
        if a_.startswith('--pfg2='): O.pfg2 = int(a_[7:])
    if '--itstamp' in sys.argv: O.itstamp = True
    if '--nowsp' in sys.argv: O.wsp_pf = False
    for a_ in sys.argv:
        if a_.startswith('--poll='): O.poll_i = int(a_[7:])
        if a_.startswith('--sig='): O.sig_i = int(a_[6:])
    if '--full' in sys.argv: O.fullring = True; O.tla = 6
    if '--nofuse' in sys.argv: O.fuse = False
    if '--nosc1' in sys.argv: O.usc1 = False
    for a_ in sys.argv:
        if a_.startswith('--sleep='): O.sleep = int(a_[8:])
    main(sys.argv[1], [k1, k34] if O.fuse else [k1, k3, k4])
```

```python
import sys, struct
from asmlib import *
import hazard
NAME = "gated_mix__sliding_local_dilated__mixer_gmlp__prompt"
KA = dict(x=0, wqkv=8, wo=16, bx=24, win=32, wsp=40, bsp=48, wout=56, gw=64, out=72, dbg=80, ws=88)
QP = 504
HGS = 2048*QP
WS_QKVG = 0;          SZ_QKVG = 8*HGS
WS_Z1  = 0x900000;    SZ_Z1 = 2048*768*2
WS_Z2P = 0xC00000;    SZ_Z2P = 2048*768*2
WS_AU  = 0xF00000;    SZ_AU = 2048*1408*2
WS_WP  = 0x1500000;   SZ_WP = 1408*640*2
WS_ST  = 0x1700000;   SZ_ST = 8*2048*16
WS_G   = 0x1740000;   SZ_G = 2048*4
WS_EP  = 0x1760000;   SZ_EP = 16*128
WS_FL  = 0x1750000;   SZ_FL = 32*128
WS_U   = 0x1800000;   SZ_U = 2048*768*2
WS_TS  = 0x2000000
KILL = 0x40000000
C0 = -2.0*0.7978845608028654*1.4426950408889634
C1 = C0*0.044715
def f2u(f): return struct.unpack('<I', struct.pack('<f', f))[0]
class Opt:
    stamp = False; rot = True; wsp_pf = True; la = 5; itstamp = False; pfg = False; pfg2 = 2; fullring = False; tla = 4; poll_i = 38; sig_i = 33; fuse = True; usc1 = True; sleep = 4; rottab = 0x8530
O = Opt()

def load_ptr(A, sd, key): A(f"s_load_dwordx2 s[{sd}:{sd+1}], s[0:1], {KA[key]}")
def wave_lane(A, s_w):
    A("v_lshrrev_b32 v1, 6, v0")
    A(f"v_readfirstlane_b32 s{s_w}, v1")
    A("v_and_b32 v0, 63, v0")

class Stamps:
    def __init__(self, A, kidx, n0=0): self.A = A; self.n = n0; self.k = kidx
    def __call__(self):
        if not O.stamp: return
        assert self.n < 16
        self.A(f"s_memtime s[{60+2*self.n}:{61+2*self.n}]"); self.n += 1
    def flush(self, s_w, s_ws, vt=250):
        if not O.stamp: return
        A = self.A
        A("s_waitcnt vmcnt(0)")
        A("s_memrealtime s[92:93]")
        A("s_waitcnt lgkmcnt(0)")
        srd(A, 56, s_ws, 0x100000, WS_TS + self.k*0x40000)
        A(f"s_lshl_b32 s54, s2, 2\ns_add_u32 s54, s54, s{s_w}\ns_lshl_b32 s54, s54, 7")
        A("s_mov_b64 exec, 1")
        for i in range(self.n):
            A(f"v_mov_b32 v{vt}, s{60+2*i}\nv_mov_b32 v{vt+1}, {4*i}")
            A(f"buffer_store_dword v{vt}, v{vt+1}, s[56:59], s54 offen")
        A(f"v_mov_b32 v{vt}, s92\nv_mov_b32 v{vt+1}, 124")
        A(f"buffer_store_dword v{vt}, v{vt+1}, s[56:59], s54 offen")
        A("s_mov_b64 exec, -1")


def it_top(A):
    if not O.itstamp: return
    A("s_memtime s[76:77]\ns_waitcnt lgkmcnt(0)")
    for k in range(3): A(f"s_cmp_eq_u32 s26, {k}\ns_cselect_b32 s{80+k}, s76, s{80+k}")
def it_mid(A):
    if O.itstamp: A("s_memtime s[76:77]\ns_waitcnt lgkmcnt(0)\ns_mov_b32 s83, s76")
def it_end(A, va, vb):
    if not O.itstamp: return
    A("s_memtime s[76:77]\ns_waitcnt lgkmcnt(0)\ns_mov_b32 s84, s76")
    srd(A, 56, 32, 0x200000, WS_TS + 7*0x40000)
    A("s_lshl_b32 s54, s2, 2\ns_add_u32 s54, s54, s16\ns_lshl_b32 s54, s54, 7")
    A("s_mov_b64 exec, 1")
    for i in range(11):
        A(f"v_mov_b32 v{va}, s{80+i}\nv_mov_b32 v{vb}, {4*i}")
        A(f"buffer_store_dword v{va}, v{vb}, s[56:59], s54 offen")
    A("s_mov_b64 exec, -1")

def gelu_pk(A, regs, tmp, sC):
    n = len(regs)
    for i, r in enumerate(regs): A(f"v_pk_mul_f32 v[{tmp+2*i}:{tmp+2*i+1}], v[{r}:{r+1}], v[{r}:{r+1}]")
    for i, r in enumerate(regs): A(f"v_pk_fma_f32 v[{tmp+2*i}:{tmp+2*i+1}], v[{tmp+2*i}:{tmp+2*i+1}], s[{sC}:{sC+1}], v[6:7]")
    for i, r in enumerate(regs): A(f"v_pk_mul_f32 v[{tmp+2*i}:{tmp+2*i+1}], v[{tmp+2*i}:{tmp+2*i+1}], v[{r}:{r+1}]")
    for i in range(2*n): A(f"v_exp_f32 v{tmp+i}, v{tmp+i}")
    for i, r in enumerate(regs): A(f"v_pk_add_f32 v[{tmp+2*i}:{tmp+2*i+1}], v[{tmp+2*i}:{tmp+2*i+1}], 1.0 op_sel_hi:[1,0]")
    for i in range(2*n): A(f"v_rcp_f32 v{tmp+i}, v{tmp+i}")
    for i, r in enumerate(regs): A(f"v_pk_mul_f32 v[{r}:{r+1}], v[{r}:{r+1}], v[{tmp+2*i}:{tmp+2*i+1}]")

def k1_geom(typ):
    if typ == 'q':
        return dict(pitchW=3840, PROWS=144, PSLOT=144*128, NPS=3, TSLOT=15360, R=6, TBASE=3*144*128)
    return dict(pitchW=3072, PROWS=128, PSLOT=128*128, NPS=3, TSLOT=16384, R=6, TBASE=3*128*128)

def k1_wsp_prefetch(A, part):
    if part == 0:
        srd(A, 4, 52, 2048*2048*2)
        A("s_and_b32 s40, s2, 7\ns_lshr_b32 s40, s40, 1\ns_lshl_b32 s40, s40, 14")
        A("s_lshr_b32 s41, s2, 3\ns_and_b32 s41, s41, 15\ns_lshl_b32 s41, s41, 10\ns_add_u32 s40, s40, s41")
        A("s_sub_u32 s41, s16, 4\ns_lshl_b32 s41, s41, 8\ns_add_u32 s40, s40, s41")
        A("s_lshl_b32 s40, s40, 7")
        A("v_lshlrev_b32 v249, 7, v0")
    else:
        A("s_add_u32 s40, s40, 8192")
    A(f"buffer_load_dword v{250 + (part & 1)}, v249, s[4:7], s40 offen")

def pf_setup(A):
    A("s_cmp_lt_u32 s21, 2\ns_cselect_b32 s84, s30, s34\ns_cselect_b32 s85, s31, s35")
    A(f"s_mov_b32 s86, {640*1920*2}\ns_cselect_b32 s86, {2048*640*2}, s86")
    A("s_cmp_eq_u32 s21, 3\ns_cselect_b32 s84, s36, s84\ns_cselect_b32 s85, s37, s85")
    A(f"s_cselect_b32 s86, {640*1536*2}, s86\ns_mov_b32 s87, 0x20000")
    A("s_lshr_b32 s88, s2, 3\ns_and_b32 s89, s2, 7\ns_lshr_b32 s90, s89, 1\ns_and_b32 s89, s89, 1")
    A("s_lshl_b32 s91, s89, 10\ns_lshl_b32 s92, s88, 5\ns_add_u32 s91, s91, s92\ns_lshl_b32 s92, s21, 4\ns_add_u32 s91, s91, s92")
    A("v_lshrrev_b32 v20, 2, v0\nv_add_u32 v20, s91, v20\nv_mul_u32_u24 v20, 1280, v20\nv_and_b32 v21, 3, v0\nv_lshl_add_u32 v20, v21, 7, v20\nv_add_u32 v20, 384, v20")
    A("v_mul_u32_u24 v21, 57, v0\nv_lshrrev_b32 v21, 9, v21\nv_mul_u32_u24 v22, 9, v21\nv_sub_u32 v22, v0, v22")
    A("s_mul_i32 s91, s88, 7\ns_add_u32 s91, s91, 192\nv_add_u32 v21, s91, v21\nv_mul_u32_u24 v21, 3840, v21")
    A("v_mul_u32_u24 v23, 171, v22\nv_lshrrev_b32 v23, 9, v23\nv_mul_u32_u24 v25, 3, v23\nv_sub_u32 v22, v22, v25")
    A("s_lshl_b32 s91, s90, 2\ns_lshr_b32 s91, 0x7520, s91\ns_and_b32 s91, s91, 15")
    A("v_add_u32 v22, s91, v22\nv_lshlrev_b32 v22, 7, v22\nv_mul_u32_u24 v23, 1280, v23\nv_add3_u32 v21, v21, v22, v23")
    A(f"v_mov_b32 v25, {KILL}\nv_cmp_le_u32 vcc, 63, v0\nv_cndmask_b32 v21, v21, v25, vcc")
    A("v_mul_u32_u24 v22, 43, v0\nv_lshrrev_b32 v22, 8, v22\nv_mul_u32_u24 v23, 6, v22\nv_sub_u32 v23, v0, v23")
    A("s_mul_i32 s91, s88, 7\ns_add_u32 s91, s91, 192\nv_add_u32 v22, s91, v22\nv_mul_u32_u24 v22, 3072, v22")
    A("v_mul_u32_u24 v26, 171, v23\nv_lshrrev_b32 v26, 9, v26\nv_mul_u32_u24 v27, 3, v26\nv_sub_u32 v23, v23, v27")
    A("v_lshlrev_b32 v23, 7, v23\nv_mul_u32_u24 v26, 1536, v26\nv_add3_u32 v22, v22, v23, v26\ns_mul_i32 s91, s90, 384\nv_add_u32 v22, s91, v22")
    A("v_cmp_le_u32 vcc, 42, v0\nv_cndmask_b32 v22, v22, v25, vcc")
    A("s_cmp_lt_u32 s21, 2\ns_cselect_b64 s[90:91], -1, 0\ns_cselect_b32 s88, 384, 0")
    A("v_cndmask_b32 v24, v21, v20, s[90:91]")
    A(f"s_cmp_eq_u32 s21, 2\ns_cselect_b32 s88, {224*3840}, s88")
    A(f"s_cmp_eq_u32 s21, 3\ns_cselect_b32 s88, {224*3072}, s88\ns_cselect_b64 s[90:91], -1, 0")
    A("v_cndmask_b32 v24, v24, v22, s[90:91]")

def pf_group(A, g):
    if g == 0: A("buffer_load_dword v248, v24, s[84:87], 0 offen")
    else: A("buffer_load_dword v248, v24, s[84:87], s88 offen")

def run_loader_schedule(A, issueP, issueT, issued, hooks=None, wsp=False):
    NB = 20; NPS = 3; R = 6
    def wait_for(needs):
        last = -1
        for idx, tg in enumerate(issued):
            if tg in needs: last = idx
        if last < 0: return
        A(f"s_waitcnt vmcnt({min(len(issued) - 1 - last, 63)})")
    TLA = O.tla
    issueP(0, 0); issueP(0, 1); issueT(0); issueT(1)
    issueP(1, 0); issueP(1, 1)
    for t in range(2, TLA): issueT(t)
    if O.fullring: issueP(2, 0); issueP(2, 1)
    if O.pfg:
        pf_setup(A); pf_group(A, 0); issued.append(('F', 0))
    wait_for([('P', 0), ('T', 0)])
    A("s_barrier")
    if not O.fullring: issueP(2, 0)
    for b in range(NB):
        needs = []
        if b + 1 < NB: needs = [('T', b+1), ('P', (b+1)//2)]
        if needs: wait_for(needs)
        A("s_barrier")
        if b + TLA < NB: issueT(b + TLA)
        if b == 0 and not O.fullring: issueP(2, 1)
        if b % 2 == 1:
            s = (b - 1)//2 + NPS
            if s < NB//2: issueP(s, 0)
        elif b >= 2:
            s = (b - 2)//2 + NPS
            if s < NB//2: issueP(s, 1)
        if O.pfg and b == O.pfg2: pf_group(A, 1); issued.append(('F', 1))
        if hooks and b in hooks: hooks[b](issued)
        W0 = max(14, 20 - TLA)
        if wsp and O.wsp_pf and W0 <= b < W0 + 4: k1_wsp_prefetch(A, b - W0); issued.append(('W', b))
    A("s_barrier")

def rot_stage(A, s, dst):
    A(f"s_add_u32 s{dst}, s28, {s}\ns_cmp_ge_u32 s{dst}, 10\ns_cselect_b32 s29, 10, 0\ns_sub_u32 s{dst}, s{dst}, s29")
def rot_beat(A, b, dst):
    A(f"s_lshl_b32 s{dst}, s28, 1\ns_add_u32 s{dst}, s{dst}, {b}\ns_cmp_ge_u32 s{dst}, 20\ns_cselect_b32 s29, 20, 0\ns_sub_u32 s{dst}, s{dst}, s29")

def k1_loader_z(A):
    G = k1_geom('z'); pitchW = G['pitchW']; PSLOT = G['PSLOT']; TSLOT = G['TSLOT']; TBASE = G['TBASE']
    lw = 21
    A(f"s_sub_u32 s{lw}, s16, 4")
    A("v_lshrrev_b32 v7, 3, v0\nv_and_b32 v2, 7, v0\nv_xor_b32 v2, v2, v7\nv_mul_u32_u24 v7, 1280, v7\nv_lshl_add_u32 v2, v2, 4, v7")
    A("v_lshrrev_b32 v4, 4, v0")
    A(f"s_and_b32 s20, s{lw}, 1\ns_lshl_b32 s20, s20, 2")
    A("v_add_u32 v5, s20, v4\nv_lshlrev_b32 v5, 1, v5\nv_and_b32 v6, 15, v0\nv_xor_b32 v6, v6, v5")
    A(f"v_mul_u32_u24 v4, {pitchW}, v4\nv_lshl_add_u32 v3, v6, 4, v4")
    A(f"v_cmp_le_u32 vcc, 12, v6\nv_mov_b32 v5, {KILL}\nv_cndmask_b32 v3, v3, v5, vcc")
    nP = 2; half_rows = 64
    A(f"s_mul_i32 s20, s{lw}, {nP*8*1280}\ns_add_u32 s22, s17, s20")
    A(f"s_mul_i32 s23, s{lw}, {nP*1024}")
    A(f"s_mul_i32 s20, s{lw}, {8*pitchW}\ns_add_u32 s24, s18, s20\ns_add_u32 s25, s19, s20")
    A(f"s_lshl_b32 s26, s{lw}, 11\ns_add_u32 s26, s26, {TBASE}")
    issued = []
    def issueP(s, h2):
        slot = s % 3
        rot_stage(A, s, 27)
        A("s_lshl_b32 s27, s27, 7\ns_add_u32 s27, s27, s22")
        A(f"s_add_u32 m0, s23, {slot*PSLOT + h2*half_rows*128}")
        for i in range(nP):
            A(f"s_add_u32 s20, s27, {h2*half_rows*1280 + i*(8*1280 - 1024)}")
            A(f"buffer_load_dwordx4 v2, s[4:7], s20 offen offset:{i*1024} lds")
            issued.append(('P', s))
    def issueT(b):
        slot = b % 6
        rot_beat(A, b, 27)
        A(f"s_mul_i32 s27, s27, {32*pitchW}")
        for u, sb in enumerate([24, 25]):
            A(f"s_add_u32 m0, s26, {slot*TSLOT + u*8192}")
            A(f"s_add_u32 s29, s27, s{sb}")
            for i in range(2):
                A(f"s_add_u32 s20, s29, {i*(4*pitchW - 1024)}")
                A(f"buffer_load_dwordx4 v3, s[8:11], s20 offen offset:{i*1024} lds")
                issued.append(('T', b))
    def gate_load(issued):
        srd(A, 12, 38, 640*2)
        A("v_lshlrev_b32 v10, 2, v0")
        for i in range(5): A(f"buffer_load_dword v{40+i}, v10, s[12:15], 0 offen offset:{256*i}")
        A("s_lshl_b32 s58, s48, 7\ns_lshl_b32 s59, s49, 4\ns_add_u32 s58, s58, s59\ns_lshl_b32 s59, s21, 2\ns_add_u32 s58, s58, s59")
        A("s_mul_i32 s59, s58, 1280")
        for r in range(4):
            A(f"s_add_u32 s57, s59, {r*1280}")
            for i in range(5): A(f"buffer_load_dword v{48+5*r+i}, v10, s[4:7], s57 offen offset:{256*i}")
        issued.extend([('G', 0)]*25)
    def gate_finish(issued):
        last = max(i for i, t in enumerate(issued) if t == ('G', 0))
        A(f"s_waitcnt vmcnt({len(issued) - 1 - last})")
        for r in range(4):
            A(f"v_mov_b32 v{70+r}, 0")
            for i in range(5): A(f"v_dot2_f32_bf16 v{70+r}, v{48+5*r+i}, v{40+i}, v{70+r}")
        for ctl in ("row_shr:1 row_mask:0xf bank_mask:0xf bound_ctrl:0", "row_shr:2 row_mask:0xf bank_mask:0xf bound_ctrl:0", "row_shr:4 row_mask:0xf bank_mask:0xf bound_ctrl:0",
                    "row_shr:8 row_mask:0xf bank_mask:0xf bound_ctrl:0", "row_bcast:15 row_mask:0xa bank_mask:0xf", "row_bcast:31 row_mask:0xc bank_mask:0xf"):
            for r in range(4): A(f"v_add_f32_dpp v{70+r}, v{70+r}, v{70+r} {ctl}")
        for r in range(4): A(f"v_mul_f32 v{70+r}, {f2u(-1.4426950408889634)}, v{70+r}")
        for r in range(4): A(f"v_exp_f32 v{70+r}, v{70+r}")
        for r in range(4): A(f"v_add_f32 v{70+r}, 1.0, v{70+r}")
        for r in range(4): A(f"v_rcp_f32 v{70+r}, v{70+r}")
        srd(A, 12, 32, SZ_G, WS_G)
        A("s_lshl_b32 s58, s58, 2\nv_mov_b32 v10, 0")
        A("s_mov_b32 s42, 0\ns_mov_b32 s43, 0x80000000\ns_mov_b64 exec, s[42:43]")
        for r in range(4): A(f"buffer_store_dword v{70+r}, v10, s[12:15], s58 offen offset:{4*r}")
        A("s_mov_b64 exec, -1")
        issued.extend([('S', 0)]*4)
    def oldtags(issued):
        z_oldtags(A, 42); issued.extend([('O', 0)]*1)
    def pack_loads(issued):
        k1_pack_load(A); issued.extend([('K', 0)]*6)
    run_loader_schedule(A, issueP, issueT, issued, {7: oldtags})

def k1_loader_q(A, last):
    G = k1_geom('q'); PSLOT = G['PSLOT']; TSLOT = G['TSLOT']; TBASE = G['TBASE']
    nP = 3 if last else 2
    nTi = 3 if last else 4
    A("s_sub_u32 s21, s16, 4")
    A("v_lshrrev_b32 v7, 3, v0\nv_and_b32 v6, 7, v0\nv_xor_b32 v6, v6, v7")
    A("s_lshl_b32 s20, s48, 7\ns_sub_u32 s20, s20, 16\ns_lshl_b32 s22, s21, 4\ns_add_u32 s20, s20, s22")
    A("v_add_u32 v7, s20, v7")
    A("v_mov_b32 v12, v7")
    A("s_mov_b32 s20, 1280\nv_mul_lo_u32 v7, v7, s20\nv_lshl_add_u32 v2, v6, 4, v7")
    for h2 in range(2):
        for i in range(nP):
            if h2 == 0 and i == 0: continue
            A(f"v_add_u32 v{2 + h2*3 + i}, {(72*h2 + 8*i)*1280}, v2")
    A(f"v_mov_b32 v13, {KILL}")
    for i in range(2):
        A(f"v_add_u32 v14, {8*i}, v12\nv_cmp_gt_i32 vcc, 0, v14\nv_cndmask_b32 v{2+i}, v{2+i}, v13, vcc")
    A("s_lshl_b32 s20, s21, 8")
    for i in range(nTi):
        d = 8 + i
        A(f"v_add_u32 v12, s20, v0\nv_add_u32 v12, {64*i}, v12")
        A("v_mul_u32_u24 v13, 2185, v12\nv_lshrrev_b32 v13, 16, v13")
        A("v_mul_u32_u24 v14, 30, v13\nv_sub_u32 v14, v12, v14")
        A("v_and_b32 v15, 0x13, v13\nv_and_b32 v16, 4, v13\nv_lshl_or_b32 v15, v16, 1, v15\nv_and_b32 v16, 8, v13\nv_lshrrev_b32 v16, 1, v16\nv_or_b32 v15, v15, v16")
        A("v_mul_u32_u24 v16, 205, v14\nv_lshrrev_b32 v16, 11, v16")
        A("v_mul_u32_u24 v17, 10, v16\nv_sub_u32 v14, v14, v17")
        A("v_mul_u32_u24 v15, 3840, v15\nv_mul_u32_u24 v16, 1280, v16\nv_lshlrev_b32 v14, 4, v14")
        A(f"v_add3_u32 v{d}, v15, v16, v14")
    A("s_mul_i32 s24, s49, 160")
    A("s_lshl_b32 s23, s21, 11")
    A(f"s_lshl_b32 s26, s21, 12\ns_add_u32 s26, s26, {TBASE}")
    issued = []
    def issueP(s, h2):
        slot = s % 3
        rot_stage(A, s, 27)
        A("s_lshl_b32 s27, s27, 7")
        A(f"s_add_u32 m0, s23, {slot*PSLOT + h2*72*128}")
        for i in range(nP):
            if i: A("s_add_u32 m0, m0, 1024\ns_nop 0")
            A(f"buffer_load_dwordx4 v{2 + h2*3 + i}, s[4:7], s27 offen lds")
            issued.append(('P', s))
    def issueT(b):
        slot = b % 6
        rot_beat(A, b, 27)
        A(f"s_mul_i32 s27, s27, {32*3840}\ns_add_u32 s27, s27, s24")
        A(f"s_add_u32 m0, s26, {slot*TSLOT}")
        for i in range(nTi):
            if i: A("s_add_u32 m0, m0, 1024\ns_nop 0")
            A(f"buffer_load_dwordx4 v{8 + i}, s[8:11], s27 offen lds")
            issued.append(('T', b))
    run_loader_schedule(A, issueP, issueT, issued, None, True)


OT = 212
def z_oldtags(A, r32_sreg):
    srd(A, 12, 32, SZ_EP, WS_EP)
    A(f"s_lshl_b32 s40, s48, 7\nv_mov_b32 v221, s40")
    A(f"buffer_load_dwordx2 v[{OT}:{OT+1}], v221, s[12:15], 0 offen sc1")
def z_r32(A, dst):
    A(f"s_and_b32 s{dst}, s16, 1\ns_lshl_b32 s{dst}, s{dst}, 1\ns_lshr_b32 s41, s16, 2\ns_add_u32 s{dst}, s{dst}, s41")


def z_gate_load(A):
    srd(A, 4, 30, 2048*640*2); srd(A, 12, 38, 640*2)
    A("s_lshl_b32 s60, s48, 7\ns_lshl_b32 s61, s49, 4\ns_add_u32 s60, s60, s61\ns_lshl_b32 s61, s16, 2\ns_add_u32 s60, s60, s61") if False else None
    A("s_lshl_b32 s46, s48, 7\ns_lshl_b32 s47, s49, 4\ns_add_u32 s46, s46, s47\ns_lshl_b32 s47, s16, 2\ns_add_u32 s46, s46, s47")
    A(f"v_lshlrev_b32 v146, 4, v0\nv_add_u32 v147, 1024, v146\nv_mov_b32 v148, {KILL}\nv_cmp_le_u32 vcc, 16, v0\nv_cndmask_b32 v147, v147, v148, vcc")
    A("buffer_load_dwordx4 v[184:187], v146, s[12:15], 0 offen\nbuffer_load_dwordx4 v[188:191], v147, s[12:15], 0 offen")
    A("s_mul_i32 s47, s46, 1280")
    for r in range(4):
        A(f"s_add_u32 s45, s47, {r*1280}")
        A(f"buffer_load_dwordx4 v[{152+8*r}:{155+8*r}], v146, s[4:7], s45 offen\nbuffer_load_dwordx4 v[{156+8*r}:{159+8*r}], v147, s[4:7], s45 offen")
def z_gate_finish(A):
    for r in range(4):
        A(f"v_mov_b32 v{192+r}, 0")
        for q in range(4): A(f"v_dot2_f32_bf16 v{192+r}, v{152+8*r+q}, v{184+q}, v{192+r}")
        for q in range(4): A(f"v_dot2_f32_bf16 v{192+r}, v{156+8*r+q}, v{188+q}, v{192+r}")
    for ctl in ("row_shr:1 row_mask:0xf bank_mask:0xf bound_ctrl:0", "row_shr:2 row_mask:0xf bank_mask:0xf bound_ctrl:0", "row_shr:4 row_mask:0xf bank_mask:0xf bound_ctrl:0",
                "row_shr:8 row_mask:0xf bank_mask:0xf bound_ctrl:0", "row_bcast:15 row_mask:0xa bank_mask:0xf", "row_bcast:31 row_mask:0xc bank_mask:0xf"):
        for r in range(4): A(f"v_add_f32_dpp v{192+r}, v{192+r}, v{192+r} {ctl}")
    for r in range(4): A(f"v_mul_f32 v{192+r}, {f2u(-1.4426950408889634)}, v{192+r}")
    for r in range(4): A(f"v_exp_f32 v{192+r}, v{192+r}")
    for r in range(4): A(f"v_add_f32 v{192+r}, 1.0, v{192+r}")
    for r in range(4): A(f"v_rcp_f32 v{192+r}, v{192+r}")
    srd(A, 4, 32, SZ_G, WS_G)
    A("s_lshl_b32 s46, s46, 2\nv_mov_b32 v146, 0")
    A("s_mov_b32 s42, 0\ns_mov_b32 s43, 0x80000000\ns_mov_b64 exec, s[42:43]")
    for r in range(4): A(f"buffer_store_dword v{192+r}, v146, s[4:7], s46 offen offset:{4*r}")
    A("s_mov_b64 exec, -1")

def k1_pack_load(A):
    T = 150
    c, cc, t2, p_, k_, x_ = T+2, T+3, T+4, T+5, T+6, T+7
    A("s_sub_u32 s40, s16, 4\ns_lshl_b32 s40, s40, 6")
    A(f"v_add_u32 v{c}, s40, v0\nv_and_b32 v{cc}, 127, v{c}\nv_lshrrev_b32 v{t2}, 7, v{c}\nv_lshrrev_b32 v{p_}, 1, v{cc}")
    A(f"v_and_b32 v{k_}, 0x33, v{p_}\nv_and_b32 v{x_}, 4, v{p_}\nv_lshl_or_b32 v{k_}, v{x_}, 1, v{k_}")
    A(f"v_and_b32 v{x_}, 8, v{p_}\nv_lshrrev_b32 v{x_}, 1, v{x_}\nv_or_b32 v{k_}, v{k_}, v{x_}")
    A(f"v_mul_u32_u24 v{k_}, 1280, v{k_}\nv_and_b32 v{x_}, 1, v{cc}\nv_lshl_add_u32 v{k_}, v{x_}, 4, v{k_}\nv_lshl_add_u32 v{k_}, v{t2}, 5, v{k_}")
    A(f"v_lshlrev_b32 v252, 4, v{cc}\nv_lshl_add_u32 v252, v{t2}, 11, v252")
    A(f"v_mov_b32 v{x_}, {KILL}\nv_cmp_eq_u32 vcc, 1, v{t2}\nv_cndmask_b32 v253, v252, v{x_}, vcc\nv_cndmask_b32 v{p_}, v{k_}, v{x_}, vcc")
    A("s_lshl_b32 s54, s48, 3\ns_add_u32 s54, s54, s49")
    for u, D in ((0, 224), (1, 236)):
        A(f"s_add_u32 s55, s54, {128*u}")
        A(f"s_mul_hi_u32 s41, s55, {(2**32 + 21)//22}\ns_mul_i32 s42, s41, 22\ns_sub_u32 s42, s55, s42")
        A("s_cmp_lt_u32 s42, 10\ns_cselect_b32 s12, s44, s46\ns_cselect_b32 s13, s45, s47")
        A(f"s_mov_b32 s14, {768*640*2}\ns_cselect_b32 s14, {640*640*2}, s14\ns_mov_b32 s15, 0x20000")
        A("s_cselect_b32 s43, 0, 10\ns_sub_u32 s43, s42, s43")
        A(f"s_mul_i32 s43, s43, {64*1280}\ns_mul_i32 s40, s41, 160\ns_add_u32 s43, s43, s40")
        A(f"s_cmp_ge_u32 s55, 176\ns_cselect_b32 s40, {KILL}, 0\ns_add_u32 s43, s43, s40")
        A(f"buffer_load_dwordx4 v[{D}:{D+3}], v{k_}, s[12:15], s43 offen")
        A(f"buffer_load_dwordx4 v[{D+4}:{D+7}], v{k_}, s[12:15], s43 offen offset:64")
        A(f"buffer_load_dwordx4 v[{D+8}:{D+11}], v{p_}, s[12:15], s43 offen offset:128")

def k1_pack_store(A):
    srd(A, 12, 32, SZ_WP, WS_WP)
    for u, D in ((0, 224), (1, 236)):
        A(f"s_add_u32 s55, s54, {128*u}")
        A(f"s_mul_i32 s41, s55, {5*2048}\ns_cmp_ge_u32 s55, 176\ns_cselect_b32 s42, {KILL}, 0\ns_add_u32 s41, s41, s42")
        A("s_add_u32 s42, s41, 4096\ns_add_u32 s43, s41, 8192")
        A(f"buffer_store_dwordx4 v[{D}:{D+3}], v252, s[12:15], s41 offen")
        A(f"buffer_store_dwordx4 v[{D+4}:{D+7}], v252, s[12:15], s42 offen")
        A(f"buffer_store_dwordx4 v[{D+8}:{D+11}], v253, s[12:15], s43 offen")

def k1_compute_z(A, st):
    G = k1_geom('z'); PSLOT = G['PSLOT']; NPS = 3; TSLOT = G['TSLOT']; R = 6; TBASE = G['TBASE']
    mP = 4; nT = 6; nA = 3
    bP = 2; bT = 6
    F = [16, 16 + 4*(mP+nT)]
    ACC = 16 + 8*(mP+nT)
    A(f"s_and_b32 s20, s16, 1\ns_lshr_b32 s21, s16, 1\ns_mul_i32 s21, s21, {nA}")
    A("v_and_b32 v14, 15, v0\nv_lshrrev_b32 v15, 4, v0\nv_and_b32 v6, 7, v14\nv_xor_b32 v6, v15, v6\nv_lshlrev_b32 v14, 7, v14\nv_lshl_add_u32 v14, v6, 4, v14")
    A(f"s_mul_i32 s22, s20, {mP*2048}")
    A(f"v_add_u32 v{bP}, s22, v14\nv_xor_b32 v{bP+1}, 64, v{bP}")
    A("v_lshrrev_b32 v14, 2, v0\nv_and_b32 v14, 3, v14\nv_lshl_add_u32 v13, v15, 3, v14\nv_lshlrev_b32 v13, 8, v13")
    A("v_and_b32 v12, 3, v0\nv_lshl_add_u32 v13, v12, 3, v13\nv_and_b32 v12, 1, v15\nv_lshl_add_u32 v14, v12, 2, v14")
    A(f"v_add_u32 v15, {TBASE}, v13")
    for tl in range(nA):
        A(f"s_add_u32 s23, s21, {tl}\nv_xor_b32 v13, s23, v14\nv_lshl_add_u32 v{bT+tl}, v13, 5, v15")
    for tl in range(nA): A(f"v_add_u32 v{bT+nA+tl}, 0x10000, v{bT+tl}")
    for i in range(ACC, ACC + 4*mP*nT): A(f"v_mov_b32 v{i}, 0")
    def fP(s, m): return F[s] + 4*m
    def fT(s, t): return F[s] + 4*(mP + t)
    def acc(m, t): return ACC + 4*(m*nT + t)
    def reads(b):
        s = b & 1; kk = b & 1; ps = (b//2) % NPS; ts = b % R
        r = []
        for m in range(mP):
            f = fP(s, m); off = ps*PSLOT + m*2048
            r.append(f"ds_read_b128 v[{f}:{f+3}], v{bP + kk} offset:{off}")
        for t in range(nT):
            f = fT(s, t); tl = t % nA; u = t // nA
            for h in range(2):
                off = ts*TSLOT + u*8192 + h*1024; hi = off >> 16
                r.append(f"ds_read_b64_tr_b16 v[{f+2*h}:{f+2*h+1}], v{bT + tl + nA*hi} offset:{off & 0xffff}")
        return r
    A("s_barrier")
    for x in reads(0): A(x)
    A("s_waitcnt lgkmcnt(0)")
    st()
    A("s_barrier")
    TAILM = 6
    def beat(b, last=False):
        s = b & 1
        mf = [f"v_mfma_f32_16x16x32_bf16 v[{acc(m,t)}:{acc(m,t)+3}], v[{fT(s,t)}:{fT(s,t)+3}], v[{fP(s,m)}:{fP(s,m)+3}], v[{acc(m,t)}:{acc(m,t)+3}]" for m in range(mP) for t in range(nT)]
        rd = [] if last else reads(b + 1)
        nfront = len(mf) - TAILM
        for i, x in enumerate(mf):
            A(x)
            if rd: A(rd.pop(0))
            if i == nfront - 1:
                assert not rd
                A("s_waitcnt lgkmcnt(0)\ns_barrier")
    L = "K1z_cloop"
    A("s_mov_b32 s26, 0")
    A.label(L)
    A("s_cmp_eq_u32 s26, 0\ns_cbranch_scc1 K1_z_it")
    A("s_cmp_eq_u32 s26, 2\ns_cbranch_scc1 K1_z_it2")
    z_oldtags(A, 42)
    A("s_branch K1_z_it")
    A.label("K1_z_it2")
    A("s_waitcnt vmcnt(0)")
    A.label("K1_z_it")
    it_top(A)
    for b in range(6): beat(b)
    A(f"s_add_u32 s26, s26, 1\ns_cmp_lt_u32 s26, 3\ns_cbranch_scc1 {L}")
    it_mid(A)
    A("s_cmp_lg_u32 s16, 0\ns_cbranch_scc1 K1_z_noreg")
    srd(A, 12, 50, 256)
    A("s_lshl_b32 s22, s48, 4\nv_mov_b32 v14, s22\nv_mov_b32 v15, 1")
    A("s_mov_b64 exec, 1")
    A("buffer_atomic_add v15, v14, s[12:15], 0 offen sc1")
    A("s_mov_b64 exec, -1")
    A.label("K1_z_noreg")
    beat(18); beat(19, last=True)
    it_end(A, 14, 15)
    return acc

def k1_compute_q(A, wm, wn, st):
    G = k1_geom('q'); PSLOT = G['PSLOT']; TSLOT = G['TSLOT']; TBASE = G['TBASE']
    tiles = list(range(0, 8)) if wn == 0 else list(range(8, 15))
    halo = {(0, 0): [5, 6], (1, 0): [7], (0, 1): [8, 9, 10, 11], (1, 1): [12, 13, 14]}[(wm, wn)]
    nT = len(tiles); mP = 5
    F = [16, 16 + 4*(5 + 8)]
    ACC = 16 + 8*(5 + 8)
    A("v_and_b32 v14, 15, v0\nv_lshrrev_b32 v15, 4, v0\nv_and_b32 v6, 7, v14\nv_xor_b32 v6, v15, v6\nv_lshlrev_b32 v14, 7, v14\nv_lshl_add_u32 v2, v6, 4, v14")
    A("v_xor_b32 v3, 64, v2")
    A("v_lshrrev_b32 v6, 1, v15\nv_lshlrev_b32 v6, 4, v6\nv_and_b32 v7, 1, v15\nv_lshl_add_u32 v6, v7, 2, v6")
    A("v_lshrrev_b32 v7, 2, v0\nv_and_b32 v7, 3, v7\nv_add_u32 v6, v6, v7\nv_mul_u32_u24 v6, 480, v6\nv_and_b32 v7, 3, v0\nv_lshl_add_u32 v6, v7, 3, v6")
    A(f"v_add_u32 v4, {TBASE}, v6\nv_add_u32 v5, {TBASE + 3*TSLOT}, v6")
    accs = {}
    n = ACC
    for m in range(4):
        for t in tiles: accs[(m, t)] = n; n += 4
    for t in halo: accs[('h', t)] = n; n += 4
    assert n <= 256, n
    for i in range(ACC, n): A(f"v_mov_b32 v{i}, 0")
    def fP(s, m): return F[s] + 4*m
    def fT(s, t): return F[s] + 4*(5 + tiles.index(t))
    def reads(b):
        s = b & 1; kk = b & 1; ps = (b//2) % 3; ts = b % 6
        r = []
        for m in range(4):
            f = fP(s, m); r.append(f"ds_read_b128 v[{f}:{f+3}], v{2+kk} offset:{ps*PSLOT + (16 + 64*wm + 16*m)*128}")
        f = fP(s, 4); r.append(f"ds_read_b128 v[{f}:{f+3}], v{2+kk} offset:{ps*PSLOT}")
        for t in tiles:
            f = fT(s, t)
            for h in range(2):
                hi = 1 if ts >= 3 else 0
                r.append(f"ds_read_b64_tr_b16 v[{f+2*h}:{f+2*h+1}], v{4+hi} offset:{(ts - 3*hi)*TSLOT + h*8*480 + t*32}")
        return r
    A("s_barrier")
    for x in reads(0): A(x)
    A("s_waitcnt lgkmcnt(0)")
    st()
    A("s_barrier")
    def beat(b, last=False):
        s = b & 1
        mf = []
        for m in range(4):
            for t in tiles:
                a_ = accs[(m, t)]; mf.append(f"v_mfma_f32_16x16x32_bf16 v[{a_}:{a_+3}], v[{fT(s,t)}:{fT(s,t)+3}], v[{fP(s,m)}:{fP(s,m)+3}], v[{a_}:{a_+3}]")
        for t in halo:
            a_ = accs[('h', t)]; mf.append(f"v_mfma_f32_16x16x32_bf16 v[{a_}:{a_+3}], v[{fT(s,t)}:{fT(s,t)+3}], v[{fP(s,4)}:{fP(s,4)+3}], v[{a_}:{a_+3}]")
        rd = [] if last else reads(b + 1)
        nfront = len(mf) - 8
        for i, x in enumerate(mf):
            A(x)
            if rd: A(rd.pop(0))
            if i == nfront - 1:
                assert not rd, (len(rd), nfront)
                A("s_waitcnt lgkmcnt(0)\ns_barrier")
    L = f"K1q{wm}{wn}_cloop"
    A("s_mov_b32 s26, 0")
    A.label(L)
    it_top(A)
    for b in range(6):
        if O.itstamp: A(f"s_memtime s[76:77]\ns_waitcnt lgkmcnt(0)\ns_cmp_eq_u32 s26, 0\ns_cselect_b32 s{85+b}, s76, s{85+b}")
        beat(b)
    A(f"s_add_u32 s26, s26, 1\ns_cmp_lt_u32 s26, 3\ns_cbranch_scc1 {L}")
    it_mid(A)
    beat(18); beat(19, last=True)
    it_end(A, 14, 15)
    st()
    A(f"v_and_b32 v6, 15, v0\nv_mul_u32_u24 v6, {QP}, v6\nv_lshrrev_b32 v7, 4, v0\nv_lshl_add_u32 v6, v7, 3, v6")
    k = 0
    items = list(accs.items())
    for (key, a_) in items:
        A(f"v_cvt_pk_bf16_f32 v{16+2*k}, v{a_}, v{a_+1}\nv_cvt_pk_bf16_f32 v{17+2*k}, v{a_+2}, v{a_+3}")
        k += 1
    A(f"v_add_u32 v7, 0x8000, v6")
    k = 0
    for (key, a_) in items:
        m, t = key
        row = 0 if m == 'h' else 16 + 64*wm + 16*m
        off = row*QP + t*32
        if off < 65536: A(f"ds_write_b64 v6, v[{16+2*k}:{17+2*k}] offset:{off}")
        else: A(f"ds_write_b64 v7, v[{16+2*k}:{17+2*k}] offset:{off - 0x8000}")
        k += 1

def rot_table(A):
    A(f"s_and_b32 s28, s28, 3\ns_lshl_b32 s28, s28, 2\ns_lshr_b32 s28, {O.rottab if O.rot else 0}, s28\ns_and_b32 s28, s28, 15")

def k1(A):
    name = "k1_kernel"
    kernel_begin(A, name)
    A("s_cmp_ge_u32 s2, 256\ns_cbranch_scc1 K1_end")
    load_ptr(A, 30, 'x'); load_ptr(A, 32, 'ws'); load_ptr(A, 34, 'wqkv'); load_ptr(A, 36, 'win')
    load_ptr(A, 38, 'gw'); load_ptr(A, 44, 'wo'); load_ptr(A, 46, 'wout'); load_ptr(A, 52, 'wsp'); load_ptr(A, 50, 'dbg')
    wave_lane(A, 16)
    st = Stamps(A, 0); st()
    A("s_and_b32 s40, s2, 7\ns_lshr_b32 s41, s2, 3\ns_and_b32 s48, s40, 1\ns_lshl_b32 s48, s48, 3\ns_and_b32 s42, s41, 7\ns_add_u32 s48, s48, s42")
    A("s_lshr_b32 s49, s40, 1\ns_lshl_b32 s49, s49, 1\ns_lshr_b32 s43, s41, 3\ns_and_b32 s43, s43, 1\ns_add_u32 s49, s49, s43")
    A("s_lshl_b32 s28, s43, 1\ns_add_u32 s28, s28, s42")
    rot_table(A)
    A("s_cmp_lt_u32 s41, 16\ns_cbranch_scc1 K1_ztype")
    A("s_waitcnt lgkmcnt(0)")
    A("s_cmp_lt_u32 s16, 4\ns_cbranch_scc1 K1_qcomp")
    srd(A, 4, 30, 2048*640*2); srd(A, 8, 34, 640*1920*2)
    A("s_cmp_eq_u32 s16, 7\ns_cbranch_scc1 K1_qload3")
    k1_loader_q(A, False)
    A("s_branch K1_att")
    A.label("K1_qload3")
    k1_loader_q(A, True)
    A("s_branch K1_att")
    A.label("K1_qcomp")
    st()
    srd(A, 12, 32, SZ_FL, WS_FL)
    A("s_lshl_b32 s20, s48, 3\ns_add_u32 s20, s20, s49\ns_lshl_b32 s20, s20, 5\nv_lshlrev_b32 v14, 2, v0\nv_mov_b32 v15, 0")
    A("s_mov_b64 exec, 0xff")
    A("buffer_store_dword v15, v14, s[12:15], s20 offen")
    A("s_mov_b64 exec, -1")
    A("s_cmp_eq_u32 s16, 1\ns_cbranch_scc1 K1_q10\ns_cmp_eq_u32 s16, 2\ns_cbranch_scc1 K1_q01\ns_cmp_eq_u32 s16, 3\ns_cbranch_scc1 K1_q11")
    for (wm, wn) in ((0, 0), (1, 0), (0, 1), (1, 1)):
        if (wm, wn) != (0, 0): A.label(f"K1_q{wm}{wn}")
        stv = Stamps(A, 0, 2)
        k1_compute_q(A, wm, wn, stv)
        if (wm, wn) != (1, 1): A("s_branch K1_att")
    A.label("K1_att")
    st3 = Stamps(A, 0, 4)
    AV = 100
    A(f"s_and_b32 s46, s16, 3\ns_lshr_b32 s47, s16, 2\ns_mul_i32 s45, s46, 40\ns_mul_i32 s43, s47, {64*QP}\ns_add_u32 s45, s45, s43")
    A("s_or_b32 s43, s48, s47")
    attention_prep(A, AV, 45)
    T = 86
    A(f"s_lshl_b32 s20, s16, 6\nv_add_u32 v{T}, s20, v0")
    for i in range(3):
        c, r, q, la, ga = T+1, T+2, T+3, T+4+2*i, T+5+2*i
        A(f"v_add_u32 v{c}, {512*i}, v{T}")
        A(f"v_mul_u32_u24 v{r}, 6554, v{c}\nv_lshrrev_b32 v{r}, 16, v{r}")
        A(f"v_mul_u32_u24 v{q}, 10, v{r}\nv_sub_u32 v{q}, v{c}, v{q}")
        A(f"v_mul_u32_u24 v{la}, {QP}, v{r}\nv_lshl_add_u32 v{la}, v{q}, 4, v{la}\nv_add_u32 v{la}, {16*QP}, v{la}")
        A(f"s_lshl_b32 s20, s48, 7\nv_add_u32 v{ga}, s20, v{r}\nv_mul_u32_u24 v{ga}, 2816, v{ga}\nv_lshl_add_u32 v{ga}, v{q}, 4, v{ga}")
        A(f"s_mul_i32 s20, s49, 160\nv_add_u32 v{ga}, s20, v{ga}")
        if i == 2:
            A(f"v_mov_b32 v{q}, {KILL}\nv_cmp_le_u32 vcc, 1280, v{c}\nv_cndmask_b32 v{ga}, v{ga}, v{q}, vcc")
            A(f"v_mov_b32 v{q}, 0\nv_cndmask_b32 v{la}, v{la}, v{q}, vcc")
    srd(A, 12, 32, SZ_AU, WS_AU)
    A("s_waitcnt lgkmcnt(0)\ns_barrier")
    st3()
    attention_main(A, AV, 43)
    A("s_waitcnt lgkmcnt(0)\ns_barrier")
    st3()
    D = 16
    for i in range(3):
        A(f"ds_read_b64 v[{D+4*i}:{D+4*i+1}], v{T+4+2*i}\nds_read_b64 v[{D+4*i+2}:{D+4*i+3}], v{T+4+2*i} offset:8")
    A("s_waitcnt lgkmcnt(0)")
    for i in range(3): A(f"buffer_store_dwordx4 v[{D+4*i}:{D+4*i+3}], v{T+5+2*i}, s[12:15], 0 offen")
    if O.stamp:
        A("s_cmp_ge_u32 s16, 4\ns_cbranch_scc1 K1_end")
        A("s_waitcnt vmcnt(0)")
    st3(); st3.flush(16, 32)
    A("s_branch K1_end")
    A.label("K1_ztype")
    A(f"s_mul_i32 s17, s48, {128*1280}")
    A("s_mul_i32 s19, s49, 192\ns_add_u32 s18, s19, 1536")
    A("s_waitcnt lgkmcnt(0)")
    A("s_cmp_lt_u32 s16, 4\ns_cbranch_scc1 K1_zcomp")
    srd(A, 4, 30, 2048*640*2); srd(A, 8, 36, 640*1536*2)
    k1_loader_z(A)
    ACCZ = 96
    A("s_barrier")
    A("s_sub_u32 s20, s16, 4\ns_mul_i32 s20, s20, 12288\nv_lshlrev_b32 v4, 4, v0\nv_add_u32 v4, s20, v4")
    for k in range(12): A(f"ds_read_b128 v[{ACCZ+4*k}:{ACCZ+4*k+3}], v4 offset:{k*1024}")
    A("s_waitcnt lgkmcnt(0)")
    A("s_branch K1_zepi")
    A.label("K1_zcomp")
    st2 = Stamps(A, 0, 1); st2()
    acc = k1_compute_z(A, st2)
    st2()
    assert acc(0, 0) == ACCZ
    A("s_mul_i32 s20, s16, 12288\nv_lshlrev_b32 v4, 4, v0\nv_add_u32 v4, s20, v4")
    for k in range(12): A(f"ds_write_b128 v4, v[{acc(2,0)+4*k}:{acc(2,0)+4*k+3}] offset:{k*1024}")
    A("s_waitcnt lgkmcnt(0)\ns_barrier")
    A.label("K1_zepi")
    A("s_and_b32 s20, s16, 1\ns_lshr_b32 s21, s16, 1\ns_and_b32 s21, s21, 1\ns_lshr_b32 s59, s16, 2")
    A("s_lshl_b32 s58, s20, 1\ns_add_u32 s58, s58, s59")
    A(f"s_mov_b32 s56, {f2u(C1)}\ns_mov_b32 s57, {f2u(C1)}")
    A(f"v_mov_b32 v6, {f2u(C0)}\nv_mov_b32 v7, {f2u(C0)}")
    z2 = [acc(m, t) + 2*q for m in range(2) for t in range(3) for q in range(2)]
    z1 = [acc(m, t) + 2*q for m in range(2) for t in range(3, 6) for q in range(2)]
    srd(A, 12, 50, 256)
    A("s_lshl_b32 s22, s48, 4\nv_mov_b32 v8, s22")
    A("buffer_load_dword v9, v8, s[12:15], 0 offen sc1")
    st2()
    gelu_pk(A, z2, 16, 56)
    A("s_waitcnt vmcnt(0)")
    st2()
    S = 70
    for m in range(2):
        vals = [acc(m, t) + r for t in range(3) for r in range(4)]
        A(f"v_pk_add_f32 v[{S+2*m}:{S+2*m+1}], v[{vals[0]}:{vals[1]}], v[{vals[2]}:{vals[3]}]")
        A(f"v_pk_mul_f32 v[{S+4+2*m}:{S+4+2*m+1}], v[{vals[0]}:{vals[1]}], v[{vals[0]}:{vals[1]}]")
        A(f"v_pk_fma_f32 v[{S+4+2*m}:{S+4+2*m+1}], v[{vals[2]}:{vals[3]}], v[{vals[2]}:{vals[3]}], v[{S+4+2*m}:{S+4+2*m+1}]")
        for q in range(2, 6):
            A(f"v_pk_add_f32 v[{S+2*m}:{S+2*m+1}], v[{S+2*m}:{S+2*m+1}], v[{vals[2*q]}:{vals[2*q+1]}]")
            A(f"v_pk_fma_f32 v[{S+4+2*m}:{S+4+2*m+1}], v[{vals[2*q]}:{vals[2*q+1]}], v[{vals[2*q]}:{vals[2*q+1]}], v[{S+4+2*m}:{S+4+2*m+1}]")
    for m in range(2):
        A(f"v_add_f32 v{S+2*m}, v{S+2*m}, v{S+2*m+1}\nv_add_f32 v{S+2*m+1}, v{S+4+2*m}, v{S+4+2*m+1}")
    for i in range(4): A(f"v_mov_b32 v{S+4+i}, v{S+i}")
    for i in range(4): A(f"v_permlane16_swap_b32 v{S+i}, v{S+4+i}")
    for i in range(4): A(f"v_add_f32 v{S+i}, v{S+i}, v{S+4+i}")
    for i in range(4): A(f"v_mov_b32 v{S+4+i}, v{S+i}")
    for i in range(4): A(f"v_permlane32_swap_b32 v{S+i}, v{S+4+i}")
    for i in range(4): A(f"v_add_f32 v{S+i}, v{S+i}, v{S+4+i}")
    A("v_lshrrev_b32 v3, 4, v0")
    A(f"v_and_b32 v5, 16, v0\nv_cmp_ne_u32 vcc, 0, v5\nv_cndmask_b32 v{S}, v{S}, v{S+2}, vcc\nv_cndmask_b32 v{S+1}, v{S+1}, v{S+3}, vcc")
    A("v_lshlrev_b32 v4, 3, v0\ns_lshl_b32 s22, s16, 9\ns_add_u32 s22, s22, 49152\nv_add_u32 v5, s22, v4")
    A(f"ds_write_b64 v5, v[{S}:{S+1}]")
    A("s_waitcnt lgkmcnt(0)\ns_barrier")
    A("v_xor_b32 v5, 1024, v5")
    A(f"ds_read_b64 v[{S+2}:{S+3}], v5")
    srd(A, 8, 32, SZ_ST, WS_ST)
    A("s_lshl_b32 s22, s49, 15\ns_lshl_b32 s23, s48, 11\ns_add_u32 s22, s22, s23\ns_lshl_b32 s23, s58, 9\ns_add_u32 s22, s22, s23")
    A("s_waitcnt lgkmcnt(0)")
    A(f"v_add_f32 v{S}, v{S}, v{S+2}\nv_add_f32 v{S+1}, v{S+1}, v{S+3}")
    st2()
    A("s_cmp_lg_u32 s21, 0\ns_cbranch_scc1 K1_z_nostat")
    A("s_mov_b32 s24, 0")
    A.label("K1_regpoll")
    A("v_readfirstlane_b32 s25, v9\ns_cmp_ge_u32 s25, 8\ns_cbranch_scc1 K1_regok")
    A("buffer_load_dword v9, v8, s[12:15], 0 offen sc1\ns_waitcnt vmcnt(0)")
    A("s_add_u32 s24, s24, 1\ns_cmp_lt_u32 s24, 0x40000\ns_cbranch_scc1 K1_regpoll")
    A.label("K1_regok")
    A(f"v_add_u32 v{S+2}, 1, v{OT}\nv_mov_b32 v{S+3}, v{OT+1}\nv_lshlrev_b32 v4, 4, v0")
    A("v_cmp_gt_u32 vcc, 32, v0\ns_and_saveexec_b64 s[24:25], vcc")
    A(f"buffer_store_dwordx4 v[{S}:{S+3}], v4, s[8:11], s22 offen sc1")
    A("s_mov_b64 exec, s[24:25]")
    A("s_or_b32 s22, s49, s16\ns_cmp_lg_u32 s22, 0\ns_cbranch_scc1 K1_z_nostat")
    srd(A, 4, 32, SZ_EP, WS_EP)
    A(f"s_lshl_b32 s22, s48, 7\nv_mov_b32 v4, s22\ns_mov_b64 exec, 1")
    A(f"buffer_store_dwordx2 v[{S+2}:{S+3}], v4, s[4:7], 0 offen sc1")
    A("s_mov_b64 exec, -1")
    A.label("K1_z_nostat")
    st2()
    A("s_cmp_ge_u32 s16, 4\ns_cbranch_scc1 K1_sj_pack")
    z_gate_load(A)
    A(f"v_mov_b32 v252, {KILL}\nv_mov_b32 v253, {KILL}\ns_mov_b32 s54, 0")
    A("s_branch K1_sj_done")
    A.label("K1_sj_pack")
    A("v_mov_b32 v146, 0")
    k1_pack_load(A)
    A.label("K1_sj_done")
    gelu_pk(A, z1, 16, 56)
    A("s_lshl_b32 s22, s48, 2\ns_add_u32 s22, s22, s58\ns_mul_i32 s22, s22, 48")
    A("s_mul_i32 s23, s49, 6\ns_add_u32 s22, s22, s23\ns_mul_i32 s23, s21, 3\ns_add_u32 s22, s22, s23\ns_lshl_b32 s26, s22, 10")
    A("v_lshlrev_b32 v11, 4, v0")
    Q = 200
    for t in range(3):
        d = Q + 4*t; a0 = acc(0, 3+t); a1 = acc(1, 3+t)
        A(f"v_cvt_pk_bf16_f32 v{d}, v{a0}, v{a0+1}\nv_cvt_pk_bf16_f32 v{d+1}, v{a0+2}, v{a0+3}\nv_cvt_pk_bf16_f32 v{d+2}, v{a1}, v{a1+1}\nv_cvt_pk_bf16_f32 v{d+3}, v{a1+2}, v{a1+3}")
    st2()
    A("s_lshl_b32 s22, s48, 11\ns_lshl_b32 s23, s58, 9\ns_add_u32 s22, s22, s23")
    A("v_and_b32 v4, 31, v0\nv_lshlrev_b32 v4, 4, v4")
    A(f"v_add_u32 v{OT}, 1, v{OT}")
    A("s_mov_b32 s24, 0")
    A.label("K1_poll")
    for jj in range(8):
        A(f"s_add_u32 s23, s22, {jj*32768}")
        A(f"buffer_load_dwordx4 v[{16+4*jj}:{19+4*jj}], v4, s[8:11], s23 offen sc1")
    A("s_waitcnt vmcnt(0)")
    A(f"v_xor_b32 v48, v18, v{OT}\nv_xor_b32 v49, v19, v{OT+1}\nv_or_b32 v48, v48, v49")
    for jj in range(1, 8): A(f"v_xor_b32 v49, v{18+4*jj}, v{OT}\nv_xor_b32 v50, v{19+4*jj}, v{OT+1}\nv_or3_b32 v48, v48, v49, v50")
    A("v_cmp_ne_u32 vcc, 0, v48")
    A("s_add_u32 s24, s24, 1\ns_nop 3")
    A("s_cbranch_vccz K1_polled")
    A(f"s_sleep {O.sleep}")
    A("s_cmp_lt_u32 s24, 0x10000\ns_cbranch_scc1 K1_poll")
    A.label("K1_polled")
    st2()
    srd(A, 4, 32, SZ_Z1, WS_Z1)
    for t in range(3): A(f"buffer_store_dwordx4 v[{Q+4*t}:{Q+4*t+3}], v11, s[4:7], s26 offen offset:{t*1024}")
    A("s_cmp_lt_u32 s16, 4\ns_cbranch_scc1 K1_nopack")
    k1_pack_store(A)
    A("s_branch K1_packed")
    A.label("K1_nopack")
    z_gate_finish(A)
    A.label("K1_packed")
    srd(A, 12, 32, SZ_Z2P, WS_Z2P)
    A("s_lshl_b32 s22, s49, 5\ns_lshl_b32 s23, s48, 1\ns_add_u32 s22, s22, s23\ns_add_u32 s22, s22, s20\ns_mul_i32 s22, s22, 6")
    A("s_mul_i32 s23, s21, 3\ns_add_u32 s22, s22, s23\ns_lshl_b32 s22, s22, 11\ns_lshl_b32 s23, s59, 10\ns_add_u32 s22, s22, s23")
    A("v_and_b32 v6, 15, v0\nv_and_b32 v7, 3, v6\nv_and_b32 v10, 4, v6\nv_lshl_or_b32 v7, v10, 1, v7\nv_and_b32 v10, 8, v6\nv_lshrrev_b32 v10, 1, v10\nv_or_b32 v7, v7, v10")
    A("v_and_b32 v10, 1, v3\nv_lshl_add_u32 v7, v10, 4, v7\nv_lshlrev_b32 v7, 5, v7\nv_lshrrev_b32 v10, 1, v3\nv_lshl_add_u32 v10, v10, 4, v7")
    for jj in range(1, 8): A(f"v_add_f32 v16, v16, v{16+4*jj}\nv_add_f32 v17, v17, v{17+4*jj}")
    A(f"v_mul_f32 v16, {f2u(1/768)}, v16\nv_mul_f32 v17, {f2u(1/768)}, v17")
    A("v_fma_f32 v17, -v16, v16, v17\nv_max_f32 v17, 0, v17")
    A(f"v_add_f32 v17, {f2u(1e-5)}, v17\nv_rsq_f32 v17, v17")
    A("v_mul_f32 v16, v16, v17\nv_sub_f32 v16, 0, v16")
    A("v_and_b32 v5, 15, v0\nv_lshlrev_b32 v5, 2, v5")
    for m in range(2):
        A(f"v_add_u32 v8, {64*m}, v5")
        A(f"ds_bpermute_b32 v{32+2*m}, v8, v17\nds_bpermute_b32 v{33+2*m}, v8, v16")
    A("s_waitcnt lgkmcnt(0)")
    PK = 44
    for m in range(2):
        for t in range(3):
            a_ = acc(m, t)
            for r in range(4): A(f"v_fma_f32 v{a_+r}, v{a_+r}, v{32+2*m}, v{33+2*m}")
    for t in range(3):
        d = PK + 4*t; a0 = acc(0, t); a1 = acc(1, t)
        A(f"v_cvt_pk_bf16_f32 v{d}, v{a0}, v{a0+1}\nv_cvt_pk_bf16_f32 v{d+1}, v{a0+2}, v{a0+3}\nv_cvt_pk_bf16_f32 v{d+2}, v{a1}, v{a1+1}\nv_cvt_pk_bf16_f32 v{d+3}, v{a1+2}, v{a1+3}")
    for t in range(3):
        d = PK + 4*t
        A(f"v_permlane16_swap_b32 v{d}, v{d+2}\nv_permlane16_swap_b32 v{d+1}, v{d+3}")
    for t in range(3):
        A(f"s_add_u32 s23, s22, {t*2048}")
        A(f"buffer_store_dwordx4 v[{PK+4*t}:{PK+4*t+3}], v10, s[12:15], s23 offen")
    if O.stamp:
        A("s_cmp_ge_u32 s16, 4\ns_cbranch_scc1 K1_end")
    st2(); st2.flush(16, 32)
    A.label("K1_end")
    A("s_endpgm")
    return name, 256, 512, 147456, 256

SLOT = 20480
class E2:
    def __init__(self, A, pfx, NT, nsteps, pitchP, wave_m, wave_n, NS=6):
        self.A = A; self.pfx = pfx; self.NT = NT; self.n = nsteps; self.pitchP = pitchP
        self.mP = wave_m; self.nT = wave_n; self.NS = NS
        self.F = [8, 8 + 8*(wave_m + wave_n)]
        self.ACC = 8 + 16*(wave_m + wave_n)
        self.vend = self.ACC + 4*wave_m*wave_n
    def fP(self, s, kk, m): return self.F[s] + 4*(kk*(self.mP+self.nT) + m)
    def fT(self, s, kk, t): return self.F[s] + 4*(kk*(self.mP+self.nT) + self.mP + t)
    def acc(self, m, t): return self.ACC + 4*(m*self.nT + t)
    def loader_setup(self):
        A = self.A
        A("s_sub_u32 s21, s16, 4")
        A("v_lshrrev_b32 v7, 3, v0\nv_and_b32 v2, 7, v0\nv_xor_b32 v2, v2, v7")
        A(f"s_mov_b32 s20, {self.pitchP}\nv_mul_lo_u32 v7, v7, s20\nv_lshl_add_u32 v2, v2, 4, v7\nv_lshlrev_b32 v3, 4, v0")
        A(f"s_mul_i32 s20, s21, {16*self.pitchP}\ns_add_u32 s23, s17, s20")
        A("s_mul_i32 s20, s21, 3072\ns_add_u32 s24, s18, s20\ns_add_u32 s26, s20, 8192\ns_lshl_b32 s27, s21, 11")
        A("s_mov_b32 s28, 0\ns_mov_b32 s29, 0")
        if 2*self.NT < 12:
            A(f"s_mul_i32 s20, s21, 3\ns_cmp_ge_u32 s20, {2*self.NT - 1}\ns_cselect_b32 s28, {KILL}, 0\ns_cmp_ge_u32 s20, {2*self.NT - 2}\ns_cselect_b32 s29, {KILL}, 0")
        A("s_mov_b32 s22, 0")
    def issue(self):
        A = self.A
        A("s_add_u32 m0, s22, s27")
        A(f"s_add_u32 s20, s23, {8*self.pitchP - 1024}")
        A("buffer_load_dwordx4 v2, s[4:7], s23 offen lds")
        A("buffer_load_dwordx4 v2, s[4:7], s20 offen offset:1024 lds")
        A("s_add_u32 m0, s22, s26")
        if 2*self.NT < 12:
            A("s_add_u32 s25, s24, s28\ns_add_u32 s15, s24, s29")
            A("buffer_load_dwordx4 v3, s[8:11], s24 offen lds")
            A("buffer_load_dwordx4 v3, s[8:11], s25 offen offset:1024 lds")
            A("buffer_load_dwordx4 v3, s[8:11], s15 offen offset:2048 lds")
        else:
            A("buffer_load_dwordx4 v3, s[8:11], s24 offen lds")
            A("buffer_load_dwordx4 v3, s[8:11], s24 offen offset:1024 lds")
            A("buffer_load_dwordx4 v3, s[8:11], s24 offen offset:2048 lds")
        A(f"s_add_u32 s23, s23, 128\ns_add_u32 s24, s24, {self.NT*2048}")
        A(f"s_add_u32 s22, s22, {SLOT}\ns_cmp_eq_u32 s22, {self.NS*SLOT}\ns_cselect_b32 s22, 0, s22")
    def loader_main(self, pre_issued):
        A = self.A; NS = self.NS; n = self.n
        for i in range(pre_issued, NS - 1): self.issue()
        A(f"s_waitcnt vmcnt({(NS - 2)*5})")
        A("s_barrier")
        self.issue()
        L = self.pfx + "_lloop"
        A("s_mov_b32 s14, 0")
        A.label(L)
        A(f"s_waitcnt vmcnt({(NS-2)*5})\ns_barrier")
        self.issue()
        A(f"s_add_u32 s14, s14, 1\ns_cmp_lt_u32 s14, {n - NS}\ns_cbranch_scc1 {L}")
        for t in range(NS):
            i = n - NS + t
            rem = max(0, (n - 1) - (i + 1))
            A(f"s_waitcnt vmcnt({rem*5})\ns_barrier")
    def compute_setup(self, s_row, s_tile):
        A = self.A
        A("v_and_b32 v4, 15, v0\nv_lshrrev_b32 v5, 4, v0\nv_and_b32 v6, 7, v4\nv_xor_b32 v5, v5, v6\nv_lshlrev_b32 v4, 7, v4\nv_lshl_add_u32 v4, v5, 4, v4")
        A(f"s_lshl_b32 s20, s{s_row}, 7\nv_add_u32 v2, s20, v4\nv_xor_b32 v3, 64, v2")
        A("v_and_b32 v6, 15, v0\nv_lshlrev_b32 v6, 3, v6\nv_and_b32 v7, 16, v0\nv_lshl_add_u32 v6, v7, 3, v6\nv_and_b32 v7, 32, v0\nv_lshl_add_u32 v6, v7, 4, v6")
        A(f"s_lshl_b32 s20, s{s_tile}, 11\ns_add_u32 s20, s20, 8192\nv_add_u32 v4, s20, v6")
        A(f"v_add_u32 v5, {3*SLOT}, v2\nv_add_u32 v6, {3*SLOT}, v3\nv_add_u32 v7, {3*SLOT}, v4")
        for i in range(self.ACC, self.vend): A(f"v_mov_b32 v{i}, 0")
    def reads(self, step):
        s = step & 1; sl = step % self.NS; hi = 3 if sl >= 3 else 0; so = (sl - hi)*SLOT
        b = 3 if hi else 0
        r = []
        for kk in range(2):
            for m in range(self.mP):
                f = self.fP(s, kk, m); r.append(f"ds_read_b128 v[{f}:{f+3}], v{2+kk+b} offset:{so + m*2048}")
            for t in range(self.nT):
                f = self.fT(s, kk, t)
                for h in range(2): r.append(f"ds_read_b64_tr_b16 v[{f+2*h}:{f+2*h+1}], v{4+b} offset:{so + t*2048 + kk*1024 + h*256}")
        return r
    def step(self, i, last=False):
        A = self.A; s = i & 1
        rd = [] if last else self.reads(i + 1)
        mf = [f"v_mfma_f32_16x16x32_bf16 v[{self.acc(m,t)}:{self.acc(m,t)+3}], v[{self.fT(s,kk,t)}:{self.fT(s,kk,t)+3}], v[{self.fP(s,kk,m)}:{self.fP(s,kk,m)+3}], v[{self.acc(m,t)}:{self.acc(m,t)+3}]"
              for kk in range(2) for m in range(self.mP) for t in range(self.nT)]
        A("s_barrier")
        per = (len(rd) + len(mf) - 1)//len(mf) if rd else 0
        for x in mf:
            for _ in range(per):
                if rd: A(rd.pop(0))
            A(x)
        A("s_waitcnt lgkmcnt(0)")
    def compute(self, st, unroll=False, hooks=None):
        A = self.A; NS = self.NS; n = self.n
        assert NS % 2 == 0
        A("s_barrier")
        for x in self.reads(0): A(x)
        A("s_waitcnt lgkmcnt(0)")
        st()
        if unroll:
            for i in range(n):
                self.step(i, last=(i == n - 1))
                if hooks and i in hooks: hooks[i]()
            return
        nfull = (n - 1)//NS
        L = self.pfx + "_cloop"
        A("s_mov_b32 s19, 0")
        A.label(L)
        for i in range(NS): self.step(i)
        A(f"s_add_u32 s19, s19, 1\ns_cmp_lt_u32 s19, {nfull}\ns_cbranch_scc1 {L}")
        for i in range(nfull*NS, n): self.step(i, last=(i == n - 1))

def tile_map(A):
    A("s_and_b32 s42, s2, 7\ns_lshr_b32 s43, s2, 3\ns_lshr_b32 s40, s42, 1\ns_lshl_b32 s40, s40, 3\ns_and_b32 s44, s43, 7\ns_add_u32 s40, s40, s44")
    A("s_and_b32 s41, s42, 1\ns_lshl_b32 s41, s41, 2\ns_lshr_b32 s44, s43, 3\ns_add_u32 s41, s41, s44")

ATT_LDS = 6*SLOT
def attention_regs(V):
    R = dict(aQ=V+1, aK=V+2, aV=V+3, t0=V+4, t1=V+5, t2=V+6, M20=V+7, M21=V+8, N20=V+9, N21=V+10)
    S = (V + 12 + 3)//4*4
    R.update(S=S, QF=S+12, KF=S+22, VF=S+52, OO=(S+82+3)//4*4)
    return R
def attention_prep(A, V, s_off):
    R = attention_regs(V); aQ, aK, aV, t0, t1, t2 = R['aQ'], R['aK'], R['aV'], R['t0'], R['t1'], R['t2']
    M20, M21, N20, N21, S, OO = R['M20'], R['M21'], R['N20'], R['N21'], R['S'], R['OO']
    A(f"v_lshrrev_b32 v{t0}, 3, v0\nv_lshlrev_b32 v{t0}, 2, v{t0}\nv_and_b32 v{t1}, 3, v0\nv_add_u32 v{t0}, v{t0}, v{t1}")
    A(f"v_lshrrev_b32 v{t1}, 2, v0\nv_and_b32 v{t1}, 1, v{t1}\nv_lshl_add_u32 v{t0}, v{t0}, 1, v{t1}")
    A(f"v_mul_u32_u24 v{t0}, {QP}, v{t0}\nv_add_u32 v{aK}, s{s_off}, v{t0}\nv_add_u32 v{aQ}, {16*QP}, v{aK}")
    A(f"v_lshrrev_b32 v{t1}, 4, v0\nv_lshlrev_b32 v{t1}, 2, v{t1}\nv_and_b32 v{t2}, 3, v0\nv_add_u32 v{t1}, v{t1}, v{t2}")
    A(f"v_lshrrev_b32 v{t2}, 1, v{t1}\nv_lshlrev_b32 v{t2}, 2, v{t2}\nv_and_b32 v{t1}, 1, v{t1}")
    A(f"v_lshrrev_b32 v{aV}, 2, v0\nv_and_b32 v{aV}, 3, v{aV}\nv_add_u32 v{aV}, v{aV}, v{t2}\nv_lshl_add_u32 v{aV}, v{aV}, 1, v{t1}")
    A(f"v_mul_u32_u24 v{aV}, {QP}, v{aV}\nv_add_u32 v{aV}, s{s_off}, v{aV}")
    A(f"v_and_b32 v{t1}, 3, v0")
    A(f"v_mov_b32 v{M20}, 0xffff\nv_mov_b32 v{t2}, -1\nv_cmp_le_u32 vcc, 1, v{t1}\nv_cndmask_b32 v{M20}, v{M20}, v{t2}, vcc")
    A(f"v_mov_b32 v{M21}, 0\nv_mov_b32 v{t2}, 0xffff\nv_cmp_le_u32 vcc, 2, v{t1}\nv_cndmask_b32 v{M21}, v{M21}, v{t2}, vcc")
    A(f"v_mov_b32 v{t2}, -1\nv_cmp_eq_u32 vcc, 3, v{t1}\nv_cndmask_b32 v{M21}, v{M21}, v{t2}, vcc")
    A(f"v_not_b32 v{N20}, v{M20}\nv_not_b32 v{N21}, v{M21}")
    for i in range(12): A(f"v_mov_b32 v{S+i}, 0")
    for i in range(20): A(f"v_mov_b32 v{OO+i}, 0")
    A("s_mov_b32 s22, 0xeeeeeeee\ns_mov_b32 s23, 0xeeeeeeee\ns_mov_b32 s24, 0xcccccccc\ns_mov_b32 s25, 0xcccccccc\ns_mov_b32 s26, 0x88888888\ns_mov_b32 s27, 0x88888888")
def attention_main(A, V, s_bound):
    R = attention_regs(V); aQ, aK, aV, t0, t1, t2 = R['aQ'], R['aK'], R['aV'], R['t0'], R['t1'], R['t2']
    M20, M21, N20, N21, S, QF, KF, VF, OO = R['M20'], R['M21'], R['N20'], R['N21'], R['S'], R['QF'], R['KF'], R['VF'], R['OO']
    for dg in range(5):
        A(f"ds_read_b64 v[{QF+2*dg}:{QF+2*dg+1}], v{aQ} offset:{8*dg}")
        for c in range(3): A(f"ds_read_b64 v[{KF+2*(5*c+dg)}:{KF+2*(5*c+dg)+1}], v{aK} offset:{8*c*QP + 160 + 8*dg}")
    for dg in range(5):
        if dg == 0:
            A("s_waitcnt lgkmcnt(15)")
        rem = 20 - 4*(dg+1)
        A(f"s_waitcnt lgkmcnt({min(rem, 15)})")
        for c in range(3):
            A(f"v_mfma_f32_4x4x4_16b_bf16 v[{S+4*c}:{S+4*c+3}], v[{KF+2*(5*c+dg)}:{KF+2*(5*c+dg)+1}], v[{QF+2*dg}:{QF+2*dg+1}], v[{S+4*c}:{S+4*c+3}]")
    for c in range(3):
        for dg in range(5): A(f"ds_read_b64_tr_b16 v[{VF+2*(5*c+dg)}:{VF+2*(5*c+dg)+1}], v{aV} offset:{8*c*QP + 320 + 8*dg}")
    Lb = A.newlabel("att_nomask")
    A(f"s_cmp_lg_u32 s{s_bound}, 0\ns_cbranch_scc1 {Lb}")
    A(f"v_mov_b32 v{t2}, {f2u(-1e30)}")
    A("v_cmp_gt_u32 vcc, 16, v0")
    for i in range(4): A(f"v_cndmask_b32 v{S+i}, v{S+i}, v{t2}, vcc")
    A("v_cmp_gt_u32 vcc, 8, v0")
    for i in range(4): A(f"v_cndmask_b32 v{S+4+i}, v{S+4+i}, v{t2}, vcc")
    A("s_nop 4")
    A.label(Lb)
    A("s_nop 4")
    for i in range(1, 4): A(f"v_cndmask_b32 v{S+8+i}, v{S+i}, v{S+8+i}, s[{20+2*i}:{21+2*i}]")
    vals = [S+4+i for i in range(8)]
    A(f"v_max3_f32 v{t0}, v{vals[0]}, v{vals[1]}, v{vals[2]}\nv_max3_f32 v{t1}, v{vals[3]}, v{vals[4]}, v{vals[5]}\nv_max3_f32 v{t0}, v{t0}, v{vals[6]}, v{vals[7]}\nv_max_f32 v{t0}, v{t0}, v{t1}")
    SC = (20 ** -0.5) * 1.4426950408889634
    A(f"s_mov_b32 s20, {f2u(SC)}")
    A(f"v_mul_f32 v{t0}, s20, v{t0}")
    for x in vals: A(f"v_fma_f32 v{x}, v{x}, s20, -v{t0}")
    for x in vals: A(f"v_exp_f32 v{x}, v{x}")
    A(f"v_add_f32 v{t0}, v{vals[0]}, v{vals[1]}\nv_add_f32 v{t1}, v{vals[2]}, v{vals[3]}\nv_add_f32 v{t2}, v{vals[4]}, v{vals[5]}\nv_add_f32 v{t0}, v{t0}, v{t1}")
    A(f"v_add_f32 v{t1}, v{vals[6]}, v{vals[7]}\nv_add_f32 v{t0}, v{t0}, v{t2}\nv_add_f32 v{t0}, v{t0}, v{t1}")
    A(f"v_rcp_f32 v{t0}, v{t0}")
    for x in vals: A(f"v_mul_f32 v{x}, v{x}, v{t0}")
    PP = QF
    A(f"v_cvt_pk_bf16_f32 v{PP+2}, v{S+4}, v{S+5}\nv_cvt_pk_bf16_f32 v{PP+3}, v{S+6}, v{S+7}")
    A(f"v_cvt_pk_bf16_f32 v{t1}, v{S+8}, v{S+9}\nv_cvt_pk_bf16_f32 v{t2}, v{S+10}, v{S+11}")
    A(f"v_and_b32 v{PP+4}, v{t1}, v{M20}\nv_and_b32 v{PP+5}, v{t2}, v{M21}\nv_and_b32 v{PP}, v{t1}, v{N20}\nv_and_b32 v{PP+1}, v{t2}, v{N21}")
    A("s_waitcnt lgkmcnt(0)")
    for c in (1, 0, 2):
        for dg in range(5):
            A(f"v_mfma_f32_4x4x4_16b_bf16 v[{OO+4*dg}:{OO+4*dg+3}], v[{VF+2*(5*c+dg)}:{VF+2*(5*c+dg)+1}], v[{PP+2*c}:{PP+2*c+1}], v[{OO+4*dg}:{OO+4*dg+3}]")
    for dg in range(5):
        A(f"v_cvt_pk_bf16_f32 v{KF+2*dg}, v{OO+4*dg}, v{OO+4*dg+1}\nv_cvt_pk_bf16_f32 v{KF+2*dg+1}, v{OO+4*dg+2}, v{OO+4*dg+3}")
    for dg in range(5): A(f"ds_write_b64 v{aQ}, v[{KF+2*dg}:{KF+2*dg+1}] offset:{8*dg}")

def k3(A):
    name = "k3_kernel"
    kernel_begin(A, name)
    A("s_cmp_ge_u32 s2, 256\ns_cbranch_scc1 K3_end")
    load_ptr(A, 30, 'wsp'); load_ptr(A, 32, 'ws'); load_ptr(A, 34, 'bsp')
    wave_lane(A, 16)
    tile_map(A)
    st = Stamps(A, 2); st()
    E = E2(A, "K3", 6, 32, 4096, 2, 3)
    A(f"s_mul_i32 s17, s40, {64*4096}\ns_mul_i32 s18, s41, {32*6*2048}")
    A("s_waitcnt lgkmcnt(0)")
    A("s_cmp_lt_u32 s16, 4\ns_cbranch_scc1 K3_comp")
    srd(A, 4, 30, 2048*2048*2); srd(A, 8, 32, SZ_Z2P, WS_Z2P)
    E.loader_setup()
    E.loader_main(0)
    A("s_branch K3_end")
    A.label("K3_comp")
    A("s_and_b32 s46, s16, 1\ns_lshl_b32 s46, s46, 5\ns_lshr_b32 s47, s16, 1\ns_mul_i32 s47, s47, 3")
    PF = 116
    srd(A, 4, 32, SZ_Z1, WS_Z1); srd(A, 8, 32, SZ_G, WS_G); srd(A, 12, 34, 2048*2)
    A("s_lshl_b32 s43, s40, 6\ns_add_u32 s43, s43, s46")
    A("v_and_b32 v112, 15, v0\nv_add_u32 v112, s43, v112\nv_lshrrev_b32 v113, 4, v0")
    A("s_lshr_b32 s48, s43, 5\ns_mul_i32 s48, s48, 48\ns_mul_i32 s49, s41, 6\ns_add_u32 s48, s48, s49\ns_add_u32 s48, s48, s47\ns_lshl_b32 s48, s48, 10")
    A("v_lshlrev_b32 v114, 4, v0")
    for t in range(3): A(f"buffer_load_dwordx4 v[{PF+4*t}:{PF+4*t+3}], v114, s[4:7], s48 offen offset:{t*1024}")
    A("v_lshlrev_b32 v115, 2, v112")
    A(f"buffer_load_dword v{PF+12}, v115, s[8:11], 0 offen\nbuffer_load_dword v{PF+13}, v115, s[8:11], 0 offen offset:64")
    A("v_lshlrev_b32 v115, 1, v112")
    A(f"buffer_load_ushort v{PF+14}, v115, s[12:15], 0 offen\nbuffer_load_ushort v{PF+15}, v115, s[12:15], 0 offen offset:32")
    E.compute_setup(46, 47)
    st()
    E.compute(st)
    st()
    A("s_waitcnt vmcnt(0)")
    srd(A, 12, 32, SZ_AU, WS_AU)
    for m in range(2): A(f"v_lshlrev_b32 v{PF+14+m}, 16, v{PF+14+m}\nv_sub_f32 v{PF+12+m}, 1.0, v{PF+12+m}")
    T = 132
    for m in range(2):
        for t in range(3):
            ac = E.acc(m, t)
            for q in range(2):
                z = PF + 4*t + 2*m + q
                A(f"v_lshlrev_b32 v{T}, 16, v{z}\nv_and_b32 v{T+1}, 0xffff0000, v{z}")
                A(f"v_add_f32 v{T+2}, v{ac+2*q}, v{PF+14+m}\nv_add_f32 v{T+3}, v{ac+2*q+1}, v{PF+14+m}")
                A(f"v_mul_f32 v{T}, v{T}, v{PF+12+m}\nv_mul_f32 v{T+1}, v{T+1}, v{PF+12+m}")
                A(f"v_mul_f32 v{T+2}, v{T+2}, v{T}\nv_mul_f32 v{T+3}, v{T+3}, v{T+1}")
                A(f"v_cvt_pk_bf16_f32 v{z}, v{T+2}, v{T+3}")
    A("s_mov_b32 s45, 2816\nv_mul_lo_u32 v114, v112, s45\nv_lshl_add_u32 v114, v113, 3, v114")
    A("s_mul_i32 s48, s41, 192\ns_lshl_b32 s49, s47, 5\ns_add_u32 s48, s48, s49\ns_add_u32 s48, s48, 1280\nv_add_u32 v114, s48, v114")
    A(f"s_mov_b32 s49, {16*2816}")
    for m in range(2):
        for t in range(3):
            z = PF + 4*t + 2*m
            A(f"buffer_store_dwordx2 v[{z}:{z+1}], v114, s[12:15], {'s49' if m else '0'} offen offset:{t*32}")
    st(); st.flush(16, 32)
    A.label("K3_end")
    A("s_endpgm")
    return name, 256, 512, 6*SLOT, 140

def k4(A):
    name = "k4_kernel"
    kernel_begin(A, name)
    A("s_cmp_ge_u32 s2, 256\ns_cbranch_scc1 K4_end")
    load_ptr(A, 30, 'out'); load_ptr(A, 32, 'ws')
    wave_lane(A, 16)
    tile_map(A)
    st = Stamps(A, 3); st()
    E = E2(A, "K4", 5, 22, 2816, 1, 5)
    A(f"s_mul_i32 s17, s40, {64*2816}\ns_mul_i32 s18, s41, {22*5*2048}")
    A("s_waitcnt lgkmcnt(0)")
    A("s_cmp_lt_u32 s16, 4\ns_cbranch_scc1 K4_comp")
    srd(A, 4, 32, SZ_AU, WS_AU); srd(A, 8, 32, SZ_WP, WS_WP)
    E.loader_setup()
    E.loader_main(0)
    A("s_branch K4_end")
    A.label("K4_comp")
    A("s_lshl_b32 s46, s16, 4\ns_mov_b32 s47, 0")
    srd(A, 8, 32, SZ_G, WS_G)
    A("s_lshl_b32 s43, s40, 6\ns_add_u32 s43, s43, s46\nv_and_b32 v126, 15, v0\nv_add_u32 v126, s43, v126\nv_lshlrev_b32 v126, 2, v126")
    A("buffer_load_dword v125, v126, s[8:11], 0 offen")
    E.compute_setup(46, 47)
    st()
    def scale():
        A("s_waitcnt vmcnt(0)")
        for t in range(5):
            for r in range(4): A(f"v_mul_f32 v{E.acc(0,t)+r}, v{E.acc(0,t)+r}, v125")
    E.compute(st, unroll=True, hooks={9: scale})
    st()
    A("s_lshl_b32 s43, s40, 6\ns_add_u32 s43, s43, s46\nv_and_b32 v2, 15, v0\nv_add_u32 v2, s43, v2\nv_lshrrev_b32 v3, 4, v0")
    srd(A, 12, 30, 2048*640*2)
    PK = 8
    for t in range(5):
        ac = E.acc(0, t)
        A(f"v_cvt_pk_bf16_f32 v{PK+2*t}, v{ac}, v{ac+1}\nv_cvt_pk_bf16_f32 v{PK+2*t+1}, v{ac+2}, v{ac+3}")
    A("s_mov_b32 s45, 1280\nv_mul_lo_u32 v4, v2, s45\nv_lshl_add_u32 v4, v3, 3, v4\ns_mul_i32 s46, s41, 160\nv_add_u32 v4, s46, v4")
    for t in range(5): A(f"buffer_store_dwordx2 v[{PK+2*t}:{PK+2*t+1}], v4, s[12:15], 0 offen offset:{t*32}")
    st(); st.flush(16, 32)
    A.label("K4_end")
    A("s_endpgm")
    return name, 256, 512, 6*SLOT, 128

def k34(A):
    name = "k34_kernel"
    NS = 6; N1 = 32; N2 = 22; N = N1 + N2
    USTG = NS*SLOT
    LCNT = USTG + 64*208
    kernel_begin(A, name)
    A("s_cmp_ge_u32 s2, 256\ns_cbranch_scc1 K34_end")
    load_ptr(A, 30, 'wsp'); load_ptr(A, 32, 'ws'); load_ptr(A, 34, 'bsp'); load_ptr(A, 36, 'out'); load_ptr(A, 38, 'dbg')
    wave_lane(A, 16)
    tile_map(A)
    st = Stamps(A, 2); st()
    E1 = E2(A, "K34a", 6, N1, 4096, 2, 3)
    A("s_waitcnt lgkmcnt(0)")
    A("s_cmp_lt_u32 s16, 4\ns_cbranch_scc1 K34_comp")
    srd(A, 4, 30, 2048*2048*2); srd(A, 8, 32, SZ_Z2P, WS_Z2P)
    A(f"s_mul_i32 s17, s40, {64*4096}\ns_mul_i32 s18, s41, {32*6*2048}")
    E1.loader_setup()
    A("v_lshrrev_b32 v7, 3, v0\nv_and_b32 v4, 7, v0\nv_xor_b32 v4, v4, v7\nv_mul_u32_u24 v7, 2816, v7\nv_lshl_add_u32 v4, v4, 4, v7")
    A("v_lshrrev_b32 v7, 3, v0\nv_and_b32 v5, 7, v0\nv_xor_b32 v5, v5, v7\nv_mul_u32_u24 v7, 384, v7\nv_lshl_add_u32 v10, v5, 4, v7")
    for i in range(NS - 1): E1.issue()
    A(f"s_waitcnt vmcnt({(NS - 2)*5})\ns_barrier")
    E1.issue()
    A("s_mov_b32 s14, 0")
    A.label("K34_lloop")
    A(f"s_waitcnt vmcnt({(NS-2)*5})\ns_barrier")
    E1.issue()
    A(f"s_add_u32 s14, s14, 1\ns_cmp_lt_u32 s14, {N1 - NS}\ns_cbranch_scc1 K34_lloop")
    srd(A, 4, 32, SZ_AU, WS_AU); srd(A, 8, 32, SZ_WP, WS_WP); srd(A, 12, 32, SZ_FL, WS_FL)
    A(f"s_mul_i32 s17, s40, {64*2816}\ns_mul_i32 s20, s21, {16*2816}\ns_add_u32 s23, s17, s20")
    A(f"s_mul_i32 s18, s41, {22*5*2048}\ns_mul_i32 s20, s21, 3072\ns_add_u32 s24, s18, s20")
    A(f"s_mul_i32 s20, s21, 3\ns_cmp_ge_u32 s20, 9\ns_cselect_b32 s28, {KILL}, 0\ns_cmp_ge_u32 s20, 8\ns_cselect_b32 s29, {KILL}, 0")
    A("s_lshl_b32 s44, s40, 7\nv_and_b32 v8, 7, v0\nv_lshlrev_b32 v8, 2, v8\nv_add_u32 v8, s44, v8")
    srd(A, 48, 32, SZ_U, WS_U)
    A(f"s_mul_i32 s52, s40, {4*24576}\ns_mul_i32 s20, s21, {16*384}\ns_add_u32 s52, s52, s20")
    issued = [('S', s) for s in range(N1 - NS + 2 - 1, N1) for _ in range(5)]
    def issueP(s):
        sl = s % NS; s2_ = s - N1
        fl = " sc1" if (s2_ >= 10 and O.usc1) else ""
        A(f"s_add_u32 m0, s27, {sl*SLOT}")
        if s2_ < 10:
            A(f"s_add_u32 s20, s23, {s2_*128}\ns_add_u32 s25, s23, {s2_*128 + 8*2816 - 1024}")
            A(f"buffer_load_dwordx4 v4, s[4:7], s20 offen lds")
            A(f"buffer_load_dwordx4 v4, s[4:7], s25 offen offset:1024 lds")
        else:
            a_, b_ = divmod(s2_ - 10, 3)
            A(f"s_add_u32 s20, s52, {a_*24576 + b_*128}\ns_add_u32 s25, s52, {a_*24576 + b_*128 + 8*384 - 1024}")
            A(f"buffer_load_dwordx4 v10, s[48:51], s20 offen{fl} lds")
            A(f"buffer_load_dwordx4 v10, s[48:51], s25 offen offset:1024{fl} lds")
        issued.extend([('P', s)]*2)
    def issueT(s):
        sl = s % NS; s2_ = s - N1
        A(f"s_add_u32 m0, s26, {sl*SLOT}")
        A(f"s_add_u32 s20, s24, {s2_*10240}\ns_add_u32 s25, s20, s28\ns_add_u32 s45, s20, s29")
        A("buffer_load_dwordx4 v3, s[8:11], s20 offen lds")
        A("buffer_load_dwordx4 v3, s[8:11], s25 offen offset:1024 lds")
        A("buffer_load_dwordx4 v3, s[8:11], s45 offen offset:2048 lds")
        issued.extend([('T', s)]*3)
    def wait_for(needs):
        last = -1
        for idx, tg in enumerate(issued):
            if tg in needs: last = idx
        if last < 0: return
        A(f"s_waitcnt vmcnt({min(len(issued) - 1 - last, 63)})")
    FIRSTU = N1 + 10
    POLL_I = O.poll_i
    deferred = []
    gate_open = False
    for i in range(N1 - NS, N):
        nxt = i + 1
        if nxt < N:
            wait_for([('S', nxt), ('P', nxt), ('T', nxt)])
        A("s_barrier")
        if i == POLL_I + 1:
            wait_for([('X', 0)])
            A("v_cmp_ne_u32 vcc, 1, v9\ns_nop 4")
            A("s_cbranch_vccz K34_ready")
            A("s_mov_b32 s47, 0")
            A.label("K34_poll")
            A(f"s_sleep {O.sleep}")
            A("buffer_load_dword v9, v8, s[12:15], 0 offen sc1")
            A("s_waitcnt vmcnt(0)")
            A("v_cmp_ne_u32 vcc, 1, v9")
            A("s_add_u32 s47, s47, 1\ns_nop 3")
            A("s_cbranch_vccz K34_ready")
            A("s_cmp_lt_u32 s47, 0x40000\ns_cbranch_scc1 K34_poll")
            A.label("K34_ready")
            gate_open = True
            for s in deferred: issueP(s)
            deferred = []
        s = i + NS
        if s < N:
            issueT(s)
            if s >= FIRSTU and not gate_open: deferred.append(s)
            else: issueP(s)
        if i == POLL_I:
            A("buffer_load_dword v9, v8, s[12:15], 0 offen sc1")
            issued.append(('X', 0))
    assert not deferred
    A("s_branch K34_end")
    A.label("K34_comp")
    A("s_and_b32 s46, s16, 1\ns_lshl_b32 s46, s46, 5\ns_lshr_b32 s47, s16, 1\ns_mul_i32 s47, s47, 3")
    PF = 116
    C1R = 212
    C1R = 140
    C1R = 188
    BB = 132
    COA = 88
    srd(A, 4, 32, SZ_Z1, WS_Z1); srd(A, 8, 32, SZ_G, WS_G); srd(A, 12, 34, 2048*2)
    A("s_lshl_b32 s43, s40, 6\ns_add_u32 s43, s43, s46")
    A("v_and_b32 v112, 15, v0\nv_add_u32 v112, s43, v112\nv_lshrrev_b32 v113, 4, v0")
    A("s_lshr_b32 s48, s43, 5\ns_mul_i32 s48, s48, 48\ns_mul_i32 s49, s41, 6\ns_add_u32 s48, s48, s49\ns_add_u32 s48, s48, s47\ns_lshl_b32 s48, s48, 10")
    A("v_lshlrev_b32 v114, 4, v0")
    for t in range(3): A(f"buffer_load_dwordx4 v[{PF+4*t}:{PF+4*t+3}], v114, s[4:7], s48 offen offset:{t*1024}")
    A("v_lshlrev_b32 v115, 2, v112")
    A(f"buffer_load_dword v{PF+12}, v115, s[8:11], 0 offen\nbuffer_load_dword v{PF+13}, v115, s[8:11], 0 offen offset:64")
    A("v_lshlrev_b32 v115, 1, v112")
    A(f"buffer_load_ushort v{PF+14}, v115, s[12:15], 0 offen\nbuffer_load_ushort v{PF+15}, v115, s[12:15], 0 offen offset:32")
    A("s_lshl_b32 s50, s40, 6\ns_lshl_b32 s51, s16, 4\ns_add_u32 s50, s50, s51\nv_and_b32 v137, 15, v0\nv_add_u32 v137, s50, v137\nv_lshlrev_b32 v138, 2, v137")
    A("buffer_load_dword v136, v138, s[8:11], 0 offen")
    A(f"s_mov_b32 s53, {USTG}")
    A(f"v_mov_b32 v138, {LCNT}\nv_mov_b32 v139, 0\nds_write_b32 v138, v139")
    E1.compute_setup(46, 47)
    E2b = E2(A, "K34b", 5, N2, 2816, 1, 5)
    E2b.F = [140, 188]; E2b.ACC = 236; E2b.vend = 256
    st()
    A("s_barrier")
    for x in E1.reads(0): A(x)
    A("s_waitcnt vmcnt(0)")
    for m in range(2):
        A(f"v_lshlrev_b32 v{BB+2*m}, 16, v{PF+14+m}\nv_mov_b32 v{BB+2*m+1}, v{BB+2*m}\nv_sub_f32 v{PF+12+m}, 1.0, v{PF+12+m}")
    for m in range(2):
        for t in range(3):
            c = C1R + 4*(3*m + t)
            for q in range(2):
                z = PF + 4*t + 2*m + q
                A(f"v_lshlrev_b32 v{c+2*q}, 16, v{z}\nv_and_b32 v{c+2*q+1}, 0xffff0000, v{z}")
    for m in range(2):
        for t in range(3):
            c = C1R + 4*(3*m + t)
            for r in range(4): A(f"v_mul_f32 v{c+r}, v{c+r}, v{PF+12+m}")
    A("s_waitcnt lgkmcnt(0)")
    st()
    A("s_mov_b32 s19, 0")
    A.label("K34_cloop")
    for i in range(NS): E1.step(i)
    A(f"s_add_u32 s19, s19, 1\ns_cmp_lt_u32 s19, 5\ns_cbranch_scc1 K34_cloop")
    E1.step(30)
    A("v_and_b32 v4, 15, v0\nv_lshrrev_b32 v5, 4, v0\nv_and_b32 v6, 7, v4\nv_xor_b32 v5, v5, v6\nv_lshlrev_b32 v4, 7, v4\nv_lshl_add_u32 v4, v5, 4, v4")
    A("s_lshl_b32 s20, s16, 11\nv_add_u32 v2, s20, v4\nv_xor_b32 v3, 64, v2")
    A("v_and_b32 v6, 15, v0\nv_lshlrev_b32 v6, 3, v6\nv_and_b32 v7, 16, v0\nv_lshl_add_u32 v6, v7, 3, v6\nv_and_b32 v7, 32, v0\nv_lshl_add_u32 v6, v7, 4, v6")
    A("v_add_u32 v4, 8192, v6")
    A(f"v_add_u32 v5, {3*SLOT}, v2\nv_add_u32 v6, {3*SLOT}, v3\nv_add_u32 v7, {3*SLOT}, v4")
    for i in range(236, 256): A(f"v_mov_b32 v{i}, 0")
    def mixed_step(Ecur, icur, Enext, inext):
        s = icur & 1
        rd = Enext.reads(inext) if Enext else []
        mf = [f"v_mfma_f32_16x16x32_bf16 v[{Ecur.acc(m,t)}:{Ecur.acc(m,t)+3}], v[{Ecur.fT(s,kk,t)}:{Ecur.fT(s,kk,t)+3}], v[{Ecur.fP(s,kk,m)}:{Ecur.fP(s,kk,m)+3}], v[{Ecur.acc(m,t)}:{Ecur.acc(m,t)+3}]"
              for kk in range(2) for m in range(Ecur.mP) for t in range(Ecur.nT)]
        A("s_barrier")
        per = (len(rd) + len(mf) - 1)//len(mf) if rd else 0
        for x in mf:
            for _ in range(per):
                if rd: A(rd.pop(0))
            A(x)
        A("s_waitcnt lgkmcnt(0)")
    mixed_step(E1, 31, E2b, 32)
    st()
    for m in range(2):
        for t in range(3):
            ac = E1.acc(m, t); c = C1R + 4*(3*m + t)
            for q in range(2):
                A(f"v_pk_add_f32 v[{ac+2*q}:{ac+2*q+1}], v[{ac+2*q}:{ac+2*q+1}], v[{PF+14+m-(PF+14+m)%2 if False else BB+2*m}:{BB+2*m+1}]")
    for m in range(2):
        for t in range(3):
            ac = E1.acc(m, t); c = C1R + 4*(3*m + t)
            for q in range(2):
                A(f"v_pk_mul_f32 v[{ac+2*q}:{ac+2*q+1}], v[{ac+2*q}:{ac+2*q+1}], v[{c+2*q}:{c+2*q+1}]")
    for m in range(2):
        for t in range(3):
            ac = E1.acc(m, t); z = PF + 4*t + 2*m
            A(f"v_cvt_pk_bf16_f32 v{z}, v{ac}, v{ac+1}\nv_cvt_pk_bf16_f32 v{z+1}, v{ac+2}, v{ac+3}")
    A("v_and_b32 v114, 15, v0\nv_add_u32 v114, s46, v114\nv_mul_u32_u24 v114, 208, v114\nv_lshl_add_u32 v114, v113, 3, v114")
    A(f"s_lshl_b32 s48, s47, 5\ns_add_u32 s48, s48, {USTG}\nv_add_u32 v114, s48, v114")
    for m in range(2):
        for t in range(3):
            z = PF + 4*t + 2*m
            A(f"ds_write_b64 v114, v[{z}:{z+1}] offset:{m*16*208 + t*32}")
    A("s_mul_i32 s20, s16, 192\nv_add_u32 v138, s20, v0")
    for q in range(3):
        A(f"v_add_u32 v139, {64*q}, v138\nv_mul_u32_u24 v114, 5462, v139\nv_lshrrev_b32 v114, 16, v114")
        A(f"v_mul_u32_u24 v115, 12, v114\nv_sub_u32 v115, v139, v115\nv_lshlrev_b32 v115, 4, v115")
        A(f"v_mul_u32_u24 v139, 208, v114\nv_add3_u32 v{COA+q}, v139, v115, s53\nv_mul_u32_u24 v139, 384, v114\nv_add_u32 v{COA+3+q}, v139, v115")
    A("s_waitcnt lgkmcnt(0)")
    st()
    def signal():
        A("s_waitcnt vmcnt(0)")
        A(f"v_mov_b32 v138, {LCNT}\nv_mov_b32 v139, 1")
        A("s_mov_b64 exec, 1")
        A("ds_add_rtn_u32 v139, v138, v139")
        A("s_waitcnt lgkmcnt(0)")
        A("v_readfirstlane_b32 s20, v139")
        A("s_cmp_lg_u32 s20, 3\ns_cbranch_scc1 K34_nosig")
        srd(A, 12, 32, SZ_FL, WS_FL)
        A("s_lshl_b32 s20, s40, 7\ns_lshl_b32 s21, s41, 2\ns_add_u32 s20, s20, s21\nv_mov_b32 v138, s20\nv_mov_b32 v139, 1")
        A("buffer_store_dword v139, v138, s[12:15], 0 offen sc1")
        A.label("K34_nosig")
        A("s_mov_b64 exec, -1")
    for i in range(N1, N):
        last = (i == N - 1)
        mixed_step(E2b, i, None if last else E2b, i + 1)
        if i == N1:
            srd(A, 12, 32, SZ_U, WS_U)
            for q in range(3): A(f"ds_read_b128 v[{PF+4*q}:{PF+4*q+3}], v{COA+q}")
            A("s_lshl_b32 s48, s40, 2\ns_lshr_b32 s49, s41, 1\ns_add_u32 s48, s48, s49\ns_mul_i32 s48, s48, 24576\ns_and_b32 s49, s41, 1\ns_mul_i32 s49, s49, 192\ns_add_u32 s48, s48, s49")
            A("s_waitcnt lgkmcnt(0)")
            for q in range(3): A(f"buffer_store_dwordx4 v[{PF+4*q}:{PF+4*q+3}], v{COA+3+q}, s[12:15], s48 offen sc1")
        if i in (33, 36, 38, 40, 41, 42, 45, 49): st()
        if i == O.sig_i: signal()
        if i == N1 + 9:
            for t in range(5):
                for r in range(4): A(f"v_mul_f32 v{E2b.acc(0,t)+r}, v{E2b.acc(0,t)+r}, v136")
    st()
    srd(A, 12, 36, 2048*640*2)
    PK = 8
    for t in range(5):
        ac = E2b.acc(0, t)
        A(f"v_cvt_pk_bf16_f32 v{PK+2*t}, v{ac}, v{ac+1}\nv_cvt_pk_bf16_f32 v{PK+2*t+1}, v{ac+2}, v{ac+3}")
    A("v_lshrrev_b32 v3, 4, v0\ns_mov_b32 s45, 1280\nv_mul_lo_u32 v4, v137, s45\nv_lshl_add_u32 v4, v3, 3, v4\ns_mul_i32 s46, s41, 160\nv_add_u32 v4, s46, v4")
    for t in range(5): A(f"buffer_store_dwordx2 v[{PK+2*t}:{PK+2*t+1}], v4, s[12:15], 0 offen offset:{t*32}")
    st(); st.flush(16, 32, 20)
    A.label("K34_end")
    A("s_endpgm")
    return name, 256, 512, NS*SLOT + 64*208 + 64, 256

def main(out, kernels):
    body = Asm(); ks = []
    for f in kernels: ks.append(f(body))
    hdr = [f"; @launch kernel={n} grid=({g},1,1) block=({b},1,1) lds={lds}" for (n, g, b, lds, vg) in ks]
    hdr.append('.amdgcn_target "amdgcn-amd-amdhsa--gfx950"'); hdr.append(".text")
    lines = hazard.fix(body.lines, verbose=True)
    txt = "\n".join(hdr) + "\n" + "\n".join(lines) + "\n" + '.section .rodata,"a"\n'
    for (n, g, b, lds, vg) in ks: txt += kernel_desc(n, 256 if O.stamp else vg, 96)
    open(out, "w").write(txt)
if __name__ == "__main__":
    if '--stamp' in sys.argv: O.stamp = True
    if '--norot' in sys.argv: O.rot = False
    if '--pfg' in sys.argv: O.pfg = True
    if '--nofull' in sys.argv: O.fullring = False
    for a_ in sys.argv:
        if a_.startswith('--tla='): O.tla = int(a_[6:])
    for a_ in sys.argv:
        if a_.startswith('--pfg2='): O.pfg2 = int(a_[7:])
    if '--itstamp' in sys.argv: O.itstamp = True
    if '--nowsp' in sys.argv: O.wsp_pf = False
    for a_ in sys.argv:
        if a_.startswith('--poll='): O.poll_i = int(a_[7:])
        if a_.startswith('--sig='): O.sig_i = int(a_[6:])
    if '--full' in sys.argv: O.fullring = True; O.tla = 6
    if '--nofuse' in sys.argv: O.fuse = False
    if '--nosc1' in sys.argv: O.usc1 = False
    for a_ in sys.argv:
        if a_.startswith('--rottab='): O.rottab = int(a_[9:], 16)
    for a_ in sys.argv:
        if a_.startswith('--sleep='): O.sleep = int(a_[8:])
    main(sys.argv[1], [k1, k34] if O.fuse else [k1, k3, k4])
```

```python
import sys, struct
from asmlib import *
import hazard
NAME = "gated_mix__sliding_local_dilated__mixer_gmlp__prompt"
KA = dict(x=0, wqkv=8, wo=16, bx=24, win=32, wsp=40, bsp=48, wout=56, gw=64, out=72, dbg=80, ws=88)
QP = 504
HGS = 2048*QP
WS_QKVG = 0;          SZ_QKVG = 8*HGS
WS_Z1  = 0x900000;    SZ_Z1 = 2048*768*2
WS_Z2P = 0xC00000;    SZ_Z2P = 2048*768*2
WS_AU  = 0xF00000;    SZ_AU = 2048*1408*2
WS_WP  = 0x1500000;   SZ_WP = 1408*640*2
WS_ST  = 0x1700000;   SZ_ST = 8*2048*16
WS_G   = 0x1740000;   SZ_G = 2048*4
WS_EP  = 0x1760000;   SZ_EP = 16*128
WS_FL  = 0x1750000;   SZ_FL = 32*128
WS_U   = 0x1800000;   SZ_U = 2048*768*2
WS_TS  = 0x2000000
KILL = 0x40000000
C0 = -2.0*0.7978845608028654*1.4426950408889634
C1 = C0*0.044715
def f2u(f): return struct.unpack('<I', struct.pack('<f', f))[0]
class Opt:
    stamp = False; rot = True; wsp_pf = True; la = 5; itstamp = False; pfg = False; pfg2 = 2; fullring = False; tla = 4; poll_i = 38; sig_i = 33; fuse = True; usc1 = True; hdiag = False; sleep = 4; rottab = 0x8530
O = Opt()

def load_ptr(A, sd, key): A(f"s_load_dwordx2 s[{sd}:{sd+1}], s[0:1], {KA[key]}")
def wave_lane(A, s_w):
    A("v_lshrrev_b32 v1, 6, v0")
    A(f"v_readfirstlane_b32 s{s_w}, v1")
    A("v_and_b32 v0, 63, v0")

class Stamps:
    def __init__(self, A, kidx, n0=0): self.A = A; self.n = n0; self.k = kidx
    def __call__(self):
        if not O.stamp: return
        assert self.n < 16
        self.A(f"s_memtime s[{60+2*self.n}:{61+2*self.n}]"); self.n += 1
    def flush(self, s_w, s_ws, vt=250):
        if not O.stamp: return
        A = self.A
        A("s_waitcnt vmcnt(0)")
        A("s_memrealtime s[92:93]")
        A("s_waitcnt lgkmcnt(0)")
        srd(A, 56, s_ws, 0x100000, WS_TS + self.k*0x40000)
        A(f"s_lshl_b32 s54, s2, 2\ns_add_u32 s54, s54, s{s_w}\ns_lshl_b32 s54, s54, 7")
        A("s_mov_b64 exec, 1")
        for i in range(self.n):
            A(f"v_mov_b32 v{vt}, s{60+2*i}\nv_mov_b32 v{vt+1}, {4*i}")
            A(f"buffer_store_dword v{vt}, v{vt+1}, s[56:59], s54 offen")
        A(f"v_mov_b32 v{vt}, s92\nv_mov_b32 v{vt+1}, 124")
        A(f"buffer_store_dword v{vt}, v{vt+1}, s[56:59], s54 offen")
        A("s_mov_b64 exec, -1")


def it_top(A):
    if not O.itstamp: return
    A("s_memtime s[76:77]\ns_waitcnt lgkmcnt(0)")
    for k in range(3): A(f"s_cmp_eq_u32 s26, {k}\ns_cselect_b32 s{80+k}, s76, s{80+k}")
def it_mid(A):
    if O.itstamp: A("s_memtime s[76:77]\ns_waitcnt lgkmcnt(0)\ns_mov_b32 s83, s76")
def it_end(A, va, vb):
    if not O.itstamp: return
    A("s_memtime s[76:77]\ns_waitcnt lgkmcnt(0)\ns_mov_b32 s84, s76")
    srd(A, 56, 32, 0x200000, WS_TS + 7*0x40000)
    A("s_lshl_b32 s54, s2, 2\ns_add_u32 s54, s54, s16\ns_lshl_b32 s54, s54, 7")
    A("s_mov_b64 exec, 1")
    for i in range(11):
        A(f"v_mov_b32 v{va}, s{80+i}\nv_mov_b32 v{vb}, {4*i}")
        A(f"buffer_store_dword v{va}, v{vb}, s[56:59], s54 offen")
    A("s_mov_b64 exec, -1")


def hd_start(A):
    if O.hdiag: A("s_memtime s[94:95]\ns_memrealtime s[92:93]\ns_waitcnt lgkmcnt(0)\ns_mov_b32 s90, s94\ns_mov_b32 s91, s92")
def hd_end(A, s_ws, slot_sreg_expr, cond_wg, vt):
    if not O.hdiag: return
    L = A.newlabel("hd")
    A(f"s_cmp_lg_u32 s2, {cond_wg}\ns_cbranch_scc1 {L}\ns_cmp_lg_u32 s16, 0\ns_cbranch_scc1 {L}")
    A("s_waitcnt vmcnt(0)\ns_memtime s[94:95]\ns_memrealtime s[92:93]\ns_waitcnt lgkmcnt(0)")
    A("s_sub_u32 s94, s94, s90\ns_sub_u32 s95, s92, s91")
    srd(A, 84, s_ws, 4096, WS_TS)
    A(f"v_mov_b32 v{vt}, s94\nv_mov_b32 v{vt+1}, s95\nv_mov_b32 v{vt+2}, s91\nv_mov_b32 v{vt+3}, s92\nv_mov_b32 v{vt+4}, {slot_sreg_expr*16}")
    A("s_mov_b64 exec, 1")
    A(f"buffer_store_dwordx4 v[{vt}:{vt+3}], v{vt+4}, s[84:87], 0 offen")
    A("s_mov_b64 exec, -1")
    A.label(L)

def gelu_pk(A, regs, tmp, sC):
    n = len(regs)
    for i, r in enumerate(regs): A(f"v_pk_mul_f32 v[{tmp+2*i}:{tmp+2*i+1}], v[{r}:{r+1}], v[{r}:{r+1}]")
    for i, r in enumerate(regs): A(f"v_pk_fma_f32 v[{tmp+2*i}:{tmp+2*i+1}], v[{tmp+2*i}:{tmp+2*i+1}], s[{sC}:{sC+1}], v[6:7]")
    for i, r in enumerate(regs): A(f"v_pk_mul_f32 v[{tmp+2*i}:{tmp+2*i+1}], v[{tmp+2*i}:{tmp+2*i+1}], v[{r}:{r+1}]")
    for i in range(2*n): A(f"v_exp_f32 v{tmp+i}, v{tmp+i}")
    for i, r in enumerate(regs): A(f"v_pk_add_f32 v[{tmp+2*i}:{tmp+2*i+1}], v[{tmp+2*i}:{tmp+2*i+1}], 1.0 op_sel_hi:[1,0]")
    for i in range(2*n): A(f"v_rcp_f32 v{tmp+i}, v{tmp+i}")
    for i, r in enumerate(regs): A(f"v_pk_mul_f32 v[{r}:{r+1}], v[{r}:{r+1}], v[{tmp+2*i}:{tmp+2*i+1}]")

def k1_geom(typ):
    if typ == 'q':
        return dict(pitchW=3840, PROWS=144, PSLOT=144*128, NPS=3, TSLOT=15360, R=6, TBASE=3*144*128)
    return dict(pitchW=3072, PROWS=128, PSLOT=128*128, NPS=3, TSLOT=16384, R=6, TBASE=3*128*128)

def k1_wsp_prefetch(A, part):
    if part == 0:
        srd(A, 4, 52, 2048*2048*2)
        A("s_and_b32 s40, s2, 7\ns_lshr_b32 s40, s40, 1\ns_lshl_b32 s40, s40, 14")
        A("s_lshr_b32 s41, s2, 3\ns_and_b32 s41, s41, 15\ns_lshl_b32 s41, s41, 10\ns_add_u32 s40, s40, s41")
        A("s_sub_u32 s41, s16, 4\ns_lshl_b32 s41, s41, 8\ns_add_u32 s40, s40, s41")
        A("s_lshl_b32 s40, s40, 7")
        A("v_lshlrev_b32 v249, 7, v0")
    else:
        A("s_add_u32 s40, s40, 8192")
    A(f"buffer_load_dword v{250 + (part & 1)}, v249, s[4:7], s40 offen")

def pf_setup(A):
    A("s_cmp_lt_u32 s21, 2\ns_cselect_b32 s84, s30, s34\ns_cselect_b32 s85, s31, s35")
    A(f"s_mov_b32 s86, {640*1920*2}\ns_cselect_b32 s86, {2048*640*2}, s86")
    A("s_cmp_eq_u32 s21, 3\ns_cselect_b32 s84, s36, s84\ns_cselect_b32 s85, s37, s85")
    A(f"s_cselect_b32 s86, {640*1536*2}, s86\ns_mov_b32 s87, 0x20000")
    A("s_lshr_b32 s88, s2, 3\ns_and_b32 s89, s2, 7\ns_lshr_b32 s90, s89, 1\ns_and_b32 s89, s89, 1")
    A("s_lshl_b32 s91, s89, 10\ns_lshl_b32 s92, s88, 5\ns_add_u32 s91, s91, s92\ns_lshl_b32 s92, s21, 4\ns_add_u32 s91, s91, s92")
    A("v_lshrrev_b32 v20, 2, v0\nv_add_u32 v20, s91, v20\nv_mul_u32_u24 v20, 1280, v20\nv_and_b32 v21, 3, v0\nv_lshl_add_u32 v20, v21, 7, v20\nv_add_u32 v20, 384, v20")
    A("v_mul_u32_u24 v21, 57, v0\nv_lshrrev_b32 v21, 9, v21\nv_mul_u32_u24 v22, 9, v21\nv_sub_u32 v22, v0, v22")
    A("s_mul_i32 s91, s88, 7\ns_add_u32 s91, s91, 192\nv_add_u32 v21, s91, v21\nv_mul_u32_u24 v21, 3840, v21")
    A("v_mul_u32_u24 v23, 171, v22\nv_lshrrev_b32 v23, 9, v23\nv_mul_u32_u24 v25, 3, v23\nv_sub_u32 v22, v22, v25")
    A("s_lshl_b32 s91, s90, 2\ns_lshr_b32 s91, 0x7520, s91\ns_and_b32 s91, s91, 15")
    A("v_add_u32 v22, s91, v22\nv_lshlrev_b32 v22, 7, v22\nv_mul_u32_u24 v23, 1280, v23\nv_add3_u32 v21, v21, v22, v23")
    A(f"v_mov_b32 v25, {KILL}\nv_cmp_le_u32 vcc, 63, v0\nv_cndmask_b32 v21, v21, v25, vcc")
    A("v_mul_u32_u24 v22, 43, v0\nv_lshrrev_b32 v22, 8, v22\nv_mul_u32_u24 v23, 6, v22\nv_sub_u32 v23, v0, v23")
    A("s_mul_i32 s91, s88, 7\ns_add_u32 s91, s91, 192\nv_add_u32 v22, s91, v22\nv_mul_u32_u24 v22, 3072, v22")
    A("v_mul_u32_u24 v26, 171, v23\nv_lshrrev_b32 v26, 9, v26\nv_mul_u32_u24 v27, 3, v26\nv_sub_u32 v23, v23, v27")
    A("v_lshlrev_b32 v23, 7, v23\nv_mul_u32_u24 v26, 1536, v26\nv_add3_u32 v22, v22, v23, v26\ns_mul_i32 s91, s90, 384\nv_add_u32 v22, s91, v22")
    A("v_cmp_le_u32 vcc, 42, v0\nv_cndmask_b32 v22, v22, v25, vcc")
    A("s_cmp_lt_u32 s21, 2\ns_cselect_b64 s[90:91], -1, 0\ns_cselect_b32 s88, 384, 0")
    A("v_cndmask_b32 v24, v21, v20, s[90:91]")
    A(f"s_cmp_eq_u32 s21, 2\ns_cselect_b32 s88, {224*3840}, s88")
    A(f"s_cmp_eq_u32 s21, 3\ns_cselect_b32 s88, {224*3072}, s88\ns_cselect_b64 s[90:91], -1, 0")
    A("v_cndmask_b32 v24, v24, v22, s[90:91]")

def pf_group(A, g):
    if g == 0: A("buffer_load_dword v248, v24, s[84:87], 0 offen")
    else: A("buffer_load_dword v248, v24, s[84:87], s88 offen")

def run_loader_schedule(A, issueP, issueT, issued, hooks=None, wsp=False):
    NB = 20; NPS = 3; R = 6
    def wait_for(needs):
        last = -1
        for idx, tg in enumerate(issued):
            if tg in needs: last = idx
        if last < 0: return
        A(f"s_waitcnt vmcnt({min(len(issued) - 1 - last, 63)})")
    TLA = O.tla
    issueP(0, 0); issueP(0, 1); issueT(0); issueT(1)
    issueP(1, 0); issueP(1, 1)
    for t in range(2, TLA): issueT(t)
    if O.fullring: issueP(2, 0); issueP(2, 1)
    if O.pfg:
        pf_setup(A); pf_group(A, 0); issued.append(('F', 0))
    wait_for([('P', 0), ('T', 0)])
    A("s_barrier")
    if not O.fullring: issueP(2, 0)
    for b in range(NB):
        needs = []
        if b + 1 < NB: needs = [('T', b+1), ('P', (b+1)//2)]
        if needs: wait_for(needs)
        A("s_barrier")
        if b + TLA < NB: issueT(b + TLA)
        if b == 0 and not O.fullring: issueP(2, 1)
        if b % 2 == 1:
            s = (b - 1)//2 + NPS
            if s < NB//2: issueP(s, 0)
        elif b >= 2:
            s = (b - 2)//2 + NPS
            if s < NB//2: issueP(s, 1)
        if O.pfg and b == O.pfg2: pf_group(A, 1); issued.append(('F', 1))
        if hooks and b in hooks: hooks[b](issued)
        W0 = max(14, 20 - TLA)
        if wsp and O.wsp_pf and W0 <= b < W0 + 4: k1_wsp_prefetch(A, b - W0); issued.append(('W', b))
    A("s_barrier")

def rot_stage(A, s, dst):
    A(f"s_add_u32 s{dst}, s28, {s}\ns_cmp_ge_u32 s{dst}, 10\ns_cselect_b32 s29, 10, 0\ns_sub_u32 s{dst}, s{dst}, s29")
def rot_beat(A, b, dst):
    A(f"s_lshl_b32 s{dst}, s28, 1\ns_add_u32 s{dst}, s{dst}, {b}\ns_cmp_ge_u32 s{dst}, 20\ns_cselect_b32 s29, 20, 0\ns_sub_u32 s{dst}, s{dst}, s29")

def k1_loader_z(A):
    G = k1_geom('z'); pitchW = G['pitchW']; PSLOT = G['PSLOT']; TSLOT = G['TSLOT']; TBASE = G['TBASE']
    lw = 21
    A(f"s_sub_u32 s{lw}, s16, 4")
    A("v_lshrrev_b32 v7, 3, v0\nv_and_b32 v2, 7, v0\nv_xor_b32 v2, v2, v7\nv_mul_u32_u24 v7, 1280, v7\nv_lshl_add_u32 v2, v2, 4, v7")
    A("v_lshrrev_b32 v4, 4, v0")
    A(f"s_and_b32 s20, s{lw}, 1\ns_lshl_b32 s20, s20, 2")
    A("v_add_u32 v5, s20, v4\nv_lshlrev_b32 v5, 1, v5\nv_and_b32 v6, 15, v0\nv_xor_b32 v6, v6, v5")
    A(f"v_mul_u32_u24 v4, {pitchW}, v4\nv_lshl_add_u32 v3, v6, 4, v4")
    A(f"v_cmp_le_u32 vcc, 12, v6\nv_mov_b32 v5, {KILL}\nv_cndmask_b32 v3, v3, v5, vcc")
    nP = 2; half_rows = 64
    A(f"s_mul_i32 s20, s{lw}, {nP*8*1280}\ns_add_u32 s22, s17, s20")
    A(f"s_mul_i32 s23, s{lw}, {nP*1024}")
    A(f"s_mul_i32 s20, s{lw}, {8*pitchW}\ns_add_u32 s24, s18, s20\ns_add_u32 s25, s19, s20")
    A(f"s_lshl_b32 s26, s{lw}, 11\ns_add_u32 s26, s26, {TBASE}")
    issued = []
    def issueP(s, h2):
        slot = s % 3
        rot_stage(A, s, 27)
        A("s_lshl_b32 s27, s27, 7\ns_add_u32 s27, s27, s22")
        A(f"s_add_u32 m0, s23, {slot*PSLOT + h2*half_rows*128}")
        for i in range(nP):
            A(f"s_add_u32 s20, s27, {h2*half_rows*1280 + i*(8*1280 - 1024)}")
            A(f"buffer_load_dwordx4 v2, s[4:7], s20 offen offset:{i*1024} lds")
            issued.append(('P', s))
    def issueT(b):
        slot = b % 6
        rot_beat(A, b, 27)
        A(f"s_mul_i32 s27, s27, {32*pitchW}")
        for u, sb in enumerate([24, 25]):
            A(f"s_add_u32 m0, s26, {slot*TSLOT + u*8192}")
            A(f"s_add_u32 s29, s27, s{sb}")
            for i in range(2):
                A(f"s_add_u32 s20, s29, {i*(4*pitchW - 1024)}")
                A(f"buffer_load_dwordx4 v3, s[8:11], s20 offen offset:{i*1024} lds")
                issued.append(('T', b))
    def gate_load(issued):
        srd(A, 12, 38, 640*2)
        A("v_lshlrev_b32 v10, 2, v0")
        for i in range(5): A(f"buffer_load_dword v{40+i}, v10, s[12:15], 0 offen offset:{256*i}")
        A("s_lshl_b32 s58, s48, 7\ns_lshl_b32 s59, s49, 4\ns_add_u32 s58, s58, s59\ns_lshl_b32 s59, s21, 2\ns_add_u32 s58, s58, s59")
        A("s_mul_i32 s59, s58, 1280")
        for r in range(4):
            A(f"s_add_u32 s57, s59, {r*1280}")
            for i in range(5): A(f"buffer_load_dword v{48+5*r+i}, v10, s[4:7], s57 offen offset:{256*i}")
        issued.extend([('G', 0)]*25)
    def gate_finish(issued):
        last = max(i for i, t in enumerate(issued) if t == ('G', 0))
        A(f"s_waitcnt vmcnt({len(issued) - 1 - last})")
        for r in range(4):
            A(f"v_mov_b32 v{70+r}, 0")
            for i in range(5): A(f"v_dot2_f32_bf16 v{70+r}, v{48+5*r+i}, v{40+i}, v{70+r}")
        for ctl in ("row_shr:1 row_mask:0xf bank_mask:0xf bound_ctrl:0", "row_shr:2 row_mask:0xf bank_mask:0xf bound_ctrl:0", "row_shr:4 row_mask:0xf bank_mask:0xf bound_ctrl:0",
                    "row_shr:8 row_mask:0xf bank_mask:0xf bound_ctrl:0", "row_bcast:15 row_mask:0xa bank_mask:0xf", "row_bcast:31 row_mask:0xc bank_mask:0xf"):
            for r in range(4): A(f"v_add_f32_dpp v{70+r}, v{70+r}, v{70+r} {ctl}")
        for r in range(4): A(f"v_mul_f32 v{70+r}, {f2u(-1.4426950408889634)}, v{70+r}")
        for r in range(4): A(f"v_exp_f32 v{70+r}, v{70+r}")
        for r in range(4): A(f"v_add_f32 v{70+r}, 1.0, v{70+r}")
        for r in range(4): A(f"v_rcp_f32 v{70+r}, v{70+r}")
        srd(A, 12, 32, SZ_G, WS_G)
        A("s_lshl_b32 s58, s58, 2\nv_mov_b32 v10, 0")
        A("s_mov_b32 s42, 0\ns_mov_b32 s43, 0x80000000\ns_mov_b64 exec, s[42:43]")
        for r in range(4): A(f"buffer_store_dword v{70+r}, v10, s[12:15], s58 offen offset:{4*r}")
        A("s_mov_b64 exec, -1")
        issued.extend([('S', 0)]*4)
    def oldtags(issued):
        z_oldtags(A, 42); issued.extend([('O', 0)]*1)
    def pack_loads(issued):
        k1_pack_load(A); issued.extend([('K', 0)]*6)
    run_loader_schedule(A, issueP, issueT, issued, {7: oldtags})

def k1_loader_q(A, last):
    G = k1_geom('q'); PSLOT = G['PSLOT']; TSLOT = G['TSLOT']; TBASE = G['TBASE']
    nP = 3 if last else 2
    nTi = 3 if last else 4
    A("s_sub_u32 s21, s16, 4")
    A("v_lshrrev_b32 v7, 3, v0\nv_and_b32 v6, 7, v0\nv_xor_b32 v6, v6, v7")
    A("s_lshl_b32 s20, s48, 7\ns_sub_u32 s20, s20, 16\ns_lshl_b32 s22, s21, 4\ns_add_u32 s20, s20, s22")
    A("v_add_u32 v7, s20, v7")
    A("v_mov_b32 v12, v7")
    A("s_mov_b32 s20, 1280\nv_mul_lo_u32 v7, v7, s20\nv_lshl_add_u32 v2, v6, 4, v7")
    for h2 in range(2):
        for i in range(nP):
            if h2 == 0 and i == 0: continue
            A(f"v_add_u32 v{2 + h2*3 + i}, {(72*h2 + 8*i)*1280}, v2")
    A(f"v_mov_b32 v13, {KILL}")
    for i in range(2):
        A(f"v_add_u32 v14, {8*i}, v12\nv_cmp_gt_i32 vcc, 0, v14\nv_cndmask_b32 v{2+i}, v{2+i}, v13, vcc")
    A("s_lshl_b32 s20, s21, 8")
    for i in range(nTi):
        d = 8 + i
        A(f"v_add_u32 v12, s20, v0\nv_add_u32 v12, {64*i}, v12")
        A("v_mul_u32_u24 v13, 2185, v12\nv_lshrrev_b32 v13, 16, v13")
        A("v_mul_u32_u24 v14, 30, v13\nv_sub_u32 v14, v12, v14")
        A("v_and_b32 v15, 0x13, v13\nv_and_b32 v16, 4, v13\nv_lshl_or_b32 v15, v16, 1, v15\nv_and_b32 v16, 8, v13\nv_lshrrev_b32 v16, 1, v16\nv_or_b32 v15, v15, v16")
        A("v_mul_u32_u24 v16, 205, v14\nv_lshrrev_b32 v16, 11, v16")
        A("v_mul_u32_u24 v17, 10, v16\nv_sub_u32 v14, v14, v17")
        A("v_mul_u32_u24 v15, 3840, v15\nv_mul_u32_u24 v16, 1280, v16\nv_lshlrev_b32 v14, 4, v14")
        A(f"v_add3_u32 v{d}, v15, v16, v14")
    A("s_mul_i32 s24, s49, 160")
    A("s_lshl_b32 s23, s21, 11")
    A(f"s_lshl_b32 s26, s21, 12\ns_add_u32 s26, s26, {TBASE}")
    issued = []
    def issueP(s, h2):
        slot = s % 3
        rot_stage(A, s, 27)
        A("s_lshl_b32 s27, s27, 7")
        A(f"s_add_u32 m0, s23, {slot*PSLOT + h2*72*128}")
        for i in range(nP):
            if i: A("s_add_u32 m0, m0, 1024\ns_nop 0")
            A(f"buffer_load_dwordx4 v{2 + h2*3 + i}, s[4:7], s27 offen lds")
            issued.append(('P', s))
    def issueT(b):
        slot = b % 6
        rot_beat(A, b, 27)
        A(f"s_mul_i32 s27, s27, {32*3840}\ns_add_u32 s27, s27, s24")
        A(f"s_add_u32 m0, s26, {slot*TSLOT}")
        for i in range(nTi):
            if i: A("s_add_u32 m0, m0, 1024\ns_nop 0")
            A(f"buffer_load_dwordx4 v{8 + i}, s[8:11], s27 offen lds")
            issued.append(('T', b))
    run_loader_schedule(A, issueP, issueT, issued, None, True)


OT = 212
def z_oldtags(A, r32_sreg):
    srd(A, 12, 32, SZ_EP, WS_EP)
    A(f"s_lshl_b32 s40, s48, 7\nv_mov_b32 v221, s40")
    A(f"buffer_load_dwordx2 v[{OT}:{OT+1}], v221, s[12:15], 0 offen sc1")
def z_r32(A, dst):
    A(f"s_and_b32 s{dst}, s16, 1\ns_lshl_b32 s{dst}, s{dst}, 1\ns_lshr_b32 s41, s16, 2\ns_add_u32 s{dst}, s{dst}, s41")


def z_gate_load(A):
    srd(A, 4, 30, 2048*640*2); srd(A, 12, 38, 640*2)
    A("s_lshl_b32 s60, s48, 7\ns_lshl_b32 s61, s49, 4\ns_add_u32 s60, s60, s61\ns_lshl_b32 s61, s16, 2\ns_add_u32 s60, s60, s61") if False else None
    A("s_lshl_b32 s46, s48, 7\ns_lshl_b32 s47, s49, 4\ns_add_u32 s46, s46, s47\ns_lshl_b32 s47, s16, 2\ns_add_u32 s46, s46, s47")
    A(f"v_lshlrev_b32 v146, 4, v0\nv_add_u32 v147, 1024, v146\nv_mov_b32 v148, {KILL}\nv_cmp_le_u32 vcc, 16, v0\nv_cndmask_b32 v147, v147, v148, vcc")
    A("buffer_load_dwordx4 v[184:187], v146, s[12:15], 0 offen\nbuffer_load_dwordx4 v[188:191], v147, s[12:15], 0 offen")
    A("s_mul_i32 s47, s46, 1280")
    for r in range(4):
        A(f"s_add_u32 s45, s47, {r*1280}")
        A(f"buffer_load_dwordx4 v[{152+8*r}:{155+8*r}], v146, s[4:7], s45 offen\nbuffer_load_dwordx4 v[{156+8*r}:{159+8*r}], v147, s[4:7], s45 offen")
def z_gate_finish(A):
    for r in range(4):
        A(f"v_mov_b32 v{192+r}, 0")
        for q in range(4): A(f"v_dot2_f32_bf16 v{192+r}, v{152+8*r+q}, v{184+q}, v{192+r}")
        for q in range(4): A(f"v_dot2_f32_bf16 v{192+r}, v{156+8*r+q}, v{188+q}, v{192+r}")
    for ctl in ("row_shr:1 row_mask:0xf bank_mask:0xf bound_ctrl:0", "row_shr:2 row_mask:0xf bank_mask:0xf bound_ctrl:0", "row_shr:4 row_mask:0xf bank_mask:0xf bound_ctrl:0",
                "row_shr:8 row_mask:0xf bank_mask:0xf bound_ctrl:0", "row_bcast:15 row_mask:0xa bank_mask:0xf", "row_bcast:31 row_mask:0xc bank_mask:0xf"):
        for r in range(4): A(f"v_add_f32_dpp v{192+r}, v{192+r}, v{192+r} {ctl}")
    for r in range(4): A(f"v_mul_f32 v{192+r}, {f2u(-1.4426950408889634)}, v{192+r}")
    for r in range(4): A(f"v_exp_f32 v{192+r}, v{192+r}")
    for r in range(4): A(f"v_add_f32 v{192+r}, 1.0, v{192+r}")
    for r in range(4): A(f"v_rcp_f32 v{192+r}, v{192+r}")
    srd(A, 4, 32, SZ_G, WS_G)
    A("s_lshl_b32 s46, s46, 2\nv_mov_b32 v146, 0")
    A("s_mov_b32 s42, 0\ns_mov_b32 s43, 0x80000000\ns_mov_b64 exec, s[42:43]")
    for r in range(4): A(f"buffer_store_dword v{192+r}, v146, s[4:7], s46 offen offset:{4*r}")
    A("s_mov_b64 exec, -1")

def k1_pack_load(A):
    T = 150
    c, cc, t2, p_, k_, x_ = T+2, T+3, T+4, T+5, T+6, T+7
    A("s_sub_u32 s40, s16, 4\ns_lshl_b32 s40, s40, 6")
    A(f"v_add_u32 v{c}, s40, v0\nv_and_b32 v{cc}, 127, v{c}\nv_lshrrev_b32 v{t2}, 7, v{c}\nv_lshrrev_b32 v{p_}, 1, v{cc}")
    A(f"v_and_b32 v{k_}, 0x33, v{p_}\nv_and_b32 v{x_}, 4, v{p_}\nv_lshl_or_b32 v{k_}, v{x_}, 1, v{k_}")
    A(f"v_and_b32 v{x_}, 8, v{p_}\nv_lshrrev_b32 v{x_}, 1, v{x_}\nv_or_b32 v{k_}, v{k_}, v{x_}")
    A(f"v_mul_u32_u24 v{k_}, 1280, v{k_}\nv_and_b32 v{x_}, 1, v{cc}\nv_lshl_add_u32 v{k_}, v{x_}, 4, v{k_}\nv_lshl_add_u32 v{k_}, v{t2}, 5, v{k_}")
    A(f"v_lshlrev_b32 v252, 4, v{cc}\nv_lshl_add_u32 v252, v{t2}, 11, v252")
    A(f"v_mov_b32 v{x_}, {KILL}\nv_cmp_eq_u32 vcc, 1, v{t2}\nv_cndmask_b32 v253, v252, v{x_}, vcc\nv_cndmask_b32 v{p_}, v{k_}, v{x_}, vcc")
    A("s_lshl_b32 s54, s48, 3\ns_add_u32 s54, s54, s49")
    for u, D in ((0, 224), (1, 236)):
        A(f"s_add_u32 s55, s54, {128*u}")
        A(f"s_mul_hi_u32 s41, s55, {(2**32 + 21)//22}\ns_mul_i32 s42, s41, 22\ns_sub_u32 s42, s55, s42")
        A("s_cmp_lt_u32 s42, 10\ns_cselect_b32 s12, s44, s46\ns_cselect_b32 s13, s45, s47")
        A(f"s_mov_b32 s14, {768*640*2}\ns_cselect_b32 s14, {640*640*2}, s14\ns_mov_b32 s15, 0x20000")
        A("s_cselect_b32 s43, 0, 10\ns_sub_u32 s43, s42, s43")
        A(f"s_mul_i32 s43, s43, {64*1280}\ns_mul_i32 s40, s41, 160\ns_add_u32 s43, s43, s40")
        A(f"s_cmp_ge_u32 s55, 176\ns_cselect_b32 s40, {KILL}, 0\ns_add_u32 s43, s43, s40")
        A(f"buffer_load_dwordx4 v[{D}:{D+3}], v{k_}, s[12:15], s43 offen")
        A(f"buffer_load_dwordx4 v[{D+4}:{D+7}], v{k_}, s[12:15], s43 offen offset:64")
        A(f"buffer_load_dwordx4 v[{D+8}:{D+11}], v{p_}, s[12:15], s43 offen offset:128")

def k1_pack_store(A):
    srd(A, 12, 32, SZ_WP, WS_WP)
    for u, D in ((0, 224), (1, 236)):
        A(f"s_add_u32 s55, s54, {128*u}")
        A(f"s_mul_i32 s41, s55, {5*2048}\ns_cmp_ge_u32 s55, 176\ns_cselect_b32 s42, {KILL}, 0\ns_add_u32 s41, s41, s42")
        A("s_add_u32 s42, s41, 4096\ns_add_u32 s43, s41, 8192")
        A(f"buffer_store_dwordx4 v[{D}:{D+3}], v252, s[12:15], s41 offen")
        A(f"buffer_store_dwordx4 v[{D+4}:{D+7}], v252, s[12:15], s42 offen")
        A(f"buffer_store_dwordx4 v[{D+8}:{D+11}], v253, s[12:15], s43 offen")

def k1_compute_z(A, st):
    G = k1_geom('z'); PSLOT = G['PSLOT']; NPS = 3; TSLOT = G['TSLOT']; R = 6; TBASE = G['TBASE']
    mP = 4; nT = 6; nA = 3
    bP = 2; bT = 6
    F = [16, 16 + 4*(mP+nT)]
    ACC = 16 + 8*(mP+nT)
    A(f"s_and_b32 s20, s16, 1\ns_lshr_b32 s21, s16, 1\ns_mul_i32 s21, s21, {nA}")
    A("v_and_b32 v14, 15, v0\nv_lshrrev_b32 v15, 4, v0\nv_and_b32 v6, 7, v14\nv_xor_b32 v6, v15, v6\nv_lshlrev_b32 v14, 7, v14\nv_lshl_add_u32 v14, v6, 4, v14")
    A(f"s_mul_i32 s22, s20, {mP*2048}")
    A(f"v_add_u32 v{bP}, s22, v14\nv_xor_b32 v{bP+1}, 64, v{bP}")
    A("v_lshrrev_b32 v14, 2, v0\nv_and_b32 v14, 3, v14\nv_lshl_add_u32 v13, v15, 3, v14\nv_lshlrev_b32 v13, 8, v13")
    A("v_and_b32 v12, 3, v0\nv_lshl_add_u32 v13, v12, 3, v13\nv_and_b32 v12, 1, v15\nv_lshl_add_u32 v14, v12, 2, v14")
    A(f"v_add_u32 v15, {TBASE}, v13")
    for tl in range(nA):
        A(f"s_add_u32 s23, s21, {tl}\nv_xor_b32 v13, s23, v14\nv_lshl_add_u32 v{bT+tl}, v13, 5, v15")
    for tl in range(nA): A(f"v_add_u32 v{bT+nA+tl}, 0x10000, v{bT+tl}")
    for i in range(ACC, ACC + 4*mP*nT): A(f"v_mov_b32 v{i}, 0")
    def fP(s, m): return F[s] + 4*m
    def fT(s, t): return F[s] + 4*(mP + t)
    def acc(m, t): return ACC + 4*(m*nT + t)
    def reads(b):
        s = b & 1; kk = b & 1; ps = (b//2) % NPS; ts = b % R
        r = []
        for m in range(mP):
            f = fP(s, m); off = ps*PSLOT + m*2048
            r.append(f"ds_read_b128 v[{f}:{f+3}], v{bP + kk} offset:{off}")
        for t in range(nT):
            f = fT(s, t); tl = t % nA; u = t // nA
            for h in range(2):
                off = ts*TSLOT + u*8192 + h*1024; hi = off >> 16
                r.append(f"ds_read_b64_tr_b16 v[{f+2*h}:{f+2*h+1}], v{bT + tl + nA*hi} offset:{off & 0xffff}")
        return r
    A("s_barrier")
    for x in reads(0): A(x)
    A("s_waitcnt lgkmcnt(0)")
    st()
    A("s_barrier")
    TAILM = 6
    def beat(b, last=False):
        s = b & 1
        mf = [f"v_mfma_f32_16x16x32_bf16 v[{acc(m,t)}:{acc(m,t)+3}], v[{fT(s,t)}:{fT(s,t)+3}], v[{fP(s,m)}:{fP(s,m)+3}], v[{acc(m,t)}:{acc(m,t)+3}]" for m in range(mP) for t in range(nT)]
        rd = [] if last else reads(b + 1)
        nfront = len(mf) - TAILM
        for i, x in enumerate(mf):
            A(x)
            if rd: A(rd.pop(0))
            if i == nfront - 1:
                assert not rd
                A("s_waitcnt lgkmcnt(0)\ns_barrier")
    L = "K1z_cloop"
    A("s_mov_b32 s26, 0")
    A.label(L)
    A("s_cmp_eq_u32 s26, 0\ns_cbranch_scc1 K1_z_it")
    A("s_cmp_eq_u32 s26, 2\ns_cbranch_scc1 K1_z_it2")
    z_oldtags(A, 42)
    A("s_branch K1_z_it")
    A.label("K1_z_it2")
    A("s_waitcnt vmcnt(0)")
    A.label("K1_z_it")
    it_top(A)
    for b in range(6): beat(b)
    A(f"s_add_u32 s26, s26, 1\ns_cmp_lt_u32 s26, 3\ns_cbranch_scc1 {L}")
    it_mid(A)
    A("s_cmp_lg_u32 s16, 0\ns_cbranch_scc1 K1_z_noreg")
    srd(A, 12, 50, 256)
    A("s_lshl_b32 s22, s48, 4\nv_mov_b32 v14, s22\nv_mov_b32 v15, 1")
    A("s_mov_b64 exec, 1")
    A("buffer_atomic_add v15, v14, s[12:15], 0 offen sc1")
    A("s_mov_b64 exec, -1")
    A.label("K1_z_noreg")
    beat(18); beat(19, last=True)
    it_end(A, 14, 15)
    return acc

def k1_compute_q(A, wm, wn, st):
    G = k1_geom('q'); PSLOT = G['PSLOT']; TSLOT = G['TSLOT']; TBASE = G['TBASE']
    tiles = list(range(0, 8)) if wn == 0 else list(range(8, 15))
    halo = {(0, 0): [5, 6], (1, 0): [7], (0, 1): [8, 9, 10, 11], (1, 1): [12, 13, 14]}[(wm, wn)]
    nT = len(tiles); mP = 5
    F = [16, 16 + 4*(5 + 8)]
    ACC = 16 + 8*(5 + 8)
    A("v_and_b32 v14, 15, v0\nv_lshrrev_b32 v15, 4, v0\nv_and_b32 v6, 7, v14\nv_xor_b32 v6, v15, v6\nv_lshlrev_b32 v14, 7, v14\nv_lshl_add_u32 v2, v6, 4, v14")
    A("v_xor_b32 v3, 64, v2")
    A("v_lshrrev_b32 v6, 1, v15\nv_lshlrev_b32 v6, 4, v6\nv_and_b32 v7, 1, v15\nv_lshl_add_u32 v6, v7, 2, v6")
    A("v_lshrrev_b32 v7, 2, v0\nv_and_b32 v7, 3, v7\nv_add_u32 v6, v6, v7\nv_mul_u32_u24 v6, 480, v6\nv_and_b32 v7, 3, v0\nv_lshl_add_u32 v6, v7, 3, v6")
    A(f"v_add_u32 v4, {TBASE}, v6\nv_add_u32 v5, {TBASE + 3*TSLOT}, v6")
    accs = {}
    n = ACC
    for m in range(4):
        for t in tiles: accs[(m, t)] = n; n += 4
    for t in halo: accs[('h', t)] = n; n += 4
    assert n <= 256, n
    for i in range(ACC, n): A(f"v_mov_b32 v{i}, 0")
    def fP(s, m): return F[s] + 4*m
    def fT(s, t): return F[s] + 4*(5 + tiles.index(t))
    def reads(b):
        s = b & 1; kk = b & 1; ps = (b//2) % 3; ts = b % 6
        r = []
        for m in range(4):
            f = fP(s, m); r.append(f"ds_read_b128 v[{f}:{f+3}], v{2+kk} offset:{ps*PSLOT + (16 + 64*wm + 16*m)*128}")
        f = fP(s, 4); r.append(f"ds_read_b128 v[{f}:{f+3}], v{2+kk} offset:{ps*PSLOT}")
        for t in tiles:
            f = fT(s, t)
            for h in range(2):
                hi = 1 if ts >= 3 else 0
                r.append(f"ds_read_b64_tr_b16 v[{f+2*h}:{f+2*h+1}], v{4+hi} offset:{(ts - 3*hi)*TSLOT + h*8*480 + t*32}")
        return r
    A("s_barrier")
    for x in reads(0): A(x)
    A("s_waitcnt lgkmcnt(0)")
    st()
    A("s_barrier")
    def beat(b, last=False):
        s = b & 1
        mf = []
        for m in range(4):
            for t in tiles:
                a_ = accs[(m, t)]; mf.append(f"v_mfma_f32_16x16x32_bf16 v[{a_}:{a_+3}], v[{fT(s,t)}:{fT(s,t)+3}], v[{fP(s,m)}:{fP(s,m)+3}], v[{a_}:{a_+3}]")
        for t in halo:
            a_ = accs[('h', t)]; mf.append(f"v_mfma_f32_16x16x32_bf16 v[{a_}:{a_+3}], v[{fT(s,t)}:{fT(s,t)+3}], v[{fP(s,4)}:{fP(s,4)+3}], v[{a_}:{a_+3}]")
        rd = [] if last else reads(b + 1)
        nfront = len(mf) - 8
        for i, x in enumerate(mf):
            A(x)
            if rd: A(rd.pop(0))
            if i == nfront - 1:
                assert not rd, (len(rd), nfront)
                A("s_waitcnt lgkmcnt(0)\ns_barrier")
    L = f"K1q{wm}{wn}_cloop"
    A("s_mov_b32 s26, 0")
    A.label(L)
    it_top(A)
    for b in range(6):
        if O.itstamp: A(f"s_memtime s[76:77]\ns_waitcnt lgkmcnt(0)\ns_cmp_eq_u32 s26, 0\ns_cselect_b32 s{85+b}, s76, s{85+b}")
        beat(b)
    A(f"s_add_u32 s26, s26, 1\ns_cmp_lt_u32 s26, 3\ns_cbranch_scc1 {L}")
    it_mid(A)
    beat(18); beat(19, last=True)
    it_end(A, 14, 15)
    st()
    A(f"v_and_b32 v6, 15, v0\nv_mul_u32_u24 v6, {QP}, v6\nv_lshrrev_b32 v7, 4, v0\nv_lshl_add_u32 v6, v7, 3, v6")
    k = 0
    items = list(accs.items())
    for (key, a_) in items:
        A(f"v_cvt_pk_bf16_f32 v{16+2*k}, v{a_}, v{a_+1}\nv_cvt_pk_bf16_f32 v{17+2*k}, v{a_+2}, v{a_+3}")
        k += 1
    A(f"v_add_u32 v7, 0x8000, v6")
    k = 0
    for (key, a_) in items:
        m, t = key
        row = 0 if m == 'h' else 16 + 64*wm + 16*m
        off = row*QP + t*32
        if off < 65536: A(f"ds_write_b64 v6, v[{16+2*k}:{17+2*k}] offset:{off}")
        else: A(f"ds_write_b64 v7, v[{16+2*k}:{17+2*k}] offset:{off - 0x8000}")
        k += 1

def rot_table(A):
    A(f"s_and_b32 s28, s28, 3\ns_lshl_b32 s28, s28, 2\ns_lshr_b32 s28, {O.rottab if O.rot else 0}, s28\ns_and_b32 s28, s28, 15")

def k1(A):
    name = "k1_kernel"
    kernel_begin(A, name)
    A("s_cmp_ge_u32 s2, 256\ns_cbranch_scc1 K1_end")
    load_ptr(A, 30, 'x'); load_ptr(A, 32, 'ws'); load_ptr(A, 34, 'wqkv'); load_ptr(A, 36, 'win')
    load_ptr(A, 38, 'gw'); load_ptr(A, 44, 'wo'); load_ptr(A, 46, 'wout'); load_ptr(A, 52, 'wsp'); load_ptr(A, 50, 'dbg')
    wave_lane(A, 16)
    hd_start(A)
    st = Stamps(A, 0); st()
    A("s_and_b32 s40, s2, 7\ns_lshr_b32 s41, s2, 3\ns_and_b32 s48, s40, 1\ns_lshl_b32 s48, s48, 3\ns_and_b32 s42, s41, 7\ns_add_u32 s48, s48, s42")
    A("s_lshr_b32 s49, s40, 1\ns_lshl_b32 s49, s49, 1\ns_lshr_b32 s43, s41, 3\ns_and_b32 s43, s43, 1\ns_add_u32 s49, s49, s43")
    A("s_lshl_b32 s28, s43, 1\ns_add_u32 s28, s28, s42")
    rot_table(A)
    A("s_cmp_lt_u32 s41, 16\ns_cbranch_scc1 K1_ztype")
    A("s_waitcnt lgkmcnt(0)")
    A("s_cmp_lt_u32 s16, 4\ns_cbranch_scc1 K1_qcomp")
    srd(A, 4, 30, 2048*640*2); srd(A, 8, 34, 640*1920*2)
    A("s_cmp_eq_u32 s16, 7\ns_cbranch_scc1 K1_qload3")
    k1_loader_q(A, False)
    A("s_branch K1_att")
    A.label("K1_qload3")
    k1_loader_q(A, True)
    A("s_branch K1_att")
    A.label("K1_qcomp")
    st()
    srd(A, 12, 32, SZ_FL, WS_FL)
    A("s_lshl_b32 s20, s48, 3\ns_add_u32 s20, s20, s49\ns_lshl_b32 s20, s20, 5\nv_lshlrev_b32 v14, 2, v0\nv_mov_b32 v15, 0")
    A("s_mov_b64 exec, 0xff")
    A("buffer_store_dword v15, v14, s[12:15], s20 offen")
    A("s_mov_b64 exec, -1")
    A("s_cmp_eq_u32 s16, 1\ns_cbranch_scc1 K1_q10\ns_cmp_eq_u32 s16, 2\ns_cbranch_scc1 K1_q01\ns_cmp_eq_u32 s16, 3\ns_cbranch_scc1 K1_q11")
    for (wm, wn) in ((0, 0), (1, 0), (0, 1), (1, 1)):
        if (wm, wn) != (0, 0): A.label(f"K1_q{wm}{wn}")
        stv = Stamps(A, 0, 2)
        k1_compute_q(A, wm, wn, stv)
        if (wm, wn) != (1, 1): A("s_branch K1_att")
    A.label("K1_att")
    st3 = Stamps(A, 0, 4)
    AV = 100
    A(f"s_and_b32 s46, s16, 3\ns_lshr_b32 s47, s16, 2\ns_mul_i32 s45, s46, 40\ns_mul_i32 s43, s47, {64*QP}\ns_add_u32 s45, s45, s43")
    A("s_or_b32 s43, s48, s47")
    attention_prep(A, AV, 45)
    T = 86
    A(f"s_lshl_b32 s20, s16, 6\nv_add_u32 v{T}, s20, v0")
    for i in range(3):
        c, r, q, la, ga = T+1, T+2, T+3, T+4+2*i, T+5+2*i
        A(f"v_add_u32 v{c}, {512*i}, v{T}")
        A(f"v_mul_u32_u24 v{r}, 6554, v{c}\nv_lshrrev_b32 v{r}, 16, v{r}")
        A(f"v_mul_u32_u24 v{q}, 10, v{r}\nv_sub_u32 v{q}, v{c}, v{q}")
        A(f"v_mul_u32_u24 v{la}, {QP}, v{r}\nv_lshl_add_u32 v{la}, v{q}, 4, v{la}\nv_add_u32 v{la}, {16*QP}, v{la}")
        A(f"s_lshl_b32 s20, s48, 7\nv_add_u32 v{ga}, s20, v{r}\nv_mul_u32_u24 v{ga}, 2816, v{ga}\nv_lshl_add_u32 v{ga}, v{q}, 4, v{ga}")
        A(f"s_mul_i32 s20, s49, 160\nv_add_u32 v{ga}, s20, v{ga}")
        if i == 2:
            A(f"v_mov_b32 v{q}, {KILL}\nv_cmp_le_u32 vcc, 1280, v{c}\nv_cndmask_b32 v{ga}, v{ga}, v{q}, vcc")
            A(f"v_mov_b32 v{q}, 0\nv_cndmask_b32 v{la}, v{la}, v{q}, vcc")
    srd(A, 12, 32, SZ_AU, WS_AU)
    A("s_waitcnt lgkmcnt(0)\ns_barrier")
    st3()
    attention_main(A, AV, 43)
    A("s_waitcnt lgkmcnt(0)\ns_barrier")
    st3()
    D = 16
    for i in range(3):
        A(f"ds_read_b64 v[{D+4*i}:{D+4*i+1}], v{T+4+2*i}\nds_read_b64 v[{D+4*i+2}:{D+4*i+3}], v{T+4+2*i} offset:8")
    A("s_waitcnt lgkmcnt(0)")
    for i in range(3): A(f"buffer_store_dwordx4 v[{D+4*i}:{D+4*i+3}], v{T+5+2*i}, s[12:15], 0 offen")
    if O.stamp:
        A("s_cmp_ge_u32 s16, 4\ns_cbranch_scc1 K1_end")
        A("s_waitcnt vmcnt(0)")
    st3(); st3.flush(16, 32)
    hd_end(A, 32, 1, 128, 60)
    A("s_branch K1_end")
    A.label("K1_ztype")
    A(f"s_mul_i32 s17, s48, {128*1280}")
    A("s_mul_i32 s19, s49, 192\ns_add_u32 s18, s19, 1536")
    A("s_waitcnt lgkmcnt(0)")
    A("s_cmp_lt_u32 s16, 4\ns_cbranch_scc1 K1_zcomp")
    srd(A, 4, 30, 2048*640*2); srd(A, 8, 36, 640*1536*2)
    k1_loader_z(A)
    ACCZ = 96
    A("s_barrier")
    A("s_sub_u32 s20, s16, 4\ns_mul_i32 s20, s20, 12288\nv_lshlrev_b32 v4, 4, v0\nv_add_u32 v4, s20, v4")
    for k in range(12): A(f"ds_read_b128 v[{ACCZ+4*k}:{ACCZ+4*k+3}], v4 offset:{k*1024}")
    A("s_waitcnt lgkmcnt(0)")
    A("s_branch K1_zepi")
    A.label("K1_zcomp")
    st2 = Stamps(A, 0, 1); st2()
    acc = k1_compute_z(A, st2)
    st2()
    assert acc(0, 0) == ACCZ
    A("s_mul_i32 s20, s16, 12288\nv_lshlrev_b32 v4, 4, v0\nv_add_u32 v4, s20, v4")
    for k in range(12): A(f"ds_write_b128 v4, v[{acc(2,0)+4*k}:{acc(2,0)+4*k+3}] offset:{k*1024}")
    A("s_waitcnt lgkmcnt(0)\ns_barrier")
    A.label("K1_zepi")
    A("s_and_b32 s20, s16, 1\ns_lshr_b32 s21, s16, 1\ns_and_b32 s21, s21, 1\ns_lshr_b32 s59, s16, 2")
    A("s_lshl_b32 s58, s20, 1\ns_add_u32 s58, s58, s59")
    A(f"s_mov_b32 s56, {f2u(C1)}\ns_mov_b32 s57, {f2u(C1)}")
    A(f"v_mov_b32 v6, {f2u(C0)}\nv_mov_b32 v7, {f2u(C0)}")
    z2 = [acc(m, t) + 2*q for m in range(2) for t in range(3) for q in range(2)]
    z1 = [acc(m, t) + 2*q for m in range(2) for t in range(3, 6) for q in range(2)]
    srd(A, 12, 50, 256)
    A("s_lshl_b32 s22, s48, 4\nv_mov_b32 v8, s22")
    A("buffer_load_dword v9, v8, s[12:15], 0 offen sc1")
    st2()
    gelu_pk(A, z2, 16, 56)
    A("s_waitcnt vmcnt(0)")
    st2()
    S = 70
    for m in range(2):
        vals = [acc(m, t) + r for t in range(3) for r in range(4)]
        A(f"v_pk_add_f32 v[{S+2*m}:{S+2*m+1}], v[{vals[0]}:{vals[1]}], v[{vals[2]}:{vals[3]}]")
        A(f"v_pk_mul_f32 v[{S+4+2*m}:{S+4+2*m+1}], v[{vals[0]}:{vals[1]}], v[{vals[0]}:{vals[1]}]")
        A(f"v_pk_fma_f32 v[{S+4+2*m}:{S+4+2*m+1}], v[{vals[2]}:{vals[3]}], v[{vals[2]}:{vals[3]}], v[{S+4+2*m}:{S+4+2*m+1}]")
        for q in range(2, 6):
            A(f"v_pk_add_f32 v[{S+2*m}:{S+2*m+1}], v[{S+2*m}:{S+2*m+1}], v[{vals[2*q]}:{vals[2*q+1]}]")
            A(f"v_pk_fma_f32 v[{S+4+2*m}:{S+4+2*m+1}], v[{vals[2*q]}:{vals[2*q+1]}], v[{vals[2*q]}:{vals[2*q+1]}], v[{S+4+2*m}:{S+4+2*m+1}]")
    for m in range(2):
        A(f"v_add_f32 v{S+2*m}, v{S+2*m}, v{S+2*m+1}\nv_add_f32 v{S+2*m+1}, v{S+4+2*m}, v{S+4+2*m+1}")
    for i in range(4): A(f"v_mov_b32 v{S+4+i}, v{S+i}")
    for i in range(4): A(f"v_permlane16_swap_b32 v{S+i}, v{S+4+i}")
    for i in range(4): A(f"v_add_f32 v{S+i}, v{S+i}, v{S+4+i}")
    for i in range(4): A(f"v_mov_b32 v{S+4+i}, v{S+i}")
    for i in range(4): A(f"v_permlane32_swap_b32 v{S+i}, v{S+4+i}")
    for i in range(4): A(f"v_add_f32 v{S+i}, v{S+i}, v{S+4+i}")
    A("v_lshrrev_b32 v3, 4, v0")
    A(f"v_and_b32 v5, 16, v0\nv_cmp_ne_u32 vcc, 0, v5\nv_cndmask_b32 v{S}, v{S}, v{S+2}, vcc\nv_cndmask_b32 v{S+1}, v{S+1}, v{S+3}, vcc")
    A("v_lshlrev_b32 v4, 3, v0\ns_lshl_b32 s22, s16, 9\ns_add_u32 s22, s22, 49152\nv_add_u32 v5, s22, v4")
    A(f"ds_write_b64 v5, v[{S}:{S+1}]")
    A("s_waitcnt lgkmcnt(0)\ns_barrier")
    A("v_xor_b32 v5, 1024, v5")
    A(f"ds_read_b64 v[{S+2}:{S+3}], v5")
    srd(A, 8, 32, SZ_ST, WS_ST)
    A("s_lshl_b32 s22, s49, 15\ns_lshl_b32 s23, s48, 11\ns_add_u32 s22, s22, s23\ns_lshl_b32 s23, s58, 9\ns_add_u32 s22, s22, s23")
    A("s_waitcnt lgkmcnt(0)")
    A(f"v_add_f32 v{S}, v{S}, v{S+2}\nv_add_f32 v{S+1}, v{S+1}, v{S+3}")
    st2()
    A("s_cmp_lg_u32 s21, 0\ns_cbranch_scc1 K1_z_nostat")
    A("s_mov_b32 s24, 0")
    A.label("K1_regpoll")
    A("v_readfirstlane_b32 s25, v9\ns_cmp_ge_u32 s25, 8\ns_cbranch_scc1 K1_regok")
    A("buffer_load_dword v9, v8, s[12:15], 0 offen sc1\ns_waitcnt vmcnt(0)")
    A("s_add_u32 s24, s24, 1\ns_cmp_lt_u32 s24, 0x40000\ns_cbranch_scc1 K1_regpoll")
    A.label("K1_regok")
    A(f"v_add_u32 v{S+2}, 1, v{OT}\nv_mov_b32 v{S+3}, v{OT+1}\nv_lshlrev_b32 v4, 4, v0")
    A("v_cmp_gt_u32 vcc, 32, v0\ns_and_saveexec_b64 s[24:25], vcc")
    A(f"buffer_store_dwordx4 v[{S}:{S+3}], v4, s[8:11], s22 offen sc1")
    A("s_mov_b64 exec, s[24:25]")
    A("s_or_b32 s22, s49, s16\ns_cmp_lg_u32 s22, 0\ns_cbranch_scc1 K1_z_nostat")
    srd(A, 4, 32, SZ_EP, WS_EP)
    A(f"s_lshl_b32 s22, s48, 7\nv_mov_b32 v4, s22\ns_mov_b64 exec, 1")
    A(f"buffer_store_dwordx2 v[{S+2}:{S+3}], v4, s[4:7], 0 offen sc1")
    A("s_mov_b64 exec, -1")
    A.label("K1_z_nostat")
    st2()
    A("s_cmp_ge_u32 s16, 4\ns_cbranch_scc1 K1_sj_pack")
    z_gate_load(A)
    A(f"v_mov_b32 v252, {KILL}\nv_mov_b32 v253, {KILL}\ns_mov_b32 s54, 0")
    A("s_branch K1_sj_done")
    A.label("K1_sj_pack")
    A("v_mov_b32 v146, 0")
    k1_pack_load(A)
    A.label("K1_sj_done")
    gelu_pk(A, z1, 16, 56)
    A("s_lshl_b32 s22, s48, 2\ns_add_u32 s22, s22, s58\ns_mul_i32 s22, s22, 48")
    A("s_mul_i32 s23, s49, 6\ns_add_u32 s22, s22, s23\ns_mul_i32 s23, s21, 3\ns_add_u32 s22, s22, s23\ns_lshl_b32 s26, s22, 10")
    A("v_lshlrev_b32 v11, 4, v0")
    Q = 200
    for t in range(3):
        d = Q + 4*t; a0 = acc(0, 3+t); a1 = acc(1, 3+t)
        A(f"v_cvt_pk_bf16_f32 v{d}, v{a0}, v{a0+1}\nv_cvt_pk_bf16_f32 v{d+1}, v{a0+2}, v{a0+3}\nv_cvt_pk_bf16_f32 v{d+2}, v{a1}, v{a1+1}\nv_cvt_pk_bf16_f32 v{d+3}, v{a1+2}, v{a1+3}")
    st2()
    A("s_lshl_b32 s22, s48, 11\ns_lshl_b32 s23, s58, 9\ns_add_u32 s22, s22, s23")
    A("v_and_b32 v4, 31, v0\nv_lshlrev_b32 v4, 4, v4")
    A(f"v_add_u32 v{OT}, 1, v{OT}")
    A("s_mov_b32 s24, 0")
    A.label("K1_poll")
    for jj in range(8):
        A(f"s_add_u32 s23, s22, {jj*32768}")
        A(f"buffer_load_dwordx4 v[{16+4*jj}:{19+4*jj}], v4, s[8:11], s23 offen sc1")
    A("s_waitcnt vmcnt(0)")
    A(f"v_xor_b32 v48, v18, v{OT}\nv_xor_b32 v49, v19, v{OT+1}\nv_or_b32 v48, v48, v49")
    for jj in range(1, 8): A(f"v_xor_b32 v49, v{18+4*jj}, v{OT}\nv_xor_b32 v50, v{19+4*jj}, v{OT+1}\nv_or3_b32 v48, v48, v49, v50")
    A("v_cmp_ne_u32 vcc, 0, v48")
    A("s_add_u32 s24, s24, 1\ns_nop 3")
    A("s_cbranch_vccz K1_polled")
    A(f"s_sleep {O.sleep}")
    A("s_cmp_lt_u32 s24, 0x10000\ns_cbranch_scc1 K1_poll")
    A.label("K1_polled")
    st2()
    srd(A, 4, 32, SZ_Z1, WS_Z1)
    for t in range(3): A(f"buffer_store_dwordx4 v[{Q+4*t}:{Q+4*t+3}], v11, s[4:7], s26 offen offset:{t*1024}")
    A("s_cmp_lt_u32 s16, 4\ns_cbranch_scc1 K1_nopack")
    k1_pack_store(A)
    A("s_branch K1_packed")
    A.label("K1_nopack")
    z_gate_finish(A)
    A.label("K1_packed")
    srd(A, 12, 32, SZ_Z2P, WS_Z2P)
    A("s_lshl_b32 s22, s49, 5\ns_lshl_b32 s23, s48, 1\ns_add_u32 s22, s22, s23\ns_add_u32 s22, s22, s20\ns_mul_i32 s22, s22, 6")
    A("s_mul_i32 s23, s21, 3\ns_add_u32 s22, s22, s23\ns_lshl_b32 s22, s22, 11\ns_lshl_b32 s23, s59, 10\ns_add_u32 s22, s22, s23")
    A("v_and_b32 v6, 15, v0\nv_and_b32 v7, 3, v6\nv_and_b32 v10, 4, v6\nv_lshl_or_b32 v7, v10, 1, v7\nv_and_b32 v10, 8, v6\nv_lshrrev_b32 v10, 1, v10\nv_or_b32 v7, v7, v10")
    A("v_and_b32 v10, 1, v3\nv_lshl_add_u32 v7, v10, 4, v7\nv_lshlrev_b32 v7, 5, v7\nv_lshrrev_b32 v10, 1, v3\nv_lshl_add_u32 v10, v10, 4, v7")
    for jj in range(1, 8): A(f"v_add_f32 v16, v16, v{16+4*jj}\nv_add_f32 v17, v17, v{17+4*jj}")
    A(f"v_mul_f32 v16, {f2u(1/768)}, v16\nv_mul_f32 v17, {f2u(1/768)}, v17")
    A("v_fma_f32 v17, -v16, v16, v17\nv_max_f32 v17, 0, v17")
    A(f"v_add_f32 v17, {f2u(1e-5)}, v17\nv_rsq_f32 v17, v17")
    A("v_mul_f32 v16, v16, v17\nv_sub_f32 v16, 0, v16")
    A("v_and_b32 v5, 15, v0\nv_lshlrev_b32 v5, 2, v5")
    for m in range(2):
        A(f"v_add_u32 v8, {64*m}, v5")
        A(f"ds_bpermute_b32 v{32+2*m}, v8, v17\nds_bpermute_b32 v{33+2*m}, v8, v16")
    A("s_waitcnt lgkmcnt(0)")
    PK = 44
    for m in range(2):
        for t in range(3):
            a_ = acc(m, t)
            for r in range(4): A(f"v_fma_f32 v{a_+r}, v{a_+r}, v{32+2*m}, v{33+2*m}")
    for t in range(3):
        d = PK + 4*t; a0 = acc(0, t); a1 = acc(1, t)
        A(f"v_cvt_pk_bf16_f32 v{d}, v{a0}, v{a0+1}\nv_cvt_pk_bf16_f32 v{d+1}, v{a0+2}, v{a0+3}\nv_cvt_pk_bf16_f32 v{d+2}, v{a1}, v{a1+1}\nv_cvt_pk_bf16_f32 v{d+3}, v{a1+2}, v{a1+3}")
    for t in range(3):
        d = PK + 4*t
        A(f"v_permlane16_swap_b32 v{d}, v{d+2}\nv_permlane16_swap_b32 v{d+1}, v{d+3}")
    for t in range(3):
        A(f"s_add_u32 s23, s22, {t*2048}")
        A(f"buffer_store_dwordx4 v[{PK+4*t}:{PK+4*t+3}], v10, s[12:15], s23 offen")
    if O.stamp:
        A("s_cmp_ge_u32 s16, 4\ns_cbranch_scc1 K1_end")
    st2(); st2.flush(16, 32)
    hd_end(A, 32, 0, 0, 60)
    A.label("K1_end")
    A("s_endpgm")
    return name, 256, 512, 147456, 256

SLOT = 20480
class E2:
    def __init__(self, A, pfx, NT, nsteps, pitchP, wave_m, wave_n, NS=6):
        self.A = A; self.pfx = pfx; self.NT = NT; self.n = nsteps; self.pitchP = pitchP
        self.mP = wave_m; self.nT = wave_n; self.NS = NS
        self.F = [8, 8 + 8*(wave_m + wave_n)]
        self.ACC = 8 + 16*(wave_m + wave_n)
        self.vend = self.ACC + 4*wave_m*wave_n
    def fP(self, s, kk, m): return self.F[s] + 4*(kk*(self.mP+self.nT) + m)
    def fT(self, s, kk, t): return self.F[s] + 4*(kk*(self.mP+self.nT) + self.mP + t)
    def acc(self, m, t): return self.ACC + 4*(m*self.nT + t)
    def loader_setup(self):
        A = self.A
        A("s_sub_u32 s21, s16, 4")
        A("v_lshrrev_b32 v7, 3, v0\nv_and_b32 v2, 7, v0\nv_xor_b32 v2, v2, v7")
        A(f"s_mov_b32 s20, {self.pitchP}\nv_mul_lo_u32 v7, v7, s20\nv_lshl_add_u32 v2, v2, 4, v7\nv_lshlrev_b32 v3, 4, v0")
        A(f"s_mul_i32 s20, s21, {16*self.pitchP}\ns_add_u32 s23, s17, s20")
        A("s_mul_i32 s20, s21, 3072\ns_add_u32 s24, s18, s20\ns_add_u32 s26, s20, 8192\ns_lshl_b32 s27, s21, 11")
        A("s_mov_b32 s28, 0\ns_mov_b32 s29, 0")
        if 2*self.NT < 12:
            A(f"s_mul_i32 s20, s21, 3\ns_cmp_ge_u32 s20, {2*self.NT - 1}\ns_cselect_b32 s28, {KILL}, 0\ns_cmp_ge_u32 s20, {2*self.NT - 2}\ns_cselect_b32 s29, {KILL}, 0")
        A("s_mov_b32 s22, 0")
    def issue(self):
        A = self.A
        A("s_add_u32 m0, s22, s27")
        A(f"s_add_u32 s20, s23, {8*self.pitchP - 1024}")
        A("buffer_load_dwordx4 v2, s[4:7], s23 offen lds")
        A("buffer_load_dwordx4 v2, s[4:7], s20 offen offset:1024 lds")
        A("s_add_u32 m0, s22, s26")
        if 2*self.NT < 12:
            A("s_add_u32 s25, s24, s28\ns_add_u32 s15, s24, s29")
            A("buffer_load_dwordx4 v3, s[8:11], s24 offen lds")
            A("buffer_load_dwordx4 v3, s[8:11], s25 offen offset:1024 lds")
            A("buffer_load_dwordx4 v3, s[8:11], s15 offen offset:2048 lds")
        else:
            A("buffer_load_dwordx4 v3, s[8:11], s24 offen lds")
            A("buffer_load_dwordx4 v3, s[8:11], s24 offen offset:1024 lds")
            A("buffer_load_dwordx4 v3, s[8:11], s24 offen offset:2048 lds")
        A(f"s_add_u32 s23, s23, 128\ns_add_u32 s24, s24, {self.NT*2048}")
        A(f"s_add_u32 s22, s22, {SLOT}\ns_cmp_eq_u32 s22, {self.NS*SLOT}\ns_cselect_b32 s22, 0, s22")
    def loader_main(self, pre_issued):
        A = self.A; NS = self.NS; n = self.n
        for i in range(pre_issued, NS - 1): self.issue()
        A(f"s_waitcnt vmcnt({(NS - 2)*5})")
        A("s_barrier")
        self.issue()
        L = self.pfx + "_lloop"
        A("s_mov_b32 s14, 0")
        A.label(L)
        A(f"s_waitcnt vmcnt({(NS-2)*5})\ns_barrier")
        self.issue()
        A(f"s_add_u32 s14, s14, 1\ns_cmp_lt_u32 s14, {n - NS}\ns_cbranch_scc1 {L}")
        for t in range(NS):
            i = n - NS + t
            rem = max(0, (n - 1) - (i + 1))
            A(f"s_waitcnt vmcnt({rem*5})\ns_barrier")
    def compute_setup(self, s_row, s_tile):
        A = self.A
        A("v_and_b32 v4, 15, v0\nv_lshrrev_b32 v5, 4, v0\nv_and_b32 v6, 7, v4\nv_xor_b32 v5, v5, v6\nv_lshlrev_b32 v4, 7, v4\nv_lshl_add_u32 v4, v5, 4, v4")
        A(f"s_lshl_b32 s20, s{s_row}, 7\nv_add_u32 v2, s20, v4\nv_xor_b32 v3, 64, v2")
        A("v_and_b32 v6, 15, v0\nv_lshlrev_b32 v6, 3, v6\nv_and_b32 v7, 16, v0\nv_lshl_add_u32 v6, v7, 3, v6\nv_and_b32 v7, 32, v0\nv_lshl_add_u32 v6, v7, 4, v6")
        A(f"s_lshl_b32 s20, s{s_tile}, 11\ns_add_u32 s20, s20, 8192\nv_add_u32 v4, s20, v6")
        A(f"v_add_u32 v5, {3*SLOT}, v2\nv_add_u32 v6, {3*SLOT}, v3\nv_add_u32 v7, {3*SLOT}, v4")
        for i in range(self.ACC, self.vend): A(f"v_mov_b32 v{i}, 0")
    def reads(self, step):
        s = step & 1; sl = step % self.NS; hi = 3 if sl >= 3 else 0; so = (sl - hi)*SLOT
        b = 3 if hi else 0
        r = []
        for kk in range(2):
            for m in range(self.mP):
                f = self.fP(s, kk, m); r.append(f"ds_read_b128 v[{f}:{f+3}], v{2+kk+b} offset:{so + m*2048}")
            for t in range(self.nT):
                f = self.fT(s, kk, t)
                for h in range(2): r.append(f"ds_read_b64_tr_b16 v[{f+2*h}:{f+2*h+1}], v{4+b} offset:{so + t*2048 + kk*1024 + h*256}")
        return r
    def step(self, i, last=False):
        A = self.A; s = i & 1
        rd = [] if last else self.reads(i + 1)
        mf = [f"v_mfma_f32_16x16x32_bf16 v[{self.acc(m,t)}:{self.acc(m,t)+3}], v[{self.fT(s,kk,t)}:{self.fT(s,kk,t)+3}], v[{self.fP(s,kk,m)}:{self.fP(s,kk,m)+3}], v[{self.acc(m,t)}:{self.acc(m,t)+3}]"
              for kk in range(2) for m in range(self.mP) for t in range(self.nT)]
        A("s_barrier")
        per = (len(rd) + len(mf) - 1)//len(mf) if rd else 0
        for x in mf:
            for _ in range(per):
                if rd: A(rd.pop(0))
            A(x)
        A("s_waitcnt lgkmcnt(0)")
    def compute(self, st, unroll=False, hooks=None):
        A = self.A; NS = self.NS; n = self.n
        assert NS % 2 == 0
        A("s_barrier")
        for x in self.reads(0): A(x)
        A("s_waitcnt lgkmcnt(0)")
        st()
        if unroll:
            for i in range(n):
                self.step(i, last=(i == n - 1))
                if hooks and i in hooks: hooks[i]()
            return
        nfull = (n - 1)//NS
        L = self.pfx + "_cloop"
        A("s_mov_b32 s19, 0")
        A.label(L)
        for i in range(NS): self.step(i)
        A(f"s_add_u32 s19, s19, 1\ns_cmp_lt_u32 s19, {nfull}\ns_cbranch_scc1 {L}")
        for i in range(nfull*NS, n): self.step(i, last=(i == n - 1))

def tile_map(A):
    A("s_and_b32 s42, s2, 7\ns_lshr_b32 s43, s2, 3\ns_lshr_b32 s40, s42, 1\ns_lshl_b32 s40, s40, 3\ns_and_b32 s44, s43, 7\ns_add_u32 s40, s40, s44")
    A("s_and_b32 s41, s42, 1\ns_lshl_b32 s41, s41, 2\ns_lshr_b32 s44, s43, 3\ns_add_u32 s41, s41, s44")

ATT_LDS = 6*SLOT
def attention_regs(V):
    R = dict(aQ=V+1, aK=V+2, aV=V+3, t0=V+4, t1=V+5, t2=V+6, M20=V+7, M21=V+8, N20=V+9, N21=V+10)
    S = (V + 12 + 3)//4*4
    R.update(S=S, QF=S+12, KF=S+22, VF=S+52, OO=(S+82+3)//4*4)
    return R
def attention_prep(A, V, s_off):
    R = attention_regs(V); aQ, aK, aV, t0, t1, t2 = R['aQ'], R['aK'], R['aV'], R['t0'], R['t1'], R['t2']
    M20, M21, N20, N21, S, OO = R['M20'], R['M21'], R['N20'], R['N21'], R['S'], R['OO']
    A(f"v_lshrrev_b32 v{t0}, 3, v0\nv_lshlrev_b32 v{t0}, 2, v{t0}\nv_and_b32 v{t1}, 3, v0\nv_add_u32 v{t0}, v{t0}, v{t1}")
    A(f"v_lshrrev_b32 v{t1}, 2, v0\nv_and_b32 v{t1}, 1, v{t1}\nv_lshl_add_u32 v{t0}, v{t0}, 1, v{t1}")
    A(f"v_mul_u32_u24 v{t0}, {QP}, v{t0}\nv_add_u32 v{aK}, s{s_off}, v{t0}\nv_add_u32 v{aQ}, {16*QP}, v{aK}")
    A(f"v_lshrrev_b32 v{t1}, 4, v0\nv_lshlrev_b32 v{t1}, 2, v{t1}\nv_and_b32 v{t2}, 3, v0\nv_add_u32 v{t1}, v{t1}, v{t2}")
    A(f"v_lshrrev_b32 v{t2}, 1, v{t1}\nv_lshlrev_b32 v{t2}, 2, v{t2}\nv_and_b32 v{t1}, 1, v{t1}")
    A(f"v_lshrrev_b32 v{aV}, 2, v0\nv_and_b32 v{aV}, 3, v{aV}\nv_add_u32 v{aV}, v{aV}, v{t2}\nv_lshl_add_u32 v{aV}, v{aV}, 1, v{t1}")
    A(f"v_mul_u32_u24 v{aV}, {QP}, v{aV}\nv_add_u32 v{aV}, s{s_off}, v{aV}")
    A(f"v_and_b32 v{t1}, 3, v0")
    A(f"v_mov_b32 v{M20}, 0xffff\nv_mov_b32 v{t2}, -1\nv_cmp_le_u32 vcc, 1, v{t1}\nv_cndmask_b32 v{M20}, v{M20}, v{t2}, vcc")
    A(f"v_mov_b32 v{M21}, 0\nv_mov_b32 v{t2}, 0xffff\nv_cmp_le_u32 vcc, 2, v{t1}\nv_cndmask_b32 v{M21}, v{M21}, v{t2}, vcc")
    A(f"v_mov_b32 v{t2}, -1\nv_cmp_eq_u32 vcc, 3, v{t1}\nv_cndmask_b32 v{M21}, v{M21}, v{t2}, vcc")
    A(f"v_not_b32 v{N20}, v{M20}\nv_not_b32 v{N21}, v{M21}")
    for i in range(12): A(f"v_mov_b32 v{S+i}, 0")
    for i in range(20): A(f"v_mov_b32 v{OO+i}, 0")
    A("s_mov_b32 s22, 0xeeeeeeee\ns_mov_b32 s23, 0xeeeeeeee\ns_mov_b32 s24, 0xcccccccc\ns_mov_b32 s25, 0xcccccccc\ns_mov_b32 s26, 0x88888888\ns_mov_b32 s27, 0x88888888")
def attention_main(A, V, s_bound):
    R = attention_regs(V); aQ, aK, aV, t0, t1, t2 = R['aQ'], R['aK'], R['aV'], R['t0'], R['t1'], R['t2']
    M20, M21, N20, N21, S, QF, KF, VF, OO = R['M20'], R['M21'], R['N20'], R['N21'], R['S'], R['QF'], R['KF'], R['VF'], R['OO']
    for dg in range(5):
        A(f"ds_read_b64 v[{QF+2*dg}:{QF+2*dg+1}], v{aQ} offset:{8*dg}")
        for c in range(3): A(f"ds_read_b64 v[{KF+2*(5*c+dg)}:{KF+2*(5*c+dg)+1}], v{aK} offset:{8*c*QP + 160 + 8*dg}")
    for dg in range(5):
        if dg == 0:
            A("s_waitcnt lgkmcnt(15)")
        rem = 20 - 4*(dg+1)
        A(f"s_waitcnt lgkmcnt({min(rem, 15)})")
        for c in range(3):
            A(f"v_mfma_f32_4x4x4_16b_bf16 v[{S+4*c}:{S+4*c+3}], v[{KF+2*(5*c+dg)}:{KF+2*(5*c+dg)+1}], v[{QF+2*dg}:{QF+2*dg+1}], v[{S+4*c}:{S+4*c+3}]")
    for c in range(3):
        for dg in range(5): A(f"ds_read_b64_tr_b16 v[{VF+2*(5*c+dg)}:{VF+2*(5*c+dg)+1}], v{aV} offset:{8*c*QP + 320 + 8*dg}")
    Lb = A.newlabel("att_nomask")
    A(f"s_cmp_lg_u32 s{s_bound}, 0\ns_cbranch_scc1 {Lb}")
    A(f"v_mov_b32 v{t2}, {f2u(-1e30)}")
    A("v_cmp_gt_u32 vcc, 16, v0")
    for i in range(4): A(f"v_cndmask_b32 v{S+i}, v{S+i}, v{t2}, vcc")
    A("v_cmp_gt_u32 vcc, 8, v0")
    for i in range(4): A(f"v_cndmask_b32 v{S+4+i}, v{S+4+i}, v{t2}, vcc")
    A("s_nop 4")
    A.label(Lb)
    A("s_nop 4")
    for i in range(1, 4): A(f"v_cndmask_b32 v{S+8+i}, v{S+i}, v{S+8+i}, s[{20+2*i}:{21+2*i}]")
    vals = [S+4+i for i in range(8)]
    A(f"v_max3_f32 v{t0}, v{vals[0]}, v{vals[1]}, v{vals[2]}\nv_max3_f32 v{t1}, v{vals[3]}, v{vals[4]}, v{vals[5]}\nv_max3_f32 v{t0}, v{t0}, v{vals[6]}, v{vals[7]}\nv_max_f32 v{t0}, v{t0}, v{t1}")
    SC = (20 ** -0.5) * 1.4426950408889634
    A(f"s_mov_b32 s20, {f2u(SC)}")
    A(f"v_mul_f32 v{t0}, s20, v{t0}")
    for x in vals: A(f"v_fma_f32 v{x}, v{x}, s20, -v{t0}")
    for x in vals: A(f"v_exp_f32 v{x}, v{x}")
    A(f"v_add_f32 v{t0}, v{vals[0]}, v{vals[1]}\nv_add_f32 v{t1}, v{vals[2]}, v{vals[3]}\nv_add_f32 v{t2}, v{vals[4]}, v{vals[5]}\nv_add_f32 v{t0}, v{t0}, v{t1}")
    A(f"v_add_f32 v{t1}, v{vals[6]}, v{vals[7]}\nv_add_f32 v{t0}, v{t0}, v{t2}\nv_add_f32 v{t0}, v{t0}, v{t1}")
    A(f"v_rcp_f32 v{t0}, v{t0}")
    for x in vals: A(f"v_mul_f32 v{x}, v{x}, v{t0}")
    PP = QF
    A(f"v_cvt_pk_bf16_f32 v{PP+2}, v{S+4}, v{S+5}\nv_cvt_pk_bf16_f32 v{PP+3}, v{S+6}, v{S+7}")
    A(f"v_cvt_pk_bf16_f32 v{t1}, v{S+8}, v{S+9}\nv_cvt_pk_bf16_f32 v{t2}, v{S+10}, v{S+11}")
    A(f"v_and_b32 v{PP+4}, v{t1}, v{M20}\nv_and_b32 v{PP+5}, v{t2}, v{M21}\nv_and_b32 v{PP}, v{t1}, v{N20}\nv_and_b32 v{PP+1}, v{t2}, v{N21}")
    A("s_waitcnt lgkmcnt(0)")
    for c in (1, 0, 2):
        for dg in range(5):
            A(f"v_mfma_f32_4x4x4_16b_bf16 v[{OO+4*dg}:{OO+4*dg+3}], v[{VF+2*(5*c+dg)}:{VF+2*(5*c+dg)+1}], v[{PP+2*c}:{PP+2*c+1}], v[{OO+4*dg}:{OO+4*dg+3}]")
    for dg in range(5):
        A(f"v_cvt_pk_bf16_f32 v{KF+2*dg}, v{OO+4*dg}, v{OO+4*dg+1}\nv_cvt_pk_bf16_f32 v{KF+2*dg+1}, v{OO+4*dg+2}, v{OO+4*dg+3}")
    for dg in range(5): A(f"ds_write_b64 v{aQ}, v[{KF+2*dg}:{KF+2*dg+1}] offset:{8*dg}")

def k3(A):
    name = "k3_kernel"
    kernel_begin(A, name)
    A("s_cmp_ge_u32 s2, 256\ns_cbranch_scc1 K3_end")
    load_ptr(A, 30, 'wsp'); load_ptr(A, 32, 'ws'); load_ptr(A, 34, 'bsp')
    wave_lane(A, 16)
    tile_map(A)
    st = Stamps(A, 2); st()
    E = E2(A, "K3", 6, 32, 4096, 2, 3)
    A(f"s_mul_i32 s17, s40, {64*4096}\ns_mul_i32 s18, s41, {32*6*2048}")
    A("s_waitcnt lgkmcnt(0)")
    A("s_cmp_lt_u32 s16, 4\ns_cbranch_scc1 K3_comp")
    srd(A, 4, 30, 2048*2048*2); srd(A, 8, 32, SZ_Z2P, WS_Z2P)
    E.loader_setup()
    E.loader_main(0)
    A("s_branch K3_end")
    A.label("K3_comp")
    A("s_and_b32 s46, s16, 1\ns_lshl_b32 s46, s46, 5\ns_lshr_b32 s47, s16, 1\ns_mul_i32 s47, s47, 3")
    PF = 116
    srd(A, 4, 32, SZ_Z1, WS_Z1); srd(A, 8, 32, SZ_G, WS_G); srd(A, 12, 34, 2048*2)
    A("s_lshl_b32 s43, s40, 6\ns_add_u32 s43, s43, s46")
    A("v_and_b32 v112, 15, v0\nv_add_u32 v112, s43, v112\nv_lshrrev_b32 v113, 4, v0")
    A("s_lshr_b32 s48, s43, 5\ns_mul_i32 s48, s48, 48\ns_mul_i32 s49, s41, 6\ns_add_u32 s48, s48, s49\ns_add_u32 s48, s48, s47\ns_lshl_b32 s48, s48, 10")
    A("v_lshlrev_b32 v114, 4, v0")
    for t in range(3): A(f"buffer_load_dwordx4 v[{PF+4*t}:{PF+4*t+3}], v114, s[4:7], s48 offen offset:{t*1024}")
    A("v_lshlrev_b32 v115, 2, v112")
    A(f"buffer_load_dword v{PF+12}, v115, s[8:11], 0 offen\nbuffer_load_dword v{PF+13}, v115, s[8:11], 0 offen offset:64")
    A("v_lshlrev_b32 v115, 1, v112")
    A(f"buffer_load_ushort v{PF+14}, v115, s[12:15], 0 offen\nbuffer_load_ushort v{PF+15}, v115, s[12:15], 0 offen offset:32")
    E.compute_setup(46, 47)
    st()
    E.compute(st)
    st()
    A("s_waitcnt vmcnt(0)")
    srd(A, 12, 32, SZ_AU, WS_AU)
    for m in range(2): A(f"v_lshlrev_b32 v{PF+14+m}, 16, v{PF+14+m}\nv_sub_f32 v{PF+12+m}, 1.0, v{PF+12+m}")
    T = 132
    for m in range(2):
        for t in range(3):
            ac = E.acc(m, t)
            for q in range(2):
                z = PF + 4*t + 2*m + q
                A(f"v_lshlrev_b32 v{T}, 16, v{z}\nv_and_b32 v{T+1}, 0xffff0000, v{z}")
                A(f"v_add_f32 v{T+2}, v{ac+2*q}, v{PF+14+m}\nv_add_f32 v{T+3}, v{ac+2*q+1}, v{PF+14+m}")
                A(f"v_mul_f32 v{T}, v{T}, v{PF+12+m}\nv_mul_f32 v{T+1}, v{T+1}, v{PF+12+m}")
                A(f"v_mul_f32 v{T+2}, v{T+2}, v{T}\nv_mul_f32 v{T+3}, v{T+3}, v{T+1}")
                A(f"v_cvt_pk_bf16_f32 v{z}, v{T+2}, v{T+3}")
    A("s_mov_b32 s45, 2816\nv_mul_lo_u32 v114, v112, s45\nv_lshl_add_u32 v114, v113, 3, v114")
    A("s_mul_i32 s48, s41, 192\ns_lshl_b32 s49, s47, 5\ns_add_u32 s48, s48, s49\ns_add_u32 s48, s48, 1280\nv_add_u32 v114, s48, v114")
    A(f"s_mov_b32 s49, {16*2816}")
    for m in range(2):
        for t in range(3):
            z = PF + 4*t + 2*m
            A(f"buffer_store_dwordx2 v[{z}:{z+1}], v114, s[12:15], {'s49' if m else '0'} offen offset:{t*32}")
    st(); st.flush(16, 32)
    A.label("K3_end")
    A("s_endpgm")
    return name, 256, 512, 6*SLOT, 140

def k4(A):
    name = "k4_kernel"
    kernel_begin(A, name)
    A("s_cmp_ge_u32 s2, 256\ns_cbranch_scc1 K4_end")
    load_ptr(A, 30, 'out'); load_ptr(A, 32, 'ws')
    wave_lane(A, 16)
    tile_map(A)
    st = Stamps(A, 3); st()
    E = E2(A, "K4", 5, 22, 2816, 1, 5)
    A(f"s_mul_i32 s17, s40, {64*2816}\ns_mul_i32 s18, s41, {22*5*2048}")
    A("s_waitcnt lgkmcnt(0)")
    A("s_cmp_lt_u32 s16, 4\ns_cbranch_scc1 K4_comp")
    srd(A, 4, 32, SZ_AU, WS_AU); srd(A, 8, 32, SZ_WP, WS_WP)
    E.loader_setup()
    E.loader_main(0)
    A("s_branch K4_end")
    A.label("K4_comp")
    A("s_lshl_b32 s46, s16, 4\ns_mov_b32 s47, 0")
    srd(A, 8, 32, SZ_G, WS_G)
    A("s_lshl_b32 s43, s40, 6\ns_add_u32 s43, s43, s46\nv_and_b32 v126, 15, v0\nv_add_u32 v126, s43, v126\nv_lshlrev_b32 v126, 2, v126")
    A("buffer_load_dword v125, v126, s[8:11], 0 offen")
    E.compute_setup(46, 47)
    st()
    def scale():
        A("s_waitcnt vmcnt(0)")
        for t in range(5):
            for r in range(4): A(f"v_mul_f32 v{E.acc(0,t)+r}, v{E.acc(0,t)+r}, v125")
    E.compute(st, unroll=True, hooks={9: scale})
    st()
    A("s_lshl_b32 s43, s40, 6\ns_add_u32 s43, s43, s46\nv_and_b32 v2, 15, v0\nv_add_u32 v2, s43, v2\nv_lshrrev_b32 v3, 4, v0")
    srd(A, 12, 30, 2048*640*2)
    PK = 8
    for t in range(5):
        ac = E.acc(0, t)
        A(f"v_cvt_pk_bf16_f32 v{PK+2*t}, v{ac}, v{ac+1}\nv_cvt_pk_bf16_f32 v{PK+2*t+1}, v{ac+2}, v{ac+3}")
    A("s_mov_b32 s45, 1280\nv_mul_lo_u32 v4, v2, s45\nv_lshl_add_u32 v4, v3, 3, v4\ns_mul_i32 s46, s41, 160\nv_add_u32 v4, s46, v4")
    for t in range(5): A(f"buffer_store_dwordx2 v[{PK+2*t}:{PK+2*t+1}], v4, s[12:15], 0 offen offset:{t*32}")
    st(); st.flush(16, 32)
    A.label("K4_end")
    A("s_endpgm")
    return name, 256, 512, 6*SLOT, 128

def k34(A):
    name = "k34_kernel"
    NS = 6; N1 = 32; N2 = 22; N = N1 + N2
    USTG = NS*SLOT
    LCNT = USTG + 64*208
    kernel_begin(A, name)
    A("s_cmp_ge_u32 s2, 256\ns_cbranch_scc1 K34_end")
    load_ptr(A, 30, 'wsp'); load_ptr(A, 32, 'ws'); load_ptr(A, 34, 'bsp'); load_ptr(A, 36, 'out'); load_ptr(A, 38, 'dbg')
    wave_lane(A, 16)
    tile_map(A)
    hd_start(A)
    st = Stamps(A, 2); st()
    E1 = E2(A, "K34a", 6, N1, 4096, 2, 3)
    A("s_waitcnt lgkmcnt(0)")
    A("s_cmp_lt_u32 s16, 4\ns_cbranch_scc1 K34_comp")
    srd(A, 4, 30, 2048*2048*2); srd(A, 8, 32, SZ_Z2P, WS_Z2P)
    A(f"s_mul_i32 s17, s40, {64*4096}\ns_mul_i32 s18, s41, {32*6*2048}")
    E1.loader_setup()
    A("v_lshrrev_b32 v7, 3, v0\nv_and_b32 v4, 7, v0\nv_xor_b32 v4, v4, v7\nv_mul_u32_u24 v7, 2816, v7\nv_lshl_add_u32 v4, v4, 4, v7")
    A("v_lshrrev_b32 v7, 3, v0\nv_and_b32 v5, 7, v0\nv_xor_b32 v5, v5, v7\nv_mul_u32_u24 v7, 384, v7\nv_lshl_add_u32 v10, v5, 4, v7")
    for i in range(NS - 1): E1.issue()
    A(f"s_waitcnt vmcnt({(NS - 2)*5})\ns_barrier")
    E1.issue()
    A("s_mov_b32 s14, 0")
    A.label("K34_lloop")
    A(f"s_waitcnt vmcnt({(NS-2)*5})\ns_barrier")
    E1.issue()
    A(f"s_add_u32 s14, s14, 1\ns_cmp_lt_u32 s14, {N1 - NS}\ns_cbranch_scc1 K34_lloop")
    srd(A, 4, 32, SZ_AU, WS_AU); srd(A, 8, 32, SZ_WP, WS_WP); srd(A, 12, 32, SZ_FL, WS_FL)
    A(f"s_mul_i32 s17, s40, {64*2816}\ns_mul_i32 s20, s21, {16*2816}\ns_add_u32 s23, s17, s20")
    A(f"s_mul_i32 s18, s41, {22*5*2048}\ns_mul_i32 s20, s21, 3072\ns_add_u32 s24, s18, s20")
    A(f"s_mul_i32 s20, s21, 3\ns_cmp_ge_u32 s20, 9\ns_cselect_b32 s28, {KILL}, 0\ns_cmp_ge_u32 s20, 8\ns_cselect_b32 s29, {KILL}, 0")
    A("s_lshl_b32 s44, s40, 7\nv_and_b32 v8, 7, v0\nv_lshlrev_b32 v8, 2, v8\nv_add_u32 v8, s44, v8")
    srd(A, 48, 32, SZ_U, WS_U)
    A(f"s_mul_i32 s52, s40, {4*24576}\ns_mul_i32 s20, s21, {16*384}\ns_add_u32 s52, s52, s20")
    issued = [('S', s) for s in range(N1 - NS + 2 - 1, N1) for _ in range(5)]
    def issueP(s):
        sl = s % NS; s2_ = s - N1
        fl = " sc1" if (s2_ >= 10 and O.usc1) else ""
        A(f"s_add_u32 m0, s27, {sl*SLOT}")
        if s2_ < 10:
            A(f"s_add_u32 s20, s23, {s2_*128}\ns_add_u32 s25, s23, {s2_*128 + 8*2816 - 1024}")
            A(f"buffer_load_dwordx4 v4, s[4:7], s20 offen lds")
            A(f"buffer_load_dwordx4 v4, s[4:7], s25 offen offset:1024 lds")
        else:
            a_, b_ = divmod(s2_ - 10, 3)
            A(f"s_add_u32 s20, s52, {a_*24576 + b_*128}\ns_add_u32 s25, s52, {a_*24576 + b_*128 + 8*384 - 1024}")
            A(f"buffer_load_dwordx4 v10, s[48:51], s20 offen{fl} lds")
            A(f"buffer_load_dwordx4 v10, s[48:51], s25 offen offset:1024{fl} lds")
        issued.extend([('P', s)]*2)
    def issueT(s):
        sl = s % NS; s2_ = s - N1
        A(f"s_add_u32 m0, s26, {sl*SLOT}")
        A(f"s_add_u32 s20, s24, {s2_*10240}\ns_add_u32 s25, s20, s28\ns_add_u32 s45, s20, s29")
        A("buffer_load_dwordx4 v3, s[8:11], s20 offen lds")
        A("buffer_load_dwordx4 v3, s[8:11], s25 offen offset:1024 lds")
        A("buffer_load_dwordx4 v3, s[8:11], s45 offen offset:2048 lds")
        issued.extend([('T', s)]*3)
    def wait_for(needs):
        last = -1
        for idx, tg in enumerate(issued):
            if tg in needs: last = idx
        if last < 0: return
        A(f"s_waitcnt vmcnt({min(len(issued) - 1 - last, 63)})")
    FIRSTU = N1 + 10
    POLL_I = O.poll_i
    deferred = []
    gate_open = False
    for i in range(N1 - NS, N):
        nxt = i + 1
        if nxt < N:
            wait_for([('S', nxt), ('P', nxt), ('T', nxt)])
        A("s_barrier")
        if i == POLL_I + 1:
            wait_for([('X', 0)])
            A("v_cmp_ne_u32 vcc, 1, v9\ns_nop 4")
            A("s_cbranch_vccz K34_ready")
            A("s_mov_b32 s47, 0")
            A.label("K34_poll")
            A(f"s_sleep {O.sleep}")
            A("buffer_load_dword v9, v8, s[12:15], 0 offen sc1")
            A("s_waitcnt vmcnt(0)")
            A("v_cmp_ne_u32 vcc, 1, v9")
            A("s_add_u32 s47, s47, 1\ns_nop 3")
            A("s_cbranch_vccz K34_ready")
            A("s_cmp_lt_u32 s47, 0x40000\ns_cbranch_scc1 K34_poll")
            A.label("K34_ready")
            gate_open = True
            for s in deferred: issueP(s)
            deferred = []
        s = i + NS
        if s < N:
            issueT(s)
            if s >= FIRSTU and not gate_open: deferred.append(s)
            else: issueP(s)
        if i == POLL_I:
            A("buffer_load_dword v9, v8, s[12:15], 0 offen sc1")
            issued.append(('X', 0))
    assert not deferred
    A("s_branch K34_end")
    A.label("K34_comp")
    A("s_and_b32 s46, s16, 1\ns_lshl_b32 s46, s46, 5\ns_lshr_b32 s47, s16, 1\ns_mul_i32 s47, s47, 3")
    PF = 116
    C1R = 212
    C1R = 140
    C1R = 188
    BB = 132
    COA = 88
    srd(A, 4, 32, SZ_Z1, WS_Z1); srd(A, 8, 32, SZ_G, WS_G); srd(A, 12, 34, 2048*2)
    A("s_lshl_b32 s43, s40, 6\ns_add_u32 s43, s43, s46")
    A("v_and_b32 v112, 15, v0\nv_add_u32 v112, s43, v112\nv_lshrrev_b32 v113, 4, v0")
    A("s_lshr_b32 s48, s43, 5\ns_mul_i32 s48, s48, 48\ns_mul_i32 s49, s41, 6\ns_add_u32 s48, s48, s49\ns_add_u32 s48, s48, s47\ns_lshl_b32 s48, s48, 10")
    A("v_lshlrev_b32 v114, 4, v0")
    for t in range(3): A(f"buffer_load_dwordx4 v[{PF+4*t}:{PF+4*t+3}], v114, s[4:7], s48 offen offset:{t*1024}")
    A("v_lshlrev_b32 v115, 2, v112")
    A(f"buffer_load_dword v{PF+12}, v115, s[8:11], 0 offen\nbuffer_load_dword v{PF+13}, v115, s[8:11], 0 offen offset:64")
    A("v_lshlrev_b32 v115, 1, v112")
    A(f"buffer_load_ushort v{PF+14}, v115, s[12:15], 0 offen\nbuffer_load_ushort v{PF+15}, v115, s[12:15], 0 offen offset:32")
    A("s_lshl_b32 s50, s40, 6\ns_lshl_b32 s51, s16, 4\ns_add_u32 s50, s50, s51\nv_and_b32 v137, 15, v0\nv_add_u32 v137, s50, v137\nv_lshlrev_b32 v138, 2, v137")
    A("buffer_load_dword v136, v138, s[8:11], 0 offen")
    A(f"s_mov_b32 s53, {USTG}")
    A(f"v_mov_b32 v138, {LCNT}\nv_mov_b32 v139, 0\nds_write_b32 v138, v139")
    E1.compute_setup(46, 47)
    E2b = E2(A, "K34b", 5, N2, 2816, 1, 5)
    E2b.F = [140, 188]; E2b.ACC = 236; E2b.vend = 256
    st()
    A("s_barrier")
    for x in E1.reads(0): A(x)
    A("s_waitcnt vmcnt(0)")
    for m in range(2):
        A(f"v_lshlrev_b32 v{BB+2*m}, 16, v{PF+14+m}\nv_mov_b32 v{BB+2*m+1}, v{BB+2*m}\nv_sub_f32 v{PF+12+m}, 1.0, v{PF+12+m}")
    for m in range(2):
        for t in range(3):
            c = C1R + 4*(3*m + t)
            for q in range(2):
                z = PF + 4*t + 2*m + q
                A(f"v_lshlrev_b32 v{c+2*q}, 16, v{z}\nv_and_b32 v{c+2*q+1}, 0xffff0000, v{z}")
    for m in range(2):
        for t in range(3):
            c = C1R + 4*(3*m + t)
            for r in range(4): A(f"v_mul_f32 v{c+r}, v{c+r}, v{PF+12+m}")
    A("s_waitcnt lgkmcnt(0)")
    st()
    A("s_mov_b32 s19, 0")
    A.label("K34_cloop")
    for i in range(NS): E1.step(i)
    A(f"s_add_u32 s19, s19, 1\ns_cmp_lt_u32 s19, 5\ns_cbranch_scc1 K34_cloop")
    E1.step(30)
    A("v_and_b32 v4, 15, v0\nv_lshrrev_b32 v5, 4, v0\nv_and_b32 v6, 7, v4\nv_xor_b32 v5, v5, v6\nv_lshlrev_b32 v4, 7, v4\nv_lshl_add_u32 v4, v5, 4, v4")
    A("s_lshl_b32 s20, s16, 11\nv_add_u32 v2, s20, v4\nv_xor_b32 v3, 64, v2")
    A("v_and_b32 v6, 15, v0\nv_lshlrev_b32 v6, 3, v6\nv_and_b32 v7, 16, v0\nv_lshl_add_u32 v6, v7, 3, v6\nv_and_b32 v7, 32, v0\nv_lshl_add_u32 v6, v7, 4, v6")
    A("v_add_u32 v4, 8192, v6")
    A(f"v_add_u32 v5, {3*SLOT}, v2\nv_add_u32 v6, {3*SLOT}, v3\nv_add_u32 v7, {3*SLOT}, v4")
    for i in range(236, 256): A(f"v_mov_b32 v{i}, 0")
    def mixed_step(Ecur, icur, Enext, inext):
        s = icur & 1
        rd = Enext.reads(inext) if Enext else []
        mf = [f"v_mfma_f32_16x16x32_bf16 v[{Ecur.acc(m,t)}:{Ecur.acc(m,t)+3}], v[{Ecur.fT(s,kk,t)}:{Ecur.fT(s,kk,t)+3}], v[{Ecur.fP(s,kk,m)}:{Ecur.fP(s,kk,m)+3}], v[{Ecur.acc(m,t)}:{Ecur.acc(m,t)+3}]"
              for kk in range(2) for m in range(Ecur.mP) for t in range(Ecur.nT)]
        A("s_barrier")
        per = (len(rd) + len(mf) - 1)//len(mf) if rd else 0
        for x in mf:
            for _ in range(per):
                if rd: A(rd.pop(0))
            A(x)
        A("s_waitcnt lgkmcnt(0)")
    mixed_step(E1, 31, E2b, 32)
    st()
    for m in range(2):
        for t in range(3):
            ac = E1.acc(m, t); c = C1R + 4*(3*m + t)
            for q in range(2):
                A(f"v_pk_add_f32 v[{ac+2*q}:{ac+2*q+1}], v[{ac+2*q}:{ac+2*q+1}], v[{PF+14+m-(PF+14+m)%2 if False else BB+2*m}:{BB+2*m+1}]")
    for m in range(2):
        for t in range(3):
            ac = E1.acc(m, t); c = C1R + 4*(3*m + t)
            for q in range(2):
                A(f"v_pk_mul_f32 v[{ac+2*q}:{ac+2*q+1}], v[{ac+2*q}:{ac+2*q+1}], v[{c+2*q}:{c+2*q+1}]")
    for m in range(2):
        for t in range(3):
            ac = E1.acc(m, t); z = PF + 4*t + 2*m
            A(f"v_cvt_pk_bf16_f32 v{z}, v{ac}, v{ac+1}\nv_cvt_pk_bf16_f32 v{z+1}, v{ac+2}, v{ac+3}")
    A("v_and_b32 v114, 15, v0\nv_add_u32 v114, s46, v114\nv_mul_u32_u24 v114, 208, v114\nv_lshl_add_u32 v114, v113, 3, v114")
    A(f"s_lshl_b32 s48, s47, 5\ns_add_u32 s48, s48, {USTG}\nv_add_u32 v114, s48, v114")
    for m in range(2):
        for t in range(3):
            z = PF + 4*t + 2*m
            A(f"ds_write_b64 v114, v[{z}:{z+1}] offset:{m*16*208 + t*32}")
    A("s_mul_i32 s20, s16, 192\nv_add_u32 v138, s20, v0")
    for q in range(3):
        A(f"v_add_u32 v139, {64*q}, v138\nv_mul_u32_u24 v114, 5462, v139\nv_lshrrev_b32 v114, 16, v114")
        A(f"v_mul_u32_u24 v115, 12, v114\nv_sub_u32 v115, v139, v115\nv_lshlrev_b32 v115, 4, v115")
        A(f"v_mul_u32_u24 v139, 208, v114\nv_add3_u32 v{COA+q}, v139, v115, s53\nv_mul_u32_u24 v139, 384, v114\nv_add_u32 v{COA+3+q}, v139, v115")
    A("s_waitcnt lgkmcnt(0)")
    st()
    def signal():
        A("s_waitcnt vmcnt(0)")
        A(f"v_mov_b32 v138, {LCNT}\nv_mov_b32 v139, 1")
        A("s_mov_b64 exec, 1")
        A("ds_add_rtn_u32 v139, v138, v139")
        A("s_waitcnt lgkmcnt(0)")
        A("v_readfirstlane_b32 s20, v139")
        A("s_cmp_lg_u32 s20, 3\ns_cbranch_scc1 K34_nosig")
        srd(A, 12, 32, SZ_FL, WS_FL)
        A("s_lshl_b32 s20, s40, 7\ns_lshl_b32 s21, s41, 2\ns_add_u32 s20, s20, s21\nv_mov_b32 v138, s20\nv_mov_b32 v139, 1")
        A("buffer_store_dword v139, v138, s[12:15], 0 offen sc1")
        A.label("K34_nosig")
        A("s_mov_b64 exec, -1")
    for i in range(N1, N):
        last = (i == N - 1)
        mixed_step(E2b, i, None if last else E2b, i + 1)
        if i == N1:
            srd(A, 12, 32, SZ_U, WS_U)
            for q in range(3): A(f"ds_read_b128 v[{PF+4*q}:{PF+4*q+3}], v{COA+q}")
            A("s_lshl_b32 s48, s40, 2\ns_lshr_b32 s49, s41, 1\ns_add_u32 s48, s48, s49\ns_mul_i32 s48, s48, 24576\ns_and_b32 s49, s41, 1\ns_mul_i32 s49, s49, 192\ns_add_u32 s48, s48, s49")
            A("s_waitcnt lgkmcnt(0)")
            for q in range(3): A(f"buffer_store_dwordx4 v[{PF+4*q}:{PF+4*q+3}], v{COA+3+q}, s[12:15], s48 offen sc1")
        if i in (33, 36, 38, 40, 41, 42, 45, 49): st()
        if i == O.sig_i: signal()
        if i == N1 + 9:
            for t in range(5):
                for r in range(4): A(f"v_mul_f32 v{E2b.acc(0,t)+r}, v{E2b.acc(0,t)+r}, v136")
    st()
    srd(A, 12, 36, 2048*640*2)
    PK = 8
    for t in range(5):
        ac = E2b.acc(0, t)
        A(f"v_cvt_pk_bf16_f32 v{PK+2*t}, v{ac}, v{ac+1}\nv_cvt_pk_bf16_f32 v{PK+2*t+1}, v{ac+2}, v{ac+3}")
    A("v_lshrrev_b32 v3, 4, v0\ns_mov_b32 s45, 1280\nv_mul_lo_u32 v4, v137, s45\nv_lshl_add_u32 v4, v3, 3, v4\ns_mul_i32 s46, s41, 160\nv_add_u32 v4, s46, v4")
    for t in range(5): A(f"buffer_store_dwordx2 v[{PK+2*t}:{PK+2*t+1}], v4, s[12:15], 0 offen offset:{t*32}")
    st(); st.flush(16, 32, 20)
    hd_end(A, 32, 2, 0, 60)
    if O.hdiag:
        A("s_cmp_lg_u32 s2, 0\ns_cbranch_scc1 K34_end\ns_cmp_lg_u32 s16, 0\ns_cbranch_scc1 K34_end")
        A("s_waitcnt vmcnt(0)")
        srd(A, 84, 32, 4096, WS_TS); srd(A, 88, 38, 256)
        A("v_lshlrev_b32 v60, 2, v0\nv_cmp_gt_u32 vcc, 12, v0\ns_and_saveexec_b64 s[20:21], vcc")
        A("buffer_load_dword v61, v60, s[84:87], 0 offen sc1\ns_waitcnt vmcnt(0)\nbuffer_store_dword v61, v60, s[88:91], 0 offen")
    A.label("K34_end")
    A("s_endpgm")
    return name, 256, 512, NS*SLOT + 64*208 + 64, 256

def main(out, kernels):
    body = Asm(); ks = []
    for f in kernels: ks.append(f(body))
    hdr = [f"; @launch kernel={n} grid=({g},1,1) block=({b},1,1) lds={lds}" for (n, g, b, lds, vg) in ks]
    hdr.append('.amdgcn_target "amdgcn-amd-amdhsa--gfx950"'); hdr.append(".text")
    lines = hazard.fix(body.lines, verbose=True)
    txt = "\n".join(hdr) + "\n" + "\n".join(lines) + "\n" + '.section .rodata,"a"\n'
    for (n, g, b, lds, vg) in ks: txt += kernel_desc(n, 256 if O.stamp else vg, 96)
    open(out, "w").write(txt)
if __name__ == "__main__":
    if '--stamp' in sys.argv: O.stamp = True
    if '--norot' in sys.argv: O.rot = False
    if '--pfg' in sys.argv: O.pfg = True
    if '--nofull' in sys.argv: O.fullring = False
    for a_ in sys.argv:
        if a_.startswith('--tla='): O.tla = int(a_[6:])
    for a_ in sys.argv:
        if a_.startswith('--pfg2='): O.pfg2 = int(a_[7:])
    if '--itstamp' in sys.argv: O.itstamp = True
    if '--nowsp' in sys.argv: O.wsp_pf = False
    for a_ in sys.argv:
        if a_.startswith('--poll='): O.poll_i = int(a_[7:])
        if a_.startswith('--sig='): O.sig_i = int(a_[6:])
    if '--full' in sys.argv: O.fullring = True; O.tla = 6
    if '--nofuse' in sys.argv: O.fuse = False
    if '--nosc1' in sys.argv: O.usc1 = False
    if '--hdiag' in sys.argv: O.hdiag = True
    for a_ in sys.argv:
        if a_.startswith('--rottab='): O.rottab = int(a_[9:], 16)
    for a_ in sys.argv:
        if a_.startswith('--sleep='): O.sleep = int(a_[8:])
    main(sys.argv[1], [k1, k34] if O.fuse else [k1, k3, k4])
```

```python
import sys, struct
from asmlib import *
import hazard
NAME = "gated_mix__sliding_local_dilated__mixer_gmlp__prompt"
KA = dict(x=0, wqkv=8, wo=16, bx=24, win=32, wsp=40, bsp=48, wout=56, gw=64, out=72, dbg=80, ws=88)
QP = 504
HGS = 2048*QP
WS_QKVG = 0;          SZ_QKVG = 8*HGS
WS_Z1  = 0x900000;    SZ_Z1 = 2048*768*2
WS_Z2P = 0xC00000;    SZ_Z2P = 2048*768*2
WS_AU  = 0xF00000;    SZ_AU = 2048*1408*2
WS_WP  = 0x1500000;   SZ_WP = 1408*640*2
WS_ST  = 0x1700000;   SZ_ST = 8*2048*16
WS_G   = 0x1740000;   SZ_G = 2048*4
WS_EP  = 0x1760000;   SZ_EP = 16*128
WS_FL  = 0x1750000;   SZ_FL = 32*128
WS_U   = 0x1800000;   SZ_U = 2048*768*2
WS_TS  = 0x2000000
KILL = 0x40000000
C0 = -2.0*0.7978845608028654*1.4426950408889634
C1 = C0*0.044715
def f2u(f): return struct.unpack('<I', struct.pack('<f', f))[0]
class Opt:
    stamp = False; rot = True; wsp_pf = True; la = 5; itstamp = False; pfg = False; pfg2 = 2; fullring = False; tla = 4; poll_i = 38; sig_i = 36; fuse = True; fine2 = False; stg128 = True; usc1 = True; ustore = ' sc1'; hdiag = False; sleep = 4; rottab = 0x8530
O = Opt()

def load_ptr(A, sd, key): A(f"s_load_dwordx2 s[{sd}:{sd+1}], s[0:1], {KA[key]}")
def wave_lane(A, s_w):
    A("v_lshrrev_b32 v1, 6, v0")
    A(f"v_readfirstlane_b32 s{s_w}, v1")
    A("v_and_b32 v0, 63, v0")

class Stamps:
    def __init__(self, A, kidx, n0=0): self.A = A; self.n = n0; self.k = kidx
    def __call__(self):
        if not O.stamp: return
        assert self.n < 16
        self.A(f"s_memtime s[{60+2*self.n}:{61+2*self.n}]"); self.n += 1
    def flush(self, s_w, s_ws, vt=250):
        if not O.stamp: return
        A = self.A
        A("s_waitcnt vmcnt(0)")
        A("s_memrealtime s[92:93]")
        A("s_waitcnt lgkmcnt(0)")
        srd(A, 56, s_ws, 0x100000, WS_TS + self.k*0x40000)
        A(f"s_lshl_b32 s54, s2, 2\ns_add_u32 s54, s54, s{s_w}\ns_lshl_b32 s54, s54, 7")
        A("s_mov_b64 exec, 1")
        for i in range(self.n):
            A(f"v_mov_b32 v{vt}, s{60+2*i}\nv_mov_b32 v{vt+1}, {4*i}")
            A(f"buffer_store_dword v{vt}, v{vt+1}, s[56:59], s54 offen")
        A(f"v_mov_b32 v{vt}, s92\nv_mov_b32 v{vt+1}, 124")
        A(f"buffer_store_dword v{vt}, v{vt+1}, s[56:59], s54 offen")
        A("s_mov_b64 exec, -1")


def it_top(A):
    if not O.itstamp: return
    A("s_memtime s[76:77]\ns_waitcnt lgkmcnt(0)")
    for k in range(3): A(f"s_cmp_eq_u32 s26, {k}\ns_cselect_b32 s{80+k}, s76, s{80+k}")
def it_mid(A):
    if O.itstamp: A("s_memtime s[76:77]\ns_waitcnt lgkmcnt(0)\ns_mov_b32 s83, s76")
def it_end(A, va, vb):
    if not O.itstamp: return
    A("s_memtime s[76:77]\ns_waitcnt lgkmcnt(0)\ns_mov_b32 s84, s76")
    srd(A, 56, 32, 0x200000, WS_TS + 7*0x40000)
    A("s_lshl_b32 s54, s2, 2\ns_add_u32 s54, s54, s16\ns_lshl_b32 s54, s54, 7")
    A("s_mov_b64 exec, 1")
    for i in range(11):
        A(f"v_mov_b32 v{va}, s{80+i}\nv_mov_b32 v{vb}, {4*i}")
        A(f"buffer_store_dword v{va}, v{vb}, s[56:59], s54 offen")
    A("s_mov_b64 exec, -1")


def hd_start(A):
    if O.hdiag: A("s_memtime s[94:95]\ns_memrealtime s[92:93]\ns_waitcnt lgkmcnt(0)\ns_mov_b32 s90, s94\ns_mov_b32 s91, s92")
def hd_end(A, s_ws, slot_sreg_expr, cond_wg, vt):
    if not O.hdiag: return
    L = A.newlabel("hd")
    A(f"s_cmp_lg_u32 s2, {cond_wg}\ns_cbranch_scc1 {L}\ns_cmp_lg_u32 s16, 0\ns_cbranch_scc1 {L}")
    A("s_waitcnt vmcnt(0)\ns_memtime s[94:95]\ns_memrealtime s[92:93]\ns_waitcnt lgkmcnt(0)")
    A("s_sub_u32 s94, s94, s90\ns_sub_u32 s95, s92, s91")
    srd(A, 84, s_ws, 4096, WS_TS)
    A(f"v_mov_b32 v{vt}, s94\nv_mov_b32 v{vt+1}, s95\nv_mov_b32 v{vt+2}, s91\nv_mov_b32 v{vt+3}, s92\nv_mov_b32 v{vt+4}, {slot_sreg_expr*16}")
    A("s_mov_b64 exec, 1")
    A(f"buffer_store_dwordx4 v[{vt}:{vt+3}], v{vt+4}, s[84:87], 0 offen")
    A("s_mov_b64 exec, -1")
    A.label(L)

def gelu_pk(A, regs, tmp, sC):
    n = len(regs)
    for i, r in enumerate(regs): A(f"v_pk_mul_f32 v[{tmp+2*i}:{tmp+2*i+1}], v[{r}:{r+1}], v[{r}:{r+1}]")
    for i, r in enumerate(regs): A(f"v_pk_fma_f32 v[{tmp+2*i}:{tmp+2*i+1}], v[{tmp+2*i}:{tmp+2*i+1}], s[{sC}:{sC+1}], v[6:7]")
    for i, r in enumerate(regs): A(f"v_pk_mul_f32 v[{tmp+2*i}:{tmp+2*i+1}], v[{tmp+2*i}:{tmp+2*i+1}], v[{r}:{r+1}]")
    for i in range(2*n): A(f"v_exp_f32 v{tmp+i}, v{tmp+i}")
    for i, r in enumerate(regs): A(f"v_pk_add_f32 v[{tmp+2*i}:{tmp+2*i+1}], v[{tmp+2*i}:{tmp+2*i+1}], 1.0 op_sel_hi:[1,0]")
    for i in range(2*n): A(f"v_rcp_f32 v{tmp+i}, v{tmp+i}")
    for i, r in enumerate(regs): A(f"v_pk_mul_f32 v[{r}:{r+1}], v[{r}:{r+1}], v[{tmp+2*i}:{tmp+2*i+1}]")

def k1_geom(typ):
    if typ == 'q':
        return dict(pitchW=3840, PROWS=144, PSLOT=144*128, NPS=3, TSLOT=15360, R=6, TBASE=3*144*128)
    return dict(pitchW=3072, PROWS=128, PSLOT=128*128, NPS=3, TSLOT=16384, R=6, TBASE=3*128*128)

def k1_wsp_prefetch(A, part):
    if part == 0:
        srd(A, 4, 52, 2048*2048*2)
        A("s_and_b32 s40, s2, 7\ns_lshr_b32 s40, s40, 1\ns_lshl_b32 s40, s40, 14")
        A("s_lshr_b32 s41, s2, 3\ns_and_b32 s41, s41, 15\ns_lshl_b32 s41, s41, 10\ns_add_u32 s40, s40, s41")
        A("s_sub_u32 s41, s16, 4\ns_lshl_b32 s41, s41, 8\ns_add_u32 s40, s40, s41")
        A("s_lshl_b32 s40, s40, 7")
        A("v_lshlrev_b32 v249, 7, v0")
    else:
        A("s_add_u32 s40, s40, 8192")
    A(f"buffer_load_dword v{250 + (part & 1)}, v249, s[4:7], s40 offen")

def pf_setup(A):
    A("s_cmp_lt_u32 s21, 2\ns_cselect_b32 s84, s30, s34\ns_cselect_b32 s85, s31, s35")
    A(f"s_mov_b32 s86, {640*1920*2}\ns_cselect_b32 s86, {2048*640*2}, s86")
    A("s_cmp_eq_u32 s21, 3\ns_cselect_b32 s84, s36, s84\ns_cselect_b32 s85, s37, s85")
    A(f"s_cselect_b32 s86, {640*1536*2}, s86\ns_mov_b32 s87, 0x20000")
    A("s_lshr_b32 s88, s2, 3\ns_and_b32 s89, s2, 7\ns_lshr_b32 s90, s89, 1\ns_and_b32 s89, s89, 1")
    A("s_lshl_b32 s91, s89, 10\ns_lshl_b32 s92, s88, 5\ns_add_u32 s91, s91, s92\ns_lshl_b32 s92, s21, 4\ns_add_u32 s91, s91, s92")
    A("v_lshrrev_b32 v20, 2, v0\nv_add_u32 v20, s91, v20\nv_mul_u32_u24 v20, 1280, v20\nv_and_b32 v21, 3, v0\nv_lshl_add_u32 v20, v21, 7, v20\nv_add_u32 v20, 384, v20")
    A("v_mul_u32_u24 v21, 57, v0\nv_lshrrev_b32 v21, 9, v21\nv_mul_u32_u24 v22, 9, v21\nv_sub_u32 v22, v0, v22")
    A("s_mul_i32 s91, s88, 7\ns_add_u32 s91, s91, 192\nv_add_u32 v21, s91, v21\nv_mul_u32_u24 v21, 3840, v21")
    A("v_mul_u32_u24 v23, 171, v22\nv_lshrrev_b32 v23, 9, v23\nv_mul_u32_u24 v25, 3, v23\nv_sub_u32 v22, v22, v25")
    A("s_lshl_b32 s91, s90, 2\ns_lshr_b32 s91, 0x7520, s91\ns_and_b32 s91, s91, 15")
    A("v_add_u32 v22, s91, v22\nv_lshlrev_b32 v22, 7, v22\nv_mul_u32_u24 v23, 1280, v23\nv_add3_u32 v21, v21, v22, v23")
    A(f"v_mov_b32 v25, {KILL}\nv_cmp_le_u32 vcc, 63, v0\nv_cndmask_b32 v21, v21, v25, vcc")
    A("v_mul_u32_u24 v22, 43, v0\nv_lshrrev_b32 v22, 8, v22\nv_mul_u32_u24 v23, 6, v22\nv_sub_u32 v23, v0, v23")
    A("s_mul_i32 s91, s88, 7\ns_add_u32 s91, s91, 192\nv_add_u32 v22, s91, v22\nv_mul_u32_u24 v22, 3072, v22")
    A("v_mul_u32_u24 v26, 171, v23\nv_lshrrev_b32 v26, 9, v26\nv_mul_u32_u24 v27, 3, v26\nv_sub_u32 v23, v23, v27")
    A("v_lshlrev_b32 v23, 7, v23\nv_mul_u32_u24 v26, 1536, v26\nv_add3_u32 v22, v22, v23, v26\ns_mul_i32 s91, s90, 384\nv_add_u32 v22, s91, v22")
    A("v_cmp_le_u32 vcc, 42, v0\nv_cndmask_b32 v22, v22, v25, vcc")
    A("s_cmp_lt_u32 s21, 2\ns_cselect_b64 s[90:91], -1, 0\ns_cselect_b32 s88, 384, 0")
    A("v_cndmask_b32 v24, v21, v20, s[90:91]")
    A(f"s_cmp_eq_u32 s21, 2\ns_cselect_b32 s88, {224*3840}, s88")
    A(f"s_cmp_eq_u32 s21, 3\ns_cselect_b32 s88, {224*3072}, s88\ns_cselect_b64 s[90:91], -1, 0")
    A("v_cndmask_b32 v24, v24, v22, s[90:91]")

def pf_group(A, g):
    if g == 0: A("buffer_load_dword v248, v24, s[84:87], 0 offen")
    else: A("buffer_load_dword v248, v24, s[84:87], s88 offen")

def run_loader_schedule(A, issueP, issueT, issued, hooks=None, wsp=False):
    NB = 20; NPS = 3; R = 6
    def wait_for(needs):
        last = -1
        for idx, tg in enumerate(issued):
            if tg in needs: last = idx
        if last < 0: return
        A(f"s_waitcnt vmcnt({min(len(issued) - 1 - last, 63)})")
    TLA = O.tla
    issueP(0, 0); issueP(0, 1); issueT(0); issueT(1)
    issueP(1, 0); issueP(1, 1)
    for t in range(2, TLA): issueT(t)
    if O.fullring: issueP(2, 0); issueP(2, 1)
    if O.pfg:
        pf_setup(A); pf_group(A, 0); issued.append(('F', 0))
    wait_for([('P', 0), ('T', 0)])
    A("s_barrier")
    if not O.fullring: issueP(2, 0)
    for b in range(NB):
        needs = []
        if b + 1 < NB: needs = [('T', b+1), ('P', (b+1)//2)]
        if needs: wait_for(needs)
        A("s_barrier")
        if b + TLA < NB: issueT(b + TLA)
        if b == 0 and not O.fullring: issueP(2, 1)
        if b % 2 == 1:
            s = (b - 1)//2 + NPS
            if s < NB//2: issueP(s, 0)
        elif b >= 2:
            s = (b - 2)//2 + NPS
            if s < NB//2: issueP(s, 1)
        if O.pfg and b == O.pfg2: pf_group(A, 1); issued.append(('F', 1))
        if hooks and b in hooks: hooks[b](issued)
        W0 = max(14, 20 - TLA)
        if wsp and O.wsp_pf and W0 <= b < W0 + 4: k1_wsp_prefetch(A, b - W0); issued.append(('W', b))
    A("s_barrier")

def rot_stage(A, s, dst):
    A(f"s_add_u32 s{dst}, s28, {s}\ns_cmp_ge_u32 s{dst}, 10\ns_cselect_b32 s29, 10, 0\ns_sub_u32 s{dst}, s{dst}, s29")
def rot_beat(A, b, dst):
    A(f"s_lshl_b32 s{dst}, s28, 1\ns_add_u32 s{dst}, s{dst}, {b}\ns_cmp_ge_u32 s{dst}, 20\ns_cselect_b32 s29, 20, 0\ns_sub_u32 s{dst}, s{dst}, s29")

def k1_loader_z(A):
    G = k1_geom('z'); pitchW = G['pitchW']; PSLOT = G['PSLOT']; TSLOT = G['TSLOT']; TBASE = G['TBASE']
    lw = 21
    A(f"s_sub_u32 s{lw}, s16, 4")
    A("v_lshrrev_b32 v7, 3, v0\nv_and_b32 v2, 7, v0\nv_xor_b32 v2, v2, v7\nv_mul_u32_u24 v7, 1280, v7\nv_lshl_add_u32 v2, v2, 4, v7")
    A("v_lshrrev_b32 v4, 4, v0")
    A(f"s_and_b32 s20, s{lw}, 1\ns_lshl_b32 s20, s20, 2")
    A("v_add_u32 v5, s20, v4\nv_lshlrev_b32 v5, 1, v5\nv_and_b32 v6, 15, v0\nv_xor_b32 v6, v6, v5")
    A(f"v_mul_u32_u24 v4, {pitchW}, v4\nv_lshl_add_u32 v3, v6, 4, v4")
    A(f"v_cmp_le_u32 vcc, 12, v6\nv_mov_b32 v5, {KILL}\nv_cndmask_b32 v3, v3, v5, vcc")
    nP = 2; half_rows = 64
    A(f"s_mul_i32 s20, s{lw}, {nP*8*1280}\ns_add_u32 s22, s17, s20")
    A(f"s_mul_i32 s23, s{lw}, {nP*1024}")
    A(f"s_mul_i32 s20, s{lw}, {8*pitchW}\ns_add_u32 s24, s18, s20\ns_add_u32 s25, s19, s20")
    A(f"s_lshl_b32 s26, s{lw}, 11\ns_add_u32 s26, s26, {TBASE}")
    issued = []
    def issueP(s, h2):
        slot = s % 3
        rot_stage(A, s, 27)
        A("s_lshl_b32 s27, s27, 7\ns_add_u32 s27, s27, s22")
        A(f"s_add_u32 m0, s23, {slot*PSLOT + h2*half_rows*128}")
        for i in range(nP):
            A(f"s_add_u32 s20, s27, {h2*half_rows*1280 + i*(8*1280 - 1024)}")
            A(f"buffer_load_dwordx4 v2, s[4:7], s20 offen offset:{i*1024} lds")
            issued.append(('P', s))
    def issueT(b):
        slot = b % 6
        rot_beat(A, b, 27)
        A(f"s_mul_i32 s27, s27, {32*pitchW}")
        for u, sb in enumerate([24, 25]):
            A(f"s_add_u32 m0, s26, {slot*TSLOT + u*8192}")
            A(f"s_add_u32 s29, s27, s{sb}")
            for i in range(2):
                A(f"s_add_u32 s20, s29, {i*(4*pitchW - 1024)}")
                A(f"buffer_load_dwordx4 v3, s[8:11], s20 offen offset:{i*1024} lds")
                issued.append(('T', b))
    def gate_load(issued):
        srd(A, 12, 38, 640*2)
        A("v_lshlrev_b32 v10, 2, v0")
        for i in range(5): A(f"buffer_load_dword v{40+i}, v10, s[12:15], 0 offen offset:{256*i}")
        A("s_lshl_b32 s58, s48, 7\ns_lshl_b32 s59, s49, 4\ns_add_u32 s58, s58, s59\ns_lshl_b32 s59, s21, 2\ns_add_u32 s58, s58, s59")
        A("s_mul_i32 s59, s58, 1280")
        for r in range(4):
            A(f"s_add_u32 s57, s59, {r*1280}")
            for i in range(5): A(f"buffer_load_dword v{48+5*r+i}, v10, s[4:7], s57 offen offset:{256*i}")
        issued.extend([('G', 0)]*25)
    def gate_finish(issued):
        last = max(i for i, t in enumerate(issued) if t == ('G', 0))
        A(f"s_waitcnt vmcnt({len(issued) - 1 - last})")
        for r in range(4):
            A(f"v_mov_b32 v{70+r}, 0")
            for i in range(5): A(f"v_dot2_f32_bf16 v{70+r}, v{48+5*r+i}, v{40+i}, v{70+r}")
        for ctl in ("row_shr:1 row_mask:0xf bank_mask:0xf bound_ctrl:0", "row_shr:2 row_mask:0xf bank_mask:0xf bound_ctrl:0", "row_shr:4 row_mask:0xf bank_mask:0xf bound_ctrl:0",
                    "row_shr:8 row_mask:0xf bank_mask:0xf bound_ctrl:0", "row_bcast:15 row_mask:0xa bank_mask:0xf", "row_bcast:31 row_mask:0xc bank_mask:0xf"):
            for r in range(4): A(f"v_add_f32_dpp v{70+r}, v{70+r}, v{70+r} {ctl}")
        for r in range(4): A(f"v_mul_f32 v{70+r}, {f2u(-1.4426950408889634)}, v{70+r}")
        for r in range(4): A(f"v_exp_f32 v{70+r}, v{70+r}")
        for r in range(4): A(f"v_add_f32 v{70+r}, 1.0, v{70+r}")
        for r in range(4): A(f"v_rcp_f32 v{70+r}, v{70+r}")
        srd(A, 12, 32, SZ_G, WS_G)
        A("s_lshl_b32 s58, s58, 2\nv_mov_b32 v10, 0")
        A("s_mov_b32 s42, 0\ns_mov_b32 s43, 0x80000000\ns_mov_b64 exec, s[42:43]")
        for r in range(4): A(f"buffer_store_dword v{70+r}, v10, s[12:15], s58 offen offset:{4*r}")
        A("s_mov_b64 exec, -1")
        issued.extend([('S', 0)]*4)
    def oldtags(issued):
        z_oldtags(A, 42); issued.extend([('O', 0)]*1)
    def pack_loads(issued):
        k1_pack_load(A); issued.extend([('K', 0)]*6)
    run_loader_schedule(A, issueP, issueT, issued, {7: oldtags})

def k1_loader_q(A, last):
    G = k1_geom('q'); PSLOT = G['PSLOT']; TSLOT = G['TSLOT']; TBASE = G['TBASE']
    nP = 3 if last else 2
    nTi = 3 if last else 4
    A("s_sub_u32 s21, s16, 4")
    A("v_lshrrev_b32 v7, 3, v0\nv_and_b32 v6, 7, v0\nv_xor_b32 v6, v6, v7")
    A("s_lshl_b32 s20, s48, 7\ns_sub_u32 s20, s20, 16\ns_lshl_b32 s22, s21, 4\ns_add_u32 s20, s20, s22")
    A("v_add_u32 v7, s20, v7")
    A("v_mov_b32 v12, v7")
    A("s_mov_b32 s20, 1280\nv_mul_lo_u32 v7, v7, s20\nv_lshl_add_u32 v2, v6, 4, v7")
    for h2 in range(2):
        for i in range(nP):
            if h2 == 0 and i == 0: continue
            A(f"v_add_u32 v{2 + h2*3 + i}, {(72*h2 + 8*i)*1280}, v2")
    A(f"v_mov_b32 v13, {KILL}")
    for i in range(2):
        A(f"v_add_u32 v14, {8*i}, v12\nv_cmp_gt_i32 vcc, 0, v14\nv_cndmask_b32 v{2+i}, v{2+i}, v13, vcc")
    A("s_lshl_b32 s20, s21, 8")
    for i in range(nTi):
        d = 8 + i
        A(f"v_add_u32 v12, s20, v0\nv_add_u32 v12, {64*i}, v12")
        A("v_mul_u32_u24 v13, 2185, v12\nv_lshrrev_b32 v13, 16, v13")
        A("v_mul_u32_u24 v14, 30, v13\nv_sub_u32 v14, v12, v14")
        A("v_and_b32 v15, 0x13, v13\nv_and_b32 v16, 4, v13\nv_lshl_or_b32 v15, v16, 1, v15\nv_and_b32 v16, 8, v13\nv_lshrrev_b32 v16, 1, v16\nv_or_b32 v15, v15, v16")
        A("v_mul_u32_u24 v16, 205, v14\nv_lshrrev_b32 v16, 11, v16")
        A("v_mul_u32_u24 v17, 10, v16\nv_sub_u32 v14, v14, v17")
        A("v_mul_u32_u24 v15, 3840, v15\nv_mul_u32_u24 v16, 1280, v16\nv_lshlrev_b32 v14, 4, v14")
        A(f"v_add3_u32 v{d}, v15, v16, v14")
    A("s_mul_i32 s24, s49, 160")
    A("s_lshl_b32 s23, s21, 11")
    A(f"s_lshl_b32 s26, s21, 12\ns_add_u32 s26, s26, {TBASE}")
    issued = []
    def issueP(s, h2):
        slot = s % 3
        rot_stage(A, s, 27)
        A("s_lshl_b32 s27, s27, 7")
        A(f"s_add_u32 m0, s23, {slot*PSLOT + h2*72*128}")
        for i in range(nP):
            if i: A("s_add_u32 m0, m0, 1024\ns_nop 0")
            A(f"buffer_load_dwordx4 v{2 + h2*3 + i}, s[4:7], s27 offen lds")
            issued.append(('P', s))
    def issueT(b):
        slot = b % 6
        rot_beat(A, b, 27)
        A(f"s_mul_i32 s27, s27, {32*3840}\ns_add_u32 s27, s27, s24")
        A(f"s_add_u32 m0, s26, {slot*TSLOT}")
        for i in range(nTi):
            if i: A("s_add_u32 m0, m0, 1024\ns_nop 0")
            A(f"buffer_load_dwordx4 v{8 + i}, s[8:11], s27 offen lds")
            issued.append(('T', b))
    run_loader_schedule(A, issueP, issueT, issued, None, True)


OT = 212
def z_oldtags(A, r32_sreg):
    srd(A, 12, 32, SZ_EP, WS_EP)
    A(f"s_lshl_b32 s40, s48, 7\nv_mov_b32 v221, s40")
    A(f"buffer_load_dwordx2 v[{OT}:{OT+1}], v221, s[12:15], 0 offen sc1")
def z_r32(A, dst):
    A(f"s_and_b32 s{dst}, s16, 1\ns_lshl_b32 s{dst}, s{dst}, 1\ns_lshr_b32 s41, s16, 2\ns_add_u32 s{dst}, s{dst}, s41")


def z_gate_load(A):
    srd(A, 4, 30, 2048*640*2); srd(A, 12, 38, 640*2)
    A("s_lshl_b32 s60, s48, 7\ns_lshl_b32 s61, s49, 4\ns_add_u32 s60, s60, s61\ns_lshl_b32 s61, s16, 2\ns_add_u32 s60, s60, s61") if False else None
    A("s_lshl_b32 s46, s48, 7\ns_lshl_b32 s47, s49, 4\ns_add_u32 s46, s46, s47\ns_lshl_b32 s47, s16, 2\ns_add_u32 s46, s46, s47")
    A(f"v_lshlrev_b32 v146, 4, v0\nv_add_u32 v147, 1024, v146\nv_mov_b32 v148, {KILL}\nv_cmp_le_u32 vcc, 16, v0\nv_cndmask_b32 v147, v147, v148, vcc")
    A("buffer_load_dwordx4 v[184:187], v146, s[12:15], 0 offen\nbuffer_load_dwordx4 v[188:191], v147, s[12:15], 0 offen")
    A("s_mul_i32 s47, s46, 1280")
    for r in range(4):
        A(f"s_add_u32 s45, s47, {r*1280}")
        A(f"buffer_load_dwordx4 v[{152+8*r}:{155+8*r}], v146, s[4:7], s45 offen\nbuffer_load_dwordx4 v[{156+8*r}:{159+8*r}], v147, s[4:7], s45 offen")
def z_gate_finish(A):
    for r in range(4):
        A(f"v_mov_b32 v{192+r}, 0")
        for q in range(4): A(f"v_dot2_f32_bf16 v{192+r}, v{152+8*r+q}, v{184+q}, v{192+r}")
        for q in range(4): A(f"v_dot2_f32_bf16 v{192+r}, v{156+8*r+q}, v{188+q}, v{192+r}")
    for ctl in ("row_shr:1 row_mask:0xf bank_mask:0xf bound_ctrl:0", "row_shr:2 row_mask:0xf bank_mask:0xf bound_ctrl:0", "row_shr:4 row_mask:0xf bank_mask:0xf bound_ctrl:0",
                "row_shr:8 row_mask:0xf bank_mask:0xf bound_ctrl:0", "row_bcast:15 row_mask:0xa bank_mask:0xf", "row_bcast:31 row_mask:0xc bank_mask:0xf"):
        for r in range(4): A(f"v_add_f32_dpp v{192+r}, v{192+r}, v{192+r} {ctl}")
    for r in range(4): A(f"v_mul_f32 v{192+r}, {f2u(-1.4426950408889634)}, v{192+r}")
    for r in range(4): A(f"v_exp_f32 v{192+r}, v{192+r}")
    for r in range(4): A(f"v_add_f32 v{192+r}, 1.0, v{192+r}")
    for r in range(4): A(f"v_rcp_f32 v{192+r}, v{192+r}")
    srd(A, 4, 32, SZ_G, WS_G)
    A("s_lshl_b32 s46, s46, 2\nv_mov_b32 v146, 0")
    A("s_mov_b32 s42, 0\ns_mov_b32 s43, 0x80000000\ns_mov_b64 exec, s[42:43]")
    for r in range(4): A(f"buffer_store_dword v{192+r}, v146, s[4:7], s46 offen offset:{4*r}")
    A("s_mov_b64 exec, -1")

def k1_pack_load(A):
    T = 150
    c, cc, t2, p_, k_, x_ = T+2, T+3, T+4, T+5, T+6, T+7
    A("s_sub_u32 s40, s16, 4\ns_lshl_b32 s40, s40, 6")
    A(f"v_add_u32 v{c}, s40, v0\nv_and_b32 v{cc}, 127, v{c}\nv_lshrrev_b32 v{t2}, 7, v{c}\nv_lshrrev_b32 v{p_}, 1, v{cc}")
    A(f"v_and_b32 v{k_}, 0x33, v{p_}\nv_and_b32 v{x_}, 4, v{p_}\nv_lshl_or_b32 v{k_}, v{x_}, 1, v{k_}")
    A(f"v_and_b32 v{x_}, 8, v{p_}\nv_lshrrev_b32 v{x_}, 1, v{x_}\nv_or_b32 v{k_}, v{k_}, v{x_}")
    A(f"v_mul_u32_u24 v{k_}, 1280, v{k_}\nv_and_b32 v{x_}, 1, v{cc}\nv_lshl_add_u32 v{k_}, v{x_}, 4, v{k_}\nv_lshl_add_u32 v{k_}, v{t2}, 5, v{k_}")
    A(f"v_lshlrev_b32 v252, 4, v{cc}\nv_lshl_add_u32 v252, v{t2}, 11, v252")
    A(f"v_mov_b32 v{x_}, {KILL}\nv_cmp_eq_u32 vcc, 1, v{t2}\nv_cndmask_b32 v253, v252, v{x_}, vcc\nv_cndmask_b32 v{p_}, v{k_}, v{x_}, vcc")
    A("s_lshl_b32 s54, s48, 3\ns_add_u32 s54, s54, s49")
    for u, D in ((0, 224), (1, 236)):
        A(f"s_add_u32 s55, s54, {128*u}")
        A(f"s_mul_hi_u32 s41, s55, {(2**32 + 21)//22}\ns_mul_i32 s42, s41, 22\ns_sub_u32 s42, s55, s42")
        A("s_cmp_lt_u32 s42, 10\ns_cselect_b32 s12, s44, s46\ns_cselect_b32 s13, s45, s47")
        A(f"s_mov_b32 s14, {768*640*2}\ns_cselect_b32 s14, {640*640*2}, s14\ns_mov_b32 s15, 0x20000")
        A("s_cselect_b32 s43, 0, 10\ns_sub_u32 s43, s42, s43")
        A(f"s_mul_i32 s43, s43, {64*1280}\ns_mul_i32 s40, s41, 160\ns_add_u32 s43, s43, s40")
        A(f"s_cmp_ge_u32 s55, 176\ns_cselect_b32 s40, {KILL}, 0\ns_add_u32 s43, s43, s40")
        A(f"buffer_load_dwordx4 v[{D}:{D+3}], v{k_}, s[12:15], s43 offen")
        A(f"buffer_load_dwordx4 v[{D+4}:{D+7}], v{k_}, s[12:15], s43 offen offset:64")
        A(f"buffer_load_dwordx4 v[{D+8}:{D+11}], v{p_}, s[12:15], s43 offen offset:128")

def k1_pack_store(A):
    srd(A, 12, 32, SZ_WP, WS_WP)
    for u, D in ((0, 224), (1, 236)):
        A(f"s_add_u32 s55, s54, {128*u}")
        A(f"s_mul_i32 s41, s55, {5*2048}\ns_cmp_ge_u32 s55, 176\ns_cselect_b32 s42, {KILL}, 0\ns_add_u32 s41, s41, s42")
        A("s_add_u32 s42, s41, 4096\ns_add_u32 s43, s41, 8192")
        A(f"buffer_store_dwordx4 v[{D}:{D+3}], v252, s[12:15], s41 offen")
        A(f"buffer_store_dwordx4 v[{D+4}:{D+7}], v252, s[12:15], s42 offen")
        A(f"buffer_store_dwordx4 v[{D+8}:{D+11}], v253, s[12:15], s43 offen")

def k1_compute_z(A, st):
    G = k1_geom('z'); PSLOT = G['PSLOT']; NPS = 3; TSLOT = G['TSLOT']; R = 6; TBASE = G['TBASE']
    mP = 4; nT = 6; nA = 3
    bP = 2; bT = 6
    F = [16, 16 + 4*(mP+nT)]
    ACC = 16 + 8*(mP+nT)
    A(f"s_and_b32 s20, s16, 1\ns_lshr_b32 s21, s16, 1\ns_mul_i32 s21, s21, {nA}")
    A("v_and_b32 v14, 15, v0\nv_lshrrev_b32 v15, 4, v0\nv_and_b32 v6, 7, v14\nv_xor_b32 v6, v15, v6\nv_lshlrev_b32 v14, 7, v14\nv_lshl_add_u32 v14, v6, 4, v14")
    A(f"s_mul_i32 s22, s20, {mP*2048}")
    A(f"v_add_u32 v{bP}, s22, v14\nv_xor_b32 v{bP+1}, 64, v{bP}")
    A("v_lshrrev_b32 v14, 2, v0\nv_and_b32 v14, 3, v14\nv_lshl_add_u32 v13, v15, 3, v14\nv_lshlrev_b32 v13, 8, v13")
    A("v_and_b32 v12, 3, v0\nv_lshl_add_u32 v13, v12, 3, v13\nv_and_b32 v12, 1, v15\nv_lshl_add_u32 v14, v12, 2, v14")
    A(f"v_add_u32 v15, {TBASE}, v13")
    for tl in range(nA):
        A(f"s_add_u32 s23, s21, {tl}\nv_xor_b32 v13, s23, v14\nv_lshl_add_u32 v{bT+tl}, v13, 5, v15")
    for tl in range(nA): A(f"v_add_u32 v{bT+nA+tl}, 0x10000, v{bT+tl}")
    for i in range(ACC, ACC + 4*mP*nT): A(f"v_mov_b32 v{i}, 0")
    def fP(s, m): return F[s] + 4*m
    def fT(s, t): return F[s] + 4*(mP + t)
    def acc(m, t): return ACC + 4*(m*nT + t)
    def reads(b):
        s = b & 1; kk = b & 1; ps = (b//2) % NPS; ts = b % R
        r = []
        for m in range(mP):
            f = fP(s, m); off = ps*PSLOT + m*2048
            r.append(f"ds_read_b128 v[{f}:{f+3}], v{bP + kk} offset:{off}")
        for t in range(nT):
            f = fT(s, t); tl = t % nA; u = t // nA
            for h in range(2):
                off = ts*TSLOT + u*8192 + h*1024; hi = off >> 16
                r.append(f"ds_read_b64_tr_b16 v[{f+2*h}:{f+2*h+1}], v{bT + tl + nA*hi} offset:{off & 0xffff}")
        return r
    A("s_barrier")
    for x in reads(0): A(x)
    A("s_waitcnt lgkmcnt(0)")
    st()
    A("s_barrier")
    TAILM = 6
    def beat(b, last=False):
        s = b & 1
        mf = [f"v_mfma_f32_16x16x32_bf16 v[{acc(m,t)}:{acc(m,t)+3}], v[{fT(s,t)}:{fT(s,t)+3}], v[{fP(s,m)}:{fP(s,m)+3}], v[{acc(m,t)}:{acc(m,t)+3}]" for m in range(mP) for t in range(nT)]
        rd = [] if last else reads(b + 1)
        nfront = len(mf) - TAILM
        for i, x in enumerate(mf):
            A(x)
            if rd: A(rd.pop(0))
            if i == nfront - 1:
                assert not rd
                A("s_waitcnt lgkmcnt(0)\ns_barrier")
    L = "K1z_cloop"
    A("s_mov_b32 s26, 0")
    A.label(L)
    A("s_cmp_eq_u32 s26, 0\ns_cbranch_scc1 K1_z_it")
    A("s_cmp_eq_u32 s26, 2\ns_cbranch_scc1 K1_z_it2")
    z_oldtags(A, 42)
    A("s_branch K1_z_it")
    A.label("K1_z_it2")
    A("s_waitcnt vmcnt(0)")
    A.label("K1_z_it")
    it_top(A)
    for b in range(6): beat(b)
    A(f"s_add_u32 s26, s26, 1\ns_cmp_lt_u32 s26, 3\ns_cbranch_scc1 {L}")
    it_mid(A)
    A("s_cmp_lg_u32 s16, 0\ns_cbranch_scc1 K1_z_noreg")
    srd(A, 12, 50, 256)
    A("s_lshl_b32 s22, s48, 4\nv_mov_b32 v14, s22\nv_mov_b32 v15, 1")
    A("s_mov_b64 exec, 1")
    A("buffer_atomic_add v15, v14, s[12:15], 0 offen sc1")
    A("s_mov_b64 exec, -1")
    A.label("K1_z_noreg")
    beat(18); beat(19, last=True)
    it_end(A, 14, 15)
    return acc

def k1_compute_q(A, wm, wn, st):
    G = k1_geom('q'); PSLOT = G['PSLOT']; TSLOT = G['TSLOT']; TBASE = G['TBASE']
    tiles = list(range(0, 8)) if wn == 0 else list(range(8, 15))
    halo = {(0, 0): [5, 6], (1, 0): [7], (0, 1): [8, 9, 10, 11], (1, 1): [12, 13, 14]}[(wm, wn)]
    nT = len(tiles); mP = 5
    F = [16, 16 + 4*(5 + 8)]
    ACC = 16 + 8*(5 + 8)
    A("v_and_b32 v14, 15, v0\nv_lshrrev_b32 v15, 4, v0\nv_and_b32 v6, 7, v14\nv_xor_b32 v6, v15, v6\nv_lshlrev_b32 v14, 7, v14\nv_lshl_add_u32 v2, v6, 4, v14")
    A("v_xor_b32 v3, 64, v2")
    A("v_lshrrev_b32 v6, 1, v15\nv_lshlrev_b32 v6, 4, v6\nv_and_b32 v7, 1, v15\nv_lshl_add_u32 v6, v7, 2, v6")
    A("v_lshrrev_b32 v7, 2, v0\nv_and_b32 v7, 3, v7\nv_add_u32 v6, v6, v7\nv_mul_u32_u24 v6, 480, v6\nv_and_b32 v7, 3, v0\nv_lshl_add_u32 v6, v7, 3, v6")
    A(f"v_add_u32 v4, {TBASE}, v6\nv_add_u32 v5, {TBASE + 3*TSLOT}, v6")
    accs = {}
    n = ACC
    for m in range(4):
        for t in tiles: accs[(m, t)] = n; n += 4
    for t in halo: accs[('h', t)] = n; n += 4
    assert n <= 256, n
    for i in range(ACC, n): A(f"v_mov_b32 v{i}, 0")
    def fP(s, m): return F[s] + 4*m
    def fT(s, t): return F[s] + 4*(5 + tiles.index(t))
    def reads(b):
        s = b & 1; kk = b & 1; ps = (b//2) % 3; ts = b % 6
        r = []
        for m in range(4):
            f = fP(s, m); r.append(f"ds_read_b128 v[{f}:{f+3}], v{2+kk} offset:{ps*PSLOT + (16 + 64*wm + 16*m)*128}")
        f = fP(s, 4); r.append(f"ds_read_b128 v[{f}:{f+3}], v{2+kk} offset:{ps*PSLOT}")
        for t in tiles:
            f = fT(s, t)
            for h in range(2):
                hi = 1 if ts >= 3 else 0
                r.append(f"ds_read_b64_tr_b16 v[{f+2*h}:{f+2*h+1}], v{4+hi} offset:{(ts - 3*hi)*TSLOT + h*8*480 + t*32}")
        return r
    A("s_barrier")
    for x in reads(0): A(x)
    A("s_waitcnt lgkmcnt(0)")
    st()
    A("s_barrier")
    def beat(b, last=False):
        s = b & 1
        mf = []
        for m in range(4):
            for t in tiles:
                a_ = accs[(m, t)]; mf.append(f"v_mfma_f32_16x16x32_bf16 v[{a_}:{a_+3}], v[{fT(s,t)}:{fT(s,t)+3}], v[{fP(s,m)}:{fP(s,m)+3}], v[{a_}:{a_+3}]")
        for t in halo:
            a_ = accs[('h', t)]; mf.append(f"v_mfma_f32_16x16x32_bf16 v[{a_}:{a_+3}], v[{fT(s,t)}:{fT(s,t)+3}], v[{fP(s,4)}:{fP(s,4)+3}], v[{a_}:{a_+3}]")
        rd = [] if last else reads(b + 1)
        nfront = len(mf) - 8
        for i, x in enumerate(mf):
            A(x)
            if rd: A(rd.pop(0))
            if i == nfront - 1:
                assert not rd, (len(rd), nfront)
                A("s_waitcnt lgkmcnt(0)\ns_barrier")
    L = f"K1q{wm}{wn}_cloop"
    A("s_mov_b32 s26, 0")
    A.label(L)
    it_top(A)
    for b in range(6):
        if O.itstamp: A(f"s_memtime s[76:77]\ns_waitcnt lgkmcnt(0)\ns_cmp_eq_u32 s26, 0\ns_cselect_b32 s{85+b}, s76, s{85+b}")
        beat(b)
    A(f"s_add_u32 s26, s26, 1\ns_cmp_lt_u32 s26, 3\ns_cbranch_scc1 {L}")
    it_mid(A)
    beat(18); beat(19, last=True)
    it_end(A, 14, 15)
    st()
    A(f"v_and_b32 v6, 15, v0\nv_mul_u32_u24 v6, {QP}, v6\nv_lshrrev_b32 v7, 4, v0\nv_lshl_add_u32 v6, v7, 3, v6")
    k = 0
    items = list(accs.items())
    for (key, a_) in items:
        A(f"v_cvt_pk_bf16_f32 v{16+2*k}, v{a_}, v{a_+1}\nv_cvt_pk_bf16_f32 v{17+2*k}, v{a_+2}, v{a_+3}")
        k += 1
    A(f"v_add_u32 v7, 0x8000, v6")
    k = 0
    for (key, a_) in items:
        m, t = key
        row = 0 if m == 'h' else 16 + 64*wm + 16*m
        off = row*QP + t*32
        if off < 65536: A(f"ds_write_b64 v6, v[{16+2*k}:{17+2*k}] offset:{off}")
        else: A(f"ds_write_b64 v7, v[{16+2*k}:{17+2*k}] offset:{off - 0x8000}")
        k += 1

def rot_table(A):
    A(f"s_and_b32 s28, s28, 3\ns_lshl_b32 s28, s28, 2\ns_lshr_b32 s28, {O.rottab if O.rot else 0}, s28\ns_and_b32 s28, s28, 15")

def k1(A):
    name = "k1_kernel"
    kernel_begin(A, name)
    A("s_cmp_ge_u32 s2, 256\ns_cbranch_scc1 K1_end")
    load_ptr(A, 30, 'x'); load_ptr(A, 32, 'ws'); load_ptr(A, 34, 'wqkv'); load_ptr(A, 36, 'win')
    load_ptr(A, 38, 'gw'); load_ptr(A, 44, 'wo'); load_ptr(A, 46, 'wout'); load_ptr(A, 52, 'wsp'); load_ptr(A, 50, 'dbg')
    wave_lane(A, 16)
    hd_start(A)
    st = Stamps(A, 0); st()
    A("s_and_b32 s40, s2, 7\ns_lshr_b32 s41, s2, 3\ns_and_b32 s48, s40, 1\ns_lshl_b32 s48, s48, 3\ns_and_b32 s42, s41, 7\ns_add_u32 s48, s48, s42")
    A("s_lshr_b32 s49, s40, 1\ns_lshl_b32 s49, s49, 1\ns_lshr_b32 s43, s41, 3\ns_and_b32 s43, s43, 1\ns_add_u32 s49, s49, s43")
    A("s_lshl_b32 s28, s43, 1\ns_add_u32 s28, s28, s42")
    rot_table(A)
    A("s_cmp_lt_u32 s41, 16\ns_cbranch_scc1 K1_ztype")
    A("s_waitcnt lgkmcnt(0)")
    A("s_cmp_lt_u32 s16, 4\ns_cbranch_scc1 K1_qcomp")
    srd(A, 4, 30, 2048*640*2); srd(A, 8, 34, 640*1920*2)
    A("s_cmp_eq_u32 s16, 7\ns_cbranch_scc1 K1_qload3")
    k1_loader_q(A, False)
    A("s_branch K1_att")
    A.label("K1_qload3")
    k1_loader_q(A, True)
    A("s_branch K1_att")
    A.label("K1_qcomp")
    st()
    srd(A, 12, 32, SZ_FL, WS_FL)
    A("s_lshl_b32 s20, s48, 3\ns_add_u32 s20, s20, s49\ns_lshl_b32 s20, s20, 5\nv_lshlrev_b32 v14, 2, v0\nv_mov_b32 v15, 0")
    A("s_mov_b64 exec, 0xff")
    A("buffer_store_dword v15, v14, s[12:15], s20 offen")
    A("s_mov_b64 exec, -1")
    A("s_cmp_eq_u32 s16, 1\ns_cbranch_scc1 K1_q10\ns_cmp_eq_u32 s16, 2\ns_cbranch_scc1 K1_q01\ns_cmp_eq_u32 s16, 3\ns_cbranch_scc1 K1_q11")
    for (wm, wn) in ((0, 0), (1, 0), (0, 1), (1, 1)):
        if (wm, wn) != (0, 0): A.label(f"K1_q{wm}{wn}")
        stv = Stamps(A, 0, 2)
        k1_compute_q(A, wm, wn, stv)
        if (wm, wn) != (1, 1): A("s_branch K1_att")
    A.label("K1_att")
    st3 = Stamps(A, 0, 4)
    AV = 100
    A(f"s_and_b32 s46, s16, 3\ns_lshr_b32 s47, s16, 2\ns_mul_i32 s45, s46, 40\ns_mul_i32 s43, s47, {64*QP}\ns_add_u32 s45, s45, s43")
    A("s_or_b32 s43, s48, s47")
    attention_prep(A, AV, 45)
    T = 86
    A(f"s_lshl_b32 s20, s16, 6\nv_add_u32 v{T}, s20, v0")
    for i in range(3):
        c, r, q, la, ga = T+1, T+2, T+3, T+4+2*i, T+5+2*i
        A(f"v_add_u32 v{c}, {512*i}, v{T}")
        A(f"v_mul_u32_u24 v{r}, 6554, v{c}\nv_lshrrev_b32 v{r}, 16, v{r}")
        A(f"v_mul_u32_u24 v{q}, 10, v{r}\nv_sub_u32 v{q}, v{c}, v{q}")
        A(f"v_mul_u32_u24 v{la}, {QP}, v{r}\nv_lshl_add_u32 v{la}, v{q}, 4, v{la}\nv_add_u32 v{la}, {16*QP}, v{la}")
        A(f"s_lshl_b32 s20, s48, 7\nv_add_u32 v{ga}, s20, v{r}\nv_mul_u32_u24 v{ga}, 2816, v{ga}\nv_lshl_add_u32 v{ga}, v{q}, 4, v{ga}")
        A(f"s_mul_i32 s20, s49, 160\nv_add_u32 v{ga}, s20, v{ga}")
        if i == 2:
            A(f"v_mov_b32 v{q}, {KILL}\nv_cmp_le_u32 vcc, 1280, v{c}\nv_cndmask_b32 v{ga}, v{ga}, v{q}, vcc")
            A(f"v_mov_b32 v{q}, 0\nv_cndmask_b32 v{la}, v{la}, v{q}, vcc")
    srd(A, 12, 32, SZ_AU, WS_AU)
    A("s_waitcnt lgkmcnt(0)\ns_barrier")
    st3()
    attention_main(A, AV, 43)
    A("s_waitcnt lgkmcnt(0)\ns_barrier")
    st3()
    D = 16
    for i in range(3):
        A(f"ds_read_b64 v[{D+4*i}:{D+4*i+1}], v{T+4+2*i}\nds_read_b64 v[{D+4*i+2}:{D+4*i+3}], v{T+4+2*i} offset:8")
    A("s_waitcnt lgkmcnt(0)")
    for i in range(3): A(f"buffer_store_dwordx4 v[{D+4*i}:{D+4*i+3}], v{T+5+2*i}, s[12:15], 0 offen")
    if O.stamp:
        A("s_cmp_ge_u32 s16, 4\ns_cbranch_scc1 K1_end")
        A("s_waitcnt vmcnt(0)")
    st3(); st3.flush(16, 32)
    hd_end(A, 32, 1, 128, 60)
    A("s_branch K1_end")
    A.label("K1_ztype")
    A(f"s_mul_i32 s17, s48, {128*1280}")
    A("s_mul_i32 s19, s49, 192\ns_add_u32 s18, s19, 1536")
    A("s_waitcnt lgkmcnt(0)")
    A("s_cmp_lt_u32 s16, 4\ns_cbranch_scc1 K1_zcomp")
    srd(A, 4, 30, 2048*640*2); srd(A, 8, 36, 640*1536*2)
    k1_loader_z(A)
    ACCZ = 96
    A("s_barrier")
    A("s_sub_u32 s20, s16, 4\ns_mul_i32 s20, s20, 12288\nv_lshlrev_b32 v4, 4, v0\nv_add_u32 v4, s20, v4")
    for k in range(12): A(f"ds_read_b128 v[{ACCZ+4*k}:{ACCZ+4*k+3}], v4 offset:{k*1024}")
    A("s_waitcnt lgkmcnt(0)")
    A("s_branch K1_zepi")
    A.label("K1_zcomp")
    st2 = Stamps(A, 0, 1); st2()
    acc = k1_compute_z(A, st2)
    st2()
    assert acc(0, 0) == ACCZ
    A("s_mul_i32 s20, s16, 12288\nv_lshlrev_b32 v4, 4, v0\nv_add_u32 v4, s20, v4")
    for k in range(12): A(f"ds_write_b128 v4, v[{acc(2,0)+4*k}:{acc(2,0)+4*k+3}] offset:{k*1024}")
    A("s_waitcnt lgkmcnt(0)\ns_barrier")
    A.label("K1_zepi")
    A("s_and_b32 s20, s16, 1\ns_lshr_b32 s21, s16, 1\ns_and_b32 s21, s21, 1\ns_lshr_b32 s59, s16, 2")
    A("s_lshl_b32 s58, s20, 1\ns_add_u32 s58, s58, s59")
    A(f"s_mov_b32 s56, {f2u(C1)}\ns_mov_b32 s57, {f2u(C1)}")
    A(f"v_mov_b32 v6, {f2u(C0)}\nv_mov_b32 v7, {f2u(C0)}")
    z2 = [acc(m, t) + 2*q for m in range(2) for t in range(3) for q in range(2)]
    z1 = [acc(m, t) + 2*q for m in range(2) for t in range(3, 6) for q in range(2)]
    srd(A, 12, 50, 256)
    A("s_lshl_b32 s22, s48, 4\nv_mov_b32 v8, s22")
    A("buffer_load_dword v9, v8, s[12:15], 0 offen sc1")
    st2()
    gelu_pk(A, z2, 16, 56)
    A("s_waitcnt vmcnt(0)")
    st2()
    S = 70
    for m in range(2):
        vals = [acc(m, t) + r for t in range(3) for r in range(4)]
        A(f"v_pk_add_f32 v[{S+2*m}:{S+2*m+1}], v[{vals[0]}:{vals[1]}], v[{vals[2]}:{vals[3]}]")
        A(f"v_pk_mul_f32 v[{S+4+2*m}:{S+4+2*m+1}], v[{vals[0]}:{vals[1]}], v[{vals[0]}:{vals[1]}]")
        A(f"v_pk_fma_f32 v[{S+4+2*m}:{S+4+2*m+1}], v[{vals[2]}:{vals[3]}], v[{vals[2]}:{vals[3]}], v[{S+4+2*m}:{S+4+2*m+1}]")
        for q in range(2, 6):
            A(f"v_pk_add_f32 v[{S+2*m}:{S+2*m+1}], v[{S+2*m}:{S+2*m+1}], v[{vals[2*q]}:{vals[2*q+1]}]")
            A(f"v_pk_fma_f32 v[{S+4+2*m}:{S+4+2*m+1}], v[{vals[2*q]}:{vals[2*q+1]}], v[{vals[2*q]}:{vals[2*q+1]}], v[{S+4+2*m}:{S+4+2*m+1}]")
    for m in range(2):
        A(f"v_add_f32 v{S+2*m}, v{S+2*m}, v{S+2*m+1}\nv_add_f32 v{S+2*m+1}, v{S+4+2*m}, v{S+4+2*m+1}")
    for i in range(4): A(f"v_mov_b32 v{S+4+i}, v{S+i}")
    for i in range(4): A(f"v_permlane16_swap_b32 v{S+i}, v{S+4+i}")
    for i in range(4): A(f"v_add_f32 v{S+i}, v{S+i}, v{S+4+i}")
    for i in range(4): A(f"v_mov_b32 v{S+4+i}, v{S+i}")
    for i in range(4): A(f"v_permlane32_swap_b32 v{S+i}, v{S+4+i}")
    for i in range(4): A(f"v_add_f32 v{S+i}, v{S+i}, v{S+4+i}")
    A("v_lshrrev_b32 v3, 4, v0")
    A(f"v_and_b32 v5, 16, v0\nv_cmp_ne_u32 vcc, 0, v5\nv_cndmask_b32 v{S}, v{S}, v{S+2}, vcc\nv_cndmask_b32 v{S+1}, v{S+1}, v{S+3}, vcc")
    A("v_lshlrev_b32 v4, 3, v0\ns_lshl_b32 s22, s16, 9\ns_add_u32 s22, s22, 49152\nv_add_u32 v5, s22, v4")
    A(f"ds_write_b64 v5, v[{S}:{S+1}]")
    A("s_waitcnt lgkmcnt(0)\ns_barrier")
    A("v_xor_b32 v5, 1024, v5")
    A(f"ds_read_b64 v[{S+2}:{S+3}], v5")
    srd(A, 8, 32, SZ_ST, WS_ST)
    A("s_lshl_b32 s22, s49, 15\ns_lshl_b32 s23, s48, 11\ns_add_u32 s22, s22, s23\ns_lshl_b32 s23, s58, 9\ns_add_u32 s22, s22, s23")
    A("s_waitcnt lgkmcnt(0)")
    A(f"v_add_f32 v{S}, v{S}, v{S+2}\nv_add_f32 v{S+1}, v{S+1}, v{S+3}")
    st2()
    A("s_cmp_lg_u32 s21, 0\ns_cbranch_scc1 K1_z_nostat")
    A("s_mov_b32 s24, 0")
    A.label("K1_regpoll")
    A("v_readfirstlane_b32 s25, v9\ns_cmp_ge_u32 s25, 8\ns_cbranch_scc1 K1_regok")
    A("buffer_load_dword v9, v8, s[12:15], 0 offen sc1\ns_waitcnt vmcnt(0)")
    A("s_add_u32 s24, s24, 1\ns_cmp_lt_u32 s24, 0x40000\ns_cbranch_scc1 K1_regpoll")
    A.label("K1_regok")
    A(f"v_add_u32 v{S+2}, 1, v{OT}\nv_mov_b32 v{S+3}, v{OT+1}\nv_lshlrev_b32 v4, 4, v0")
    A("v_cmp_gt_u32 vcc, 32, v0\ns_and_saveexec_b64 s[24:25], vcc")
    A(f"buffer_store_dwordx4 v[{S}:{S+3}], v4, s[8:11], s22 offen sc1")
    A("s_mov_b64 exec, s[24:25]")
    A("s_or_b32 s22, s49, s16\ns_cmp_lg_u32 s22, 0\ns_cbranch_scc1 K1_z_nostat")
    srd(A, 4, 32, SZ_EP, WS_EP)
    A(f"s_lshl_b32 s22, s48, 7\nv_mov_b32 v4, s22\ns_mov_b64 exec, 1")
    A(f"buffer_store_dwordx2 v[{S+2}:{S+3}], v4, s[4:7], 0 offen sc1")
    A("s_mov_b64 exec, -1")
    A.label("K1_z_nostat")
    st2()
    A("s_cmp_ge_u32 s16, 4\ns_cbranch_scc1 K1_sj_pack")
    z_gate_load(A)
    A(f"v_mov_b32 v252, {KILL}\nv_mov_b32 v253, {KILL}\ns_mov_b32 s54, 0")
    A("s_branch K1_sj_done")
    A.label("K1_sj_pack")
    A("v_mov_b32 v146, 0")
    k1_pack_load(A)
    A.label("K1_sj_done")
    gelu_pk(A, z1, 16, 56)
    A("s_lshl_b32 s22, s48, 2\ns_add_u32 s22, s22, s58\ns_mul_i32 s22, s22, 48")
    A("s_mul_i32 s23, s49, 6\ns_add_u32 s22, s22, s23\ns_mul_i32 s23, s21, 3\ns_add_u32 s22, s22, s23\ns_lshl_b32 s26, s22, 10")
    A("v_lshlrev_b32 v11, 4, v0")
    Q = 200
    for t in range(3):
        d = Q + 4*t; a0 = acc(0, 3+t); a1 = acc(1, 3+t)
        A(f"v_cvt_pk_bf16_f32 v{d}, v{a0}, v{a0+1}\nv_cvt_pk_bf16_f32 v{d+1}, v{a0+2}, v{a0+3}\nv_cvt_pk_bf16_f32 v{d+2}, v{a1}, v{a1+1}\nv_cvt_pk_bf16_f32 v{d+3}, v{a1+2}, v{a1+3}")
    st2()
    A("s_lshl_b32 s22, s48, 11\ns_lshl_b32 s23, s58, 9\ns_add_u32 s22, s22, s23")
    A("v_and_b32 v4, 31, v0\nv_lshlrev_b32 v4, 4, v4")
    A(f"v_add_u32 v{OT}, 1, v{OT}")
    A("s_mov_b32 s24, 0")
    A.label("K1_poll")
    for jj in range(8):
        A(f"s_add_u32 s23, s22, {jj*32768}")
        A(f"buffer_load_dwordx4 v[{16+4*jj}:{19+4*jj}], v4, s[8:11], s23 offen sc1")
    A("s_waitcnt vmcnt(0)")
    A(f"v_xor_b32 v48, v18, v{OT}\nv_xor_b32 v49, v19, v{OT+1}\nv_or_b32 v48, v48, v49")
    for jj in range(1, 8): A(f"v_xor_b32 v49, v{18+4*jj}, v{OT}\nv_xor_b32 v50, v{19+4*jj}, v{OT+1}\nv_or3_b32 v48, v48, v49, v50")
    A("v_cmp_ne_u32 vcc, 0, v48")
    A("s_add_u32 s24, s24, 1\ns_nop 3")
    A("s_cbranch_vccz K1_polled")
    A(f"s_sleep {O.sleep}")
    A("s_cmp_lt_u32 s24, 0x10000\ns_cbranch_scc1 K1_poll")
    A.label("K1_polled")
    st2()
    srd(A, 4, 32, SZ_Z1, WS_Z1)
    for t in range(3): A(f"buffer_store_dwordx4 v[{Q+4*t}:{Q+4*t+3}], v11, s[4:7], s26 offen offset:{t*1024}")
    A("s_cmp_lt_u32 s16, 4\ns_cbranch_scc1 K1_nopack")
    k1_pack_store(A)
    A("s_branch K1_packed")
    A.label("K1_nopack")
    z_gate_finish(A)
    A.label("K1_packed")
    srd(A, 12, 32, SZ_Z2P, WS_Z2P)
    A("s_lshl_b32 s22, s49, 5\ns_lshl_b32 s23, s48, 1\ns_add_u32 s22, s22, s23\ns_add_u32 s22, s22, s20\ns_mul_i32 s22, s22, 6")
    A("s_mul_i32 s23, s21, 3\ns_add_u32 s22, s22, s23\ns_lshl_b32 s22, s22, 11\ns_lshl_b32 s23, s59, 10\ns_add_u32 s22, s22, s23")
    A("v_and_b32 v6, 15, v0\nv_and_b32 v7, 3, v6\nv_and_b32 v10, 4, v6\nv_lshl_or_b32 v7, v10, 1, v7\nv_and_b32 v10, 8, v6\nv_lshrrev_b32 v10, 1, v10\nv_or_b32 v7, v7, v10")
    A("v_and_b32 v10, 1, v3\nv_lshl_add_u32 v7, v10, 4, v7\nv_lshlrev_b32 v7, 5, v7\nv_lshrrev_b32 v10, 1, v3\nv_lshl_add_u32 v10, v10, 4, v7")
    for jj in range(1, 8): A(f"v_add_f32 v16, v16, v{16+4*jj}\nv_add_f32 v17, v17, v{17+4*jj}")
    A(f"v_mul_f32 v16, {f2u(1/768)}, v16\nv_mul_f32 v17, {f2u(1/768)}, v17")
    A("v_fma_f32 v17, -v16, v16, v17\nv_max_f32 v17, 0, v17")
    A(f"v_add_f32 v17, {f2u(1e-5)}, v17\nv_rsq_f32 v17, v17")
    A("v_mul_f32 v16, v16, v17\nv_sub_f32 v16, 0, v16")
    A("v_and_b32 v5, 15, v0\nv_lshlrev_b32 v5, 2, v5")
    for m in range(2):
        A(f"v_add_u32 v8, {64*m}, v5")
        A(f"ds_bpermute_b32 v{32+2*m}, v8, v17\nds_bpermute_b32 v{33+2*m}, v8, v16")
    A("s_waitcnt lgkmcnt(0)")
    PK = 44
    for m in range(2):
        for t in range(3):
            a_ = acc(m, t)
            for r in range(4): A(f"v_fma_f32 v{a_+r}, v{a_+r}, v{32+2*m}, v{33+2*m}")
    for t in range(3):
        d = PK + 4*t; a0 = acc(0, t); a1 = acc(1, t)
        A(f"v_cvt_pk_bf16_f32 v{d}, v{a0}, v{a0+1}\nv_cvt_pk_bf16_f32 v{d+1}, v{a0+2}, v{a0+3}\nv_cvt_pk_bf16_f32 v{d+2}, v{a1}, v{a1+1}\nv_cvt_pk_bf16_f32 v{d+3}, v{a1+2}, v{a1+3}")
    for t in range(3):
        d = PK + 4*t
        A(f"v_permlane16_swap_b32 v{d}, v{d+2}\nv_permlane16_swap_b32 v{d+1}, v{d+3}")
    for t in range(3):
        A(f"s_add_u32 s23, s22, {t*2048}")
        A(f"buffer_store_dwordx4 v[{PK+4*t}:{PK+4*t+3}], v10, s[12:15], s23 offen")
    if O.stamp:
        A("s_cmp_ge_u32 s16, 4\ns_cbranch_scc1 K1_end")
    st2(); st2.flush(16, 32)
    hd_end(A, 32, 0, 0, 60)
    A.label("K1_end")
    A("s_endpgm")
    return name, 256, 512, 147456, 256

SLOT = 20480
class E2:
    def __init__(self, A, pfx, NT, nsteps, pitchP, wave_m, wave_n, NS=6):
        self.A = A; self.pfx = pfx; self.NT = NT; self.n = nsteps; self.pitchP = pitchP
        self.mP = wave_m; self.nT = wave_n; self.NS = NS
        self.F = [8, 8 + 8*(wave_m + wave_n)]
        self.ACC = 8 + 16*(wave_m + wave_n)
        self.vend = self.ACC + 4*wave_m*wave_n
    def fP(self, s, kk, m): return self.F[s] + 4*(kk*(self.mP+self.nT) + m)
    def fT(self, s, kk, t): return self.F[s] + 4*(kk*(self.mP+self.nT) + self.mP + t)
    def acc(self, m, t): return self.ACC + 4*(m*self.nT + t)
    def loader_setup(self):
        A = self.A
        A("s_sub_u32 s21, s16, 4")
        A("v_lshrrev_b32 v7, 3, v0\nv_and_b32 v2, 7, v0\nv_xor_b32 v2, v2, v7")
        A(f"s_mov_b32 s20, {self.pitchP}\nv_mul_lo_u32 v7, v7, s20\nv_lshl_add_u32 v2, v2, 4, v7\nv_lshlrev_b32 v3, 4, v0")
        A(f"s_mul_i32 s20, s21, {16*self.pitchP}\ns_add_u32 s23, s17, s20")
        A("s_mul_i32 s20, s21, 3072\ns_add_u32 s24, s18, s20\ns_add_u32 s26, s20, 8192\ns_lshl_b32 s27, s21, 11")
        A("s_mov_b32 s28, 0\ns_mov_b32 s29, 0")
        if 2*self.NT < 12:
            A(f"s_mul_i32 s20, s21, 3\ns_cmp_ge_u32 s20, {2*self.NT - 1}\ns_cselect_b32 s28, {KILL}, 0\ns_cmp_ge_u32 s20, {2*self.NT - 2}\ns_cselect_b32 s29, {KILL}, 0")
        A("s_mov_b32 s22, 0")
    def issue(self):
        A = self.A
        A("s_add_u32 m0, s22, s27")
        A(f"s_add_u32 s20, s23, {8*self.pitchP - 1024}")
        A("buffer_load_dwordx4 v2, s[4:7], s23 offen lds")
        A("buffer_load_dwordx4 v2, s[4:7], s20 offen offset:1024 lds")
        A("s_add_u32 m0, s22, s26")
        if 2*self.NT < 12:
            A("s_add_u32 s25, s24, s28\ns_add_u32 s15, s24, s29")
            A("buffer_load_dwordx4 v3, s[8:11], s24 offen lds")
            A("buffer_load_dwordx4 v3, s[8:11], s25 offen offset:1024 lds")
            A("buffer_load_dwordx4 v3, s[8:11], s15 offen offset:2048 lds")
        else:
            A("buffer_load_dwordx4 v3, s[8:11], s24 offen lds")
            A("buffer_load_dwordx4 v3, s[8:11], s24 offen offset:1024 lds")
            A("buffer_load_dwordx4 v3, s[8:11], s24 offen offset:2048 lds")
        A(f"s_add_u32 s23, s23, 128\ns_add_u32 s24, s24, {self.NT*2048}")
        A(f"s_add_u32 s22, s22, {SLOT}\ns_cmp_eq_u32 s22, {self.NS*SLOT}\ns_cselect_b32 s22, 0, s22")
    def loader_main(self, pre_issued):
        A = self.A; NS = self.NS; n = self.n
        for i in range(pre_issued, NS - 1): self.issue()
        A(f"s_waitcnt vmcnt({(NS - 2)*5})")
        A("s_barrier")
        self.issue()
        L = self.pfx + "_lloop"
        A("s_mov_b32 s14, 0")
        A.label(L)
        A(f"s_waitcnt vmcnt({(NS-2)*5})\ns_barrier")
        self.issue()
        A(f"s_add_u32 s14, s14, 1\ns_cmp_lt_u32 s14, {n - NS}\ns_cbranch_scc1 {L}")
        for t in range(NS):
            i = n - NS + t
            rem = max(0, (n - 1) - (i + 1))
            A(f"s_waitcnt vmcnt({rem*5})\ns_barrier")
    def compute_setup(self, s_row, s_tile):
        A = self.A
        A("v_and_b32 v4, 15, v0\nv_lshrrev_b32 v5, 4, v0\nv_and_b32 v6, 7, v4\nv_xor_b32 v5, v5, v6\nv_lshlrev_b32 v4, 7, v4\nv_lshl_add_u32 v4, v5, 4, v4")
        A(f"s_lshl_b32 s20, s{s_row}, 7\nv_add_u32 v2, s20, v4\nv_xor_b32 v3, 64, v2")
        A("v_and_b32 v6, 15, v0\nv_lshlrev_b32 v6, 3, v6\nv_and_b32 v7, 16, v0\nv_lshl_add_u32 v6, v7, 3, v6\nv_and_b32 v7, 32, v0\nv_lshl_add_u32 v6, v7, 4, v6")
        A(f"s_lshl_b32 s20, s{s_tile}, 11\ns_add_u32 s20, s20, 8192\nv_add_u32 v4, s20, v6")
        A(f"v_add_u32 v5, {3*SLOT}, v2\nv_add_u32 v6, {3*SLOT}, v3\nv_add_u32 v7, {3*SLOT}, v4")
        for i in range(self.ACC, self.vend): A(f"v_mov_b32 v{i}, 0")
    def reads(self, step):
        s = step & 1; sl = step % self.NS; hi = 3 if sl >= 3 else 0; so = (sl - hi)*SLOT
        b = 3 if hi else 0
        r = []
        for kk in range(2):
            for m in range(self.mP):
                f = self.fP(s, kk, m); r.append(f"ds_read_b128 v[{f}:{f+3}], v{2+kk+b} offset:{so + m*2048}")
            for t in range(self.nT):
                f = self.fT(s, kk, t)
                for h in range(2): r.append(f"ds_read_b64_tr_b16 v[{f+2*h}:{f+2*h+1}], v{4+b} offset:{so + t*2048 + kk*1024 + h*256}")
        return r
    def step(self, i, last=False):
        A = self.A; s = i & 1
        rd = [] if last else self.reads(i + 1)
        mf = [f"v_mfma_f32_16x16x32_bf16 v[{self.acc(m,t)}:{self.acc(m,t)+3}], v[{self.fT(s,kk,t)}:{self.fT(s,kk,t)+3}], v[{self.fP(s,kk,m)}:{self.fP(s,kk,m)+3}], v[{self.acc(m,t)}:{self.acc(m,t)+3}]"
              for kk in range(2) for m in range(self.mP) for t in range(self.nT)]
        A("s_barrier")
        per = (len(rd) + len(mf) - 1)//len(mf) if rd else 0
        for x in mf:
            for _ in range(per):
                if rd: A(rd.pop(0))
            A(x)
        A("s_waitcnt lgkmcnt(0)")
    def compute(self, st, unroll=False, hooks=None):
        A = self.A; NS = self.NS; n = self.n
        assert NS % 2 == 0
        A("s_barrier")
        for x in self.reads(0): A(x)
        A("s_waitcnt lgkmcnt(0)")
        st()
        if unroll:
            for i in range(n):
                self.step(i, last=(i == n - 1))
                if hooks and i in hooks: hooks[i]()
            return
        nfull = (n - 1)//NS
        L = self.pfx + "_cloop"
        A("s_mov_b32 s19, 0")
        A.label(L)
        for i in range(NS): self.step(i)
        A(f"s_add_u32 s19, s19, 1\ns_cmp_lt_u32 s19, {nfull}\ns_cbranch_scc1 {L}")
        for i in range(nfull*NS, n): self.step(i, last=(i == n - 1))

def tile_map(A):
    A("s_and_b32 s42, s2, 7\ns_lshr_b32 s43, s2, 3\ns_lshr_b32 s40, s42, 1\ns_lshl_b32 s40, s40, 3\ns_and_b32 s44, s43, 7\ns_add_u32 s40, s40, s44")
    A("s_and_b32 s41, s42, 1\ns_lshl_b32 s41, s41, 2\ns_lshr_b32 s44, s43, 3\ns_add_u32 s41, s41, s44")

ATT_LDS = 6*SLOT
def attention_regs(V):
    R = dict(aQ=V+1, aK=V+2, aV=V+3, t0=V+4, t1=V+5, t2=V+6, M20=V+7, M21=V+8, N20=V+9, N21=V+10)
    S = (V + 12 + 3)//4*4
    R.update(S=S, QF=S+12, KF=S+22, VF=S+52, OO=(S+82+3)//4*4)
    return R
def attention_prep(A, V, s_off):
    R = attention_regs(V); aQ, aK, aV, t0, t1, t2 = R['aQ'], R['aK'], R['aV'], R['t0'], R['t1'], R['t2']
    M20, M21, N20, N21, S, OO = R['M20'], R['M21'], R['N20'], R['N21'], R['S'], R['OO']
    A(f"v_lshrrev_b32 v{t0}, 3, v0\nv_lshlrev_b32 v{t0}, 2, v{t0}\nv_and_b32 v{t1}, 3, v0\nv_add_u32 v{t0}, v{t0}, v{t1}")
    A(f"v_lshrrev_b32 v{t1}, 2, v0\nv_and_b32 v{t1}, 1, v{t1}\nv_lshl_add_u32 v{t0}, v{t0}, 1, v{t1}")
    A(f"v_mul_u32_u24 v{t0}, {QP}, v{t0}\nv_add_u32 v{aK}, s{s_off}, v{t0}\nv_add_u32 v{aQ}, {16*QP}, v{aK}")
    A(f"v_lshrrev_b32 v{t1}, 4, v0\nv_lshlrev_b32 v{t1}, 2, v{t1}\nv_and_b32 v{t2}, 3, v0\nv_add_u32 v{t1}, v{t1}, v{t2}")
    A(f"v_lshrrev_b32 v{t2}, 1, v{t1}\nv_lshlrev_b32 v{t2}, 2, v{t2}\nv_and_b32 v{t1}, 1, v{t1}")
    A(f"v_lshrrev_b32 v{aV}, 2, v0\nv_and_b32 v{aV}, 3, v{aV}\nv_add_u32 v{aV}, v{aV}, v{t2}\nv_lshl_add_u32 v{aV}, v{aV}, 1, v{t1}")
    A(f"v_mul_u32_u24 v{aV}, {QP}, v{aV}\nv_add_u32 v{aV}, s{s_off}, v{aV}")
    A(f"v_and_b32 v{t1}, 3, v0")
    A(f"v_mov_b32 v{M20}, 0xffff\nv_mov_b32 v{t2}, -1\nv_cmp_le_u32 vcc, 1, v{t1}\nv_cndmask_b32 v{M20}, v{M20}, v{t2}, vcc")
    A(f"v_mov_b32 v{M21}, 0\nv_mov_b32 v{t2}, 0xffff\nv_cmp_le_u32 vcc, 2, v{t1}\nv_cndmask_b32 v{M21}, v{M21}, v{t2}, vcc")
    A(f"v_mov_b32 v{t2}, -1\nv_cmp_eq_u32 vcc, 3, v{t1}\nv_cndmask_b32 v{M21}, v{M21}, v{t2}, vcc")
    A(f"v_not_b32 v{N20}, v{M20}\nv_not_b32 v{N21}, v{M21}")
    for i in range(12): A(f"v_mov_b32 v{S+i}, 0")
    for i in range(20): A(f"v_mov_b32 v{OO+i}, 0")
    A("s_mov_b32 s22, 0xeeeeeeee\ns_mov_b32 s23, 0xeeeeeeee\ns_mov_b32 s24, 0xcccccccc\ns_mov_b32 s25, 0xcccccccc\ns_mov_b32 s26, 0x88888888\ns_mov_b32 s27, 0x88888888")
def attention_main(A, V, s_bound):
    R = attention_regs(V); aQ, aK, aV, t0, t1, t2 = R['aQ'], R['aK'], R['aV'], R['t0'], R['t1'], R['t2']
    M20, M21, N20, N21, S, QF, KF, VF, OO = R['M20'], R['M21'], R['N20'], R['N21'], R['S'], R['QF'], R['KF'], R['VF'], R['OO']
    for dg in range(5):
        A(f"ds_read_b64 v[{QF+2*dg}:{QF+2*dg+1}], v{aQ} offset:{8*dg}")
        for c in range(3): A(f"ds_read_b64 v[{KF+2*(5*c+dg)}:{KF+2*(5*c+dg)+1}], v{aK} offset:{8*c*QP + 160 + 8*dg}")
    for dg in range(5):
        if dg == 0:
            A("s_waitcnt lgkmcnt(15)")
        rem = 20 - 4*(dg+1)
        A(f"s_waitcnt lgkmcnt({min(rem, 15)})")
        for c in range(3):
            A(f"v_mfma_f32_4x4x4_16b_bf16 v[{S+4*c}:{S+4*c+3}], v[{KF+2*(5*c+dg)}:{KF+2*(5*c+dg)+1}], v[{QF+2*dg}:{QF+2*dg+1}], v[{S+4*c}:{S+4*c+3}]")
    for c in range(3):
        for dg in range(5): A(f"ds_read_b64_tr_b16 v[{VF+2*(5*c+dg)}:{VF+2*(5*c+dg)+1}], v{aV} offset:{8*c*QP + 320 + 8*dg}")
    Lb = A.newlabel("att_nomask")
    A(f"s_cmp_lg_u32 s{s_bound}, 0\ns_cbranch_scc1 {Lb}")
    A(f"v_mov_b32 v{t2}, {f2u(-1e30)}")
    A("v_cmp_gt_u32 vcc, 16, v0")
    for i in range(4): A(f"v_cndmask_b32 v{S+i}, v{S+i}, v{t2}, vcc")
    A("v_cmp_gt_u32 vcc, 8, v0")
    for i in range(4): A(f"v_cndmask_b32 v{S+4+i}, v{S+4+i}, v{t2}, vcc")
    A("s_nop 4")
    A.label(Lb)
    A("s_nop 4")
    for i in range(1, 4): A(f"v_cndmask_b32 v{S+8+i}, v{S+i}, v{S+8+i}, s[{20+2*i}:{21+2*i}]")
    vals = [S+4+i for i in range(8)]
    A(f"v_max3_f32 v{t0}, v{vals[0]}, v{vals[1]}, v{vals[2]}\nv_max3_f32 v{t1}, v{vals[3]}, v{vals[4]}, v{vals[5]}\nv_max3_f32 v{t0}, v{t0}, v{vals[6]}, v{vals[7]}\nv_max_f32 v{t0}, v{t0}, v{t1}")
    SC = (20 ** -0.5) * 1.4426950408889634
    A(f"s_mov_b32 s20, {f2u(SC)}")
    A(f"v_mul_f32 v{t0}, s20, v{t0}")
    for x in vals: A(f"v_fma_f32 v{x}, v{x}, s20, -v{t0}")
    for x in vals: A(f"v_exp_f32 v{x}, v{x}")
    A(f"v_add_f32 v{t0}, v{vals[0]}, v{vals[1]}\nv_add_f32 v{t1}, v{vals[2]}, v{vals[3]}\nv_add_f32 v{t2}, v{vals[4]}, v{vals[5]}\nv_add_f32 v{t0}, v{t0}, v{t1}")
    A(f"v_add_f32 v{t1}, v{vals[6]}, v{vals[7]}\nv_add_f32 v{t0}, v{t0}, v{t2}\nv_add_f32 v{t0}, v{t0}, v{t1}")
    A(f"v_rcp_f32 v{t0}, v{t0}")
    for x in vals: A(f"v_mul_f32 v{x}, v{x}, v{t0}")
    PP = QF
    A(f"v_cvt_pk_bf16_f32 v{PP+2}, v{S+4}, v{S+5}\nv_cvt_pk_bf16_f32 v{PP+3}, v{S+6}, v{S+7}")
    A(f"v_cvt_pk_bf16_f32 v{t1}, v{S+8}, v{S+9}\nv_cvt_pk_bf16_f32 v{t2}, v{S+10}, v{S+11}")
    A(f"v_and_b32 v{PP+4}, v{t1}, v{M20}\nv_and_b32 v{PP+5}, v{t2}, v{M21}\nv_and_b32 v{PP}, v{t1}, v{N20}\nv_and_b32 v{PP+1}, v{t2}, v{N21}")
    A("s_waitcnt lgkmcnt(0)")
    for c in (1, 0, 2):
        for dg in range(5):
            A(f"v_mfma_f32_4x4x4_16b_bf16 v[{OO+4*dg}:{OO+4*dg+3}], v[{VF+2*(5*c+dg)}:{VF+2*(5*c+dg)+1}], v[{PP+2*c}:{PP+2*c+1}], v[{OO+4*dg}:{OO+4*dg+3}]")
    for dg in range(5):
        A(f"v_cvt_pk_bf16_f32 v{KF+2*dg}, v{OO+4*dg}, v{OO+4*dg+1}\nv_cvt_pk_bf16_f32 v{KF+2*dg+1}, v{OO+4*dg+2}, v{OO+4*dg+3}")
    for dg in range(5): A(f"ds_write_b64 v{aQ}, v[{KF+2*dg}:{KF+2*dg+1}] offset:{8*dg}")

def k3(A):
    name = "k3_kernel"
    kernel_begin(A, name)
    A("s_cmp_ge_u32 s2, 256\ns_cbranch_scc1 K3_end")
    load_ptr(A, 30, 'wsp'); load_ptr(A, 32, 'ws'); load_ptr(A, 34, 'bsp')
    wave_lane(A, 16)
    tile_map(A)
    st = Stamps(A, 2); st()
    E = E2(A, "K3", 6, 32, 4096, 2, 3)
    A(f"s_mul_i32 s17, s40, {64*4096}\ns_mul_i32 s18, s41, {32*6*2048}")
    A("s_waitcnt lgkmcnt(0)")
    A("s_cmp_lt_u32 s16, 4\ns_cbranch_scc1 K3_comp")
    srd(A, 4, 30, 2048*2048*2); srd(A, 8, 32, SZ_Z2P, WS_Z2P)
    E.loader_setup()
    E.loader_main(0)
    A("s_branch K3_end")
    A.label("K3_comp")
    A("s_and_b32 s46, s16, 1\ns_lshl_b32 s46, s46, 5\ns_lshr_b32 s47, s16, 1\ns_mul_i32 s47, s47, 3")
    PF = 116
    srd(A, 4, 32, SZ_Z1, WS_Z1); srd(A, 8, 32, SZ_G, WS_G); srd(A, 12, 34, 2048*2)
    A("s_lshl_b32 s43, s40, 6\ns_add_u32 s43, s43, s46")
    A("v_and_b32 v112, 15, v0\nv_add_u32 v112, s43, v112\nv_lshrrev_b32 v113, 4, v0")
    A("s_lshr_b32 s48, s43, 5\ns_mul_i32 s48, s48, 48\ns_mul_i32 s49, s41, 6\ns_add_u32 s48, s48, s49\ns_add_u32 s48, s48, s47\ns_lshl_b32 s48, s48, 10")
    A("v_lshlrev_b32 v114, 4, v0")
    for t in range(3): A(f"buffer_load_dwordx4 v[{PF+4*t}:{PF+4*t+3}], v114, s[4:7], s48 offen offset:{t*1024}")
    A("v_lshlrev_b32 v115, 2, v112")
    A(f"buffer_load_dword v{PF+12}, v115, s[8:11], 0 offen\nbuffer_load_dword v{PF+13}, v115, s[8:11], 0 offen offset:64")
    A("v_lshlrev_b32 v115, 1, v112")
    A(f"buffer_load_ushort v{PF+14}, v115, s[12:15], 0 offen\nbuffer_load_ushort v{PF+15}, v115, s[12:15], 0 offen offset:32")
    E.compute_setup(46, 47)
    st()
    E.compute(st)
    st()
    A("s_waitcnt vmcnt(0)")
    srd(A, 12, 32, SZ_AU, WS_AU)
    for m in range(2): A(f"v_lshlrev_b32 v{PF+14+m}, 16, v{PF+14+m}\nv_sub_f32 v{PF+12+m}, 1.0, v{PF+12+m}")
    T = 132
    for m in range(2):
        for t in range(3):
            ac = E.acc(m, t)
            for q in range(2):
                z = PF + 4*t + 2*m + q
                A(f"v_lshlrev_b32 v{T}, 16, v{z}\nv_and_b32 v{T+1}, 0xffff0000, v{z}")
                A(f"v_add_f32 v{T+2}, v{ac+2*q}, v{PF+14+m}\nv_add_f32 v{T+3}, v{ac+2*q+1}, v{PF+14+m}")
                A(f"v_mul_f32 v{T}, v{T}, v{PF+12+m}\nv_mul_f32 v{T+1}, v{T+1}, v{PF+12+m}")
                A(f"v_mul_f32 v{T+2}, v{T+2}, v{T}\nv_mul_f32 v{T+3}, v{T+3}, v{T+1}")
                A(f"v_cvt_pk_bf16_f32 v{z}, v{T+2}, v{T+3}")
    A("s_mov_b32 s45, 2816\nv_mul_lo_u32 v114, v112, s45\nv_lshl_add_u32 v114, v113, 3, v114")
    A("s_mul_i32 s48, s41, 192\ns_lshl_b32 s49, s47, 5\ns_add_u32 s48, s48, s49\ns_add_u32 s48, s48, 1280\nv_add_u32 v114, s48, v114")
    A(f"s_mov_b32 s49, {16*2816}")
    for m in range(2):
        for t in range(3):
            z = PF + 4*t + 2*m
            A(f"buffer_store_dwordx2 v[{z}:{z+1}], v114, s[12:15], {'s49' if m else '0'} offen offset:{t*32}")
    st(); st.flush(16, 32)
    A.label("K3_end")
    A("s_endpgm")
    return name, 256, 512, 6*SLOT, 140

def k4(A):
    name = "k4_kernel"
    kernel_begin(A, name)
    A("s_cmp_ge_u32 s2, 256\ns_cbranch_scc1 K4_end")
    load_ptr(A, 30, 'out'); load_ptr(A, 32, 'ws')
    wave_lane(A, 16)
    tile_map(A)
    st = Stamps(A, 3); st()
    E = E2(A, "K4", 5, 22, 2816, 1, 5)
    A(f"s_mul_i32 s17, s40, {64*2816}\ns_mul_i32 s18, s41, {22*5*2048}")
    A("s_waitcnt lgkmcnt(0)")
    A("s_cmp_lt_u32 s16, 4\ns_cbranch_scc1 K4_comp")
    srd(A, 4, 32, SZ_AU, WS_AU); srd(A, 8, 32, SZ_WP, WS_WP)
    E.loader_setup()
    E.loader_main(0)
    A("s_branch K4_end")
    A.label("K4_comp")
    A("s_lshl_b32 s46, s16, 4\ns_mov_b32 s47, 0")
    srd(A, 8, 32, SZ_G, WS_G)
    A("s_lshl_b32 s43, s40, 6\ns_add_u32 s43, s43, s46\nv_and_b32 v126, 15, v0\nv_add_u32 v126, s43, v126\nv_lshlrev_b32 v126, 2, v126")
    A("buffer_load_dword v125, v126, s[8:11], 0 offen")
    E.compute_setup(46, 47)
    st()
    def scale():
        A("s_waitcnt vmcnt(0)")
        for t in range(5):
            for r in range(4): A(f"v_mul_f32 v{E.acc(0,t)+r}, v{E.acc(0,t)+r}, v125")
    E.compute(st, unroll=True, hooks={9: scale})
    st()
    A("s_lshl_b32 s43, s40, 6\ns_add_u32 s43, s43, s46\nv_and_b32 v2, 15, v0\nv_add_u32 v2, s43, v2\nv_lshrrev_b32 v3, 4, v0")
    srd(A, 12, 30, 2048*640*2)
    PK = 8
    for t in range(5):
        ac = E.acc(0, t)
        A(f"v_cvt_pk_bf16_f32 v{PK+2*t}, v{ac}, v{ac+1}\nv_cvt_pk_bf16_f32 v{PK+2*t+1}, v{ac+2}, v{ac+3}")
    A("s_mov_b32 s45, 1280\nv_mul_lo_u32 v4, v2, s45\nv_lshl_add_u32 v4, v3, 3, v4\ns_mul_i32 s46, s41, 160\nv_add_u32 v4, s46, v4")
    for t in range(5): A(f"buffer_store_dwordx2 v[{PK+2*t}:{PK+2*t+1}], v4, s[12:15], 0 offen offset:{t*32}")
    st(); st.flush(16, 32)
    A.label("K4_end")
    A("s_endpgm")
    return name, 256, 512, 6*SLOT, 128

def k34(A):
    name = "k34_kernel"
    NS = 6; N1 = 32; N2 = 22; N = N1 + N2
    USTG = NS*SLOT
    LCNT = USTG + 64*208
    kernel_begin(A, name)
    A("s_cmp_ge_u32 s2, 256\ns_cbranch_scc1 K34_end")
    load_ptr(A, 30, 'wsp'); load_ptr(A, 32, 'ws'); load_ptr(A, 34, 'bsp'); load_ptr(A, 36, 'out'); load_ptr(A, 38, 'dbg')
    wave_lane(A, 16)
    tile_map(A)
    hd_start(A)
    st = Stamps(A, 2); st()
    E1 = E2(A, "K34a", 6, N1, 4096, 2, 3)
    A("s_waitcnt lgkmcnt(0)")
    A("s_cmp_lt_u32 s16, 4\ns_cbranch_scc1 K34_comp")
    srd(A, 4, 30, 2048*2048*2); srd(A, 8, 32, SZ_Z2P, WS_Z2P)
    A(f"s_mul_i32 s17, s40, {64*4096}\ns_mul_i32 s18, s41, {32*6*2048}")
    E1.loader_setup()
    A("v_lshrrev_b32 v7, 3, v0\nv_and_b32 v4, 7, v0\nv_xor_b32 v4, v4, v7\nv_mul_u32_u24 v7, 2816, v7\nv_lshl_add_u32 v4, v4, 4, v7")
    A("v_lshrrev_b32 v7, 3, v0\nv_and_b32 v5, 7, v0\nv_xor_b32 v5, v5, v7\nv_mul_u32_u24 v7, 384, v7\nv_lshl_add_u32 v10, v5, 4, v7")
    for i in range(NS - 1): E1.issue()
    A(f"s_waitcnt vmcnt({(NS - 2)*5})\ns_barrier")
    E1.issue()
    A("s_mov_b32 s14, 0")
    A.label("K34_lloop")
    A(f"s_waitcnt vmcnt({(NS-2)*5})\ns_barrier")
    E1.issue()
    A(f"s_add_u32 s14, s14, 1\ns_cmp_lt_u32 s14, {N1 - NS}\ns_cbranch_scc1 K34_lloop")
    srd(A, 4, 32, SZ_AU, WS_AU); srd(A, 8, 32, SZ_WP, WS_WP); srd(A, 12, 32, SZ_FL, WS_FL)
    A(f"s_mul_i32 s17, s40, {64*2816}\ns_mul_i32 s20, s21, {16*2816}\ns_add_u32 s23, s17, s20")
    A(f"s_mul_i32 s18, s41, {22*5*2048}\ns_mul_i32 s20, s21, 3072\ns_add_u32 s24, s18, s20")
    A(f"s_mul_i32 s20, s21, 3\ns_cmp_ge_u32 s20, 9\ns_cselect_b32 s28, {KILL}, 0\ns_cmp_ge_u32 s20, 8\ns_cselect_b32 s29, {KILL}, 0")
    A("s_lshl_b32 s44, s40, 7\nv_and_b32 v8, 7, v0\nv_lshlrev_b32 v8, 2, v8\nv_add_u32 v8, s44, v8")
    srd(A, 48, 32, SZ_U, WS_U)
    A(f"s_mul_i32 s52, s40, {4*24576}\ns_mul_i32 s20, s21, {16*384}\ns_add_u32 s52, s52, s20")
    issued = [('S', s) for s in range(N1 - NS + 2 - 1, N1) for _ in range(5)]
    def issueP(s):
        sl = s % NS; s2_ = s - N1
        fl = " sc1" if (s2_ >= 10 and O.usc1) else ""
        A(f"s_add_u32 m0, s27, {sl*SLOT}")
        if s2_ < 10:
            A(f"s_add_u32 s20, s23, {s2_*128}\ns_add_u32 s25, s23, {s2_*128 + 8*2816 - 1024}")
            A(f"buffer_load_dwordx4 v4, s[4:7], s20 offen lds")
            A(f"buffer_load_dwordx4 v4, s[4:7], s25 offen offset:1024 lds")
        else:
            a_, b_ = divmod(s2_ - 10, 3)
            A(f"s_add_u32 s20, s52, {a_*24576 + b_*128}\ns_add_u32 s25, s52, {a_*24576 + b_*128 + 8*384 - 1024}")
            A(f"buffer_load_dwordx4 v10, s[48:51], s20 offen{fl} lds")
            A(f"buffer_load_dwordx4 v10, s[48:51], s25 offen offset:1024{fl} lds")
        issued.extend([('P', s)]*2)
    def issueT(s):
        sl = s % NS; s2_ = s - N1
        A(f"s_add_u32 m0, s26, {sl*SLOT}")
        A(f"s_add_u32 s20, s24, {s2_*10240}\ns_add_u32 s25, s20, s28\ns_add_u32 s45, s20, s29")
        A("buffer_load_dwordx4 v3, s[8:11], s20 offen lds")
        A("buffer_load_dwordx4 v3, s[8:11], s25 offen offset:1024 lds")
        A("buffer_load_dwordx4 v3, s[8:11], s45 offen offset:2048 lds")
        issued.extend([('T', s)]*3)
    def wait_for(needs):
        last = -1
        for idx, tg in enumerate(issued):
            if tg in needs: last = idx
        if last < 0: return
        A(f"s_waitcnt vmcnt({min(len(issued) - 1 - last, 63)})")
    FIRSTU = N1 + 10
    POLL_I = O.poll_i
    deferred = []
    gate_open = False
    for i in range(N1 - NS, N):
        nxt = i + 1
        if nxt < N:
            wait_for([('S', nxt), ('P', nxt), ('T', nxt)])
        A("s_barrier")
        if i == POLL_I + 1:
            wait_for([('X', 0)])
            A("v_cmp_ne_u32 vcc, 1, v9\ns_nop 4")
            A("s_cbranch_vccz K34_ready")
            A("s_mov_b32 s47, 0")
            A.label("K34_poll")
            A(f"s_sleep {O.sleep}")
            A("buffer_load_dword v9, v8, s[12:15], 0 offen sc1")
            A("s_waitcnt vmcnt(0)")
            A("v_cmp_ne_u32 vcc, 1, v9")
            A("s_add_u32 s47, s47, 1\ns_nop 3")
            A("s_cbranch_vccz K34_ready")
            A("s_cmp_lt_u32 s47, 0x40000\ns_cbranch_scc1 K34_poll")
            A.label("K34_ready")
            gate_open = True
            for s in deferred: issueP(s)
            deferred = []
        s = i + NS
        if s < N:
            issueT(s)
            if s >= FIRSTU and not gate_open: deferred.append(s)
            else: issueP(s)
        if i == POLL_I:
            A("buffer_load_dword v9, v8, s[12:15], 0 offen sc1")
            issued.append(('X', 0))
    assert not deferred
    A("s_branch K34_end")
    A.label("K34_comp")
    A("s_and_b32 s46, s16, 1\ns_lshl_b32 s46, s46, 5\ns_lshr_b32 s47, s16, 1\ns_mul_i32 s47, s47, 3")
    PF = 116
    C1R = 212
    C1R = 140
    C1R = 188
    BB = 132
    COA = 88
    srd(A, 4, 32, SZ_Z1, WS_Z1); srd(A, 8, 32, SZ_G, WS_G); srd(A, 12, 34, 2048*2)
    A("s_lshl_b32 s43, s40, 6\ns_add_u32 s43, s43, s46")
    A("v_and_b32 v112, 15, v0\nv_add_u32 v112, s43, v112\nv_lshrrev_b32 v113, 4, v0")
    A("s_lshr_b32 s48, s43, 5\ns_mul_i32 s48, s48, 48\ns_mul_i32 s49, s41, 6\ns_add_u32 s48, s48, s49\ns_add_u32 s48, s48, s47\ns_lshl_b32 s48, s48, 10")
    A("v_lshlrev_b32 v114, 4, v0")
    for t in range(3): A(f"buffer_load_dwordx4 v[{PF+4*t}:{PF+4*t+3}], v114, s[4:7], s48 offen offset:{t*1024}")
    A("v_lshlrev_b32 v115, 2, v112")
    A(f"buffer_load_dword v{PF+12}, v115, s[8:11], 0 offen\nbuffer_load_dword v{PF+13}, v115, s[8:11], 0 offen offset:64")
    A("v_lshlrev_b32 v115, 1, v112")
    A(f"buffer_load_ushort v{PF+14}, v115, s[12:15], 0 offen\nbuffer_load_ushort v{PF+15}, v115, s[12:15], 0 offen offset:32")
    A("s_lshl_b32 s50, s40, 6\ns_lshl_b32 s51, s16, 4\ns_add_u32 s50, s50, s51\nv_and_b32 v137, 15, v0\nv_add_u32 v137, s50, v137\nv_lshlrev_b32 v138, 2, v137")
    A("buffer_load_dword v136, v138, s[8:11], 0 offen")
    A(f"s_mov_b32 s53, {USTG}")
    A(f"v_mov_b32 v138, {LCNT}\nv_mov_b32 v139, 0\nds_write_b32 v138, v139")
    E1.compute_setup(46, 47)
    E2b = E2(A, "K34b", 5, N2, 2816, 1, 5)
    E2b.F = [140, 188]; E2b.ACC = 236; E2b.vend = 256
    st()
    A("s_barrier")
    for x in E1.reads(0): A(x)
    A("s_waitcnt vmcnt(0)")
    for m in range(2):
        A(f"v_lshlrev_b32 v{BB+2*m}, 16, v{PF+14+m}\nv_mov_b32 v{BB+2*m+1}, v{BB+2*m}\nv_sub_f32 v{PF+12+m}, 1.0, v{PF+12+m}")
    for m in range(2):
        for t in range(3):
            c = C1R + 4*(3*m + t)
            for q in range(2):
                z = PF + 4*t + 2*m + q
                A(f"v_lshlrev_b32 v{c+2*q}, 16, v{z}\nv_and_b32 v{c+2*q+1}, 0xffff0000, v{z}")
    for m in range(2):
        for t in range(3):
            c = C1R + 4*(3*m + t)
            for r in range(4): A(f"v_mul_f32 v{c+r}, v{c+r}, v{PF+12+m}")
    LA = [128, 129, 130]; GA = [131, 138, 139]
    A("s_mul_i32 s20, s16, 192\nv_add_u32 v112, s20, v0")
    for q in range(3):
        A(f"v_add_u32 v115, {64*q}, v112\nv_mul_u32_u24 v114, 5462, v115\nv_lshrrev_b32 v114, 16, v114")
        A(f"v_mul_u32_u24 v{LA[q]}, 12, v114\nv_sub_u32 v115, v115, v{LA[q]}\nv_lshlrev_b32 v115, 4, v115")
        A(f"v_mul_u32_u24 v{LA[q]}, 208, v114\nv_add3_u32 v{LA[q]}, v{LA[q]}, v115, s53\nv_mul_u32_u24 v{GA[q]}, 384, v114\nv_add_u32 v{GA[q]}, v{GA[q]}, v115")
    A("v_and_b32 v114, 15, v0\nv_add_u32 v114, s46, v114\nv_mul_u32_u24 v114, 208, v114\nv_lshl_add_u32 v114, v113, 3, v114")
    A(f"s_lshl_b32 s48, s47, 5\ns_add_u32 s48, s48, {USTG}\nv_add_u32 v114, s48, v114")
    A("v_and_b32 v115, 15, v0\nv_add_u32 v115, s46, v115\nv_and_b32 v112, 1, v113\nv_lshl_add_u32 v115, v112, 4, v115\nv_mul_u32_u24 v115, 208, v115\nv_lshrrev_b32 v112, 1, v113\nv_lshl_add_u32 v115, v112, 4, v115\nv_add_u32 v115, s48, v115")
    A("s_waitcnt lgkmcnt(0)")
    st()
    A("s_mov_b32 s19, 0")
    A.label("K34_cloop")
    for i in range(NS): E1.step(i)
    A(f"s_add_u32 s19, s19, 1\ns_cmp_lt_u32 s19, 5\ns_cbranch_scc1 K34_cloop")
    E1.step(30)
    A("v_and_b32 v4, 15, v0\nv_lshrrev_b32 v5, 4, v0\nv_and_b32 v6, 7, v4\nv_xor_b32 v5, v5, v6\nv_lshlrev_b32 v4, 7, v4\nv_lshl_add_u32 v4, v5, 4, v4")
    A("s_lshl_b32 s20, s16, 11\nv_add_u32 v2, s20, v4\nv_xor_b32 v3, 64, v2")
    A("v_and_b32 v6, 15, v0\nv_lshlrev_b32 v6, 3, v6\nv_and_b32 v7, 16, v0\nv_lshl_add_u32 v6, v7, 3, v6\nv_and_b32 v7, 32, v0\nv_lshl_add_u32 v6, v7, 4, v6")
    A("v_add_u32 v4, 8192, v6")
    A(f"v_add_u32 v5, {3*SLOT}, v2\nv_add_u32 v6, {3*SLOT}, v3\nv_add_u32 v7, {3*SLOT}, v4")
    for i in range(236, 256): A(f"v_mov_b32 v{i}, 0")
    def mixed_step(Ecur, icur, Enext, inext, after_barrier=None):
        s = icur & 1
        rd = Enext.reads(inext) if Enext else []
        mf = [f"v_mfma_f32_16x16x32_bf16 v[{Ecur.acc(m,t)}:{Ecur.acc(m,t)+3}], v[{Ecur.fT(s,kk,t)}:{Ecur.fT(s,kk,t)+3}], v[{Ecur.fP(s,kk,m)}:{Ecur.fP(s,kk,m)+3}], v[{Ecur.acc(m,t)}:{Ecur.acc(m,t)+3}]"
              for kk in range(2) for m in range(Ecur.mP) for t in range(Ecur.nT)]
        A("s_barrier")
        if after_barrier: after_barrier()
        per = (len(rd) + len(mf) - 1)//len(mf) if rd else 0
        for x in mf:
            for _ in range(per):
                if rd: A(rd.pop(0))
            A(x)
        A("s_waitcnt lgkmcnt(0)")
    mixed_step(E1, 31, E2b, 32)
    st()
    for m in range(2):
        for t in range(3):
            ac = E1.acc(m, t); c = C1R + 4*(3*m + t)
            for q in range(2):
                A(f"v_pk_add_f32 v[{ac+2*q}:{ac+2*q+1}], v[{ac+2*q}:{ac+2*q+1}], v[{PF+14+m-(PF+14+m)%2 if False else BB+2*m}:{BB+2*m+1}]")
    for m in range(2):
        for t in range(3):
            ac = E1.acc(m, t); c = C1R + 4*(3*m + t)
            for q in range(2):
                A(f"v_pk_mul_f32 v[{ac+2*q}:{ac+2*q+1}], v[{ac+2*q}:{ac+2*q+1}], v[{c+2*q}:{c+2*q+1}]")
    if O.fine2: st()
    for m in range(2):
        for t in range(3):
            ac = E1.acc(m, t); z = PF + 4*t + 2*m
            A(f"v_cvt_pk_bf16_f32 v{z}, v{ac}, v{ac+1}\nv_cvt_pk_bf16_f32 v{z+1}, v{ac+2}, v{ac+3}")
    if O.fine2: st()
    if O.stg128:
        for t in range(3):
            d = PF + 4*t
            A(f"v_permlane16_swap_b32 v{d}, v{d+2}\nv_permlane16_swap_b32 v{d+1}, v{d+3}")
        for t in range(3):
            A(f"ds_write_b128 v115, v[{PF+4*t}:{PF+4*t+3}] offset:{t*32}")
    else:
        for m in range(2):
            for t in range(3):
                z = PF + 4*t + 2*m
                A(f"ds_write_b64 v114, v[{z}:{z+1}] offset:{m*16*208 + t*32}")
    A("s_waitcnt lgkmcnt(0)")
    st()
    def signal():
        A("s_waitcnt vmcnt(0)")
        A(f"v_mov_b32 v138, {LCNT}\nv_mov_b32 v139, 1")
        A("s_mov_b64 exec, 1")
        A("ds_add_rtn_u32 v139, v138, v139")
        A("s_waitcnt lgkmcnt(0)")
        A("v_readfirstlane_b32 s20, v139")
        A("s_cmp_lg_u32 s20, 3\ns_cbranch_scc1 K34_nosig")
        srd(A, 12, 32, SZ_FL, WS_FL)
        A("s_lshl_b32 s20, s40, 7\ns_lshl_b32 s21, s41, 2\ns_add_u32 s20, s20, s21\nv_mov_b32 v138, s20\nv_mov_b32 v139, 1")
        A("buffer_store_dword v139, v138, s[12:15], 0 offen sc1")
        A.label("K34_nosig")
        A("s_mov_b64 exec, -1")
    def copy_out():
        srd(A, 12, 32, SZ_U, WS_U)
        for q in range(3): A(f"ds_read_b128 v[{PF+4*q}:{PF+4*q+3}], v{LA[q]}")
        A("s_lshl_b32 s48, s40, 2\ns_lshr_b32 s49, s41, 1\ns_add_u32 s48, s48, s49\ns_mul_i32 s48, s48, 24576\ns_and_b32 s49, s41, 1\ns_mul_i32 s49, s49, 192\ns_add_u32 s48, s48, s49")
        A("s_waitcnt lgkmcnt(0)")
        for q in range(3): A(f"buffer_store_dwordx4 v[{PF+4*q}:{PF+4*q+3}], v{GA[q]}, s[12:15], s48 offen{O.ustore}")
    for i in range(N1, N):
        last = (i == N - 1)
        mixed_step(E2b, i, None if last else E2b, i + 1, after_barrier=(copy_out if i == N1 else None))
        if i in ((32, 33, 36, 40, 41) if O.fine2 else (32, 33, 34, 36, 38, 40, 41, 42, 45)): st()
        if i == O.sig_i: signal()
        if i == N1 + 9:
            for t in range(5):
                for r in range(4): A(f"v_mul_f32 v{E2b.acc(0,t)+r}, v{E2b.acc(0,t)+r}, v136")
    st()
    srd(A, 12, 36, 2048*640*2)
    PK = 8
    for t in range(5):
        ac = E2b.acc(0, t)
        A(f"v_cvt_pk_bf16_f32 v{PK+2*t}, v{ac}, v{ac+1}\nv_cvt_pk_bf16_f32 v{PK+2*t+1}, v{ac+2}, v{ac+3}")
    A("v_lshrrev_b32 v3, 4, v0\ns_mov_b32 s45, 1280\nv_mul_lo_u32 v4, v137, s45\nv_lshl_add_u32 v4, v3, 3, v4\ns_mul_i32 s46, s41, 160\nv_add_u32 v4, s46, v4")
    for t in range(5): A(f"buffer_store_dwordx2 v[{PK+2*t}:{PK+2*t+1}], v4, s[12:15], 0 offen offset:{t*32}")
    st(); st.flush(16, 32, 20)
    hd_end(A, 32, 2, 0, 60)
    if O.hdiag:
        A("s_cmp_lg_u32 s2, 0\ns_cbranch_scc1 K34_end\ns_cmp_lg_u32 s16, 0\ns_cbranch_scc1 K34_end")
        A("s_waitcnt vmcnt(0)")
        srd(A, 84, 32, 4096, WS_TS); srd(A, 88, 38, 256)
        A("v_lshlrev_b32 v60, 2, v0\nv_cmp_gt_u32 vcc, 12, v0\ns_and_saveexec_b64 s[20:21], vcc")
        A("buffer_load_dword v61, v60, s[84:87], 0 offen sc1\ns_waitcnt vmcnt(0)\nbuffer_store_dword v61, v60, s[88:91], 0 offen")
    A.label("K34_end")
    A("s_endpgm")
    return name, 256, 512, NS*SLOT + 64*208 + 64, 256

def main(out, kernels):
    body = Asm(); ks = []
    for f in kernels: ks.append(f(body))
    hdr = [f"; @launch kernel={n} grid=({g},1,1) block=({b},1,1) lds={lds}" for (n, g, b, lds, vg) in ks]
    hdr.append('.amdgcn_target "amdgcn-amd-amdhsa--gfx950"'); hdr.append(".text")
    lines = hazard.fix(body.lines, verbose=True)
    txt = "\n".join(hdr) + "\n" + "\n".join(lines) + "\n" + '.section .rodata,"a"\n'
    for (n, g, b, lds, vg) in ks: txt += kernel_desc(n, 256 if O.stamp else vg, 96)
    open(out, "w").write(txt)
if __name__ == "__main__":
    if '--stamp' in sys.argv: O.stamp = True
    if '--norot' in sys.argv: O.rot = False
    if '--pfg' in sys.argv: O.pfg = True
    if '--nofull' in sys.argv: O.fullring = False
    for a_ in sys.argv:
        if a_.startswith('--tla='): O.tla = int(a_[6:])
    for a_ in sys.argv:
        if a_.startswith('--pfg2='): O.pfg2 = int(a_[7:])
    if '--itstamp' in sys.argv: O.itstamp = True
    if '--nowsp' in sys.argv: O.wsp_pf = False
    for a_ in sys.argv:
        if a_.startswith('--poll='): O.poll_i = int(a_[7:])
        if a_.startswith('--sig='): O.sig_i = int(a_[6:])
    if '--full' in sys.argv: O.fullring = True; O.tla = 6
    if '--nofuse' in sys.argv: O.fuse = False
    if '--nosc1' in sys.argv: O.usc1 = False
    if '--hdiag' in sys.argv: O.hdiag = True
    if '--fine2' in sys.argv: O.fine2 = True
    if '--stg64' in sys.argv: O.stg128 = False
    if '--uplain' in sys.argv: O.ustore = ''
    if '--unt' in sys.argv: O.ustore = ' sc1 nt'
    if '--usc01' in sys.argv: O.ustore = ' sc0 sc1'
    for a_ in sys.argv:
        if a_.startswith('--rottab='): O.rottab = int(a_[9:], 16)
    for a_ in sys.argv:
        if a_.startswith('--sleep='): O.sleep = int(a_[8:])
    main(sys.argv[1], [k1, k34] if O.fuse else [k1, k3, k4])
```

```python
import sys, struct
from asmlib import *
import hazard
NAME = "gated_mix__sliding_local_dilated__mixer_gmlp__prompt"
KA = dict(x=0, wqkv=8, wo=16, bx=24, win=32, wsp=40, bsp=48, wout=56, gw=64, out=72, dbg=80, ws=88)
QP = 504
HGS = 2048*QP
WS_QKVG = 0;          SZ_QKVG = 8*HGS
WS_Z1  = 0x900000;    SZ_Z1 = 2048*768*2
WS_Z2P = 0xC00000;    SZ_Z2P = 2048*768*2
WS_AU  = 0xF00000;    SZ_AU = 2048*1408*2
WS_WP  = 0x1500000;   SZ_WP = 1408*640*2
WS_ST  = 0x1700000;   SZ_ST = 8*2048*16
WS_G   = 0x1740000;   SZ_G = 2048*4
WS_EP  = 0x1760000;   SZ_EP = 16*128
WS_FL  = 0x1750000;   SZ_FL = 32*128
WS_U   = 0x1800000;   SZ_U = 2048*768*2
WS_TS  = 0x2000000
KILL = 0x40000000
C0 = -2.0*0.7978845608028654*1.4426950408889634
C1 = C0*0.044715
def f2u(f): return struct.unpack('<I', struct.pack('<f', f))[0]
class Opt:
    stamp = False; rot = True; wsp_pf = True; la = 5; itstamp = False; pfg = False; pfg2 = 2; fullring = False; tla = 4; poll_i = 38; sig_i = 36; fuse = True; hdiag2 = False; k1st = ''; outst = ''; fine2 = False; stg128 = True; usc1 = True; ustore = ' sc1'; hdiag = False; sleep = 4; rottab = 0x8530
O = Opt()

def load_ptr(A, sd, key): A(f"s_load_dwordx2 s[{sd}:{sd+1}], s[0:1], {KA[key]}")
def wave_lane(A, s_w):
    A("v_lshrrev_b32 v1, 6, v0")
    A(f"v_readfirstlane_b32 s{s_w}, v1")
    A("v_and_b32 v0, 63, v0")

class Stamps:
    def __init__(self, A, kidx, n0=0): self.A = A; self.n = n0; self.k = kidx
    def __call__(self):
        if not O.stamp: return
        assert self.n < 16
        self.A(f"s_memtime s[{60+2*self.n}:{61+2*self.n}]"); self.n += 1
    def flush(self, s_w, s_ws, vt=250):
        if not O.stamp: return
        A = self.A
        A("s_waitcnt vmcnt(0)")
        A("s_memrealtime s[92:93]")
        A("s_waitcnt lgkmcnt(0)")
        srd(A, 56, s_ws, 0x100000, WS_TS + self.k*0x40000)
        A(f"s_lshl_b32 s54, s2, 2\ns_add_u32 s54, s54, s{s_w}\ns_lshl_b32 s54, s54, 7")
        A("s_mov_b64 exec, 1")
        for i in range(self.n):
            A(f"v_mov_b32 v{vt}, s{60+2*i}\nv_mov_b32 v{vt+1}, {4*i}")
            A(f"buffer_store_dword v{vt}, v{vt+1}, s[56:59], s54 offen")
        A(f"v_mov_b32 v{vt}, s92\nv_mov_b32 v{vt+1}, 124")
        A(f"buffer_store_dword v{vt}, v{vt+1}, s[56:59], s54 offen")
        A("s_mov_b64 exec, -1")


def it_top(A):
    if not O.itstamp: return
    A("s_memtime s[76:77]\ns_waitcnt lgkmcnt(0)")
    for k in range(3): A(f"s_cmp_eq_u32 s26, {k}\ns_cselect_b32 s{80+k}, s76, s{80+k}")
def it_mid(A):
    if O.itstamp: A("s_memtime s[76:77]\ns_waitcnt lgkmcnt(0)\ns_mov_b32 s83, s76")
def it_end(A, va, vb):
    if not O.itstamp: return
    A("s_memtime s[76:77]\ns_waitcnt lgkmcnt(0)\ns_mov_b32 s84, s76")
    srd(A, 56, 32, 0x200000, WS_TS + 7*0x40000)
    A("s_lshl_b32 s54, s2, 2\ns_add_u32 s54, s54, s16\ns_lshl_b32 s54, s54, 7")
    A("s_mov_b64 exec, 1")
    for i in range(11):
        A(f"v_mov_b32 v{va}, s{80+i}\nv_mov_b32 v{vb}, {4*i}")
        A(f"buffer_store_dword v{va}, v{vb}, s[56:59], s54 offen")
    A("s_mov_b64 exec, -1")


def hd_start(A):
    if O.hdiag: A("s_memtime s[94:95]\ns_memrealtime s[92:93]\ns_waitcnt lgkmcnt(0)\ns_mov_b32 s90, s94\ns_mov_b32 s91, s92")
def hd_end(A, s_ws, slot_sreg_expr, cond_wg, vt):
    if not O.hdiag: return
    L = A.newlabel("hd")
    A(f"s_cmp_lg_u32 s2, {cond_wg}\ns_cbranch_scc1 {L}\ns_cmp_lg_u32 s16, 0\ns_cbranch_scc1 {L}")
    A("s_waitcnt vmcnt(0)\ns_memtime s[94:95]\ns_memrealtime s[92:93]\ns_waitcnt lgkmcnt(0)")
    A("s_sub_u32 s94, s94, s90\ns_sub_u32 s95, s92, s91")
    srd(A, 84, s_ws, 4096, WS_TS)
    A(f"v_mov_b32 v{vt}, s94\nv_mov_b32 v{vt+1}, s95\nv_mov_b32 v{vt+2}, s91\nv_mov_b32 v{vt+3}, s92\nv_mov_b32 v{vt+4}, {slot_sreg_expr*16}")
    A("s_mov_b64 exec, 1")
    A(f"buffer_store_dwordx4 v[{vt}:{vt+3}], v{vt+4}, s[84:87], 0 offen")
    A("s_mov_b64 exec, -1")
    A.label(L)

def gelu_pk(A, regs, tmp, sC):
    n = len(regs)
    for i, r in enumerate(regs): A(f"v_pk_mul_f32 v[{tmp+2*i}:{tmp+2*i+1}], v[{r}:{r+1}], v[{r}:{r+1}]")
    for i, r in enumerate(regs): A(f"v_pk_fma_f32 v[{tmp+2*i}:{tmp+2*i+1}], v[{tmp+2*i}:{tmp+2*i+1}], s[{sC}:{sC+1}], v[6:7]")
    for i, r in enumerate(regs): A(f"v_pk_mul_f32 v[{tmp+2*i}:{tmp+2*i+1}], v[{tmp+2*i}:{tmp+2*i+1}], v[{r}:{r+1}]")
    for i in range(2*n): A(f"v_exp_f32 v{tmp+i}, v{tmp+i}")
    for i, r in enumerate(regs): A(f"v_pk_add_f32 v[{tmp+2*i}:{tmp+2*i+1}], v[{tmp+2*i}:{tmp+2*i+1}], 1.0 op_sel_hi:[1,0]")
    for i in range(2*n): A(f"v_rcp_f32 v{tmp+i}, v{tmp+i}")
    for i, r in enumerate(regs): A(f"v_pk_mul_f32 v[{r}:{r+1}], v[{r}:{r+1}], v[{tmp+2*i}:{tmp+2*i+1}]")

def k1_geom(typ):
    if typ == 'q':
        return dict(pitchW=3840, PROWS=144, PSLOT=144*128, NPS=3, TSLOT=15360, R=6, TBASE=3*144*128)
    return dict(pitchW=3072, PROWS=128, PSLOT=128*128, NPS=3, TSLOT=16384, R=6, TBASE=3*128*128)

def k1_wsp_prefetch(A, part):
    if part == 0:
        srd(A, 4, 52, 2048*2048*2)
        A("s_and_b32 s40, s2, 7\ns_lshr_b32 s40, s40, 1\ns_lshl_b32 s40, s40, 14")
        A("s_lshr_b32 s41, s2, 3\ns_and_b32 s41, s41, 15\ns_lshl_b32 s41, s41, 10\ns_add_u32 s40, s40, s41")
        A("s_sub_u32 s41, s16, 4\ns_lshl_b32 s41, s41, 8\ns_add_u32 s40, s40, s41")
        A("s_lshl_b32 s40, s40, 7")
        A("v_lshlrev_b32 v249, 7, v0")
    else:
        A("s_add_u32 s40, s40, 8192")
    A(f"buffer_load_dword v{250 + (part & 1)}, v249, s[4:7], s40 offen")

def pf_setup(A):
    A("s_cmp_lt_u32 s21, 2\ns_cselect_b32 s84, s30, s34\ns_cselect_b32 s85, s31, s35")
    A(f"s_mov_b32 s86, {640*1920*2}\ns_cselect_b32 s86, {2048*640*2}, s86")
    A("s_cmp_eq_u32 s21, 3\ns_cselect_b32 s84, s36, s84\ns_cselect_b32 s85, s37, s85")
    A(f"s_cselect_b32 s86, {640*1536*2}, s86\ns_mov_b32 s87, 0x20000")
    A("s_lshr_b32 s88, s2, 3\ns_and_b32 s89, s2, 7\ns_lshr_b32 s90, s89, 1\ns_and_b32 s89, s89, 1")
    A("s_lshl_b32 s91, s89, 10\ns_lshl_b32 s92, s88, 5\ns_add_u32 s91, s91, s92\ns_lshl_b32 s92, s21, 4\ns_add_u32 s91, s91, s92")
    A("v_lshrrev_b32 v20, 2, v0\nv_add_u32 v20, s91, v20\nv_mul_u32_u24 v20, 1280, v20\nv_and_b32 v21, 3, v0\nv_lshl_add_u32 v20, v21, 7, v20\nv_add_u32 v20, 384, v20")
    A("v_mul_u32_u24 v21, 57, v0\nv_lshrrev_b32 v21, 9, v21\nv_mul_u32_u24 v22, 9, v21\nv_sub_u32 v22, v0, v22")
    A("s_mul_i32 s91, s88, 7\ns_add_u32 s91, s91, 192\nv_add_u32 v21, s91, v21\nv_mul_u32_u24 v21, 3840, v21")
    A("v_mul_u32_u24 v23, 171, v22\nv_lshrrev_b32 v23, 9, v23\nv_mul_u32_u24 v25, 3, v23\nv_sub_u32 v22, v22, v25")
    A("s_lshl_b32 s91, s90, 2\ns_lshr_b32 s91, 0x7520, s91\ns_and_b32 s91, s91, 15")
    A("v_add_u32 v22, s91, v22\nv_lshlrev_b32 v22, 7, v22\nv_mul_u32_u24 v23, 1280, v23\nv_add3_u32 v21, v21, v22, v23")
    A(f"v_mov_b32 v25, {KILL}\nv_cmp_le_u32 vcc, 63, v0\nv_cndmask_b32 v21, v21, v25, vcc")
    A("v_mul_u32_u24 v22, 43, v0\nv_lshrrev_b32 v22, 8, v22\nv_mul_u32_u24 v23, 6, v22\nv_sub_u32 v23, v0, v23")
    A("s_mul_i32 s91, s88, 7\ns_add_u32 s91, s91, 192\nv_add_u32 v22, s91, v22\nv_mul_u32_u24 v22, 3072, v22")
    A("v_mul_u32_u24 v26, 171, v23\nv_lshrrev_b32 v26, 9, v26\nv_mul_u32_u24 v27, 3, v26\nv_sub_u32 v23, v23, v27")
    A("v_lshlrev_b32 v23, 7, v23\nv_mul_u32_u24 v26, 1536, v26\nv_add3_u32 v22, v22, v23, v26\ns_mul_i32 s91, s90, 384\nv_add_u32 v22, s91, v22")
    A("v_cmp_le_u32 vcc, 42, v0\nv_cndmask_b32 v22, v22, v25, vcc")
    A("s_cmp_lt_u32 s21, 2\ns_cselect_b64 s[90:91], -1, 0\ns_cselect_b32 s88, 384, 0")
    A("v_cndmask_b32 v24, v21, v20, s[90:91]")
    A(f"s_cmp_eq_u32 s21, 2\ns_cselect_b32 s88, {224*3840}, s88")
    A(f"s_cmp_eq_u32 s21, 3\ns_cselect_b32 s88, {224*3072}, s88\ns_cselect_b64 s[90:91], -1, 0")
    A("v_cndmask_b32 v24, v24, v22, s[90:91]")

def pf_group(A, g):
    if g == 0: A("buffer_load_dword v248, v24, s[84:87], 0 offen")
    else: A("buffer_load_dword v248, v24, s[84:87], s88 offen")

def run_loader_schedule(A, issueP, issueT, issued, hooks=None, wsp=False):
    NB = 20; NPS = 3; R = 6
    def wait_for(needs):
        last = -1
        for idx, tg in enumerate(issued):
            if tg in needs: last = idx
        if last < 0: return
        A(f"s_waitcnt vmcnt({min(len(issued) - 1 - last, 63)})")
    TLA = O.tla
    issueP(0, 0); issueP(0, 1); issueT(0); issueT(1)
    issueP(1, 0); issueP(1, 1)
    for t in range(2, TLA): issueT(t)
    if O.fullring: issueP(2, 0); issueP(2, 1)
    if O.pfg:
        pf_setup(A); pf_group(A, 0); issued.append(('F', 0))
    wait_for([('P', 0), ('T', 0)])
    A("s_barrier")
    if not O.fullring: issueP(2, 0)
    for b in range(NB):
        needs = []
        if b + 1 < NB: needs = [('T', b+1), ('P', (b+1)//2)]
        if needs: wait_for(needs)
        A("s_barrier")
        if b + TLA < NB: issueT(b + TLA)
        if b == 0 and not O.fullring: issueP(2, 1)
        if b % 2 == 1:
            s = (b - 1)//2 + NPS
            if s < NB//2: issueP(s, 0)
        elif b >= 2:
            s = (b - 2)//2 + NPS
            if s < NB//2: issueP(s, 1)
        if O.pfg and b == O.pfg2: pf_group(A, 1); issued.append(('F', 1))
        if hooks and b in hooks: hooks[b](issued)
        W0 = max(14, 20 - TLA)
        if wsp and O.wsp_pf and W0 <= b < W0 + 4: k1_wsp_prefetch(A, b - W0); issued.append(('W', b))
    A("s_barrier")

def rot_stage(A, s, dst):
    A(f"s_add_u32 s{dst}, s28, {s}\ns_cmp_ge_u32 s{dst}, 10\ns_cselect_b32 s29, 10, 0\ns_sub_u32 s{dst}, s{dst}, s29")
def rot_beat(A, b, dst):
    A(f"s_lshl_b32 s{dst}, s28, 1\ns_add_u32 s{dst}, s{dst}, {b}\ns_cmp_ge_u32 s{dst}, 20\ns_cselect_b32 s29, 20, 0\ns_sub_u32 s{dst}, s{dst}, s29")

def k1_loader_z(A):
    G = k1_geom('z'); pitchW = G['pitchW']; PSLOT = G['PSLOT']; TSLOT = G['TSLOT']; TBASE = G['TBASE']
    lw = 21
    A(f"s_sub_u32 s{lw}, s16, 4")
    A("v_lshrrev_b32 v7, 3, v0\nv_and_b32 v2, 7, v0\nv_xor_b32 v2, v2, v7\nv_mul_u32_u24 v7, 1280, v7\nv_lshl_add_u32 v2, v2, 4, v7")
    A("v_lshrrev_b32 v4, 4, v0")
    A(f"s_and_b32 s20, s{lw}, 1\ns_lshl_b32 s20, s20, 2")
    A("v_add_u32 v5, s20, v4\nv_lshlrev_b32 v5, 1, v5\nv_and_b32 v6, 15, v0\nv_xor_b32 v6, v6, v5")
    A(f"v_mul_u32_u24 v4, {pitchW}, v4\nv_lshl_add_u32 v3, v6, 4, v4")
    A(f"v_cmp_le_u32 vcc, 12, v6\nv_mov_b32 v5, {KILL}\nv_cndmask_b32 v3, v3, v5, vcc")
    nP = 2; half_rows = 64
    A(f"s_mul_i32 s20, s{lw}, {nP*8*1280}\ns_add_u32 s22, s17, s20")
    A(f"s_mul_i32 s23, s{lw}, {nP*1024}")
    A(f"s_mul_i32 s20, s{lw}, {8*pitchW}\ns_add_u32 s24, s18, s20\ns_add_u32 s25, s19, s20")
    A(f"s_lshl_b32 s26, s{lw}, 11\ns_add_u32 s26, s26, {TBASE}")
    issued = []
    def issueP(s, h2):
        slot = s % 3
        rot_stage(A, s, 27)
        A("s_lshl_b32 s27, s27, 7\ns_add_u32 s27, s27, s22")
        A(f"s_add_u32 m0, s23, {slot*PSLOT + h2*half_rows*128}")
        for i in range(nP):
            A(f"s_add_u32 s20, s27, {h2*half_rows*1280 + i*(8*1280 - 1024)}")
            A(f"buffer_load_dwordx4 v2, s[4:7], s20 offen offset:{i*1024} lds")
            issued.append(('P', s))
    def issueT(b):
        slot = b % 6
        rot_beat(A, b, 27)
        A(f"s_mul_i32 s27, s27, {32*pitchW}")
        for u, sb in enumerate([24, 25]):
            A(f"s_add_u32 m0, s26, {slot*TSLOT + u*8192}")
            A(f"s_add_u32 s29, s27, s{sb}")
            for i in range(2):
                A(f"s_add_u32 s20, s29, {i*(4*pitchW - 1024)}")
                A(f"buffer_load_dwordx4 v3, s[8:11], s20 offen offset:{i*1024} lds")
                issued.append(('T', b))
    def gate_load(issued):
        srd(A, 12, 38, 640*2)
        A("v_lshlrev_b32 v10, 2, v0")
        for i in range(5): A(f"buffer_load_dword v{40+i}, v10, s[12:15], 0 offen offset:{256*i}")
        A("s_lshl_b32 s58, s48, 7\ns_lshl_b32 s59, s49, 4\ns_add_u32 s58, s58, s59\ns_lshl_b32 s59, s21, 2\ns_add_u32 s58, s58, s59")
        A("s_mul_i32 s59, s58, 1280")
        for r in range(4):
            A(f"s_add_u32 s57, s59, {r*1280}")
            for i in range(5): A(f"buffer_load_dword v{48+5*r+i}, v10, s[4:7], s57 offen offset:{256*i}")
        issued.extend([('G', 0)]*25)
    def gate_finish(issued):
        last = max(i for i, t in enumerate(issued) if t == ('G', 0))
        A(f"s_waitcnt vmcnt({len(issued) - 1 - last})")
        for r in range(4):
            A(f"v_mov_b32 v{70+r}, 0")
            for i in range(5): A(f"v_dot2_f32_bf16 v{70+r}, v{48+5*r+i}, v{40+i}, v{70+r}")
        for ctl in ("row_shr:1 row_mask:0xf bank_mask:0xf bound_ctrl:0", "row_shr:2 row_mask:0xf bank_mask:0xf bound_ctrl:0", "row_shr:4 row_mask:0xf bank_mask:0xf bound_ctrl:0",
                    "row_shr:8 row_mask:0xf bank_mask:0xf bound_ctrl:0", "row_bcast:15 row_mask:0xa bank_mask:0xf", "row_bcast:31 row_mask:0xc bank_mask:0xf"):
            for r in range(4): A(f"v_add_f32_dpp v{70+r}, v{70+r}, v{70+r} {ctl}")
        for r in range(4): A(f"v_mul_f32 v{70+r}, {f2u(-1.4426950408889634)}, v{70+r}")
        for r in range(4): A(f"v_exp_f32 v{70+r}, v{70+r}")
        for r in range(4): A(f"v_add_f32 v{70+r}, 1.0, v{70+r}")
        for r in range(4): A(f"v_rcp_f32 v{70+r}, v{70+r}")
        srd(A, 12, 32, SZ_G, WS_G)
        A("s_lshl_b32 s58, s58, 2\nv_mov_b32 v10, 0")
        A("s_mov_b32 s42, 0\ns_mov_b32 s43, 0x80000000\ns_mov_b64 exec, s[42:43]")
        for r in range(4): A(f"buffer_store_dword v{70+r}, v10, s[12:15], s58 offen offset:{4*r}")
        A("s_mov_b64 exec, -1")
        issued.extend([('S', 0)]*4)
    def oldtags(issued):
        z_oldtags(A, 42); issued.extend([('O', 0)]*1)
    def pack_loads(issued):
        k1_pack_load(A); issued.extend([('K', 0)]*6)
    run_loader_schedule(A, issueP, issueT, issued, {1: oldtags})

def k1_loader_q(A, last):
    G = k1_geom('q'); PSLOT = G['PSLOT']; TSLOT = G['TSLOT']; TBASE = G['TBASE']
    nP = 3 if last else 2
    nTi = 3 if last else 4
    A("s_sub_u32 s21, s16, 4")
    A("v_lshrrev_b32 v7, 3, v0\nv_and_b32 v6, 7, v0\nv_xor_b32 v6, v6, v7")
    A("s_lshl_b32 s20, s48, 7\ns_sub_u32 s20, s20, 16\ns_lshl_b32 s22, s21, 4\ns_add_u32 s20, s20, s22")
    A("v_add_u32 v7, s20, v7")
    A("v_mov_b32 v12, v7")
    A("s_mov_b32 s20, 1280\nv_mul_lo_u32 v7, v7, s20\nv_lshl_add_u32 v2, v6, 4, v7")
    for h2 in range(2):
        for i in range(nP):
            if h2 == 0 and i == 0: continue
            A(f"v_add_u32 v{2 + h2*3 + i}, {(72*h2 + 8*i)*1280}, v2")
    A(f"v_mov_b32 v13, {KILL}")
    for i in range(2):
        A(f"v_add_u32 v14, {8*i}, v12\nv_cmp_gt_i32 vcc, 0, v14\nv_cndmask_b32 v{2+i}, v{2+i}, v13, vcc")
    A("s_lshl_b32 s20, s21, 8")
    for i in range(nTi):
        d = 8 + i
        A(f"v_add_u32 v12, s20, v0\nv_add_u32 v12, {64*i}, v12")
        A("v_mul_u32_u24 v13, 2185, v12\nv_lshrrev_b32 v13, 16, v13")
        A("v_mul_u32_u24 v14, 30, v13\nv_sub_u32 v14, v12, v14")
        A("v_and_b32 v15, 0x13, v13\nv_and_b32 v16, 4, v13\nv_lshl_or_b32 v15, v16, 1, v15\nv_and_b32 v16, 8, v13\nv_lshrrev_b32 v16, 1, v16\nv_or_b32 v15, v15, v16")
        A("v_mul_u32_u24 v16, 205, v14\nv_lshrrev_b32 v16, 11, v16")
        A("v_mul_u32_u24 v17, 10, v16\nv_sub_u32 v14, v14, v17")
        A("v_mul_u32_u24 v15, 3840, v15\nv_mul_u32_u24 v16, 1280, v16\nv_lshlrev_b32 v14, 4, v14")
        A(f"v_add3_u32 v{d}, v15, v16, v14")
    A("s_mul_i32 s24, s49, 160")
    A("s_lshl_b32 s23, s21, 11")
    A(f"s_lshl_b32 s26, s21, 12\ns_add_u32 s26, s26, {TBASE}")
    issued = []
    def issueP(s, h2):
        slot = s % 3
        rot_stage(A, s, 27)
        A("s_lshl_b32 s27, s27, 7")
        A(f"s_add_u32 m0, s23, {slot*PSLOT + h2*72*128}")
        for i in range(nP):
            if i: A("s_add_u32 m0, m0, 1024\ns_nop 0")
            A(f"buffer_load_dwordx4 v{2 + h2*3 + i}, s[4:7], s27 offen lds")
            issued.append(('P', s))
    def issueT(b):
        slot = b % 6
        rot_beat(A, b, 27)
        A(f"s_mul_i32 s27, s27, {32*3840}\ns_add_u32 s27, s27, s24")
        A(f"s_add_u32 m0, s26, {slot*TSLOT}")
        for i in range(nTi):
            if i: A("s_add_u32 m0, m0, 1024\ns_nop 0")
            A(f"buffer_load_dwordx4 v{8 + i}, s[8:11], s27 offen lds")
            issued.append(('T', b))
    run_loader_schedule(A, issueP, issueT, issued, None, True)


OT = 212
def z_oldtags(A, r32_sreg):
    srd(A, 12, 32, SZ_EP, WS_EP)
    A(f"s_lshl_b32 s40, s48, 7\nv_mov_b32 v221, s40")
    A(f"buffer_load_dwordx2 v[{OT}:{OT+1}], v221, s[12:15], 0 offen sc1")
def z_r32(A, dst):
    A(f"s_and_b32 s{dst}, s16, 1\ns_lshl_b32 s{dst}, s{dst}, 1\ns_lshr_b32 s41, s16, 2\ns_add_u32 s{dst}, s{dst}, s41")


def z_gate_load(A):
    srd(A, 4, 30, 2048*640*2); srd(A, 12, 38, 640*2)
    A("s_lshl_b32 s60, s48, 7\ns_lshl_b32 s61, s49, 4\ns_add_u32 s60, s60, s61\ns_lshl_b32 s61, s16, 2\ns_add_u32 s60, s60, s61") if False else None
    A("s_lshl_b32 s46, s48, 7\ns_lshl_b32 s47, s49, 4\ns_add_u32 s46, s46, s47\ns_lshl_b32 s47, s16, 2\ns_add_u32 s46, s46, s47")
    A(f"v_lshlrev_b32 v146, 4, v0\nv_add_u32 v147, 1024, v146\nv_mov_b32 v148, {KILL}\nv_cmp_le_u32 vcc, 16, v0\nv_cndmask_b32 v147, v147, v148, vcc")
    A("buffer_load_dwordx4 v[184:187], v146, s[12:15], 0 offen\nbuffer_load_dwordx4 v[188:191], v147, s[12:15], 0 offen")
    A("s_mul_i32 s47, s46, 1280")
    for r in range(4):
        A(f"s_add_u32 s45, s47, {r*1280}")
        A(f"buffer_load_dwordx4 v[{152+8*r}:{155+8*r}], v146, s[4:7], s45 offen\nbuffer_load_dwordx4 v[{156+8*r}:{159+8*r}], v147, s[4:7], s45 offen")
def z_gate_finish(A):
    for r in range(4):
        A(f"v_mov_b32 v{192+r}, 0")
        for q in range(4): A(f"v_dot2_f32_bf16 v{192+r}, v{152+8*r+q}, v{184+q}, v{192+r}")
        for q in range(4): A(f"v_dot2_f32_bf16 v{192+r}, v{156+8*r+q}, v{188+q}, v{192+r}")
    for ctl in ("row_shr:1 row_mask:0xf bank_mask:0xf bound_ctrl:0", "row_shr:2 row_mask:0xf bank_mask:0xf bound_ctrl:0", "row_shr:4 row_mask:0xf bank_mask:0xf bound_ctrl:0",
                "row_shr:8 row_mask:0xf bank_mask:0xf bound_ctrl:0", "row_bcast:15 row_mask:0xa bank_mask:0xf", "row_bcast:31 row_mask:0xc bank_mask:0xf"):
        for r in range(4): A(f"v_add_f32_dpp v{192+r}, v{192+r}, v{192+r} {ctl}")
    for r in range(4): A(f"v_mul_f32 v{192+r}, {f2u(-1.4426950408889634)}, v{192+r}")
    for r in range(4): A(f"v_exp_f32 v{192+r}, v{192+r}")
    for r in range(4): A(f"v_add_f32 v{192+r}, 1.0, v{192+r}")
    for r in range(4): A(f"v_rcp_f32 v{192+r}, v{192+r}")
    srd(A, 4, 32, SZ_G, WS_G)
    A("s_lshl_b32 s46, s46, 2\nv_mov_b32 v146, 0")
    A("s_mov_b32 s42, 0\ns_mov_b32 s43, 0x80000000\ns_mov_b64 exec, s[42:43]")
    for r in range(4): A(f"buffer_store_dword v{192+r}, v146, s[4:7], s46 offen offset:{4*r}")
    A("s_mov_b64 exec, -1")

def k1_pack_load(A):
    T = 150
    c, cc, t2, p_, k_, x_ = T+2, T+3, T+4, T+5, T+6, T+7
    A("s_sub_u32 s40, s16, 4\ns_lshl_b32 s40, s40, 6")
    A(f"v_add_u32 v{c}, s40, v0\nv_and_b32 v{cc}, 127, v{c}\nv_lshrrev_b32 v{t2}, 7, v{c}\nv_lshrrev_b32 v{p_}, 1, v{cc}")
    A(f"v_and_b32 v{k_}, 0x33, v{p_}\nv_and_b32 v{x_}, 4, v{p_}\nv_lshl_or_b32 v{k_}, v{x_}, 1, v{k_}")
    A(f"v_and_b32 v{x_}, 8, v{p_}\nv_lshrrev_b32 v{x_}, 1, v{x_}\nv_or_b32 v{k_}, v{k_}, v{x_}")
    A(f"v_mul_u32_u24 v{k_}, 1280, v{k_}\nv_and_b32 v{x_}, 1, v{cc}\nv_lshl_add_u32 v{k_}, v{x_}, 4, v{k_}\nv_lshl_add_u32 v{k_}, v{t2}, 5, v{k_}")
    A(f"v_lshlrev_b32 v252, 4, v{cc}\nv_lshl_add_u32 v252, v{t2}, 11, v252")
    A(f"v_mov_b32 v{x_}, {KILL}\nv_cmp_eq_u32 vcc, 1, v{t2}\nv_cndmask_b32 v253, v252, v{x_}, vcc\nv_cndmask_b32 v{p_}, v{k_}, v{x_}, vcc")
    A("s_lshl_b32 s54, s48, 3\ns_add_u32 s54, s54, s49")
    for u, D in ((0, 224), (1, 236)):
        A(f"s_add_u32 s55, s54, {128*u}")
        A(f"s_mul_hi_u32 s41, s55, {(2**32 + 21)//22}\ns_mul_i32 s42, s41, 22\ns_sub_u32 s42, s55, s42")
        A("s_cmp_lt_u32 s42, 10\ns_cselect_b32 s12, s44, s46\ns_cselect_b32 s13, s45, s47")
        A(f"s_mov_b32 s14, {768*640*2}\ns_cselect_b32 s14, {640*640*2}, s14\ns_mov_b32 s15, 0x20000")
        A("s_cselect_b32 s43, 0, 10\ns_sub_u32 s43, s42, s43")
        A(f"s_mul_i32 s43, s43, {64*1280}\ns_mul_i32 s40, s41, 160\ns_add_u32 s43, s43, s40")
        A(f"s_cmp_ge_u32 s55, 176\ns_cselect_b32 s40, {KILL}, 0\ns_add_u32 s43, s43, s40")
        A(f"buffer_load_dwordx4 v[{D}:{D+3}], v{k_}, s[12:15], s43 offen")
        A(f"buffer_load_dwordx4 v[{D+4}:{D+7}], v{k_}, s[12:15], s43 offen offset:64")
        A(f"buffer_load_dwordx4 v[{D+8}:{D+11}], v{p_}, s[12:15], s43 offen offset:128")

def k1_pack_store(A):
    srd(A, 12, 32, SZ_WP, WS_WP)
    for u, D in ((0, 224), (1, 236)):
        A(f"s_add_u32 s55, s54, {128*u}")
        A(f"s_mul_i32 s41, s55, {5*2048}\ns_cmp_ge_u32 s55, 176\ns_cselect_b32 s42, {KILL}, 0\ns_add_u32 s41, s41, s42")
        A("s_add_u32 s42, s41, 4096\ns_add_u32 s43, s41, 8192")
        A(f"buffer_store_dwordx4 v[{D}:{D+3}], v252, s[12:15], s41 offen{O.k1st}")
        A(f"buffer_store_dwordx4 v[{D+4}:{D+7}], v252, s[12:15], s42 offen{O.k1st}")
        A(f"buffer_store_dwordx4 v[{D+8}:{D+11}], v253, s[12:15], s43 offen{O.k1st}")

def k1_compute_z(A, st):
    G = k1_geom('z'); PSLOT = G['PSLOT']; NPS = 3; TSLOT = G['TSLOT']; R = 6; TBASE = G['TBASE']
    mP = 4; nT = 6; nA = 3
    bP = 2; bT = 6
    F = [16, 16 + 4*(mP+nT)]
    ACC = 16 + 8*(mP+nT)
    A(f"s_and_b32 s20, s16, 1\ns_lshr_b32 s21, s16, 1\ns_mul_i32 s21, s21, {nA}")
    A("v_and_b32 v14, 15, v0\nv_lshrrev_b32 v15, 4, v0\nv_and_b32 v6, 7, v14\nv_xor_b32 v6, v15, v6\nv_lshlrev_b32 v14, 7, v14\nv_lshl_add_u32 v14, v6, 4, v14")
    A(f"s_mul_i32 s22, s20, {mP*2048}")
    A(f"v_add_u32 v{bP}, s22, v14\nv_xor_b32 v{bP+1}, 64, v{bP}")
    A("v_lshrrev_b32 v14, 2, v0\nv_and_b32 v14, 3, v14\nv_lshl_add_u32 v13, v15, 3, v14\nv_lshlrev_b32 v13, 8, v13")
    A("v_and_b32 v12, 3, v0\nv_lshl_add_u32 v13, v12, 3, v13\nv_and_b32 v12, 1, v15\nv_lshl_add_u32 v14, v12, 2, v14")
    A(f"v_add_u32 v15, {TBASE}, v13")
    for tl in range(nA):
        A(f"s_add_u32 s23, s21, {tl}\nv_xor_b32 v13, s23, v14\nv_lshl_add_u32 v{bT+tl}, v13, 5, v15")
    for tl in range(nA): A(f"v_add_u32 v{bT+nA+tl}, 0x10000, v{bT+tl}")
    for i in range(ACC, ACC + 4*mP*nT): A(f"v_mov_b32 v{i}, 0")
    def fP(s, m): return F[s] + 4*m
    def fT(s, t): return F[s] + 4*(mP + t)
    def acc(m, t): return ACC + 4*(m*nT + t)
    def reads(b):
        s = b & 1; kk = b & 1; ps = (b//2) % NPS; ts = b % R
        r = []
        for m in range(mP):
            f = fP(s, m); off = ps*PSLOT + m*2048
            r.append(f"ds_read_b128 v[{f}:{f+3}], v{bP + kk} offset:{off}")
        for t in range(nT):
            f = fT(s, t); tl = t % nA; u = t // nA
            for h in range(2):
                off = ts*TSLOT + u*8192 + h*1024; hi = off >> 16
                r.append(f"ds_read_b64_tr_b16 v[{f+2*h}:{f+2*h+1}], v{bT + tl + nA*hi} offset:{off & 0xffff}")
        return r
    A("s_barrier")
    for x in reads(0): A(x)
    z_oldtags(A, 42)
    A("s_waitcnt lgkmcnt(0)")
    st()
    A("s_barrier")
    TAILM = 6
    def beat(b, last=False):
        s = b & 1
        mf = [f"v_mfma_f32_16x16x32_bf16 v[{acc(m,t)}:{acc(m,t)+3}], v[{fT(s,t)}:{fT(s,t)+3}], v[{fP(s,m)}:{fP(s,m)+3}], v[{acc(m,t)}:{acc(m,t)+3}]" for m in range(mP) for t in range(nT)]
        rd = [] if last else reads(b + 1)
        nfront = len(mf) - TAILM
        for i, x in enumerate(mf):
            A(x)
            if rd: A(rd.pop(0))
            if i == nfront - 1:
                assert not rd
                A("s_waitcnt lgkmcnt(0)\ns_barrier")
    L = "K1z_cloop"
    A("s_mov_b32 s26, 0")
    A.label(L)
    A("s_cmp_eq_u32 s26, 0\ns_cbranch_scc1 K1_z_it")
    A("s_waitcnt vmcnt(0)")
    A("s_cmp_lg_u32 s26, 2\ns_cbranch_scc1 K1_z_it\ns_cmp_lg_u32 s16, 0\ns_cbranch_scc1 K1_z_it")
    srd(A, 12, 50, 256)
    A("s_lshl_b32 s22, s48, 4\nv_mov_b32 v14, s22\nv_mov_b32 v15, 1")
    A("s_mov_b64 exec, 1")
    A("buffer_atomic_add v15, v14, s[12:15], 0 offen sc1")
    A("s_mov_b64 exec, -1")
    A.label("K1_z_it")
    it_top(A)
    for b in range(6): beat(b)
    A(f"s_add_u32 s26, s26, 1\ns_cmp_lt_u32 s26, 3\ns_cbranch_scc1 {L}")
    it_mid(A)
    beat(18); beat(19, last=True)
    it_end(A, 14, 15)
    return acc

def k1_compute_q(A, wm, wn, st):
    G = k1_geom('q'); PSLOT = G['PSLOT']; TSLOT = G['TSLOT']; TBASE = G['TBASE']
    tiles = list(range(0, 8)) if wn == 0 else list(range(8, 15))
    halo = {(0, 0): [5, 6], (1, 0): [7], (0, 1): [8, 9, 10, 11], (1, 1): [12, 13, 14]}[(wm, wn)]
    nT = len(tiles); mP = 5
    F = [16, 16 + 4*(5 + 8)]
    ACC = 16 + 8*(5 + 8)
    A("v_and_b32 v14, 15, v0\nv_lshrrev_b32 v15, 4, v0\nv_and_b32 v6, 7, v14\nv_xor_b32 v6, v15, v6\nv_lshlrev_b32 v14, 7, v14\nv_lshl_add_u32 v2, v6, 4, v14")
    A("v_xor_b32 v3, 64, v2")
    A("v_lshrrev_b32 v6, 1, v15\nv_lshlrev_b32 v6, 4, v6\nv_and_b32 v7, 1, v15\nv_lshl_add_u32 v6, v7, 2, v6")
    A("v_lshrrev_b32 v7, 2, v0\nv_and_b32 v7, 3, v7\nv_add_u32 v6, v6, v7\nv_mul_u32_u24 v6, 480, v6\nv_and_b32 v7, 3, v0\nv_lshl_add_u32 v6, v7, 3, v6")
    A(f"v_add_u32 v4, {TBASE}, v6\nv_add_u32 v5, {TBASE + 3*TSLOT}, v6")
    accs = {}
    n = ACC
    for m in range(4):
        for t in tiles: accs[(m, t)] = n; n += 4
    for t in halo: accs[('h', t)] = n; n += 4
    assert n <= 256, n
    for i in range(ACC, n): A(f"v_mov_b32 v{i}, 0")
    def fP(s, m): return F[s] + 4*m
    def fT(s, t): return F[s] + 4*(5 + tiles.index(t))
    def reads(b):
        s = b & 1; kk = b & 1; ps = (b//2) % 3; ts = b % 6
        r = []
        for m in range(4):
            f = fP(s, m); r.append(f"ds_read_b128 v[{f}:{f+3}], v{2+kk} offset:{ps*PSLOT + (16 + 64*wm + 16*m)*128}")
        f = fP(s, 4); r.append(f"ds_read_b128 v[{f}:{f+3}], v{2+kk} offset:{ps*PSLOT}")
        for t in tiles:
            f = fT(s, t)
            for h in range(2):
                hi = 1 if ts >= 3 else 0
                r.append(f"ds_read_b64_tr_b16 v[{f+2*h}:{f+2*h+1}], v{4+hi} offset:{(ts - 3*hi)*TSLOT + h*8*480 + t*32}")
        return r
    A("s_barrier")
    for x in reads(0): A(x)
    A("s_waitcnt lgkmcnt(0)")
    st()
    A("s_barrier")
    def beat(b, last=False):
        s = b & 1
        mf = []
        for m in range(4):
            for t in tiles:
                a_ = accs[(m, t)]; mf.append(f"v_mfma_f32_16x16x32_bf16 v[{a_}:{a_+3}], v[{fT(s,t)}:{fT(s,t)+3}], v[{fP(s,m)}:{fP(s,m)+3}], v[{a_}:{a_+3}]")
        for t in halo:
            a_ = accs[('h', t)]; mf.append(f"v_mfma_f32_16x16x32_bf16 v[{a_}:{a_+3}], v[{fT(s,t)}:{fT(s,t)+3}], v[{fP(s,4)}:{fP(s,4)+3}], v[{a_}:{a_+3}]")
        rd = [] if last else reads(b + 1)
        nfront = len(mf) - 8
        for i, x in enumerate(mf):
            A(x)
            if rd: A(rd.pop(0))
            if i == nfront - 1:
                assert not rd, (len(rd), nfront)
                A("s_waitcnt lgkmcnt(0)\ns_barrier")
    L = f"K1q{wm}{wn}_cloop"
    A("s_mov_b32 s26, 0")
    A.label(L)
    it_top(A)
    for b in range(6):
        if O.itstamp: A(f"s_memtime s[76:77]\ns_waitcnt lgkmcnt(0)\ns_cmp_eq_u32 s26, 0\ns_cselect_b32 s{85+b}, s76, s{85+b}")
        beat(b)
    A(f"s_add_u32 s26, s26, 1\ns_cmp_lt_u32 s26, 3\ns_cbranch_scc1 {L}")
    it_mid(A)
    beat(18); beat(19, last=True)
    it_end(A, 14, 15)
    st()
    A(f"v_and_b32 v6, 15, v0\nv_mul_u32_u24 v6, {QP}, v6\nv_lshrrev_b32 v7, 4, v0\nv_lshl_add_u32 v6, v7, 3, v6")
    k = 0
    items = list(accs.items())
    for (key, a_) in items:
        A(f"v_cvt_pk_bf16_f32 v{16+2*k}, v{a_}, v{a_+1}\nv_cvt_pk_bf16_f32 v{17+2*k}, v{a_+2}, v{a_+3}")
        k += 1
    A(f"v_add_u32 v7, 0x8000, v6")
    k = 0
    for (key, a_) in items:
        m, t = key
        row = 0 if m == 'h' else 16 + 64*wm + 16*m
        off = row*QP + t*32
        if off < 65536: A(f"ds_write_b64 v6, v[{16+2*k}:{17+2*k}] offset:{off}")
        else: A(f"ds_write_b64 v7, v[{16+2*k}:{17+2*k}] offset:{off - 0x8000}")
        k += 1

def rot_table(A):
    A(f"s_and_b32 s28, s28, 3\ns_lshl_b32 s28, s28, 2\ns_lshr_b32 s28, {O.rottab if O.rot else 0}, s28\ns_and_b32 s28, s28, 15")

def k1(A):
    name = "k1_kernel"
    kernel_begin(A, name)
    A("s_cmp_ge_u32 s2, 256\ns_cbranch_scc1 K1_end")
    load_ptr(A, 30, 'x'); load_ptr(A, 32, 'ws'); load_ptr(A, 34, 'wqkv'); load_ptr(A, 36, 'win')
    load_ptr(A, 38, 'gw'); load_ptr(A, 44, 'wo'); load_ptr(A, 46, 'wout'); load_ptr(A, 52, 'wsp'); load_ptr(A, 50, 'dbg')
    wave_lane(A, 16)
    hd_start(A)
    st = Stamps(A, 0); st()
    A("s_and_b32 s40, s2, 7\ns_lshr_b32 s41, s2, 3\ns_and_b32 s48, s40, 1\ns_lshl_b32 s48, s48, 3\ns_and_b32 s42, s41, 7\ns_add_u32 s48, s48, s42")
    A("s_lshr_b32 s49, s40, 1\ns_lshl_b32 s49, s49, 1\ns_lshr_b32 s43, s41, 3\ns_and_b32 s43, s43, 1\ns_add_u32 s49, s49, s43")
    A("s_lshl_b32 s28, s43, 1\ns_add_u32 s28, s28, s42")
    rot_table(A)
    A("s_cmp_lt_u32 s41, 16\ns_cbranch_scc1 K1_ztype")
    A("s_waitcnt lgkmcnt(0)")
    A("s_cmp_lt_u32 s16, 4\ns_cbranch_scc1 K1_qcomp")
    srd(A, 4, 30, 2048*640*2); srd(A, 8, 34, 640*1920*2)
    A("s_cmp_eq_u32 s16, 7\ns_cbranch_scc1 K1_qload3")
    k1_loader_q(A, False)
    A("s_branch K1_att")
    A.label("K1_qload3")
    k1_loader_q(A, True)
    A("s_branch K1_att")
    A.label("K1_qcomp")
    st()
    srd(A, 12, 32, SZ_FL, WS_FL)
    A("s_lshl_b32 s20, s48, 3\ns_add_u32 s20, s20, s49\ns_lshl_b32 s20, s20, 5\nv_lshlrev_b32 v14, 2, v0\nv_mov_b32 v15, 0")
    A("s_mov_b64 exec, 0xff")
    A("buffer_store_dword v15, v14, s[12:15], s20 offen")
    A("s_mov_b64 exec, -1")
    A("s_cmp_eq_u32 s16, 1\ns_cbranch_scc1 K1_q10\ns_cmp_eq_u32 s16, 2\ns_cbranch_scc1 K1_q01\ns_cmp_eq_u32 s16, 3\ns_cbranch_scc1 K1_q11")
    for (wm, wn) in ((0, 0), (1, 0), (0, 1), (1, 1)):
        if (wm, wn) != (0, 0): A.label(f"K1_q{wm}{wn}")
        stv = Stamps(A, 0, 2)
        k1_compute_q(A, wm, wn, stv)
        if (wm, wn) != (1, 1): A("s_branch K1_att")
    A.label("K1_att")
    st3 = Stamps(A, 0, 4)
    AV = 100
    A(f"s_and_b32 s46, s16, 3\ns_lshr_b32 s47, s16, 2\ns_mul_i32 s45, s46, 40\ns_mul_i32 s43, s47, {64*QP}\ns_add_u32 s45, s45, s43")
    A("s_or_b32 s43, s48, s47")
    attention_prep(A, AV, 45)
    T = 86
    A(f"s_lshl_b32 s20, s16, 6\nv_add_u32 v{T}, s20, v0")
    for i in range(3):
        c, r, q, la, ga = T+1, T+2, T+3, T+4+2*i, T+5+2*i
        A(f"v_add_u32 v{c}, {512*i}, v{T}")
        A(f"v_mul_u32_u24 v{r}, 6554, v{c}\nv_lshrrev_b32 v{r}, 16, v{r}")
        A(f"v_mul_u32_u24 v{q}, 10, v{r}\nv_sub_u32 v{q}, v{c}, v{q}")
        A(f"v_mul_u32_u24 v{la}, {QP}, v{r}\nv_lshl_add_u32 v{la}, v{q}, 4, v{la}\nv_add_u32 v{la}, {16*QP}, v{la}")
        A(f"s_lshl_b32 s20, s48, 7\nv_add_u32 v{ga}, s20, v{r}\nv_mul_u32_u24 v{ga}, 2816, v{ga}\nv_lshl_add_u32 v{ga}, v{q}, 4, v{ga}")
        A(f"s_mul_i32 s20, s49, 160\nv_add_u32 v{ga}, s20, v{ga}")
        if i == 2:
            A(f"v_mov_b32 v{q}, {KILL}\nv_cmp_le_u32 vcc, 1280, v{c}\nv_cndmask_b32 v{ga}, v{ga}, v{q}, vcc")
            A(f"v_mov_b32 v{q}, 0\nv_cndmask_b32 v{la}, v{la}, v{q}, vcc")
    srd(A, 12, 32, SZ_AU, WS_AU)
    A("s_waitcnt lgkmcnt(0)\ns_barrier")
    st3()
    attention_main(A, AV, 43)
    A("s_waitcnt lgkmcnt(0)\ns_barrier")
    st3()
    D = 16
    for i in range(3):
        A(f"ds_read_b64 v[{D+4*i}:{D+4*i+1}], v{T+4+2*i}\nds_read_b64 v[{D+4*i+2}:{D+4*i+3}], v{T+4+2*i} offset:8")
    A("s_waitcnt lgkmcnt(0)")
    for i in range(3): A(f"buffer_store_dwordx4 v[{D+4*i}:{D+4*i+3}], v{T+5+2*i}, s[12:15], 0 offen{O.k1st}")
    if O.stamp:
        A("s_cmp_ge_u32 s16, 4\ns_cbranch_scc1 K1_end")
        A("s_waitcnt vmcnt(0)")
    st3(); st3.flush(16, 32)
    hd_end(A, 32, 1, 128, 60)
    A("s_branch K1_end")
    A.label("K1_ztype")
    A(f"s_mul_i32 s17, s48, {128*1280}")
    A("s_mul_i32 s19, s49, 192\ns_add_u32 s18, s19, 1536")
    A("s_waitcnt lgkmcnt(0)")
    A("s_cmp_lt_u32 s16, 4\ns_cbranch_scc1 K1_zcomp")
    srd(A, 4, 30, 2048*640*2); srd(A, 8, 36, 640*1536*2)
    k1_loader_z(A)
    ACCZ = 96
    A("s_barrier")
    A("s_sub_u32 s20, s16, 4\ns_mul_i32 s20, s20, 12288\nv_lshlrev_b32 v4, 4, v0\nv_add_u32 v4, s20, v4")
    for k in range(12): A(f"ds_read_b128 v[{ACCZ+4*k}:{ACCZ+4*k+3}], v4 offset:{k*1024}")
    A("s_waitcnt lgkmcnt(0)")
    A("s_branch K1_zepi")
    A.label("K1_zcomp")
    st2 = Stamps(A, 0, 1); st2()
    acc = k1_compute_z(A, st2)
    st2()
    assert acc(0, 0) == ACCZ
    A("s_mul_i32 s20, s16, 12288\nv_lshlrev_b32 v4, 4, v0\nv_add_u32 v4, s20, v4")
    for k in range(12): A(f"ds_write_b128 v4, v[{acc(2,0)+4*k}:{acc(2,0)+4*k+3}] offset:{k*1024}")
    A("s_waitcnt lgkmcnt(0)\ns_barrier")
    A.label("K1_zepi")
    A("s_and_b32 s20, s16, 1\ns_lshr_b32 s21, s16, 1\ns_and_b32 s21, s21, 1\ns_lshr_b32 s59, s16, 2")
    A("s_lshl_b32 s58, s20, 1\ns_add_u32 s58, s58, s59")
    A(f"s_mov_b32 s56, {f2u(C1)}\ns_mov_b32 s57, {f2u(C1)}")
    A(f"v_mov_b32 v6, {f2u(C0)}\nv_mov_b32 v7, {f2u(C0)}")
    z2 = [acc(m, t) + 2*q for m in range(2) for t in range(3) for q in range(2)]
    z1 = [acc(m, t) + 2*q for m in range(2) for t in range(3, 6) for q in range(2)]
    srd(A, 12, 50, 256)
    A("s_lshl_b32 s22, s48, 4\nv_mov_b32 v8, s22")
    A("buffer_load_dword v9, v8, s[12:15], 0 offen sc1")
    st2()
    gelu_pk(A, z2, 16, 56)
    A("s_waitcnt vmcnt(0)")
    st2()
    S = 70
    for m in range(2):
        vals = [acc(m, t) + r for t in range(3) for r in range(4)]
        A(f"v_pk_add_f32 v[{S+2*m}:{S+2*m+1}], v[{vals[0]}:{vals[1]}], v[{vals[2]}:{vals[3]}]")
        A(f"v_pk_mul_f32 v[{S+4+2*m}:{S+4+2*m+1}], v[{vals[0]}:{vals[1]}], v[{vals[0]}:{vals[1]}]")
        A(f"v_pk_fma_f32 v[{S+4+2*m}:{S+4+2*m+1}], v[{vals[2]}:{vals[3]}], v[{vals[2]}:{vals[3]}], v[{S+4+2*m}:{S+4+2*m+1}]")
        for q in range(2, 6):
            A(f"v_pk_add_f32 v[{S+2*m}:{S+2*m+1}], v[{S+2*m}:{S+2*m+1}], v[{vals[2*q]}:{vals[2*q+1]}]")
            A(f"v_pk_fma_f32 v[{S+4+2*m}:{S+4+2*m+1}], v[{vals[2*q]}:{vals[2*q+1]}], v[{vals[2*q]}:{vals[2*q+1]}], v[{S+4+2*m}:{S+4+2*m+1}]")
    for m in range(2):
        A(f"v_add_f32 v{S+2*m}, v{S+2*m}, v{S+2*m+1}\nv_add_f32 v{S+2*m+1}, v{S+4+2*m}, v{S+4+2*m+1}")
    for i in range(4): A(f"v_mov_b32 v{S+4+i}, v{S+i}")
    for i in range(4): A(f"v_permlane16_swap_b32 v{S+i}, v{S+4+i}")
    for i in range(4): A(f"v_add_f32 v{S+i}, v{S+i}, v{S+4+i}")
    for i in range(4): A(f"v_mov_b32 v{S+4+i}, v{S+i}")
    for i in range(4): A(f"v_permlane32_swap_b32 v{S+i}, v{S+4+i}")
    for i in range(4): A(f"v_add_f32 v{S+i}, v{S+i}, v{S+4+i}")
    A("v_lshrrev_b32 v3, 4, v0")
    A(f"v_and_b32 v5, 16, v0\nv_cmp_ne_u32 vcc, 0, v5\nv_cndmask_b32 v{S}, v{S}, v{S+2}, vcc\nv_cndmask_b32 v{S+1}, v{S+1}, v{S+3}, vcc")
    A("v_lshlrev_b32 v4, 3, v0\ns_lshl_b32 s22, s16, 9\ns_add_u32 s22, s22, 49152\nv_add_u32 v5, s22, v4")
    A(f"ds_write_b64 v5, v[{S}:{S+1}]")
    A("s_waitcnt lgkmcnt(0)\ns_barrier")
    A("v_xor_b32 v5, 1024, v5")
    A(f"ds_read_b64 v[{S+2}:{S+3}], v5")
    srd(A, 8, 32, SZ_ST, WS_ST)
    A("s_lshl_b32 s22, s49, 15\ns_lshl_b32 s23, s48, 11\ns_add_u32 s22, s22, s23\ns_lshl_b32 s23, s58, 9\ns_add_u32 s22, s22, s23")
    A("s_waitcnt lgkmcnt(0)")
    A(f"v_add_f32 v{S}, v{S}, v{S+2}\nv_add_f32 v{S+1}, v{S+1}, v{S+3}")
    st2()
    A("s_cmp_lg_u32 s21, 0\ns_cbranch_scc1 K1_z_nostat")
    A("s_mov_b32 s24, 0")
    A.label("K1_regpoll")
    A("v_readfirstlane_b32 s25, v9\ns_cmp_ge_u32 s25, 8\ns_cbranch_scc1 K1_regok")
    A("buffer_load_dword v9, v8, s[12:15], 0 offen sc1\ns_waitcnt vmcnt(0)")
    A("s_add_u32 s24, s24, 1\ns_cmp_lt_u32 s24, 0x40000\ns_cbranch_scc1 K1_regpoll")
    A.label("K1_regok")
    A(f"v_add_u32 v{S+2}, 1, v{OT}\nv_mov_b32 v{S+3}, v{OT+1}\nv_lshlrev_b32 v4, 4, v0")
    A("v_cmp_gt_u32 vcc, 32, v0\ns_and_saveexec_b64 s[24:25], vcc")
    A(f"buffer_store_dwordx4 v[{S}:{S+3}], v4, s[8:11], s22 offen sc1")
    A("s_mov_b64 exec, s[24:25]")
    A("s_or_b32 s22, s49, s16\ns_cmp_lg_u32 s22, 0\ns_cbranch_scc1 K1_z_nostat")
    srd(A, 4, 32, SZ_EP, WS_EP)
    A(f"s_lshl_b32 s22, s48, 7\nv_mov_b32 v4, s22\ns_mov_b64 exec, 1")
    A(f"buffer_store_dwordx2 v[{S+2}:{S+3}], v4, s[4:7], 0 offen sc1")
    A("s_mov_b64 exec, -1")
    A.label("K1_z_nostat")
    st2()
    A("s_cmp_ge_u32 s16, 4\ns_cbranch_scc1 K1_sj_pack")
    z_gate_load(A)
    A(f"v_mov_b32 v252, {KILL}\nv_mov_b32 v253, {KILL}\ns_mov_b32 s54, 0")
    A("s_branch K1_sj_done")
    A.label("K1_sj_pack")
    A("v_mov_b32 v146, 0")
    k1_pack_load(A)
    A.label("K1_sj_done")
    gelu_pk(A, z1, 16, 56)
    A("s_lshl_b32 s22, s48, 2\ns_add_u32 s22, s22, s58\ns_mul_i32 s22, s22, 48")
    A("s_mul_i32 s23, s49, 6\ns_add_u32 s22, s22, s23\ns_mul_i32 s23, s21, 3\ns_add_u32 s22, s22, s23\ns_lshl_b32 s26, s22, 10")
    A("v_lshlrev_b32 v11, 4, v0")
    Q = 200
    for t in range(3):
        d = Q + 4*t; a0 = acc(0, 3+t); a1 = acc(1, 3+t)
        A(f"v_cvt_pk_bf16_f32 v{d}, v{a0}, v{a0+1}\nv_cvt_pk_bf16_f32 v{d+1}, v{a0+2}, v{a0+3}\nv_cvt_pk_bf16_f32 v{d+2}, v{a1}, v{a1+1}\nv_cvt_pk_bf16_f32 v{d+3}, v{a1+2}, v{a1+3}")
    st2()
    A("s_lshl_b32 s22, s48, 11\ns_lshl_b32 s23, s58, 9\ns_add_u32 s22, s22, s23")
    A("v_and_b32 v4, 31, v0\nv_lshlrev_b32 v4, 4, v4")
    A(f"v_add_u32 v{OT}, 1, v{OT}")
    A("s_mov_b32 s24, 0")
    A.label("K1_poll")
    for jj in range(8):
        A(f"s_add_u32 s23, s22, {jj*32768}")
        A(f"buffer_load_dwordx4 v[{16+4*jj}:{19+4*jj}], v4, s[8:11], s23 offen sc1")
    A("s_waitcnt vmcnt(0)")
    A(f"v_xor_b32 v48, v18, v{OT}\nv_xor_b32 v49, v19, v{OT+1}\nv_or_b32 v48, v48, v49")
    for jj in range(1, 8): A(f"v_xor_b32 v49, v{18+4*jj}, v{OT}\nv_xor_b32 v50, v{19+4*jj}, v{OT+1}\nv_or3_b32 v48, v48, v49, v50")
    A("v_cmp_ne_u32 vcc, 0, v48")
    A("s_add_u32 s24, s24, 1\ns_nop 3")
    A("s_cbranch_vccz K1_polled")
    A(f"s_sleep {O.sleep}")
    A("s_cmp_lt_u32 s24, 0x10000\ns_cbranch_scc1 K1_poll")
    A.label("K1_polled")
    st2()
    srd(A, 4, 32, SZ_Z1, WS_Z1)
    for t in range(3): A(f"buffer_store_dwordx4 v[{Q+4*t}:{Q+4*t+3}], v11, s[4:7], s26 offen offset:{t*1024}{O.k1st}")
    A("s_cmp_lt_u32 s16, 4\ns_cbranch_scc1 K1_nopack")
    k1_pack_store(A)
    A("s_branch K1_packed")
    A.label("K1_nopack")
    z_gate_finish(A)
    A.label("K1_packed")
    srd(A, 12, 32, SZ_Z2P, WS_Z2P)
    A("s_lshl_b32 s22, s49, 5\ns_lshl_b32 s23, s48, 1\ns_add_u32 s22, s22, s23\ns_add_u32 s22, s22, s20\ns_mul_i32 s22, s22, 6")
    A("s_mul_i32 s23, s21, 3\ns_add_u32 s22, s22, s23\ns_lshl_b32 s22, s22, 11\ns_lshl_b32 s23, s59, 10\ns_add_u32 s22, s22, s23")
    A("v_and_b32 v6, 15, v0\nv_and_b32 v7, 3, v6\nv_and_b32 v10, 4, v6\nv_lshl_or_b32 v7, v10, 1, v7\nv_and_b32 v10, 8, v6\nv_lshrrev_b32 v10, 1, v10\nv_or_b32 v7, v7, v10")
    A("v_and_b32 v10, 1, v3\nv_lshl_add_u32 v7, v10, 4, v7\nv_lshlrev_b32 v7, 5, v7\nv_lshrrev_b32 v10, 1, v3\nv_lshl_add_u32 v10, v10, 4, v7")
    for jj in range(1, 8): A(f"v_add_f32 v16, v16, v{16+4*jj}\nv_add_f32 v17, v17, v{17+4*jj}")
    A(f"v_mul_f32 v16, {f2u(1/768)}, v16\nv_mul_f32 v17, {f2u(1/768)}, v17")
    A("v_fma_f32 v17, -v16, v16, v17\nv_max_f32 v17, 0, v17")
    A(f"v_add_f32 v17, {f2u(1e-5)}, v17\nv_rsq_f32 v17, v17")
    A("v_mul_f32 v16, v16, v17\nv_sub_f32 v16, 0, v16")
    A("v_and_b32 v5, 15, v0\nv_lshlrev_b32 v5, 2, v5")
    for m in range(2):
        A(f"v_add_u32 v8, {64*m}, v5")
        A(f"ds_bpermute_b32 v{32+2*m}, v8, v17\nds_bpermute_b32 v{33+2*m}, v8, v16")
    A("s_waitcnt lgkmcnt(0)")
    PK = 44
    for m in range(2):
        for t in range(3):
            a_ = acc(m, t)
            for r in range(4): A(f"v_fma_f32 v{a_+r}, v{a_+r}, v{32+2*m}, v{33+2*m}")
    for t in range(3):
        d = PK + 4*t; a0 = acc(0, t); a1 = acc(1, t)
        A(f"v_cvt_pk_bf16_f32 v{d}, v{a0}, v{a0+1}\nv_cvt_pk_bf16_f32 v{d+1}, v{a0+2}, v{a0+3}\nv_cvt_pk_bf16_f32 v{d+2}, v{a1}, v{a1+1}\nv_cvt_pk_bf16_f32 v{d+3}, v{a1+2}, v{a1+3}")
    for t in range(3):
        d = PK + 4*t
        A(f"v_permlane16_swap_b32 v{d}, v{d+2}\nv_permlane16_swap_b32 v{d+1}, v{d+3}")
    for t in range(3):
        A(f"s_add_u32 s23, s22, {t*2048}")
        A(f"buffer_store_dwordx4 v[{PK+4*t}:{PK+4*t+3}], v10, s[12:15], s23 offen{O.k1st}")
    if O.stamp:
        A("s_cmp_ge_u32 s16, 4\ns_cbranch_scc1 K1_end")
    st2(); st2.flush(16, 32)
    hd_end(A, 32, 0, 0, 60)
    A.label("K1_end")
    A("s_endpgm")
    return name, 256, 512, 147456, 256

SLOT = 20480
class E2:
    def __init__(self, A, pfx, NT, nsteps, pitchP, wave_m, wave_n, NS=6):
        self.A = A; self.pfx = pfx; self.NT = NT; self.n = nsteps; self.pitchP = pitchP
        self.mP = wave_m; self.nT = wave_n; self.NS = NS
        self.F = [8, 8 + 8*(wave_m + wave_n)]
        self.ACC = 8 + 16*(wave_m + wave_n)
        self.vend = self.ACC + 4*wave_m*wave_n
    def fP(self, s, kk, m): return self.F[s] + 4*(kk*(self.mP+self.nT) + m)
    def fT(self, s, kk, t): return self.F[s] + 4*(kk*(self.mP+self.nT) + self.mP + t)
    def acc(self, m, t): return self.ACC + 4*(m*self.nT + t)
    def loader_setup(self):
        A = self.A
        A("s_sub_u32 s21, s16, 4")
        A("v_lshrrev_b32 v7, 3, v0\nv_and_b32 v2, 7, v0\nv_xor_b32 v2, v2, v7")
        A(f"s_mov_b32 s20, {self.pitchP}\nv_mul_lo_u32 v7, v7, s20\nv_lshl_add_u32 v2, v2, 4, v7\nv_lshlrev_b32 v3, 4, v0")
        A(f"s_mul_i32 s20, s21, {16*self.pitchP}\ns_add_u32 s23, s17, s20")
        A("s_mul_i32 s20, s21, 3072\ns_add_u32 s24, s18, s20\ns_add_u32 s26, s20, 8192\ns_lshl_b32 s27, s21, 11")
        A("s_mov_b32 s28, 0\ns_mov_b32 s29, 0")
        if 2*self.NT < 12:
            A(f"s_mul_i32 s20, s21, 3\ns_cmp_ge_u32 s20, {2*self.NT - 1}\ns_cselect_b32 s28, {KILL}, 0\ns_cmp_ge_u32 s20, {2*self.NT - 2}\ns_cselect_b32 s29, {KILL}, 0")
        A("s_mov_b32 s22, 0")
    def issue(self):
        A = self.A
        A("s_add_u32 m0, s22, s27")
        A(f"s_add_u32 s20, s23, {8*self.pitchP - 1024}")
        A("buffer_load_dwordx4 v2, s[4:7], s23 offen lds")
        A("buffer_load_dwordx4 v2, s[4:7], s20 offen offset:1024 lds")
        A("s_add_u32 m0, s22, s26")
        if 2*self.NT < 12:
            A("s_add_u32 s25, s24, s28\ns_add_u32 s15, s24, s29")
            A("buffer_load_dwordx4 v3, s[8:11], s24 offen lds")
            A("buffer_load_dwordx4 v3, s[8:11], s25 offen offset:1024 lds")
            A("buffer_load_dwordx4 v3, s[8:11], s15 offen offset:2048 lds")
        else:
            A("buffer_load_dwordx4 v3, s[8:11], s24 offen lds")
            A("buffer_load_dwordx4 v3, s[8:11], s24 offen offset:1024 lds")
            A("buffer_load_dwordx4 v3, s[8:11], s24 offen offset:2048 lds")
        A(f"s_add_u32 s23, s23, 128\ns_add_u32 s24, s24, {self.NT*2048}")
        A(f"s_add_u32 s22, s22, {SLOT}\ns_cmp_eq_u32 s22, {self.NS*SLOT}\ns_cselect_b32 s22, 0, s22")
    def loader_main(self, pre_issued):
        A = self.A; NS = self.NS; n = self.n
        for i in range(pre_issued, NS - 1): self.issue()
        A(f"s_waitcnt vmcnt({(NS - 2)*5})")
        A("s_barrier")
        self.issue()
        L = self.pfx + "_lloop"
        A("s_mov_b32 s14, 0")
        A.label(L)
        A(f"s_waitcnt vmcnt({(NS-2)*5})\ns_barrier")
        self.issue()
        A(f"s_add_u32 s14, s14, 1\ns_cmp_lt_u32 s14, {n - NS}\ns_cbranch_scc1 {L}")
        for t in range(NS):
            i = n - NS + t
            rem = max(0, (n - 1) - (i + 1))
            A(f"s_waitcnt vmcnt({rem*5})\ns_barrier")
    def compute_setup(self, s_row, s_tile):
        A = self.A
        A("v_and_b32 v4, 15, v0\nv_lshrrev_b32 v5, 4, v0\nv_and_b32 v6, 7, v4\nv_xor_b32 v5, v5, v6\nv_lshlrev_b32 v4, 7, v4\nv_lshl_add_u32 v4, v5, 4, v4")
        A(f"s_lshl_b32 s20, s{s_row}, 7\nv_add_u32 v2, s20, v4\nv_xor_b32 v3, 64, v2")
        A("v_and_b32 v6, 15, v0\nv_lshlrev_b32 v6, 3, v6\nv_and_b32 v7, 16, v0\nv_lshl_add_u32 v6, v7, 3, v6\nv_and_b32 v7, 32, v0\nv_lshl_add_u32 v6, v7, 4, v6")
        A(f"s_lshl_b32 s20, s{s_tile}, 11\ns_add_u32 s20, s20, 8192\nv_add_u32 v4, s20, v6")
        A(f"v_add_u32 v5, {3*SLOT}, v2\nv_add_u32 v6, {3*SLOT}, v3\nv_add_u32 v7, {3*SLOT}, v4")
        for i in range(self.ACC, self.vend): A(f"v_mov_b32 v{i}, 0")
    def reads(self, step):
        s = step & 1; sl = step % self.NS; hi = 3 if sl >= 3 else 0; so = (sl - hi)*SLOT
        b = 3 if hi else 0
        r = []
        for kk in range(2):
            for m in range(self.mP):
                f = self.fP(s, kk, m); r.append(f"ds_read_b128 v[{f}:{f+3}], v{2+kk+b} offset:{so + m*2048}")
            for t in range(self.nT):
                f = self.fT(s, kk, t)
                for h in range(2): r.append(f"ds_read_b64_tr_b16 v[{f+2*h}:{f+2*h+1}], v{4+b} offset:{so + t*2048 + kk*1024 + h*256}")
        return r
    def step(self, i, last=False):
        A = self.A; s = i & 1
        rd = [] if last else self.reads(i + 1)
        mf = [f"v_mfma_f32_16x16x32_bf16 v[{self.acc(m,t)}:{self.acc(m,t)+3}], v[{self.fT(s,kk,t)}:{self.fT(s,kk,t)+3}], v[{self.fP(s,kk,m)}:{self.fP(s,kk,m)+3}], v[{self.acc(m,t)}:{self.acc(m,t)+3}]"
              for kk in range(2) for m in range(self.mP) for t in range(self.nT)]
        A("s_barrier")
        per = (len(rd) + len(mf) - 1)//len(mf) if rd else 0
        for x in mf:
            for _ in range(per):
                if rd: A(rd.pop(0))
            A(x)
        A("s_waitcnt lgkmcnt(0)")
    def compute(self, st, unroll=False, hooks=None):
        A = self.A; NS = self.NS; n = self.n
        assert NS % 2 == 0
        A("s_barrier")
        for x in self.reads(0): A(x)
        A("s_waitcnt lgkmcnt(0)")
        st()
        if unroll:
            for i in range(n):
                self.step(i, last=(i == n - 1))
                if hooks and i in hooks: hooks[i]()
            return
        nfull = (n - 1)//NS
        L = self.pfx + "_cloop"
        A("s_mov_b32 s19, 0")
        A.label(L)
        for i in range(NS): self.step(i)
        A(f"s_add_u32 s19, s19, 1\ns_cmp_lt_u32 s19, {nfull}\ns_cbranch_scc1 {L}")
        for i in range(nfull*NS, n): self.step(i, last=(i == n - 1))

def tile_map(A):
    A("s_and_b32 s42, s2, 7\ns_lshr_b32 s43, s2, 3\ns_lshr_b32 s40, s42, 1\ns_lshl_b32 s40, s40, 3\ns_and_b32 s44, s43, 7\ns_add_u32 s40, s40, s44")
    A("s_and_b32 s41, s42, 1\ns_lshl_b32 s41, s41, 2\ns_lshr_b32 s44, s43, 3\ns_add_u32 s41, s41, s44")

ATT_LDS = 6*SLOT
def attention_regs(V):
    R = dict(aQ=V+1, aK=V+2, aV=V+3, t0=V+4, t1=V+5, t2=V+6, M20=V+7, M21=V+8, N20=V+9, N21=V+10)
    S = (V + 12 + 3)//4*4
    R.update(S=S, QF=S+12, KF=S+22, VF=S+52, OO=(S+82+3)//4*4)
    return R
def attention_prep(A, V, s_off):
    R = attention_regs(V); aQ, aK, aV, t0, t1, t2 = R['aQ'], R['aK'], R['aV'], R['t0'], R['t1'], R['t2']
    M20, M21, N20, N21, S, OO = R['M20'], R['M21'], R['N20'], R['N21'], R['S'], R['OO']
    A(f"v_lshrrev_b32 v{t0}, 3, v0\nv_lshlrev_b32 v{t0}, 2, v{t0}\nv_and_b32 v{t1}, 3, v0\nv_add_u32 v{t0}, v{t0}, v{t1}")
    A(f"v_lshrrev_b32 v{t1}, 2, v0\nv_and_b32 v{t1}, 1, v{t1}\nv_lshl_add_u32 v{t0}, v{t0}, 1, v{t1}")
    A(f"v_mul_u32_u24 v{t0}, {QP}, v{t0}\nv_add_u32 v{aK}, s{s_off}, v{t0}\nv_add_u32 v{aQ}, {16*QP}, v{aK}")
    A(f"v_lshrrev_b32 v{t1}, 4, v0\nv_lshlrev_b32 v{t1}, 2, v{t1}\nv_and_b32 v{t2}, 3, v0\nv_add_u32 v{t1}, v{t1}, v{t2}")
    A(f"v_lshrrev_b32 v{t2}, 1, v{t1}\nv_lshlrev_b32 v{t2}, 2, v{t2}\nv_and_b32 v{t1}, 1, v{t1}")
    A(f"v_lshrrev_b32 v{aV}, 2, v0\nv_and_b32 v{aV}, 3, v{aV}\nv_add_u32 v{aV}, v{aV}, v{t2}\nv_lshl_add_u32 v{aV}, v{aV}, 1, v{t1}")
    A(f"v_mul_u32_u24 v{aV}, {QP}, v{aV}\nv_add_u32 v{aV}, s{s_off}, v{aV}")
    A(f"v_and_b32 v{t1}, 3, v0")
    A(f"v_mov_b32 v{M20}, 0xffff\nv_mov_b32 v{t2}, -1\nv_cmp_le_u32 vcc, 1, v{t1}\nv_cndmask_b32 v{M20}, v{M20}, v{t2}, vcc")
    A(f"v_mov_b32 v{M21}, 0\nv_mov_b32 v{t2}, 0xffff\nv_cmp_le_u32 vcc, 2, v{t1}\nv_cndmask_b32 v{M21}, v{M21}, v{t2}, vcc")
    A(f"v_mov_b32 v{t2}, -1\nv_cmp_eq_u32 vcc, 3, v{t1}\nv_cndmask_b32 v{M21}, v{M21}, v{t2}, vcc")
    A(f"v_not_b32 v{N20}, v{M20}\nv_not_b32 v{N21}, v{M21}")
    for i in range(12): A(f"v_mov_b32 v{S+i}, 0")
    for i in range(20): A(f"v_mov_b32 v{OO+i}, 0")
    A("s_mov_b32 s22, 0xeeeeeeee\ns_mov_b32 s23, 0xeeeeeeee\ns_mov_b32 s24, 0xcccccccc\ns_mov_b32 s25, 0xcccccccc\ns_mov_b32 s26, 0x88888888\ns_mov_b32 s27, 0x88888888")
def attention_main(A, V, s_bound):
    R = attention_regs(V); aQ, aK, aV, t0, t1, t2 = R['aQ'], R['aK'], R['aV'], R['t0'], R['t1'], R['t2']
    M20, M21, N20, N21, S, QF, KF, VF, OO = R['M20'], R['M21'], R['N20'], R['N21'], R['S'], R['QF'], R['KF'], R['VF'], R['OO']
    for dg in range(5):
        A(f"ds_read_b64 v[{QF+2*dg}:{QF+2*dg+1}], v{aQ} offset:{8*dg}")
        for c in range(3): A(f"ds_read_b64 v[{KF+2*(5*c+dg)}:{KF+2*(5*c+dg)+1}], v{aK} offset:{8*c*QP + 160 + 8*dg}")
    for dg in range(5):
        if dg == 0:
            A("s_waitcnt lgkmcnt(15)")
        rem = 20 - 4*(dg+1)
        A(f"s_waitcnt lgkmcnt({min(rem, 15)})")
        for c in range(3):
            A(f"v_mfma_f32_4x4x4_16b_bf16 v[{S+4*c}:{S+4*c+3}], v[{KF+2*(5*c+dg)}:{KF+2*(5*c+dg)+1}], v[{QF+2*dg}:{QF+2*dg+1}], v[{S+4*c}:{S+4*c+3}]")
    for c in range(3):
        for dg in range(5): A(f"ds_read_b64_tr_b16 v[{VF+2*(5*c+dg)}:{VF+2*(5*c+dg)+1}], v{aV} offset:{8*c*QP + 320 + 8*dg}")
    Lb = A.newlabel("att_nomask")
    A(f"s_cmp_lg_u32 s{s_bound}, 0\ns_cbranch_scc1 {Lb}")
    A(f"v_mov_b32 v{t2}, {f2u(-1e30)}")
    A("v_cmp_gt_u32 vcc, 16, v0")
    for i in range(4): A(f"v_cndmask_b32 v{S+i}, v{S+i}, v{t2}, vcc")
    A("v_cmp_gt_u32 vcc, 8, v0")
    for i in range(4): A(f"v_cndmask_b32 v{S+4+i}, v{S+4+i}, v{t2}, vcc")
    A("s_nop 4")
    A.label(Lb)
    A("s_nop 4")
    for i in range(1, 4): A(f"v_cndmask_b32 v{S+8+i}, v{S+i}, v{S+8+i}, s[{20+2*i}:{21+2*i}]")
    vals = [S+4+i for i in range(8)]
    A(f"v_max3_f32 v{t0}, v{vals[0]}, v{vals[1]}, v{vals[2]}\nv_max3_f32 v{t1}, v{vals[3]}, v{vals[4]}, v{vals[5]}\nv_max3_f32 v{t0}, v{t0}, v{vals[6]}, v{vals[7]}\nv_max_f32 v{t0}, v{t0}, v{t1}")
    SC = (20 ** -0.5) * 1.4426950408889634
    A(f"s_mov_b32 s20, {f2u(SC)}")
    A(f"v_mul_f32 v{t0}, s20, v{t0}")
    for x in vals: A(f"v_fma_f32 v{x}, v{x}, s20, -v{t0}")
    for x in vals: A(f"v_exp_f32 v{x}, v{x}")
    A(f"v_add_f32 v{t0}, v{vals[0]}, v{vals[1]}\nv_add_f32 v{t1}, v{vals[2]}, v{vals[3]}\nv_add_f32 v{t2}, v{vals[4]}, v{vals[5]}\nv_add_f32 v{t0}, v{t0}, v{t1}")
    A(f"v_add_f32 v{t1}, v{vals[6]}, v{vals[7]}\nv_add_f32 v{t0}, v{t0}, v{t2}\nv_add_f32 v{t0}, v{t0}, v{t1}")
    A(f"v_rcp_f32 v{t0}, v{t0}")
    for x in vals: A(f"v_mul_f32 v{x}, v{x}, v{t0}")
    PP = QF
    A(f"v_cvt_pk_bf16_f32 v{PP+2}, v{S+4}, v{S+5}\nv_cvt_pk_bf16_f32 v{PP+3}, v{S+6}, v{S+7}")
    A(f"v_cvt_pk_bf16_f32 v{t1}, v{S+8}, v{S+9}\nv_cvt_pk_bf16_f32 v{t2}, v{S+10}, v{S+11}")
    A(f"v_and_b32 v{PP+4}, v{t1}, v{M20}\nv_and_b32 v{PP+5}, v{t2}, v{M21}\nv_and_b32 v{PP}, v{t1}, v{N20}\nv_and_b32 v{PP+1}, v{t2}, v{N21}")
    A("s_waitcnt lgkmcnt(0)")
    for c in (1, 0, 2):
        for dg in range(5):
            A(f"v_mfma_f32_4x4x4_16b_bf16 v[{OO+4*dg}:{OO+4*dg+3}], v[{VF+2*(5*c+dg)}:{VF+2*(5*c+dg)+1}], v[{PP+2*c}:{PP+2*c+1}], v[{OO+4*dg}:{OO+4*dg+3}]")
    for dg in range(5):
        A(f"v_cvt_pk_bf16_f32 v{KF+2*dg}, v{OO+4*dg}, v{OO+4*dg+1}\nv_cvt_pk_bf16_f32 v{KF+2*dg+1}, v{OO+4*dg+2}, v{OO+4*dg+3}")
    for dg in range(5): A(f"ds_write_b64 v{aQ}, v[{KF+2*dg}:{KF+2*dg+1}] offset:{8*dg}")

def k3(A):
    name = "k3_kernel"
    kernel_begin(A, name)
    A("s_cmp_ge_u32 s2, 256\ns_cbranch_scc1 K3_end")
    load_ptr(A, 30, 'wsp'); load_ptr(A, 32, 'ws'); load_ptr(A, 34, 'bsp')
    wave_lane(A, 16)
    tile_map(A)
    st = Stamps(A, 2); st()
    E = E2(A, "K3", 6, 32, 4096, 2, 3)
    A(f"s_mul_i32 s17, s40, {64*4096}\ns_mul_i32 s18, s41, {32*6*2048}")
    A("s_waitcnt lgkmcnt(0)")
    A("s_cmp_lt_u32 s16, 4\ns_cbranch_scc1 K3_comp")
    srd(A, 4, 30, 2048*2048*2); srd(A, 8, 32, SZ_Z2P, WS_Z2P)
    E.loader_setup()
    E.loader_main(0)
    A("s_branch K3_end")
    A.label("K3_comp")
    A("s_and_b32 s46, s16, 1\ns_lshl_b32 s46, s46, 5\ns_lshr_b32 s47, s16, 1\ns_mul_i32 s47, s47, 3")
    PF = 116
    srd(A, 4, 32, SZ_Z1, WS_Z1); srd(A, 8, 32, SZ_G, WS_G); srd(A, 12, 34, 2048*2)
    A("s_lshl_b32 s43, s40, 6\ns_add_u32 s43, s43, s46")
    A("v_and_b32 v112, 15, v0\nv_add_u32 v112, s43, v112\nv_lshrrev_b32 v113, 4, v0")
    A("s_lshr_b32 s48, s43, 5\ns_mul_i32 s48, s48, 48\ns_mul_i32 s49, s41, 6\ns_add_u32 s48, s48, s49\ns_add_u32 s48, s48, s47\ns_lshl_b32 s48, s48, 10")
    A("v_lshlrev_b32 v114, 4, v0")
    for t in range(3): A(f"buffer_load_dwordx4 v[{PF+4*t}:{PF+4*t+3}], v114, s[4:7], s48 offen offset:{t*1024}")
    A("v_lshlrev_b32 v115, 2, v112")
    A(f"buffer_load_dword v{PF+12}, v115, s[8:11], 0 offen\nbuffer_load_dword v{PF+13}, v115, s[8:11], 0 offen offset:64")
    A("v_lshlrev_b32 v115, 1, v112")
    A(f"buffer_load_ushort v{PF+14}, v115, s[12:15], 0 offen\nbuffer_load_ushort v{PF+15}, v115, s[12:15], 0 offen offset:32")
    E.compute_setup(46, 47)
    st()
    E.compute(st)
    st()
    A("s_waitcnt vmcnt(0)")
    srd(A, 12, 32, SZ_AU, WS_AU)
    for m in range(2): A(f"v_lshlrev_b32 v{PF+14+m}, 16, v{PF+14+m}\nv_sub_f32 v{PF+12+m}, 1.0, v{PF+12+m}")
    T = 132
    for m in range(2):
        for t in range(3):
            ac = E.acc(m, t)
            for q in range(2):
                z = PF + 4*t + 2*m + q
                A(f"v_lshlrev_b32 v{T}, 16, v{z}\nv_and_b32 v{T+1}, 0xffff0000, v{z}")
                A(f"v_add_f32 v{T+2}, v{ac+2*q}, v{PF+14+m}\nv_add_f32 v{T+3}, v{ac+2*q+1}, v{PF+14+m}")
                A(f"v_mul_f32 v{T}, v{T}, v{PF+12+m}\nv_mul_f32 v{T+1}, v{T+1}, v{PF+12+m}")
                A(f"v_mul_f32 v{T+2}, v{T+2}, v{T}\nv_mul_f32 v{T+3}, v{T+3}, v{T+1}")
                A(f"v_cvt_pk_bf16_f32 v{z}, v{T+2}, v{T+3}")
    A("s_mov_b32 s45, 2816\nv_mul_lo_u32 v114, v112, s45\nv_lshl_add_u32 v114, v113, 3, v114")
    A("s_mul_i32 s48, s41, 192\ns_lshl_b32 s49, s47, 5\ns_add_u32 s48, s48, s49\ns_add_u32 s48, s48, 1280\nv_add_u32 v114, s48, v114")
    A(f"s_mov_b32 s49, {16*2816}")
    for m in range(2):
        for t in range(3):
            z = PF + 4*t + 2*m
            A(f"buffer_store_dwordx2 v[{z}:{z+1}], v114, s[12:15], {'s49' if m else '0'} offen offset:{t*32}")
    st(); st.flush(16, 32)
    A.label("K3_end")
    A("s_endpgm")
    return name, 256, 512, 6*SLOT, 140

def k4(A):
    name = "k4_kernel"
    kernel_begin(A, name)
    A("s_cmp_ge_u32 s2, 256\ns_cbranch_scc1 K4_end")
    load_ptr(A, 30, 'out'); load_ptr(A, 32, 'ws')
    wave_lane(A, 16)
    tile_map(A)
    st = Stamps(A, 3); st()
    E = E2(A, "K4", 5, 22, 2816, 1, 5)
    A(f"s_mul_i32 s17, s40, {64*2816}\ns_mul_i32 s18, s41, {22*5*2048}")
    A("s_waitcnt lgkmcnt(0)")
    A("s_cmp_lt_u32 s16, 4\ns_cbranch_scc1 K4_comp")
    srd(A, 4, 32, SZ_AU, WS_AU); srd(A, 8, 32, SZ_WP, WS_WP)
    E.loader_setup()
    E.loader_main(0)
    A("s_branch K4_end")
    A.label("K4_comp")
    A("s_lshl_b32 s46, s16, 4\ns_mov_b32 s47, 0")
    srd(A, 8, 32, SZ_G, WS_G)
    A("s_lshl_b32 s43, s40, 6\ns_add_u32 s43, s43, s46\nv_and_b32 v126, 15, v0\nv_add_u32 v126, s43, v126\nv_lshlrev_b32 v126, 2, v126")
    A("buffer_load_dword v125, v126, s[8:11], 0 offen")
    E.compute_setup(46, 47)
    st()
    def scale():
        A("s_waitcnt vmcnt(0)")
        for t in range(5):
            for r in range(4): A(f"v_mul_f32 v{E.acc(0,t)+r}, v{E.acc(0,t)+r}, v125")
    E.compute(st, unroll=True, hooks={9: scale})
    st()
    A("s_lshl_b32 s43, s40, 6\ns_add_u32 s43, s43, s46\nv_and_b32 v2, 15, v0\nv_add_u32 v2, s43, v2\nv_lshrrev_b32 v3, 4, v0")
    srd(A, 12, 30, 2048*640*2)
    PK = 8
    for t in range(5):
        ac = E.acc(0, t)
        A(f"v_cvt_pk_bf16_f32 v{PK+2*t}, v{ac}, v{ac+1}\nv_cvt_pk_bf16_f32 v{PK+2*t+1}, v{ac+2}, v{ac+3}")
    A("s_mov_b32 s45, 1280\nv_mul_lo_u32 v4, v2, s45\nv_lshl_add_u32 v4, v3, 3, v4\ns_mul_i32 s46, s41, 160\nv_add_u32 v4, s46, v4")
    for t in range(5): A(f"buffer_store_dwordx2 v[{PK+2*t}:{PK+2*t+1}], v4, s[12:15], 0 offen offset:{t*32}")
    st(); st.flush(16, 32)
    A.label("K4_end")
    A("s_endpgm")
    return name, 256, 512, 6*SLOT, 128

def k34(A):
    name = "k34_kernel"
    NS = 6; N1 = 32; N2 = 22; N = N1 + N2
    USTG = NS*SLOT
    LCNT = USTG + 64*208
    kernel_begin(A, name)
    A("s_cmp_ge_u32 s2, 256\ns_cbranch_scc1 K34_end")
    load_ptr(A, 30, 'wsp'); load_ptr(A, 32, 'ws'); load_ptr(A, 34, 'bsp'); load_ptr(A, 36, 'out'); load_ptr(A, 38, 'dbg')
    wave_lane(A, 16)
    tile_map(A)
    hd_start(A)
    st = Stamps(A, 2); st()
    E1 = E2(A, "K34a", 6, N1, 4096, 2, 3)
    A("s_waitcnt lgkmcnt(0)")
    A("s_cmp_lt_u32 s16, 4\ns_cbranch_scc1 K34_comp")
    srd(A, 4, 30, 2048*2048*2); srd(A, 8, 32, SZ_Z2P, WS_Z2P)
    A(f"s_mul_i32 s17, s40, {64*4096}\ns_mul_i32 s18, s41, {32*6*2048}")
    E1.loader_setup()
    A("v_lshrrev_b32 v7, 3, v0\nv_and_b32 v4, 7, v0\nv_xor_b32 v4, v4, v7\nv_mul_u32_u24 v7, 2816, v7\nv_lshl_add_u32 v4, v4, 4, v7")
    A("v_lshrrev_b32 v7, 3, v0\nv_and_b32 v5, 7, v0\nv_xor_b32 v5, v5, v7\nv_mul_u32_u24 v7, 384, v7\nv_lshl_add_u32 v10, v5, 4, v7")
    for i in range(NS - 1): E1.issue()
    A(f"s_waitcnt vmcnt({(NS - 2)*5})\ns_barrier")
    E1.issue()
    A("s_mov_b32 s14, 0")
    A.label("K34_lloop")
    A(f"s_waitcnt vmcnt({(NS-2)*5})\ns_barrier")
    E1.issue()
    A(f"s_add_u32 s14, s14, 1\ns_cmp_lt_u32 s14, {N1 - NS}\ns_cbranch_scc1 K34_lloop")
    srd(A, 4, 32, SZ_AU, WS_AU); srd(A, 8, 32, SZ_WP, WS_WP); srd(A, 12, 32, SZ_FL, WS_FL)
    A(f"s_mul_i32 s17, s40, {64*2816}\ns_mul_i32 s20, s21, {16*2816}\ns_add_u32 s23, s17, s20")
    A(f"s_mul_i32 s18, s41, {22*5*2048}\ns_mul_i32 s20, s21, 3072\ns_add_u32 s24, s18, s20")
    A(f"s_mul_i32 s20, s21, 3\ns_cmp_ge_u32 s20, 9\ns_cselect_b32 s28, {KILL}, 0\ns_cmp_ge_u32 s20, 8\ns_cselect_b32 s29, {KILL}, 0")
    A("s_lshl_b32 s44, s40, 7\nv_and_b32 v8, 7, v0\nv_lshlrev_b32 v8, 2, v8\nv_add_u32 v8, s44, v8")
    srd(A, 48, 32, SZ_U, WS_U)
    A(f"s_mul_i32 s52, s40, {4*24576}\ns_mul_i32 s20, s21, {16*384}\ns_add_u32 s52, s52, s20")
    issued = [('S', s) for s in range(N1 - NS + 2 - 1, N1) for _ in range(5)]
    def issueP(s):
        sl = s % NS; s2_ = s - N1
        fl = " sc1" if (s2_ >= 10 and O.usc1) else ""
        A(f"s_add_u32 m0, s27, {sl*SLOT}")
        if s2_ < 10:
            A(f"s_add_u32 s20, s23, {s2_*128}\ns_add_u32 s25, s23, {s2_*128 + 8*2816 - 1024}")
            A(f"buffer_load_dwordx4 v4, s[4:7], s20 offen lds")
            A(f"buffer_load_dwordx4 v4, s[4:7], s25 offen offset:1024 lds")
        else:
            a_, b_ = divmod(s2_ - 10, 3)
            A(f"s_add_u32 s20, s52, {a_*24576 + b_*128}\ns_add_u32 s25, s52, {a_*24576 + b_*128 + 8*384 - 1024}")
            A(f"buffer_load_dwordx4 v10, s[48:51], s20 offen{fl} lds")
            A(f"buffer_load_dwordx4 v10, s[48:51], s25 offen offset:1024{fl} lds")
        issued.extend([('P', s)]*2)
    def issueT(s):
        sl = s % NS; s2_ = s - N1
        A(f"s_add_u32 m0, s26, {sl*SLOT}")
        A(f"s_add_u32 s20, s24, {s2_*10240}\ns_add_u32 s25, s20, s28\ns_add_u32 s45, s20, s29")
        A("buffer_load_dwordx4 v3, s[8:11], s20 offen lds")
        A("buffer_load_dwordx4 v3, s[8:11], s25 offen offset:1024 lds")
        A("buffer_load_dwordx4 v3, s[8:11], s45 offen offset:2048 lds")
        issued.extend([('T', s)]*3)
    def wait_for(needs):
        last = -1
        for idx, tg in enumerate(issued):
            if tg in needs: last = idx
        if last < 0: return
        A(f"s_waitcnt vmcnt({min(len(issued) - 1 - last, 63)})")
    FIRSTU = N1 + 10
    POLL_I = O.poll_i
    deferred = []
    gate_open = False
    for i in range(N1 - NS, N):
        nxt = i + 1
        if nxt < N:
            wait_for([('S', nxt), ('P', nxt), ('T', nxt)])
        A("s_barrier")
        if i == POLL_I + 1:
            wait_for([('X', 0)])
            A("v_cmp_ne_u32 vcc, 1, v9\ns_nop 4")
            A("s_cbranch_vccz K34_ready")
            A("s_mov_b32 s47, 0")
            A.label("K34_poll")
            A(f"s_sleep {O.sleep}")
            A("buffer_load_dword v9, v8, s[12:15], 0 offen sc1")
            A("s_waitcnt vmcnt(0)")
            A("v_cmp_ne_u32 vcc, 1, v9")
            A("s_add_u32 s47, s47, 1\ns_nop 3")
            A("s_cbranch_vccz K34_ready")
            A("s_cmp_lt_u32 s47, 0x40000\ns_cbranch_scc1 K34_poll")
            A.label("K34_ready")
            gate_open = True
            for s in deferred: issueP(s)
            deferred = []
        s = i + NS
        if s < N:
            issueT(s)
            if s >= FIRSTU and not gate_open: deferred.append(s)
            else: issueP(s)
        if i == POLL_I:
            A("buffer_load_dword v9, v8, s[12:15], 0 offen sc1")
            issued.append(('X', 0))
    assert not deferred
    A("s_branch K34_end")
    A.label("K34_comp")
    A("s_and_b32 s46, s16, 1\ns_lshl_b32 s46, s46, 5\ns_lshr_b32 s47, s16, 1\ns_mul_i32 s47, s47, 3")
    PF = 116
    C1R = 212
    C1R = 140
    C1R = 188
    BB = 132
    COA = 88
    srd(A, 4, 32, SZ_Z1, WS_Z1); srd(A, 8, 32, SZ_G, WS_G); srd(A, 12, 34, 2048*2)
    A("s_lshl_b32 s43, s40, 6\ns_add_u32 s43, s43, s46")
    A("v_and_b32 v112, 15, v0\nv_add_u32 v112, s43, v112\nv_lshrrev_b32 v113, 4, v0")
    A("s_lshr_b32 s48, s43, 5\ns_mul_i32 s48, s48, 48\ns_mul_i32 s49, s41, 6\ns_add_u32 s48, s48, s49\ns_add_u32 s48, s48, s47\ns_lshl_b32 s48, s48, 10")
    A("v_lshlrev_b32 v114, 4, v0")
    for t in range(3): A(f"buffer_load_dwordx4 v[{PF+4*t}:{PF+4*t+3}], v114, s[4:7], s48 offen offset:{t*1024}")
    A("v_lshlrev_b32 v115, 2, v112")
    A(f"buffer_load_dword v{PF+12}, v115, s[8:11], 0 offen\nbuffer_load_dword v{PF+13}, v115, s[8:11], 0 offen offset:64")
    A("v_lshlrev_b32 v115, 1, v112")
    A(f"buffer_load_ushort v{PF+14}, v115, s[12:15], 0 offen\nbuffer_load_ushort v{PF+15}, v115, s[12:15], 0 offen offset:32")
    A("s_lshl_b32 s50, s40, 6\ns_lshl_b32 s51, s16, 4\ns_add_u32 s50, s50, s51\nv_and_b32 v137, 15, v0\nv_add_u32 v137, s50, v137\nv_lshlrev_b32 v138, 2, v137")
    A("buffer_load_dword v136, v138, s[8:11], 0 offen")
    A(f"s_mov_b32 s53, {USTG}")
    A(f"v_mov_b32 v138, {LCNT}\nv_mov_b32 v139, 0\nds_write_b32 v138, v139")
    E1.compute_setup(46, 47)
    E2b = E2(A, "K34b", 5, N2, 2816, 1, 5)
    E2b.F = [140, 188]; E2b.ACC = 236; E2b.vend = 256
    st()
    A("s_barrier")
    for x in E1.reads(0): A(x)
    A("s_waitcnt vmcnt(0)")
    for m in range(2):
        A(f"v_lshlrev_b32 v{BB+2*m}, 16, v{PF+14+m}\nv_mov_b32 v{BB+2*m+1}, v{BB+2*m}\nv_sub_f32 v{PF+12+m}, 1.0, v{PF+12+m}")
    for m in range(2):
        for t in range(3):
            c = C1R + 4*(3*m + t)
            for q in range(2):
                z = PF + 4*t + 2*m + q
                A(f"v_lshlrev_b32 v{c+2*q}, 16, v{z}\nv_and_b32 v{c+2*q+1}, 0xffff0000, v{z}")
    for m in range(2):
        for t in range(3):
            c = C1R + 4*(3*m + t)
            for r in range(4): A(f"v_mul_f32 v{c+r}, v{c+r}, v{PF+12+m}")
    LA = [128, 129, 130]; GA = [131, 138, 139]
    A("s_mul_i32 s20, s16, 192\nv_add_u32 v112, s20, v0")
    for q in range(3):
        A(f"v_add_u32 v115, {64*q}, v112\nv_mul_u32_u24 v114, 5462, v115\nv_lshrrev_b32 v114, 16, v114")
        A(f"v_mul_u32_u24 v{LA[q]}, 12, v114\nv_sub_u32 v115, v115, v{LA[q]}\nv_lshlrev_b32 v115, 4, v115")
        A(f"v_mul_u32_u24 v{LA[q]}, 208, v114\nv_add3_u32 v{LA[q]}, v{LA[q]}, v115, s53\nv_mul_u32_u24 v{GA[q]}, 384, v114\nv_add_u32 v{GA[q]}, v{GA[q]}, v115")
    A("v_and_b32 v114, 15, v0\nv_add_u32 v114, s46, v114\nv_mul_u32_u24 v114, 208, v114\nv_lshl_add_u32 v114, v113, 3, v114")
    A(f"s_lshl_b32 s48, s47, 5\ns_add_u32 s48, s48, {USTG}\nv_add_u32 v114, s48, v114")
    A("v_and_b32 v115, 15, v0\nv_add_u32 v115, s46, v115\nv_and_b32 v112, 1, v113\nv_lshl_add_u32 v115, v112, 4, v115\nv_mul_u32_u24 v115, 208, v115\nv_lshrrev_b32 v112, 1, v113\nv_lshl_add_u32 v115, v112, 4, v115\nv_add_u32 v115, s48, v115")
    A("s_waitcnt lgkmcnt(0)")
    st()
    A("s_mov_b32 s19, 0")
    A.label("K34_cloop")
    for i in range(NS): E1.step(i)
    A(f"s_add_u32 s19, s19, 1\ns_cmp_lt_u32 s19, 5\ns_cbranch_scc1 K34_cloop")
    E1.step(30)
    A("v_and_b32 v4, 15, v0\nv_lshrrev_b32 v5, 4, v0\nv_and_b32 v6, 7, v4\nv_xor_b32 v5, v5, v6\nv_lshlrev_b32 v4, 7, v4\nv_lshl_add_u32 v4, v5, 4, v4")
    A("s_lshl_b32 s20, s16, 11\nv_add_u32 v2, s20, v4\nv_xor_b32 v3, 64, v2")
    A("v_and_b32 v6, 15, v0\nv_lshlrev_b32 v6, 3, v6\nv_and_b32 v7, 16, v0\nv_lshl_add_u32 v6, v7, 3, v6\nv_and_b32 v7, 32, v0\nv_lshl_add_u32 v6, v7, 4, v6")
    A("v_add_u32 v4, 8192, v6")
    A(f"v_add_u32 v5, {3*SLOT}, v2\nv_add_u32 v6, {3*SLOT}, v3\nv_add_u32 v7, {3*SLOT}, v4")
    for i in range(236, 256): A(f"v_mov_b32 v{i}, 0")
    def mixed_step(Ecur, icur, Enext, inext, after_barrier=None):
        s = icur & 1
        rd = Enext.reads(inext) if Enext else []
        mf = [f"v_mfma_f32_16x16x32_bf16 v[{Ecur.acc(m,t)}:{Ecur.acc(m,t)+3}], v[{Ecur.fT(s,kk,t)}:{Ecur.fT(s,kk,t)+3}], v[{Ecur.fP(s,kk,m)}:{Ecur.fP(s,kk,m)+3}], v[{Ecur.acc(m,t)}:{Ecur.acc(m,t)+3}]"
              for kk in range(2) for m in range(Ecur.mP) for t in range(Ecur.nT)]
        A("s_barrier")
        if after_barrier: after_barrier()
        per = (len(rd) + len(mf) - 1)//len(mf) if rd else 0
        for x in mf:
            for _ in range(per):
                if rd: A(rd.pop(0))
            A(x)
        A("s_waitcnt lgkmcnt(0)")
    mixed_step(E1, 31, E2b, 32)
    st()
    for m in range(2):
        for t in range(3):
            ac = E1.acc(m, t); c = C1R + 4*(3*m + t)
            for q in range(2):
                A(f"v_pk_add_f32 v[{ac+2*q}:{ac+2*q+1}], v[{ac+2*q}:{ac+2*q+1}], v[{PF+14+m-(PF+14+m)%2 if False else BB+2*m}:{BB+2*m+1}]")
    for m in range(2):
        for t in range(3):
            ac = E1.acc(m, t); c = C1R + 4*(3*m + t)
            for q in range(2):
                A(f"v_pk_mul_f32 v[{ac+2*q}:{ac+2*q+1}], v[{ac+2*q}:{ac+2*q+1}], v[{c+2*q}:{c+2*q+1}]")
    if O.fine2: st()
    for m in range(2):
        for t in range(3):
            ac = E1.acc(m, t); z = PF + 4*t + 2*m
            A(f"v_cvt_pk_bf16_f32 v{z}, v{ac}, v{ac+1}\nv_cvt_pk_bf16_f32 v{z+1}, v{ac+2}, v{ac+3}")
    if O.fine2: st()
    if O.stg128:
        for t in range(3):
            d = PF + 4*t
            A(f"v_permlane16_swap_b32 v{d}, v{d+2}\nv_permlane16_swap_b32 v{d+1}, v{d+3}")
        for t in range(3):
            A(f"ds_write_b128 v115, v[{PF+4*t}:{PF+4*t+3}] offset:{t*32}")
    else:
        for m in range(2):
            for t in range(3):
                z = PF + 4*t + 2*m
                A(f"ds_write_b64 v114, v[{z}:{z+1}] offset:{m*16*208 + t*32}")
    A("s_waitcnt lgkmcnt(0)")
    st()
    def signal():
        A("s_waitcnt vmcnt(0)")
        A(f"v_mov_b32 v138, {LCNT}\nv_mov_b32 v139, 1")
        A("s_mov_b64 exec, 1")
        A("ds_add_rtn_u32 v139, v138, v139")
        A("s_waitcnt lgkmcnt(0)")
        A("v_readfirstlane_b32 s20, v139")
        A("s_cmp_lg_u32 s20, 3\ns_cbranch_scc1 K34_nosig")
        srd(A, 12, 32, SZ_FL, WS_FL)
        A("s_lshl_b32 s20, s40, 7\ns_lshl_b32 s21, s41, 2\ns_add_u32 s20, s20, s21\nv_mov_b32 v138, s20\nv_mov_b32 v139, 1")
        A("buffer_store_dword v139, v138, s[12:15], 0 offen sc1")
        A.label("K34_nosig")
        A("s_mov_b64 exec, -1")
    def copy_out():
        srd(A, 12, 32, SZ_U, WS_U)
        for q in range(3): A(f"ds_read_b128 v[{PF+4*q}:{PF+4*q+3}], v{LA[q]}")
        A("s_lshl_b32 s48, s40, 2\ns_lshr_b32 s49, s41, 1\ns_add_u32 s48, s48, s49\ns_mul_i32 s48, s48, 24576\ns_and_b32 s49, s41, 1\ns_mul_i32 s49, s49, 192\ns_add_u32 s48, s48, s49")
        A("s_waitcnt lgkmcnt(0)")
        for q in range(3): A(f"buffer_store_dwordx4 v[{PF+4*q}:{PF+4*q+3}], v{GA[q]}, s[12:15], s48 offen{O.ustore}")
    for i in range(N1, N):
        last = (i == N - 1)
        mixed_step(E2b, i, None if last else E2b, i + 1, after_barrier=(copy_out if i == N1 else None))
        if i in ((32, 33, 36, 40, 41) if O.fine2 else (32, 33, 34, 36, 38, 40, 41, 42, 45)): st()
        if i == O.sig_i: signal()
        if i == N1 + 9:
            for t in range(5):
                for r in range(4): A(f"v_mul_f32 v{E2b.acc(0,t)+r}, v{E2b.acc(0,t)+r}, v136")
    st()
    srd(A, 12, 36, 2048*640*2)
    PK = 8
    for t in range(5):
        ac = E2b.acc(0, t)
        A(f"v_cvt_pk_bf16_f32 v{PK+2*t}, v{ac}, v{ac+1}\nv_cvt_pk_bf16_f32 v{PK+2*t+1}, v{ac+2}, v{ac+3}")
    A("v_lshrrev_b32 v3, 4, v0\ns_mov_b32 s45, 1280\nv_mul_lo_u32 v4, v137, s45\nv_lshl_add_u32 v4, v3, 3, v4\ns_mul_i32 s46, s41, 160\nv_add_u32 v4, s46, v4")
    for t in range(5): A(f"buffer_store_dwordx2 v[{PK+2*t}:{PK+2*t+1}], v4, s[12:15], 0 offen offset:{t*32}{O.outst}")
    st(); st.flush(16, 32, 20)
    hd_end(A, 32, 2, 0, 60)
    if O.hdiag2:
        A("s_cmp_lg_u32 s2, 0\ns_cbranch_scc1 K34_end\ns_cmp_lg_u32 s16, 0\ns_cbranch_scc1 K34_end")
        A("s_waitcnt vmcnt(0)")
        srd(A, 84, 32, 0x100000, WS_TS); srd(A, 88, 38, 256)
        sel = [(0, 0, i) for i in (2, 3, 5, 7, 8, 9, 10)] + [(0, 128, i) for i in (2, 3, 4, 6)] + [(2, 0, i) for i in (2, 3, 11, 12, 15)]
        A("v_mov_b32 v60, 0\nv_mov_b32 v61, 0")
        for ln, (k, wg, i) in enumerate(sel):
            base = k*0x40000 + wg*4*128
            A(f"v_cmp_eq_u32 vcc, {ln}, v0\nv_mov_b32 v62, {base + 4*i}\nv_cndmask_b32 v60, v60, v62, vcc\nv_mov_b32 v62, {base}\nv_cndmask_b32 v61, v61, v62, vcc")
        A("v_cmp_gt_u32 vcc, 16, v0\ns_and_saveexec_b64 s[20:21], vcc")
        A("buffer_load_dword v63, v60, s[84:87], 0 offen sc1\nbuffer_load_dword v64, v61, s[84:87], 0 offen sc1\ns_waitcnt vmcnt(0)")
        A("v_sub_u32 v63, v63, v64\nv_lshlrev_b32 v60, 2, v0\nbuffer_store_dword v63, v60, s[88:91], 0 offen")
    if O.hdiag:
        A("s_cmp_lg_u32 s2, 0\ns_cbranch_scc1 K34_end\ns_cmp_lg_u32 s16, 0\ns_cbranch_scc1 K34_end")
        A("s_waitcnt vmcnt(0)")
        srd(A, 84, 32, 4096, WS_TS); srd(A, 88, 38, 256)
        A("v_lshlrev_b32 v60, 2, v0\nv_cmp_gt_u32 vcc, 12, v0\ns_and_saveexec_b64 s[20:21], vcc")
        A("buffer_load_dword v61, v60, s[84:87], 0 offen sc1\ns_waitcnt vmcnt(0)\nbuffer_store_dword v61, v60, s[88:91], 0 offen")
    A.label("K34_end")
    A("s_endpgm")
    return name, 256, 512, NS*SLOT + 64*208 + 64, 256

def main(out, kernels):
    body = Asm(); ks = []
    for f in kernels: ks.append(f(body))
    hdr = [f"; @launch kernel={n} grid=({g},1,1) block=({b},1,1) lds={lds}" for (n, g, b, lds, vg) in ks]
    hdr.append('.amdgcn_target "amdgcn-amd-amdhsa--gfx950"'); hdr.append(".text")
    lines = hazard.fix(body.lines, verbose=True)
    txt = "\n".join(hdr) + "\n" + "\n".join(lines) + "\n" + '.section .rodata,"a"\n'
    for (n, g, b, lds, vg) in ks: txt += kernel_desc(n, 256 if O.stamp else vg, 96)
    open(out, "w").write(txt)
if __name__ == "__main__":
    if '--stamp' in sys.argv: O.stamp = True
    if '--norot' in sys.argv: O.rot = False
    if '--pfg' in sys.argv: O.pfg = True
    if '--nofull' in sys.argv: O.fullring = False
    for a_ in sys.argv:
        if a_.startswith('--tla='): O.tla = int(a_[6:])
    for a_ in sys.argv:
        if a_.startswith('--pfg2='): O.pfg2 = int(a_[7:])
    if '--itstamp' in sys.argv: O.itstamp = True
    if '--nowsp' in sys.argv: O.wsp_pf = False
    for a_ in sys.argv:
        if a_.startswith('--poll='): O.poll_i = int(a_[7:])
        if a_.startswith('--sig='): O.sig_i = int(a_[6:])
    if '--full' in sys.argv: O.fullring = True; O.tla = 6
    if '--nofuse' in sys.argv: O.fuse = False
    if '--nosc1' in sys.argv: O.usc1 = False
    if '--hdiag' in sys.argv: O.hdiag = True
    if '--fine2' in sys.argv: O.fine2 = True
    if '--k1sc1' in sys.argv: O.k1st = ' sc1'
    if '--k1nt' in sys.argv: O.k1st = ' nt'
    if '--outsc1' in sys.argv: O.outst = ' sc1'
    if '--outnt' in sys.argv: O.outst = ' nt'
    if '--hdiag2' in sys.argv: O.hdiag2 = True; O.stamp = True
    if '--stg64' in sys.argv: O.stg128 = False
    if '--uplain' in sys.argv: O.ustore = ''
    if '--unt' in sys.argv: O.ustore = ' sc1 nt'
    if '--usc01' in sys.argv: O.ustore = ' sc0 sc1'
    for a_ in sys.argv:
        if a_.startswith('--rottab='): O.rottab = int(a_[9:], 16)
    for a_ in sys.argv:
        if a_.startswith('--sleep='): O.sleep = int(a_[8:])
    main(sys.argv[1], [k1, k34] if O.fuse else [k1, k3, k4])
```

```python
import sys, struct
from asmlib import *
import hazard
NAME = "gated_mix__sliding_local_dilated__mixer_gmlp__prompt"
KA = dict(x=0, wqkv=8, wo=16, bx=24, win=32, wsp=40, bsp=48, wout=56, gw=64, out=72, dbg=80, ws=88)
QP = 504
HGS = 2048*QP
WS_QKVG = 0;          SZ_QKVG = 8*HGS
WS_Z1  = 0x900000;    SZ_Z1 = 2048*768*2
WS_Z2P = 0xC00000;    SZ_Z2P = 2048*768*2
WS_AU  = 0xF00000;    SZ_AU = 2048*1408*2
WS_WP  = 0x1500000;   SZ_WP = 1408*640*2
WS_ST  = 0x1700000;   SZ_ST = 8*2048*16
WS_G   = 0x1740000;   SZ_G = 2048*4
WS_EP  = 0x1760000;   SZ_EP = 128
WS_FZ  = 0x1770000;   SZ_FZ = 8*128
WS_FQ  = 0x1780000;   SZ_FQ = 16*64
WS_FL  = 0x1750000;   SZ_FL = 32*128
WS_U   = 0x1800000;   SZ_U = 2048*768*2
WS_TS  = 0x2000000
KILL = 0x40000000
C0 = -2.0*0.7978845608028654*1.4426950408889634
C1 = C0*0.044715
def f2u(f): return struct.unpack('<I', struct.pack('<f', f))[0]
class Opt:
    stamp = False; rot = True; wsp_pf = True; la = 5; itstamp = False; pfg = False; pfg2 = 2; fullring = False; tla = 4; poll_i = 38; sig_i = 36; fuse = True; hdiag2 = False; k1st = ' sc1'; outst = ''; xl = ' sc1'; sleep2 = 8; lf0 = 18; gs = False; fine2 = False; stg128 = True; usc1 = True; ustore = ' sc1'; hdiag = False; sleep = 4; rottab = 0x8530
O = Opt()

def load_ptr(A, sd, key): A(f"s_load_dwordx2 s[{sd}:{sd+1}], s[0:1], {KA[key]}")
def wave_lane(A, s_w):
    A("v_lshrrev_b32 v1, 6, v0")
    A(f"v_readfirstlane_b32 s{s_w}, v1")
    A("v_and_b32 v0, 63, v0")

class Stamps:
    def __init__(self, A, kidx, n0=0): self.A = A; self.n = n0; self.k = kidx
    def __call__(self):
        if not O.stamp: return
        assert self.n < 16
        self.A(f"s_memtime s[{60+2*self.n}:{61+2*self.n}]"); self.n += 1
    def flush(self, s_w, s_ws, vt=250):
        if not O.stamp: return
        A = self.A
        A("s_waitcnt vmcnt(0)")
        A("s_memrealtime s[92:93]")
        A("s_waitcnt lgkmcnt(0)")
        srd(A, 56, s_ws, 0x100000, WS_TS + self.k*0x40000)
        A(f"s_lshl_b32 s54, s2, 2\ns_add_u32 s54, s54, s{s_w}\ns_lshl_b32 s54, s54, 7")
        A("s_mov_b64 exec, 1")
        for i in range(self.n):
            A(f"v_mov_b32 v{vt}, s{60+2*i}\nv_mov_b32 v{vt+1}, {4*i}")
            A(f"buffer_store_dword v{vt}, v{vt+1}, s[56:59], s54 offen")
        A(f"v_mov_b32 v{vt}, s92\nv_mov_b32 v{vt+1}, 124")
        A(f"buffer_store_dword v{vt}, v{vt+1}, s[56:59], s54 offen")
        A("s_mov_b64 exec, -1")


def it_top(A):
    if not O.itstamp: return
    A("s_memtime s[76:77]\ns_waitcnt lgkmcnt(0)")
    for k in range(3): A(f"s_cmp_eq_u32 s26, {k}\ns_cselect_b32 s{80+k}, s76, s{80+k}")
def it_mid(A):
    if O.itstamp: A("s_memtime s[76:77]\ns_waitcnt lgkmcnt(0)\ns_mov_b32 s83, s76")
def it_end(A, va, vb):
    if not O.itstamp: return
    A("s_memtime s[76:77]\ns_waitcnt lgkmcnt(0)\ns_mov_b32 s84, s76")
    srd(A, 56, 32, 0x200000, WS_TS + 7*0x40000)
    A("s_lshl_b32 s54, s2, 2\ns_add_u32 s54, s54, s16\ns_lshl_b32 s54, s54, 7")
    A("s_mov_b64 exec, 1")
    for i in range(11):
        A(f"v_mov_b32 v{va}, s{80+i}\nv_mov_b32 v{vb}, {4*i}")
        A(f"buffer_store_dword v{va}, v{vb}, s[56:59], s54 offen")
    A("s_mov_b64 exec, -1")


def hd_start(A):
    if O.hdiag: A("s_memtime s[94:95]\ns_memrealtime s[92:93]\ns_waitcnt lgkmcnt(0)\ns_mov_b32 s90, s94\ns_mov_b32 s91, s92")
def hd_end(A, s_ws, slot_sreg_expr, cond_wg, vt):
    if not O.hdiag: return
    L = A.newlabel("hd")
    A(f"s_cmp_lg_u32 s2, {cond_wg}\ns_cbranch_scc1 {L}\ns_cmp_lg_u32 s16, 0\ns_cbranch_scc1 {L}")
    A("s_waitcnt vmcnt(0)\ns_memtime s[94:95]\ns_memrealtime s[92:93]\ns_waitcnt lgkmcnt(0)")
    A("s_sub_u32 s94, s94, s90\ns_sub_u32 s95, s92, s91")
    srd(A, 84, s_ws, 4096, WS_TS)
    A(f"v_mov_b32 v{vt}, s94\nv_mov_b32 v{vt+1}, s95\nv_mov_b32 v{vt+2}, s91\nv_mov_b32 v{vt+3}, s92\nv_mov_b32 v{vt+4}, {slot_sreg_expr*16}")
    A("s_mov_b64 exec, 1")
    A(f"buffer_store_dwordx4 v[{vt}:{vt+3}], v{vt+4}, s[84:87], 0 offen")
    A("s_mov_b64 exec, -1")
    A.label(L)


def GS(A, i):
    if O.gs: A(f"s_memtime s[{64+2*i}:{65+2*i}]")
def GS_flush(A, n, vt):
    if not O.gs: return
    A("s_waitcnt vmcnt(0) lgkmcnt(0)")
    srd(A, 56, 32, 0x100000, WS_TS)
    A("s_lshl_b32 s54, s2, 2\ns_add_u32 s54, s54, s16\ns_lshl_b32 s54, s54, 7")
    A("s_mov_b64 exec, 1")
    for i in range(n):
        A(f"v_mov_b32 v{vt}, s{64+2*i}\nv_mov_b32 v{vt+1}, {4*i}")
        A(f"buffer_store_dword v{vt}, v{vt+1}, s[56:59], s54 offen")
    A("s_mov_b64 exec, -1")

def gelu_pk(A, regs, tmp, sC):
    n = len(regs)
    for i, r in enumerate(regs): A(f"v_pk_mul_f32 v[{tmp+2*i}:{tmp+2*i+1}], v[{r}:{r+1}], v[{r}:{r+1}]")
    for i, r in enumerate(regs): A(f"v_pk_fma_f32 v[{tmp+2*i}:{tmp+2*i+1}], v[{tmp+2*i}:{tmp+2*i+1}], s[{sC}:{sC+1}], v[6:7]")
    for i, r in enumerate(regs): A(f"v_pk_mul_f32 v[{tmp+2*i}:{tmp+2*i+1}], v[{tmp+2*i}:{tmp+2*i+1}], v[{r}:{r+1}]")
    for i in range(2*n): A(f"v_exp_f32 v{tmp+i}, v{tmp+i}")
    for i, r in enumerate(regs): A(f"v_pk_add_f32 v[{tmp+2*i}:{tmp+2*i+1}], v[{tmp+2*i}:{tmp+2*i+1}], 1.0 op_sel_hi:[1,0]")
    for i in range(2*n): A(f"v_rcp_f32 v{tmp+i}, v{tmp+i}")
    for i, r in enumerate(regs): A(f"v_pk_mul_f32 v[{r}:{r+1}], v[{r}:{r+1}], v[{tmp+2*i}:{tmp+2*i+1}]")

def k1_geom(typ):
    if typ == 'q':
        return dict(pitchW=3840, PROWS=144, PSLOT=144*128, NPS=3, TSLOT=15360, R=6, TBASE=3*144*128)
    return dict(pitchW=3072, PROWS=128, PSLOT=128*128, NPS=3, TSLOT=16384, R=6, TBASE=3*128*128)

def k1_wsp_prefetch(A, part):
    if part == 0:
        srd(A, 4, 52, 2048*2048*2)
        A("s_and_b32 s40, s2, 7\ns_lshr_b32 s40, s40, 1\ns_lshl_b32 s40, s40, 14")
        A("s_lshr_b32 s41, s2, 3\ns_and_b32 s41, s41, 15\ns_lshl_b32 s41, s41, 10\ns_add_u32 s40, s40, s41")
        A("s_sub_u32 s41, s16, 4\ns_lshl_b32 s41, s41, 8\ns_add_u32 s40, s40, s41")
        A("s_lshl_b32 s40, s40, 7")
        A("v_lshlrev_b32 v249, 7, v0")
    else:
        A("s_add_u32 s40, s40, 8192")
    A(f"buffer_load_dword v{250 + (part & 1)}, v249, s[4:7], s40 offen")

def pf_setup(A):
    A("s_cmp_lt_u32 s21, 2\ns_cselect_b32 s84, s30, s34\ns_cselect_b32 s85, s31, s35")
    A(f"s_mov_b32 s86, {640*1920*2}\ns_cselect_b32 s86, {2048*640*2}, s86")
    A("s_cmp_eq_u32 s21, 3\ns_cselect_b32 s84, s36, s84\ns_cselect_b32 s85, s37, s85")
    A(f"s_cselect_b32 s86, {640*1536*2}, s86\ns_mov_b32 s87, 0x20000")
    A("s_lshr_b32 s88, s2, 3\ns_and_b32 s89, s2, 7\ns_lshr_b32 s90, s89, 1\ns_and_b32 s89, s89, 1")
    A("s_lshl_b32 s91, s89, 10\ns_lshl_b32 s92, s88, 5\ns_add_u32 s91, s91, s92\ns_lshl_b32 s92, s21, 4\ns_add_u32 s91, s91, s92")
    A("v_lshrrev_b32 v20, 2, v0\nv_add_u32 v20, s91, v20\nv_mul_u32_u24 v20, 1280, v20\nv_and_b32 v21, 3, v0\nv_lshl_add_u32 v20, v21, 7, v20\nv_add_u32 v20, 384, v20")
    A("v_mul_u32_u24 v21, 57, v0\nv_lshrrev_b32 v21, 9, v21\nv_mul_u32_u24 v22, 9, v21\nv_sub_u32 v22, v0, v22")
    A("s_mul_i32 s91, s88, 7\ns_add_u32 s91, s91, 192\nv_add_u32 v21, s91, v21\nv_mul_u32_u24 v21, 3840, v21")
    A("v_mul_u32_u24 v23, 171, v22\nv_lshrrev_b32 v23, 9, v23\nv_mul_u32_u24 v25, 3, v23\nv_sub_u32 v22, v22, v25")
    A("s_lshl_b32 s91, s90, 2\ns_lshr_b32 s91, 0x7520, s91\ns_and_b32 s91, s91, 15")
    A("v_add_u32 v22, s91, v22\nv_lshlrev_b32 v22, 7, v22\nv_mul_u32_u24 v23, 1280, v23\nv_add3_u32 v21, v21, v22, v23")
    A(f"v_mov_b32 v25, {KILL}\nv_cmp_le_u32 vcc, 63, v0\nv_cndmask_b32 v21, v21, v25, vcc")
    A("v_mul_u32_u24 v22, 43, v0\nv_lshrrev_b32 v22, 8, v22\nv_mul_u32_u24 v23, 6, v22\nv_sub_u32 v23, v0, v23")
    A("s_mul_i32 s91, s88, 7\ns_add_u32 s91, s91, 192\nv_add_u32 v22, s91, v22\nv_mul_u32_u24 v22, 3072, v22")
    A("v_mul_u32_u24 v26, 171, v23\nv_lshrrev_b32 v26, 9, v26\nv_mul_u32_u24 v27, 3, v26\nv_sub_u32 v23, v23, v27")
    A("v_lshlrev_b32 v23, 7, v23\nv_mul_u32_u24 v26, 1536, v26\nv_add3_u32 v22, v22, v23, v26\ns_mul_i32 s91, s90, 384\nv_add_u32 v22, s91, v22")
    A("v_cmp_le_u32 vcc, 42, v0\nv_cndmask_b32 v22, v22, v25, vcc")
    A("s_cmp_lt_u32 s21, 2\ns_cselect_b64 s[90:91], -1, 0\ns_cselect_b32 s88, 384, 0")
    A("v_cndmask_b32 v24, v21, v20, s[90:91]")
    A(f"s_cmp_eq_u32 s21, 2\ns_cselect_b32 s88, {224*3840}, s88")
    A(f"s_cmp_eq_u32 s21, 3\ns_cselect_b32 s88, {224*3072}, s88\ns_cselect_b64 s[90:91], -1, 0")
    A("v_cndmask_b32 v24, v24, v22, s[90:91]")

def pf_group(A, g):
    if g == 0: A("buffer_load_dword v248, v24, s[84:87], 0 offen")
    else: A("buffer_load_dword v248, v24, s[84:87], s88 offen")

def run_loader_schedule(A, issueP, issueT, issued, hooks=None, wsp=False):
    NB = 20; NPS = 3; R = 6
    def wait_for(needs):
        last = -1
        for idx, tg in enumerate(issued):
            if tg in needs: last = idx
        if last < 0: return
        A(f"s_waitcnt vmcnt({min(len(issued) - 1 - last, 63)})")
    TLA = O.tla
    issueP(0, 0); issueP(0, 1); issueT(0); issueT(1)
    issueP(1, 0); issueP(1, 1)
    for t in range(2, TLA): issueT(t)
    if O.fullring: issueP(2, 0); issueP(2, 1)
    if O.pfg:
        pf_setup(A); pf_group(A, 0); issued.append(('F', 0))
    wait_for([('P', 0), ('T', 0)])
    A("s_barrier")
    if not O.fullring: issueP(2, 0)
    for b in range(NB):
        needs = []
        if b + 1 < NB: needs = [('T', b+1), ('P', (b+1)//2)]
        if needs: wait_for(needs)
        A("s_barrier")
        if b + TLA < NB: issueT(b + TLA)
        if b == 0 and not O.fullring: issueP(2, 1)
        if b % 2 == 1:
            s = (b - 1)//2 + NPS
            if s < NB//2: issueP(s, 0)
        elif b >= 2:
            s = (b - 2)//2 + NPS
            if s < NB//2: issueP(s, 1)
        if O.pfg and b == O.pfg2: pf_group(A, 1); issued.append(('F', 1))
        if hooks and b in hooks: hooks[b](issued)
        W0 = max(14, 20 - TLA)
        if wsp and O.wsp_pf and W0 <= b < W0 + 4: k1_wsp_prefetch(A, b - W0); issued.append(('W', b))
    A("s_barrier")

def rot_stage(A, s, dst):
    A(f"s_add_u32 s{dst}, s28, {s}\ns_cmp_ge_u32 s{dst}, 10\ns_cselect_b32 s29, 10, 0\ns_sub_u32 s{dst}, s{dst}, s29")
def rot_beat(A, b, dst):
    A(f"s_lshl_b32 s{dst}, s28, 1\ns_add_u32 s{dst}, s{dst}, {b}\ns_cmp_ge_u32 s{dst}, 20\ns_cselect_b32 s29, 20, 0\ns_sub_u32 s{dst}, s{dst}, s29")

def k1_loader_z(A):
    G = k1_geom('z'); pitchW = G['pitchW']; PSLOT = G['PSLOT']; TSLOT = G['TSLOT']; TBASE = G['TBASE']
    lw = 21
    A(f"s_sub_u32 s{lw}, s16, 4")
    A("v_lshrrev_b32 v7, 3, v0\nv_and_b32 v2, 7, v0\nv_xor_b32 v2, v2, v7\nv_mul_u32_u24 v7, 1280, v7\nv_lshl_add_u32 v2, v2, 4, v7")
    A("v_lshrrev_b32 v4, 4, v0")
    A(f"s_and_b32 s20, s{lw}, 1\ns_lshl_b32 s20, s20, 2")
    A("v_add_u32 v5, s20, v4\nv_lshlrev_b32 v5, 1, v5\nv_and_b32 v6, 15, v0\nv_xor_b32 v6, v6, v5")
    A(f"v_mul_u32_u24 v4, {pitchW}, v4\nv_lshl_add_u32 v3, v6, 4, v4")
    A(f"v_cmp_le_u32 vcc, 12, v6\nv_mov_b32 v5, {KILL}\nv_cndmask_b32 v3, v3, v5, vcc")
    nP = 2; half_rows = 64
    A(f"s_mul_i32 s20, s{lw}, {nP*8*1280}\ns_add_u32 s22, s17, s20")
    A(f"s_mul_i32 s23, s{lw}, {nP*1024}")
    A(f"s_mul_i32 s20, s{lw}, {8*pitchW}\ns_add_u32 s24, s18, s20\ns_add_u32 s25, s19, s20")
    A(f"s_lshl_b32 s26, s{lw}, 11\ns_add_u32 s26, s26, {TBASE}")
    issued = []
    def issueP(s, h2):
        slot = s % 3
        rot_stage(A, s, 27)
        A("s_lshl_b32 s27, s27, 7\ns_add_u32 s27, s27, s22")
        A(f"s_add_u32 m0, s23, {slot*PSLOT + h2*half_rows*128}")
        for i in range(nP):
            A(f"s_add_u32 s20, s27, {h2*half_rows*1280 + i*(8*1280 - 1024)}")
            A(f"buffer_load_dwordx4 v2, s[4:7], s20 offen offset:{i*1024} lds")
            issued.append(('P', s))
    def issueT(b):
        slot = b % 6
        rot_beat(A, b, 27)
        A(f"s_mul_i32 s27, s27, {32*pitchW}")
        for u, sb in enumerate([24, 25]):
            A(f"s_add_u32 m0, s26, {slot*TSLOT + u*8192}")
            A(f"s_add_u32 s29, s27, s{sb}")
            for i in range(2):
                A(f"s_add_u32 s20, s29, {i*(4*pitchW - 1024)}")
                A(f"buffer_load_dwordx4 v3, s[8:11], s20 offen offset:{i*1024} lds")
                issued.append(('T', b))
    def gate_load(issued):
        srd(A, 12, 38, 640*2)
        A("v_lshlrev_b32 v10, 2, v0")
        for i in range(5): A(f"buffer_load_dword v{40+i}, v10, s[12:15], 0 offen offset:{256*i}")
        A("s_lshl_b32 s58, s48, 7\ns_lshl_b32 s59, s49, 4\ns_add_u32 s58, s58, s59\ns_lshl_b32 s59, s21, 2\ns_add_u32 s58, s58, s59")
        A("s_mul_i32 s59, s58, 1280")
        for r in range(4):
            A(f"s_add_u32 s57, s59, {r*1280}")
            for i in range(5): A(f"buffer_load_dword v{48+5*r+i}, v10, s[4:7], s57 offen offset:{256*i}")
        issued.extend([('G', 0)]*25)
    def gate_finish(issued):
        last = max(i for i, t in enumerate(issued) if t == ('G', 0))
        A(f"s_waitcnt vmcnt({len(issued) - 1 - last})")
        for r in range(4):
            A(f"v_mov_b32 v{70+r}, 0")
            for i in range(5): A(f"v_dot2_f32_bf16 v{70+r}, v{48+5*r+i}, v{40+i}, v{70+r}")
        for ctl in ("row_shr:1 row_mask:0xf bank_mask:0xf bound_ctrl:0", "row_shr:2 row_mask:0xf bank_mask:0xf bound_ctrl:0", "row_shr:4 row_mask:0xf bank_mask:0xf bound_ctrl:0",
                    "row_shr:8 row_mask:0xf bank_mask:0xf bound_ctrl:0", "row_bcast:15 row_mask:0xa bank_mask:0xf", "row_bcast:31 row_mask:0xc bank_mask:0xf"):
            for r in range(4): A(f"v_add_f32_dpp v{70+r}, v{70+r}, v{70+r} {ctl}")
        for r in range(4): A(f"v_mul_f32 v{70+r}, {f2u(-1.4426950408889634)}, v{70+r}")
        for r in range(4): A(f"v_exp_f32 v{70+r}, v{70+r}")
        for r in range(4): A(f"v_add_f32 v{70+r}, 1.0, v{70+r}")
        for r in range(4): A(f"v_rcp_f32 v{70+r}, v{70+r}")
        srd(A, 12, 32, SZ_G, WS_G)
        A("s_lshl_b32 s58, s58, 2\nv_mov_b32 v10, 0")
        A("s_mov_b32 s42, 0\ns_mov_b32 s43, 0x80000000\ns_mov_b64 exec, s[42:43]")
        for r in range(4): A(f"buffer_store_dword v{70+r}, v10, s[12:15], s58 offen offset:{4*r}")
        A("s_mov_b64 exec, -1")
        issued.extend([('S', 0)]*4)
    def oldtags(issued):
        z_oldtags(A, 42); issued.extend([('O', 0)]*1)
    def pack_loads(issued):
        k1_pack_load(A); issued.extend([('K', 0)]*6)
    run_loader_schedule(A, issueP, issueT, issued, None)

def k1_loader_q(A, last):
    G = k1_geom('q'); PSLOT = G['PSLOT']; TSLOT = G['TSLOT']; TBASE = G['TBASE']
    nP = 3 if last else 2
    nTi = 3 if last else 4
    A("s_sub_u32 s21, s16, 4")
    A("v_lshrrev_b32 v7, 3, v0\nv_and_b32 v6, 7, v0\nv_xor_b32 v6, v6, v7")
    A("s_lshl_b32 s20, s48, 7\ns_sub_u32 s20, s20, 16\ns_lshl_b32 s22, s21, 4\ns_add_u32 s20, s20, s22")
    A("v_add_u32 v7, s20, v7")
    A("v_mov_b32 v12, v7")
    A("s_mov_b32 s20, 1280\nv_mul_lo_u32 v7, v7, s20\nv_lshl_add_u32 v2, v6, 4, v7")
    for h2 in range(2):
        for i in range(nP):
            if h2 == 0 and i == 0: continue
            A(f"v_add_u32 v{2 + h2*3 + i}, {(72*h2 + 8*i)*1280}, v2")
    A(f"v_mov_b32 v13, {KILL}")
    for i in range(2):
        A(f"v_add_u32 v14, {8*i}, v12\nv_cmp_gt_i32 vcc, 0, v14\nv_cndmask_b32 v{2+i}, v{2+i}, v13, vcc")
    A("s_lshl_b32 s20, s21, 8")
    for i in range(nTi):
        d = 8 + i
        A(f"v_add_u32 v12, s20, v0\nv_add_u32 v12, {64*i}, v12")
        A("v_mul_u32_u24 v13, 2185, v12\nv_lshrrev_b32 v13, 16, v13")
        A("v_mul_u32_u24 v14, 30, v13\nv_sub_u32 v14, v12, v14")
        A("v_and_b32 v15, 0x13, v13\nv_and_b32 v16, 4, v13\nv_lshl_or_b32 v15, v16, 1, v15\nv_and_b32 v16, 8, v13\nv_lshrrev_b32 v16, 1, v16\nv_or_b32 v15, v15, v16")
        A("v_mul_u32_u24 v16, 205, v14\nv_lshrrev_b32 v16, 11, v16")
        A("v_mul_u32_u24 v17, 10, v16\nv_sub_u32 v14, v14, v17")
        A("v_mul_u32_u24 v15, 3840, v15\nv_mul_u32_u24 v16, 1280, v16\nv_lshlrev_b32 v14, 4, v14")
        A(f"v_add3_u32 v{d}, v15, v16, v14")
    A("s_mul_i32 s24, s49, 160")
    A("s_lshl_b32 s23, s21, 11")
    A(f"s_lshl_b32 s26, s21, 12\ns_add_u32 s26, s26, {TBASE}")
    issued = []
    def issueP(s, h2):
        slot = s % 3
        rot_stage(A, s, 27)
        A("s_lshl_b32 s27, s27, 7")
        A(f"s_add_u32 m0, s23, {slot*PSLOT + h2*72*128}")
        for i in range(nP):
            if i: A("s_add_u32 m0, m0, 1024\ns_nop 0")
            A(f"buffer_load_dwordx4 v{2 + h2*3 + i}, s[4:7], s27 offen lds")
            issued.append(('P', s))
    def issueT(b):
        slot = b % 6
        rot_beat(A, b, 27)
        A(f"s_mul_i32 s27, s27, {32*3840}\ns_add_u32 s27, s27, s24")
        A(f"s_add_u32 m0, s26, {slot*TSLOT}")
        for i in range(nTi):
            if i: A("s_add_u32 m0, m0, 1024\ns_nop 0")
            A(f"buffer_load_dwordx4 v{8 + i}, s[8:11], s27 offen lds")
            issued.append(('T', b))
    run_loader_schedule(A, issueP, issueT, issued, None, True)


OT = 212
def z_oldtags(A, r32_sreg):
    srd(A, 12, 32, SZ_EP, WS_EP)
    A(f"s_lshl_b32 s40, s48, 7\nv_mov_b32 v221, s40")
    A(f"buffer_load_dwordx2 v[{OT}:{OT+1}], v221, s[12:15], 0 offen sc1")
def z_r32(A, dst):
    A(f"s_and_b32 s{dst}, s16, 1\ns_lshl_b32 s{dst}, s{dst}, 1\ns_lshr_b32 s41, s16, 2\ns_add_u32 s{dst}, s{dst}, s41")


def z_gate_load(A):
    srd(A, 4, 30, 2048*640*2); srd(A, 12, 38, 640*2)
    A("s_lshl_b32 s60, s48, 7\ns_lshl_b32 s61, s49, 4\ns_add_u32 s60, s60, s61\ns_lshl_b32 s61, s16, 2\ns_add_u32 s60, s60, s61") if False else None
    A("s_lshl_b32 s46, s48, 7\ns_lshl_b32 s47, s49, 4\ns_add_u32 s46, s46, s47\ns_lshl_b32 s47, s16, 2\ns_add_u32 s46, s46, s47")
    A(f"v_lshlrev_b32 v146, 4, v0\nv_add_u32 v147, 1024, v146\nv_mov_b32 v148, {KILL}\nv_cmp_le_u32 vcc, 16, v0\nv_cndmask_b32 v147, v147, v148, vcc")
    A("buffer_load_dwordx4 v[184:187], v146, s[12:15], 0 offen\nbuffer_load_dwordx4 v[188:191], v147, s[12:15], 0 offen")
    A("s_mul_i32 s47, s46, 1280")
    for r in range(4):
        A(f"s_add_u32 s45, s47, {r*1280}")
        A(f"buffer_load_dwordx4 v[{152+8*r}:{155+8*r}], v146, s[4:7], s45 offen\nbuffer_load_dwordx4 v[{156+8*r}:{159+8*r}], v147, s[4:7], s45 offen")
def z_gate_finish(A):
    for r in range(4):
        A(f"v_mov_b32 v{192+r}, 0")
        for q in range(4): A(f"v_dot2_f32_bf16 v{192+r}, v{152+8*r+q}, v{184+q}, v{192+r}")
        for q in range(4): A(f"v_dot2_f32_bf16 v{192+r}, v{156+8*r+q}, v{188+q}, v{192+r}")
    for ctl in ("row_shr:1 row_mask:0xf bank_mask:0xf bound_ctrl:0", "row_shr:2 row_mask:0xf bank_mask:0xf bound_ctrl:0", "row_shr:4 row_mask:0xf bank_mask:0xf bound_ctrl:0",
                "row_shr:8 row_mask:0xf bank_mask:0xf bound_ctrl:0", "row_bcast:15 row_mask:0xa bank_mask:0xf", "row_bcast:31 row_mask:0xc bank_mask:0xf"):
        for r in range(4): A(f"v_add_f32_dpp v{192+r}, v{192+r}, v{192+r} {ctl}")
    for r in range(4): A(f"v_mul_f32 v{192+r}, {f2u(-1.4426950408889634)}, v{192+r}")
    for r in range(4): A(f"v_exp_f32 v{192+r}, v{192+r}")
    for r in range(4): A(f"v_add_f32 v{192+r}, 1.0, v{192+r}")
    for r in range(4): A(f"v_rcp_f32 v{192+r}, v{192+r}")
    srd(A, 4, 32, SZ_G, WS_G)
    A("s_lshl_b32 s46, s46, 2\nv_mov_b32 v146, 0")
    A("s_mov_b32 s42, 0\ns_mov_b32 s43, 0x80000000\ns_mov_b64 exec, s[42:43]")
    for r in range(4): A(f"buffer_store_dword v{192+r}, v146, s[4:7], s46 offen offset:{4*r} sc1")
    A("s_mov_b64 exec, -1")

def k1_pack_load(A):
    T = 150
    c, cc, t2, p_, k_, x_ = T+2, T+3, T+4, T+5, T+6, T+7
    A("s_sub_u32 s40, s16, 4\ns_lshl_b32 s40, s40, 6")
    A(f"v_add_u32 v{c}, s40, v0\nv_and_b32 v{cc}, 127, v{c}\nv_lshrrev_b32 v{t2}, 7, v{c}\nv_lshrrev_b32 v{p_}, 1, v{cc}")
    A(f"v_and_b32 v{k_}, 0x33, v{p_}\nv_and_b32 v{x_}, 4, v{p_}\nv_lshl_or_b32 v{k_}, v{x_}, 1, v{k_}")
    A(f"v_and_b32 v{x_}, 8, v{p_}\nv_lshrrev_b32 v{x_}, 1, v{x_}\nv_or_b32 v{k_}, v{k_}, v{x_}")
    A(f"v_mul_u32_u24 v{k_}, 1280, v{k_}\nv_and_b32 v{x_}, 1, v{cc}\nv_lshl_add_u32 v{k_}, v{x_}, 4, v{k_}\nv_lshl_add_u32 v{k_}, v{t2}, 5, v{k_}")
    A(f"v_lshlrev_b32 v252, 4, v{cc}\nv_lshl_add_u32 v252, v{t2}, 11, v252")
    A(f"v_mov_b32 v{x_}, {KILL}\nv_cmp_eq_u32 vcc, 1, v{t2}\nv_cndmask_b32 v253, v252, v{x_}, vcc\nv_cndmask_b32 v{p_}, v{k_}, v{x_}, vcc")
    A("s_lshl_b32 s54, s48, 3\ns_add_u32 s54, s54, s49")
    for u, D in ((0, 224), (1, 236)):
        A(f"s_add_u32 s55, s54, {128*u}")
        A(f"s_mul_hi_u32 s41, s55, {(2**32 + 21)//22}\ns_mul_i32 s42, s41, 22\ns_sub_u32 s42, s55, s42")
        A("s_cmp_lt_u32 s42, 10\ns_cselect_b32 s12, s44, s46\ns_cselect_b32 s13, s45, s47")
        A(f"s_mov_b32 s14, {768*640*2}\ns_cselect_b32 s14, {640*640*2}, s14\ns_mov_b32 s15, 0x20000")
        A("s_cselect_b32 s43, 0, 10\ns_sub_u32 s43, s42, s43")
        A(f"s_mul_i32 s43, s43, {64*1280}\ns_mul_i32 s40, s41, 160\ns_add_u32 s43, s43, s40")
        A(f"s_cmp_ge_u32 s55, 176\ns_cselect_b32 s40, {KILL}, 0\ns_add_u32 s43, s43, s40")
        A(f"buffer_load_dwordx4 v[{D}:{D+3}], v{k_}, s[12:15], s43 offen")
        A(f"buffer_load_dwordx4 v[{D+4}:{D+7}], v{k_}, s[12:15], s43 offen offset:64")
        A(f"buffer_load_dwordx4 v[{D+8}:{D+11}], v{p_}, s[12:15], s43 offen offset:128")

def k1_pack_store(A):
    srd(A, 12, 32, SZ_WP, WS_WP)
    for u, D in ((0, 224), (1, 236)):
        A(f"s_add_u32 s55, s54, {128*u}")
        A(f"s_mul_i32 s41, s55, {5*2048}\ns_cmp_ge_u32 s55, 176\ns_cselect_b32 s42, {KILL}, 0\ns_add_u32 s41, s41, s42")
        A("s_add_u32 s42, s41, 4096\ns_add_u32 s43, s41, 8192")
        A(f"buffer_store_dwordx4 v[{D}:{D+3}], v252, s[12:15], s41 offen{O.k1st}")
        A(f"buffer_store_dwordx4 v[{D+4}:{D+7}], v252, s[12:15], s42 offen{O.k1st}")
        A(f"buffer_store_dwordx4 v[{D+8}:{D+11}], v253, s[12:15], s43 offen{O.k1st}")

def k1_compute_z(A, st):
    G = k1_geom('z'); PSLOT = G['PSLOT']; NPS = 3; TSLOT = G['TSLOT']; R = 6; TBASE = G['TBASE']
    mP = 4; nT = 6; nA = 3
    bP = 2; bT = 6
    F = [16, 16 + 4*(mP+nT)]
    ACC = 16 + 8*(mP+nT)
    A(f"s_and_b32 s20, s16, 1\ns_lshr_b32 s21, s16, 1\ns_mul_i32 s21, s21, {nA}")
    A("v_and_b32 v14, 15, v0\nv_lshrrev_b32 v15, 4, v0\nv_and_b32 v6, 7, v14\nv_xor_b32 v6, v15, v6\nv_lshlrev_b32 v14, 7, v14\nv_lshl_add_u32 v14, v6, 4, v14")
    A(f"s_mul_i32 s22, s20, {mP*2048}")
    A(f"v_add_u32 v{bP}, s22, v14\nv_xor_b32 v{bP+1}, 64, v{bP}")
    A("v_lshrrev_b32 v14, 2, v0\nv_and_b32 v14, 3, v14\nv_lshl_add_u32 v13, v15, 3, v14\nv_lshlrev_b32 v13, 8, v13")
    A("v_and_b32 v12, 3, v0\nv_lshl_add_u32 v13, v12, 3, v13\nv_and_b32 v12, 1, v15\nv_lshl_add_u32 v14, v12, 2, v14")
    A(f"v_add_u32 v15, {TBASE}, v13")
    for tl in range(nA):
        A(f"s_add_u32 s23, s21, {tl}\nv_xor_b32 v13, s23, v14\nv_lshl_add_u32 v{bT+tl}, v13, 5, v15")
    for tl in range(nA): A(f"v_add_u32 v{bT+nA+tl}, 0x10000, v{bT+tl}")
    for i in range(ACC, ACC + 4*mP*nT): A(f"v_mov_b32 v{i}, 0")
    def fP(s, m): return F[s] + 4*m
    def fT(s, t): return F[s] + 4*(mP + t)
    def acc(m, t): return ACC + 4*(m*nT + t)
    def reads(b):
        s = b & 1; kk = b & 1; ps = (b//2) % NPS; ts = b % R
        r = []
        for m in range(mP):
            f = fP(s, m); off = ps*PSLOT + m*2048
            r.append(f"ds_read_b128 v[{f}:{f+3}], v{bP + kk} offset:{off}")
        for t in range(nT):
            f = fT(s, t); tl = t % nA; u = t // nA
            for h in range(2):
                off = ts*TSLOT + u*8192 + h*1024; hi = off >> 16
                r.append(f"ds_read_b64_tr_b16 v[{f+2*h}:{f+2*h+1}], v{bT + tl + nA*hi} offset:{off & 0xffff}")
        return r
    A("s_barrier")
    for x in reads(0): A(x)
    A("s_waitcnt lgkmcnt(0)")
    st(); GS(A, 1)
    A("s_barrier")
    TAILM = 6
    def beat(b, last=False):
        s = b & 1
        mf = [f"v_mfma_f32_16x16x32_bf16 v[{acc(m,t)}:{acc(m,t)+3}], v[{fT(s,t)}:{fT(s,t)+3}], v[{fP(s,m)}:{fP(s,m)+3}], v[{acc(m,t)}:{acc(m,t)+3}]" for m in range(mP) for t in range(nT)]
        rd = [] if last else reads(b + 1)
        nfront = len(mf) - TAILM
        for i, x in enumerate(mf):
            A(x)
            if rd: A(rd.pop(0))
            if i == nfront - 1:
                assert not rd
                A("s_waitcnt lgkmcnt(0)\ns_barrier")
    L = "K1z_cloop"
    A("s_mov_b32 s26, 0")
    A.label(L)
    it_top(A)
    for b in range(6): beat(b)
    A(f"s_add_u32 s26, s26, 1\ns_cmp_lt_u32 s26, 3\ns_cbranch_scc1 {L}")
    it_mid(A)
    beat(18); beat(19, last=True)
    it_end(A, 14, 15)
    return acc

def k1_compute_q(A, wm, wn, st):
    G = k1_geom('q'); PSLOT = G['PSLOT']; TSLOT = G['TSLOT']; TBASE = G['TBASE']
    tiles = list(range(0, 8)) if wn == 0 else list(range(8, 15))
    halo = {(0, 0): [5, 6], (1, 0): [7], (0, 1): [8, 9, 10, 11], (1, 1): [12, 13, 14]}[(wm, wn)]
    nT = len(tiles); mP = 5
    F = [16, 16 + 4*(5 + 8)]
    ACC = 16 + 8*(5 + 8)
    A("v_and_b32 v14, 15, v0\nv_lshrrev_b32 v15, 4, v0\nv_and_b32 v6, 7, v14\nv_xor_b32 v6, v15, v6\nv_lshlrev_b32 v14, 7, v14\nv_lshl_add_u32 v2, v6, 4, v14")
    A("v_xor_b32 v3, 64, v2")
    A("v_lshrrev_b32 v6, 1, v15\nv_lshlrev_b32 v6, 4, v6\nv_and_b32 v7, 1, v15\nv_lshl_add_u32 v6, v7, 2, v6")
    A("v_lshrrev_b32 v7, 2, v0\nv_and_b32 v7, 3, v7\nv_add_u32 v6, v6, v7\nv_mul_u32_u24 v6, 480, v6\nv_and_b32 v7, 3, v0\nv_lshl_add_u32 v6, v7, 3, v6")
    A(f"v_add_u32 v4, {TBASE}, v6\nv_add_u32 v5, {TBASE + 3*TSLOT}, v6")
    accs = {}
    n = ACC
    for m in range(4):
        for t in tiles: accs[(m, t)] = n; n += 4
    for t in halo: accs[('h', t)] = n; n += 4
    assert n <= 256, n
    for i in range(ACC, n): A(f"v_mov_b32 v{i}, 0")
    def fP(s, m): return F[s] + 4*m
    def fT(s, t): return F[s] + 4*(5 + tiles.index(t))
    def reads(b):
        s = b & 1; kk = b & 1; ps = (b//2) % 3; ts = b % 6
        r = []
        for m in range(4):
            f = fP(s, m); r.append(f"ds_read_b128 v[{f}:{f+3}], v{2+kk} offset:{ps*PSLOT + (16 + 64*wm + 16*m)*128}")
        f = fP(s, 4); r.append(f"ds_read_b128 v[{f}:{f+3}], v{2+kk} offset:{ps*PSLOT}")
        for t in tiles:
            f = fT(s, t)
            for h in range(2):
                hi = 1 if ts >= 3 else 0
                r.append(f"ds_read_b64_tr_b16 v[{f+2*h}:{f+2*h+1}], v{4+hi} offset:{(ts - 3*hi)*TSLOT + h*8*480 + t*32}")
        return r
    A("s_barrier")
    for x in reads(0): A(x)
    A("s_waitcnt lgkmcnt(0)")
    st(); GS(A, 1)
    A("s_barrier")
    def beat(b, last=False):
        s = b & 1
        mf = []
        for m in range(4):
            for t in tiles:
                a_ = accs[(m, t)]; mf.append(f"v_mfma_f32_16x16x32_bf16 v[{a_}:{a_+3}], v[{fT(s,t)}:{fT(s,t)+3}], v[{fP(s,m)}:{fP(s,m)+3}], v[{a_}:{a_+3}]")
        for t in halo:
            a_ = accs[('h', t)]; mf.append(f"v_mfma_f32_16x16x32_bf16 v[{a_}:{a_+3}], v[{fT(s,t)}:{fT(s,t)+3}], v[{fP(s,4)}:{fP(s,4)+3}], v[{a_}:{a_+3}]")
        rd = [] if last else reads(b + 1)
        nfront = len(mf) - 8
        for i, x in enumerate(mf):
            A(x)
            if rd: A(rd.pop(0))
            if i == nfront - 1:
                assert not rd, (len(rd), nfront)
                A("s_waitcnt lgkmcnt(0)\ns_barrier")
    L = f"K1q{wm}{wn}_cloop"
    A("s_mov_b32 s26, 0")
    A.label(L)
    it_top(A)
    for b in range(6):
        if O.itstamp: A(f"s_memtime s[76:77]\ns_waitcnt lgkmcnt(0)\ns_cmp_eq_u32 s26, 0\ns_cselect_b32 s{85+b}, s76, s{85+b}")
        beat(b)
    A(f"s_add_u32 s26, s26, 1\ns_cmp_lt_u32 s26, 3\ns_cbranch_scc1 {L}")
    it_mid(A)
    beat(18); beat(19, last=True)
    it_end(A, 14, 15)
    st(); GS(A, 2)
    A(f"v_and_b32 v6, 15, v0\nv_mul_u32_u24 v6, {QP}, v6\nv_lshrrev_b32 v7, 4, v0\nv_lshl_add_u32 v6, v7, 3, v6")
    k = 0
    items = list(accs.items())
    for (key, a_) in items:
        A(f"v_cvt_pk_bf16_f32 v{16+2*k}, v{a_}, v{a_+1}\nv_cvt_pk_bf16_f32 v{17+2*k}, v{a_+2}, v{a_+3}")
        k += 1
    A(f"v_add_u32 v7, 0x8000, v6")
    k = 0
    for (key, a_) in items:
        m, t = key
        row = 0 if m == 'h' else 16 + 64*wm + 16*m
        off = row*QP + t*32
        if off < 65536: A(f"ds_write_b64 v6, v[{16+2*k}:{17+2*k}] offset:{off}")
        else: A(f"ds_write_b64 v7, v[{16+2*k}:{17+2*k}] offset:{off - 0x8000}")
        k += 1

def rot_table(A):
    A(f"s_and_b32 s28, s28, 3\ns_lshl_b32 s28, s28, 2\ns_lshr_b32 s28, {O.rottab if O.rot else 0}, s28\ns_and_b32 s28, s28, 15")

def k1(A):
    name = NAME + "_kernel"
    kernel_begin(A, name)
    A("s_cmp_ge_u32 s2, 256\ns_cbranch_scc1 K34_end")
    load_ptr(A, 30, 'x'); load_ptr(A, 32, 'ws'); load_ptr(A, 34, 'wqkv'); load_ptr(A, 36, 'win')
    load_ptr(A, 38, 'gw'); load_ptr(A, 44, 'wo'); load_ptr(A, 46, 'wout'); load_ptr(A, 52, 'wsp'); load_ptr(A, 50, 'dbg')
    wave_lane(A, 16)
    hd_start(A)
    st = Stamps(A, 0); st()
    GS(A, 0)
    A("s_waitcnt lgkmcnt(0)")
    A(f"s_add_u32 s96, s32, {WS_EP}\ns_addc_u32 s97, s33, 0\ns_load_dwordx2 s[98:99], s[96:97], 0")
    A("s_and_b32 s40, s2, 7\ns_lshr_b32 s41, s2, 3\ns_and_b32 s48, s40, 1\ns_lshl_b32 s48, s48, 3\ns_and_b32 s42, s41, 7\ns_add_u32 s48, s48, s42")
    A("s_lshr_b32 s49, s40, 1\ns_lshl_b32 s49, s49, 1\ns_lshr_b32 s43, s41, 3\ns_and_b32 s43, s43, 1\ns_add_u32 s49, s49, s43")
    A("s_lshl_b32 s28, s43, 1\ns_add_u32 s28, s28, s42")
    rot_table(A)
    A("s_cmp_lt_u32 s41, 16\ns_cbranch_scc1 K1_ztype")
    A("s_cmp_lt_u32 s16, 4\ns_cbranch_scc1 K1_qcomp")
    srd(A, 4, 30, 2048*640*2); srd(A, 8, 34, 640*1920*2)
    A("s_cmp_eq_u32 s16, 7\ns_cbranch_scc1 K1_qload3")
    k1_loader_q(A, False)
    A("s_branch K1_att")
    A.label("K1_qload3")
    k1_loader_q(A, True)
    A("s_branch K1_att")
    A.label("K1_qcomp")
    st()

    A("s_cmp_eq_u32 s16, 1\ns_cbranch_scc1 K1_q10\ns_cmp_eq_u32 s16, 2\ns_cbranch_scc1 K1_q01\ns_cmp_eq_u32 s16, 3\ns_cbranch_scc1 K1_q11")
    for (wm, wn) in ((0, 0), (1, 0), (0, 1), (1, 1)):
        if (wm, wn) != (0, 0): A.label(f"K1_q{wm}{wn}")
        stv = Stamps(A, 0, 2)
        k1_compute_q(A, wm, wn, stv)
        if (wm, wn) != (1, 1): A("s_branch K1_att")
    A.label("K1_att")
    st3 = Stamps(A, 0, 4)
    AV = 100
    A(f"s_and_b32 s46, s16, 3\ns_lshr_b32 s47, s16, 2\ns_mul_i32 s45, s46, 40\ns_mul_i32 s43, s47, {64*QP}\ns_add_u32 s45, s45, s43")
    A("s_or_b32 s43, s48, s47")
    attention_prep(A, AV, 45)
    T = 86
    A(f"s_lshl_b32 s20, s16, 6\nv_add_u32 v{T}, s20, v0")
    for i in range(3):
        c, r, q, la, ga = T+1, T+2, T+3, T+4+2*i, T+5+2*i
        A(f"v_add_u32 v{c}, {512*i}, v{T}")
        A(f"v_mul_u32_u24 v{r}, 6554, v{c}\nv_lshrrev_b32 v{r}, 16, v{r}")
        A(f"v_mul_u32_u24 v{q}, 10, v{r}\nv_sub_u32 v{q}, v{c}, v{q}")
        A(f"v_mul_u32_u24 v{la}, {QP}, v{r}\nv_lshl_add_u32 v{la}, v{q}, 4, v{la}\nv_add_u32 v{la}, {16*QP}, v{la}")
        A(f"s_lshl_b32 s20, s48, 7\nv_add_u32 v{ga}, s20, v{r}\nv_mul_u32_u24 v{ga}, 2816, v{ga}\nv_lshl_add_u32 v{ga}, v{q}, 4, v{ga}")
        A(f"s_mul_i32 s20, s49, 160\nv_add_u32 v{ga}, s20, v{ga}")
        if i == 2:
            A(f"v_mov_b32 v{q}, {KILL}\nv_cmp_le_u32 vcc, 1280, v{c}\nv_cndmask_b32 v{ga}, v{ga}, v{q}, vcc")
            A(f"v_mov_b32 v{q}, 0\nv_cndmask_b32 v{la}, v{la}, v{q}, vcc")
    srd(A, 12, 32, SZ_AU, WS_AU)
    A("s_waitcnt lgkmcnt(0)\ns_barrier")
    st3()
    attention_main(A, AV, 43)
    A("s_waitcnt lgkmcnt(0)\ns_barrier")
    st3()
    D = 16
    for i in range(3):
        A(f"ds_read_b64 v[{D+4*i}:{D+4*i+1}], v{T+4+2*i}\nds_read_b64 v[{D+4*i+2}:{D+4*i+3}], v{T+4+2*i} offset:8")
    A("s_waitcnt lgkmcnt(0)")
    for i in range(3): A(f"buffer_store_dwordx4 v[{D+4*i}:{D+4*i+3}], v{T+5+2*i}, s[12:15], 0 offen{O.k1st}")
    if O.stamp:
        A("s_cmp_ge_u32 s16, 4\ns_cbranch_scc1 K1_qnost")
    st3(); st3.flush(16, 32)
    A.label("K1_qnost")
    GS(A, 3)
    A("s_waitcnt vmcnt(0)\ns_barrier")
    srd(A, 12, 32, SZ_FQ, WS_FQ)
    A("s_lshl_b32 s20, s48, 6\ns_lshl_b32 s21, s49, 3\ns_add_u32 s20, s20, s21")
    A("s_branch K1_flag")
    A.label("K1_ztype")
    A(f"s_mul_i32 s17, s48, {128*1280}")
    A("s_mul_i32 s19, s49, 192\ns_add_u32 s18, s19, 1536")
    A("s_cmp_lt_u32 s16, 4\ns_cbranch_scc1 K1_zcomp")
    srd(A, 4, 30, 2048*640*2); srd(A, 8, 36, 640*1536*2)
    k1_loader_z(A)
    ACCZ = 96
    A("s_barrier")
    A("s_sub_u32 s20, s16, 4\ns_mul_i32 s20, s20, 12288\nv_lshlrev_b32 v4, 4, v0\nv_add_u32 v4, s20, v4")
    for k in range(12): A(f"ds_read_b128 v[{ACCZ+4*k}:{ACCZ+4*k+3}], v4 offset:{k*1024}")
    A("s_waitcnt lgkmcnt(0)")
    A("s_branch K1_zepi")
    A.label("K1_zcomp")
    st2 = Stamps(A, 0, 1); st2()
    acc = k1_compute_z(A, st2)
    st2(); GS(A, 2)
    assert acc(0, 0) == ACCZ
    A("s_mul_i32 s20, s16, 12288\nv_lshlrev_b32 v4, 4, v0\nv_add_u32 v4, s20, v4")
    for k in range(12): A(f"ds_write_b128 v4, v[{acc(2,0)+4*k}:{acc(2,0)+4*k+3}] offset:{k*1024}")
    A("s_waitcnt lgkmcnt(0)\ns_barrier")
    A.label("K1_zepi")
    A("s_and_b32 s20, s16, 1\ns_lshr_b32 s21, s16, 1\ns_and_b32 s21, s21, 1\ns_lshr_b32 s59, s16, 2")
    A("s_lshl_b32 s58, s20, 1\ns_add_u32 s58, s58, s59")
    A(f"s_mov_b32 s56, {f2u(C1)}\ns_mov_b32 s57, {f2u(C1)}")
    A(f"v_mov_b32 v6, {f2u(C0)}\nv_mov_b32 v7, {f2u(C0)}")
    z2 = [acc(m, t) + 2*q for m in range(2) for t in range(3) for q in range(2)]
    z1 = [acc(m, t) + 2*q for m in range(2) for t in range(3, 6) for q in range(2)]
    st2()
    gelu_pk(A, z2, 16, 56)
    st2()
    S = 70
    for m in range(2):
        vals = [acc(m, t) + r for t in range(3) for r in range(4)]
        A(f"v_pk_add_f32 v[{S+2*m}:{S+2*m+1}], v[{vals[0]}:{vals[1]}], v[{vals[2]}:{vals[3]}]")
        A(f"v_pk_mul_f32 v[{S+4+2*m}:{S+4+2*m+1}], v[{vals[0]}:{vals[1]}], v[{vals[0]}:{vals[1]}]")
        A(f"v_pk_fma_f32 v[{S+4+2*m}:{S+4+2*m+1}], v[{vals[2]}:{vals[3]}], v[{vals[2]}:{vals[3]}], v[{S+4+2*m}:{S+4+2*m+1}]")
        for q in range(2, 6):
            A(f"v_pk_add_f32 v[{S+2*m}:{S+2*m+1}], v[{S+2*m}:{S+2*m+1}], v[{vals[2*q]}:{vals[2*q+1]}]")
            A(f"v_pk_fma_f32 v[{S+4+2*m}:{S+4+2*m+1}], v[{vals[2*q]}:{vals[2*q+1]}], v[{vals[2*q]}:{vals[2*q+1]}], v[{S+4+2*m}:{S+4+2*m+1}]")
    for m in range(2):
        A(f"v_add_f32 v{S+2*m}, v{S+2*m}, v{S+2*m+1}\nv_add_f32 v{S+2*m+1}, v{S+4+2*m}, v{S+4+2*m+1}")
    for i in range(4): A(f"v_mov_b32 v{S+4+i}, v{S+i}")
    for i in range(4): A(f"v_permlane16_swap_b32 v{S+i}, v{S+4+i}")
    for i in range(4): A(f"v_add_f32 v{S+i}, v{S+i}, v{S+4+i}")
    for i in range(4): A(f"v_mov_b32 v{S+4+i}, v{S+i}")
    for i in range(4): A(f"v_permlane32_swap_b32 v{S+i}, v{S+4+i}")
    for i in range(4): A(f"v_add_f32 v{S+i}, v{S+i}, v{S+4+i}")
    A("v_lshrrev_b32 v3, 4, v0")
    A(f"v_and_b32 v5, 16, v0\nv_cmp_ne_u32 vcc, 0, v5\nv_cndmask_b32 v{S}, v{S}, v{S+2}, vcc\nv_cndmask_b32 v{S+1}, v{S+1}, v{S+3}, vcc")
    A("v_lshlrev_b32 v4, 3, v0\ns_lshl_b32 s22, s16, 9\ns_add_u32 s22, s22, 49152\nv_add_u32 v5, s22, v4")
    A(f"ds_write_b64 v5, v[{S}:{S+1}]")
    A("s_waitcnt lgkmcnt(0)\ns_barrier")
    A("v_xor_b32 v5, 1024, v5")
    A(f"ds_read_b64 v[{S+2}:{S+3}], v5")
    srd(A, 8, 32, SZ_ST, WS_ST)
    A("s_lshl_b32 s22, s49, 15\ns_lshl_b32 s23, s48, 11\ns_add_u32 s22, s22, s23\ns_lshl_b32 s23, s58, 9\ns_add_u32 s22, s22, s23")
    A("s_waitcnt lgkmcnt(0)")
    A(f"v_add_f32 v{S}, v{S}, v{S+2}\nv_add_f32 v{S+1}, v{S+1}, v{S+3}")
    st2()
    A("s_cmp_lg_u32 s21, 0\ns_cbranch_scc1 K1_z_nostat")
    A(f"s_add_u32 s24, s98, 1\nv_mov_b32 v{S+2}, s24\nv_mov_b32 v{S+3}, s99\nv_lshlrev_b32 v4, 4, v0")
    A("v_cmp_gt_u32 vcc, 32, v0\ns_and_saveexec_b64 s[24:25], vcc")
    A(f"buffer_store_dwordx4 v[{S}:{S+3}], v4, s[8:11], s22 offen sc1")
    A("s_mov_b64 exec, s[24:25]")
    A.label("K1_z_nostat")
    st2()
    A("s_cmp_ge_u32 s16, 4\ns_cbranch_scc1 K1_sj_pack")
    z_gate_load(A)
    A(f"v_mov_b32 v252, {KILL}\nv_mov_b32 v253, {KILL}\ns_mov_b32 s54, 0")
    A("s_branch K1_sj_done")
    A.label("K1_sj_pack")
    A("v_mov_b32 v146, 0")
    k1_pack_load(A)
    A.label("K1_sj_done")
    gelu_pk(A, z1, 16, 56)
    A("s_lshl_b32 s22, s48, 2\ns_add_u32 s22, s22, s58\ns_mul_i32 s22, s22, 48")
    A("s_mul_i32 s23, s49, 6\ns_add_u32 s22, s22, s23\ns_mul_i32 s23, s21, 3\ns_add_u32 s22, s22, s23\ns_lshl_b32 s26, s22, 10")
    A("v_lshlrev_b32 v11, 4, v0")
    Q = 200
    for t in range(3):
        d = Q + 4*t; a0 = acc(0, 3+t); a1 = acc(1, 3+t)
        A(f"v_cvt_pk_bf16_f32 v{d}, v{a0}, v{a0+1}\nv_cvt_pk_bf16_f32 v{d+1}, v{a0+2}, v{a0+3}\nv_cvt_pk_bf16_f32 v{d+2}, v{a1}, v{a1+1}\nv_cvt_pk_bf16_f32 v{d+3}, v{a1+2}, v{a1+3}")
    st2()
    A("s_waitcnt vmcnt(0)")
    srd(A, 4, 32, SZ_Z1, WS_Z1)
    for t in range(3): A(f"buffer_store_dwordx4 v[{Q+4*t}:{Q+4*t+3}], v11, s[4:7], s26 offen offset:{t*1024}{O.k1st}")
    A("s_cmp_lt_u32 s16, 4\ns_cbranch_scc1 K1_nopack")
    k1_pack_store(A)
    A("s_branch K1_packed")
    A.label("K1_nopack")
    z_gate_finish(A)
    A.label("K1_packed")
    A("s_lshl_b32 s22, s48, 11\ns_lshl_b32 s23, s58, 9\ns_add_u32 s22, s22, s23")
    A("v_and_b32 v4, 31, v0\nv_lshlrev_b32 v4, 4, v4")
    A(f"s_add_u32 s24, s98, 1\nv_mov_b32 v{OT}, s24\nv_mov_b32 v{OT+1}, s99")
    A("s_mov_b32 s24, 0")
    A.label("K1_poll")
    for jj in range(8):
        A(f"s_add_u32 s23, s22, {jj*32768}")
        A(f"buffer_load_dwordx4 v[{16+4*jj}:{19+4*jj}], v4, s[8:11], s23 offen sc1")
    A("s_waitcnt vmcnt(0)")
    A(f"v_xor_b32 v48, v18, v{OT}\nv_xor_b32 v49, v19, v{OT+1}\nv_or_b32 v48, v48, v49")
    for jj in range(1, 8): A(f"v_xor_b32 v49, v{18+4*jj}, v{OT}\nv_xor_b32 v50, v{19+4*jj}, v{OT+1}\nv_or3_b32 v48, v48, v49, v50")
    A("v_cmp_ne_u32 vcc, 0, v48")
    A("s_add_u32 s24, s24, 1\ns_nop 3")
    A("s_cbranch_vccz K1_polled")
    A(f"s_sleep {O.sleep}")
    A("s_cmp_lt_u32 s24, 0x10000\ns_cbranch_scc1 K1_poll")
    A.label("K1_polled")
    st2()
    srd(A, 12, 32, SZ_Z2P, WS_Z2P)
    A("s_lshl_b32 s22, s49, 5\ns_lshl_b32 s23, s48, 1\ns_add_u32 s22, s22, s23\ns_add_u32 s22, s22, s20\ns_mul_i32 s22, s22, 6")
    A("s_mul_i32 s23, s21, 3\ns_add_u32 s22, s22, s23\ns_lshl_b32 s22, s22, 11\ns_lshl_b32 s23, s59, 10\ns_add_u32 s22, s22, s23")
    A("v_and_b32 v6, 15, v0\nv_and_b32 v7, 3, v6\nv_and_b32 v10, 4, v6\nv_lshl_or_b32 v7, v10, 1, v7\nv_and_b32 v10, 8, v6\nv_lshrrev_b32 v10, 1, v10\nv_or_b32 v7, v7, v10")
    A("v_and_b32 v10, 1, v3\nv_lshl_add_u32 v7, v10, 4, v7\nv_lshlrev_b32 v7, 5, v7\nv_lshrrev_b32 v10, 1, v3\nv_lshl_add_u32 v10, v10, 4, v7")
    for jj in range(1, 8): A(f"v_add_f32 v16, v16, v{16+4*jj}\nv_add_f32 v17, v17, v{17+4*jj}")
    A(f"v_mul_f32 v16, {f2u(1/768)}, v16\nv_mul_f32 v17, {f2u(1/768)}, v17")
    A("v_fma_f32 v17, -v16, v16, v17\nv_max_f32 v17, 0, v17")
    A(f"v_add_f32 v17, {f2u(1e-5)}, v17\nv_rsq_f32 v17, v17")
    A("v_mul_f32 v16, v16, v17\nv_sub_f32 v16, 0, v16")
    A("v_and_b32 v5, 15, v0\nv_lshlrev_b32 v5, 2, v5")
    for m in range(2):
        A(f"v_add_u32 v8, {64*m}, v5")
        A(f"ds_bpermute_b32 v{32+2*m}, v8, v17\nds_bpermute_b32 v{33+2*m}, v8, v16")
    A("s_waitcnt lgkmcnt(0)")
    PK = 44
    for m in range(2):
        for t in range(3):
            a_ = acc(m, t)
            for r in range(4): A(f"v_fma_f32 v{a_+r}, v{a_+r}, v{32+2*m}, v{33+2*m}")
    for t in range(3):
        d = PK + 4*t; a0 = acc(0, t); a1 = acc(1, t)
        A(f"v_cvt_pk_bf16_f32 v{d}, v{a0}, v{a0+1}\nv_cvt_pk_bf16_f32 v{d+1}, v{a0+2}, v{a0+3}\nv_cvt_pk_bf16_f32 v{d+2}, v{a1}, v{a1+1}\nv_cvt_pk_bf16_f32 v{d+3}, v{a1+2}, v{a1+3}")
    for t in range(3):
        d = PK + 4*t
        A(f"v_permlane16_swap_b32 v{d}, v{d+2}\nv_permlane16_swap_b32 v{d+1}, v{d+3}")
    for t in range(3):
        A(f"s_add_u32 s23, s22, {t*2048}")
        A(f"buffer_store_dwordx4 v[{PK+4*t}:{PK+4*t+3}], v10, s[12:15], s23 offen{O.k1st}")
    if O.stamp:
        A("s_cmp_ge_u32 s16, 4\ns_cbranch_scc1 K1_znost")
    st2(); st2.flush(16, 32)
    A.label("K1_znost")
    GS(A, 3)
    A("s_waitcnt vmcnt(0)\ns_barrier")
    srd(A, 12, 32, SZ_FZ, WS_FZ)
    A("s_lshl_b32 s20, s49, 7\ns_lshl_b32 s21, s48, 3\ns_add_u32 s20, s20, s21")
    A.label("K1_flag")
    A("s_cmp_lg_u32 s16, 0\ns_cbranch_scc1 K1_done")
    A("s_add_u32 s21, s98, 1\nv_mov_b32 v8, s21\nv_mov_b32 v9, s99\nv_mov_b32 v10, s20")
    A("s_mov_b64 exec, 1")
    A("buffer_store_dwordx2 v[8:9], v10, s[12:15], 0 offen sc1")
    A("s_mov_b64 exec, -1")
    A.label("K1_done")
    GS(A, 4)
    return name, 256, 512, 147456, 256

SLOT = 20480
class E2:
    def __init__(self, A, pfx, NT, nsteps, pitchP, wave_m, wave_n, NS=6):
        self.A = A; self.pfx = pfx; self.NT = NT; self.n = nsteps; self.pitchP = pitchP
        self.mP = wave_m; self.nT = wave_n; self.NS = NS
        self.F = [8, 8 + 8*(wave_m + wave_n)]
        self.ACC = 8 + 16*(wave_m + wave_n)
        self.vend = self.ACC + 4*wave_m*wave_n
    def fP(self, s, kk, m): return self.F[s] + 4*(kk*(self.mP+self.nT) + m)
    def fT(self, s, kk, t): return self.F[s] + 4*(kk*(self.mP+self.nT) + self.mP + t)
    def acc(self, m, t): return self.ACC + 4*(m*self.nT + t)
    def loader_setup(self):
        A = self.A
        A("s_sub_u32 s21, s16, 4")
        A("v_lshrrev_b32 v7, 3, v0\nv_and_b32 v2, 7, v0\nv_xor_b32 v2, v2, v7")
        A(f"s_mov_b32 s20, {self.pitchP}\nv_mul_lo_u32 v7, v7, s20\nv_lshl_add_u32 v2, v2, 4, v7\nv_lshlrev_b32 v3, 4, v0")
        A(f"s_mul_i32 s20, s21, {16*self.pitchP}\ns_add_u32 s23, s17, s20")
        A("s_mul_i32 s20, s21, 3072\ns_add_u32 s24, s18, s20\ns_add_u32 s26, s20, 8192\ns_lshl_b32 s27, s21, 11")
        A("s_mov_b32 s28, 0\ns_mov_b32 s29, 0")
        if 2*self.NT < 12:
            A(f"s_mul_i32 s20, s21, 3\ns_cmp_ge_u32 s20, {2*self.NT - 1}\ns_cselect_b32 s28, {KILL}, 0\ns_cmp_ge_u32 s20, {2*self.NT - 2}\ns_cselect_b32 s29, {KILL}, 0")
        A("s_mov_b32 s22, 0")
    def issue(self):
        A = self.A
        A("s_add_u32 m0, s22, s27")
        A(f"s_add_u32 s20, s23, {8*self.pitchP - 1024}")
        A("buffer_load_dwordx4 v2, s[4:7], s23 offen lds")
        A("buffer_load_dwordx4 v2, s[4:7], s20 offen offset:1024 lds")
        A("s_add_u32 m0, s22, s26")
        if 2*self.NT < 12:
            A("s_add_u32 s25, s24, s28\ns_add_u32 s15, s24, s29")
            A("buffer_load_dwordx4 v3, s[8:11], s24 offen lds")
            A("buffer_load_dwordx4 v3, s[8:11], s25 offen offset:1024 lds")
            A("buffer_load_dwordx4 v3, s[8:11], s15 offen offset:2048 lds")
        else:
            A(f"buffer_load_dwordx4 v3, s[8:11], s24 offen{O.xl} lds")
            A(f"buffer_load_dwordx4 v3, s[8:11], s24 offen offset:1024{O.xl} lds")
            A(f"buffer_load_dwordx4 v3, s[8:11], s24 offen offset:2048{O.xl} lds")
        A(f"s_add_u32 s23, s23, 128\ns_add_u32 s24, s24, {self.NT*2048}")
        A(f"s_add_u32 s22, s22, {SLOT}\ns_cmp_eq_u32 s22, {self.NS*SLOT}\ns_cselect_b32 s22, 0, s22")
    def loader_main(self, pre_issued):
        A = self.A; NS = self.NS; n = self.n
        for i in range(pre_issued, NS - 1): self.issue()
        A(f"s_waitcnt vmcnt({(NS - 2)*5})")
        A("s_barrier")
        self.issue()
        L = self.pfx + "_lloop"
        A("s_mov_b32 s14, 0")
        A.label(L)
        A(f"s_waitcnt vmcnt({(NS-2)*5})\ns_barrier")
        self.issue()
        A(f"s_add_u32 s14, s14, 1\ns_cmp_lt_u32 s14, {n - NS}\ns_cbranch_scc1 {L}")
        for t in range(NS):
            i = n - NS + t
            rem = max(0, (n - 1) - (i + 1))
            A(f"s_waitcnt vmcnt({rem*5})\ns_barrier")
    def compute_setup(self, s_row, s_tile):
        A = self.A
        A("v_and_b32 v4, 15, v0\nv_lshrrev_b32 v5, 4, v0\nv_and_b32 v6, 7, v4\nv_xor_b32 v5, v5, v6\nv_lshlrev_b32 v4, 7, v4\nv_lshl_add_u32 v4, v5, 4, v4")
        A(f"s_lshl_b32 s20, s{s_row}, 7\nv_add_u32 v2, s20, v4\nv_xor_b32 v3, 64, v2")
        A("v_and_b32 v6, 15, v0\nv_lshlrev_b32 v6, 3, v6\nv_and_b32 v7, 16, v0\nv_lshl_add_u32 v6, v7, 3, v6\nv_and_b32 v7, 32, v0\nv_lshl_add_u32 v6, v7, 4, v6")
        A(f"s_lshl_b32 s20, s{s_tile}, 11\ns_add_u32 s20, s20, 8192\nv_add_u32 v4, s20, v6")
        A(f"v_add_u32 v5, {3*SLOT}, v2\nv_add_u32 v6, {3*SLOT}, v3\nv_add_u32 v7, {3*SLOT}, v4")
        for i in range(self.ACC, self.vend): A(f"v_mov_b32 v{i}, 0")
    def reads(self, step):
        s = step & 1; sl = step % self.NS; hi = 3 if sl >= 3 else 0; so = (sl - hi)*SLOT
        b = 3 if hi else 0
        r = []
        for kk in range(2):
            for m in range(self.mP):
                f = self.fP(s, kk, m); r.append(f"ds_read_b128 v[{f}:{f+3}], v{2+kk+b} offset:{so + m*2048}")
            for t in range(self.nT):
                f = self.fT(s, kk, t)
                for h in range(2): r.append(f"ds_read_b64_tr_b16 v[{f+2*h}:{f+2*h+1}], v{4+b} offset:{so + t*2048 + kk*1024 + h*256}")
        return r
    def step(self, i, last=False):
        A = self.A; s = i & 1
        rd = [] if last else self.reads(i + 1)
        mf = [f"v_mfma_f32_16x16x32_bf16 v[{self.acc(m,t)}:{self.acc(m,t)+3}], v[{self.fT(s,kk,t)}:{self.fT(s,kk,t)+3}], v[{self.fP(s,kk,m)}:{self.fP(s,kk,m)+3}], v[{self.acc(m,t)}:{self.acc(m,t)+3}]"
              for kk in range(2) for m in range(self.mP) for t in range(self.nT)]
        A("s_barrier")
        per = (len(rd) + len(mf) - 1)//len(mf) if rd else 0
        for x in mf:
            for _ in range(per):
                if rd: A(rd.pop(0))
            A(x)
        A("s_waitcnt lgkmcnt(0)")
    def compute(self, st, unroll=False, hooks=None):
        A = self.A; NS = self.NS; n = self.n
        assert NS % 2 == 0
        A("s_barrier")
        for x in self.reads(0): A(x)
        A("s_waitcnt lgkmcnt(0)")
        st()
        if unroll:
            for i in range(n):
                self.step(i, last=(i == n - 1))
                if hooks and i in hooks: hooks[i]()
            return
        nfull = (n - 1)//NS
        L = self.pfx + "_cloop"
        A("s_mov_b32 s19, 0")
        A.label(L)
        for i in range(NS): self.step(i)
        A(f"s_add_u32 s19, s19, 1\ns_cmp_lt_u32 s19, {nfull}\ns_cbranch_scc1 {L}")
        for i in range(nfull*NS, n): self.step(i, last=(i == n - 1))

def tile_map(A):
    A("s_and_b32 s42, s2, 7\ns_lshr_b32 s43, s2, 3\ns_lshr_b32 s40, s42, 1\ns_lshl_b32 s40, s40, 3\ns_and_b32 s44, s43, 7\ns_add_u32 s40, s40, s44")
    A("s_and_b32 s41, s42, 1\ns_lshl_b32 s41, s41, 2\ns_lshr_b32 s44, s43, 3\ns_add_u32 s41, s41, s44")

ATT_LDS = 6*SLOT
def attention_regs(V):
    R = dict(aQ=V+1, aK=V+2, aV=V+3, t0=V+4, t1=V+5, t2=V+6, M20=V+7, M21=V+8, N20=V+9, N21=V+10)
    S = (V + 12 + 3)//4*4
    R.update(S=S, QF=S+12, KF=S+22, VF=S+52, OO=(S+82+3)//4*4)
    return R
def attention_prep(A, V, s_off):
    R = attention_regs(V); aQ, aK, aV, t0, t1, t2 = R['aQ'], R['aK'], R['aV'], R['t0'], R['t1'], R['t2']
    M20, M21, N20, N21, S, OO = R['M20'], R['M21'], R['N20'], R['N21'], R['S'], R['OO']
    A(f"v_lshrrev_b32 v{t0}, 3, v0\nv_lshlrev_b32 v{t0}, 2, v{t0}\nv_and_b32 v{t1}, 3, v0\nv_add_u32 v{t0}, v{t0}, v{t1}")
    A(f"v_lshrrev_b32 v{t1}, 2, v0\nv_and_b32 v{t1}, 1, v{t1}\nv_lshl_add_u32 v{t0}, v{t0}, 1, v{t1}")
    A(f"v_mul_u32_u24 v{t0}, {QP}, v{t0}\nv_add_u32 v{aK}, s{s_off}, v{t0}\nv_add_u32 v{aQ}, {16*QP}, v{aK}")
    A(f"v_lshrrev_b32 v{t1}, 4, v0\nv_lshlrev_b32 v{t1}, 2, v{t1}\nv_and_b32 v{t2}, 3, v0\nv_add_u32 v{t1}, v{t1}, v{t2}")
    A(f"v_lshrrev_b32 v{t2}, 1, v{t1}\nv_lshlrev_b32 v{t2}, 2, v{t2}\nv_and_b32 v{t1}, 1, v{t1}")
    A(f"v_lshrrev_b32 v{aV}, 2, v0\nv_and_b32 v{aV}, 3, v{aV}\nv_add_u32 v{aV}, v{aV}, v{t2}\nv_lshl_add_u32 v{aV}, v{aV}, 1, v{t1}")
    A(f"v_mul_u32_u24 v{aV}, {QP}, v{aV}\nv_add_u32 v{aV}, s{s_off}, v{aV}")
    A(f"v_and_b32 v{t1}, 3, v0")
    A(f"v_mov_b32 v{M20}, 0xffff\nv_mov_b32 v{t2}, -1\nv_cmp_le_u32 vcc, 1, v{t1}\nv_cndmask_b32 v{M20}, v{M20}, v{t2}, vcc")
    A(f"v_mov_b32 v{M21}, 0\nv_mov_b32 v{t2}, 0xffff\nv_cmp_le_u32 vcc, 2, v{t1}\nv_cndmask_b32 v{M21}, v{M21}, v{t2}, vcc")
    A(f"v_mov_b32 v{t2}, -1\nv_cmp_eq_u32 vcc, 3, v{t1}\nv_cndmask_b32 v{M21}, v{M21}, v{t2}, vcc")
    A(f"v_not_b32 v{N20}, v{M20}\nv_not_b32 v{N21}, v{M21}")
    for i in range(12): A(f"v_mov_b32 v{S+i}, 0")
    for i in range(20): A(f"v_mov_b32 v{OO+i}, 0")
    A("s_mov_b32 s22, 0xeeeeeeee\ns_mov_b32 s23, 0xeeeeeeee\ns_mov_b32 s24, 0xcccccccc\ns_mov_b32 s25, 0xcccccccc\ns_mov_b32 s26, 0x88888888\ns_mov_b32 s27, 0x88888888")
def attention_main(A, V, s_bound):
    R = attention_regs(V); aQ, aK, aV, t0, t1, t2 = R['aQ'], R['aK'], R['aV'], R['t0'], R['t1'], R['t2']
    M20, M21, N20, N21, S, QF, KF, VF, OO = R['M20'], R['M21'], R['N20'], R['N21'], R['S'], R['QF'], R['KF'], R['VF'], R['OO']
    for dg in range(5):
        A(f"ds_read_b64 v[{QF+2*dg}:{QF+2*dg+1}], v{aQ} offset:{8*dg}")
        for c in range(3): A(f"ds_read_b64 v[{KF+2*(5*c+dg)}:{KF+2*(5*c+dg)+1}], v{aK} offset:{8*c*QP + 160 + 8*dg}")
    for dg in range(5):
        if dg == 0:
            A("s_waitcnt lgkmcnt(15)")
        rem = 20 - 4*(dg+1)
        A(f"s_waitcnt lgkmcnt({min(rem, 15)})")
        for c in range(3):
            A(f"v_mfma_f32_4x4x4_16b_bf16 v[{S+4*c}:{S+4*c+3}], v[{KF+2*(5*c+dg)}:{KF+2*(5*c+dg)+1}], v[{QF+2*dg}:{QF+2*dg+1}], v[{S+4*c}:{S+4*c+3}]")
    for c in range(3):
        for dg in range(5): A(f"ds_read_b64_tr_b16 v[{VF+2*(5*c+dg)}:{VF+2*(5*c+dg)+1}], v{aV} offset:{8*c*QP + 320 + 8*dg}")
    Lb = A.newlabel("att_nomask")
    A(f"s_cmp_lg_u32 s{s_bound}, 0\ns_cbranch_scc1 {Lb}")
    A(f"v_mov_b32 v{t2}, {f2u(-1e30)}")
    A("v_cmp_gt_u32 vcc, 16, v0")
    for i in range(4): A(f"v_cndmask_b32 v{S+i}, v{S+i}, v{t2}, vcc")
    A("v_cmp_gt_u32 vcc, 8, v0")
    for i in range(4): A(f"v_cndmask_b32 v{S+4+i}, v{S+4+i}, v{t2}, vcc")
    A("s_nop 4")
    A.label(Lb)
    A("s_nop 4")
    for i in range(1, 4): A(f"v_cndmask_b32 v{S+8+i}, v{S+i}, v{S+8+i}, s[{20+2*i}:{21+2*i}]")
    vals = [S+4+i for i in range(8)]
    A(f"v_max3_f32 v{t0}, v{vals[0]}, v{vals[1]}, v{vals[2]}\nv_max3_f32 v{t1}, v{vals[3]}, v{vals[4]}, v{vals[5]}\nv_max3_f32 v{t0}, v{t0}, v{vals[6]}, v{vals[7]}\nv_max_f32 v{t0}, v{t0}, v{t1}")
    SC = (20 ** -0.5) * 1.4426950408889634
    A(f"s_mov_b32 s20, {f2u(SC)}")
    A(f"v_mul_f32 v{t0}, s20, v{t0}")
    for x in vals: A(f"v_fma_f32 v{x}, v{x}, s20, -v{t0}")
    for x in vals: A(f"v_exp_f32 v{x}, v{x}")
    A(f"v_add_f32 v{t0}, v{vals[0]}, v{vals[1]}\nv_add_f32 v{t1}, v{vals[2]}, v{vals[3]}\nv_add_f32 v{t2}, v{vals[4]}, v{vals[5]}\nv_add_f32 v{t0}, v{t0}, v{t1}")
    A(f"v_add_f32 v{t1}, v{vals[6]}, v{vals[7]}\nv_add_f32 v{t0}, v{t0}, v{t2}\nv_add_f32 v{t0}, v{t0}, v{t1}")
    A(f"v_rcp_f32 v{t0}, v{t0}")
    for x in vals: A(f"v_mul_f32 v{x}, v{x}, v{t0}")
    PP = QF
    A(f"v_cvt_pk_bf16_f32 v{PP+2}, v{S+4}, v{S+5}\nv_cvt_pk_bf16_f32 v{PP+3}, v{S+6}, v{S+7}")
    A(f"v_cvt_pk_bf16_f32 v{t1}, v{S+8}, v{S+9}\nv_cvt_pk_bf16_f32 v{t2}, v{S+10}, v{S+11}")
    A(f"v_and_b32 v{PP+4}, v{t1}, v{M20}\nv_and_b32 v{PP+5}, v{t2}, v{M21}\nv_and_b32 v{PP}, v{t1}, v{N20}\nv_and_b32 v{PP+1}, v{t2}, v{N21}")
    A("s_waitcnt lgkmcnt(0)")
    for c in (1, 0, 2):
        for dg in range(5):
            A(f"v_mfma_f32_4x4x4_16b_bf16 v[{OO+4*dg}:{OO+4*dg+3}], v[{VF+2*(5*c+dg)}:{VF+2*(5*c+dg)+1}], v[{PP+2*c}:{PP+2*c+1}], v[{OO+4*dg}:{OO+4*dg+3}]")
    for dg in range(5):
        A(f"v_cvt_pk_bf16_f32 v{KF+2*dg}, v{OO+4*dg}, v{OO+4*dg+1}\nv_cvt_pk_bf16_f32 v{KF+2*dg+1}, v{OO+4*dg+2}, v{OO+4*dg+3}")
    for dg in range(5): A(f"ds_write_b64 v{aQ}, v[{KF+2*dg}:{KF+2*dg+1}] offset:{8*dg}")

def k3(A):
    name = "k3_kernel"
    kernel_begin(A, name)
    A("s_cmp_ge_u32 s2, 256\ns_cbranch_scc1 K3_end")
    load_ptr(A, 30, 'wsp'); load_ptr(A, 32, 'ws'); load_ptr(A, 34, 'bsp')
    wave_lane(A, 16)
    tile_map(A)
    st = Stamps(A, 2); st()
    E = E2(A, "K3", 6, 32, 4096, 2, 3)
    A(f"s_mul_i32 s17, s40, {64*4096}\ns_mul_i32 s18, s41, {32*6*2048}")
    A("s_waitcnt lgkmcnt(0)")
    A("s_cmp_lt_u32 s16, 4\ns_cbranch_scc1 K3_comp")
    srd(A, 4, 30, 2048*2048*2); srd(A, 8, 32, SZ_Z2P, WS_Z2P)
    E.loader_setup()
    E.loader_main(0)
    A("s_branch K3_end")
    A.label("K3_comp")
    A("s_and_b32 s46, s16, 1\ns_lshl_b32 s46, s46, 5\ns_lshr_b32 s47, s16, 1\ns_mul_i32 s47, s47, 3")
    PF = 116
    srd(A, 4, 32, SZ_Z1, WS_Z1); srd(A, 8, 32, SZ_G, WS_G); srd(A, 12, 34, 2048*2)
    A("s_lshl_b32 s43, s40, 6\ns_add_u32 s43, s43, s46")
    A("v_and_b32 v112, 15, v0\nv_add_u32 v112, s43, v112\nv_lshrrev_b32 v113, 4, v0")
    A("s_lshr_b32 s48, s43, 5\ns_mul_i32 s48, s48, 48\ns_mul_i32 s49, s41, 6\ns_add_u32 s48, s48, s49\ns_add_u32 s48, s48, s47\ns_lshl_b32 s48, s48, 10")
    A("v_lshlrev_b32 v114, 4, v0")
    for t in range(3): A(f"buffer_load_dwordx4 v[{PF+4*t}:{PF+4*t+3}], v114, s[4:7], s48 offen offset:{t*1024}")
    A("v_lshlrev_b32 v115, 2, v112")
    A(f"buffer_load_dword v{PF+12}, v115, s[8:11], 0 offen\nbuffer_load_dword v{PF+13}, v115, s[8:11], 0 offen offset:64")
    A("v_lshlrev_b32 v115, 1, v112")
    A(f"buffer_load_ushort v{PF+14}, v115, s[12:15], 0 offen\nbuffer_load_ushort v{PF+15}, v115, s[12:15], 0 offen offset:32")
    E.compute_setup(46, 47)
    st()
    E.compute(st)
    st()
    A("s_waitcnt vmcnt(0)")
    srd(A, 12, 32, SZ_AU, WS_AU)
    for m in range(2): A(f"v_lshlrev_b32 v{PF+14+m}, 16, v{PF+14+m}\nv_sub_f32 v{PF+12+m}, 1.0, v{PF+12+m}")
    T = 132
    for m in range(2):
        for t in range(3):
            ac = E.acc(m, t)
            for q in range(2):
                z = PF + 4*t + 2*m + q
                A(f"v_lshlrev_b32 v{T}, 16, v{z}\nv_and_b32 v{T+1}, 0xffff0000, v{z}")
                A(f"v_add_f32 v{T+2}, v{ac+2*q}, v{PF+14+m}\nv_add_f32 v{T+3}, v{ac+2*q+1}, v{PF+14+m}")
                A(f"v_mul_f32 v{T}, v{T}, v{PF+12+m}\nv_mul_f32 v{T+1}, v{T+1}, v{PF+12+m}")
                A(f"v_mul_f32 v{T+2}, v{T+2}, v{T}\nv_mul_f32 v{T+3}, v{T+3}, v{T+1}")
                A(f"v_cvt_pk_bf16_f32 v{z}, v{T+2}, v{T+3}")
    A("s_mov_b32 s45, 2816\nv_mul_lo_u32 v114, v112, s45\nv_lshl_add_u32 v114, v113, 3, v114")
    A("s_mul_i32 s48, s41, 192\ns_lshl_b32 s49, s47, 5\ns_add_u32 s48, s48, s49\ns_add_u32 s48, s48, 1280\nv_add_u32 v114, s48, v114")
    A(f"s_mov_b32 s49, {16*2816}")
    for m in range(2):
        for t in range(3):
            z = PF + 4*t + 2*m
            A(f"buffer_store_dwordx2 v[{z}:{z+1}], v114, s[12:15], {'s49' if m else '0'} offen offset:{t*32}")
    st(); st.flush(16, 32)
    A.label("K3_end")
    A("s_endpgm")
    return name, 256, 512, 6*SLOT, 140

def k4(A):
    name = "k4_kernel"
    kernel_begin(A, name)
    A("s_cmp_ge_u32 s2, 256\ns_cbranch_scc1 K4_end")
    load_ptr(A, 30, 'out'); load_ptr(A, 32, 'ws')
    wave_lane(A, 16)
    tile_map(A)
    st = Stamps(A, 3); st()
    E = E2(A, "K4", 5, 22, 2816, 1, 5)
    A(f"s_mul_i32 s17, s40, {64*2816}\ns_mul_i32 s18, s41, {22*5*2048}")
    A("s_waitcnt lgkmcnt(0)")
    A("s_cmp_lt_u32 s16, 4\ns_cbranch_scc1 K4_comp")
    srd(A, 4, 32, SZ_AU, WS_AU); srd(A, 8, 32, SZ_WP, WS_WP)
    E.loader_setup()
    E.loader_main(0)
    A("s_branch K4_end")
    A.label("K4_comp")
    A("s_lshl_b32 s46, s16, 4\ns_mov_b32 s47, 0")
    srd(A, 8, 32, SZ_G, WS_G)
    A("s_lshl_b32 s43, s40, 6\ns_add_u32 s43, s43, s46\nv_and_b32 v126, 15, v0\nv_add_u32 v126, s43, v126\nv_lshlrev_b32 v126, 2, v126")
    A("buffer_load_dword v125, v126, s[8:11], 0 offen")
    E.compute_setup(46, 47)
    st()
    def scale():
        A("s_waitcnt vmcnt(0)")
        for t in range(5):
            for r in range(4): A(f"v_mul_f32 v{E.acc(0,t)+r}, v{E.acc(0,t)+r}, v125")
    E.compute(st, unroll=True, hooks={9: scale})
    st()
    A("s_lshl_b32 s43, s40, 6\ns_add_u32 s43, s43, s46\nv_and_b32 v2, 15, v0\nv_add_u32 v2, s43, v2\nv_lshrrev_b32 v3, 4, v0")
    srd(A, 12, 30, 2048*640*2)
    PK = 8
    for t in range(5):
        ac = E.acc(0, t)
        A(f"v_cvt_pk_bf16_f32 v{PK+2*t}, v{ac}, v{ac+1}\nv_cvt_pk_bf16_f32 v{PK+2*t+1}, v{ac+2}, v{ac+3}")
    A("s_mov_b32 s45, 1280\nv_mul_lo_u32 v4, v2, s45\nv_lshl_add_u32 v4, v3, 3, v4\ns_mul_i32 s46, s41, 160\nv_add_u32 v4, s46, v4")
    for t in range(5): A(f"buffer_store_dwordx2 v[{PK+2*t}:{PK+2*t+1}], v4, s[12:15], 0 offen offset:{t*32}")
    st(); st.flush(16, 32)
    A.label("K4_end")
    A("s_endpgm")
    return name, 256, 512, 6*SLOT, 128

def k34(A):
    name = "k34_kernel"
    NS = 6; N1 = 32; N2 = 22; N = N1 + N2
    USTG = NS*SLOT
    LCNT = USTG + 64*208
    load_ptr(A, 30, 'wsp'); load_ptr(A, 34, 'bsp'); load_ptr(A, 36, 'out'); load_ptr(A, 38, 'dbg')
    tile_map(A)
    hd_start(A)
    st = Stamps(A, 2); st()
    E1 = E2(A, "K34a", 6, N1, 4096, 2, 3)
    def wait_zflags(tag, va, vd):
        srd(A, 12, 32, SZ_FZ, WS_FZ)
        A(f"v_lshlrev_b32 v{va}, 4, v0\ns_add_u32 s45, s98, 1\ns_mov_b32 s47, 0")
        A.label(f"K34_zp{tag}")
        A(f"buffer_load_dwordx4 v[{vd}:{vd+3}], v{va}, s[12:15], 0 offen sc1\ns_waitcnt vmcnt(0)")
        A(f"v_xor_b32 v{vd}, s45, v{vd}\nv_xor_b32 v{vd+1}, s99, v{vd+1}\nv_xor_b32 v{vd+2}, s45, v{vd+2}\nv_xor_b32 v{vd+3}, s99, v{vd+3}")
        A(f"v_or3_b32 v{vd}, v{vd}, v{vd+1}, v{vd+2}\nv_or_b32 v{vd}, v{vd}, v{vd+3}\nv_cmp_ne_u32 vcc, 0, v{vd}\ns_add_u32 s47, s47, 1\ns_nop 3")
        A(f"s_cbranch_vccz K34_zok{tag}\ns_sleep {O.sleep}\ns_cmp_lt_u32 s47, 0x10000\ns_cbranch_scc1 K34_zp{tag}")
        A.label(f"K34_zok{tag}")
    A("s_waitcnt lgkmcnt(0)")
    A("s_cmp_lt_u32 s16, 4\ns_cbranch_scc1 K34_comp")
    srd(A, 4, 30, 2048*2048*2); srd(A, 8, 32, SZ_Z2P, WS_Z2P)
    A(f"s_mul_i32 s17, s40, {64*4096}\ns_mul_i32 s18, s41, {32*6*2048}")
    E1.loader_setup()
    A("v_lshrrev_b32 v7, 3, v0\nv_and_b32 v4, 7, v0\nv_xor_b32 v4, v4, v7\nv_mul_u32_u24 v7, 2816, v7\nv_lshl_add_u32 v4, v4, 4, v7")
    A("v_lshrrev_b32 v7, 3, v0\nv_and_b32 v5, 7, v0\nv_xor_b32 v5, v5, v7\nv_mul_u32_u24 v7, 384, v7\nv_lshl_add_u32 v10, v5, 4, v7")
    for i in range(NS - 1):
        A(f"s_add_u32 m0, s27, {i*SLOT}\ns_add_u32 s20, s23, {i*128}\ns_add_u32 s25, s23, {i*128 + 8*4096 - 1024}")
        A("buffer_load_dwordx4 v2, s[4:7], s20 offen lds\nbuffer_load_dwordx4 v2, s[4:7], s25 offen offset:1024 lds")
    A("s_cmp_lg_u32 s16, 4\ns_cbranch_scc1 K34_lf")
    srd(A, 12, 32, SZ_FZ, WS_FZ)
    A("s_lshl_b32 s46, s41, 7\nv_and_b32 v14, 15, v0\nv_lshlrev_b32 v14, 3, v14\nv_add_u32 v14, s46, v14\ns_add_u32 s45, s98, 1\ns_mov_b32 s47, 0")
    A.label("K34_zpL")
    A("buffer_load_dwordx2 v[16:17], v14, s[12:15], 0 offen sc1\ns_waitcnt vmcnt(0)")
    A("v_xor_b32 v16, s45, v16\nv_xor_b32 v17, s99, v17\nv_or_b32 v16, v16, v17\nv_cmp_ne_u32 vcc, 0, v16\ns_add_u32 s47, s47, 1\ns_nop 3")
    A(f"s_cbranch_vccz K34_lf\ns_sleep {O.sleep2}\ns_cmp_lt_u32 s47, 0x10000\ns_cbranch_scc1 K34_zpL")
    A.label("K34_lf")
    A("s_barrier")
    for i in range(NS - 1):
        A(f"s_add_u32 m0, s26, {i*SLOT}\ns_add_u32 s20, s24, {i*6*2048}")
        for q in range(3): A(f"buffer_load_dwordx4 v3, s[8:11], s20 offen offset:{q*1024}{O.xl} lds")
    A(f"s_add_u32 s23, s23, {(NS-1)*128}\ns_add_u32 s24, s24, {(NS-1)*6*2048}\ns_mov_b32 s22, {(NS-1)*SLOT}")
    A(f"s_waitcnt vmcnt({(NS - 2)*3})\ns_barrier")
    E1.issue()
    for i in range(NS - 2):
        rem = (NS - 2 - (i + 1))*3 + (i + 1)*5
        A(f"s_waitcnt vmcnt({rem})\ns_barrier")
        E1.issue()
    A(f"s_mov_b32 s14, {NS - 2}")
    A.label("K34_lloop")
    A(f"s_waitcnt vmcnt({(NS-2)*5})\ns_barrier")
    E1.issue()
    A(f"s_add_u32 s14, s14, 1\ns_cmp_lt_u32 s14, {N1 - NS}\ns_cbranch_scc1 K34_lloop")
    srd(A, 4, 32, SZ_AU, WS_AU); srd(A, 8, 32, SZ_WP, WS_WP); srd(A, 12, 32, SZ_FL, WS_FL)
    A(f"s_mul_i32 s17, s40, {64*2816}\ns_mul_i32 s20, s21, {16*2816}\ns_add_u32 s23, s17, s20")
    A(f"s_mul_i32 s18, s41, {22*5*2048}\ns_mul_i32 s20, s21, 3072\ns_add_u32 s24, s18, s20")
    A(f"s_mul_i32 s20, s21, 3\ns_cmp_ge_u32 s20, 9\ns_cselect_b32 s28, {KILL}, 0\ns_cmp_ge_u32 s20, 8\ns_cselect_b32 s29, {KILL}, 0")
    A("s_lshl_b32 s44, s40, 7\nv_and_b32 v8, 7, v0\nv_lshlrev_b32 v8, 3, v8\nv_add_u32 v8, s44, v8\ns_add_u32 s53, s98, 1")
    srd(A, 48, 32, SZ_U, WS_U)
    A(f"s_mul_i32 s52, s40, {4*24576}\ns_mul_i32 s20, s21, {16*384}\ns_add_u32 s52, s52, s20")
    issued = [('S', s) for s in range(N1 - NS + 2 - 1, N1) for _ in range(5)]
    def issueP(s):
        sl = s % NS; s2_ = s - N1
        fl = " sc1" if (s2_ >= 10 and O.usc1) else ""
        A(f"s_add_u32 m0, s27, {sl*SLOT}")
        if s2_ < 10:
            A(f"s_add_u32 s20, s23, {s2_*128}\ns_add_u32 s25, s23, {s2_*128 + 8*2816 - 1024}")
            A(f"buffer_load_dwordx4 v4, s[4:7], s20 offen{O.xl} lds")
            A(f"buffer_load_dwordx4 v4, s[4:7], s25 offen offset:1024{O.xl} lds")
        else:
            a_, b_ = divmod(s2_ - 10, 3)
            A(f"s_add_u32 s20, s52, {a_*24576 + b_*128}\ns_add_u32 s25, s52, {a_*24576 + b_*128 + 8*384 - 1024}")
            A(f"buffer_load_dwordx4 v10, s[48:51], s20 offen{fl} lds")
            A(f"buffer_load_dwordx4 v10, s[48:51], s25 offen offset:1024{fl} lds")
        issued.extend([('P', s)]*2)
    def issueT(s):
        sl = s % NS; s2_ = s - N1
        A(f"s_add_u32 m0, s26, {sl*SLOT}")
        A(f"s_add_u32 s20, s24, {s2_*10240}\ns_add_u32 s25, s20, s28\ns_add_u32 s45, s20, s29")
        A(f"buffer_load_dwordx4 v3, s[8:11], s20 offen{O.xl} lds")
        A(f"buffer_load_dwordx4 v3, s[8:11], s25 offen offset:1024{O.xl} lds")
        A(f"buffer_load_dwordx4 v3, s[8:11], s45 offen offset:2048{O.xl} lds")
        issued.extend([('T', s)]*3)
    def wait_for(needs):
        last = -1
        for idx, tg in enumerate(issued):
            if tg in needs: last = idx
        if last < 0: return
        A(f"s_waitcnt vmcnt({min(len(issued) - 1 - last, 63)})")
    FIRSTU = N1 + 10
    POLL_I = O.poll_i
    deferred = []
    gate_open = False
    for i in range(N1 - NS, N):
        nxt = i + 1
        if nxt < N:
            wait_for([('S', nxt), ('P', nxt), ('T', nxt)])
        A("s_barrier")
        if i == POLL_I + 1:
            wait_for([('X', 0)])
            A("v_xor_b32 v12, s53, v12\nv_xor_b32 v13, s99, v13\nv_or_b32 v12, v12, v13\nv_cmp_ne_u32 vcc, 0, v12\ns_nop 4")
            A("s_cbranch_vccz K34_ready")
            A("s_mov_b32 s47, 0")
            A.label("K34_poll")
            A(f"s_sleep {O.sleep}")
            A("buffer_load_dwordx2 v[12:13], v8, s[12:15], 0 offen sc1")
            A("s_waitcnt vmcnt(0)")
            A("v_xor_b32 v12, s53, v12\nv_xor_b32 v13, s99, v13\nv_or_b32 v12, v12, v13\nv_cmp_ne_u32 vcc, 0, v12")
            A("s_add_u32 s47, s47, 1\ns_nop 3")
            A("s_cbranch_vccz K34_ready")
            A("s_cmp_lt_u32 s47, 0x40000\ns_cbranch_scc1 K34_poll")
            A.label("K34_ready")
            gate_open = True
            for s in deferred: issueP(s)
            deferred = []
        s = i + NS
        if s < N:
            issueT(s)
            if s >= FIRSTU and not gate_open: deferred.append(s)
            else: issueP(s)
        if i == POLL_I:
            A("buffer_load_dwordx2 v[12:13], v8, s[12:15], 0 offen sc1")
            issued.append(('X', 0))
    assert not deferred
    A("s_branch K34_end")
    A.label("K34_comp")
    A("s_and_b32 s46, s16, 1\ns_lshl_b32 s46, s46, 5\ns_lshr_b32 s47, s16, 1\ns_mul_i32 s47, s47, 3")
    PF = 116
    C1R = 212
    C1R = 140
    C1R = 188
    BB = 132
    A("s_and_b32 s46, s16, 1\ns_lshl_b32 s46, s46, 5\ns_lshr_b32 s47, s16, 1\ns_mul_i32 s47, s47, 3")
    COA = 88
    A(f"s_mov_b32 s53, {USTG}")
    A(f"v_mov_b32 v138, {LCNT}\nv_mov_b32 v139, 0\nds_write_b32 v138, v139")
    E1.compute_setup(46, 47)
    E2b = E2(A, "K34b", 5, N2, 2816, 1, 5)
    E2b.F = [140, 188]; E2b.ACC = 236; E2b.vend = 256
    st()
    LA = [128, 129, 130]; GA = [131, 138, 139]
    def late_flag_setup():
        srd(A, 12, 32, SZ_FZ, WS_FZ); srd(A, 4, 32, SZ_FQ, WS_FQ)
        A("v_lshlrev_b32 v112, 4, v0")
        A("s_lshr_b32 s48, s40, 1\ns_lshl_b32 s48, s48, 6\nv_and_b32 v113, 7, v0\nv_lshlrev_b32 v113, 3, v113\nv_add_u32 v113, s48, v113")
    def late_flag_issue():
        A("buffer_load_dwordx4 v[116:119], v112, s[12:15], 0 offen sc1")
        A("buffer_load_dwordx2 v[120:121], v113, s[4:7], 0 offen sc1")
    def late_flag_check():
        A("s_add_u32 s45, s98, 1\ns_mov_b32 s49, 0")
        A.label("K34_lc")
        A("s_waitcnt vmcnt(0)")
        A("v_xor_b32 v116, s45, v116\nv_xor_b32 v117, s99, v117\nv_xor_b32 v118, s45, v118\nv_xor_b32 v119, s99, v119\nv_xor_b32 v120, s45, v120\nv_xor_b32 v121, s99, v121")
        A("v_or3_b32 v116, v116, v117, v118\nv_or3_b32 v116, v116, v119, v120\nv_or_b32 v116, v116, v121\nv_cmp_ne_u32 vcc, 0, v116\ns_add_u32 s49, s49, 1\ns_nop 3")
        A("s_cbranch_vccz K34_lcok\ns_cmp_ge_u32 s49, 0x10000\ns_cbranch_scc1 K34_lcok")
        A("buffer_load_dwordx4 v[116:119], v112, s[12:15], 0 offen sc1\nbuffer_load_dwordx2 v[120:121], v113, s[4:7], 0 offen sc1\ns_branch K34_lc")
        A.label("K34_lcok")
    def late_loads():
        srd(A, 4, 32, SZ_Z1, WS_Z1); srd(A, 8, 32, SZ_G, WS_G); srd(A, 12, 34, 2048*2)
        A("s_lshl_b32 s43, s40, 6\ns_add_u32 s43, s43, s46")
        A("v_and_b32 v112, 15, v0\nv_add_u32 v112, s43, v112\nv_lshrrev_b32 v113, 4, v0")
        A("s_lshr_b32 s48, s43, 5\ns_mul_i32 s48, s48, 48\ns_mul_i32 s49, s41, 6\ns_add_u32 s48, s48, s49\ns_add_u32 s48, s48, s47\ns_lshl_b32 s48, s48, 10")
        A("v_lshlrev_b32 v114, 4, v0")
        for t in range(3): A(f"buffer_load_dwordx4 v[{PF+4*t}:{PF+4*t+3}], v114, s[4:7], s48 offen offset:{t*1024} sc1")
        A("v_lshlrev_b32 v115, 2, v112")
        A(f"buffer_load_dword v{PF+12}, v115, s[8:11], 0 offen sc1\nbuffer_load_dword v{PF+13}, v115, s[8:11], 0 offen offset:64 sc1")
        A("v_lshlrev_b32 v115, 1, v112")
        A(f"buffer_load_ushort v{PF+14}, v115, s[12:15], 0 offen\nbuffer_load_ushort v{PF+15}, v115, s[12:15], 0 offen offset:32")
        A("s_lshl_b32 s50, s40, 6\ns_lshl_b32 s51, s16, 4\ns_add_u32 s50, s50, s51\nv_and_b32 v137, 15, v0\nv_add_u32 v137, s50, v137\nv_lshlrev_b32 v138, 2, v137")
        A("buffer_load_dword v136, v138, s[8:11], 0 offen sc1")
    def late_pre():
        A("s_waitcnt vmcnt(0)")
        for m in range(2):
            A(f"v_lshlrev_b32 v{BB+2*m}, 16, v{PF+14+m}\nv_mov_b32 v{BB+2*m+1}, v{BB+2*m}\nv_sub_f32 v{PF+12+m}, 1.0, v{PF+12+m}")
        for m in range(2):
            for t in range(3):
                c = C1R + 4*(3*m + t)
                for q in range(2):
                    z = PF + 4*t + 2*m + q
                    A(f"v_lshlrev_b32 v{c+2*q}, 16, v{z}\nv_and_b32 v{c+2*q+1}, 0xffff0000, v{z}")
        for m in range(2):
            for t in range(3):
                c = C1R + 4*(3*m + t)
                for r in range(4): A(f"v_mul_f32 v{c+r}, v{c+r}, v{PF+12+m}")
        A("s_mul_i32 s20, s16, 192\nv_add_u32 v112, s20, v0")
        for q in range(3):
            A(f"v_add_u32 v115, {64*q}, v112\nv_mul_u32_u24 v114, 5462, v115\nv_lshrrev_b32 v114, 16, v114")
            A(f"v_mul_u32_u24 v{LA[q]}, 12, v114\nv_sub_u32 v115, v115, v{LA[q]}\nv_lshlrev_b32 v115, 4, v115")
            A(f"v_mul_u32_u24 v{LA[q]}, 208, v114\nv_add3_u32 v{LA[q]}, v{LA[q]}, v115, s53\nv_mul_u32_u24 v{GA[q]}, 384, v114\nv_add_u32 v{GA[q]}, v{GA[q]}, v115")
        A("v_and_b32 v114, 15, v0\nv_add_u32 v114, s46, v114\nv_mul_u32_u24 v114, 208, v114\nv_lshl_add_u32 v114, v113, 3, v114")
        A(f"s_lshl_b32 s48, s47, 5\ns_add_u32 s48, s48, {USTG}\nv_add_u32 v114, s48, v114")
        A("v_and_b32 v115, 15, v0\nv_add_u32 v115, s46, v115\nv_and_b32 v112, 1, v113\nv_lshl_add_u32 v115, v112, 4, v115\nv_mul_u32_u24 v115, 208, v115\nv_lshrrev_b32 v112, 1, v113\nv_lshl_add_u32 v115, v112, 4, v115\nv_add_u32 v115, s48, v115")
    A("s_barrier")
    GS(A, 5)
    A("s_barrier")
    GS(A, 6)
    for x in E1.reads(0): A(x)
    A("s_waitcnt lgkmcnt(0)")
    st()
    A("s_mov_b32 s19, 0")
    A.label("K34_cloop")
    for i in range(NS): E1.step(i)
    A(f"s_add_u32 s19, s19, 1\ns_cmp_lt_u32 s19, {O.lf0//6}\ns_cbranch_scc1 K34_cloop")
    late_flag_setup()
    A("s_cmp_lg_u32 s16, 0\ns_cbranch_scc1 K34_nf1")
    late_flag_issue()
    A.label("K34_nf1")
    for i in range(O.lf0, O.lf0 + 2): E1.step(i)
    A("s_cmp_lg_u32 s16, 0\ns_cbranch_scc1 K34_nf2")
    late_flag_check()
    A.label("K34_nf2")
    E1.step(O.lf0 + 2)
    late_loads()
    for i in range(O.lf0 + 3, 30): E1.step(i)
    late_pre()
    E1.step(30)
    A("v_and_b32 v4, 15, v0\nv_lshrrev_b32 v5, 4, v0\nv_and_b32 v6, 7, v4\nv_xor_b32 v5, v5, v6\nv_lshlrev_b32 v4, 7, v4\nv_lshl_add_u32 v4, v5, 4, v4")
    A("s_lshl_b32 s20, s16, 11\nv_add_u32 v2, s20, v4\nv_xor_b32 v3, 64, v2")
    A("v_and_b32 v6, 15, v0\nv_lshlrev_b32 v6, 3, v6\nv_and_b32 v7, 16, v0\nv_lshl_add_u32 v6, v7, 3, v6\nv_and_b32 v7, 32, v0\nv_lshl_add_u32 v6, v7, 4, v6")
    A("v_add_u32 v4, 8192, v6")
    A(f"v_add_u32 v5, {3*SLOT}, v2\nv_add_u32 v6, {3*SLOT}, v3\nv_add_u32 v7, {3*SLOT}, v4")
    for i in range(236, 256): A(f"v_mov_b32 v{i}, 0")
    def mixed_step(Ecur, icur, Enext, inext, after_barrier=None):
        s = icur & 1
        rd = Enext.reads(inext) if Enext else []
        mf = [f"v_mfma_f32_16x16x32_bf16 v[{Ecur.acc(m,t)}:{Ecur.acc(m,t)+3}], v[{Ecur.fT(s,kk,t)}:{Ecur.fT(s,kk,t)+3}], v[{Ecur.fP(s,kk,m)}:{Ecur.fP(s,kk,m)+3}], v[{Ecur.acc(m,t)}:{Ecur.acc(m,t)+3}]"
              for kk in range(2) for m in range(Ecur.mP) for t in range(Ecur.nT)]
        A("s_barrier")
        if after_barrier: after_barrier()
        per = (len(rd) + len(mf) - 1)//len(mf) if rd else 0
        for x in mf:
            for _ in range(per):
                if rd: A(rd.pop(0))
            A(x)
        A("s_waitcnt lgkmcnt(0)")
    mixed_step(E1, 31, E2b, 32)
    st(); GS(A, 7)
    for m in range(2):
        for t in range(3):
            ac = E1.acc(m, t); c = C1R + 4*(3*m + t)
            for q in range(2):
                A(f"v_pk_add_f32 v[{ac+2*q}:{ac+2*q+1}], v[{ac+2*q}:{ac+2*q+1}], v[{PF+14+m-(PF+14+m)%2 if False else BB+2*m}:{BB+2*m+1}]")
    for m in range(2):
        for t in range(3):
            ac = E1.acc(m, t); c = C1R + 4*(3*m + t)
            for q in range(2):
                A(f"v_pk_mul_f32 v[{ac+2*q}:{ac+2*q+1}], v[{ac+2*q}:{ac+2*q+1}], v[{c+2*q}:{c+2*q+1}]")
    if O.fine2: st()
    for m in range(2):
        for t in range(3):
            ac = E1.acc(m, t); z = PF + 4*t + 2*m
            A(f"v_cvt_pk_bf16_f32 v{z}, v{ac}, v{ac+1}\nv_cvt_pk_bf16_f32 v{z+1}, v{ac+2}, v{ac+3}")
    if O.fine2: st()
    if O.stg128:
        for t in range(3):
            d = PF + 4*t
            A(f"v_permlane16_swap_b32 v{d}, v{d+2}\nv_permlane16_swap_b32 v{d+1}, v{d+3}")
        for t in range(3):
            A(f"ds_write_b128 v115, v[{PF+4*t}:{PF+4*t+3}] offset:{t*32}")
    else:
        for m in range(2):
            for t in range(3):
                z = PF + 4*t + 2*m
                A(f"ds_write_b64 v114, v[{z}:{z+1}] offset:{m*16*208 + t*32}")
    A("s_waitcnt lgkmcnt(0)")
    st()
    def signal():
        A("s_waitcnt vmcnt(0)")
        A(f"v_mov_b32 v138, {LCNT}\nv_mov_b32 v139, 1")
        A("s_mov_b64 exec, 1")
        A("ds_add_rtn_u32 v139, v138, v139")
        A("s_waitcnt lgkmcnt(0)")
        A("v_readfirstlane_b32 s20, v139")
        A("s_cmp_lg_u32 s20, 3\ns_cbranch_scc1 K34_nosig")
        srd(A, 12, 32, SZ_FL, WS_FL)
        A("s_lshl_b32 s20, s40, 7\ns_lshl_b32 s21, s41, 3\ns_add_u32 s20, s20, s21\nv_mov_b32 v112, s20\ns_add_u32 s21, s98, 1\nv_mov_b32 v138, s21\nv_mov_b32 v139, s99")
        A("buffer_store_dwordx2 v[138:139], v112, s[12:15], 0 offen sc1")
        A.label("K34_nosig")
        A("s_mov_b64 exec, -1")
    def copy_out():
        srd(A, 12, 32, SZ_U, WS_U)
        for q in range(3): A(f"ds_read_b128 v[{PF+4*q}:{PF+4*q+3}], v{LA[q]}")
        A("s_lshl_b32 s48, s40, 2\ns_lshr_b32 s49, s41, 1\ns_add_u32 s48, s48, s49\ns_mul_i32 s48, s48, 24576\ns_and_b32 s49, s41, 1\ns_mul_i32 s49, s49, 192\ns_add_u32 s48, s48, s49")
        A("s_waitcnt lgkmcnt(0)")
        for q in range(3): A(f"buffer_store_dwordx4 v[{PF+4*q}:{PF+4*q+3}], v{GA[q]}, s[12:15], s48 offen{O.ustore}")
    for i in range(N1, N):
        last = (i == N - 1)
        mixed_step(E2b, i, None if last else E2b, i + 1, after_barrier=(copy_out if i == N1 else None))
        if i in ((32, 33, 36, 40, 41) if O.fine2 else (32, 33, 34, 36, 38, 40, 41, 42, 45)): st()
        if i in (36, 40, 41, 45): GS(A, 8 + (36, 40, 41, 45).index(i))
        if i == O.sig_i: signal()
        if i == N1 + 9:
            for t in range(5):
                for r in range(4): A(f"v_mul_f32 v{E2b.acc(0,t)+r}, v{E2b.acc(0,t)+r}, v136")
    st()
    srd(A, 12, 36, 2048*640*2)
    PK = 8
    for t in range(5):
        ac = E2b.acc(0, t)
        A(f"v_cvt_pk_bf16_f32 v{PK+2*t}, v{ac}, v{ac+1}\nv_cvt_pk_bf16_f32 v{PK+2*t+1}, v{ac+2}, v{ac+3}")
    A("v_lshrrev_b32 v3, 4, v0\ns_mov_b32 s45, 1280\nv_mul_lo_u32 v4, v137, s45\nv_lshl_add_u32 v4, v3, 3, v4\ns_mul_i32 s46, s41, 160\nv_add_u32 v4, s46, v4")
    for t in range(5): A(f"buffer_store_dwordx2 v[{PK+2*t}:{PK+2*t+1}], v4, s[12:15], 0 offen offset:{t*32}{O.outst}")
    st(); st.flush(16, 32, 20)
    GS(A, 12); GS_flush(A, 13, 20)
    hd_end(A, 32, 2, 0, 60)
    if O.hdiag2:
        A("s_cmp_lg_u32 s2, 0\ns_cbranch_scc1 K34_end\ns_cmp_lg_u32 s16, 0\ns_cbranch_scc1 K34_end")
        A("s_waitcnt vmcnt(0)")
        srd(A, 84, 32, 0x100000, WS_TS); srd(A, 88, 38, 256)
        sel = [(0, 0, i) for i in (2, 3, 5, 7, 8, 9, 10)] + [(0, 128, i) for i in (2, 3, 4, 6)] + [(2, 0, i) for i in (2, 3, 11, 12, 15)]
        A("v_mov_b32 v60, 0\nv_mov_b32 v61, 0")
        for ln, (k, wg, i) in enumerate(sel):
            base = k*0x40000 + wg*4*128
            A(f"v_cmp_eq_u32 vcc, {ln}, v0\nv_mov_b32 v62, {base + 4*i}\nv_cndmask_b32 v60, v60, v62, vcc\nv_mov_b32 v62, {base}\nv_cndmask_b32 v61, v61, v62, vcc")
        A("v_cmp_gt_u32 vcc, 16, v0\ns_and_saveexec_b64 s[20:21], vcc")
        A("buffer_load_dword v63, v60, s[84:87], 0 offen sc1\nbuffer_load_dword v64, v61, s[84:87], 0 offen sc1\ns_waitcnt vmcnt(0)")
        A("v_sub_u32 v63, v63, v64\nv_lshlrev_b32 v60, 2, v0\nbuffer_store_dword v63, v60, s[88:91], 0 offen")
    if O.hdiag:
        A("s_cmp_lg_u32 s2, 0\ns_cbranch_scc1 K34_end\ns_cmp_lg_u32 s16, 0\ns_cbranch_scc1 K34_end")
        A("s_waitcnt vmcnt(0)")
        srd(A, 84, 32, 4096, WS_TS); srd(A, 88, 38, 256)
        A("v_lshlrev_b32 v60, 2, v0\nv_cmp_gt_u32 vcc, 12, v0\ns_and_saveexec_b64 s[20:21], vcc")
        A("buffer_load_dword v61, v60, s[84:87], 0 offen sc1\ns_waitcnt vmcnt(0)\nbuffer_store_dword v61, v60, s[88:91], 0 offen")
    A("s_or_b32 s20, s2, s16\ns_cmp_lg_u32 s20, 0\ns_cbranch_scc1 K34_end")
    srd(A, 12, 32, SZ_FQ, WS_FQ)
    A("v_lshlrev_b32 v14, 4, v0\ns_add_u32 s45, s98, 1\ns_mov_b32 s47, 0")
    A.label("K34_ep")
    A("buffer_load_dwordx4 v[16:19], v14, s[12:15], 0 offen sc1\ns_waitcnt vmcnt(0)")
    A("v_xor_b32 v16, s45, v16\nv_xor_b32 v17, s99, v17\nv_xor_b32 v18, s45, v18\nv_xor_b32 v19, s99, v19\nv_or3_b32 v16, v16, v17, v18\nv_or_b32 v16, v16, v19\nv_cmp_ne_u32 vcc, 0, v16\ns_add_u32 s47, s47, 1\ns_nop 3")
    A("s_cbranch_vccz K34_epok\ns_cmp_lt_u32 s47, 0x10000\ns_cbranch_scc1 K34_ep")
    A.label("K34_epok")
    srd(A, 12, 32, SZ_EP, WS_EP)
    A("v_mov_b32 v16, s45\nv_mov_b32 v17, s99\nv_mov_b32 v14, 0\ns_mov_b64 exec, 1")
    A("buffer_store_dwordx2 v[16:17], v14, s[12:15], 0 offen sc1")
    A.label("K34_end")
    A("s_endpgm")
    return name, 256, 512, NS*SLOT + 64*208 + 64, 256

def main(out):
    body = Asm()
    n, g, b, lds, vg = k1(body)
    k34(body)
    hdr = [f"; @launch grid=({g},1,1) block=({b},1,1) lds={lds}"]
    hdr.append('.amdgcn_target "amdgcn-amd-amdhsa--gfx950"'); hdr.append(".text")
    lines = hazard.fix(body.lines, verbose=True)
    txt = "\n".join(hdr) + "\n" + "\n".join(lines) + "\n" + '.section .rodata,"a"\n' + kernel_desc(n, 256, 102)
    open(out, "w").write(txt)
if __name__ == "__main__":
    if '--stamp' in sys.argv: O.stamp = True
    if '--norot' in sys.argv: O.rot = False
    if '--pfg' in sys.argv: O.pfg = True
    if '--nofull' in sys.argv: O.fullring = False
    for a_ in sys.argv:
        if a_.startswith('--tla='): O.tla = int(a_[6:])
    for a_ in sys.argv:
        if a_.startswith('--pfg2='): O.pfg2 = int(a_[7:])
    if '--itstamp' in sys.argv: O.itstamp = True
    if '--nowsp' in sys.argv: O.wsp_pf = False
    for a_ in sys.argv:
        if a_.startswith('--poll='): O.poll_i = int(a_[7:])
        if a_.startswith('--sig='): O.sig_i = int(a_[6:])
    if '--full' in sys.argv: O.fullring = True; O.tla = 6
    if '--nofuse' in sys.argv: O.fuse = False
    if '--nosc1' in sys.argv: O.usc1 = False
    if '--hdiag' in sys.argv: O.hdiag = True
    if '--fine2' in sys.argv: O.fine2 = True
    if '--gs' in sys.argv: O.gs = True
    if '--xlplain' in sys.argv: O.xl = ''
    if '--k1sc1' in sys.argv: O.k1st = ' sc1'
    if '--k1nt' in sys.argv: O.k1st = ' nt'
    if '--outsc1' in sys.argv: O.outst = ' sc1'
    if '--outnt' in sys.argv: O.outst = ' nt'
    if '--hdiag2' in sys.argv: O.hdiag2 = True; O.stamp = True
    if '--stg64' in sys.argv: O.stg128 = False
    if '--uplain' in sys.argv: O.ustore = ''
    if '--unt' in sys.argv: O.ustore = ' sc1 nt'
    if '--usc01' in sys.argv: O.ustore = ' sc0 sc1'
    for a_ in sys.argv:
        if a_.startswith('--rottab='): O.rottab = int(a_[9:], 16)
    for a_ in sys.argv:
        if a_.startswith('--sleep='): O.sleep = int(a_[8:])
    main(sys.argv[1])
```

```python
import sys, struct
from asmlib import *
import hazard
NAME = "gated_mix__sliding_local_dilated__mixer_gmlp__prompt"
KA = dict(x=0, wqkv=8, wo=16, bx=24, win=32, wsp=40, bsp=48, wout=56, gw=64, out=72, dbg=80, ws=88)
QP = 504
HGS = 2048*QP
WS_QKVG = 0;          SZ_QKVG = 8*HGS
WS_Z1  = 0x900000;    SZ_Z1 = 2048*768*2
WS_Z2P = 0xC00000;    SZ_Z2P = 2048*768*2
WS_AU  = 0xF00000;    SZ_AU = 2048*1408*2
WS_WP  = 0x1500000;   SZ_WP = 1408*640*2
WS_ST  = 0x1700000;   SZ_ST = 8*2048*16
WS_G   = 0x1740000;   SZ_G = 2048*4
WS_EP  = 0x1760000;   SZ_EP = 128
WS_FZ  = 0x1770000;   SZ_FZ = 8*128
WS_FQ  = 0x1780000;   SZ_FQ = 16*64
WS_FL  = 0x1750000;   SZ_FL = 32*128
WS_U   = 0x1800000;   SZ_U = 2048*768*2
WS_TS  = 0x2000000
KILL = 0x40000000
C0 = -2.0*0.7978845608028654*1.4426950408889634
C1 = C0*0.044715
def f2u(f): return struct.unpack('<I', struct.pack('<f', f))[0]
class Opt:
    stamp = False; rot = True; wsp_pf = True; la = 5; itstamp = False; pfg = False; pfg2 = 2; fullring = False; tla = 4; poll_i = 38; sig_i = 36; fuse = True; hdiag2 = False; k1st = ' sc1'; outst = ''; xl = ' sc1'; sleep2 = 8; lf0 = 18; hb = 16; defer = True; gs = False; fine2 = False; stg128 = True; usc1 = True; ustore = ' sc1'; hdiag = False; sleep = 4; rottab = 0x8530
O = Opt()

def load_ptr(A, sd, key): A(f"s_load_dwordx2 s[{sd}:{sd+1}], s[0:1], {KA[key]}")
def wave_lane(A, s_w):
    A("v_lshrrev_b32 v1, 6, v0")
    A(f"v_readfirstlane_b32 s{s_w}, v1")
    A("v_and_b32 v0, 63, v0")

class Stamps:
    def __init__(self, A, kidx, n0=0): self.A = A; self.n = n0; self.k = kidx
    def __call__(self):
        if not O.stamp: return
        assert self.n < 16
        self.A(f"s_memtime s[{60+2*self.n}:{61+2*self.n}]"); self.n += 1
    def flush(self, s_w, s_ws, vt=250):
        if not O.stamp: return
        A = self.A
        A("s_waitcnt vmcnt(0)")
        A("s_memrealtime s[92:93]")
        A("s_waitcnt lgkmcnt(0)")
        srd(A, 56, s_ws, 0x100000, WS_TS + self.k*0x40000)
        A(f"s_lshl_b32 s54, s2, 2\ns_add_u32 s54, s54, s{s_w}\ns_lshl_b32 s54, s54, 7")
        A("s_mov_b64 exec, 1")
        for i in range(self.n):
            A(f"v_mov_b32 v{vt}, s{60+2*i}\nv_mov_b32 v{vt+1}, {4*i}")
            A(f"buffer_store_dword v{vt}, v{vt+1}, s[56:59], s54 offen")
        A(f"v_mov_b32 v{vt}, s92\nv_mov_b32 v{vt+1}, 124")
        A(f"buffer_store_dword v{vt}, v{vt+1}, s[56:59], s54 offen")
        A("s_mov_b64 exec, -1")


def it_top(A):
    if not O.itstamp: return
    A("s_memtime s[76:77]\ns_waitcnt lgkmcnt(0)")
    for k in range(3): A(f"s_cmp_eq_u32 s26, {k}\ns_cselect_b32 s{80+k}, s76, s{80+k}")
def it_mid(A):
    if O.itstamp: A("s_memtime s[76:77]\ns_waitcnt lgkmcnt(0)\ns_mov_b32 s83, s76")
def it_end(A, va, vb):
    if not O.itstamp: return
    A("s_memtime s[76:77]\ns_waitcnt lgkmcnt(0)\ns_mov_b32 s84, s76")
    srd(A, 56, 32, 0x200000, WS_TS + 7*0x40000)
    A("s_lshl_b32 s54, s2, 2\ns_add_u32 s54, s54, s16\ns_lshl_b32 s54, s54, 7")
    A("s_mov_b64 exec, 1")
    for i in range(11):
        A(f"v_mov_b32 v{va}, s{80+i}\nv_mov_b32 v{vb}, {4*i}")
        A(f"buffer_store_dword v{va}, v{vb}, s[56:59], s54 offen")
    A("s_mov_b64 exec, -1")


def hd_start(A):
    if O.hdiag: A("s_memtime s[94:95]\ns_memrealtime s[92:93]\ns_waitcnt lgkmcnt(0)\ns_mov_b32 s90, s94\ns_mov_b32 s91, s92")
def hd_end(A, s_ws, slot_sreg_expr, cond_wg, vt):
    if not O.hdiag: return
    L = A.newlabel("hd")
    A(f"s_cmp_lg_u32 s2, {cond_wg}\ns_cbranch_scc1 {L}\ns_cmp_lg_u32 s16, 0\ns_cbranch_scc1 {L}")
    A("s_waitcnt vmcnt(0)\ns_memtime s[94:95]\ns_memrealtime s[92:93]\ns_waitcnt lgkmcnt(0)")
    A("s_sub_u32 s94, s94, s90\ns_sub_u32 s95, s92, s91")
    srd(A, 84, s_ws, 4096, WS_TS)
    A(f"v_mov_b32 v{vt}, s94\nv_mov_b32 v{vt+1}, s95\nv_mov_b32 v{vt+2}, s91\nv_mov_b32 v{vt+3}, s92\nv_mov_b32 v{vt+4}, {slot_sreg_expr*16}")
    A("s_mov_b64 exec, 1")
    A(f"buffer_store_dwordx4 v[{vt}:{vt+3}], v{vt+4}, s[84:87], 0 offen")
    A("s_mov_b64 exec, -1")
    A.label(L)


def GS(A, i):
    if O.gs: A(f"s_memtime s[{64+2*i}:{65+2*i}]")
def GS_flush(A, n, vt):
    if not O.gs: return
    A("s_waitcnt vmcnt(0) lgkmcnt(0)")
    srd(A, 56, 32, 0x100000, WS_TS)
    A("s_lshl_b32 s54, s2, 2\ns_add_u32 s54, s54, s16\ns_lshl_b32 s54, s54, 7")
    A("s_mov_b64 exec, 1")
    for i in range(n):
        A(f"v_mov_b32 v{vt}, s{64+2*i}\nv_mov_b32 v{vt+1}, {4*i}")
        A(f"buffer_store_dword v{vt}, v{vt+1}, s[56:59], s54 offen")
    A("s_mov_b64 exec, -1")

def gelu_pk(A, regs, tmp, sC):
    n = len(regs)
    for i, r in enumerate(regs): A(f"v_pk_mul_f32 v[{tmp+2*i}:{tmp+2*i+1}], v[{r}:{r+1}], v[{r}:{r+1}]")
    for i, r in enumerate(regs): A(f"v_pk_fma_f32 v[{tmp+2*i}:{tmp+2*i+1}], v[{tmp+2*i}:{tmp+2*i+1}], s[{sC}:{sC+1}], v[6:7]")
    for i, r in enumerate(regs): A(f"v_pk_mul_f32 v[{tmp+2*i}:{tmp+2*i+1}], v[{tmp+2*i}:{tmp+2*i+1}], v[{r}:{r+1}]")
    for i in range(2*n): A(f"v_exp_f32 v{tmp+i}, v{tmp+i}")
    for i, r in enumerate(regs): A(f"v_pk_add_f32 v[{tmp+2*i}:{tmp+2*i+1}], v[{tmp+2*i}:{tmp+2*i+1}], 1.0 op_sel_hi:[1,0]")
    for i in range(2*n): A(f"v_rcp_f32 v{tmp+i}, v{tmp+i}")
    for i, r in enumerate(regs): A(f"v_pk_mul_f32 v[{r}:{r+1}], v[{r}:{r+1}], v[{tmp+2*i}:{tmp+2*i+1}]")

def k1_geom(typ):
    if typ == 'q':
        return dict(pitchW=3840, PROWS=144, PSLOT=144*128, NPS=3, TSLOT=15360, R=6, TBASE=3*144*128)
    return dict(pitchW=3072, PROWS=128, PSLOT=128*128, NPS=3, TSLOT=16384, R=6, TBASE=3*128*128)

def k1_wsp_prefetch(A, part):
    if part == 0:
        srd(A, 4, 52, 2048*2048*2)
        A("s_and_b32 s40, s2, 7\ns_lshr_b32 s40, s40, 1\ns_lshl_b32 s40, s40, 14")
        A("s_lshr_b32 s41, s2, 3\ns_and_b32 s41, s41, 15\ns_lshl_b32 s41, s41, 10\ns_add_u32 s40, s40, s41")
        A("s_sub_u32 s41, s16, 4\ns_lshl_b32 s41, s41, 8\ns_add_u32 s40, s40, s41")
        A("s_lshl_b32 s40, s40, 7")
        A("v_lshlrev_b32 v249, 7, v0")
    else:
        A("s_add_u32 s40, s40, 8192")
    A(f"buffer_load_dword v{250 + (part & 1)}, v249, s[4:7], s40 offen")

def pf_setup(A):
    A("s_cmp_lt_u32 s21, 2\ns_cselect_b32 s84, s30, s34\ns_cselect_b32 s85, s31, s35")
    A(f"s_mov_b32 s86, {640*1920*2}\ns_cselect_b32 s86, {2048*640*2}, s86")
    A("s_cmp_eq_u32 s21, 3\ns_cselect_b32 s84, s36, s84\ns_cselect_b32 s85, s37, s85")
    A(f"s_cselect_b32 s86, {640*1536*2}, s86\ns_mov_b32 s87, 0x20000")
    A("s_lshr_b32 s88, s2, 3\ns_and_b32 s89, s2, 7\ns_lshr_b32 s90, s89, 1\ns_and_b32 s89, s89, 1")
    A("s_lshl_b32 s91, s89, 10\ns_lshl_b32 s92, s88, 5\ns_add_u32 s91, s91, s92\ns_lshl_b32 s92, s21, 4\ns_add_u32 s91, s91, s92")
    A("v_lshrrev_b32 v20, 2, v0\nv_add_u32 v20, s91, v20\nv_mul_u32_u24 v20, 1280, v20\nv_and_b32 v21, 3, v0\nv_lshl_add_u32 v20, v21, 7, v20\nv_add_u32 v20, 384, v20")
    A("v_mul_u32_u24 v21, 57, v0\nv_lshrrev_b32 v21, 9, v21\nv_mul_u32_u24 v22, 9, v21\nv_sub_u32 v22, v0, v22")
    A("s_mul_i32 s91, s88, 7\ns_add_u32 s91, s91, 192\nv_add_u32 v21, s91, v21\nv_mul_u32_u24 v21, 3840, v21")
    A("v_mul_u32_u24 v23, 171, v22\nv_lshrrev_b32 v23, 9, v23\nv_mul_u32_u24 v25, 3, v23\nv_sub_u32 v22, v22, v25")
    A("s_lshl_b32 s91, s90, 2\ns_lshr_b32 s91, 0x7520, s91\ns_and_b32 s91, s91, 15")
    A("v_add_u32 v22, s91, v22\nv_lshlrev_b32 v22, 7, v22\nv_mul_u32_u24 v23, 1280, v23\nv_add3_u32 v21, v21, v22, v23")
    A(f"v_mov_b32 v25, {KILL}\nv_cmp_le_u32 vcc, 63, v0\nv_cndmask_b32 v21, v21, v25, vcc")
    A("v_mul_u32_u24 v22, 43, v0\nv_lshrrev_b32 v22, 8, v22\nv_mul_u32_u24 v23, 6, v22\nv_sub_u32 v23, v0, v23")
    A("s_mul_i32 s91, s88, 7\ns_add_u32 s91, s91, 192\nv_add_u32 v22, s91, v22\nv_mul_u32_u24 v22, 3072, v22")
    A("v_mul_u32_u24 v26, 171, v23\nv_lshrrev_b32 v26, 9, v26\nv_mul_u32_u24 v27, 3, v26\nv_sub_u32 v23, v23, v27")
    A("v_lshlrev_b32 v23, 7, v23\nv_mul_u32_u24 v26, 1536, v26\nv_add3_u32 v22, v22, v23, v26\ns_mul_i32 s91, s90, 384\nv_add_u32 v22, s91, v22")
    A("v_cmp_le_u32 vcc, 42, v0\nv_cndmask_b32 v22, v22, v25, vcc")
    A("s_cmp_lt_u32 s21, 2\ns_cselect_b64 s[90:91], -1, 0\ns_cselect_b32 s88, 384, 0")
    A("v_cndmask_b32 v24, v21, v20, s[90:91]")
    A(f"s_cmp_eq_u32 s21, 2\ns_cselect_b32 s88, {224*3840}, s88")
    A(f"s_cmp_eq_u32 s21, 3\ns_cselect_b32 s88, {224*3072}, s88\ns_cselect_b64 s[90:91], -1, 0")
    A("v_cndmask_b32 v24, v24, v22, s[90:91]")

def pf_group(A, g):
    if g == 0: A("buffer_load_dword v248, v24, s[84:87], 0 offen")
    else: A("buffer_load_dword v248, v24, s[84:87], s88 offen")

def run_loader_schedule(A, issueP, issueT, issued, hooks=None, wsp=False):
    NB = 20; NPS = 3; R = 6
    def wait_for(needs):
        last = -1
        for idx, tg in enumerate(issued):
            if tg in needs: last = idx
        if last < 0: return
        A(f"s_waitcnt vmcnt({min(len(issued) - 1 - last, 63)})")
    TLA = O.tla
    issueP(0, 0); issueP(0, 1); issueT(0); issueT(1)
    issueP(1, 0); issueP(1, 1)
    for t in range(2, TLA): issueT(t)
    if O.fullring: issueP(2, 0); issueP(2, 1)
    if O.pfg:
        pf_setup(A); pf_group(A, 0); issued.append(('F', 0))
    wait_for([('P', 0), ('T', 0)])
    A("s_barrier")
    if not O.fullring: issueP(2, 0)
    for b in range(NB):
        needs = []
        if b + 1 < NB: needs = [('T', b+1), ('P', (b+1)//2)]
        if needs: wait_for(needs)
        A("s_barrier")
        if b + TLA < NB: issueT(b + TLA)
        if b == 0 and not O.fullring: issueP(2, 1)
        if b % 2 == 1:
            s = (b - 1)//2 + NPS
            if s < NB//2: issueP(s, 0)
        elif b >= 2:
            s = (b - 2)//2 + NPS
            if s < NB//2: issueP(s, 1)
        if O.pfg and b == O.pfg2: pf_group(A, 1); issued.append(('F', 1))
        if hooks and b in hooks: hooks[b](issued)
        W0 = max(14, 20 - TLA)
        if wsp and O.wsp_pf and W0 <= b < W0 + 4: k1_wsp_prefetch(A, b - W0); issued.append(('W', b))
    A("s_barrier")

def rot_stage(A, s, dst):
    A(f"s_add_u32 s{dst}, s28, {s}\ns_cmp_ge_u32 s{dst}, 10\ns_cselect_b32 s29, 10, 0\ns_sub_u32 s{dst}, s{dst}, s29")
def rot_beat(A, b, dst):
    A(f"s_lshl_b32 s{dst}, s28, 1\ns_add_u32 s{dst}, s{dst}, {b}\ns_cmp_ge_u32 s{dst}, 20\ns_cselect_b32 s29, 20, 0\ns_sub_u32 s{dst}, s{dst}, s29")

def k1_loader_z(A):
    G = k1_geom('z'); pitchW = G['pitchW']; PSLOT = G['PSLOT']; TSLOT = G['TSLOT']; TBASE = G['TBASE']
    lw = 21
    A(f"s_sub_u32 s{lw}, s16, 4")
    A("v_lshrrev_b32 v7, 3, v0\nv_and_b32 v2, 7, v0\nv_xor_b32 v2, v2, v7\nv_mul_u32_u24 v7, 1280, v7\nv_lshl_add_u32 v2, v2, 4, v7")
    A("v_lshrrev_b32 v4, 4, v0")
    A(f"s_and_b32 s20, s{lw}, 1\ns_lshl_b32 s20, s20, 2")
    A("v_add_u32 v5, s20, v4\nv_lshlrev_b32 v5, 1, v5\nv_and_b32 v6, 15, v0\nv_xor_b32 v6, v6, v5")
    A(f"v_mul_u32_u24 v4, {pitchW}, v4\nv_lshl_add_u32 v3, v6, 4, v4")
    A(f"v_cmp_le_u32 vcc, 12, v6\nv_mov_b32 v5, {KILL}\nv_cndmask_b32 v3, v3, v5, vcc")
    nP = 2; half_rows = 64
    A(f"s_mul_i32 s20, s{lw}, {nP*8*1280}\ns_add_u32 s22, s17, s20")
    A(f"s_mul_i32 s23, s{lw}, {nP*1024}")
    A(f"s_mul_i32 s20, s{lw}, {8*pitchW}\ns_add_u32 s24, s18, s20\ns_add_u32 s25, s19, s20")
    A(f"s_lshl_b32 s26, s{lw}, 11\ns_add_u32 s26, s26, {TBASE}")
    issued = []
    def issueP(s, h2):
        slot = s % 3
        rot_stage(A, s, 27)
        A("s_lshl_b32 s27, s27, 7\ns_add_u32 s27, s27, s22")
        A(f"s_add_u32 m0, s23, {slot*PSLOT + h2*half_rows*128}")
        for i in range(nP):
            A(f"s_add_u32 s20, s27, {h2*half_rows*1280 + i*(8*1280 - 1024)}")
            A(f"buffer_load_dwordx4 v2, s[4:7], s20 offen offset:{i*1024} lds")
            issued.append(('P', s))
    def issueT(b):
        slot = b % 6
        rot_beat(A, b, 27)
        A(f"s_mul_i32 s27, s27, {32*pitchW}")
        for u, sb in enumerate([24, 25]):
            A(f"s_add_u32 m0, s26, {slot*TSLOT + u*8192}")
            A(f"s_add_u32 s29, s27, s{sb}")
            for i in range(2):
                A(f"s_add_u32 s20, s29, {i*(4*pitchW - 1024)}")
                A(f"buffer_load_dwordx4 v3, s[8:11], s20 offen offset:{i*1024} lds")
                issued.append(('T', b))
    def gate_load(issued):
        srd(A, 12, 38, 640*2)
        A("v_lshlrev_b32 v10, 2, v0")
        for i in range(5): A(f"buffer_load_dword v{40+i}, v10, s[12:15], 0 offen offset:{256*i}")
        A("s_lshl_b32 s58, s48, 7\ns_lshl_b32 s59, s49, 4\ns_add_u32 s58, s58, s59\ns_lshl_b32 s59, s21, 2\ns_add_u32 s58, s58, s59")
        A("s_mul_i32 s59, s58, 1280")
        for r in range(4):
            A(f"s_add_u32 s57, s59, {r*1280}")
            for i in range(5): A(f"buffer_load_dword v{48+5*r+i}, v10, s[4:7], s57 offen offset:{256*i}")
        issued.extend([('G', 0)]*25)
    def gate_finish(issued):
        last = max(i for i, t in enumerate(issued) if t == ('G', 0))
        A(f"s_waitcnt vmcnt({len(issued) - 1 - last})")
        for r in range(4):
            A(f"v_mov_b32 v{70+r}, 0")
            for i in range(5): A(f"v_dot2_f32_bf16 v{70+r}, v{48+5*r+i}, v{40+i}, v{70+r}")
        for ctl in ("row_shr:1 row_mask:0xf bank_mask:0xf bound_ctrl:0", "row_shr:2 row_mask:0xf bank_mask:0xf bound_ctrl:0", "row_shr:4 row_mask:0xf bank_mask:0xf bound_ctrl:0",
                    "row_shr:8 row_mask:0xf bank_mask:0xf bound_ctrl:0", "row_bcast:15 row_mask:0xa bank_mask:0xf", "row_bcast:31 row_mask:0xc bank_mask:0xf"):
            for r in range(4): A(f"v_add_f32_dpp v{70+r}, v{70+r}, v{70+r} {ctl}")
        for r in range(4): A(f"v_mul_f32 v{70+r}, {f2u(-1.4426950408889634)}, v{70+r}")
        for r in range(4): A(f"v_exp_f32 v{70+r}, v{70+r}")
        for r in range(4): A(f"v_add_f32 v{70+r}, 1.0, v{70+r}")
        for r in range(4): A(f"v_rcp_f32 v{70+r}, v{70+r}")
        srd(A, 12, 32, SZ_G, WS_G)
        A("s_lshl_b32 s58, s58, 2\nv_mov_b32 v10, 0")
        A("s_mov_b32 s42, 0\ns_mov_b32 s43, 0x80000000\ns_mov_b64 exec, s[42:43]")
        for r in range(4): A(f"buffer_store_dword v{70+r}, v10, s[12:15], s58 offen offset:{4*r}")
        A("s_mov_b64 exec, -1")
        issued.extend([('S', 0)]*4)
    def oldtags(issued):
        z_oldtags(A, 42); issued.extend([('O', 0)]*1)
    def pack_loads(issued):
        k1_pack_load(A); issued.extend([('K', 0)]*6)
    def h_pack(issued): k1_pack_load(A); issued.extend([('K', 0)]*6)
    def h_gate(issued): z_gate_load(A, "s_sub_u32 s47, s16, 4\ns_lshl_b32 s47, s47, 2"); issued.extend([('G', 0)]*10)
    run_loader_schedule(A, issueP, issueT, issued, {O.hb: h_pack, O.hb + 1: h_gate})

def k1_loader_q(A, last):
    G = k1_geom('q'); PSLOT = G['PSLOT']; TSLOT = G['TSLOT']; TBASE = G['TBASE']
    nP = 3 if last else 2
    nTi = 3 if last else 4
    A("s_sub_u32 s21, s16, 4")
    A("v_lshrrev_b32 v7, 3, v0\nv_and_b32 v6, 7, v0\nv_xor_b32 v6, v6, v7")
    A("s_lshl_b32 s20, s48, 7\ns_sub_u32 s20, s20, 16\ns_lshl_b32 s22, s21, 4\ns_add_u32 s20, s20, s22")
    A("v_add_u32 v7, s20, v7")
    A("v_mov_b32 v12, v7")
    A("s_mov_b32 s20, 1280\nv_mul_lo_u32 v7, v7, s20\nv_lshl_add_u32 v2, v6, 4, v7")
    for h2 in range(2):
        for i in range(nP):
            if h2 == 0 and i == 0: continue
            A(f"v_add_u32 v{2 + h2*3 + i}, {(72*h2 + 8*i)*1280}, v2")
    A(f"v_mov_b32 v13, {KILL}")
    for i in range(2):
        A(f"v_add_u32 v14, {8*i}, v12\nv_cmp_gt_i32 vcc, 0, v14\nv_cndmask_b32 v{2+i}, v{2+i}, v13, vcc")
    A("s_lshl_b32 s20, s21, 8")
    for i in range(nTi):
        d = 8 + i
        A(f"v_add_u32 v12, s20, v0\nv_add_u32 v12, {64*i}, v12")
        A("v_mul_u32_u24 v13, 2185, v12\nv_lshrrev_b32 v13, 16, v13")
        A("v_mul_u32_u24 v14, 30, v13\nv_sub_u32 v14, v12, v14")
        A("v_and_b32 v15, 0x13, v13\nv_and_b32 v16, 4, v13\nv_lshl_or_b32 v15, v16, 1, v15\nv_and_b32 v16, 8, v13\nv_lshrrev_b32 v16, 1, v16\nv_or_b32 v15, v15, v16")
        A("v_mul_u32_u24 v16, 205, v14\nv_lshrrev_b32 v16, 11, v16")
        A("v_mul_u32_u24 v17, 10, v16\nv_sub_u32 v14, v14, v17")
        A("v_mul_u32_u24 v15, 3840, v15\nv_mul_u32_u24 v16, 1280, v16\nv_lshlrev_b32 v14, 4, v14")
        A(f"v_add3_u32 v{d}, v15, v16, v14")
    A("s_mul_i32 s24, s49, 160")
    A("s_lshl_b32 s23, s21, 11")
    A(f"s_lshl_b32 s26, s21, 12\ns_add_u32 s26, s26, {TBASE}")
    issued = []
    def issueP(s, h2):
        slot = s % 3
        rot_stage(A, s, 27)
        A("s_lshl_b32 s27, s27, 7")
        A(f"s_add_u32 m0, s23, {slot*PSLOT + h2*72*128}")
        for i in range(nP):
            if i: A("s_add_u32 m0, m0, 1024\ns_nop 0")
            A(f"buffer_load_dwordx4 v{2 + h2*3 + i}, s[4:7], s27 offen lds")
            issued.append(('P', s))
    def issueT(b):
        slot = b % 6
        rot_beat(A, b, 27)
        A(f"s_mul_i32 s27, s27, {32*3840}\ns_add_u32 s27, s27, s24")
        A(f"s_add_u32 m0, s26, {slot*TSLOT}")
        for i in range(nTi):
            if i: A("s_add_u32 m0, m0, 1024\ns_nop 0")
            A(f"buffer_load_dwordx4 v{8 + i}, s[8:11], s27 offen lds")
            issued.append(('T', b))
    run_loader_schedule(A, issueP, issueT, issued, None, True)


OT = 212
def z_oldtags(A, r32_sreg):
    srd(A, 12, 32, SZ_EP, WS_EP)
    A(f"s_lshl_b32 s40, s48, 7\nv_mov_b32 v221, s40")
    A(f"buffer_load_dwordx2 v[{OT}:{OT+1}], v221, s[12:15], 0 offen sc1")
def z_r32(A, dst):
    A(f"s_and_b32 s{dst}, s16, 1\ns_lshl_b32 s{dst}, s{dst}, 1\ns_lshr_b32 s41, s16, 2\ns_add_u32 s{dst}, s{dst}, s41")


ZFLG = 147456
def z_gate_load(A, rowoff):
    srd(A, 4, 30, 2048*640*2); srd(A, 12, 38, 640*2)
    A("s_lshl_b32 s60, s48, 7\ns_lshl_b32 s61, s49, 4\ns_add_u32 s60, s60, s61\ns_lshl_b32 s61, s16, 2\ns_add_u32 s60, s60, s61") if False else None
    A("s_lshl_b32 s86, s48, 7\ns_lshl_b32 s47, s49, 4\ns_add_u32 s86, s86, s47")
    A(rowoff)
    A("s_add_u32 s86, s86, s47")
    A(f"v_lshlrev_b32 v146, 4, v0\nv_add_u32 v147, 1024, v146\nv_mov_b32 v148, {KILL}\nv_cmp_le_u32 vcc, 16, v0\nv_cndmask_b32 v147, v147, v148, vcc")
    A("buffer_load_dwordx4 v[184:187], v146, s[12:15], 0 offen\nbuffer_load_dwordx4 v[188:191], v147, s[12:15], 0 offen")
    A("s_mul_i32 s87, s86, 1280")
    for r in range(4):
        A(f"s_add_u32 s85, s87, {r*1280}")
        A(f"buffer_load_dwordx4 v[{160+8*r}:{163+8*r}], v146, s[4:7], s85 offen\nbuffer_load_dwordx4 v[{164+8*r}:{167+8*r}], v147, s[4:7], s85 offen") if False else A(f"buffer_load_dwordx4 v[{152+8*r}:{155+8*r}], v146, s[4:7], s85 offen\nbuffer_load_dwordx4 v[{156+8*r}:{159+8*r}], v147, s[4:7], s85 offen")
def z_gate_compute(A):
    for r in range(4):
        A(f"v_mov_b32 v{192+r}, 0")
        for q in range(4): A(f"v_dot2_f32_bf16 v{192+r}, v{152+8*r+q}, v{184+q}, v{192+r}")
        for q in range(4): A(f"v_dot2_f32_bf16 v{192+r}, v{156+8*r+q}, v{188+q}, v{192+r}")
    for ctl in ("row_shr:1 row_mask:0xf bank_mask:0xf bound_ctrl:0", "row_shr:2 row_mask:0xf bank_mask:0xf bound_ctrl:0", "row_shr:4 row_mask:0xf bank_mask:0xf bound_ctrl:0",
                "row_shr:8 row_mask:0xf bank_mask:0xf bound_ctrl:0", "row_bcast:15 row_mask:0xa bank_mask:0xf", "row_bcast:31 row_mask:0xc bank_mask:0xf"):
        for r in range(4): A(f"v_add_f32_dpp v{192+r}, v{192+r}, v{192+r} {ctl}")
    for r in range(4): A(f"v_mul_f32 v{192+r}, {f2u(-1.4426950408889634)}, v{192+r}")
    for r in range(4): A(f"v_exp_f32 v{192+r}, v{192+r}")
    for r in range(4): A(f"v_add_f32 v{192+r}, 1.0, v{192+r}")
    for r in range(4): A(f"v_rcp_f32 v{192+r}, v{192+r}")
def z_gate_store(A):
    srd(A, 4, 32, SZ_G, WS_G)
    A("s_lshl_b32 s86, s86, 2\nv_mov_b32 v146, 0")
    A("s_mov_b32 s42, 0\ns_mov_b32 s43, 0x80000000\ns_mov_b64 exec, s[42:43]")
    for r in range(4): A(f"buffer_store_dword v{192+r}, v146, s[4:7], s86 offen offset:{4*r} sc1")
    A("s_mov_b64 exec, -1")

def k1_pack_load(A):
    T = 150
    c, cc, t2, p_, k_, x_ = T+2, T+3, T+4, T+5, T+6, T+7
    A("s_sub_u32 s40, s16, 4\ns_lshl_b32 s40, s40, 6")
    A(f"v_add_u32 v{c}, s40, v0\nv_and_b32 v{cc}, 127, v{c}\nv_lshrrev_b32 v{t2}, 7, v{c}\nv_lshrrev_b32 v{p_}, 1, v{cc}")
    A(f"v_and_b32 v{k_}, 0x33, v{p_}\nv_and_b32 v{x_}, 4, v{p_}\nv_lshl_or_b32 v{k_}, v{x_}, 1, v{k_}")
    A(f"v_and_b32 v{x_}, 8, v{p_}\nv_lshrrev_b32 v{x_}, 1, v{x_}\nv_or_b32 v{k_}, v{k_}, v{x_}")
    A(f"v_mul_u32_u24 v{k_}, 1280, v{k_}\nv_and_b32 v{x_}, 1, v{cc}\nv_lshl_add_u32 v{k_}, v{x_}, 4, v{k_}\nv_lshl_add_u32 v{k_}, v{t2}, 5, v{k_}")
    A(f"v_lshlrev_b32 v252, 4, v{cc}\nv_lshl_add_u32 v252, v{t2}, 11, v252")
    A(f"v_mov_b32 v{x_}, {KILL}\nv_cmp_eq_u32 vcc, 1, v{t2}\nv_cndmask_b32 v253, v252, v{x_}, vcc\nv_cndmask_b32 v{p_}, v{k_}, v{x_}, vcc")
    A("s_lshl_b32 s54, s48, 3\ns_add_u32 s54, s54, s49")
    for u, D in ((0, 224), (1, 236)):
        A(f"s_add_u32 s55, s54, {128*u}")
        A(f"s_mul_hi_u32 s41, s55, {(2**32 + 21)//22}\ns_mul_i32 s42, s41, 22\ns_sub_u32 s42, s55, s42")
        A("s_cmp_lt_u32 s42, 10\ns_cselect_b32 s12, s44, s46\ns_cselect_b32 s13, s45, s47")
        A(f"s_mov_b32 s14, {768*640*2}\ns_cselect_b32 s14, {640*640*2}, s14\ns_mov_b32 s15, 0x20000")
        A("s_cselect_b32 s43, 0, 10\ns_sub_u32 s43, s42, s43")
        A(f"s_mul_i32 s43, s43, {64*1280}\ns_mul_i32 s40, s41, 160\ns_add_u32 s43, s43, s40")
        A(f"s_cmp_ge_u32 s55, 176\ns_cselect_b32 s40, {KILL}, 0\ns_add_u32 s43, s43, s40")
        A(f"buffer_load_dwordx4 v[{D}:{D+3}], v{k_}, s[12:15], s43 offen")
        A(f"buffer_load_dwordx4 v[{D+4}:{D+7}], v{k_}, s[12:15], s43 offen offset:64")
        A(f"buffer_load_dwordx4 v[{D+8}:{D+11}], v{p_}, s[12:15], s43 offen offset:128")

def k1_pack_store(A):
    srd(A, 12, 32, SZ_WP, WS_WP)
    for u, D in ((0, 224), (1, 236)):
        A(f"s_add_u32 s55, s54, {128*u}")
        A(f"s_mul_i32 s41, s55, {5*2048}\ns_cmp_ge_u32 s55, 176\ns_cselect_b32 s42, {KILL}, 0\ns_add_u32 s41, s41, s42")
        A("s_add_u32 s42, s41, 4096\ns_add_u32 s43, s41, 8192")
        A(f"buffer_store_dwordx4 v[{D}:{D+3}], v252, s[12:15], s41 offen{O.k1st}")
        A(f"buffer_store_dwordx4 v[{D+4}:{D+7}], v252, s[12:15], s42 offen{O.k1st}")
        A(f"buffer_store_dwordx4 v[{D+8}:{D+11}], v253, s[12:15], s43 offen{O.k1st}")

def k1_compute_z(A, st):
    G = k1_geom('z'); PSLOT = G['PSLOT']; NPS = 3; TSLOT = G['TSLOT']; R = 6; TBASE = G['TBASE']
    mP = 4; nT = 6; nA = 3
    bP = 2; bT = 6
    F = [16, 16 + 4*(mP+nT)]
    ACC = 16 + 8*(mP+nT)
    A(f"s_and_b32 s20, s16, 1\ns_lshr_b32 s21, s16, 1\ns_mul_i32 s21, s21, {nA}")
    A("v_and_b32 v14, 15, v0\nv_lshrrev_b32 v15, 4, v0\nv_and_b32 v6, 7, v14\nv_xor_b32 v6, v15, v6\nv_lshlrev_b32 v14, 7, v14\nv_lshl_add_u32 v14, v6, 4, v14")
    A(f"s_mul_i32 s22, s20, {mP*2048}")
    A(f"v_add_u32 v{bP}, s22, v14\nv_xor_b32 v{bP+1}, 64, v{bP}")
    A("v_lshrrev_b32 v14, 2, v0\nv_and_b32 v14, 3, v14\nv_lshl_add_u32 v13, v15, 3, v14\nv_lshlrev_b32 v13, 8, v13")
    A("v_and_b32 v12, 3, v0\nv_lshl_add_u32 v13, v12, 3, v13\nv_and_b32 v12, 1, v15\nv_lshl_add_u32 v14, v12, 2, v14")
    A(f"v_add_u32 v15, {TBASE}, v13")
    for tl in range(nA):
        A(f"s_add_u32 s23, s21, {tl}\nv_xor_b32 v13, s23, v14\nv_lshl_add_u32 v{bT+tl}, v13, 5, v15")
    for tl in range(nA): A(f"v_add_u32 v{bT+nA+tl}, 0x10000, v{bT+tl}")
    for i in range(ACC, ACC + 4*mP*nT): A(f"v_mov_b32 v{i}, 0")
    def fP(s, m): return F[s] + 4*m
    def fT(s, t): return F[s] + 4*(mP + t)
    def acc(m, t): return ACC + 4*(m*nT + t)
    def reads(b):
        s = b & 1; kk = b & 1; ps = (b//2) % NPS; ts = b % R
        r = []
        for m in range(mP):
            f = fP(s, m); off = ps*PSLOT + m*2048
            r.append(f"ds_read_b128 v[{f}:{f+3}], v{bP + kk} offset:{off}")
        for t in range(nT):
            f = fT(s, t); tl = t % nA; u = t // nA
            for h in range(2):
                off = ts*TSLOT + u*8192 + h*1024; hi = off >> 16
                r.append(f"ds_read_b64_tr_b16 v[{f+2*h}:{f+2*h+1}], v{bT + tl + nA*hi} offset:{off & 0xffff}")
        return r
    A("s_barrier")
    for x in reads(0): A(x)
    A("s_waitcnt lgkmcnt(0)")
    st(); GS(A, 1)
    A("s_barrier")
    TAILM = 6
    def beat(b, last=False):
        s = b & 1
        mf = [f"v_mfma_f32_16x16x32_bf16 v[{acc(m,t)}:{acc(m,t)+3}], v[{fT(s,t)}:{fT(s,t)+3}], v[{fP(s,m)}:{fP(s,m)+3}], v[{acc(m,t)}:{acc(m,t)+3}]" for m in range(mP) for t in range(nT)]
        rd = [] if last else reads(b + 1)
        nfront = len(mf) - TAILM
        for i, x in enumerate(mf):
            A(x)
            if rd: A(rd.pop(0))
            if i == nfront - 1:
                assert not rd
                A("s_waitcnt lgkmcnt(0)\ns_barrier")
    L = "K1z_cloop"
    A("s_mov_b32 s26, 0")
    A.label(L)
    it_top(A)
    for b in range(6): beat(b)
    A(f"s_add_u32 s26, s26, 1\ns_cmp_lt_u32 s26, 3\ns_cbranch_scc1 {L}")
    it_mid(A)
    beat(18); beat(19, last=True)
    it_end(A, 14, 15)
    return acc

def k1_compute_q(A, wm, wn, st):
    G = k1_geom('q'); PSLOT = G['PSLOT']; TSLOT = G['TSLOT']; TBASE = G['TBASE']
    tiles = list(range(0, 8)) if wn == 0 else list(range(8, 15))
    halo = {(0, 0): [5, 6], (1, 0): [7], (0, 1): [8, 9, 10, 11], (1, 1): [12, 13, 14]}[(wm, wn)]
    nT = len(tiles); mP = 5
    F = [16, 16 + 4*(5 + 8)]
    ACC = 16 + 8*(5 + 8)
    A("v_and_b32 v14, 15, v0\nv_lshrrev_b32 v15, 4, v0\nv_and_b32 v6, 7, v14\nv_xor_b32 v6, v15, v6\nv_lshlrev_b32 v14, 7, v14\nv_lshl_add_u32 v2, v6, 4, v14")
    A("v_xor_b32 v3, 64, v2")
    A("v_lshrrev_b32 v6, 1, v15\nv_lshlrev_b32 v6, 4, v6\nv_and_b32 v7, 1, v15\nv_lshl_add_u32 v6, v7, 2, v6")
    A("v_lshrrev_b32 v7, 2, v0\nv_and_b32 v7, 3, v7\nv_add_u32 v6, v6, v7\nv_mul_u32_u24 v6, 480, v6\nv_and_b32 v7, 3, v0\nv_lshl_add_u32 v6, v7, 3, v6")
    A(f"v_add_u32 v4, {TBASE}, v6\nv_add_u32 v5, {TBASE + 3*TSLOT}, v6")
    accs = {}
    n = ACC
    for m in range(4):
        for t in tiles: accs[(m, t)] = n; n += 4
    for t in halo: accs[('h', t)] = n; n += 4
    assert n <= 256, n
    for i in range(ACC, n): A(f"v_mov_b32 v{i}, 0")
    def fP(s, m): return F[s] + 4*m
    def fT(s, t): return F[s] + 4*(5 + tiles.index(t))
    def reads(b):
        s = b & 1; kk = b & 1; ps = (b//2) % 3; ts = b % 6
        r = []
        for m in range(4):
            f = fP(s, m); r.append(f"ds_read_b128 v[{f}:{f+3}], v{2+kk} offset:{ps*PSLOT + (16 + 64*wm + 16*m)*128}")
        f = fP(s, 4); r.append(f"ds_read_b128 v[{f}:{f+3}], v{2+kk} offset:{ps*PSLOT}")
        for t in tiles:
            f = fT(s, t)
            for h in range(2):
                hi = 1 if ts >= 3 else 0
                r.append(f"ds_read_b64_tr_b16 v[{f+2*h}:{f+2*h+1}], v{4+hi} offset:{(ts - 3*hi)*TSLOT + h*8*480 + t*32}")
        return r
    A("s_barrier")
    for x in reads(0): A(x)
    A("s_waitcnt lgkmcnt(0)")
    st(); GS(A, 1)
    A("s_barrier")
    def beat(b, last=False):
        s = b & 1
        mf = []
        for m in range(4):
            for t in tiles:
                a_ = accs[(m, t)]; mf.append(f"v_mfma_f32_16x16x32_bf16 v[{a_}:{a_+3}], v[{fT(s,t)}:{fT(s,t)+3}], v[{fP(s,m)}:{fP(s,m)+3}], v[{a_}:{a_+3}]")
        for t in halo:
            a_ = accs[('h', t)]; mf.append(f"v_mfma_f32_16x16x32_bf16 v[{a_}:{a_+3}], v[{fT(s,t)}:{fT(s,t)+3}], v[{fP(s,4)}:{fP(s,4)+3}], v[{a_}:{a_+3}]")
        rd = [] if last else reads(b + 1)
        nfront = len(mf) - 8
        for i, x in enumerate(mf):
            A(x)
            if rd: A(rd.pop(0))
            if i == nfront - 1:
                assert not rd, (len(rd), nfront)
                A("s_waitcnt lgkmcnt(0)\ns_barrier")
    L = f"K1q{wm}{wn}_cloop"
    A("s_mov_b32 s26, 0")
    A.label(L)
    it_top(A)
    for b in range(6):
        if O.itstamp: A(f"s_memtime s[76:77]\ns_waitcnt lgkmcnt(0)\ns_cmp_eq_u32 s26, 0\ns_cselect_b32 s{85+b}, s76, s{85+b}")
        beat(b)
    A(f"s_add_u32 s26, s26, 1\ns_cmp_lt_u32 s26, 3\ns_cbranch_scc1 {L}")
    it_mid(A)
    beat(18); beat(19, last=True)
    it_end(A, 14, 15)
    st(); GS(A, 2)
    A(f"v_and_b32 v6, 15, v0\nv_mul_u32_u24 v6, {QP}, v6\nv_lshrrev_b32 v7, 4, v0\nv_lshl_add_u32 v6, v7, 3, v6")
    k = 0
    items = list(accs.items())
    for (key, a_) in items:
        A(f"v_cvt_pk_bf16_f32 v{16+2*k}, v{a_}, v{a_+1}\nv_cvt_pk_bf16_f32 v{17+2*k}, v{a_+2}, v{a_+3}")
        k += 1
    A(f"v_add_u32 v7, 0x8000, v6")
    k = 0
    for (key, a_) in items:
        m, t = key
        row = 0 if m == 'h' else 16 + 64*wm + 16*m
        off = row*QP + t*32
        if off < 65536: A(f"ds_write_b64 v6, v[{16+2*k}:{17+2*k}] offset:{off}")
        else: A(f"ds_write_b64 v7, v[{16+2*k}:{17+2*k}] offset:{off - 0x8000}")
        k += 1

def rot_table(A):
    A(f"s_and_b32 s28, s28, 3\ns_lshl_b32 s28, s28, 2\ns_lshr_b32 s28, {O.rottab if O.rot else 0}, s28\ns_and_b32 s28, s28, 15")

def k1(A):
    name = NAME + "_kernel"
    kernel_begin(A, name)
    A("s_cmp_ge_u32 s2, 256\ns_cbranch_scc1 K34_end")
    load_ptr(A, 30, 'x'); load_ptr(A, 32, 'ws'); load_ptr(A, 34, 'wqkv'); load_ptr(A, 36, 'win')
    load_ptr(A, 38, 'gw'); load_ptr(A, 44, 'wo'); load_ptr(A, 46, 'wout'); load_ptr(A, 52, 'wsp'); load_ptr(A, 50, 'dbg')
    wave_lane(A, 16)
    hd_start(A)
    st = Stamps(A, 0); st()
    GS(A, 0)
    A("s_waitcnt lgkmcnt(0)")
    A(f"s_add_u32 s96, s32, {WS_EP}\ns_addc_u32 s97, s33, 0\ns_load_dwordx2 s[98:99], s[96:97], 0")
    A("s_and_b32 s40, s2, 7\ns_lshr_b32 s41, s2, 3\ns_and_b32 s48, s40, 1\ns_lshl_b32 s48, s48, 3\ns_and_b32 s42, s41, 7\ns_add_u32 s48, s48, s42")
    A("s_lshr_b32 s49, s40, 1\ns_lshl_b32 s49, s49, 1\ns_lshr_b32 s43, s41, 3\ns_and_b32 s43, s43, 1\ns_add_u32 s49, s49, s43")
    A("s_lshl_b32 s28, s43, 1\ns_add_u32 s28, s28, s42")
    rot_table(A)
    A("s_cmp_lt_u32 s41, 16\ns_cbranch_scc1 K1_ztype")
    A("s_cmp_lt_u32 s16, 4\ns_cbranch_scc1 K1_qcomp")
    srd(A, 4, 30, 2048*640*2); srd(A, 8, 34, 640*1920*2)
    A("s_cmp_eq_u32 s16, 7\ns_cbranch_scc1 K1_qload3")
    k1_loader_q(A, False)
    A("s_branch K1_att")
    A.label("K1_qload3")
    k1_loader_q(A, True)
    A("s_branch K1_att")
    A.label("K1_qcomp")
    st()

    A("s_cmp_eq_u32 s16, 1\ns_cbranch_scc1 K1_q10\ns_cmp_eq_u32 s16, 2\ns_cbranch_scc1 K1_q01\ns_cmp_eq_u32 s16, 3\ns_cbranch_scc1 K1_q11")
    for (wm, wn) in ((0, 0), (1, 0), (0, 1), (1, 1)):
        if (wm, wn) != (0, 0): A.label(f"K1_q{wm}{wn}")
        stv = Stamps(A, 0, 2)
        k1_compute_q(A, wm, wn, stv)
        if (wm, wn) != (1, 1): A("s_branch K1_att")
    A.label("K1_att")
    st3 = Stamps(A, 0, 4)
    AV = 100
    A(f"s_and_b32 s46, s16, 3\ns_lshr_b32 s47, s16, 2\ns_mul_i32 s45, s46, 40\ns_mul_i32 s43, s47, {64*QP}\ns_add_u32 s45, s45, s43")
    A("s_or_b32 s43, s48, s47")
    attention_prep(A, AV, 45)
    T = 86
    A(f"s_lshl_b32 s20, s16, 6\nv_add_u32 v{T}, s20, v0")
    for i in range(3):
        c, r, q, la, ga = T+1, T+2, T+3, T+4+2*i, T+5+2*i
        A(f"v_add_u32 v{c}, {512*i}, v{T}")
        A(f"v_mul_u32_u24 v{r}, 6554, v{c}\nv_lshrrev_b32 v{r}, 16, v{r}")
        A(f"v_mul_u32_u24 v{q}, 10, v{r}\nv_sub_u32 v{q}, v{c}, v{q}")
        A(f"v_mul_u32_u24 v{la}, {QP}, v{r}\nv_lshl_add_u32 v{la}, v{q}, 4, v{la}\nv_add_u32 v{la}, {16*QP}, v{la}")
        A(f"s_lshl_b32 s20, s48, 7\nv_add_u32 v{ga}, s20, v{r}\nv_mul_u32_u24 v{ga}, 2816, v{ga}\nv_lshl_add_u32 v{ga}, v{q}, 4, v{ga}")
        A(f"s_mul_i32 s20, s49, 160\nv_add_u32 v{ga}, s20, v{ga}")
        if i == 2:
            A(f"v_mov_b32 v{q}, {KILL}\nv_cmp_le_u32 vcc, 1280, v{c}\nv_cndmask_b32 v{ga}, v{ga}, v{q}, vcc")
            A(f"v_mov_b32 v{q}, 0\nv_cndmask_b32 v{la}, v{la}, v{q}, vcc")
    srd(A, 12, 32, SZ_AU, WS_AU)
    A("s_waitcnt lgkmcnt(0)\ns_barrier")
    st3()
    attention_main(A, AV, 43)
    A("s_waitcnt lgkmcnt(0)\ns_barrier")
    st3()
    D = 16
    for i in range(3):
        A(f"ds_read_b64 v[{D+4*i}:{D+4*i+1}], v{T+4+2*i}\nds_read_b64 v[{D+4*i+2}:{D+4*i+3}], v{T+4+2*i} offset:8")
    A("s_waitcnt lgkmcnt(0)")
    for i in range(3): A(f"buffer_store_dwordx4 v[{D+4*i}:{D+4*i+3}], v{T+5+2*i}, s[12:15], 0 offen{O.k1st}")
    if O.stamp:
        A("s_cmp_ge_u32 s16, 4\ns_cbranch_scc1 K1_qnost")
    st3(); st3.flush(16, 32)
    A.label("K1_qnost")
    GS(A, 3)
    A("s_waitcnt vmcnt(0)\ns_barrier")
    srd(A, 12, 32, SZ_FQ, WS_FQ)
    A("s_lshl_b32 s20, s48, 6\ns_lshl_b32 s21, s49, 3\ns_add_u32 s20, s20, s21")
    A("s_branch K1_flag")
    A.label("K1_ztype")
    A(f"s_mul_i32 s17, s48, {128*1280}")
    A("s_mul_i32 s19, s49, 192\ns_add_u32 s18, s19, 1536")
    A("s_cmp_lt_u32 s16, 4\ns_cbranch_scc1 K1_zcomp")
    srd(A, 4, 30, 2048*640*2); srd(A, 8, 36, 640*1536*2)
    k1_loader_z(A)
    ACCZ = 96
    A("s_barrier")
    A("s_sub_u32 s20, s16, 4\ns_mul_i32 s20, s20, 12288\nv_lshlrev_b32 v4, 4, v0\nv_add_u32 v4, s20, v4")
    for k in range(12): A(f"ds_read_b128 v[{ACCZ+4*k}:{ACCZ+4*k+3}], v4 offset:{k*1024}")
    A(f"s_mov_b32 s56, {f2u(C1)}\ns_mov_b32 s57, {f2u(C1)}")
    A(f"v_mov_b32 v6, {f2u(C0)}\nv_mov_b32 v7, {f2u(C0)}")
    A("s_waitcnt lgkmcnt(0)")
    gelu_pk(A, [ACCZ + 2*i for i in range(24)], 16, 56)
    srd(A, 4, 32, SZ_Z1, WS_Z1)
    A("s_and_b32 s20, s16, 1\ns_lshr_b32 s21, s16, 1\ns_and_b32 s21, s21, 1")
    A("s_lshl_b32 s22, s48, 2\ns_lshl_b32 s23, s20, 1\ns_add_u32 s22, s22, s23\ns_mul_i32 s22, s22, 48")
    A("s_mul_i32 s23, s49, 6\ns_add_u32 s22, s22, s23\ns_mul_i32 s23, s21, 3\ns_add_u32 s22, s22, s23\ns_lshl_b32 s22, s22, 10")
    A("v_lshlrev_b32 v11, 4, v0")
    Q = 200
    for mp in range(2):
        for t in range(3):
            d = 16 + 4*(3*mp + t); a0 = ACCZ + 4*(3*(2*mp) + t); a1 = ACCZ + 4*(3*(2*mp+1) + t)
            A(f"v_cvt_pk_bf16_f32 v{d}, v{a0}, v{a0+1}\nv_cvt_pk_bf16_f32 v{d+1}, v{a0+2}, v{a0+3}\nv_cvt_pk_bf16_f32 v{d+2}, v{a1}, v{a1+1}\nv_cvt_pk_bf16_f32 v{d+3}, v{a1+2}, v{a1+3}")
    A("s_waitcnt vmcnt(0)")
    z_gate_compute(A)
    if O.defer:
        A(f"v_mov_b32 v8, {ZFLG + 16}\ns_mov_b32 s24, 0")
        A.label("K1_xwait")
        A("ds_read_b32 v9, v8\ns_waitcnt lgkmcnt(0)\nv_readfirstlane_b32 s25, v9\ns_add_u32 s24, s24, 1")
        A("s_cmp_ge_u32 s25, 4\ns_cbranch_scc1 K1_xok\ns_sleep 1\ns_cmp_lt_u32 s24, 0x200000\ns_cbranch_scc1 K1_xwait")
        A.label("K1_xok")
    for mp in range(2):
        for t in range(3):
            d = 16 + 4*(3*mp + t)
            A(f"s_add_u32 s23, s22, {mp*48*1024 + t*1024}")
            A(f"buffer_store_dwordx4 v[{d}:{d+3}], v11, s[4:7], s23 offen{O.k1st}")
    k1_pack_store(A)
    z_gate_store(A)
    A("s_branch K1_znost")
    A.label("K1_zcomp")
    st2 = Stamps(A, 0, 1); st2()
    A(f"s_lshl_b32 s20, s16, 2\ns_add_u32 s20, s20, {ZFLG}\nv_mov_b32 v14, s20\nv_mov_b32 v15, 0\nds_write_b32 v14, v15\nv_mov_b32 v14, {ZFLG + 16}\nds_write_b32 v14, v15")
    acc = k1_compute_z(A, st2)
    st2(); GS(A, 2)
    assert acc(0, 0) == ACCZ
    A("s_mul_i32 s20, s16, 12288\nv_lshlrev_b32 v4, 4, v0\nv_add_u32 v4, s20, v4")
    for m in range(4):
        for t in range(3): A(f"ds_write_b128 v4, v[{acc(m,3+t)}:{acc(m,3+t)+3}] offset:{(3*m+t)*1024}")
    A(f"s_mov_b32 s56, {f2u(C1)}\ns_mov_b32 s57, {f2u(C1)}")
    A(f"v_mov_b32 v6, {f2u(C0)}\nv_mov_b32 v7, {f2u(C0)}")
    A("s_waitcnt lgkmcnt(0)\ns_barrier")
    st2()
    A("s_and_b32 s20, s16, 1\ns_lshr_b32 s21, s16, 1")
    z2 = [acc(m, t) + 2*q for m in range(4) for t in range(3) for q in range(2)]
    gelu_pk(A, z2, 16, 56)
    st2()
    S = 70
    for m in range(4):
        vals = [acc(m, t) + r for t in range(3) for r in range(4)]
        A(f"v_pk_add_f32 v[{S+2*m}:{S+2*m+1}], v[{vals[0]}:{vals[1]}], v[{vals[2]}:{vals[3]}]")
        A(f"v_pk_mul_f32 v[{S+8+2*m}:{S+8+2*m+1}], v[{vals[0]}:{vals[1]}], v[{vals[0]}:{vals[1]}]")
    for m in range(4):
        vals = [acc(m, t) + r for t in range(3) for r in range(4)]
        A(f"v_pk_fma_f32 v[{S+8+2*m}:{S+8+2*m+1}], v[{vals[2]}:{vals[3]}], v[{vals[2]}:{vals[3]}], v[{S+8+2*m}:{S+8+2*m+1}]")
    for q in range(2, 6):
        for m in range(4):
            vals = [acc(m, t) + r for t in range(3) for r in range(4)]
            A(f"v_pk_add_f32 v[{S+2*m}:{S+2*m+1}], v[{S+2*m}:{S+2*m+1}], v[{vals[2*q]}:{vals[2*q+1]}]")
            A(f"v_pk_fma_f32 v[{S+8+2*m}:{S+8+2*m+1}], v[{vals[2*q]}:{vals[2*q+1]}], v[{vals[2*q]}:{vals[2*q+1]}], v[{S+8+2*m}:{S+8+2*m+1}]")
    for m in range(4):
        A(f"v_add_f32 v{S+2*m}, v{S+2*m}, v{S+2*m+1}\nv_add_f32 v{S+2*m+1}, v{S+8+2*m}, v{S+8+2*m+1}")
    for i in range(8): A(f"v_mov_b32 v{S+8+i}, v{S+i}")
    for i in range(8): A(f"v_permlane16_swap_b32 v{S+i}, v{S+8+i}")
    for i in range(8): A(f"v_add_f32 v{S+i}, v{S+i}, v{S+8+i}")
    for i in range(8): A(f"v_mov_b32 v{S+8+i}, v{S+i}")
    for i in range(8): A(f"v_permlane32_swap_b32 v{S+i}, v{S+8+i}")
    for i in range(8): A(f"v_add_f32 v{S+i}, v{S+i}, v{S+8+i}")
    A("v_lshrrev_b32 v3, 4, v0")
    for m in range(1, 4):
        A(f"v_cmp_eq_u32 vcc, {m}, v3\nv_cndmask_b32 v{S}, v{S}, v{S+2*m}, vcc\nv_cndmask_b32 v{S+1}, v{S+1}, v{S+2*m+1}, vcc")
    A(f"v_lshlrev_b32 v4, 3, v0\ns_lshl_b32 s22, s16, 9\ns_add_u32 s22, s22, 49152\nv_add_u32 v5, s22, v4")
    A(f"ds_write_b64 v5, v[{S}:{S+1}]")
    A(f"s_lshl_b32 s22, s16, 2\ns_add_u32 s22, s22, {ZFLG}\nv_mov_b32 v8, s22\nv_mov_b32 v9, 1")
    A("s_waitcnt lgkmcnt(0)")
    A("ds_write_b32 v8, v9\nv_xor_b32 v8, 8, v8\ns_mov_b32 s24, 0")
    A.label("K1_pair")
    A("ds_read_b32 v9, v8\ns_waitcnt lgkmcnt(0)\nv_readfirstlane_b32 s25, v9\ns_add_u32 s24, s24, 1")
    A("s_cmp_eq_u32 s25, 1\ns_cbranch_scc1 K1_pairok\ns_cmp_lt_u32 s24, 0x100000\ns_cbranch_scc1 K1_pair")
    A.label("K1_pairok")
    A("v_xor_b32 v5, 1024, v5")
    A(f"ds_read_b64 v[{S+2}:{S+3}], v5")
    srd(A, 8, 32, SZ_ST, WS_ST)
    A("s_lshl_b32 s22, s49, 15\ns_lshl_b32 s23, s48, 11\ns_add_u32 s22, s22, s23\ns_lshl_b32 s23, s20, 10\ns_add_u32 s22, s22, s23")
    A("s_waitcnt lgkmcnt(0)")
    A(f"v_add_f32 v{S}, v{S}, v{S+2}\nv_add_f32 v{S+1}, v{S+1}, v{S+3}")
    st2()
    A("s_cmp_lg_u32 s21, 0\ns_cbranch_scc1 K1_z_nostat")
    A(f"s_add_u32 s24, s98, 1\nv_mov_b32 v{S+2}, s24\nv_mov_b32 v{S+3}, s99\nv_lshlrev_b32 v4, 4, v0")
    A(f"buffer_store_dwordx4 v[{S}:{S+3}], v4, s[8:11], s22 offen sc1")
    A.label("K1_z_nostat")
    st2()
    srd(A, 12, 32, SZ_Z2P, WS_Z2P)
    A("s_lshl_b32 s22, s49, 5\ns_lshl_b32 s23, s48, 1\ns_add_u32 s22, s22, s23\ns_add_u32 s22, s22, s20\ns_mul_i32 s22, s22, 6")
    A("s_mul_i32 s23, s21, 3\ns_add_u32 s22, s22, s23\ns_lshl_b32 s26, s22, 11")
    A("v_and_b32 v6, 15, v0\nv_and_b32 v7, 3, v6\nv_and_b32 v10, 4, v6\nv_lshl_or_b32 v7, v10, 1, v7\nv_and_b32 v10, 8, v6\nv_lshrrev_b32 v10, 1, v10\nv_or_b32 v7, v7, v10")
    A("v_and_b32 v10, 1, v3\nv_lshl_add_u32 v7, v10, 4, v7\nv_lshlrev_b32 v7, 5, v7\nv_lshrrev_b32 v10, 1, v3\nv_lshl_add_u32 v10, v10, 4, v7")
    A("s_lshl_b32 s22, s48, 11\ns_lshl_b32 s23, s20, 10\ns_add_u32 s22, s22, s23")
    A("v_lshlrev_b32 v4, 4, v0")
    A(f"s_add_u32 s24, s98, 1\nv_mov_b32 v{OT}, s24\nv_mov_b32 v{OT+1}, s99")
    A("s_mov_b32 s24, 0")
    A.label("K1_poll")
    for jj in range(8):
        A(f"s_add_u32 s23, s22, {jj*32768}")
        A(f"buffer_load_dwordx4 v[{16+4*jj}:{19+4*jj}], v4, s[8:11], s23 offen sc1")
    A("s_waitcnt vmcnt(0)")
    A(f"v_xor_b32 v48, v18, v{OT}\nv_xor_b32 v49, v19, v{OT+1}\nv_or_b32 v48, v48, v49")
    for jj in range(1, 8): A(f"v_xor_b32 v49, v{18+4*jj}, v{OT}\nv_xor_b32 v50, v{19+4*jj}, v{OT+1}\nv_or3_b32 v48, v48, v49, v50")
    A("v_cmp_ne_u32 vcc, 0, v48")
    A("s_add_u32 s24, s24, 1\ns_nop 3")
    A("s_cbranch_vccz K1_polled")
    A(f"s_sleep {O.sleep}")
    A("s_cmp_lt_u32 s24, 0x10000\ns_cbranch_scc1 K1_poll")
    A.label("K1_polled")
    A(f"v_mov_b32 v8, {ZFLG + 16}\nv_mov_b32 v9, 1\ns_mov_b64 exec, 1\nds_add_u32 v8, v9\ns_mov_b64 exec, -1")
    st2()
    for jj in range(1, 8): A(f"v_add_f32 v16, v16, v{16+4*jj}\nv_add_f32 v17, v17, v{17+4*jj}")
    A(f"v_mul_f32 v16, {f2u(1/768)}, v16\nv_mul_f32 v17, {f2u(1/768)}, v17")
    A("v_fma_f32 v17, -v16, v16, v17\nv_max_f32 v17, 0, v17")
    A(f"v_add_f32 v17, {f2u(1e-5)}, v17\nv_rsq_f32 v17, v17")
    A("v_mul_f32 v16, v16, v17\nv_sub_f32 v16, 0, v16")
    A("v_and_b32 v5, 15, v0\nv_lshlrev_b32 v5, 2, v5")
    for m in range(4):
        A(f"v_add_u32 v8, {64*m}, v5")
        A(f"ds_bpermute_b32 v{32+2*m}, v8, v17\nds_bpermute_b32 v{33+2*m}, v8, v16")
    A("s_waitcnt lgkmcnt(0)")
    PK = 44
    for m in range(4):
        for t in range(3):
            a_ = acc(m, t)
            for r in range(4): A(f"v_fma_f32 v{a_+r}, v{a_+r}, v{32+2*m}, v{33+2*m}")
    for mp in range(2):
        for t in range(3):
            d = PK + 4*(3*mp + t); a0 = acc(2*mp, t); a1 = acc(2*mp+1, t)
            A(f"v_cvt_pk_bf16_f32 v{d}, v{a0}, v{a0+1}\nv_cvt_pk_bf16_f32 v{d+1}, v{a0+2}, v{a0+3}\nv_cvt_pk_bf16_f32 v{d+2}, v{a1}, v{a1+1}\nv_cvt_pk_bf16_f32 v{d+3}, v{a1+2}, v{a1+3}")
    for k in range(6):
        d = PK + 4*k
        A(f"v_permlane16_swap_b32 v{d}, v{d+2}\nv_permlane16_swap_b32 v{d+1}, v{d+3}")
    for mp in range(2):
        for t in range(3):
            d = PK + 4*(3*mp + t)
            A(f"s_add_u32 s23, s26, {t*2048 + mp*1024}")
            A(f"buffer_store_dwordx4 v[{d}:{d+3}], v10, s[12:15], s23 offen{O.k1st}")
    if O.stamp:
        A("s_cmp_ge_u32 s16, 4\ns_cbranch_scc1 K1_znost")
    st2(); st2.flush(16, 32)
    A.label("K1_znost")
    GS(A, 3)
    A("s_waitcnt vmcnt(0)\ns_barrier")
    srd(A, 12, 32, SZ_FZ, WS_FZ)
    A("s_lshl_b32 s20, s49, 7\ns_lshl_b32 s21, s48, 3\ns_add_u32 s20, s20, s21")
    A.label("K1_flag")
    A("s_cmp_lg_u32 s16, 0\ns_cbranch_scc1 K1_done")
    A("s_add_u32 s21, s98, 1\nv_mov_b32 v8, s21\nv_mov_b32 v9, s99\nv_mov_b32 v10, s20")
    A("s_mov_b64 exec, 1")
    A("buffer_store_dwordx2 v[8:9], v10, s[12:15], 0 offen sc1")
    A("s_mov_b64 exec, -1")
    A.label("K1_done")
    GS(A, 4)
    return name, 256, 512, 147456 + 64, 256

SLOT = 20480
class E2:
    def __init__(self, A, pfx, NT, nsteps, pitchP, wave_m, wave_n, NS=6):
        self.A = A; self.pfx = pfx; self.NT = NT; self.n = nsteps; self.pitchP = pitchP
        self.mP = wave_m; self.nT = wave_n; self.NS = NS
        self.F = [8, 8 + 8*(wave_m + wave_n)]
        self.ACC = 8 + 16*(wave_m + wave_n)
        self.vend = self.ACC + 4*wave_m*wave_n
    def fP(self, s, kk, m): return self.F[s] + 4*(kk*(self.mP+self.nT) + m)
    def fT(self, s, kk, t): return self.F[s] + 4*(kk*(self.mP+self.nT) + self.mP + t)
    def acc(self, m, t): return self.ACC + 4*(m*self.nT + t)
    def loader_setup(self):
        A = self.A
        A("s_sub_u32 s21, s16, 4")
        A("v_lshrrev_b32 v7, 3, v0\nv_and_b32 v2, 7, v0\nv_xor_b32 v2, v2, v7")
        A(f"s_mov_b32 s20, {self.pitchP}\nv_mul_lo_u32 v7, v7, s20\nv_lshl_add_u32 v2, v2, 4, v7\nv_lshlrev_b32 v3, 4, v0")
        A(f"s_mul_i32 s20, s21, {16*self.pitchP}\ns_add_u32 s23, s17, s20")
        A("s_mul_i32 s20, s21, 3072\ns_add_u32 s24, s18, s20\ns_add_u32 s26, s20, 8192\ns_lshl_b32 s27, s21, 11")
        A("s_mov_b32 s28, 0\ns_mov_b32 s29, 0")
        if 2*self.NT < 12:
            A(f"s_mul_i32 s20, s21, 3\ns_cmp_ge_u32 s20, {2*self.NT - 1}\ns_cselect_b32 s28, {KILL}, 0\ns_cmp_ge_u32 s20, {2*self.NT - 2}\ns_cselect_b32 s29, {KILL}, 0")
        A("s_mov_b32 s22, 0")
    def issue(self):
        A = self.A
        A("s_add_u32 m0, s22, s27")
        A(f"s_add_u32 s20, s23, {8*self.pitchP - 1024}")
        A("buffer_load_dwordx4 v2, s[4:7], s23 offen lds")
        A("buffer_load_dwordx4 v2, s[4:7], s20 offen offset:1024 lds")
        A("s_add_u32 m0, s22, s26")
        if 2*self.NT < 12:
            A("s_add_u32 s25, s24, s28\ns_add_u32 s15, s24, s29")
            A("buffer_load_dwordx4 v3, s[8:11], s24 offen lds")
            A("buffer_load_dwordx4 v3, s[8:11], s25 offen offset:1024 lds")
            A("buffer_load_dwordx4 v3, s[8:11], s15 offen offset:2048 lds")
        else:
            A(f"buffer_load_dwordx4 v3, s[8:11], s24 offen{O.xl} lds")
            A(f"buffer_load_dwordx4 v3, s[8:11], s24 offen offset:1024{O.xl} lds")
            A(f"buffer_load_dwordx4 v3, s[8:11], s24 offen offset:2048{O.xl} lds")
        A(f"s_add_u32 s23, s23, 128\ns_add_u32 s24, s24, {self.NT*2048}")
        A(f"s_add_u32 s22, s22, {SLOT}\ns_cmp_eq_u32 s22, {self.NS*SLOT}\ns_cselect_b32 s22, 0, s22")
    def loader_main(self, pre_issued):
        A = self.A; NS = self.NS; n = self.n
        for i in range(pre_issued, NS - 1): self.issue()
        A(f"s_waitcnt vmcnt({(NS - 2)*5})")
        A("s_barrier")
        self.issue()
        L = self.pfx + "_lloop"
        A("s_mov_b32 s14, 0")
        A.label(L)
        A(f"s_waitcnt vmcnt({(NS-2)*5})\ns_barrier")
        self.issue()
        A(f"s_add_u32 s14, s14, 1\ns_cmp_lt_u32 s14, {n - NS}\ns_cbranch_scc1 {L}")
        for t in range(NS):
            i = n - NS + t
            rem = max(0, (n - 1) - (i + 1))
            A(f"s_waitcnt vmcnt({rem*5})\ns_barrier")
    def compute_setup(self, s_row, s_tile):
        A = self.A
        A("v_and_b32 v4, 15, v0\nv_lshrrev_b32 v5, 4, v0\nv_and_b32 v6, 7, v4\nv_xor_b32 v5, v5, v6\nv_lshlrev_b32 v4, 7, v4\nv_lshl_add_u32 v4, v5, 4, v4")
        A(f"s_lshl_b32 s20, s{s_row}, 7\nv_add_u32 v2, s20, v4\nv_xor_b32 v3, 64, v2")
        A("v_and_b32 v6, 15, v0\nv_lshlrev_b32 v6, 3, v6\nv_and_b32 v7, 16, v0\nv_lshl_add_u32 v6, v7, 3, v6\nv_and_b32 v7, 32, v0\nv_lshl_add_u32 v6, v7, 4, v6")
        A(f"s_lshl_b32 s20, s{s_tile}, 11\ns_add_u32 s20, s20, 8192\nv_add_u32 v4, s20, v6")
        A(f"v_add_u32 v5, {3*SLOT}, v2\nv_add_u32 v6, {3*SLOT}, v3\nv_add_u32 v7, {3*SLOT}, v4")
        for i in range(self.ACC, self.vend): A(f"v_mov_b32 v{i}, 0")
    def reads(self, step):
        s = step & 1; sl = step % self.NS; hi = 3 if sl >= 3 else 0; so = (sl - hi)*SLOT
        b = 3 if hi else 0
        r = []
        for kk in range(2):
            for m in range(self.mP):
                f = self.fP(s, kk, m); r.append(f"ds_read_b128 v[{f}:{f+3}], v{2+kk+b} offset:{so + m*2048}")
            for t in range(self.nT):
                f = self.fT(s, kk, t)
                for h in range(2): r.append(f"ds_read_b64_tr_b16 v[{f+2*h}:{f+2*h+1}], v{4+b} offset:{so + t*2048 + kk*1024 + h*256}")
        return r
    def step(self, i, last=False):
        A = self.A; s = i & 1
        rd = [] if last else self.reads(i + 1)
        mf = [f"v_mfma_f32_16x16x32_bf16 v[{self.acc(m,t)}:{self.acc(m,t)+3}], v[{self.fT(s,kk,t)}:{self.fT(s,kk,t)+3}], v[{self.fP(s,kk,m)}:{self.fP(s,kk,m)+3}], v[{self.acc(m,t)}:{self.acc(m,t)+3}]"
              for kk in range(2) for m in range(self.mP) for t in range(self.nT)]
        A("s_barrier")
        per = (len(rd) + len(mf) - 1)//len(mf) if rd else 0
        for x in mf:
            for _ in range(per):
                if rd: A(rd.pop(0))
            A(x)
        A("s_waitcnt lgkmcnt(0)")
    def compute(self, st, unroll=False, hooks=None):
        A = self.A; NS = self.NS; n = self.n
        assert NS % 2 == 0
        A("s_barrier")
        for x in self.reads(0): A(x)
        A("s_waitcnt lgkmcnt(0)")
        st()
        if unroll:
            for i in range(n):
                self.step(i, last=(i == n - 1))
                if hooks and i in hooks: hooks[i]()
            return
        nfull = (n - 1)//NS
        L = self.pfx + "_cloop"
        A("s_mov_b32 s19, 0")
        A.label(L)
        for i in range(NS): self.step(i)
        A(f"s_add_u32 s19, s19, 1\ns_cmp_lt_u32 s19, {nfull}\ns_cbranch_scc1 {L}")
        for i in range(nfull*NS, n): self.step(i, last=(i == n - 1))

def tile_map(A):
    A("s_and_b32 s42, s2, 7\ns_lshr_b32 s43, s2, 3\ns_lshr_b32 s40, s42, 1\ns_lshl_b32 s40, s40, 3\ns_and_b32 s44, s43, 7\ns_add_u32 s40, s40, s44")
    A("s_and_b32 s41, s42, 1\ns_lshl_b32 s41, s41, 2\ns_lshr_b32 s44, s43, 3\ns_add_u32 s41, s41, s44")

ATT_LDS = 6*SLOT
def attention_regs(V):
    R = dict(aQ=V+1, aK=V+2, aV=V+3, t0=V+4, t1=V+5, t2=V+6, M20=V+7, M21=V+8, N20=V+9, N21=V+10)
    S = (V + 12 + 3)//4*4
    R.update(S=S, QF=S+12, KF=S+22, VF=S+52, OO=(S+82+3)//4*4)
    return R
def attention_prep(A, V, s_off):
    R = attention_regs(V); aQ, aK, aV, t0, t1, t2 = R['aQ'], R['aK'], R['aV'], R['t0'], R['t1'], R['t2']
    M20, M21, N20, N21, S, OO = R['M20'], R['M21'], R['N20'], R['N21'], R['S'], R['OO']
    A(f"v_lshrrev_b32 v{t0}, 3, v0\nv_lshlrev_b32 v{t0}, 2, v{t0}\nv_and_b32 v{t1}, 3, v0\nv_add_u32 v{t0}, v{t0}, v{t1}")
    A(f"v_lshrrev_b32 v{t1}, 2, v0\nv_and_b32 v{t1}, 1, v{t1}\nv_lshl_add_u32 v{t0}, v{t0}, 1, v{t1}")
    A(f"v_mul_u32_u24 v{t0}, {QP}, v{t0}\nv_add_u32 v{aK}, s{s_off}, v{t0}\nv_add_u32 v{aQ}, {16*QP}, v{aK}")
    A(f"v_lshrrev_b32 v{t1}, 4, v0\nv_lshlrev_b32 v{t1}, 2, v{t1}\nv_and_b32 v{t2}, 3, v0\nv_add_u32 v{t1}, v{t1}, v{t2}")
    A(f"v_lshrrev_b32 v{t2}, 1, v{t1}\nv_lshlrev_b32 v{t2}, 2, v{t2}\nv_and_b32 v{t1}, 1, v{t1}")
    A(f"v_lshrrev_b32 v{aV}, 2, v0\nv_and_b32 v{aV}, 3, v{aV}\nv_add_u32 v{aV}, v{aV}, v{t2}\nv_lshl_add_u32 v{aV}, v{aV}, 1, v{t1}")
    A(f"v_mul_u32_u24 v{aV}, {QP}, v{aV}\nv_add_u32 v{aV}, s{s_off}, v{aV}")
    A(f"v_and_b32 v{t1}, 3, v0")
    A(f"v_mov_b32 v{M20}, 0xffff\nv_mov_b32 v{t2}, -1\nv_cmp_le_u32 vcc, 1, v{t1}\nv_cndmask_b32 v{M20}, v{M20}, v{t2}, vcc")
    A(f"v_mov_b32 v{M21}, 0\nv_mov_b32 v{t2}, 0xffff\nv_cmp_le_u32 vcc, 2, v{t1}\nv_cndmask_b32 v{M21}, v{M21}, v{t2}, vcc")
    A(f"v_mov_b32 v{t2}, -1\nv_cmp_eq_u32 vcc, 3, v{t1}\nv_cndmask_b32 v{M21}, v{M21}, v{t2}, vcc")
    A(f"v_not_b32 v{N20}, v{M20}\nv_not_b32 v{N21}, v{M21}")
    for i in range(12): A(f"v_mov_b32 v{S+i}, 0")
    for i in range(20): A(f"v_mov_b32 v{OO+i}, 0")
    A("s_mov_b32 s22, 0xeeeeeeee\ns_mov_b32 s23, 0xeeeeeeee\ns_mov_b32 s24, 0xcccccccc\ns_mov_b32 s25, 0xcccccccc\ns_mov_b32 s26, 0x88888888\ns_mov_b32 s27, 0x88888888")
def attention_main(A, V, s_bound):
    R = attention_regs(V); aQ, aK, aV, t0, t1, t2 = R['aQ'], R['aK'], R['aV'], R['t0'], R['t1'], R['t2']
    M20, M21, N20, N21, S, QF, KF, VF, OO = R['M20'], R['M21'], R['N20'], R['N21'], R['S'], R['QF'], R['KF'], R['VF'], R['OO']
    for dg in range(5):
        A(f"ds_read_b64 v[{QF+2*dg}:{QF+2*dg+1}], v{aQ} offset:{8*dg}")
        for c in range(3): A(f"ds_read_b64 v[{KF+2*(5*c+dg)}:{KF+2*(5*c+dg)+1}], v{aK} offset:{8*c*QP + 160 + 8*dg}")
    for dg in range(5):
        if dg == 0:
            A("s_waitcnt lgkmcnt(15)")
        rem = 20 - 4*(dg+1)
        A(f"s_waitcnt lgkmcnt({min(rem, 15)})")
        for c in range(3):
            A(f"v_mfma_f32_4x4x4_16b_bf16 v[{S+4*c}:{S+4*c+3}], v[{KF+2*(5*c+dg)}:{KF+2*(5*c+dg)+1}], v[{QF+2*dg}:{QF+2*dg+1}], v[{S+4*c}:{S+4*c+3}]")
    for c in range(3):
        for dg in range(5): A(f"ds_read_b64_tr_b16 v[{VF+2*(5*c+dg)}:{VF+2*(5*c+dg)+1}], v{aV} offset:{8*c*QP + 320 + 8*dg}")
    Lb = A.newlabel("att_nomask")
    A(f"s_cmp_lg_u32 s{s_bound}, 0\ns_cbranch_scc1 {Lb}")
    A(f"v_mov_b32 v{t2}, {f2u(-1e30)}")
    A("v_cmp_gt_u32 vcc, 16, v0")
    for i in range(4): A(f"v_cndmask_b32 v{S+i}, v{S+i}, v{t2}, vcc")
    A("v_cmp_gt_u32 vcc, 8, v0")
    for i in range(4): A(f"v_cndmask_b32 v{S+4+i}, v{S+4+i}, v{t2}, vcc")
    A("s_nop 4")
    A.label(Lb)
    A("s_nop 4")
    for i in range(1, 4): A(f"v_cndmask_b32 v{S+8+i}, v{S+i}, v{S+8+i}, s[{20+2*i}:{21+2*i}]")
    vals = [S+4+i for i in range(8)]
    A(f"v_max3_f32 v{t0}, v{vals[0]}, v{vals[1]}, v{vals[2]}\nv_max3_f32 v{t1}, v{vals[3]}, v{vals[4]}, v{vals[5]}\nv_max3_f32 v{t0}, v{t0}, v{vals[6]}, v{vals[7]}\nv_max_f32 v{t0}, v{t0}, v{t1}")
    SC = (20 ** -0.5) * 1.4426950408889634
    A(f"s_mov_b32 s20, {f2u(SC)}")
    A(f"v_mul_f32 v{t0}, s20, v{t0}")
    for x in vals: A(f"v_fma_f32 v{x}, v{x}, s20, -v{t0}")
    for x in vals: A(f"v_exp_f32 v{x}, v{x}")
    A(f"v_add_f32 v{t0}, v{vals[0]}, v{vals[1]}\nv_add_f32 v{t1}, v{vals[2]}, v{vals[3]}\nv_add_f32 v{t2}, v{vals[4]}, v{vals[5]}\nv_add_f32 v{t0}, v{t0}, v{t1}")
    A(f"v_add_f32 v{t1}, v{vals[6]}, v{vals[7]}\nv_add_f32 v{t0}, v{t0}, v{t2}\nv_add_f32 v{t0}, v{t0}, v{t1}")
    A(f"v_rcp_f32 v{t0}, v{t0}")
    for x in vals: A(f"v_mul_f32 v{x}, v{x}, v{t0}")
    PP = QF
    A(f"v_cvt_pk_bf16_f32 v{PP+2}, v{S+4}, v{S+5}\nv_cvt_pk_bf16_f32 v{PP+3}, v{S+6}, v{S+7}")
    A(f"v_cvt_pk_bf16_f32 v{t1}, v{S+8}, v{S+9}\nv_cvt_pk_bf16_f32 v{t2}, v{S+10}, v{S+11}")
    A(f"v_and_b32 v{PP+4}, v{t1}, v{M20}\nv_and_b32 v{PP+5}, v{t2}, v{M21}\nv_and_b32 v{PP}, v{t1}, v{N20}\nv_and_b32 v{PP+1}, v{t2}, v{N21}")
    A("s_waitcnt lgkmcnt(0)")
    for c in (1, 0, 2):
        for dg in range(5):
            A(f"v_mfma_f32_4x4x4_16b_bf16 v[{OO+4*dg}:{OO+4*dg+3}], v[{VF+2*(5*c+dg)}:{VF+2*(5*c+dg)+1}], v[{PP+2*c}:{PP+2*c+1}], v[{OO+4*dg}:{OO+4*dg+3}]")
    for dg in range(5):
        A(f"v_cvt_pk_bf16_f32 v{KF+2*dg}, v{OO+4*dg}, v{OO+4*dg+1}\nv_cvt_pk_bf16_f32 v{KF+2*dg+1}, v{OO+4*dg+2}, v{OO+4*dg+3}")
    for dg in range(5): A(f"ds_write_b64 v{aQ}, v[{KF+2*dg}:{KF+2*dg+1}] offset:{8*dg}")

def k3(A):
    name = "k3_kernel"
    kernel_begin(A, name)
    A("s_cmp_ge_u32 s2, 256\ns_cbranch_scc1 K3_end")
    load_ptr(A, 30, 'wsp'); load_ptr(A, 32, 'ws'); load_ptr(A, 34, 'bsp')
    wave_lane(A, 16)
    tile_map(A)
    st = Stamps(A, 2); st()
    E = E2(A, "K3", 6, 32, 4096, 2, 3)
    A(f"s_mul_i32 s17, s40, {64*4096}\ns_mul_i32 s18, s41, {32*6*2048}")
    A("s_waitcnt lgkmcnt(0)")
    A("s_cmp_lt_u32 s16, 4\ns_cbranch_scc1 K3_comp")
    srd(A, 4, 30, 2048*2048*2); srd(A, 8, 32, SZ_Z2P, WS_Z2P)
    E.loader_setup()
    E.loader_main(0)
    A("s_branch K3_end")
    A.label("K3_comp")
    A("s_and_b32 s46, s16, 1\ns_lshl_b32 s46, s46, 5\ns_lshr_b32 s47, s16, 1\ns_mul_i32 s47, s47, 3")
    PF = 116
    srd(A, 4, 32, SZ_Z1, WS_Z1); srd(A, 8, 32, SZ_G, WS_G); srd(A, 12, 34, 2048*2)
    A("s_lshl_b32 s43, s40, 6\ns_add_u32 s43, s43, s46")
    A("v_and_b32 v112, 15, v0\nv_add_u32 v112, s43, v112\nv_lshrrev_b32 v113, 4, v0")
    A("s_lshr_b32 s48, s43, 5\ns_mul_i32 s48, s48, 48\ns_mul_i32 s49, s41, 6\ns_add_u32 s48, s48, s49\ns_add_u32 s48, s48, s47\ns_lshl_b32 s48, s48, 10")
    A("v_lshlrev_b32 v114, 4, v0")
    for t in range(3): A(f"buffer_load_dwordx4 v[{PF+4*t}:{PF+4*t+3}], v114, s[4:7], s48 offen offset:{t*1024}")
    A("v_lshlrev_b32 v115, 2, v112")
    A(f"buffer_load_dword v{PF+12}, v115, s[8:11], 0 offen\nbuffer_load_dword v{PF+13}, v115, s[8:11], 0 offen offset:64")
    A("v_lshlrev_b32 v115, 1, v112")
    A(f"buffer_load_ushort v{PF+14}, v115, s[12:15], 0 offen\nbuffer_load_ushort v{PF+15}, v115, s[12:15], 0 offen offset:32")
    E.compute_setup(46, 47)
    st()
    E.compute(st)
    st()
    A("s_waitcnt vmcnt(0)")
    srd(A, 12, 32, SZ_AU, WS_AU)
    for m in range(2): A(f"v_lshlrev_b32 v{PF+14+m}, 16, v{PF+14+m}\nv_sub_f32 v{PF+12+m}, 1.0, v{PF+12+m}")
    T = 132
    for m in range(2):
        for t in range(3):
            ac = E.acc(m, t)
            for q in range(2):
                z = PF + 4*t + 2*m + q
                A(f"v_lshlrev_b32 v{T}, 16, v{z}\nv_and_b32 v{T+1}, 0xffff0000, v{z}")
                A(f"v_add_f32 v{T+2}, v{ac+2*q}, v{PF+14+m}\nv_add_f32 v{T+3}, v{ac+2*q+1}, v{PF+14+m}")
                A(f"v_mul_f32 v{T}, v{T}, v{PF+12+m}\nv_mul_f32 v{T+1}, v{T+1}, v{PF+12+m}")
                A(f"v_mul_f32 v{T+2}, v{T+2}, v{T}\nv_mul_f32 v{T+3}, v{T+3}, v{T+1}")
                A(f"v_cvt_pk_bf16_f32 v{z}, v{T+2}, v{T+3}")
    A("s_mov_b32 s45, 2816\nv_mul_lo_u32 v114, v112, s45\nv_lshl_add_u32 v114, v113, 3, v114")
    A("s_mul_i32 s48, s41, 192\ns_lshl_b32 s49, s47, 5\ns_add_u32 s48, s48, s49\ns_add_u32 s48, s48, 1280\nv_add_u32 v114, s48, v114")
    A(f"s_mov_b32 s49, {16*2816}")
    for m in range(2):
        for t in range(3):
            z = PF + 4*t + 2*m
            A(f"buffer_store_dwordx2 v[{z}:{z+1}], v114, s[12:15], {'s49' if m else '0'} offen offset:{t*32}")
    st(); st.flush(16, 32)
    A.label("K3_end")
    A("s_endpgm")
    return name, 256, 512, 6*SLOT, 140

def k4(A):
    name = "k4_kernel"
    kernel_begin(A, name)
    A("s_cmp_ge_u32 s2, 256\ns_cbranch_scc1 K4_end")
    load_ptr(A, 30, 'out'); load_ptr(A, 32, 'ws')
    wave_lane(A, 16)
    tile_map(A)
    st = Stamps(A, 3); st()
    E = E2(A, "K4", 5, 22, 2816, 1, 5)
    A(f"s_mul_i32 s17, s40, {64*2816}\ns_mul_i32 s18, s41, {22*5*2048}")
    A("s_waitcnt lgkmcnt(0)")
    A("s_cmp_lt_u32 s16, 4\ns_cbranch_scc1 K4_comp")
    srd(A, 4, 32, SZ_AU, WS_AU); srd(A, 8, 32, SZ_WP, WS_WP)
    E.loader_setup()
    E.loader_main(0)
    A("s_branch K4_end")
    A.label("K4_comp")
    A("s_lshl_b32 s46, s16, 4\ns_mov_b32 s47, 0")
    srd(A, 8, 32, SZ_G, WS_G)
    A("s_lshl_b32 s43, s40, 6\ns_add_u32 s43, s43, s46\nv_and_b32 v126, 15, v0\nv_add_u32 v126, s43, v126\nv_lshlrev_b32 v126, 2, v126")
    A("buffer_load_dword v125, v126, s[8:11], 0 offen")
    E.compute_setup(46, 47)
    st()
    def scale():
        A("s_waitcnt vmcnt(0)")
        for t in range(5):
            for r in range(4): A(f"v_mul_f32 v{E.acc(0,t)+r}, v{E.acc(0,t)+r}, v125")
    E.compute(st, unroll=True, hooks={9: scale})
    st()
    A("s_lshl_b32 s43, s40, 6\ns_add_u32 s43, s43, s46\nv_and_b32 v2, 15, v0\nv_add_u32 v2, s43, v2\nv_lshrrev_b32 v3, 4, v0")
    srd(A, 12, 30, 2048*640*2)
    PK = 8
    for t in range(5):
        ac = E.acc(0, t)
        A(f"v_cvt_pk_bf16_f32 v{PK+2*t}, v{ac}, v{ac+1}\nv_cvt_pk_bf16_f32 v{PK+2*t+1}, v{ac+2}, v{ac+3}")
    A("s_mov_b32 s45, 1280\nv_mul_lo_u32 v4, v2, s45\nv_lshl_add_u32 v4, v3, 3, v4\ns_mul_i32 s46, s41, 160\nv_add_u32 v4, s46, v4")
    for t in range(5): A(f"buffer_store_dwordx2 v[{PK+2*t}:{PK+2*t+1}], v4, s[12:15], 0 offen offset:{t*32}")
    st(); st.flush(16, 32)
    A.label("K4_end")
    A("s_endpgm")
    return name, 256, 512, 6*SLOT, 128

def k34(A):
    name = "k34_kernel"
    NS = 6; N1 = 32; N2 = 22; N = N1 + N2
    USTG = NS*SLOT
    LCNT = USTG + 64*208
    load_ptr(A, 30, 'wsp'); load_ptr(A, 34, 'bsp'); load_ptr(A, 36, 'out'); load_ptr(A, 38, 'dbg')
    tile_map(A)
    hd_start(A)
    st = Stamps(A, 2); st()
    E1 = E2(A, "K34a", 6, N1, 4096, 2, 3)
    def wait_zflags(tag, va, vd):
        srd(A, 12, 32, SZ_FZ, WS_FZ)
        A(f"v_lshlrev_b32 v{va}, 4, v0\ns_add_u32 s45, s98, 1\ns_mov_b32 s47, 0")
        A.label(f"K34_zp{tag}")
        A(f"buffer_load_dwordx4 v[{vd}:{vd+3}], v{va}, s[12:15], 0 offen sc1\ns_waitcnt vmcnt(0)")
        A(f"v_xor_b32 v{vd}, s45, v{vd}\nv_xor_b32 v{vd+1}, s99, v{vd+1}\nv_xor_b32 v{vd+2}, s45, v{vd+2}\nv_xor_b32 v{vd+3}, s99, v{vd+3}")
        A(f"v_or3_b32 v{vd}, v{vd}, v{vd+1}, v{vd+2}\nv_or_b32 v{vd}, v{vd}, v{vd+3}\nv_cmp_ne_u32 vcc, 0, v{vd}\ns_add_u32 s47, s47, 1\ns_nop 3")
        A(f"s_cbranch_vccz K34_zok{tag}\ns_sleep {O.sleep}\ns_cmp_lt_u32 s47, 0x10000\ns_cbranch_scc1 K34_zp{tag}")
        A.label(f"K34_zok{tag}")
    A("s_waitcnt lgkmcnt(0)")
    A("s_cmp_lt_u32 s16, 4\ns_cbranch_scc1 K34_comp")
    srd(A, 4, 30, 2048*2048*2); srd(A, 8, 32, SZ_Z2P, WS_Z2P)
    A(f"s_mul_i32 s17, s40, {64*4096}\ns_mul_i32 s18, s41, {32*6*2048}")
    E1.loader_setup()
    A("v_lshrrev_b32 v7, 3, v0\nv_and_b32 v4, 7, v0\nv_xor_b32 v4, v4, v7\nv_mul_u32_u24 v7, 2816, v7\nv_lshl_add_u32 v4, v4, 4, v7")
    A("v_lshrrev_b32 v7, 3, v0\nv_and_b32 v5, 7, v0\nv_xor_b32 v5, v5, v7\nv_mul_u32_u24 v7, 384, v7\nv_lshl_add_u32 v10, v5, 4, v7")
    for i in range(NS - 1):
        A(f"s_add_u32 m0, s27, {i*SLOT}\ns_add_u32 s20, s23, {i*128}\ns_add_u32 s25, s23, {i*128 + 8*4096 - 1024}")
        A("buffer_load_dwordx4 v2, s[4:7], s20 offen lds\nbuffer_load_dwordx4 v2, s[4:7], s25 offen offset:1024 lds")
    A("s_cmp_lg_u32 s16, 4\ns_cbranch_scc1 K34_lf")
    srd(A, 12, 32, SZ_FZ, WS_FZ)
    A("s_lshl_b32 s46, s41, 7\nv_and_b32 v14, 15, v0\nv_lshlrev_b32 v14, 3, v14\nv_add_u32 v14, s46, v14\ns_add_u32 s45, s98, 1\ns_mov_b32 s47, 0")
    A.label("K34_zpL")
    A("buffer_load_dwordx2 v[16:17], v14, s[12:15], 0 offen sc1\ns_waitcnt vmcnt(0)")
    A("v_xor_b32 v16, s45, v16\nv_xor_b32 v17, s99, v17\nv_or_b32 v16, v16, v17\nv_cmp_ne_u32 vcc, 0, v16\ns_add_u32 s47, s47, 1\ns_nop 3")
    A(f"s_cbranch_vccz K34_lf\ns_sleep {O.sleep2}\ns_cmp_lt_u32 s47, 0x10000\ns_cbranch_scc1 K34_zpL")
    A.label("K34_lf")
    A("s_barrier")
    for i in range(NS - 1):
        A(f"s_add_u32 m0, s26, {i*SLOT}\ns_add_u32 s20, s24, {i*6*2048}")
        for q in range(3): A(f"buffer_load_dwordx4 v3, s[8:11], s20 offen offset:{q*1024}{O.xl} lds")
    A(f"s_add_u32 s23, s23, {(NS-1)*128}\ns_add_u32 s24, s24, {(NS-1)*6*2048}\ns_mov_b32 s22, {(NS-1)*SLOT}")
    A(f"s_waitcnt vmcnt({(NS - 2)*3})\ns_barrier")
    E1.issue()
    for i in range(NS - 2):
        rem = (NS - 2 - (i + 1))*3 + (i + 1)*5
        A(f"s_waitcnt vmcnt({rem})\ns_barrier")
        E1.issue()
    A(f"s_mov_b32 s14, {NS - 2}")
    A.label("K34_lloop")
    A(f"s_waitcnt vmcnt({(NS-2)*5})\ns_barrier")
    E1.issue()
    A(f"s_add_u32 s14, s14, 1\ns_cmp_lt_u32 s14, {N1 - NS}\ns_cbranch_scc1 K34_lloop")
    srd(A, 4, 32, SZ_AU, WS_AU); srd(A, 8, 32, SZ_WP, WS_WP); srd(A, 12, 32, SZ_FL, WS_FL)
    A(f"s_mul_i32 s17, s40, {64*2816}\ns_mul_i32 s20, s21, {16*2816}\ns_add_u32 s23, s17, s20")
    A(f"s_mul_i32 s18, s41, {22*5*2048}\ns_mul_i32 s20, s21, 3072\ns_add_u32 s24, s18, s20")
    A(f"s_mul_i32 s20, s21, 3\ns_cmp_ge_u32 s20, 9\ns_cselect_b32 s28, {KILL}, 0\ns_cmp_ge_u32 s20, 8\ns_cselect_b32 s29, {KILL}, 0")
    A("s_lshl_b32 s44, s40, 7\nv_and_b32 v8, 7, v0\nv_lshlrev_b32 v8, 3, v8\nv_add_u32 v8, s44, v8\ns_add_u32 s53, s98, 1")
    srd(A, 48, 32, SZ_U, WS_U)
    A(f"s_mul_i32 s52, s40, {4*24576}\ns_mul_i32 s20, s21, {16*384}\ns_add_u32 s52, s52, s20")
    issued = [('S', s) for s in range(N1 - NS + 2 - 1, N1) for _ in range(5)]
    def issueP(s):
        sl = s % NS; s2_ = s - N1
        fl = " sc1" if (s2_ >= 10 and O.usc1) else ""
        A(f"s_add_u32 m0, s27, {sl*SLOT}")
        if s2_ < 10:
            A(f"s_add_u32 s20, s23, {s2_*128}\ns_add_u32 s25, s23, {s2_*128 + 8*2816 - 1024}")
            A(f"buffer_load_dwordx4 v4, s[4:7], s20 offen{O.xl} lds")
            A(f"buffer_load_dwordx4 v4, s[4:7], s25 offen offset:1024{O.xl} lds")
        else:
            a_, b_ = divmod(s2_ - 10, 3)
            A(f"s_add_u32 s20, s52, {a_*24576 + b_*128}\ns_add_u32 s25, s52, {a_*24576 + b_*128 + 8*384 - 1024}")
            A(f"buffer_load_dwordx4 v10, s[48:51], s20 offen{fl} lds")
            A(f"buffer_load_dwordx4 v10, s[48:51], s25 offen offset:1024{fl} lds")
        issued.extend([('P', s)]*2)
    def issueT(s):
        sl = s % NS; s2_ = s - N1
        A(f"s_add_u32 m0, s26, {sl*SLOT}")
        A(f"s_add_u32 s20, s24, {s2_*10240}\ns_add_u32 s25, s20, s28\ns_add_u32 s45, s20, s29")
        A(f"buffer_load_dwordx4 v3, s[8:11], s20 offen{O.xl} lds")
        A(f"buffer_load_dwordx4 v3, s[8:11], s25 offen offset:1024{O.xl} lds")
        A(f"buffer_load_dwordx4 v3, s[8:11], s45 offen offset:2048{O.xl} lds")
        issued.extend([('T', s)]*3)
    def wait_for(needs):
        last = -1
        for idx, tg in enumerate(issued):
            if tg in needs: last = idx
        if last < 0: return
        A(f"s_waitcnt vmcnt({min(len(issued) - 1 - last, 63)})")
    FIRSTU = N1 + 10
    POLL_I = O.poll_i
    deferred = []
    gate_open = False
    for i in range(N1 - NS, N):
        nxt = i + 1
        if nxt < N:
            wait_for([('S', nxt), ('P', nxt), ('T', nxt)])
        A("s_barrier")
        if i == POLL_I + 1:
            wait_for([('X', 0)])
            A("v_xor_b32 v12, s53, v12\nv_xor_b32 v13, s99, v13\nv_or_b32 v12, v12, v13\nv_cmp_ne_u32 vcc, 0, v12\ns_nop 4")
            A("s_cbranch_vccz K34_ready")
            A("s_mov_b32 s47, 0")
            A.label("K34_poll")
            A(f"s_sleep {O.sleep}")
            A("buffer_load_dwordx2 v[12:13], v8, s[12:15], 0 offen sc1")
            A("s_waitcnt vmcnt(0)")
            A("v_xor_b32 v12, s53, v12\nv_xor_b32 v13, s99, v13\nv_or_b32 v12, v12, v13\nv_cmp_ne_u32 vcc, 0, v12")
            A("s_add_u32 s47, s47, 1\ns_nop 3")
            A("s_cbranch_vccz K34_ready")
            A("s_cmp_lt_u32 s47, 0x40000\ns_cbranch_scc1 K34_poll")
            A.label("K34_ready")
            gate_open = True
            for s in deferred: issueP(s)
            deferred = []
        s = i + NS
        if s < N:
            issueT(s)
            if s >= FIRSTU and not gate_open: deferred.append(s)
            else: issueP(s)
        if i == POLL_I:
            A("buffer_load_dwordx2 v[12:13], v8, s[12:15], 0 offen sc1")
            issued.append(('X', 0))
    assert not deferred
    A("s_branch K34_end")
    A.label("K34_comp")
    A("s_and_b32 s46, s16, 1\ns_lshl_b32 s46, s46, 5\ns_lshr_b32 s47, s16, 1\ns_mul_i32 s47, s47, 3")
    PF = 116
    C1R = 212
    C1R = 140
    C1R = 188
    BB = 132
    A("s_and_b32 s46, s16, 1\ns_lshl_b32 s46, s46, 5\ns_lshr_b32 s47, s16, 1\ns_mul_i32 s47, s47, 3")
    COA = 88
    A(f"s_mov_b32 s53, {USTG}")
    A(f"v_mov_b32 v138, {LCNT}\nv_mov_b32 v139, 0\nds_write_b32 v138, v139")
    E1.compute_setup(46, 47)
    E2b = E2(A, "K34b", 5, N2, 2816, 1, 5)
    E2b.F = [140, 188]; E2b.ACC = 236; E2b.vend = 256
    st()
    LA = [128, 129, 130]; GA = [131, 138, 139]
    def late_flag_setup():
        srd(A, 12, 32, SZ_FZ, WS_FZ); srd(A, 4, 32, SZ_FQ, WS_FQ)
        A("v_lshlrev_b32 v112, 4, v0")
        A("s_lshr_b32 s48, s40, 1\ns_lshl_b32 s48, s48, 6\nv_and_b32 v113, 7, v0\nv_lshlrev_b32 v113, 3, v113\nv_add_u32 v113, s48, v113")
    def late_flag_issue():
        A("buffer_load_dwordx4 v[116:119], v112, s[12:15], 0 offen sc1")
        A("buffer_load_dwordx2 v[120:121], v113, s[4:7], 0 offen sc1")
    def late_flag_check():
        A("s_add_u32 s45, s98, 1\ns_mov_b32 s49, 0")
        A.label("K34_lc")
        A("s_waitcnt vmcnt(0)")
        A("v_xor_b32 v116, s45, v116\nv_xor_b32 v117, s99, v117\nv_xor_b32 v118, s45, v118\nv_xor_b32 v119, s99, v119\nv_xor_b32 v120, s45, v120\nv_xor_b32 v121, s99, v121")
        A("v_or3_b32 v116, v116, v117, v118\nv_or3_b32 v116, v116, v119, v120\nv_or_b32 v116, v116, v121\nv_cmp_ne_u32 vcc, 0, v116\ns_add_u32 s49, s49, 1\ns_nop 3")
        A("s_cbranch_vccz K34_lcok\ns_cmp_ge_u32 s49, 0x10000\ns_cbranch_scc1 K34_lcok")
        A("buffer_load_dwordx4 v[116:119], v112, s[12:15], 0 offen sc1\nbuffer_load_dwordx2 v[120:121], v113, s[4:7], 0 offen sc1\ns_branch K34_lc")
        A.label("K34_lcok")
    def late_loads():
        srd(A, 4, 32, SZ_Z1, WS_Z1); srd(A, 8, 32, SZ_G, WS_G); srd(A, 12, 34, 2048*2)
        A("s_lshl_b32 s43, s40, 6\ns_add_u32 s43, s43, s46")
        A("v_and_b32 v112, 15, v0\nv_add_u32 v112, s43, v112\nv_lshrrev_b32 v113, 4, v0")
        A("s_lshr_b32 s48, s43, 5\ns_mul_i32 s48, s48, 48\ns_mul_i32 s49, s41, 6\ns_add_u32 s48, s48, s49\ns_add_u32 s48, s48, s47\ns_lshl_b32 s48, s48, 10")
        A("v_lshlrev_b32 v114, 4, v0")
        for t in range(3): A(f"buffer_load_dwordx4 v[{PF+4*t}:{PF+4*t+3}], v114, s[4:7], s48 offen offset:{t*1024} sc1")
        A("v_lshlrev_b32 v115, 2, v112")
        A(f"buffer_load_dword v{PF+12}, v115, s[8:11], 0 offen sc1\nbuffer_load_dword v{PF+13}, v115, s[8:11], 0 offen offset:64 sc1")
        A("v_lshlrev_b32 v115, 1, v112")
        A(f"buffer_load_ushort v{PF+14}, v115, s[12:15], 0 offen\nbuffer_load_ushort v{PF+15}, v115, s[12:15], 0 offen offset:32")
        A("s_lshl_b32 s50, s40, 6\ns_lshl_b32 s51, s16, 4\ns_add_u32 s50, s50, s51\nv_and_b32 v137, 15, v0\nv_add_u32 v137, s50, v137\nv_lshlrev_b32 v138, 2, v137")
        A("buffer_load_dword v136, v138, s[8:11], 0 offen sc1")
    def late_pre():
        A("s_waitcnt vmcnt(0)")
        for m in range(2):
            A(f"v_lshlrev_b32 v{BB+2*m}, 16, v{PF+14+m}\nv_mov_b32 v{BB+2*m+1}, v{BB+2*m}\nv_sub_f32 v{PF+12+m}, 1.0, v{PF+12+m}")
        for m in range(2):
            for t in range(3):
                c = C1R + 4*(3*m + t)
                for q in range(2):
                    z = PF + 4*t + 2*m + q
                    A(f"v_lshlrev_b32 v{c+2*q}, 16, v{z}\nv_and_b32 v{c+2*q+1}, 0xffff0000, v{z}")
        for m in range(2):
            for t in range(3):
                c = C1R + 4*(3*m + t)
                for r in range(4): A(f"v_mul_f32 v{c+r}, v{c+r}, v{PF+12+m}")
        A("s_mul_i32 s20, s16, 192\nv_add_u32 v112, s20, v0")
        for q in range(3):
            A(f"v_add_u32 v115, {64*q}, v112\nv_mul_u32_u24 v114, 5462, v115\nv_lshrrev_b32 v114, 16, v114")
            A(f"v_mul_u32_u24 v{LA[q]}, 12, v114\nv_sub_u32 v115, v115, v{LA[q]}\nv_lshlrev_b32 v115, 4, v115")
            A(f"v_mul_u32_u24 v{LA[q]}, 208, v114\nv_add3_u32 v{LA[q]}, v{LA[q]}, v115, s53\nv_mul_u32_u24 v{GA[q]}, 384, v114\nv_add_u32 v{GA[q]}, v{GA[q]}, v115")
        A("v_and_b32 v114, 15, v0\nv_add_u32 v114, s46, v114\nv_mul_u32_u24 v114, 208, v114\nv_lshl_add_u32 v114, v113, 3, v114")
        A(f"s_lshl_b32 s48, s47, 5\ns_add_u32 s48, s48, {USTG}\nv_add_u32 v114, s48, v114")
        A("v_and_b32 v115, 15, v0\nv_add_u32 v115, s46, v115\nv_and_b32 v112, 1, v113\nv_lshl_add_u32 v115, v112, 4, v115\nv_mul_u32_u24 v115, 208, v115\nv_lshrrev_b32 v112, 1, v113\nv_lshl_add_u32 v115, v112, 4, v115\nv_add_u32 v115, s48, v115")
    A("s_barrier")
    GS(A, 5)
    A("s_barrier")
    GS(A, 6)
    for x in E1.reads(0): A(x)
    A("s_waitcnt lgkmcnt(0)")
    st()
    A("s_mov_b32 s19, 0")
    A.label("K34_cloop")
    for i in range(NS): E1.step(i)
    A(f"s_add_u32 s19, s19, 1\ns_cmp_lt_u32 s19, {O.lf0//6}\ns_cbranch_scc1 K34_cloop")
    late_flag_setup()
    A("s_cmp_lg_u32 s16, 0\ns_cbranch_scc1 K34_nf1")
    late_flag_issue()
    A.label("K34_nf1")
    for i in range(O.lf0, O.lf0 + 2): E1.step(i)
    A("s_cmp_lg_u32 s16, 0\ns_cbranch_scc1 K34_nf2")
    late_flag_check()
    A.label("K34_nf2")
    E1.step(O.lf0 + 2)
    late_loads()
    for i in range(O.lf0 + 3, 30): E1.step(i)
    late_pre()
    E1.step(30)
    A("v_and_b32 v4, 15, v0\nv_lshrrev_b32 v5, 4, v0\nv_and_b32 v6, 7, v4\nv_xor_b32 v5, v5, v6\nv_lshlrev_b32 v4, 7, v4\nv_lshl_add_u32 v4, v5, 4, v4")
    A("s_lshl_b32 s20, s16, 11\nv_add_u32 v2, s20, v4\nv_xor_b32 v3, 64, v2")
    A("v_and_b32 v6, 15, v0\nv_lshlrev_b32 v6, 3, v6\nv_and_b32 v7, 16, v0\nv_lshl_add_u32 v6, v7, 3, v6\nv_and_b32 v7, 32, v0\nv_lshl_add_u32 v6, v7, 4, v6")
    A("v_add_u32 v4, 8192, v6")
    A(f"v_add_u32 v5, {3*SLOT}, v2\nv_add_u32 v6, {3*SLOT}, v3\nv_add_u32 v7, {3*SLOT}, v4")
    for i in range(236, 256): A(f"v_mov_b32 v{i}, 0")
    def mixed_step(Ecur, icur, Enext, inext, after_barrier=None):
        s = icur & 1
        rd = Enext.reads(inext) if Enext else []
        mf = [f"v_mfma_f32_16x16x32_bf16 v[{Ecur.acc(m,t)}:{Ecur.acc(m,t)+3}], v[{Ecur.fT(s,kk,t)}:{Ecur.fT(s,kk,t)+3}], v[{Ecur.fP(s,kk,m)}:{Ecur.fP(s,kk,m)+3}], v[{Ecur.acc(m,t)}:{Ecur.acc(m,t)+3}]"
              for kk in range(2) for m in range(Ecur.mP) for t in range(Ecur.nT)]
        A("s_barrier")
        if after_barrier: after_barrier()
        per = (len(rd) + len(mf) - 1)//len(mf) if rd else 0
        for x in mf:
            for _ in range(per):
                if rd: A(rd.pop(0))
            A(x)
        A("s_waitcnt lgkmcnt(0)")
    mixed_step(E1, 31, E2b, 32)
    st(); GS(A, 7)
    for m in range(2):
        for t in range(3):
            ac = E1.acc(m, t); c = C1R + 4*(3*m + t)
            for q in range(2):
                A(f"v_pk_add_f32 v[{ac+2*q}:{ac+2*q+1}], v[{ac+2*q}:{ac+2*q+1}], v[{PF+14+m-(PF+14+m)%2 if False else BB+2*m}:{BB+2*m+1}]")
    for m in range(2):
        for t in range(3):
            ac = E1.acc(m, t); c = C1R + 4*(3*m + t)
            for q in range(2):
                A(f"v_pk_mul_f32 v[{ac+2*q}:{ac+2*q+1}], v[{ac+2*q}:{ac+2*q+1}], v[{c+2*q}:{c+2*q+1}]")
    if O.fine2: st()
    for m in range(2):
        for t in range(3):
            ac = E1.acc(m, t); z = PF + 4*t + 2*m
            A(f"v_cvt_pk_bf16_f32 v{z}, v{ac}, v{ac+1}\nv_cvt_pk_bf16_f32 v{z+1}, v{ac+2}, v{ac+3}")
    if O.fine2: st()
    if O.stg128:
        for t in range(3):
            d = PF + 4*t
            A(f"v_permlane16_swap_b32 v{d}, v{d+2}\nv_permlane16_swap_b32 v{d+1}, v{d+3}")
        for t in range(3):
            A(f"ds_write_b128 v115, v[{PF+4*t}:{PF+4*t+3}] offset:{t*32}")
    else:
        for m in range(2):
            for t in range(3):
                z = PF + 4*t + 2*m
                A(f"ds_write_b64 v114, v[{z}:{z+1}] offset:{m*16*208 + t*32}")
    A("s_waitcnt lgkmcnt(0)")
    st()
    def signal():
        A("s_waitcnt vmcnt(0)")
        A(f"v_mov_b32 v138, {LCNT}\nv_mov_b32 v139, 1")
        A("s_mov_b64 exec, 1")
        A("ds_add_rtn_u32 v139, v138, v139")
        A("s_waitcnt lgkmcnt(0)")
        A("v_readfirstlane_b32 s20, v139")
        A("s_cmp_lg_u32 s20, 3\ns_cbranch_scc1 K34_nosig")
        srd(A, 12, 32, SZ_FL, WS_FL)
        A("s_lshl_b32 s20, s40, 7\ns_lshl_b32 s21, s41, 3\ns_add_u32 s20, s20, s21\nv_mov_b32 v112, s20\ns_add_u32 s21, s98, 1\nv_mov_b32 v138, s21\nv_mov_b32 v139, s99")
        A("buffer_store_dwordx2 v[138:139], v112, s[12:15], 0 offen sc1")
        A.label("K34_nosig")
        A("s_mov_b64 exec, -1")
    def copy_out():
        srd(A, 12, 32, SZ_U, WS_U)
        for q in range(3): A(f"ds_read_b128 v[{PF+4*q}:{PF+4*q+3}], v{LA[q]}")
        A("s_lshl_b32 s48, s40, 2\ns_lshr_b32 s49, s41, 1\ns_add_u32 s48, s48, s49\ns_mul_i32 s48, s48, 24576\ns_and_b32 s49, s41, 1\ns_mul_i32 s49, s49, 192\ns_add_u32 s48, s48, s49")
        A("s_waitcnt lgkmcnt(0)")
        for q in range(3): A(f"buffer_store_dwordx4 v[{PF+4*q}:{PF+4*q+3}], v{GA[q]}, s[12:15], s48 offen{O.ustore}")
    for i in range(N1, N):
        last = (i == N - 1)
        mixed_step(E2b, i, None if last else E2b, i + 1, after_barrier=(copy_out if i == N1 else None))
        if i in ((32, 33, 36, 40, 41) if O.fine2 else (32, 33, 34, 36, 38, 40, 41, 42, 45)): st()
        if i in (36, 40, 41, 45): GS(A, 8 + (36, 40, 41, 45).index(i))
        if i == O.sig_i: signal()
        if i == N1 + 9:
            for t in range(5):
                for r in range(4): A(f"v_mul_f32 v{E2b.acc(0,t)+r}, v{E2b.acc(0,t)+r}, v136")
    st()
    srd(A, 12, 36, 2048*640*2)
    PK = 8
    for t in range(5):
        ac = E2b.acc(0, t)
        A(f"v_cvt_pk_bf16_f32 v{PK+2*t}, v{ac}, v{ac+1}\nv_cvt_pk_bf16_f32 v{PK+2*t+1}, v{ac+2}, v{ac+3}")
    A("v_lshrrev_b32 v3, 4, v0\ns_mov_b32 s45, 1280\nv_mul_lo_u32 v4, v137, s45\nv_lshl_add_u32 v4, v3, 3, v4\ns_mul_i32 s46, s41, 160\nv_add_u32 v4, s46, v4")
    for t in range(5): A(f"buffer_store_dwordx2 v[{PK+2*t}:{PK+2*t+1}], v4, s[12:15], 0 offen offset:{t*32}{O.outst}")
    st(); st.flush(16, 32, 20)
    GS(A, 12); GS_flush(A, 13, 20)
    hd_end(A, 32, 2, 0, 60)
    if O.hdiag2:
        A("s_cmp_lg_u32 s2, 0\ns_cbranch_scc1 K34_end\ns_cmp_lg_u32 s16, 0\ns_cbranch_scc1 K34_end")
        A("s_waitcnt vmcnt(0)")
        srd(A, 84, 32, 0x100000, WS_TS); srd(A, 88, 38, 256)
        sel = [(0, 0, i) for i in (2, 3, 5, 7, 8, 9, 10)] + [(0, 128, i) for i in (2, 3, 4, 6)] + [(2, 0, i) for i in (2, 3, 11, 12, 15)]
        A("v_mov_b32 v60, 0\nv_mov_b32 v61, 0")
        for ln, (k, wg, i) in enumerate(sel):
            base = k*0x40000 + wg*4*128
            A(f"v_cmp_eq_u32 vcc, {ln}, v0\nv_mov_b32 v62, {base + 4*i}\nv_cndmask_b32 v60, v60, v62, vcc\nv_mov_b32 v62, {base}\nv_cndmask_b32 v61, v61, v62, vcc")
        A("v_cmp_gt_u32 vcc, 16, v0\ns_and_saveexec_b64 s[20:21], vcc")
        A("buffer_load_dword v63, v60, s[84:87], 0 offen sc1\nbuffer_load_dword v64, v61, s[84:87], 0 offen sc1\ns_waitcnt vmcnt(0)")
        A("v_sub_u32 v63, v63, v64\nv_lshlrev_b32 v60, 2, v0\nbuffer_store_dword v63, v60, s[88:91], 0 offen")
    if O.hdiag:
        A("s_cmp_lg_u32 s2, 0\ns_cbranch_scc1 K34_end\ns_cmp_lg_u32 s16, 0\ns_cbranch_scc1 K34_end")
        A("s_waitcnt vmcnt(0)")
        srd(A, 84, 32, 4096, WS_TS); srd(A, 88, 38, 256)
        A("v_lshlrev_b32 v60, 2, v0\nv_cmp_gt_u32 vcc, 12, v0\ns_and_saveexec_b64 s[20:21], vcc")
        A("buffer_load_dword v61, v60, s[84:87], 0 offen sc1\ns_waitcnt vmcnt(0)\nbuffer_store_dword v61, v60, s[88:91], 0 offen")
    A("s_or_b32 s20, s2, s16\ns_cmp_lg_u32 s20, 0\ns_cbranch_scc1 K34_end")
    srd(A, 12, 32, SZ_FQ, WS_FQ)
    A("v_lshlrev_b32 v14, 4, v0\ns_add_u32 s45, s98, 1\ns_mov_b32 s47, 0")
    A.label("K34_ep")
    A("buffer_load_dwordx4 v[16:19], v14, s[12:15], 0 offen sc1\ns_waitcnt vmcnt(0)")
    A("v_xor_b32 v16, s45, v16\nv_xor_b32 v17, s99, v17\nv_xor_b32 v18, s45, v18\nv_xor_b32 v19, s99, v19\nv_or3_b32 v16, v16, v17, v18\nv_or_b32 v16, v16, v19\nv_cmp_ne_u32 vcc, 0, v16\ns_add_u32 s47, s47, 1\ns_nop 3")
    A("s_cbranch_vccz K34_epok\ns_cmp_lt_u32 s47, 0x10000\ns_cbranch_scc1 K34_ep")
    A.label("K34_epok")
    srd(A, 12, 32, SZ_EP, WS_EP)
    A("v_mov_b32 v16, s45\nv_mov_b32 v17, s99\nv_mov_b32 v14, 0\ns_mov_b64 exec, 1")
    A("buffer_store_dwordx2 v[16:17], v14, s[12:15], 0 offen sc1")
    A.label("K34_end")
    A("s_endpgm")
    return name, 256, 512, NS*SLOT + 64*208 + 64, 256

def main(out):
    body = Asm()
    n, g, b, lds, vg = k1(body)
    k34(body)
    hdr = [f"; @launch grid=({g},1,1) block=({b},1,1) lds={lds}"]
    hdr.append('.amdgcn_target "amdgcn-amd-amdhsa--gfx950"'); hdr.append(".text")
    lines = hazard.fix(body.lines, verbose=True)
    txt = "\n".join(hdr) + "\n" + "\n".join(lines) + "\n" + '.section .rodata,"a"\n' + kernel_desc(n, 256, 102)
    open(out, "w").write(txt)
if __name__ == "__main__":
    if '--stamp' in sys.argv: O.stamp = True
    if '--norot' in sys.argv: O.rot = False
    if '--pfg' in sys.argv: O.pfg = True
    if '--nofull' in sys.argv: O.fullring = False
    for a_ in sys.argv:
        if a_.startswith('--tla='): O.tla = int(a_[6:])
    for a_ in sys.argv:
        if a_.startswith('--pfg2='): O.pfg2 = int(a_[7:])
    if '--itstamp' in sys.argv: O.itstamp = True
    if '--nowsp' in sys.argv: O.wsp_pf = False
    for a_ in sys.argv:
        if a_.startswith('--poll='): O.poll_i = int(a_[7:])
        if a_.startswith('--sig='): O.sig_i = int(a_[6:])
    if '--full' in sys.argv: O.fullring = True; O.tla = 6
    if '--nofuse' in sys.argv: O.fuse = False
    if '--nosc1' in sys.argv: O.usc1 = False
    if '--hdiag' in sys.argv: O.hdiag = True
    if '--fine2' in sys.argv: O.fine2 = True
    if '--gs' in sys.argv: O.gs = True
    if '--nodefer' in sys.argv: O.defer = False
    for a_ in sys.argv:
        if a_.startswith('--hb='): O.hb = int(a_[5:])
    if '--xlplain' in sys.argv: O.xl = ''
    if '--k1sc1' in sys.argv: O.k1st = ' sc1'
    if '--k1nt' in sys.argv: O.k1st = ' nt'
    if '--outsc1' in sys.argv: O.outst = ' sc1'
    if '--outnt' in sys.argv: O.outst = ' nt'
    if '--hdiag2' in sys.argv: O.hdiag2 = True; O.stamp = True
    if '--stg64' in sys.argv: O.stg128 = False
    if '--uplain' in sys.argv: O.ustore = ''
    if '--unt' in sys.argv: O.ustore = ' sc1 nt'
    if '--usc01' in sys.argv: O.ustore = ' sc0 sc1'
    for a_ in sys.argv:
        if a_.startswith('--rottab='): O.rottab = int(a_[9:], 16)
    for a_ in sys.argv:
        if a_.startswith('--sleep='): O.sleep = int(a_[8:])
    main(sys.argv[1])
```

```python
import sys, struct
from asmlib import *
import hazard
NAME = "gated_mix__sliding_local_dilated__mixer_gmlp__prompt"
KA = dict(x=0, wqkv=8, wo=16, bx=24, win=32, wsp=40, bsp=48, wout=56, gw=64, out=72, dbg=80, ws=88)
QP = 504
HGS = 2048*QP
WS_QKVG = 0;          SZ_QKVG = 8*HGS
WS_Z1  = 0x900000;    SZ_Z1 = 2048*768*2
WS_Z2P = 0xC00000;    SZ_Z2P = 2048*768*2
WS_AU  = 0xF00000;    SZ_AU = 2048*1408*2
WS_WP  = 0x1500000;   SZ_WP = 1408*640*2
WS_ST  = 0x1700000;   SZ_ST = 8*2048*16
WS_G   = 0x1740000;   SZ_G = 2048*4
WS_EP  = 0x1760000;   SZ_EP = 128
WS_FZ  = 0x1770000;   SZ_FZ = 8*128
WS_FZ2 = 0x1790000;   SZ_FZ2 = 8*256
WS_FQ  = 0x1780000;   SZ_FQ = 16*64
WS_FL  = 0x1750000;   SZ_FL = 32*128
WS_U   = 0x1800000;   SZ_U = 2048*768*2
WS_TS  = 0x2000000
KILL = 0x40000000
C0 = -2.0*0.7978845608028654*1.4426950408889634
C1 = C0*0.044715
def f2u(f): return struct.unpack('<I', struct.pack('<f', f))[0]
class Opt:
    stamp = False; rot = True; wsp_pf = True; la = 5; itstamp = False; pfg = False; pfg2 = 2; fullring = False; tla = 4; poll_i = 38; sig_i = 36; fuse = True; hdiag2 = False; k1st = ' sc1'; outst = ''; xl = ' sc1'; sleep2 = 8; lt = False; gs2 = False; zp = 2; zn = 16; zs = 19; zmid = 1; gs3 = False; lf0 = 18; hb = 16; defer = True; gs = False; fine2 = False; stg128 = True; usc1 = True; ustore = ' sc1'; hdiag = False; sleep = 4; rottab = 0x8530
O = Opt()

def load_ptr(A, sd, key): A(f"s_load_dwordx2 s[{sd}:{sd+1}], s[0:1], {KA[key]}")
def wave_lane(A, s_w):
    A("v_lshrrev_b32 v1, 6, v0")
    A(f"v_readfirstlane_b32 s{s_w}, v1")
    A("v_and_b32 v0, 63, v0")

class Stamps:
    def __init__(self, A, kidx, n0=0): self.A = A; self.n = n0; self.k = kidx
    def __call__(self):
        if not O.stamp: return
        assert self.n < 16
        self.A(f"s_memtime s[{60+2*self.n}:{61+2*self.n}]"); self.n += 1
    def flush(self, s_w, s_ws, vt=250):
        if not O.stamp: return
        A = self.A
        A("s_waitcnt vmcnt(0)")
        A("s_memrealtime s[92:93]")
        A("s_waitcnt lgkmcnt(0)")
        srd(A, 56, s_ws, 0x100000, WS_TS + self.k*0x40000)
        A(f"s_lshl_b32 s54, s2, 2\ns_add_u32 s54, s54, s{s_w}\ns_lshl_b32 s54, s54, 7")
        A("s_mov_b64 exec, 1")
        for i in range(self.n):
            A(f"v_mov_b32 v{vt}, s{60+2*i}\nv_mov_b32 v{vt+1}, {4*i}")
            A(f"buffer_store_dword v{vt}, v{vt+1}, s[56:59], s54 offen")
        A(f"v_mov_b32 v{vt}, s92\nv_mov_b32 v{vt+1}, 124")
        A(f"buffer_store_dword v{vt}, v{vt+1}, s[56:59], s54 offen")
        A("s_mov_b64 exec, -1")


def it_top(A):
    if not O.itstamp: return
    A("s_memtime s[76:77]\ns_waitcnt lgkmcnt(0)")
    for k in range(3): A(f"s_cmp_eq_u32 s26, {k}\ns_cselect_b32 s{80+k}, s76, s{80+k}")
def it_mid(A):
    if O.itstamp: A("s_memtime s[76:77]\ns_waitcnt lgkmcnt(0)\ns_mov_b32 s83, s76")
def it_end(A, va, vb):
    if not O.itstamp: return
    A("s_memtime s[76:77]\ns_waitcnt lgkmcnt(0)\ns_mov_b32 s84, s76")
    srd(A, 56, 32, 0x200000, WS_TS + 7*0x40000)
    A("s_lshl_b32 s54, s2, 2\ns_add_u32 s54, s54, s16\ns_lshl_b32 s54, s54, 7")
    A("s_mov_b64 exec, 1")
    for i in range(11):
        A(f"v_mov_b32 v{va}, s{80+i}\nv_mov_b32 v{vb}, {4*i}")
        A(f"buffer_store_dword v{va}, v{vb}, s[56:59], s54 offen")
    A("s_mov_b64 exec, -1")


def hd_start(A):
    if O.hdiag: A("s_memtime s[94:95]\ns_memrealtime s[92:93]\ns_waitcnt lgkmcnt(0)\ns_mov_b32 s90, s94\ns_mov_b32 s91, s92")
def hd_end(A, s_ws, slot_sreg_expr, cond_wg, vt):
    if not O.hdiag: return
    L = A.newlabel("hd")
    A(f"s_cmp_lg_u32 s2, {cond_wg}\ns_cbranch_scc1 {L}\ns_cmp_lg_u32 s16, 0\ns_cbranch_scc1 {L}")
    A("s_waitcnt vmcnt(0)\ns_memtime s[94:95]\ns_memrealtime s[92:93]\ns_waitcnt lgkmcnt(0)")
    A("s_sub_u32 s94, s94, s90\ns_sub_u32 s95, s92, s91")
    srd(A, 84, s_ws, 4096, WS_TS)
    A(f"v_mov_b32 v{vt}, s94\nv_mov_b32 v{vt+1}, s95\nv_mov_b32 v{vt+2}, s91\nv_mov_b32 v{vt+3}, s92\nv_mov_b32 v{vt+4}, {slot_sreg_expr*16}")
    A("s_mov_b64 exec, 1")
    A(f"buffer_store_dwordx4 v[{vt}:{vt+3}], v{vt+4}, s[84:87], 0 offen")
    A("s_mov_b64 exec, -1")
    A.label(L)


def GS(A, i):
    if O.gs: A(f"s_memtime s[{64+2*i}:{65+2*i}]")
def G2(A, i):
    if O.gs2: A(f"s_memtime s[{64+2*i}:{65+2*i}]")
def GS_flush(A, n, vt, force=False):
    if not (O.gs or O.gs2 or force): return
    A("s_waitcnt vmcnt(0) lgkmcnt(0)")
    srd(A, 56, 32, 0x100000, WS_TS)
    A("s_lshl_b32 s54, s2, 2\ns_add_u32 s54, s54, s16\ns_lshl_b32 s54, s54, 7")
    A("s_mov_b64 exec, 1")
    for i in range(n):
        A(f"v_mov_b32 v{vt}, s{64+2*i}\nv_mov_b32 v{vt+1}, {4*i}")
        A(f"buffer_store_dword v{vt}, v{vt+1}, s[56:59], s54 offen")
    A("s_mov_b64 exec, -1")

def gelu_pk(A, regs, tmp, sC, vC=6):
    n = len(regs)
    for i, r in enumerate(regs): A(f"v_pk_mul_f32 v[{tmp+2*i}:{tmp+2*i+1}], v[{r}:{r+1}], v[{r}:{r+1}]")
    for i, r in enumerate(regs): A(f"v_pk_fma_f32 v[{tmp+2*i}:{tmp+2*i+1}], v[{tmp+2*i}:{tmp+2*i+1}], s[{sC}:{sC+1}], v[{vC}:{vC+1}]")
    for i, r in enumerate(regs): A(f"v_pk_mul_f32 v[{tmp+2*i}:{tmp+2*i+1}], v[{tmp+2*i}:{tmp+2*i+1}], v[{r}:{r+1}]")
    for i in range(2*n): A(f"v_exp_f32 v{tmp+i}, v{tmp+i}")
    for i, r in enumerate(regs): A(f"v_pk_add_f32 v[{tmp+2*i}:{tmp+2*i+1}], v[{tmp+2*i}:{tmp+2*i+1}], 1.0 op_sel_hi:[1,0]")
    for i in range(2*n): A(f"v_rcp_f32 v{tmp+i}, v{tmp+i}")
    for i, r in enumerate(regs): A(f"v_pk_mul_f32 v[{r}:{r+1}], v[{r}:{r+1}], v[{tmp+2*i}:{tmp+2*i+1}]")

def k1_geom(typ):
    if typ == 'q':
        return dict(pitchW=3840, PROWS=144, PSLOT=144*128, NPS=3, TSLOT=15360, R=6, TBASE=3*144*128)
    return dict(pitchW=3072, PROWS=128, PSLOT=128*128, NPS=3, TSLOT=16384, R=6, TBASE=3*128*128)

def k1_wsp_prefetch(A, part):
    if part == 0:
        srd(A, 4, 52, 2048*2048*2)
        A("s_and_b32 s40, s2, 7\ns_lshr_b32 s40, s40, 1\ns_lshl_b32 s40, s40, 14")
        A("s_lshr_b32 s41, s2, 3\ns_and_b32 s41, s41, 15\ns_lshl_b32 s41, s41, 10\ns_add_u32 s40, s40, s41")
        A("s_sub_u32 s41, s16, 4\ns_lshl_b32 s41, s41, 8\ns_add_u32 s40, s40, s41")
        A("s_lshl_b32 s40, s40, 7")
        A("v_lshlrev_b32 v249, 7, v0")
    else:
        A("s_add_u32 s40, s40, 8192")
    A(f"buffer_load_dword v{250 + (part & 1)}, v249, s[4:7], s40 offen")

def pf_setup(A):
    A("s_cmp_lt_u32 s21, 2\ns_cselect_b32 s84, s30, s34\ns_cselect_b32 s85, s31, s35")
    A(f"s_mov_b32 s86, {640*1920*2}\ns_cselect_b32 s86, {2048*640*2}, s86")
    A("s_cmp_eq_u32 s21, 3\ns_cselect_b32 s84, s36, s84\ns_cselect_b32 s85, s37, s85")
    A(f"s_cselect_b32 s86, {640*1536*2}, s86\ns_mov_b32 s87, 0x20000")
    A("s_lshr_b32 s88, s2, 3\ns_and_b32 s89, s2, 7\ns_lshr_b32 s90, s89, 1\ns_and_b32 s89, s89, 1")
    A("s_lshl_b32 s91, s89, 10\ns_lshl_b32 s92, s88, 5\ns_add_u32 s91, s91, s92\ns_lshl_b32 s92, s21, 4\ns_add_u32 s91, s91, s92")
    A("v_lshrrev_b32 v20, 2, v0\nv_add_u32 v20, s91, v20\nv_mul_u32_u24 v20, 1280, v20\nv_and_b32 v21, 3, v0\nv_lshl_add_u32 v20, v21, 7, v20\nv_add_u32 v20, 384, v20")
    A("v_mul_u32_u24 v21, 57, v0\nv_lshrrev_b32 v21, 9, v21\nv_mul_u32_u24 v22, 9, v21\nv_sub_u32 v22, v0, v22")
    A("s_mul_i32 s91, s88, 7\ns_add_u32 s91, s91, 192\nv_add_u32 v21, s91, v21\nv_mul_u32_u24 v21, 3840, v21")
    A("v_mul_u32_u24 v23, 171, v22\nv_lshrrev_b32 v23, 9, v23\nv_mul_u32_u24 v25, 3, v23\nv_sub_u32 v22, v22, v25")
    A("s_lshl_b32 s91, s90, 2\ns_lshr_b32 s91, 0x7520, s91\ns_and_b32 s91, s91, 15")
    A("v_add_u32 v22, s91, v22\nv_lshlrev_b32 v22, 7, v22\nv_mul_u32_u24 v23, 1280, v23\nv_add3_u32 v21, v21, v22, v23")
    A(f"v_mov_b32 v25, {KILL}\nv_cmp_le_u32 vcc, 63, v0\nv_cndmask_b32 v21, v21, v25, vcc")
    A("v_mul_u32_u24 v22, 43, v0\nv_lshrrev_b32 v22, 8, v22\nv_mul_u32_u24 v23, 6, v22\nv_sub_u32 v23, v0, v23")
    A("s_mul_i32 s91, s88, 7\ns_add_u32 s91, s91, 192\nv_add_u32 v22, s91, v22\nv_mul_u32_u24 v22, 3072, v22")
    A("v_mul_u32_u24 v26, 171, v23\nv_lshrrev_b32 v26, 9, v26\nv_mul_u32_u24 v27, 3, v26\nv_sub_u32 v23, v23, v27")
    A("v_lshlrev_b32 v23, 7, v23\nv_mul_u32_u24 v26, 1536, v26\nv_add3_u32 v22, v22, v23, v26\ns_mul_i32 s91, s90, 384\nv_add_u32 v22, s91, v22")
    A("v_cmp_le_u32 vcc, 42, v0\nv_cndmask_b32 v22, v22, v25, vcc")
    A("s_cmp_lt_u32 s21, 2\ns_cselect_b64 s[90:91], -1, 0\ns_cselect_b32 s88, 384, 0")
    A("v_cndmask_b32 v24, v21, v20, s[90:91]")
    A(f"s_cmp_eq_u32 s21, 2\ns_cselect_b32 s88, {224*3840}, s88")
    A(f"s_cmp_eq_u32 s21, 3\ns_cselect_b32 s88, {224*3072}, s88\ns_cselect_b64 s[90:91], -1, 0")
    A("v_cndmask_b32 v24, v24, v22, s[90:91]")

def pf_group(A, g):
    if g == 0: A("buffer_load_dword v248, v24, s[84:87], 0 offen")
    else: A("buffer_load_dword v248, v24, s[84:87], s88 offen")

def run_loader_schedule(A, issueP, issueT, issued, hooks=None, wsp=False, NB=20):
    NPS = 3; R = 6
    def wait_for(needs):
        last = -1
        for idx, tg in enumerate(issued):
            if tg in needs: last = idx
        if last < 0: return
        A(f"s_waitcnt vmcnt({min(len(issued) - 1 - last, 63)})")
    TLA = O.tla
    issueP(0, 0); issueP(0, 1); issueT(0); issueT(1)
    issueP(1, 0); issueP(1, 1)
    for t in range(2, TLA): issueT(t)
    if O.fullring: issueP(2, 0); issueP(2, 1)
    if O.pfg:
        pf_setup(A); pf_group(A, 0); issued.append(('F', 0))
    wait_for([('P', 0), ('T', 0)])
    A("s_barrier")
    if not O.fullring: issueP(2, 0)
    for b in range(NB):
        needs = []
        if b + 1 < NB: needs = [('T', b+1), ('P', (b+1)//2)]
        if needs: wait_for(needs)
        A("s_barrier")
        if b + TLA < NB: issueT(b + TLA)
        if b == 0 and not O.fullring: issueP(2, 1)
        if b % 2 == 1:
            s = (b - 1)//2 + NPS
            if s < NB//2: issueP(s, 0)
        elif b >= 2:
            s = (b - 2)//2 + NPS
            if s < NB//2: issueP(s, 1)
        if O.pfg and b == O.pfg2: pf_group(A, 1); issued.append(('F', 1))
        if hooks and b in hooks: hooks[b](issued)
        W0 = max(14, 20 - TLA)
        if wsp and O.wsp_pf and W0 <= b < W0 + 4: k1_wsp_prefetch(A, b - W0); issued.append(('W', b))
    A("s_barrier")

def rot_stage(A, s, dst):
    A(f"s_add_u32 s{dst}, s28, {s}\ns_cmp_ge_u32 s{dst}, 10\ns_cselect_b32 s29, 10, 0\ns_sub_u32 s{dst}, s{dst}, s29")
def rot_beat(A, b, dst):
    A(f"s_lshl_b32 s{dst}, s28, 1\ns_add_u32 s{dst}, s{dst}, {b}\ns_cmp_ge_u32 s{dst}, 20\ns_cselect_b32 s29, 20, 0\ns_sub_u32 s{dst}, s{dst}, s29")

ZR = 3; ZTS = 24576; ZTB = 81920
def k1_loader_z(A):
    pitchW = 3072; lw = 21; N = 20; R = ZR
    A(f"s_sub_u32 s{lw}, s16, 4")
    A("v_lshrrev_b32 v7, 3, v0\nv_and_b32 v2, 7, v0\nv_xor_b32 v2, v2, v7\nv_mul_u32_u24 v7, 1280, v7\nv_lshl_add_u32 v2, v2, 4, v7")
    for g8 in range(2):
        for i in range(3):
            d = 3 + 3*g8 + i
            A(f"v_add_u32 v10, {64*i}, v0\nv_mul_u32_u24 v11, 2731, v10\nv_lshrrev_b32 v11, 16, v11")
            A(f"v_mul_u32_u24 v12, 24, v11\nv_sub_u32 v12, v10, v12\nv_and_b32 v13, 2, v11\nv_add_u32 v13, {4*g8}, v13\nv_xor_b32 v12, v12, v13")
            A(f"v_add_u32 v11, {8*g8}, v11\nv_mul_u32_u24 v11, {pitchW}, v11\nv_lshl_add_u32 v{d}, v12, 4, v11")
            if i: A(f"v_subrev_u32 v{d}, {1024*i}, v{d}")
    A(f"s_mul_i32 s20, s{lw}, {16*1280}\ns_add_u32 s22, s17, s20")
    A(f"s_lshl_b32 s23, s{lw}, 11")
    A(f"s_mul_i32 s20, s{lw}, {16*pitchW}\ns_add_u32 s24, s18, s20\ns_add_u32 s25, s19, s20")
    A(f"s_mul_i32 s26, s{lw}, 6144\ns_add_u32 s26, s26, {ZTB}")
    A("s_mov_b32 s58, s28")
    issued = []
    def issue(s):
        if s < 10:
            A(f"s_lshl_b32 s27, s58, 7\ns_add_u32 s27, s27, s22\ns_add_u32 m0, s23, {s*8192}\ns_add_u32 s20, s27, {8*1280 - 1024}")
            A("buffer_load_dwordx4 v2, s[4:7], s27 offen lds\nbuffer_load_dwordx4 v2, s[4:7], s20 offen offset:1024 lds")
            issued.extend([('S', s)]*2)
        A(f"s_mul_i32 s27, s58, {64*pitchW}\ns_add_u32 s27, s27, s{24 + s//10}\ns_add_u32 m0, s26, {(s % R)*ZTS}")
        A("s_add_u32 s58, s58, 1\ns_cmp_eq_u32 s58, 10")
        for g8 in range(2):
            for i in range(3):
                A(f"buffer_load_dwordx4 v{3+3*g8+i}, s[8:11], s27 offen offset:{1024*i} lds")
                if g8 == 0 and i == 0: A("s_cselect_b32 s58, 0, s58")
            if g8 == 0: A("s_add_u32 m0, m0, 3072\ns_nop 0")
        issued.extend([('S', s)]*6)
    def wait_for(s):
        last = max(i for i, t in enumerate(issued) if t == ('S', s))
        A(f"s_waitcnt vmcnt({min(len(issued) - 1 - last, 63)})")
    for s in range(R - 1): issue(s)
    wait_for(0)
    A("s_barrier")
    issue(R - 1)
    for i in range(N):
        if i + 1 < N: wait_for(i + 1)
        A("s_barrier")
        if i + R < N: issue(i + R)
    k1_pack_load(A)
    z_gate_load(A, "s_sub_u32 s47, s16, 4\ns_lshl_b32 s47, s47, 2")

def k1_loader_q(A, last):
    G = k1_geom('q'); PSLOT = G['PSLOT']; TSLOT = G['TSLOT']; TBASE = G['TBASE']
    nP = 3 if last else 2
    nTi = 3 if last else 4
    A("s_sub_u32 s21, s16, 4")
    A("v_lshrrev_b32 v7, 3, v0\nv_and_b32 v6, 7, v0\nv_xor_b32 v6, v6, v7")
    A("s_lshl_b32 s20, s48, 7\ns_sub_u32 s20, s20, 16\ns_lshl_b32 s22, s21, 4\ns_add_u32 s20, s20, s22")
    A("v_add_u32 v7, s20, v7")
    A("v_mov_b32 v12, v7")
    A("s_mov_b32 s20, 1280\nv_mul_lo_u32 v7, v7, s20\nv_lshl_add_u32 v2, v6, 4, v7")
    for h2 in range(2):
        for i in range(nP):
            if h2 == 0 and i == 0: continue
            A(f"v_add_u32 v{2 + h2*3 + i}, {(72*h2 + 8*i)*1280}, v2")
    A(f"v_mov_b32 v13, {KILL}")
    for i in range(2):
        A(f"v_add_u32 v14, {8*i}, v12\nv_cmp_gt_i32 vcc, 0, v14\nv_cndmask_b32 v{2+i}, v{2+i}, v13, vcc")
    A("s_lshl_b32 s20, s21, 8")
    for i in range(nTi):
        d = 8 + i
        A(f"v_add_u32 v12, s20, v0\nv_add_u32 v12, {64*i}, v12")
        A("v_mul_u32_u24 v13, 2185, v12\nv_lshrrev_b32 v13, 16, v13")
        A("v_mul_u32_u24 v14, 30, v13\nv_sub_u32 v14, v12, v14")
        A("v_and_b32 v15, 0x13, v13\nv_and_b32 v16, 4, v13\nv_lshl_or_b32 v15, v16, 1, v15\nv_and_b32 v16, 8, v13\nv_lshrrev_b32 v16, 1, v16\nv_or_b32 v15, v15, v16")
        A("v_mul_u32_u24 v16, 205, v14\nv_lshrrev_b32 v16, 11, v16")
        A("v_mul_u32_u24 v17, 10, v16\nv_sub_u32 v14, v14, v17")
        A("v_mul_u32_u24 v15, 3840, v15\nv_mul_u32_u24 v16, 1280, v16\nv_lshlrev_b32 v14, 4, v14")
        A(f"v_add3_u32 v{d}, v15, v16, v14")
    A("s_mul_i32 s24, s49, 160")
    A("s_lshl_b32 s23, s21, 11")
    A(f"s_lshl_b32 s26, s21, 12\ns_add_u32 s26, s26, {TBASE}")
    issued = []
    def issueP(s, h2):
        slot = s % 3
        rot_stage(A, s, 27)
        A("s_lshl_b32 s27, s27, 7")
        A(f"s_add_u32 m0, s23, {slot*PSLOT + h2*72*128}")
        for i in range(nP):
            if i: A("s_add_u32 m0, m0, 1024\ns_nop 0")
            A(f"buffer_load_dwordx4 v{2 + h2*3 + i}, s[4:7], s27 offen lds")
            issued.append(('P', s))
    def issueT(b):
        slot = b % 6
        rot_beat(A, b, 27)
        A(f"s_mul_i32 s27, s27, {32*3840}\ns_add_u32 s27, s27, s24")
        A(f"s_add_u32 m0, s26, {slot*TSLOT}")
        for i in range(nTi):
            if i: A("s_add_u32 m0, m0, 1024\ns_nop 0")
            A(f"buffer_load_dwordx4 v{8 + i}, s[8:11], s27 offen lds")
            issued.append(('T', b))
    run_loader_schedule(A, issueP, issueT, issued, None, True)


OT = 212
def z_oldtags(A, r32_sreg):
    srd(A, 12, 32, SZ_EP, WS_EP)
    A(f"s_lshl_b32 s40, s48, 7\nv_mov_b32 v221, s40")
    A(f"buffer_load_dwordx2 v[{OT}:{OT+1}], v221, s[12:15], 0 offen sc1")
def z_r32(A, dst):
    A(f"s_and_b32 s{dst}, s16, 1\ns_lshl_b32 s{dst}, s{dst}, 1\ns_lshr_b32 s41, s16, 2\ns_add_u32 s{dst}, s{dst}, s41")


ZCMB = 131072
ZFLG = 155648
GX, GW, GA_, GT = 152, 184, 192, 146
def z_gate_load(A, rowoff):
    srd(A, 4, 30, 2048*640*2); srd(A, 12, 38, 640*2)
    A("s_lshl_b32 s60, s48, 7\ns_lshl_b32 s61, s49, 4\ns_add_u32 s60, s60, s61\ns_lshl_b32 s61, s16, 2\ns_add_u32 s60, s60, s61") if False else None
    A("s_lshl_b32 s86, s48, 6\ns_lshl_b32 s47, s49, 4\ns_add_u32 s86, s86, s47")
    A(rowoff)
    A("s_add_u32 s86, s86, s47")
    A(f"v_lshlrev_b32 v{GT}, 4, v0\nv_add_u32 v{GT+1}, 1024, v{GT}\nv_mov_b32 v{GT+2}, {KILL}\nv_cmp_le_u32 vcc, 16, v0\nv_cndmask_b32 v{GT+1}, v{GT+1}, v{GT+2}, vcc")
    A(f"buffer_load_dwordx4 v[{GW}:{GW+3}], v{GT}, s[12:15], 0 offen\nbuffer_load_dwordx4 v[{GW+4}:{GW+7}], v{GT+1}, s[12:15], 0 offen")
    A("s_mul_i32 s87, s86, 1280")
    for r in range(4):
        A(f"s_add_u32 s85, s87, {r*1280}")
        A(f"buffer_load_dwordx4 v[{160+8*r}:{163+8*r}], v{GT}, s[4:7], s85 offen\nbuffer_load_dwordx4 v[{164+8*r}:{167+8*r}], v{GT+1}, s[4:7], s85 offen") if False else A(f"buffer_load_dwordx4 v[{GX+8*r}:{GX+3+8*r}], v{GT}, s[4:7], s85 offen\nbuffer_load_dwordx4 v[{GX+4+8*r}:{GX+7+8*r}], v{GT+1}, s[4:7], s85 offen")
def z_gate_compute(A):
    for r in range(4):
        A(f"v_mov_b32 v{GA_+r}, 0")
        for q in range(4): A(f"v_dot2_f32_bf16 v{GA_+r}, v{GX+8*r+q}, v{GW+q}, v{GA_+r}")
        for q in range(4): A(f"v_dot2_f32_bf16 v{GA_+r}, v{GX+4+8*r+q}, v{GW+4+q}, v{GA_+r}")
    for ctl in ("row_shr:1 row_mask:0xf bank_mask:0xf bound_ctrl:0", "row_shr:2 row_mask:0xf bank_mask:0xf bound_ctrl:0", "row_shr:4 row_mask:0xf bank_mask:0xf bound_ctrl:0",
                "row_shr:8 row_mask:0xf bank_mask:0xf bound_ctrl:0", "row_bcast:15 row_mask:0xa bank_mask:0xf", "row_bcast:31 row_mask:0xc bank_mask:0xf"):
        for r in range(4): A(f"v_add_f32_dpp v{GA_+r}, v{GA_+r}, v{GA_+r} {ctl}")
    for r in range(4): A(f"v_mul_f32 v{GA_+r}, {f2u(-1.4426950408889634)}, v{GA_+r}")
    for r in range(4): A(f"v_exp_f32 v{GA_+r}, v{GA_+r}")
    for r in range(4): A(f"v_add_f32 v{GA_+r}, 1.0, v{GA_+r}")
    for r in range(4): A(f"v_rcp_f32 v{GA_+r}, v{GA_+r}")
def z_gate_store(A):
    srd(A, 4, 32, SZ_G, WS_G)
    A(f"s_lshl_b32 s86, s86, 2\nv_mov_b32 v{GT}, 0")
    A("s_mov_b32 s42, 0\ns_mov_b32 s43, 0x80000000\ns_mov_b64 exec, s[42:43]")
    for r in range(4): A(f"buffer_store_dword v{GA_+r}, v{GT}, s[4:7], s86 offen offset:{4*r} sc1")
    A("s_mov_b64 exec, -1")

def k1_pack_load(A):
    T = 28
    c, cc, t2, p_, k_, x_ = T+2, T+3, T+4, T+5, T+6, T+7
    A("s_sub_u32 s40, s16, 4\ns_lshl_b32 s40, s40, 6")
    A(f"v_add_u32 v{c}, s40, v0\nv_and_b32 v{cc}, 127, v{c}\nv_lshrrev_b32 v{t2}, 7, v{c}\nv_lshrrev_b32 v{p_}, 1, v{cc}")
    A(f"v_and_b32 v{k_}, 0x33, v{p_}\nv_and_b32 v{x_}, 4, v{p_}\nv_lshl_or_b32 v{k_}, v{x_}, 1, v{k_}")
    A(f"v_and_b32 v{x_}, 8, v{p_}\nv_lshrrev_b32 v{x_}, 1, v{x_}\nv_or_b32 v{k_}, v{k_}, v{x_}")
    A(f"v_mul_u32_u24 v{k_}, 1280, v{k_}\nv_and_b32 v{x_}, 1, v{cc}\nv_lshl_add_u32 v{k_}, v{x_}, 4, v{k_}\nv_lshl_add_u32 v{k_}, v{t2}, 5, v{k_}")
    A(f"v_lshlrev_b32 v252, 4, v{cc}\nv_lshl_add_u32 v252, v{t2}, 11, v252")
    A(f"v_mov_b32 v{x_}, {KILL}\nv_cmp_eq_u32 vcc, 1, v{t2}\nv_cndmask_b32 v253, v252, v{x_}, vcc\nv_cndmask_b32 v{p_}, v{k_}, v{x_}, vcc")
    A("s_lshl_b32 s54, s48, 2\ns_add_u32 s54, s54, s49")
    for u, D in ((0, 224), (1, 236)):
        A(f"s_add_u32 s55, s54, {128*u}")
        A(f"s_mul_hi_u32 s41, s55, {(2**32 + 21)//22}\ns_mul_i32 s42, s41, 22\ns_sub_u32 s42, s55, s42")
        A("s_cmp_lt_u32 s42, 10\ns_cselect_b32 s12, s44, s46\ns_cselect_b32 s13, s45, s47")
        A(f"s_mov_b32 s14, {768*640*2}\ns_cselect_b32 s14, {640*640*2}, s14\ns_mov_b32 s15, 0x20000")
        A("s_cselect_b32 s43, 0, 10\ns_sub_u32 s43, s42, s43")
        A(f"s_mul_i32 s43, s43, {64*1280}\ns_mul_i32 s40, s41, 160\ns_add_u32 s43, s43, s40")
        A(f"s_cmp_ge_u32 s55, 176\ns_cselect_b32 s40, {KILL}, 0\ns_add_u32 s43, s43, s40")
        A(f"buffer_load_dwordx4 v[{D}:{D+3}], v{k_}, s[12:15], s43 offen")
        A(f"buffer_load_dwordx4 v[{D+4}:{D+7}], v{k_}, s[12:15], s43 offen offset:64")
        A(f"buffer_load_dwordx4 v[{D+8}:{D+11}], v{p_}, s[12:15], s43 offen offset:128")

def k1_pack_store(A):
    srd(A, 12, 32, SZ_WP, WS_WP)
    for u, D in ((0, 224), (1, 236)):
        A(f"s_add_u32 s55, s54, {128*u}")
        A(f"s_mul_i32 s41, s55, {5*2048}\ns_cmp_ge_u32 s55, 176\ns_cselect_b32 s42, {KILL}, 0\ns_add_u32 s41, s41, s42")
        A("s_add_u32 s42, s41, 4096\ns_add_u32 s43, s41, 8192")
        A(f"buffer_store_dwordx4 v[{D}:{D+3}], v252, s[12:15], s41 offen{O.k1st}")
        A(f"buffer_store_dwordx4 v[{D+4}:{D+7}], v252, s[12:15], s42 offen{O.k1st}")
        A(f"buffer_store_dwordx4 v[{D+8}:{D+11}], v253, s[12:15], s43 offen{O.k1st}")

def k1_compute_z(A, st):
    mP = 2; nT = 6; R = ZR
    F = [16, 176]
    AC = [80, 128]
    A("s_and_b32 s20, s16, 1\ns_lshr_b32 s21, s16, 1")
    A("v_and_b32 v14, 15, v0\nv_lshrrev_b32 v15, 4, v0\nv_and_b32 v6, 7, v14\nv_xor_b32 v6, v15, v6\nv_lshlrev_b32 v14, 7, v14\nv_lshl_add_u32 v14, v6, 4, v14")
    A("s_lshl_b32 s22, s20, 12")
    A("v_add_u32 v2, s22, v14\nv_xor_b32 v3, 64, v2\nv_add_u32 v4, 0x10000, v2\nv_add_u32 v5, 0x10000, v3")
    A("v_lshrrev_b32 v14, 2, v0\nv_and_b32 v14, 3, v14\nv_lshl_add_u32 v13, v15, 3, v14\nv_mul_u32_u24 v13, 384, v13")
    A("v_and_b32 v12, 3, v0\nv_lshl_add_u32 v13, v12, 3, v13")
    A("v_lshrrev_b32 v14, 1, v14\nv_and_b32 v12, 1, v15\nv_lshl_add_u32 v14, v12, 1, v14")
    A(f"v_add_u32 v15, {ZTB}, v13\ns_mul_i32 s23, s21, 6")
    for t in range(6):
        A(f"s_add_u32 s22, s23, {t}\ns_and_b32 s24, s22, 3\ns_andn2_b32 s22, s22, 3\nv_xor_b32 v13, s24, v14\nv_add_u32 v13, s22, v13\nv_lshl_add_u32 v{6+t}, v13, 5, v15")
    for i in range(80, 176): A(f"v_mov_b32 v{i}, 0")
    def fP(s, kk, m): return F[s] + 4*(kk*8 + m)
    def fT(s, kk, t): return F[s] + 4*(kk*8 + 2 + t)
    def acc(p, m, t): return AC[p] + 4*(m*nT + t)
    def reads(i):
        s = i & 1; ps = i % 10; ts = i % R
        r = []
        for kk in range(2):
            for m in range(mP):
                off = ps*8192 + m*2048; hi = off >> 16
                r.append(f"ds_read_b128 v[{fP(s,kk,m)}:{fP(s,kk,m)+3}], v{2 + kk + 2*hi} offset:{off & 0xffff}")
            for t in range(nT):
                f = fT(s, kk, t)
                for h in range(2): r.append(f"ds_read_b64_tr_b16 v[{f+2*h}:{f+2*h+1}], v{6 + t} offset:{ts*ZTS + kk*32*384 + h*4*384}")
        return r
    def beat(i, last=False):
        s = i & 1; p = i // 10
        mf = [f"v_mfma_f32_16x16x32_bf16 v[{acc(p,m,t)}:{acc(p,m,t)+3}], v[{fT(s,kk,t)}:{fT(s,kk,t)+3}], v[{fP(s,kk,m)}:{fP(s,kk,m)+3}], v[{acc(p,m,t)}:{acc(p,m,t)+3}]"
              for kk in range(2) for m in range(mP) for t in range(nT)]
        rd = [] if last else reads(i + 1)
        A("s_barrier")
        for k, x in enumerate(mf):
            for _ in range(2 if k < 10 else 1):
                if rd: A(rd.pop(0))
            A(x)
        assert not rd
        A("s_waitcnt lgkmcnt(0)")
    A("s_barrier")
    for x in reads(0): A(x)
    A("s_waitcnt lgkmcnt(0)")
    st(); GS(A, 1)
    for i in range(10): beat(i)
    st()
    TM = 176
    A(f"s_mov_b32 s56, {f2u(C1)}\ns_mov_b32 s57, {f2u(C1)}")
    A(f"v_mov_b32 v12, {f2u(C0)}\nv_mov_b32 v13, {f2u(C0)}")
    gelu_pk(A, [acc(0, m, t) + 2*q for m in range(2) for t in range(6) for q in range(2)], TM, 56, 12)
    S = TM
    for m in range(2):
        vals = [acc(0, m, t) + r for t in range(6) for r in range(4)]
        for h in range(2):
            v0_ = vals[12*h:12*h+12]
            A(f"v_pk_add_f32 v[{S+4*m+2*h}:{S+4*m+2*h+1}], v[{v0_[0]}:{v0_[1]}], v[{v0_[2]}:{v0_[3]}]")
            A(f"v_pk_mul_f32 v[{S+8+4*m+2*h}:{S+8+4*m+2*h+1}], v[{v0_[0]}:{v0_[1]}], v[{v0_[0]}:{v0_[1]}]")
    for m in range(2):
        vals = [acc(0, m, t) + r for t in range(6) for r in range(4)]
        for h in range(2):
            v0_ = vals[12*h:12*h+12]
            A(f"v_pk_fma_f32 v[{S+8+4*m+2*h}:{S+8+4*m+2*h+1}], v[{v0_[2]}:{v0_[3]}], v[{v0_[2]}:{v0_[3]}], v[{S+8+4*m+2*h}:{S+8+4*m+2*h+1}]")
    for q in range(2, 6):
        for m in range(2):
            vals = [acc(0, m, t) + r for t in range(6) for r in range(4)]
            for h in range(2):
                v0_ = vals[12*h:12*h+12]
                A(f"v_pk_add_f32 v[{S+4*m+2*h}:{S+4*m+2*h+1}], v[{S+4*m+2*h}:{S+4*m+2*h+1}], v[{v0_[2*q]}:{v0_[2*q+1]}]")
                A(f"v_pk_fma_f32 v[{S+8+4*m+2*h}:{S+8+4*m+2*h+1}], v[{v0_[2*q]}:{v0_[2*q+1]}], v[{v0_[2*q]}:{v0_[2*q+1]}], v[{S+8+4*m+2*h}:{S+8+4*m+2*h+1}]")
    for m in range(2):
        A(f"v_pk_add_f32 v[{S+4*m}:{S+4*m+1}], v[{S+4*m}:{S+4*m+1}], v[{S+4*m+2}:{S+4*m+3}]")
        A(f"v_pk_add_f32 v[{S+8+4*m}:{S+8+4*m+1}], v[{S+8+4*m}:{S+8+4*m+1}], v[{S+8+4*m+2}:{S+8+4*m+3}]")
    for m in range(2):
        A(f"v_add_f32 v{S+16+2*m}, v{S+4*m}, v{S+4*m+1}\nv_add_f32 v{S+17+2*m}, v{S+8+4*m}, v{S+8+4*m+1}")
    X = S + 16
    for i in range(4): A(f"v_mov_b32 v{X+4+i}, v{X+i}")
    for i in range(4): A(f"v_permlane16_swap_b32 v{X+i}, v{X+4+i}")
    for i in range(4): A(f"v_add_f32 v{X+i}, v{X+i}, v{X+4+i}")
    for i in range(4): A(f"v_mov_b32 v{X+4+i}, v{X+i}")
    for i in range(4): A(f"v_permlane32_swap_b32 v{X+i}, v{X+4+i}")
    for i in range(4): A(f"v_add_f32 v{X+i}, v{X+i}, v{X+4+i}")
    A(f"v_and_b32 v14, 16, v0\nv_cmp_ne_u32 vcc, 0, v14\nv_cndmask_b32 v{X}, v{X}, v{X+2}, vcc\nv_cndmask_b32 v{X+1}, v{X+1}, v{X+3}, vcc")
    srd(A, 8, 32, SZ_ST, WS_ST)
    A("s_lshl_b32 s49, s49, 1\ns_add_u32 s49, s49, s21")
    A("s_lshl_b32 s22, s49, 15\ns_lshl_b32 s23, s48, 10\ns_add_u32 s22, s22, s23\ns_lshl_b32 s23, s20, 9\ns_add_u32 s22, s22, s23")
    A(f"s_add_u32 s24, s98, 1\nv_mov_b32 v{X+2}, s24\nv_mov_b32 v{X+3}, s99\nv_lshlrev_b32 v14, 4, v0")
    A("v_cmp_gt_u32 vcc, 32, v0\ns_and_saveexec_b64 s[24:25], vcc")
    A(f"buffer_store_dwordx4 v[{X}:{X+3}], v14, s[8:11], s22 offen sc1")
    A("s_mov_b64 exec, s[24:25]")
    st()
    PG = 240
    def poll_loads():
        for q in range(4):
            A(f"s_add_u32 s23, s27, {q*32768}")
            A(f"buffer_load_dwordx4 v[{PG+4*q}:{PG+3+4*q}], v15, s[8:11], s23 offen sc1")
    def poll_issue():
        A("s_lshl_b32 s27, s48, 10\ns_lshl_b32 s23, s20, 9\ns_add_u32 s27, s27, s23")
        A("v_and_b32 v15, 31, v0\nv_lshlrev_b32 v15, 4, v15\nv_lshrrev_b32 v14, 5, v0\nv_lshl_add_u32 v15, v14, 17, v15")
        poll_loads()
    def mid_normalise():
        G = TM
        A(f"s_add_u32 s24, s98, 1\nv_mov_b32 v12, s24\nv_mov_b32 v14, s99\ns_mov_b32 s24, 0\ns_branch K1_pollchk")
        A.label("K1_poll")
        A(f"s_sleep {O.sleep}")
        poll_loads()
        A.label("K1_pollchk")
        A("s_waitcnt vmcnt(0)")
        X = G + 32
        A(f"v_xor_b32 v{X}, v{PG+2}, v12\nv_xor_b32 v{X+1}, v{PG+3}, v14\nv_or_b32 v{X}, v{X}, v{X+1}")
        for q in range(1, 4): A(f"v_xor_b32 v{X+1}, v{PG+2+4*q}, v12\nv_xor_b32 v{X+2}, v{PG+3+4*q}, v14\nv_or3_b32 v{X}, v{X}, v{X+1}, v{X+2}")
        A(f"v_cmp_ne_u32 vcc, 0, v{X}\ns_add_u32 s24, s24, 1\ns_nop 3")
        A(f"s_cbranch_vccz K1_polled\ns_cmp_lt_u32 s24, 0x10000\ns_cbranch_scc1 K1_poll")
        A.label("K1_polled")
        A(f"v_add_f32 v{G}, v{PG}, v{PG+4}\nv_add_f32 v{G+1}, v{PG+1}, v{PG+5}\nv_add_f32 v{G+2}, v{PG+8}, v{PG+12}\nv_add_f32 v{G+3}, v{PG+9}, v{PG+13}")
        A(f"v_add_f32 v{G}, v{G}, v{G+2}\nv_add_f32 v{G+1}, v{G+1}, v{G+3}")
        A(f"v_mov_b32 v{G+2}, v{G}\nv_mov_b32 v{G+3}, v{G+1}")
        A(f"v_permlane32_swap_b32 v{G}, v{G+2}\nv_permlane32_swap_b32 v{G+1}, v{G+3}")
        A(f"v_add_f32 v{G}, v{G}, v{G+2}\nv_add_f32 v{G+1}, v{G+1}, v{G+3}")
        A(f"v_mul_f32 v{G}, {f2u(1/768)}, v{G}\nv_mul_f32 v{G+1}, {f2u(1/768)}, v{G+1}")
        A(f"v_fma_f32 v{G+1}, -v{G}, v{G}, v{G+1}\nv_max_f32 v{G+1}, 0, v{G+1}")
        A(f"v_add_f32 v{G+1}, {f2u(1e-5)}, v{G+1}\nv_rsq_f32 v{G+1}, v{G+1}")
        A(f"v_mul_f32 v{G}, v{G}, v{G+1}\nv_sub_f32 v{G}, 0, v{G}")
        A("v_and_b32 v13, 15, v0\nv_lshlrev_b32 v13, 2, v13")
        B = G + 8
        for m in range(2):
            A(f"v_add_u32 v12, {64*m}, v13")
            A(f"ds_bpermute_b32 v{B+2*m}, v12, v{G+1}\nds_bpermute_b32 v{B+1+2*m}, v12, v{G}")
        srd(A, 12, 32, SZ_Z2P, WS_Z2P)
        A("s_lshl_b32 s22, s49, 5\ns_add_u32 s22, s22, s48\ns_mul_i32 s22, s22, 12288\ns_lshl_b32 s23, s20, 10\ns_add_u32 s22, s22, s23")
        A("v_lshrrev_b32 v15, 4, v0\nv_and_b32 v12, 15, v0\nv_and_b32 v13, 3, v12\nv_and_b32 v14, 4, v12\nv_lshl_or_b32 v13, v14, 1, v13\nv_and_b32 v14, 8, v12\nv_lshrrev_b32 v14, 1, v14\nv_or_b32 v13, v13, v14")
        A("v_and_b32 v14, 1, v15\nv_lshl_add_u32 v13, v14, 4, v13\nv_lshlrev_b32 v13, 5, v13\nv_lshrrev_b32 v14, 1, v15\nv_lshl_add_u32 v13, v14, 4, v13")
        A("s_waitcnt lgkmcnt(0)")
        for m in range(2):
            for t in range(6):
                a_ = acc(0, m, t)
                for r in range(4): A(f"v_fma_f32 v{a_+r}, v{a_+r}, v{B+2*m}, v{B+1+2*m}")
        PK = G + 16
        for t in range(6):
            d = PK + 4*t; a0 = acc(0, 0, t); a1 = acc(0, 1, t)
            A(f"v_cvt_pk_bf16_f32 v{d}, v{a0}, v{a0+1}\nv_cvt_pk_bf16_f32 v{d+1}, v{a0+2}, v{a0+3}\nv_cvt_pk_bf16_f32 v{d+2}, v{a1}, v{a1+1}\nv_cvt_pk_bf16_f32 v{d+3}, v{a1+2}, v{a1+3}")
        for t in range(6):
            d = PK + 4*t
            A(f"v_permlane16_swap_b32 v{d}, v{d+2}\nv_permlane16_swap_b32 v{d+1}, v{d+3}")
        for t in range(6):
            A(f"s_add_u32 s23, s22, {t*2048}")
            A(f"buffer_store_dwordx4 v[{PK+4*t}:{PK+4*t+3}], v13, s[12:15], s23 offen sc1")
    def signal_z2():
        A("s_waitcnt vmcnt(0)")
        A(f"s_lshl_b32 s22, s21, 2\ns_add_u32 s22, s22, {ZFLG + 16}\nv_mov_b32 v12, s22\nv_mov_b32 v13, 1\ns_mov_b64 exec, 1")
        A("ds_add_rtn_u32 v13, v12, v13\ns_waitcnt lgkmcnt(0)\nv_readfirstlane_b32 s22, v13")
        A("s_cmp_lg_u32 s22, 1\ns_cbranch_scc1 K1_z2nosig")
        srd(A, 12, 32, SZ_FZ2, WS_FZ2)
        A("s_lshl_b32 s22, s49, 8\ns_lshl_b32 s23, s48, 3\ns_add_u32 s22, s22, s23\nv_mov_b32 v12, s22\ns_add_u32 s23, s98, 1\nv_mov_b32 v14, s23\nv_mov_b32 v15, s99")
        A("buffer_store_dwordx2 v[14:15], v12, s[12:15], 0 offen sc1")
        A.label("K1_z2nosig")
        A("s_mov_b64 exec, -1")
    G3 = lambda k: A(f"s_memtime s[{64+2*k}:{65+2*k}]") if O.gs3 else None
    G3(0)
    for i in range(10, 20):
        if i in (12, 14): G3(1 + (i - 12)//2)
        if i == O.zn - O.zp: poll_issue()
        if i == O.zn:
            assert i % 2 == 0
            G3(3); mid_normalise(); G3(4)
        if i == 18: G3(5)
        if i == O.zs: G3(6); signal_z2(); G3(7)
        beat(i, last=(i == 19))
    G3(8)
    if O.gs3: GS_flush(A, 9, 12, True)
    st(); GS(A, 2)
    A(f"v_mov_b32 v12, {f2u(C0)}\nv_mov_b32 v13, {f2u(C0)}")
    gelu_pk(A, [acc(1, m, t) + 2*q for m in range(2) for t in range(6) for q in range(2)], TM, 56, 12)
    srd(A, 4, 32, SZ_Z1, WS_Z1)
    A("s_lshl_b32 s22, s48, 1\ns_add_u32 s22, s22, s20\ns_mul_i32 s22, s22, 48\ns_mul_i32 s23, s49, 6\ns_add_u32 s22, s22, s23\ns_lshl_b32 s22, s22, 10")
    A("v_lshlrev_b32 v14, 4, v0")
    for t in range(6):
        d = 16 + 4*t; a0 = acc(1, 0, t); a1 = acc(1, 1, t)
        A(f"v_cvt_pk_bf16_f32 v{d}, v{a0}, v{a0+1}\nv_cvt_pk_bf16_f32 v{d+1}, v{a0+2}, v{a0+3}\nv_cvt_pk_bf16_f32 v{d+2}, v{a1}, v{a1+1}\nv_cvt_pk_bf16_f32 v{d+3}, v{a1+2}, v{a1+3}")
    for t in range(6):
        A(f"s_add_u32 s23, s22, {t*1024}")
        A(f"buffer_store_dwordx4 v[{16+4*t}:{19+4*t}], v14, s[4:7], s23 offen{O.k1st}")

def k1_compute_q(A, wm, wn, st):
    G = k1_geom('q'); PSLOT = G['PSLOT']; TSLOT = G['TSLOT']; TBASE = G['TBASE']
    tiles = list(range(0, 8)) if wn == 0 else list(range(8, 15))
    halo = {(0, 0): [5, 6], (1, 0): [7], (0, 1): [8, 9, 10, 11], (1, 1): [12, 13, 14]}[(wm, wn)]
    nT = len(tiles); mP = 5
    F = [16, 16 + 4*(5 + 8)]
    ACC = 16 + 8*(5 + 8)
    A("v_and_b32 v14, 15, v0\nv_lshrrev_b32 v15, 4, v0\nv_and_b32 v6, 7, v14\nv_xor_b32 v6, v15, v6\nv_lshlrev_b32 v14, 7, v14\nv_lshl_add_u32 v2, v6, 4, v14")
    A("v_xor_b32 v3, 64, v2")
    A("v_lshrrev_b32 v6, 1, v15\nv_lshlrev_b32 v6, 4, v6\nv_and_b32 v7, 1, v15\nv_lshl_add_u32 v6, v7, 2, v6")
    A("v_lshrrev_b32 v7, 2, v0\nv_and_b32 v7, 3, v7\nv_add_u32 v6, v6, v7\nv_mul_u32_u24 v6, 480, v6\nv_and_b32 v7, 3, v0\nv_lshl_add_u32 v6, v7, 3, v6")
    A(f"v_add_u32 v4, {TBASE}, v6\nv_add_u32 v5, {TBASE + 3*TSLOT}, v6")
    accs = {}
    n = ACC
    for m in range(4):
        for t in tiles: accs[(m, t)] = n; n += 4
    for t in halo: accs[('h', t)] = n; n += 4
    assert n <= 256, n
    for i in range(ACC, n): A(f"v_mov_b32 v{i}, 0")
    def fP(s, m): return F[s] + 4*m
    def fT(s, t): return F[s] + 4*(5 + tiles.index(t))
    def reads(b):
        s = b & 1; kk = b & 1; ps = (b//2) % 3; ts = b % 6
        r = []
        for m in range(4):
            f = fP(s, m); r.append(f"ds_read_b128 v[{f}:{f+3}], v{2+kk} offset:{ps*PSLOT + (16 + 64*wm + 16*m)*128}")
        f = fP(s, 4); r.append(f"ds_read_b128 v[{f}:{f+3}], v{2+kk} offset:{ps*PSLOT}")
        for t in tiles:
            f = fT(s, t)
            for h in range(2):
                hi = 1 if ts >= 3 else 0
                r.append(f"ds_read_b64_tr_b16 v[{f+2*h}:{f+2*h+1}], v{4+hi} offset:{(ts - 3*hi)*TSLOT + h*8*480 + t*32}")
        return r
    A("s_barrier")
    for x in reads(0): A(x)
    A("s_waitcnt lgkmcnt(0)")
    st(); GS(A, 1)
    A("s_barrier")
    def beat(b, last=False):
        s = b & 1
        mf = []
        for m in range(4):
            for t in tiles:
                a_ = accs[(m, t)]; mf.append(f"v_mfma_f32_16x16x32_bf16 v[{a_}:{a_+3}], v[{fT(s,t)}:{fT(s,t)+3}], v[{fP(s,m)}:{fP(s,m)+3}], v[{a_}:{a_+3}]")
        for t in halo:
            a_ = accs[('h', t)]; mf.append(f"v_mfma_f32_16x16x32_bf16 v[{a_}:{a_+3}], v[{fT(s,t)}:{fT(s,t)+3}], v[{fP(s,4)}:{fP(s,4)+3}], v[{a_}:{a_+3}]")
        rd = [] if last else reads(b + 1)
        nfront = len(mf) - 8
        for i, x in enumerate(mf):
            A(x)
            if rd: A(rd.pop(0))
            if i == nfront - 1:
                assert not rd, (len(rd), nfront)
                A("s_waitcnt lgkmcnt(0)\ns_barrier")
    L = f"K1q{wm}{wn}_cloop"
    A("s_mov_b32 s26, 0")
    A.label(L)
    it_top(A)
    for b in range(6):
        if O.itstamp: A(f"s_memtime s[76:77]\ns_waitcnt lgkmcnt(0)\ns_cmp_eq_u32 s26, 0\ns_cselect_b32 s{85+b}, s76, s{85+b}")
        beat(b)
    A(f"s_add_u32 s26, s26, 1\ns_cmp_lt_u32 s26, 3\ns_cbranch_scc1 {L}")
    it_mid(A)
    beat(18); beat(19, last=True)
    it_end(A, 14, 15)
    st(); GS(A, 2)
    A(f"v_and_b32 v6, 15, v0\nv_mul_u32_u24 v6, {QP}, v6\nv_lshrrev_b32 v7, 4, v0\nv_lshl_add_u32 v6, v7, 3, v6")
    k = 0
    items = list(accs.items())
    for (key, a_) in items:
        A(f"v_cvt_pk_bf16_f32 v{16+2*k}, v{a_}, v{a_+1}\nv_cvt_pk_bf16_f32 v{17+2*k}, v{a_+2}, v{a_+3}")
        k += 1
    A(f"v_add_u32 v7, 0x8000, v6")
    k = 0
    for (key, a_) in items:
        m, t = key
        row = 0 if m == 'h' else 16 + 64*wm + 16*m
        off = row*QP + t*32
        if off < 65536: A(f"ds_write_b64 v6, v[{16+2*k}:{17+2*k}] offset:{off}")
        else: A(f"ds_write_b64 v7, v[{16+2*k}:{17+2*k}] offset:{off - 0x8000}")
        k += 1

def rot_table(A):
    A(f"s_and_b32 s28, s28, 3\ns_lshl_b32 s28, s28, 2\ns_lshr_b32 s28, {O.rottab if O.rot else 0}, s28\ns_and_b32 s28, s28, 15")

def k1(A):
    name = NAME + "_kernel"
    kernel_begin(A, name)
    A("s_cmp_ge_u32 s2, 256\ns_cbranch_scc1 K34_end")
    load_ptr(A, 30, 'x'); load_ptr(A, 32, 'ws'); load_ptr(A, 34, 'wqkv'); load_ptr(A, 36, 'win')
    load_ptr(A, 38, 'gw'); load_ptr(A, 44, 'wo'); load_ptr(A, 46, 'wout'); load_ptr(A, 52, 'wsp'); load_ptr(A, 50, 'dbg')
    wave_lane(A, 16)
    hd_start(A)
    st = Stamps(A, 0); st()
    GS(A, 0)
    A("s_waitcnt lgkmcnt(0)")
    A(f"s_add_u32 s96, s32, {WS_EP}\ns_addc_u32 s97, s33, 0\ns_load_dwordx2 s[98:99], s[96:97], 0")
    A("s_and_b32 s40, s2, 7\ns_lshr_b32 s41, s2, 3\ns_and_b32 s48, s40, 1\ns_lshl_b32 s48, s48, 3\ns_and_b32 s42, s41, 7\ns_add_u32 s48, s48, s42")
    A("s_lshr_b32 s49, s40, 1\ns_lshl_b32 s49, s49, 1\ns_lshr_b32 s43, s41, 3\ns_and_b32 s43, s43, 1\ns_add_u32 s49, s49, s43")
    A("s_lshl_b32 s28, s43, 1\ns_add_u32 s28, s28, s42")
    rot_table(A)
    A("s_cmp_lt_u32 s41, 16\ns_cbranch_scc1 K1_ztype")
    A("s_cmp_lt_u32 s16, 4\ns_cbranch_scc1 K1_qcomp")
    srd(A, 4, 30, 2048*640*2); srd(A, 8, 34, 640*1920*2)
    A("s_cmp_eq_u32 s16, 7\ns_cbranch_scc1 K1_qload3")
    k1_loader_q(A, False)
    A("s_branch K1_att")
    A.label("K1_qload3")
    k1_loader_q(A, True)
    A("s_branch K1_att")
    A.label("K1_qcomp")
    st()

    A("s_cmp_eq_u32 s16, 1\ns_cbranch_scc1 K1_q10\ns_cmp_eq_u32 s16, 2\ns_cbranch_scc1 K1_q01\ns_cmp_eq_u32 s16, 3\ns_cbranch_scc1 K1_q11")
    for (wm, wn) in ((0, 0), (1, 0), (0, 1), (1, 1)):
        if (wm, wn) != (0, 0): A.label(f"K1_q{wm}{wn}")
        stv = Stamps(A, 0, 2)
        k1_compute_q(A, wm, wn, stv)
        if (wm, wn) != (1, 1): A("s_branch K1_att")
    A.label("K1_att")
    st3 = Stamps(A, 0, 4)
    AV = 100

    A(f"s_and_b32 s46, s16, 3\ns_lshr_b32 s47, s16, 2\ns_mul_i32 s45, s46, 40\ns_mul_i32 s43, s47, {64*QP}\ns_add_u32 s45, s45, s43")
    A("s_or_b32 s43, s48, s47")
    attention_prep(A, AV, 45)
    T = 86
    A(f"s_lshl_b32 s20, s16, 6\nv_add_u32 v{T}, s20, v0")
    for i in range(3):
        c, r, q, la, ga = T+1, T+2, T+3, T+4+2*i, T+5+2*i
        A(f"v_add_u32 v{c}, {512*i}, v{T}")
        A(f"v_mul_u32_u24 v{r}, 6554, v{c}\nv_lshrrev_b32 v{r}, 16, v{r}")
        A(f"v_mul_u32_u24 v{q}, 10, v{r}\nv_sub_u32 v{q}, v{c}, v{q}")
        A(f"v_mul_u32_u24 v{la}, {QP}, v{r}\nv_lshl_add_u32 v{la}, v{q}, 4, v{la}\nv_add_u32 v{la}, {16*QP}, v{la}")
        A(f"s_lshl_b32 s20, s48, 7\nv_add_u32 v{ga}, s20, v{r}\nv_mul_u32_u24 v{ga}, 2816, v{ga}\nv_lshl_add_u32 v{ga}, v{q}, 4, v{ga}")
        A(f"s_mul_i32 s20, s49, 160\nv_add_u32 v{ga}, s20, v{ga}")
        if i == 2:
            A(f"v_mov_b32 v{q}, {KILL}\nv_cmp_le_u32 vcc, 1280, v{c}\nv_cndmask_b32 v{ga}, v{ga}, v{q}, vcc")
            A(f"v_mov_b32 v{q}, 0\nv_cndmask_b32 v{la}, v{la}, v{q}, vcc")
    srd(A, 12, 32, SZ_AU, WS_AU)
    A("s_waitcnt lgkmcnt(0)\ns_barrier")
    st3()
    attention_main(A, AV, 43)
    A("s_waitcnt lgkmcnt(0)\ns_barrier")
    st3()
    D = 16
    for i in range(3):
        A(f"ds_read_b64 v[{D+4*i}:{D+4*i+1}], v{T+4+2*i}\nds_read_b64 v[{D+4*i+2}:{D+4*i+3}], v{T+4+2*i} offset:8")
    A("s_waitcnt lgkmcnt(0)")
    for i in range(3): A(f"buffer_store_dwordx4 v[{D+4*i}:{D+4*i+3}], v{T+5+2*i}, s[12:15], 0 offen{O.k1st}")
    if O.stamp:
        A("s_cmp_ge_u32 s16, 4\ns_cbranch_scc1 K1_qnost")
    st3(); st3.flush(16, 32)
    A.label("K1_qnost")
    GS(A, 3)
    A("s_waitcnt vmcnt(0)\ns_barrier")
    srd(A, 12, 32, SZ_FQ, WS_FQ)
    A("s_lshl_b32 s20, s48, 6\ns_lshl_b32 s21, s49, 3\ns_add_u32 s20, s20, s21")
    A("s_branch K1_flag")
    A.label("K1_ztype")
    A("s_and_b32 s48, s40, 1\ns_lshl_b32 s48, s48, 4\ns_and_b32 s42, s41, 15\ns_add_u32 s48, s48, s42\ns_lshr_b32 s49, s40, 1")
    A("s_and_b32 s28, s42, 3")
    rot_table(A)
    A(f"s_mul_i32 s17, s48, {64*1280}")
    A("s_mul_i32 s19, s49, 384\ns_add_u32 s18, s19, 1536")
    A("s_cmp_lt_u32 s16, 4\ns_cbranch_scc1 K1_zcomp")
    srd(A, 4, 30, 2048*640*2); srd(A, 8, 36, 640*1536*2)
    k1_loader_z(A)
    A("s_waitcnt vmcnt(0)")
    k1_pack_store(A)
    z_gate_compute(A); z_gate_store(A)
    A("s_branch K1_znost")
    A.label("K1_zcomp")
    st2 = Stamps(A, 0, 1); st2()
    A(f"s_lshr_b32 s20, s16, 1\ns_lshl_b32 s20, s20, 2\ns_add_u32 s20, s20, {ZFLG + 16}\nv_mov_b32 v14, s20\nv_mov_b32 v15, 0\nds_write_b32 v14, v15")
    k1_compute_z(A, st2)
    if O.stamp:
        A("s_cmp_ge_u32 s16, 4\ns_cbranch_scc1 K1_znost")
    st2(); st2.flush(16, 32)
    A.label("K1_znost")
    GS(A, 3)
    A("s_waitcnt vmcnt(0)\ns_barrier")
    srd(A, 12, 32, SZ_FZ, WS_FZ)
    A("s_lshr_b32 s20, s49, 1\ns_lshl_b32 s21, s48, 2\ns_add_u32 s20, s20, s21\ns_lshl_b32 s20, s20, 3")
    A.label("K1_flag")
    A("s_cmp_lg_u32 s16, 0\ns_cbranch_scc1 K1_done")
    A("s_add_u32 s21, s98, 1\nv_mov_b32 v8, s21\nv_mov_b32 v9, s99\nv_mov_b32 v10, s20")
    A("s_mov_b64 exec, 1")
    A("buffer_store_dwordx2 v[8:9], v10, s[12:15], 0 offen sc1")
    A("s_mov_b64 exec, -1")
    A.label("K1_done")
    GS(A, 4)
    return name, 256, 512, 155648 + 64, 256

SLOT = 20480
class E2:
    def __init__(self, A, pfx, NT, nsteps, pitchP, wave_m, wave_n, NS=6):
        self.A = A; self.pfx = pfx; self.NT = NT; self.n = nsteps; self.pitchP = pitchP
        self.mP = wave_m; self.nT = wave_n; self.NS = NS
        self.F = [8, 8 + 8*(wave_m + wave_n)]
        self.ACC = 8 + 16*(wave_m + wave_n)
        self.vend = self.ACC + 4*wave_m*wave_n
    def fP(self, s, kk, m): return self.F[s] + 4*(kk*(self.mP+self.nT) + m)
    def fT(self, s, kk, t): return self.F[s] + 4*(kk*(self.mP+self.nT) + self.mP + t)
    def acc(self, m, t): return self.ACC + 4*(m*self.nT + t)
    def loader_setup(self):
        A = self.A
        A("s_sub_u32 s21, s16, 4")
        A("v_lshrrev_b32 v7, 3, v0\nv_and_b32 v2, 7, v0\nv_xor_b32 v2, v2, v7")
        A(f"s_mov_b32 s20, {self.pitchP}\nv_mul_lo_u32 v7, v7, s20\nv_lshl_add_u32 v2, v2, 4, v7\nv_lshlrev_b32 v3, 4, v0")
        A(f"s_mul_i32 s20, s21, {16*self.pitchP}\ns_add_u32 s23, s17, s20")
        A("s_mul_i32 s20, s21, 3072\ns_add_u32 s24, s18, s20\ns_add_u32 s26, s20, 8192\ns_lshl_b32 s27, s21, 11")
        A("s_mov_b32 s28, 0\ns_mov_b32 s29, 0")
        if 2*self.NT < 12:
            A(f"s_mul_i32 s20, s21, 3\ns_cmp_ge_u32 s20, {2*self.NT - 1}\ns_cselect_b32 s28, {KILL}, 0\ns_cmp_ge_u32 s20, {2*self.NT - 2}\ns_cselect_b32 s29, {KILL}, 0")
        A("s_mov_b32 s22, 0")
    def issue(self):
        A = self.A
        A("s_add_u32 m0, s22, s27")
        A(f"s_add_u32 s20, s23, {8*self.pitchP - 1024}")
        A("buffer_load_dwordx4 v2, s[4:7], s23 offen lds")
        A("buffer_load_dwordx4 v2, s[4:7], s20 offen offset:1024 lds")
        A("s_add_u32 m0, s22, s26")
        if 2*self.NT < 12:
            A("s_add_u32 s25, s24, s28\ns_add_u32 s15, s24, s29")
            A("buffer_load_dwordx4 v3, s[8:11], s24 offen lds")
            A("buffer_load_dwordx4 v3, s[8:11], s25 offen offset:1024 lds")
            A("buffer_load_dwordx4 v3, s[8:11], s15 offen offset:2048 lds")
        else:
            A(f"buffer_load_dwordx4 v3, s[8:11], s24 offen{O.xl} lds")
            A(f"buffer_load_dwordx4 v3, s[8:11], s24 offen offset:1024{O.xl} lds")
            A(f"buffer_load_dwordx4 v3, s[8:11], s24 offen offset:2048{O.xl} lds")
        A(f"s_add_u32 s23, s23, 128\ns_add_u32 s24, s24, {self.NT*2048}")
        A(f"s_add_u32 s22, s22, {SLOT}\ns_cmp_eq_u32 s22, {self.NS*SLOT}\ns_cselect_b32 s22, 0, s22")
    def loader_main(self, pre_issued):
        A = self.A; NS = self.NS; n = self.n
        for i in range(pre_issued, NS - 1): self.issue()
        A(f"s_waitcnt vmcnt({(NS - 2)*5})")
        A("s_barrier")
        self.issue()
        L = self.pfx + "_lloop"
        A("s_mov_b32 s14, 0")
        A.label(L)
        A(f"s_waitcnt vmcnt({(NS-2)*5})\ns_barrier")
        self.issue()
        A(f"s_add_u32 s14, s14, 1\ns_cmp_lt_u32 s14, {n - NS}\ns_cbranch_scc1 {L}")
        for t in range(NS):
            i = n - NS + t
            rem = max(0, (n - 1) - (i + 1))
            A(f"s_waitcnt vmcnt({rem*5})\ns_barrier")
    def compute_setup(self, s_row, s_tile):
        A = self.A
        A("v_and_b32 v4, 15, v0\nv_lshrrev_b32 v5, 4, v0\nv_and_b32 v6, 7, v4\nv_xor_b32 v5, v5, v6\nv_lshlrev_b32 v4, 7, v4\nv_lshl_add_u32 v4, v5, 4, v4")
        A(f"s_lshl_b32 s20, s{s_row}, 7\nv_add_u32 v2, s20, v4\nv_xor_b32 v3, 64, v2")
        A("v_and_b32 v6, 15, v0\nv_lshlrev_b32 v6, 3, v6\nv_and_b32 v7, 16, v0\nv_lshl_add_u32 v6, v7, 3, v6\nv_and_b32 v7, 32, v0\nv_lshl_add_u32 v6, v7, 4, v6")
        A(f"s_lshl_b32 s20, s{s_tile}, 11\ns_add_u32 s20, s20, 8192\nv_add_u32 v4, s20, v6")
        A(f"v_add_u32 v5, {3*SLOT}, v2\nv_add_u32 v6, {3*SLOT}, v3\nv_add_u32 v7, {3*SLOT}, v4")
        for i in range(self.ACC, self.vend): A(f"v_mov_b32 v{i}, 0")
    def reads(self, step):
        s = step & 1; sl = step % self.NS; hi = 3 if sl >= 3 else 0; so = (sl - hi)*SLOT
        b = 3 if hi else 0
        r = []
        for kk in range(2):
            for m in range(self.mP):
                f = self.fP(s, kk, m); r.append(f"ds_read_b128 v[{f}:{f+3}], v{2+kk+b} offset:{so + m*2048}")
            for t in range(self.nT):
                f = self.fT(s, kk, t)
                for h in range(2): r.append(f"ds_read_b64_tr_b16 v[{f+2*h}:{f+2*h+1}], v{4+b} offset:{so + t*2048 + kk*1024 + h*256}")
        return r
    def step(self, i, last=False):
        A = self.A; s = i & 1
        rd = [] if last else self.reads(i + 1)
        mf = [f"v_mfma_f32_16x16x32_bf16 v[{self.acc(m,t)}:{self.acc(m,t)+3}], v[{self.fT(s,kk,t)}:{self.fT(s,kk,t)+3}], v[{self.fP(s,kk,m)}:{self.fP(s,kk,m)+3}], v[{self.acc(m,t)}:{self.acc(m,t)+3}]"
              for kk in range(2) for m in range(self.mP) for t in range(self.nT)]
        A("s_barrier")
        per = (len(rd) + len(mf) - 1)//len(mf) if rd else 0
        for x in mf:
            for _ in range(per):
                if rd: A(rd.pop(0))
            A(x)
        A("s_waitcnt lgkmcnt(0)")
    def compute(self, st, unroll=False, hooks=None):
        A = self.A; NS = self.NS; n = self.n
        assert NS % 2 == 0
        A("s_barrier")
        for x in self.reads(0): A(x)
        A("s_waitcnt lgkmcnt(0)")
        st()
        if unroll:
            for i in range(n):
                self.step(i, last=(i == n - 1))
                if hooks and i in hooks: hooks[i]()
            return
        nfull = (n - 1)//NS
        L = self.pfx + "_cloop"
        A("s_mov_b32 s19, 0")
        A.label(L)
        for i in range(NS): self.step(i)
        A(f"s_add_u32 s19, s19, 1\ns_cmp_lt_u32 s19, {nfull}\ns_cbranch_scc1 {L}")
        for i in range(nfull*NS, n): self.step(i, last=(i == n - 1))

def tile_map(A):
    A("s_and_b32 s42, s2, 7\ns_lshr_b32 s43, s2, 3\ns_lshr_b32 s40, s42, 1\ns_lshl_b32 s40, s40, 3\ns_and_b32 s44, s43, 7\ns_add_u32 s40, s40, s44")
    A("s_and_b32 s41, s42, 1\ns_lshl_b32 s41, s41, 2\ns_lshr_b32 s44, s43, 3\ns_add_u32 s41, s41, s44")

ATT_LDS = 6*SLOT
def attention_regs(V):
    R = dict(aQ=V+1, aK=V+2, aV=V+3, t0=V+4, t1=V+5, t2=V+6, M20=V+7, M21=V+8, N20=V+9, N21=V+10)
    S = (V + 12 + 3)//4*4
    R.update(S=S, QF=S+12, KF=S+22, VF=S+52, OO=(S+82+3)//4*4)
    return R
def attention_prep(A, V, s_off):
    R = attention_regs(V); aQ, aK, aV, t0, t1, t2 = R['aQ'], R['aK'], R['aV'], R['t0'], R['t1'], R['t2']
    M20, M21, N20, N21, S, OO = R['M20'], R['M21'], R['N20'], R['N21'], R['S'], R['OO']
    A(f"v_lshrrev_b32 v{t0}, 3, v0\nv_lshlrev_b32 v{t0}, 2, v{t0}\nv_and_b32 v{t1}, 3, v0\nv_add_u32 v{t0}, v{t0}, v{t1}")
    A(f"v_lshrrev_b32 v{t1}, 2, v0\nv_and_b32 v{t1}, 1, v{t1}\nv_lshl_add_u32 v{t0}, v{t0}, 1, v{t1}")
    A(f"v_mul_u32_u24 v{t0}, {QP}, v{t0}\nv_add_u32 v{aK}, s{s_off}, v{t0}\nv_add_u32 v{aQ}, {16*QP}, v{aK}")
    A(f"v_lshrrev_b32 v{t1}, 4, v0\nv_lshlrev_b32 v{t1}, 2, v{t1}\nv_and_b32 v{t2}, 3, v0\nv_add_u32 v{t1}, v{t1}, v{t2}")
    A(f"v_lshrrev_b32 v{t2}, 1, v{t1}\nv_lshlrev_b32 v{t2}, 2, v{t2}\nv_and_b32 v{t1}, 1, v{t1}")
    A(f"v_lshrrev_b32 v{aV}, 2, v0\nv_and_b32 v{aV}, 3, v{aV}\nv_add_u32 v{aV}, v{aV}, v{t2}\nv_lshl_add_u32 v{aV}, v{aV}, 1, v{t1}")
    A(f"v_mul_u32_u24 v{aV}, {QP}, v{aV}\nv_add_u32 v{aV}, s{s_off}, v{aV}")
    A(f"v_and_b32 v{t1}, 3, v0")
    A(f"v_mov_b32 v{M20}, 0xffff\nv_mov_b32 v{t2}, -1\nv_cmp_le_u32 vcc, 1, v{t1}\nv_cndmask_b32 v{M20}, v{M20}, v{t2}, vcc")
    A(f"v_mov_b32 v{M21}, 0\nv_mov_b32 v{t2}, 0xffff\nv_cmp_le_u32 vcc, 2, v{t1}\nv_cndmask_b32 v{M21}, v{M21}, v{t2}, vcc")
    A(f"v_mov_b32 v{t2}, -1\nv_cmp_eq_u32 vcc, 3, v{t1}\nv_cndmask_b32 v{M21}, v{M21}, v{t2}, vcc")
    A(f"v_not_b32 v{N20}, v{M20}\nv_not_b32 v{N21}, v{M21}")
    for i in range(12): A(f"v_mov_b32 v{S+i}, 0")
    for i in range(20): A(f"v_mov_b32 v{OO+i}, 0")
    A("s_mov_b32 s22, 0xeeeeeeee\ns_mov_b32 s23, 0xeeeeeeee\ns_mov_b32 s24, 0xcccccccc\ns_mov_b32 s25, 0xcccccccc\ns_mov_b32 s26, 0x88888888\ns_mov_b32 s27, 0x88888888")
def attention_main(A, V, s_bound):
    R = attention_regs(V); aQ, aK, aV, t0, t1, t2 = R['aQ'], R['aK'], R['aV'], R['t0'], R['t1'], R['t2']
    M20, M21, N20, N21, S, QF, KF, VF, OO = R['M20'], R['M21'], R['N20'], R['N21'], R['S'], R['QF'], R['KF'], R['VF'], R['OO']
    for dg in range(5):
        A(f"ds_read_b64 v[{QF+2*dg}:{QF+2*dg+1}], v{aQ} offset:{8*dg}")
        for c in range(3): A(f"ds_read_b64 v[{KF+2*(5*c+dg)}:{KF+2*(5*c+dg)+1}], v{aK} offset:{8*c*QP + 160 + 8*dg}")
    for dg in range(5):
        if dg == 0:
            A("s_waitcnt lgkmcnt(15)")
        rem = 20 - 4*(dg+1)
        A(f"s_waitcnt lgkmcnt({min(rem, 15)})")
        for c in range(3):
            A(f"v_mfma_f32_4x4x4_16b_bf16 v[{S+4*c}:{S+4*c+3}], v[{KF+2*(5*c+dg)}:{KF+2*(5*c+dg)+1}], v[{QF+2*dg}:{QF+2*dg+1}], v[{S+4*c}:{S+4*c+3}]")
    for c in range(3):
        for dg in range(5): A(f"ds_read_b64_tr_b16 v[{VF+2*(5*c+dg)}:{VF+2*(5*c+dg)+1}], v{aV} offset:{8*c*QP + 320 + 8*dg}")
    Lb = A.newlabel("att_nomask")
    A(f"s_cmp_lg_u32 s{s_bound}, 0\ns_cbranch_scc1 {Lb}")
    A(f"v_mov_b32 v{t2}, {f2u(-1e30)}")
    A("v_cmp_gt_u32 vcc, 16, v0")
    for i in range(4): A(f"v_cndmask_b32 v{S+i}, v{S+i}, v{t2}, vcc")
    A("v_cmp_gt_u32 vcc, 8, v0")
    for i in range(4): A(f"v_cndmask_b32 v{S+4+i}, v{S+4+i}, v{t2}, vcc")
    A("s_nop 4")
    A.label(Lb)
    A("s_nop 4")
    for i in range(1, 4): A(f"v_cndmask_b32 v{S+8+i}, v{S+i}, v{S+8+i}, s[{20+2*i}:{21+2*i}]")
    vals = [S+4+i for i in range(8)]
    A(f"v_max3_f32 v{t0}, v{vals[0]}, v{vals[1]}, v{vals[2]}\nv_max3_f32 v{t1}, v{vals[3]}, v{vals[4]}, v{vals[5]}\nv_max3_f32 v{t0}, v{t0}, v{vals[6]}, v{vals[7]}\nv_max_f32 v{t0}, v{t0}, v{t1}")
    SC = (20 ** -0.5) * 1.4426950408889634
    A(f"s_mov_b32 s20, {f2u(SC)}")
    A(f"v_mul_f32 v{t0}, s20, v{t0}")
    for x in vals: A(f"v_fma_f32 v{x}, v{x}, s20, -v{t0}")
    for x in vals: A(f"v_exp_f32 v{x}, v{x}")
    A(f"v_add_f32 v{t0}, v{vals[0]}, v{vals[1]}\nv_add_f32 v{t1}, v{vals[2]}, v{vals[3]}\nv_add_f32 v{t2}, v{vals[4]}, v{vals[5]}\nv_add_f32 v{t0}, v{t0}, v{t1}")
    A(f"v_add_f32 v{t1}, v{vals[6]}, v{vals[7]}\nv_add_f32 v{t0}, v{t0}, v{t2}\nv_add_f32 v{t0}, v{t0}, v{t1}")
    A(f"v_rcp_f32 v{t0}, v{t0}")
    for x in vals: A(f"v_mul_f32 v{x}, v{x}, v{t0}")
    PP = QF
    A(f"v_cvt_pk_bf16_f32 v{PP+2}, v{S+4}, v{S+5}\nv_cvt_pk_bf16_f32 v{PP+3}, v{S+6}, v{S+7}")
    A(f"v_cvt_pk_bf16_f32 v{t1}, v{S+8}, v{S+9}\nv_cvt_pk_bf16_f32 v{t2}, v{S+10}, v{S+11}")
    A(f"v_and_b32 v{PP+4}, v{t1}, v{M20}\nv_and_b32 v{PP+5}, v{t2}, v{M21}\nv_and_b32 v{PP}, v{t1}, v{N20}\nv_and_b32 v{PP+1}, v{t2}, v{N21}")
    A("s_waitcnt lgkmcnt(0)")
    for c in (1, 0, 2):
        for dg in range(5):
            A(f"v_mfma_f32_4x4x4_16b_bf16 v[{OO+4*dg}:{OO+4*dg+3}], v[{VF+2*(5*c+dg)}:{VF+2*(5*c+dg)+1}], v[{PP+2*c}:{PP+2*c+1}], v[{OO+4*dg}:{OO+4*dg+3}]")
    for dg in range(5):
        A(f"v_cvt_pk_bf16_f32 v{KF+2*dg}, v{OO+4*dg}, v{OO+4*dg+1}\nv_cvt_pk_bf16_f32 v{KF+2*dg+1}, v{OO+4*dg+2}, v{OO+4*dg+3}")
    for dg in range(5): A(f"ds_write_b64 v{aQ}, v[{KF+2*dg}:{KF+2*dg+1}] offset:{8*dg}")

def k3(A):
    name = "k3_kernel"
    kernel_begin(A, name)
    A("s_cmp_ge_u32 s2, 256\ns_cbranch_scc1 K3_end")
    load_ptr(A, 30, 'wsp'); load_ptr(A, 32, 'ws'); load_ptr(A, 34, 'bsp')
    wave_lane(A, 16)
    tile_map(A)
    st = Stamps(A, 2); st()
    E = E2(A, "K3", 6, 32, 4096, 2, 3)
    A(f"s_mul_i32 s17, s40, {64*4096}\ns_mul_i32 s18, s41, {32*6*2048}")
    A("s_waitcnt lgkmcnt(0)")
    A("s_cmp_lt_u32 s16, 4\ns_cbranch_scc1 K3_comp")
    srd(A, 4, 30, 2048*2048*2); srd(A, 8, 32, SZ_Z2P, WS_Z2P)
    E.loader_setup()
    E.loader_main(0)
    A("s_branch K3_end")
    A.label("K3_comp")
    A("s_and_b32 s46, s16, 1\ns_lshl_b32 s46, s46, 5\ns_lshr_b32 s47, s16, 1\ns_mul_i32 s47, s47, 3")
    PF = 116
    srd(A, 4, 32, SZ_Z1, WS_Z1); srd(A, 8, 32, SZ_G, WS_G); srd(A, 12, 34, 2048*2)
    A("s_lshl_b32 s43, s40, 6\ns_add_u32 s43, s43, s46")
    A("v_and_b32 v112, 15, v0\nv_add_u32 v112, s43, v112\nv_lshrrev_b32 v113, 4, v0")
    A("s_lshr_b32 s48, s43, 5\ns_mul_i32 s48, s48, 48\ns_mul_i32 s49, s41, 6\ns_add_u32 s48, s48, s49\ns_add_u32 s48, s48, s47\ns_lshl_b32 s48, s48, 10")
    A("v_lshlrev_b32 v114, 4, v0")
    for t in range(3): A(f"buffer_load_dwordx4 v[{PF+4*t}:{PF+4*t+3}], v114, s[4:7], s48 offen offset:{t*1024}")
    A("v_lshlrev_b32 v115, 2, v112")
    A(f"buffer_load_dword v{PF+12}, v115, s[8:11], 0 offen\nbuffer_load_dword v{PF+13}, v115, s[8:11], 0 offen offset:64")
    A("v_lshlrev_b32 v115, 1, v112")
    A(f"buffer_load_ushort v{PF+14}, v115, s[12:15], 0 offen\nbuffer_load_ushort v{PF+15}, v115, s[12:15], 0 offen offset:32")
    E.compute_setup(46, 47)
    st()
    E.compute(st)
    st()
    A("s_waitcnt vmcnt(0)")
    srd(A, 12, 32, SZ_AU, WS_AU)
    for m in range(2): A(f"v_lshlrev_b32 v{PF+14+m}, 16, v{PF+14+m}\nv_sub_f32 v{PF+12+m}, 1.0, v{PF+12+m}")
    T = 132
    for m in range(2):
        for t in range(3):
            ac = E.acc(m, t)
            for q in range(2):
                z = PF + 4*t + 2*m + q
                A(f"v_lshlrev_b32 v{T}, 16, v{z}\nv_and_b32 v{T+1}, 0xffff0000, v{z}")
                A(f"v_add_f32 v{T+2}, v{ac+2*q}, v{PF+14+m}\nv_add_f32 v{T+3}, v{ac+2*q+1}, v{PF+14+m}")
                A(f"v_mul_f32 v{T}, v{T}, v{PF+12+m}\nv_mul_f32 v{T+1}, v{T+1}, v{PF+12+m}")
                A(f"v_mul_f32 v{T+2}, v{T+2}, v{T}\nv_mul_f32 v{T+3}, v{T+3}, v{T+1}")
                A(f"v_cvt_pk_bf16_f32 v{z}, v{T+2}, v{T+3}")
    A("s_mov_b32 s45, 2816\nv_mul_lo_u32 v114, v112, s45\nv_lshl_add_u32 v114, v113, 3, v114")
    A("s_mul_i32 s48, s41, 192\ns_lshl_b32 s49, s47, 5\ns_add_u32 s48, s48, s49\ns_add_u32 s48, s48, 1280\nv_add_u32 v114, s48, v114")
    A(f"s_mov_b32 s49, {16*2816}")
    for m in range(2):
        for t in range(3):
            z = PF + 4*t + 2*m
            A(f"buffer_store_dwordx2 v[{z}:{z+1}], v114, s[12:15], {'s49' if m else '0'} offen offset:{t*32}")
    st(); st.flush(16, 32)
    A.label("K3_end")
    A("s_endpgm")
    return name, 256, 512, 6*SLOT, 140

def k4(A):
    name = "k4_kernel"
    kernel_begin(A, name)
    A("s_cmp_ge_u32 s2, 256\ns_cbranch_scc1 K4_end")
    load_ptr(A, 30, 'out'); load_ptr(A, 32, 'ws')
    wave_lane(A, 16)
    tile_map(A)
    st = Stamps(A, 3); st()
    E = E2(A, "K4", 5, 22, 2816, 1, 5)
    A(f"s_mul_i32 s17, s40, {64*2816}\ns_mul_i32 s18, s41, {22*5*2048}")
    A("s_waitcnt lgkmcnt(0)")
    A("s_cmp_lt_u32 s16, 4\ns_cbranch_scc1 K4_comp")
    srd(A, 4, 32, SZ_AU, WS_AU); srd(A, 8, 32, SZ_WP, WS_WP)
    E.loader_setup()
    E.loader_main(0)
    A("s_branch K4_end")
    A.label("K4_comp")
    A("s_lshl_b32 s46, s16, 4\ns_mov_b32 s47, 0")
    srd(A, 8, 32, SZ_G, WS_G)
    A("s_lshl_b32 s43, s40, 6\ns_add_u32 s43, s43, s46\nv_and_b32 v126, 15, v0\nv_add_u32 v126, s43, v126\nv_lshlrev_b32 v126, 2, v126")
    A("buffer_load_dword v125, v126, s[8:11], 0 offen")
    E.compute_setup(46, 47)
    st()
    def scale():
        A("s_waitcnt vmcnt(0)")
        for t in range(5):
            for r in range(4): A(f"v_mul_f32 v{E.acc(0,t)+r}, v{E.acc(0,t)+r}, v125")
    E.compute(st, unroll=True, hooks={9: scale})
    st()
    A("s_lshl_b32 s43, s40, 6\ns_add_u32 s43, s43, s46\nv_and_b32 v2, 15, v0\nv_add_u32 v2, s43, v2\nv_lshrrev_b32 v3, 4, v0")
    srd(A, 12, 30, 2048*640*2)
    PK = 8
    for t in range(5):
        ac = E.acc(0, t)
        A(f"v_cvt_pk_bf16_f32 v{PK+2*t}, v{ac}, v{ac+1}\nv_cvt_pk_bf16_f32 v{PK+2*t+1}, v{ac+2}, v{ac+3}")
    A("s_mov_b32 s45, 1280\nv_mul_lo_u32 v4, v2, s45\nv_lshl_add_u32 v4, v3, 3, v4\ns_mul_i32 s46, s41, 160\nv_add_u32 v4, s46, v4")
    for t in range(5): A(f"buffer_store_dwordx2 v[{PK+2*t}:{PK+2*t+1}], v4, s[12:15], 0 offen offset:{t*32}")
    st(); st.flush(16, 32)
    A.label("K4_end")
    A("s_endpgm")
    return name, 256, 512, 6*SLOT, 128

def k34(A):
    name = "k34_kernel"
    NS = 6; N1 = 32; N2 = 22; N = N1 + N2
    USTG = NS*SLOT
    LCNT = USTG + 64*208
    load_ptr(A, 30, 'wsp'); load_ptr(A, 34, 'bsp'); load_ptr(A, 36, 'out'); load_ptr(A, 38, 'dbg')
    tile_map(A)
    hd_start(A)
    st = Stamps(A, 2); st()
    E1 = E2(A, "K34a", 6, N1, 4096, 2, 3)
    def wait_zflags(tag, va, vd):
        srd(A, 12, 32, SZ_FZ, WS_FZ)
        A(f"v_lshlrev_b32 v{va}, 4, v0\ns_add_u32 s45, s98, 1\ns_mov_b32 s47, 0")
        A.label(f"K34_zp{tag}")
        A(f"buffer_load_dwordx4 v[{vd}:{vd+3}], v{va}, s[12:15], 0 offen sc1\ns_waitcnt vmcnt(0)")
        A(f"v_xor_b32 v{vd}, s45, v{vd}\nv_xor_b32 v{vd+1}, s99, v{vd+1}\nv_xor_b32 v{vd+2}, s45, v{vd+2}\nv_xor_b32 v{vd+3}, s99, v{vd+3}")
        A(f"v_or3_b32 v{vd}, v{vd}, v{vd+1}, v{vd+2}\nv_or_b32 v{vd}, v{vd}, v{vd+3}\nv_cmp_ne_u32 vcc, 0, v{vd}\ns_add_u32 s47, s47, 1\ns_nop 3")
        A(f"s_cbranch_vccz K34_zok{tag}\ns_sleep {O.sleep}\ns_cmp_lt_u32 s47, 0x10000\ns_cbranch_scc1 K34_zp{tag}")
        A.label(f"K34_zok{tag}")
    A("s_waitcnt lgkmcnt(0)")
    A("s_cmp_lt_u32 s16, 4\ns_cbranch_scc1 K34_comp")
    srd(A, 4, 30, 2048*2048*2); srd(A, 8, 32, SZ_Z2P, WS_Z2P)
    A(f"s_mul_i32 s17, s40, {64*4096}\ns_mul_i32 s18, s41, {32*6*2048}")
    E1.loader_setup()
    A("v_lshrrev_b32 v7, 3, v0\nv_and_b32 v4, 7, v0\nv_xor_b32 v4, v4, v7\nv_mul_u32_u24 v7, 2816, v7\nv_lshl_add_u32 v4, v4, 4, v7")
    A("v_lshrrev_b32 v7, 3, v0\nv_and_b32 v5, 7, v0\nv_xor_b32 v5, v5, v7\nv_mul_u32_u24 v7, 384, v7\nv_lshl_add_u32 v10, v5, 4, v7")
    for i in range(NS - 1):
        A(f"s_add_u32 m0, s27, {i*SLOT}\ns_add_u32 s20, s23, {i*128}\ns_add_u32 s25, s23, {i*128 + 8*4096 - 1024}")
        A("buffer_load_dwordx4 v2, s[4:7], s20 offen lds\nbuffer_load_dwordx4 v2, s[4:7], s25 offen offset:1024 lds")
    A("s_cmp_lg_u32 s16, 4\ns_cbranch_scc1 K34_lf")
    srd(A, 12, 32, SZ_FZ2, WS_FZ2)
    A("s_lshl_b32 s46, s41, 8\nv_and_b32 v14, 31, v0\nv_lshlrev_b32 v14, 3, v14\nv_add_u32 v14, s46, v14\ns_add_u32 s45, s98, 1\ns_mov_b32 s47, 0")
    A.label("K34_zpL")
    A("buffer_load_dwordx2 v[16:17], v14, s[12:15], 0 offen sc1\ns_waitcnt vmcnt(0)")
    A("v_xor_b32 v16, s45, v16\nv_xor_b32 v17, s99, v17\nv_or_b32 v16, v16, v17\nv_cmp_ne_u32 vcc, 0, v16\ns_add_u32 s47, s47, 1\ns_nop 3")
    A(f"s_cbranch_vccz K34_lf\ns_sleep {O.sleep2}\ns_cmp_lt_u32 s47, 0x10000\ns_cbranch_scc1 K34_zpL")
    A.label("K34_lf")
    A("s_barrier")
    for i in range(NS - 1):
        A(f"s_add_u32 m0, s26, {i*SLOT}\ns_add_u32 s20, s24, {i*6*2048}")
        for q in range(3): A(f"buffer_load_dwordx4 v3, s[8:11], s20 offen offset:{q*1024}{O.xl} lds")
    A(f"s_add_u32 s23, s23, {(NS-1)*128}\ns_add_u32 s24, s24, {(NS-1)*6*2048}\ns_mov_b32 s22, {(NS-1)*SLOT}")
    A(f"s_waitcnt vmcnt({(NS - 2)*3})\ns_barrier")
    E1.issue()
    for i in range(NS - 2):
        rem = (NS - 2 - (i + 1))*3 + (i + 1)*5
        A(f"s_waitcnt vmcnt({rem})\ns_barrier")
        E1.issue()
    def issue_static(slot):
        A(f"s_add_u32 m0, s27, {slot*SLOT}\ns_add_u32 s20, s23, {8*4096 - 1024}")
        A("buffer_load_dwordx4 v2, s[4:7], s23 offen lds")
        A("buffer_load_dwordx4 v2, s[4:7], s20 offen offset:1024 lds")
        A(f"s_add_u32 m0, s26, {slot*SLOT}\ns_add_u32 s23, s23, 128")
        for q in range(3): A(f"buffer_load_dwordx4 v3, s[8:11], s24 offen offset:{q*1024}{O.xl} lds")
        A(f"s_add_u32 s24, s24, {6*2048}")
    def lstep(i):
        A(f"s_waitcnt vmcnt({(NS-2)*5})\ns_barrier")
        issue_static((i + NS) % NS)
    for i in (4, 5): lstep(i)
    A("s_mov_b32 s14, 0")
    A.label("K34_lloop")
    for i in range(6, 12): lstep(i)
    A("s_add_u32 s14, s14, 1\ns_cmp_lt_u32 s14, 3\ns_cbranch_scc1 K34_lloop")
    for i in (24, 25): lstep(i)
    srd(A, 4, 32, SZ_AU, WS_AU); srd(A, 8, 32, SZ_WP, WS_WP); srd(A, 12, 32, SZ_FL, WS_FL)
    A(f"s_mul_i32 s17, s40, {64*2816}\ns_mul_i32 s20, s21, {16*2816}\ns_add_u32 s23, s17, s20")
    A(f"s_mul_i32 s18, s41, {22*5*2048}\ns_mul_i32 s20, s21, 3072\ns_add_u32 s24, s18, s20")
    A(f"s_mul_i32 s20, s21, 3\ns_cmp_ge_u32 s20, 9\ns_cselect_b32 s28, {KILL}, 0\ns_cmp_ge_u32 s20, 8\ns_cselect_b32 s29, {KILL}, 0")
    A("s_lshl_b32 s44, s40, 7\nv_and_b32 v8, 7, v0\nv_lshlrev_b32 v8, 3, v8\nv_add_u32 v8, s44, v8\ns_add_u32 s53, s98, 1")
    srd(A, 48, 32, SZ_U, WS_U)
    A(f"s_mul_i32 s52, s40, {4*24576}\ns_mul_i32 s20, s21, {16*384}\ns_add_u32 s52, s52, s20")
    issued = [('S', s) for s in range(N1 - NS + 2 - 1, N1) for _ in range(5)]
    def issueP(s):
        sl = s % NS; s2_ = s - N1
        fl = " sc1" if (s2_ >= 10 and O.usc1) else ""
        A(f"s_add_u32 m0, s27, {sl*SLOT}")
        if s2_ < 10:
            A(f"s_add_u32 s20, s23, {s2_*128}\ns_add_u32 s25, s23, {s2_*128 + 8*2816 - 1024}")
            A(f"buffer_load_dwordx4 v4, s[4:7], s20 offen{O.xl} lds")
            A(f"buffer_load_dwordx4 v4, s[4:7], s25 offen offset:1024{O.xl} lds")
        else:
            a_, b_ = divmod(s2_ - 10, 3)
            A(f"s_add_u32 s20, s52, {a_*24576 + b_*128}\ns_add_u32 s25, s52, {a_*24576 + b_*128 + 8*384 - 1024}")
            A(f"buffer_load_dwordx4 v10, s[48:51], s20 offen{fl} lds")
            A(f"buffer_load_dwordx4 v10, s[48:51], s25 offen offset:1024{fl} lds")
        issued.extend([('P', s)]*2)
    def issueT(s):
        sl = s % NS; s2_ = s - N1
        A(f"s_add_u32 m0, s26, {sl*SLOT}")
        A(f"s_add_u32 s20, s24, {s2_*10240}\ns_add_u32 s25, s20, s28\ns_add_u32 s45, s20, s29")
        A(f"buffer_load_dwordx4 v3, s[8:11], s20 offen{O.xl} lds")
        A(f"buffer_load_dwordx4 v3, s[8:11], s25 offen offset:1024{O.xl} lds")
        A(f"buffer_load_dwordx4 v3, s[8:11], s45 offen offset:2048{O.xl} lds")
        issued.extend([('T', s)]*3)
    def wait_for(needs):
        last = -1
        for idx, tg in enumerate(issued):
            if tg in needs: last = idx
        if last < 0: return
        A(f"s_waitcnt vmcnt({min(len(issued) - 1 - last, 63)})")
    FIRSTU = N1 + 10
    POLL_I = O.poll_i
    deferred = []
    gate_open = False
    for i in range(N1 - NS, N):
        nxt = i + 1
        if nxt < N:
            wait_for([('S', nxt), ('P', nxt), ('T', nxt)])
        A("s_barrier")
        if i == POLL_I + 1:
            wait_for([('X', 0)])
            A("v_xor_b32 v12, s53, v12\nv_xor_b32 v13, s99, v13\nv_or_b32 v12, v12, v13\nv_cmp_ne_u32 vcc, 0, v12\ns_nop 4")
            A("s_cbranch_vccz K34_ready")
            A("s_mov_b32 s47, 0")
            A.label("K34_poll")
            A(f"s_sleep {O.sleep}")
            A("buffer_load_dwordx2 v[12:13], v8, s[12:15], 0 offen sc1")
            A("s_waitcnt vmcnt(0)")
            A("v_xor_b32 v12, s53, v12\nv_xor_b32 v13, s99, v13\nv_or_b32 v12, v12, v13\nv_cmp_ne_u32 vcc, 0, v12")
            A("s_add_u32 s47, s47, 1\ns_nop 3")
            A("s_cbranch_vccz K34_ready")
            A("s_cmp_lt_u32 s47, 0x40000\ns_cbranch_scc1 K34_poll")
            A.label("K34_ready")
            gate_open = True
            for s in deferred: issueP(s)
            deferred = []
        s = i + NS
        if s < N:
            issueT(s)
            if s >= FIRSTU and not gate_open: deferred.append(s)
            else: issueP(s)
        if i == POLL_I:
            A("buffer_load_dwordx2 v[12:13], v8, s[12:15], 0 offen sc1")
            issued.append(('X', 0))
    assert not deferred
    A("s_branch K34_end")
    A.label("K34_comp")
    A("s_and_b32 s46, s16, 1\ns_lshl_b32 s46, s46, 5\ns_lshr_b32 s47, s16, 1\ns_mul_i32 s47, s47, 3")
    PF = 116
    C1R = 212
    C1R = 140
    C1R = 188
    BB = 132
    A("s_and_b32 s46, s16, 1\ns_lshl_b32 s46, s46, 5\ns_lshr_b32 s47, s16, 1\ns_mul_i32 s47, s47, 3")
    COA = 88
    A(f"s_mov_b32 s53, {USTG}")
    A(f"v_mov_b32 v138, {LCNT}\nv_mov_b32 v139, 0\nds_write_b32 v138, v139")
    E1.compute_setup(46, 47)
    E2b = E2(A, "K34b", 5, N2, 2816, 1, 5)
    E2b.F = [140, 188]; E2b.ACC = 236; E2b.vend = 256
    st()
    LA = [128, 129, 130]; GA = [131, 138, 139]
    def late_flag_setup():
        srd(A, 12, 32, SZ_FZ, WS_FZ); srd(A, 4, 32, SZ_FQ, WS_FQ)
        A("v_lshlrev_b32 v112, 4, v0")
        A("s_lshr_b32 s48, s40, 1\ns_lshl_b32 s48, s48, 6\nv_and_b32 v113, 7, v0\nv_lshlrev_b32 v113, 3, v113\nv_add_u32 v113, s48, v113")
    def late_flag_issue():
        A("buffer_load_dwordx4 v[116:119], v112, s[12:15], 0 offen sc1")
        A("buffer_load_dwordx2 v[120:121], v113, s[4:7], 0 offen sc1")
    def late_flag_check():
        A("s_add_u32 s45, s98, 1\ns_mov_b32 s49, 0")
        A.label("K34_lc")
        A("s_waitcnt vmcnt(0)")
        A("v_xor_b32 v116, s45, v116\nv_xor_b32 v117, s99, v117\nv_xor_b32 v118, s45, v118\nv_xor_b32 v119, s99, v119\nv_xor_b32 v120, s45, v120\nv_xor_b32 v121, s99, v121")
        A("v_or3_b32 v116, v116, v117, v118\nv_or3_b32 v116, v116, v119, v120\nv_or_b32 v116, v116, v121\nv_cmp_ne_u32 vcc, 0, v116\ns_add_u32 s49, s49, 1\ns_nop 3")
        A("s_cbranch_vccz K34_lcok\ns_cmp_ge_u32 s49, 0x10000\ns_cbranch_scc1 K34_lcok")
        A("buffer_load_dwordx4 v[116:119], v112, s[12:15], 0 offen sc1\nbuffer_load_dwordx2 v[120:121], v113, s[4:7], 0 offen sc1\ns_branch K34_lc")
        A.label("K34_lcok")
    def late_loads():
        srd(A, 4, 32, SZ_Z1, WS_Z1); srd(A, 8, 32, SZ_G, WS_G); srd(A, 12, 34, 2048*2)
        A("s_lshl_b32 s43, s40, 6\ns_add_u32 s43, s43, s46")
        A("v_and_b32 v112, 15, v0\nv_add_u32 v112, s43, v112\nv_lshrrev_b32 v113, 4, v0")
        A("s_lshr_b32 s48, s43, 5\ns_mul_i32 s48, s48, 48\ns_mul_i32 s49, s41, 6\ns_add_u32 s48, s48, s49\ns_add_u32 s48, s48, s47\ns_lshl_b32 s48, s48, 10")
        A("v_lshlrev_b32 v114, 4, v0")
        for t in range(3): A(f"buffer_load_dwordx4 v[{PF+4*t}:{PF+4*t+3}], v114, s[4:7], s48 offen offset:{t*1024} sc1")
        A("v_lshlrev_b32 v115, 2, v112")
        A(f"buffer_load_dword v{PF+12}, v115, s[8:11], 0 offen sc1\nbuffer_load_dword v{PF+13}, v115, s[8:11], 0 offen offset:64 sc1")
        A("v_lshlrev_b32 v115, 1, v112")
        A(f"buffer_load_ushort v{PF+14}, v115, s[12:15], 0 offen\nbuffer_load_ushort v{PF+15}, v115, s[12:15], 0 offen offset:32")
        A("s_lshl_b32 s50, s40, 6\ns_lshl_b32 s51, s16, 4\ns_add_u32 s50, s50, s51\nv_and_b32 v137, 15, v0\nv_add_u32 v137, s50, v137\nv_lshlrev_b32 v138, 2, v137")
        A("buffer_load_dword v136, v138, s[8:11], 0 offen sc1")
    def late_pre():
        A("s_waitcnt vmcnt(0)")
        for m in range(2):
            A(f"v_lshlrev_b32 v{BB+2*m}, 16, v{PF+14+m}\nv_mov_b32 v{BB+2*m+1}, v{BB+2*m}\nv_sub_f32 v{PF+12+m}, 1.0, v{PF+12+m}")
        for m in range(2):
            for t in range(3):
                c = C1R + 4*(3*m + t)
                for q in range(2):
                    z = PF + 4*t + 2*m + q
                    A(f"v_lshlrev_b32 v{c+2*q}, 16, v{z}\nv_and_b32 v{c+2*q+1}, 0xffff0000, v{z}")
        for m in range(2):
            for t in range(3):
                c = C1R + 4*(3*m + t)
                for r in range(4): A(f"v_mul_f32 v{c+r}, v{c+r}, v{PF+12+m}")
        A("s_mul_i32 s20, s16, 192\nv_add_u32 v112, s20, v0")
        for q in range(3):
            A(f"v_add_u32 v115, {64*q}, v112\nv_mul_u32_u24 v114, 5462, v115\nv_lshrrev_b32 v114, 16, v114")
            A(f"v_mul_u32_u24 v{LA[q]}, 12, v114\nv_sub_u32 v115, v115, v{LA[q]}\nv_lshlrev_b32 v115, 4, v115")
            A(f"v_mul_u32_u24 v{LA[q]}, 208, v114\nv_add3_u32 v{LA[q]}, v{LA[q]}, v115, s53\nv_mul_u32_u24 v{GA[q]}, 384, v114\nv_add_u32 v{GA[q]}, v{GA[q]}, v115")
        A("v_and_b32 v114, 15, v0\nv_add_u32 v114, s46, v114\nv_mul_u32_u24 v114, 208, v114\nv_lshl_add_u32 v114, v113, 3, v114")
        A(f"s_lshl_b32 s48, s47, 5\ns_add_u32 s48, s48, {USTG}\nv_add_u32 v114, s48, v114")
        A("v_and_b32 v115, 15, v0\nv_add_u32 v115, s46, v115\nv_and_b32 v112, 1, v113\nv_lshl_add_u32 v115, v112, 4, v115\nv_mul_u32_u24 v115, 208, v115\nv_lshrrev_b32 v112, 1, v113\nv_lshl_add_u32 v115, v112, 4, v115\nv_add_u32 v115, s48, v115")
    A("s_barrier")
    GS(A, 5)
    A("s_barrier")
    GS(A, 6); G2(A, 0)
    for x in E1.reads(0): A(x)
    A("s_waitcnt lgkmcnt(0)")
    st()
    A("s_mov_b32 s19, 0")
    A.label("K34_cloop")
    for i in range(NS): E1.step(i)
    if O.gs2:
        A("s_memtime s[90:91]\ns_waitcnt lgkmcnt(0)")
        for k in range(3): A(f"s_cmp_eq_u32 s19, {k}\ns_cselect_b32 s{66+2*k}, s90, s{66+2*k}")
    A(f"s_add_u32 s19, s19, 1\ns_cmp_lt_u32 s19, {O.lf0//6}\ns_cbranch_scc1 K34_cloop")
    late_flag_setup()
    A("s_cmp_lg_u32 s16, 0\ns_cbranch_scc1 K34_nf1")
    late_flag_issue()
    A.label("K34_nf1")
    for i in range(O.lf0, O.lf0 + 2): E1.step(i)
    A("s_cmp_lg_u32 s16, 0\ns_cbranch_scc1 K34_nf2")
    late_flag_check()
    A.label("K34_nf2")
    G2(A, 4)
    E1.step(O.lf0 + 2)
    late_loads()
    G2(A, 5)
    for i in range(O.lf0 + 3, 30):
        E1.step(i)
        if i in (23, 26, 29): G2(A, 6 + (23, 26, 29).index(i))
    late_pre()
    G2(A, 9)
    E1.step(30)
    A("v_and_b32 v4, 15, v0\nv_lshrrev_b32 v5, 4, v0\nv_and_b32 v6, 7, v4\nv_xor_b32 v5, v5, v6\nv_lshlrev_b32 v4, 7, v4\nv_lshl_add_u32 v4, v5, 4, v4")
    A("s_lshl_b32 s20, s16, 11\nv_add_u32 v2, s20, v4\nv_xor_b32 v3, 64, v2")
    A("v_and_b32 v6, 15, v0\nv_lshlrev_b32 v6, 3, v6\nv_and_b32 v7, 16, v0\nv_lshl_add_u32 v6, v7, 3, v6\nv_and_b32 v7, 32, v0\nv_lshl_add_u32 v6, v7, 4, v6")
    A("v_add_u32 v4, 8192, v6")
    A(f"v_add_u32 v5, {3*SLOT}, v2\nv_add_u32 v6, {3*SLOT}, v3\nv_add_u32 v7, {3*SLOT}, v4")
    for i in range(236, 256): A(f"v_mov_b32 v{i}, 0")
    def mixed_step(Ecur, icur, Enext, inext, after_barrier=None):
        s = icur & 1
        rd = Enext.reads(inext) if Enext else []
        mf = [f"v_mfma_f32_16x16x32_bf16 v[{Ecur.acc(m,t)}:{Ecur.acc(m,t)+3}], v[{Ecur.fT(s,kk,t)}:{Ecur.fT(s,kk,t)+3}], v[{Ecur.fP(s,kk,m)}:{Ecur.fP(s,kk,m)+3}], v[{Ecur.acc(m,t)}:{Ecur.acc(m,t)+3}]"
              for kk in range(2) for m in range(Ecur.mP) for t in range(Ecur.nT)]
        A("s_barrier")
        if after_barrier: after_barrier()
        per = (len(rd) + len(mf) - 1)//len(mf) if rd else 0
        for x in mf:
            for _ in range(per):
                if rd: A(rd.pop(0))
            A(x)
        A("s_waitcnt lgkmcnt(0)")
    mixed_step(E1, 31, E2b, 32)
    st(); GS(A, 7); G2(A, 10)
    for m in range(2):
        for t in range(3):
            ac = E1.acc(m, t); c = C1R + 4*(3*m + t)
            for q in range(2):
                A(f"v_pk_add_f32 v[{ac+2*q}:{ac+2*q+1}], v[{ac+2*q}:{ac+2*q+1}], v[{PF+14+m-(PF+14+m)%2 if False else BB+2*m}:{BB+2*m+1}]")
    for m in range(2):
        for t in range(3):
            ac = E1.acc(m, t); c = C1R + 4*(3*m + t)
            for q in range(2):
                A(f"v_pk_mul_f32 v[{ac+2*q}:{ac+2*q+1}], v[{ac+2*q}:{ac+2*q+1}], v[{c+2*q}:{c+2*q+1}]")
    if O.fine2: st()
    for m in range(2):
        for t in range(3):
            ac = E1.acc(m, t); z = PF + 4*t + 2*m
            A(f"v_cvt_pk_bf16_f32 v{z}, v{ac}, v{ac+1}\nv_cvt_pk_bf16_f32 v{z+1}, v{ac+2}, v{ac+3}")
    if O.fine2: st()
    if O.stg128:
        for t in range(3):
            d = PF + 4*t
            A(f"v_permlane16_swap_b32 v{d}, v{d+2}\nv_permlane16_swap_b32 v{d+1}, v{d+3}")
        for t in range(3):
            A(f"ds_write_b128 v115, v[{PF+4*t}:{PF+4*t+3}] offset:{t*32}")
    else:
        for m in range(2):
            for t in range(3):
                z = PF + 4*t + 2*m
                A(f"ds_write_b64 v114, v[{z}:{z+1}] offset:{m*16*208 + t*32}")
    A("s_waitcnt lgkmcnt(0)")
    st()
    def signal():
        A("s_waitcnt vmcnt(0)")
        A(f"v_mov_b32 v138, {LCNT}\nv_mov_b32 v139, 1")
        A("s_mov_b64 exec, 1")
        A("ds_add_rtn_u32 v139, v138, v139")
        A("s_waitcnt lgkmcnt(0)")
        A("v_readfirstlane_b32 s20, v139")
        A("s_cmp_lg_u32 s20, 3\ns_cbranch_scc1 K34_nosig")
        srd(A, 12, 32, SZ_FL, WS_FL)
        A("s_lshl_b32 s20, s40, 7\ns_lshl_b32 s21, s41, 3\ns_add_u32 s20, s20, s21\nv_mov_b32 v112, s20\ns_add_u32 s21, s98, 1\nv_mov_b32 v138, s21\nv_mov_b32 v139, s99")
        A("buffer_store_dwordx2 v[138:139], v112, s[12:15], 0 offen sc1")
        A.label("K34_nosig")
        A("s_mov_b64 exec, -1")
    def copy_out():
        srd(A, 12, 32, SZ_U, WS_U)
        for q in range(3): A(f"ds_read_b128 v[{PF+4*q}:{PF+4*q+3}], v{LA[q]}")
        A("s_lshl_b32 s48, s40, 2\ns_lshr_b32 s49, s41, 1\ns_add_u32 s48, s48, s49\ns_mul_i32 s48, s48, 24576\ns_and_b32 s49, s41, 1\ns_mul_i32 s49, s49, 192\ns_add_u32 s48, s48, s49")
        A("s_waitcnt lgkmcnt(0)")
        for q in range(3): A(f"buffer_store_dwordx4 v[{PF+4*q}:{PF+4*q+3}], v{GA[q]}, s[12:15], s48 offen{O.ustore}")
    for i in range(N1, N):
        last = (i == N - 1)
        mixed_step(E2b, i, None if last else E2b, i + 1, after_barrier=(copy_out if i == N1 else None))
        if i in ((32, 33, 36, 40, 41) if O.fine2 else (32, 33, 34, 36, 38, 40, 41, 42, 45)): st()
        if i in (36, 40, 41, 45): GS(A, 8 + (36, 40, 41, 45).index(i))
        if i == O.sig_i: signal()
        if i == N1 + 9:
            for t in range(5):
                for r in range(4): A(f"v_mul_f32 v{E2b.acc(0,t)+r}, v{E2b.acc(0,t)+r}, v136")
    st()
    srd(A, 12, 36, 2048*640*2)
    PK = 8
    for t in range(5):
        ac = E2b.acc(0, t)
        A(f"v_cvt_pk_bf16_f32 v{PK+2*t}, v{ac}, v{ac+1}\nv_cvt_pk_bf16_f32 v{PK+2*t+1}, v{ac+2}, v{ac+3}")
    A("v_lshrrev_b32 v3, 4, v0\ns_mov_b32 s45, 1280\nv_mul_lo_u32 v4, v137, s45\nv_lshl_add_u32 v4, v3, 3, v4\ns_mul_i32 s46, s41, 160\nv_add_u32 v4, s46, v4")
    for t in range(5): A(f"buffer_store_dwordx2 v[{PK+2*t}:{PK+2*t+1}], v4, s[12:15], 0 offen offset:{t*32}{O.outst}")
    st(); st.flush(16, 32, 20)
    GS(A, 12); GS_flush(A, 13, 20)
    hd_end(A, 32, 2, 0, 60)
    if O.hdiag2:
        A("s_cmp_lg_u32 s2, 0\ns_cbranch_scc1 K34_end\ns_cmp_lg_u32 s16, 0\ns_cbranch_scc1 K34_end")
        A("s_waitcnt vmcnt(0)")
        srd(A, 84, 32, 0x100000, WS_TS); srd(A, 88, 38, 256)
        sel = [(0, 0, i) for i in (2, 3, 5, 7, 8, 9, 10)] + [(0, 128, i) for i in (2, 3, 4, 6)] + [(2, 0, i) for i in (2, 3, 11, 12, 15)]
        A("v_mov_b32 v60, 0\nv_mov_b32 v61, 0")
        for ln, (k, wg, i) in enumerate(sel):
            base = k*0x40000 + wg*4*128
            A(f"v_cmp_eq_u32 vcc, {ln}, v0\nv_mov_b32 v62, {base + 4*i}\nv_cndmask_b32 v60, v60, v62, vcc\nv_mov_b32 v62, {base}\nv_cndmask_b32 v61, v61, v62, vcc")
        A("v_cmp_gt_u32 vcc, 16, v0\ns_and_saveexec_b64 s[20:21], vcc")
        A("buffer_load_dword v63, v60, s[84:87], 0 offen sc1\nbuffer_load_dword v64, v61, s[84:87], 0 offen sc1\ns_waitcnt vmcnt(0)")
        A("v_sub_u32 v63, v63, v64\nv_lshlrev_b32 v60, 2, v0\nbuffer_store_dword v63, v60, s[88:91], 0 offen")
    if O.hdiag:
        A("s_cmp_lg_u32 s2, 0\ns_cbranch_scc1 K34_end\ns_cmp_lg_u32 s16, 0\ns_cbranch_scc1 K34_end")
        A("s_waitcnt vmcnt(0)")
        srd(A, 84, 32, 4096, WS_TS); srd(A, 88, 38, 256)
        A("v_lshlrev_b32 v60, 2, v0\nv_cmp_gt_u32 vcc, 12, v0\ns_and_saveexec_b64 s[20:21], vcc")
        A("buffer_load_dword v61, v60, s[84:87], 0 offen sc1\ns_waitcnt vmcnt(0)\nbuffer_store_dword v61, v60, s[88:91], 0 offen")
    A("s_or_b32 s20, s2, s16\ns_cmp_lg_u32 s20, 0\ns_cbranch_scc1 K34_end")
    srd(A, 12, 32, SZ_FQ, WS_FQ)
    A("v_lshlrev_b32 v14, 4, v0\ns_add_u32 s45, s98, 1\ns_mov_b32 s47, 0")
    A.label("K34_ep")
    A("buffer_load_dwordx4 v[16:19], v14, s[12:15], 0 offen sc1\ns_waitcnt vmcnt(0)")
    A("v_xor_b32 v16, s45, v16\nv_xor_b32 v17, s99, v17\nv_xor_b32 v18, s45, v18\nv_xor_b32 v19, s99, v19\nv_or3_b32 v16, v16, v17, v18\nv_or_b32 v16, v16, v19\nv_cmp_ne_u32 vcc, 0, v16\ns_add_u32 s47, s47, 1\ns_nop 3")
    A("s_cbranch_vccz K34_epok\ns_cmp_lt_u32 s47, 0x10000\ns_cbranch_scc1 K34_ep")
    A.label("K34_epok")
    srd(A, 12, 32, SZ_EP, WS_EP)
    A("v_mov_b32 v16, s45\nv_mov_b32 v17, s99\nv_mov_b32 v14, 0\ns_mov_b64 exec, 1")
    A("buffer_store_dwordx2 v[16:17], v14, s[12:15], 0 offen sc1")
    A.label("K34_end")
    A("s_endpgm")
    return name, 256, 512, NS*SLOT + 64*208 + 64, 256

def main(out):
    body = Asm()
    n, g, b, lds, vg = k1(body)
    k34(body)
    hdr = [f"; @launch grid=({g},1,1) block=({b},1,1) lds={lds}"]
    hdr.append('.amdgcn_target "amdgcn-amd-amdhsa--gfx950"'); hdr.append(".text")
    lines = hazard.fix(body.lines, verbose=True)
    txt = "\n".join(hdr) + "\n" + "\n".join(lines) + "\n" + '.section .rodata,"a"\n' + kernel_desc(n, 256, 102)
    open(out, "w").write(txt)
if __name__ == "__main__":
    if '--stamp' in sys.argv: O.stamp = True
    if '--norot' in sys.argv: O.rot = False
    if '--pfg' in sys.argv: O.pfg = True
    if '--nofull' in sys.argv: O.fullring = False
    for a_ in sys.argv:
        if a_.startswith('--tla='): O.tla = int(a_[6:])
    for a_ in sys.argv:
        if a_.startswith('--pfg2='): O.pfg2 = int(a_[7:])
    if '--itstamp' in sys.argv: O.itstamp = True
    if '--nowsp' in sys.argv: O.wsp_pf = False
    for a_ in sys.argv:
        if a_.startswith('--poll='): O.poll_i = int(a_[7:])
        if a_.startswith('--sig='): O.sig_i = int(a_[6:])
    if '--full' in sys.argv: O.fullring = True; O.tla = 6
    if '--nofuse' in sys.argv: O.fuse = False
    if '--nosc1' in sys.argv: O.usc1 = False
    if '--hdiag' in sys.argv: O.hdiag = True
    if '--fine2' in sys.argv: O.fine2 = True
    if '--gs' in sys.argv: O.gs = True
    if '--gs3' in sys.argv: O.gs3 = True
    for a_ in sys.argv:
        if a_.startswith('--zn='): O.zn = int(a_[5:])
        if a_.startswith('--zp='): O.zp = int(a_[5:])
        if a_.startswith('--zs='): O.zs = int(a_[5:])
    if '--gs2' in sys.argv: O.gs2 = True
    if '--lt' in sys.argv: O.lt = True
    if '--nodefer' in sys.argv: O.defer = False
    for a_ in sys.argv:
        if a_.startswith('--hb='): O.hb = int(a_[5:])
    if '--xlplain' in sys.argv: O.xl = ''
    if '--k1sc1' in sys.argv: O.k1st = ' sc1'
    if '--k1nt' in sys.argv: O.k1st = ' nt'
    if '--outsc1' in sys.argv: O.outst = ' sc1'
    if '--outnt' in sys.argv: O.outst = ' nt'
    if '--hdiag2' in sys.argv: O.hdiag2 = True; O.stamp = True
    if '--stg64' in sys.argv: O.stg128 = False
    if '--uplain' in sys.argv: O.ustore = ''
    if '--unt' in sys.argv: O.ustore = ' sc1 nt'
    if '--usc01' in sys.argv: O.ustore = ' sc0 sc1'
    for a_ in sys.argv:
        if a_.startswith('--rottab='): O.rottab = int(a_[9:], 16)
    for a_ in sys.argv:
        if a_.startswith('--sleep='): O.sleep = int(a_[8:])
    main(sys.argv[1])
```

```python
import sys, struct
from asmlib import *
import hazard
NAME = "gated_mix__sliding_local_dilated__mixer_gmlp__prompt"
KA = dict(x=0, wqkv=8, wo=16, bx=24, win=32, wsp=40, bsp=48, wout=56, gw=64, out=72, dbg=80, ws=88)
QP = 504
HGS = 2048*QP
WS_QKVG = 0;          SZ_QKVG = 8*HGS
WS_Z1  = 0x900000;    SZ_Z1 = 2048*768*2
WS_Z2P = 0xC00000;    SZ_Z2P = 2048*768*2
WS_AU  = 0xF00000;    SZ_AU = 2048*1408*2
WS_WP  = 0x1500000;   SZ_WP = 1408*640*2
WS_ST  = 0x1700000;   SZ_ST = 8*2048*16
WS_G   = 0x1740000;   SZ_G = 2048*4
WS_EP  = 0x1760000;   SZ_EP = 128
WS_FZ  = 0x1770000;   SZ_FZ = 8*128
WS_FZ2 = 0x1790000;   SZ_FZ2 = 8*256
WS_FQ  = 0x1780000;   SZ_FQ = 16*64
WS_FL  = 0x1750000;   SZ_FL = 32*128
WS_U   = 0x1800000;   SZ_U = 2048*768*2
WS_TS  = 0x2000000
KILL = 0x40000000
C0 = -2.0*0.7978845608028654*1.4426950408889634
C1 = C0*0.044715
def f2u(f): return struct.unpack('<I', struct.pack('<f', f))[0]
class Opt:
    stamp = False; rot = True; wsp_pf = True; la = 5; itstamp = False; pfg = False; pfg2 = 2; fullring = False; tla = 4; poll_i = 38; sig_i = 36; fuse = True; hdiag2 = False; k1st = ' sc1'; outst = ''; xl = ' sc1'; sleep2 = 8; lt = False; gs2 = False; sst = 18; zp = 1; zn = 12; zs = 16; zmid = 1; gs3 = False; lf0 = 18; hb = 16; defer = True; gs = False; fine2 = False; stg128 = True; usc1 = True; ustore = ' sc1'; hdiag = False; sleep = 8; rottab = 0x8530
O = Opt()

def load_ptr(A, sd, key): A(f"s_load_dwordx2 s[{sd}:{sd+1}], s[0:1], {KA[key]}")
def wave_lane(A, s_w):
    A("v_lshrrev_b32 v1, 6, v0")
    A(f"v_readfirstlane_b32 s{s_w}, v1")
    A("v_and_b32 v0, 63, v0")

class Stamps:
    def __init__(self, A, kidx, n0=0): self.A = A; self.n = n0; self.k = kidx
    def __call__(self):
        if not O.stamp: return
        assert self.n < 16
        self.A(f"s_memtime s[{60+2*self.n}:{61+2*self.n}]"); self.n += 1
    def flush(self, s_w, s_ws, vt=250):
        if not O.stamp: return
        A = self.A
        A("s_waitcnt vmcnt(0)")
        A("s_memrealtime s[92:93]")
        A("s_waitcnt lgkmcnt(0)")
        srd(A, 56, s_ws, 0x100000, WS_TS + self.k*0x40000)
        A(f"s_lshl_b32 s54, s2, 2\ns_add_u32 s54, s54, s{s_w}\ns_lshl_b32 s54, s54, 7")
        A("s_mov_b64 exec, 1")
        for i in range(self.n):
            A(f"v_mov_b32 v{vt}, s{60+2*i}\nv_mov_b32 v{vt+1}, {4*i}")
            A(f"buffer_store_dword v{vt}, v{vt+1}, s[56:59], s54 offen")
        A(f"v_mov_b32 v{vt}, s92\nv_mov_b32 v{vt+1}, 124")
        A(f"buffer_store_dword v{vt}, v{vt+1}, s[56:59], s54 offen")
        A("s_mov_b64 exec, -1")


def it_top(A):
    if not O.itstamp: return
    A("s_memtime s[76:77]\ns_waitcnt lgkmcnt(0)")
    for k in range(3): A(f"s_cmp_eq_u32 s26, {k}\ns_cselect_b32 s{80+k}, s76, s{80+k}")
def it_mid(A):
    if O.itstamp: A("s_memtime s[76:77]\ns_waitcnt lgkmcnt(0)\ns_mov_b32 s83, s76")
def it_end(A, va, vb):
    if not O.itstamp: return
    A("s_memtime s[76:77]\ns_waitcnt lgkmcnt(0)\ns_mov_b32 s84, s76")
    srd(A, 56, 32, 0x200000, WS_TS + 7*0x40000)
    A("s_lshl_b32 s54, s2, 2\ns_add_u32 s54, s54, s16\ns_lshl_b32 s54, s54, 7")
    A("s_mov_b64 exec, 1")
    for i in range(11):
        A(f"v_mov_b32 v{va}, s{80+i}\nv_mov_b32 v{vb}, {4*i}")
        A(f"buffer_store_dword v{va}, v{vb}, s[56:59], s54 offen")
    A("s_mov_b64 exec, -1")


def hd_start(A):
    if O.hdiag: A("s_memtime s[94:95]\ns_memrealtime s[92:93]\ns_waitcnt lgkmcnt(0)\ns_mov_b32 s90, s94\ns_mov_b32 s91, s92")
def hd_end(A, s_ws, slot_sreg_expr, cond_wg, vt):
    if not O.hdiag: return
    L = A.newlabel("hd")
    A(f"s_cmp_lg_u32 s2, {cond_wg}\ns_cbranch_scc1 {L}\ns_cmp_lg_u32 s16, 0\ns_cbranch_scc1 {L}")
    A("s_waitcnt vmcnt(0)\ns_memtime s[94:95]\ns_memrealtime s[92:93]\ns_waitcnt lgkmcnt(0)")
    A("s_sub_u32 s94, s94, s90\ns_sub_u32 s95, s92, s91")
    srd(A, 84, s_ws, 4096, WS_TS)
    A(f"v_mov_b32 v{vt}, s94\nv_mov_b32 v{vt+1}, s95\nv_mov_b32 v{vt+2}, s91\nv_mov_b32 v{vt+3}, s92\nv_mov_b32 v{vt+4}, {slot_sreg_expr*16}")
    A("s_mov_b64 exec, 1")
    A(f"buffer_store_dwordx4 v[{vt}:{vt+3}], v{vt+4}, s[84:87], 0 offen")
    A("s_mov_b64 exec, -1")
    A.label(L)


def GS(A, i):
    if O.gs: A(f"s_memtime s[{64+2*i}:{65+2*i}]")
def G2(A, i):
    if O.gs2: A(f"s_memtime s[{64+2*i}:{65+2*i}]")
def GS_flush(A, n, vt, force=False):
    if not (O.gs or O.gs2 or force): return
    A("s_waitcnt vmcnt(0) lgkmcnt(0)")
    srd(A, 56, 32, 0x100000, WS_TS)
    A("s_lshl_b32 s54, s2, 2\ns_add_u32 s54, s54, s16\ns_lshl_b32 s54, s54, 7")
    A("s_mov_b64 exec, 1")
    for i in range(n):
        A(f"v_mov_b32 v{vt}, s{64+2*i}\nv_mov_b32 v{vt+1}, {4*i}")
        A(f"buffer_store_dword v{vt}, v{vt+1}, s[56:59], s54 offen")
    A("s_mov_b64 exec, -1")

def gelu_pk(A, regs, tmp, sC, vC=6):
    n = len(regs)
    for i, r in enumerate(regs): A(f"v_pk_mul_f32 v[{tmp+2*i}:{tmp+2*i+1}], v[{r}:{r+1}], v[{r}:{r+1}]")
    for i, r in enumerate(regs): A(f"v_pk_fma_f32 v[{tmp+2*i}:{tmp+2*i+1}], v[{tmp+2*i}:{tmp+2*i+1}], s[{sC}:{sC+1}], v[{vC}:{vC+1}]")
    for i, r in enumerate(regs): A(f"v_pk_mul_f32 v[{tmp+2*i}:{tmp+2*i+1}], v[{tmp+2*i}:{tmp+2*i+1}], v[{r}:{r+1}]")
    for i in range(2*n): A(f"v_exp_f32 v{tmp+i}, v{tmp+i}")
    for i, r in enumerate(regs): A(f"v_pk_add_f32 v[{tmp+2*i}:{tmp+2*i+1}], v[{tmp+2*i}:{tmp+2*i+1}], 1.0 op_sel_hi:[1,0]")
    for i in range(2*n): A(f"v_rcp_f32 v{tmp+i}, v{tmp+i}")
    for i, r in enumerate(regs): A(f"v_pk_mul_f32 v[{r}:{r+1}], v[{r}:{r+1}], v[{tmp+2*i}:{tmp+2*i+1}]")

def k1_geom(typ):
    if typ == 'q':
        return dict(pitchW=3840, PROWS=144, PSLOT=144*128, NPS=3, TSLOT=15360, R=6, TBASE=3*144*128)
    return dict(pitchW=3072, PROWS=128, PSLOT=128*128, NPS=3, TSLOT=16384, R=6, TBASE=3*128*128)

def k1_wsp_prefetch(A, part):
    if part == 0:
        srd(A, 4, 52, 2048*2048*2)
        A("s_and_b32 s40, s2, 7\ns_lshr_b32 s40, s40, 1\ns_lshl_b32 s40, s40, 14")
        A("s_lshr_b32 s41, s2, 3\ns_and_b32 s41, s41, 15\ns_lshl_b32 s41, s41, 10\ns_add_u32 s40, s40, s41")
        A("s_sub_u32 s41, s16, 4\ns_lshl_b32 s41, s41, 8\ns_add_u32 s40, s40, s41")
        A("s_lshl_b32 s40, s40, 7")
        A("v_lshlrev_b32 v249, 7, v0")
    else:
        A("s_add_u32 s40, s40, 8192")
    A(f"buffer_load_dword v{250 + (part & 1)}, v249, s[4:7], s40 offen")

def pf_setup(A):
    A("s_cmp_lt_u32 s21, 2\ns_cselect_b32 s84, s30, s34\ns_cselect_b32 s85, s31, s35")
    A(f"s_mov_b32 s86, {640*1920*2}\ns_cselect_b32 s86, {2048*640*2}, s86")
    A("s_cmp_eq_u32 s21, 3\ns_cselect_b32 s84, s36, s84\ns_cselect_b32 s85, s37, s85")
    A(f"s_cselect_b32 s86, {640*1536*2}, s86\ns_mov_b32 s87, 0x20000")
    A("s_lshr_b32 s88, s2, 3\ns_and_b32 s89, s2, 7\ns_lshr_b32 s90, s89, 1\ns_and_b32 s89, s89, 1")
    A("s_lshl_b32 s91, s89, 10\ns_lshl_b32 s92, s88, 5\ns_add_u32 s91, s91, s92\ns_lshl_b32 s92, s21, 4\ns_add_u32 s91, s91, s92")
    A("v_lshrrev_b32 v20, 2, v0\nv_add_u32 v20, s91, v20\nv_mul_u32_u24 v20, 1280, v20\nv_and_b32 v21, 3, v0\nv_lshl_add_u32 v20, v21, 7, v20\nv_add_u32 v20, 384, v20")
    A("v_mul_u32_u24 v21, 57, v0\nv_lshrrev_b32 v21, 9, v21\nv_mul_u32_u24 v22, 9, v21\nv_sub_u32 v22, v0, v22")
    A("s_mul_i32 s91, s88, 7\ns_add_u32 s91, s91, 192\nv_add_u32 v21, s91, v21\nv_mul_u32_u24 v21, 3840, v21")
    A("v_mul_u32_u24 v23, 171, v22\nv_lshrrev_b32 v23, 9, v23\nv_mul_u32_u24 v25, 3, v23\nv_sub_u32 v22, v22, v25")
    A("s_lshl_b32 s91, s90, 2\ns_lshr_b32 s91, 0x7520, s91\ns_and_b32 s91, s91, 15")
    A("v_add_u32 v22, s91, v22\nv_lshlrev_b32 v22, 7, v22\nv_mul_u32_u24 v23, 1280, v23\nv_add3_u32 v21, v21, v22, v23")
    A(f"v_mov_b32 v25, {KILL}\nv_cmp_le_u32 vcc, 63, v0\nv_cndmask_b32 v21, v21, v25, vcc")
    A("v_mul_u32_u24 v22, 43, v0\nv_lshrrev_b32 v22, 8, v22\nv_mul_u32_u24 v23, 6, v22\nv_sub_u32 v23, v0, v23")
    A("s_mul_i32 s91, s88, 7\ns_add_u32 s91, s91, 192\nv_add_u32 v22, s91, v22\nv_mul_u32_u24 v22, 3072, v22")
    A("v_mul_u32_u24 v26, 171, v23\nv_lshrrev_b32 v26, 9, v26\nv_mul_u32_u24 v27, 3, v26\nv_sub_u32 v23, v23, v27")
    A("v_lshlrev_b32 v23, 7, v23\nv_mul_u32_u24 v26, 1536, v26\nv_add3_u32 v22, v22, v23, v26\ns_mul_i32 s91, s90, 384\nv_add_u32 v22, s91, v22")
    A("v_cmp_le_u32 vcc, 42, v0\nv_cndmask_b32 v22, v22, v25, vcc")
    A("s_cmp_lt_u32 s21, 2\ns_cselect_b64 s[90:91], -1, 0\ns_cselect_b32 s88, 384, 0")
    A("v_cndmask_b32 v24, v21, v20, s[90:91]")
    A(f"s_cmp_eq_u32 s21, 2\ns_cselect_b32 s88, {224*3840}, s88")
    A(f"s_cmp_eq_u32 s21, 3\ns_cselect_b32 s88, {224*3072}, s88\ns_cselect_b64 s[90:91], -1, 0")
    A("v_cndmask_b32 v24, v24, v22, s[90:91]")

def pf_group(A, g):
    if g == 0: A("buffer_load_dword v248, v24, s[84:87], 0 offen")
    else: A("buffer_load_dword v248, v24, s[84:87], s88 offen")

def run_loader_schedule(A, issueP, issueT, issued, hooks=None, wsp=False, NB=20):
    NPS = 3; R = 6
    def wait_for(needs):
        last = -1
        for idx, tg in enumerate(issued):
            if tg in needs: last = idx
        if last < 0: return
        A(f"s_waitcnt vmcnt({min(len(issued) - 1 - last, 63)})")
    TLA = O.tla
    issueP(0, 0); issueP(0, 1); issueT(0); issueT(1)
    issueP(1, 0); issueP(1, 1)
    for t in range(2, TLA): issueT(t)
    if O.fullring: issueP(2, 0); issueP(2, 1)
    if O.pfg:
        pf_setup(A); pf_group(A, 0); issued.append(('F', 0))
    wait_for([('P', 0), ('T', 0)])
    A("s_barrier")
    if not O.fullring: issueP(2, 0)
    for b in range(NB):
        needs = []
        if b + 1 < NB: needs = [('T', b+1), ('P', (b+1)//2)]
        if needs: wait_for(needs)
        A("s_barrier")
        if b + TLA < NB: issueT(b + TLA)
        if b == 0 and not O.fullring: issueP(2, 1)
        if b % 2 == 1:
            s = (b - 1)//2 + NPS
            if s < NB//2: issueP(s, 0)
        elif b >= 2:
            s = (b - 2)//2 + NPS
            if s < NB//2: issueP(s, 1)
        if O.pfg and b == O.pfg2: pf_group(A, 1); issued.append(('F', 1))
        if hooks and b in hooks: hooks[b](issued)
        W0 = max(14, 20 - TLA)
        if wsp and O.wsp_pf and W0 <= b < W0 + 4: k1_wsp_prefetch(A, b - W0); issued.append(('W', b))
    A("s_barrier")

def rot_stage(A, s, dst):
    A(f"s_add_u32 s{dst}, s28, {s}\ns_cmp_ge_u32 s{dst}, 10\ns_cselect_b32 s29, 10, 0\ns_sub_u32 s{dst}, s{dst}, s29")
def rot_beat(A, b, dst):
    A(f"s_lshl_b32 s{dst}, s28, 1\ns_add_u32 s{dst}, s{dst}, {b}\ns_cmp_ge_u32 s{dst}, 20\ns_cselect_b32 s29, 20, 0\ns_sub_u32 s{dst}, s{dst}, s29")

ZR = 3; ZTS = 24576; ZTB = 81920
def k1_loader_z(A):
    pitchW = 3072; lw = 21; N = 20; R = ZR
    A(f"s_sub_u32 s{lw}, s16, 4")
    A("v_lshrrev_b32 v7, 3, v0\nv_and_b32 v2, 7, v0\nv_xor_b32 v2, v2, v7\nv_mul_u32_u24 v7, 1280, v7\nv_lshl_add_u32 v2, v2, 4, v7")
    for g8 in range(2):
        for i in range(3):
            d = 3 + 3*g8 + i
            A(f"v_add_u32 v10, {64*i}, v0\nv_mul_u32_u24 v11, 2731, v10\nv_lshrrev_b32 v11, 16, v11")
            A(f"v_mul_u32_u24 v12, 24, v11\nv_sub_u32 v12, v10, v12\nv_and_b32 v13, 2, v11\nv_add_u32 v13, {4*g8}, v13\nv_xor_b32 v12, v12, v13")
            A(f"v_add_u32 v11, {8*g8}, v11\nv_mul_u32_u24 v11, {pitchW}, v11\nv_lshl_add_u32 v{d}, v12, 4, v11")
            if i: A(f"v_subrev_u32 v{d}, {1024*i}, v{d}")
    A(f"s_mul_i32 s20, s{lw}, {16*1280}\ns_add_u32 s22, s17, s20")
    A(f"s_lshl_b32 s23, s{lw}, 11")
    A(f"s_mul_i32 s20, s{lw}, {16*pitchW}\ns_add_u32 s24, s18, s20\ns_add_u32 s25, s19, s20")
    A(f"s_mul_i32 s26, s{lw}, 6144\ns_add_u32 s26, s26, {ZTB}")
    A("s_mov_b32 s58, s28")
    issued = []
    def issue(s):
        if s < 10:
            A(f"s_lshl_b32 s27, s58, 7\ns_add_u32 s27, s27, s22\ns_add_u32 m0, s23, {s*8192}\ns_add_u32 s20, s27, {8*1280 - 1024}")
            A("buffer_load_dwordx4 v2, s[4:7], s27 offen lds\nbuffer_load_dwordx4 v2, s[4:7], s20 offen offset:1024 lds")
            issued.extend([('S', s)]*2)
        A(f"s_mul_i32 s27, s58, {64*pitchW}\ns_add_u32 s27, s27, s{24 + s//10}\ns_add_u32 m0, s26, {(s % R)*ZTS}")
        A("s_add_u32 s58, s58, 1\ns_cmp_eq_u32 s58, 10")
        for g8 in range(2):
            for i in range(3):
                A(f"buffer_load_dwordx4 v{3+3*g8+i}, s[8:11], s27 offen offset:{1024*i} lds")
                if g8 == 0 and i == 0: A("s_cselect_b32 s58, 0, s58")
            if g8 == 0: A("s_add_u32 m0, m0, 3072\ns_nop 0")
        issued.extend([('S', s)]*6)
    def wait_for(s):
        last = max(i for i, t in enumerate(issued) if t == ('S', s))
        A(f"s_waitcnt vmcnt({min(len(issued) - 1 - last, 63)})")
    for s in range(R - 1): issue(s)
    wait_for(0)
    A("s_barrier")
    issue(R - 1)
    for i in range(N):
        if i + 1 < N: wait_for(i + 1)
        A("s_barrier")
        if i + R < N: issue(i + R)
        if i == 9:
            k1_pack_load(A); issued.extend([('K', 0)]*6)
            z_gate_load(A, "s_sub_u32 s47, s16, 4\ns_lshl_b32 s47, s47, 2"); issued.extend([('G', 0)]*10)
            srd(A, 4, 30, 2048*640*2)
        if i == 12:
            last = max(k for k, t in enumerate(issued) if t == ('G', 0))
            A(f"s_waitcnt vmcnt({len(issued) - 1 - last})")
            z_gate_compute(A)
        if i == O.sst:
            k1_pack_store(A); issued.extend([('W', 0)]*6)
            z_gate_store(A); issued.extend([('W', 0)]*4)

def k1_loader_q(A, last):
    G = k1_geom('q'); PSLOT = G['PSLOT']; TSLOT = G['TSLOT']; TBASE = G['TBASE']
    nP = 3 if last else 2
    nTi = 3 if last else 4
    A("s_sub_u32 s21, s16, 4")
    A("v_lshrrev_b32 v7, 3, v0\nv_and_b32 v6, 7, v0\nv_xor_b32 v6, v6, v7")
    A("s_lshl_b32 s20, s48, 7\ns_sub_u32 s20, s20, 16\ns_lshl_b32 s22, s21, 4\ns_add_u32 s20, s20, s22")
    A("v_add_u32 v7, s20, v7")
    A("v_mov_b32 v12, v7")
    A("s_mov_b32 s20, 1280\nv_mul_lo_u32 v7, v7, s20\nv_lshl_add_u32 v2, v6, 4, v7")
    for h2 in range(2):
        for i in range(nP):
            if h2 == 0 and i == 0: continue
            A(f"v_add_u32 v{2 + h2*3 + i}, {(72*h2 + 8*i)*1280}, v2")
    A(f"v_mov_b32 v13, {KILL}")
    for i in range(2):
        A(f"v_add_u32 v14, {8*i}, v12\nv_cmp_gt_i32 vcc, 0, v14\nv_cndmask_b32 v{2+i}, v{2+i}, v13, vcc")
    A("s_lshl_b32 s20, s21, 8")
    for i in range(nTi):
        d = 8 + i
        A(f"v_add_u32 v12, s20, v0\nv_add_u32 v12, {64*i}, v12")
        A("v_mul_u32_u24 v13, 2185, v12\nv_lshrrev_b32 v13, 16, v13")
        A("v_mul_u32_u24 v14, 30, v13\nv_sub_u32 v14, v12, v14")
        A("v_and_b32 v15, 0x13, v13\nv_and_b32 v16, 4, v13\nv_lshl_or_b32 v15, v16, 1, v15\nv_and_b32 v16, 8, v13\nv_lshrrev_b32 v16, 1, v16\nv_or_b32 v15, v15, v16")
        A("v_mul_u32_u24 v16, 205, v14\nv_lshrrev_b32 v16, 11, v16")
        A("v_mul_u32_u24 v17, 10, v16\nv_sub_u32 v14, v14, v17")
        A("v_mul_u32_u24 v15, 3840, v15\nv_mul_u32_u24 v16, 1280, v16\nv_lshlrev_b32 v14, 4, v14")
        A(f"v_add3_u32 v{d}, v15, v16, v14")
    A("s_mul_i32 s24, s49, 160")
    A("s_lshl_b32 s23, s21, 11")
    A(f"s_lshl_b32 s26, s21, 12\ns_add_u32 s26, s26, {TBASE}")
    issued = []
    def issueP(s, h2):
        slot = s % 3
        rot_stage(A, s, 27)
        A("s_lshl_b32 s27, s27, 7")
        A(f"s_add_u32 m0, s23, {slot*PSLOT + h2*72*128}")
        for i in range(nP):
            if i: A("s_add_u32 m0, m0, 1024\ns_nop 0")
            A(f"buffer_load_dwordx4 v{2 + h2*3 + i}, s[4:7], s27 offen lds")
            issued.append(('P', s))
    def issueT(b):
        slot = b % 6
        rot_beat(A, b, 27)
        A(f"s_mul_i32 s27, s27, {32*3840}\ns_add_u32 s27, s27, s24")
        A(f"s_add_u32 m0, s26, {slot*TSLOT}")
        for i in range(nTi):
            if i: A("s_add_u32 m0, m0, 1024\ns_nop 0")
            A(f"buffer_load_dwordx4 v{8 + i}, s[8:11], s27 offen lds")
            issued.append(('T', b))
    run_loader_schedule(A, issueP, issueT, issued, None, True)


OT = 212
def z_oldtags(A, r32_sreg):
    srd(A, 12, 32, SZ_EP, WS_EP)
    A(f"s_lshl_b32 s40, s48, 7\nv_mov_b32 v221, s40")
    A(f"buffer_load_dwordx2 v[{OT}:{OT+1}], v221, s[12:15], 0 offen sc1")
def z_r32(A, dst):
    A(f"s_and_b32 s{dst}, s16, 1\ns_lshl_b32 s{dst}, s{dst}, 1\ns_lshr_b32 s41, s16, 2\ns_add_u32 s{dst}, s{dst}, s41")


ZCMB = 131072
ZFLG = 155648
GX, GW, GA_, GT = 152, 184, 192, 146
def z_gate_load(A, rowoff):
    srd(A, 4, 30, 2048*640*2); srd(A, 12, 38, 640*2)
    A("s_lshl_b32 s60, s48, 7\ns_lshl_b32 s61, s49, 4\ns_add_u32 s60, s60, s61\ns_lshl_b32 s61, s16, 2\ns_add_u32 s60, s60, s61") if False else None
    A("s_lshl_b32 s86, s48, 6\ns_lshl_b32 s47, s49, 4\ns_add_u32 s86, s86, s47")
    A(rowoff)
    A("s_add_u32 s86, s86, s47")
    A(f"v_lshlrev_b32 v{GT}, 4, v0\nv_add_u32 v{GT+1}, 1024, v{GT}\nv_mov_b32 v{GT+2}, {KILL}\nv_cmp_le_u32 vcc, 16, v0\nv_cndmask_b32 v{GT+1}, v{GT+1}, v{GT+2}, vcc")
    A(f"buffer_load_dwordx4 v[{GW}:{GW+3}], v{GT}, s[12:15], 0 offen\nbuffer_load_dwordx4 v[{GW+4}:{GW+7}], v{GT+1}, s[12:15], 0 offen")
    A("s_mul_i32 s87, s86, 1280")
    for r in range(4):
        A(f"s_add_u32 s85, s87, {r*1280}")
        A(f"buffer_load_dwordx4 v[{160+8*r}:{163+8*r}], v{GT}, s[4:7], s85 offen\nbuffer_load_dwordx4 v[{164+8*r}:{167+8*r}], v{GT+1}, s[4:7], s85 offen") if False else A(f"buffer_load_dwordx4 v[{GX+8*r}:{GX+3+8*r}], v{GT}, s[4:7], s85 offen\nbuffer_load_dwordx4 v[{GX+4+8*r}:{GX+7+8*r}], v{GT+1}, s[4:7], s85 offen")
def z_gate_compute(A):
    for r in range(4):
        A(f"v_mov_b32 v{GA_+r}, 0")
        for q in range(4): A(f"v_dot2_f32_bf16 v{GA_+r}, v{GX+8*r+q}, v{GW+q}, v{GA_+r}")
        for q in range(4): A(f"v_dot2_f32_bf16 v{GA_+r}, v{GX+4+8*r+q}, v{GW+4+q}, v{GA_+r}")
    for ctl in ("row_shr:1 row_mask:0xf bank_mask:0xf bound_ctrl:0", "row_shr:2 row_mask:0xf bank_mask:0xf bound_ctrl:0", "row_shr:4 row_mask:0xf bank_mask:0xf bound_ctrl:0",
                "row_shr:8 row_mask:0xf bank_mask:0xf bound_ctrl:0", "row_bcast:15 row_mask:0xa bank_mask:0xf", "row_bcast:31 row_mask:0xc bank_mask:0xf"):
        for r in range(4): A(f"v_add_f32_dpp v{GA_+r}, v{GA_+r}, v{GA_+r} {ctl}")
    for r in range(4): A(f"v_mul_f32 v{GA_+r}, {f2u(-1.4426950408889634)}, v{GA_+r}")
    for r in range(4): A(f"v_exp_f32 v{GA_+r}, v{GA_+r}")
    for r in range(4): A(f"v_add_f32 v{GA_+r}, 1.0, v{GA_+r}")
    for r in range(4): A(f"v_rcp_f32 v{GA_+r}, v{GA_+r}")
def z_gate_store(A):
    srd(A, 4, 32, SZ_G, WS_G)
    A(f"s_lshl_b32 s86, s86, 2\nv_mov_b32 v{GT}, 0")
    A("s_mov_b32 s42, 0\ns_mov_b32 s43, 0x80000000\ns_mov_b64 exec, s[42:43]")
    for r in range(4): A(f"buffer_store_dword v{GA_+r}, v{GT}, s[4:7], s86 offen offset:{4*r} sc1")
    A("s_mov_b64 exec, -1")

def k1_pack_load(A):
    T = 28
    c, cc, t2, p_, k_, x_ = T+2, T+3, T+4, T+5, T+6, T+7
    A("s_sub_u32 s40, s16, 4\ns_lshl_b32 s40, s40, 6")
    A(f"v_add_u32 v{c}, s40, v0\nv_and_b32 v{cc}, 127, v{c}\nv_lshrrev_b32 v{t2}, 7, v{c}\nv_lshrrev_b32 v{p_}, 1, v{cc}")
    A(f"v_and_b32 v{k_}, 0x33, v{p_}\nv_and_b32 v{x_}, 4, v{p_}\nv_lshl_or_b32 v{k_}, v{x_}, 1, v{k_}")
    A(f"v_and_b32 v{x_}, 8, v{p_}\nv_lshrrev_b32 v{x_}, 1, v{x_}\nv_or_b32 v{k_}, v{k_}, v{x_}")
    A(f"v_mul_u32_u24 v{k_}, 1280, v{k_}\nv_and_b32 v{x_}, 1, v{cc}\nv_lshl_add_u32 v{k_}, v{x_}, 4, v{k_}\nv_lshl_add_u32 v{k_}, v{t2}, 5, v{k_}")
    A(f"v_lshlrev_b32 v252, 4, v{cc}\nv_lshl_add_u32 v252, v{t2}, 11, v252")
    A(f"v_mov_b32 v{x_}, {KILL}\nv_cmp_eq_u32 vcc, 1, v{t2}\nv_cndmask_b32 v253, v252, v{x_}, vcc\nv_cndmask_b32 v{p_}, v{k_}, v{x_}, vcc")
    A("s_lshl_b32 s54, s48, 2\ns_add_u32 s54, s54, s49")
    for u, D in ((0, 224), (1, 236)):
        A(f"s_add_u32 s55, s54, {128*u}")
        A(f"s_mul_hi_u32 s41, s55, {(2**32 + 21)//22}\ns_mul_i32 s42, s41, 22\ns_sub_u32 s42, s55, s42")
        A("s_cmp_lt_u32 s42, 10\ns_cselect_b32 s12, s44, s46\ns_cselect_b32 s13, s45, s47")
        A(f"s_mov_b32 s14, {768*640*2}\ns_cselect_b32 s14, {640*640*2}, s14\ns_mov_b32 s15, 0x20000")
        A("s_cselect_b32 s43, 0, 10\ns_sub_u32 s43, s42, s43")
        A(f"s_mul_i32 s43, s43, {64*1280}\ns_mul_i32 s40, s41, 160\ns_add_u32 s43, s43, s40")
        A(f"s_cmp_ge_u32 s55, 176\ns_cselect_b32 s40, {KILL}, 0\ns_add_u32 s43, s43, s40")
        A(f"buffer_load_dwordx4 v[{D}:{D+3}], v{k_}, s[12:15], s43 offen")
        A(f"buffer_load_dwordx4 v[{D+4}:{D+7}], v{k_}, s[12:15], s43 offen offset:64")
        A(f"buffer_load_dwordx4 v[{D+8}:{D+11}], v{p_}, s[12:15], s43 offen offset:128")

def k1_pack_store(A):
    srd(A, 12, 32, SZ_WP, WS_WP)
    for u, D in ((0, 224), (1, 236)):
        A(f"s_add_u32 s55, s54, {128*u}")
        A(f"s_mul_i32 s41, s55, {5*2048}\ns_cmp_ge_u32 s55, 176\ns_cselect_b32 s42, {KILL}, 0\ns_add_u32 s41, s41, s42")
        A("s_add_u32 s42, s41, 4096\ns_add_u32 s43, s41, 8192")
        A(f"buffer_store_dwordx4 v[{D}:{D+3}], v252, s[12:15], s41 offen{O.k1st}")
        A(f"buffer_store_dwordx4 v[{D+4}:{D+7}], v252, s[12:15], s42 offen{O.k1st}")
        A(f"buffer_store_dwordx4 v[{D+8}:{D+11}], v253, s[12:15], s43 offen{O.k1st}")

def k1_compute_z(A, st):
    mP = 2; nT = 6; R = ZR
    F = [16, 176]
    AC = [80, 128]
    A("s_and_b32 s20, s16, 1\ns_lshr_b32 s21, s16, 1")
    A("v_and_b32 v14, 15, v0\nv_lshrrev_b32 v15, 4, v0\nv_and_b32 v6, 7, v14\nv_xor_b32 v6, v15, v6\nv_lshlrev_b32 v14, 7, v14\nv_lshl_add_u32 v14, v6, 4, v14")
    A("s_lshl_b32 s22, s20, 12")
    A("v_add_u32 v2, s22, v14\nv_xor_b32 v3, 64, v2\nv_add_u32 v4, 0x10000, v2\nv_add_u32 v5, 0x10000, v3")
    A("v_lshrrev_b32 v14, 2, v0\nv_and_b32 v14, 3, v14\nv_lshl_add_u32 v13, v15, 3, v14\nv_mul_u32_u24 v13, 384, v13")
    A("v_and_b32 v12, 3, v0\nv_lshl_add_u32 v13, v12, 3, v13")
    A("v_lshrrev_b32 v14, 1, v14\nv_and_b32 v12, 1, v15\nv_lshl_add_u32 v14, v12, 1, v14")
    A(f"v_add_u32 v15, {ZTB}, v13\ns_mul_i32 s23, s21, 6")
    for t in range(6):
        A(f"s_add_u32 s22, s23, {t}\ns_and_b32 s24, s22, 3\ns_andn2_b32 s22, s22, 3\nv_xor_b32 v13, s24, v14\nv_add_u32 v13, s22, v13\nv_lshl_add_u32 v{6+t}, v13, 5, v15")
    for i in range(80, 176): A(f"v_mov_b32 v{i}, 0")
    def fP(s, kk, m): return F[s] + 4*(kk*8 + m)
    def fT(s, kk, t): return F[s] + 4*(kk*8 + 2 + t)
    def acc(p, m, t): return AC[p] + 4*(m*nT + t)
    def reads(i):
        s = i & 1; ps = i % 10; ts = i % R
        r = []
        for kk in range(2):
            for m in range(mP):
                off = ps*8192 + m*2048; hi = off >> 16
                r.append(f"ds_read_b128 v[{fP(s,kk,m)}:{fP(s,kk,m)+3}], v{2 + kk + 2*hi} offset:{off & 0xffff}")
            for t in range(nT):
                f = fT(s, kk, t)
                for h in range(2): r.append(f"ds_read_b64_tr_b16 v[{f+2*h}:{f+2*h+1}], v{6 + t} offset:{ts*ZTS + kk*32*384 + h*4*384}")
        return r
    def beat(i, last=False):
        s = i & 1; p = i // 10
        mf = [f"v_mfma_f32_16x16x32_bf16 v[{acc(p,m,t)}:{acc(p,m,t)+3}], v[{fT(s,kk,t)}:{fT(s,kk,t)+3}], v[{fP(s,kk,m)}:{fP(s,kk,m)+3}], v[{acc(p,m,t)}:{acc(p,m,t)+3}]"
              for kk in range(2) for m in range(mP) for t in range(nT)]
        rd = [] if last else reads(i + 1)
        A("s_barrier")
        for k, x in enumerate(mf):
            for _ in range(2 if k < 10 else 1):
                if rd: A(rd.pop(0))
            A(x)
        assert not rd
        A("s_waitcnt lgkmcnt(0)")
    A("s_barrier")
    for x in reads(0): A(x)
    A("s_waitcnt lgkmcnt(0)")
    st(); GS(A, 1)
    for i in range(10): beat(i)
    st()
    TM = 176
    A(f"s_mov_b32 s56, {f2u(C1)}\ns_mov_b32 s57, {f2u(C1)}")
    A(f"v_mov_b32 v12, {f2u(C0)}\nv_mov_b32 v13, {f2u(C0)}")
    gelu_pk(A, [acc(0, m, t) + 2*q for m in range(2) for t in range(6) for q in range(2)], TM, 56, 12)
    S = TM
    for m in range(2):
        vals = [acc(0, m, t) + r for t in range(6) for r in range(4)]
        for h in range(2):
            v0_ = vals[12*h:12*h+12]
            A(f"v_pk_add_f32 v[{S+4*m+2*h}:{S+4*m+2*h+1}], v[{v0_[0]}:{v0_[1]}], v[{v0_[2]}:{v0_[3]}]")
            A(f"v_pk_mul_f32 v[{S+8+4*m+2*h}:{S+8+4*m+2*h+1}], v[{v0_[0]}:{v0_[1]}], v[{v0_[0]}:{v0_[1]}]")
    for m in range(2):
        vals = [acc(0, m, t) + r for t in range(6) for r in range(4)]
        for h in range(2):
            v0_ = vals[12*h:12*h+12]
            A(f"v_pk_fma_f32 v[{S+8+4*m+2*h}:{S+8+4*m+2*h+1}], v[{v0_[2]}:{v0_[3]}], v[{v0_[2]}:{v0_[3]}], v[{S+8+4*m+2*h}:{S+8+4*m+2*h+1}]")
    for q in range(2, 6):
        for m in range(2):
            vals = [acc(0, m, t) + r for t in range(6) for r in range(4)]
            for h in range(2):
                v0_ = vals[12*h:12*h+12]
                A(f"v_pk_add_f32 v[{S+4*m+2*h}:{S+4*m+2*h+1}], v[{S+4*m+2*h}:{S+4*m+2*h+1}], v[{v0_[2*q]}:{v0_[2*q+1]}]")
                A(f"v_pk_fma_f32 v[{S+8+4*m+2*h}:{S+8+4*m+2*h+1}], v[{v0_[2*q]}:{v0_[2*q+1]}], v[{v0_[2*q]}:{v0_[2*q+1]}], v[{S+8+4*m+2*h}:{S+8+4*m+2*h+1}]")
    for m in range(2):
        A(f"v_pk_add_f32 v[{S+4*m}:{S+4*m+1}], v[{S+4*m}:{S+4*m+1}], v[{S+4*m+2}:{S+4*m+3}]")
        A(f"v_pk_add_f32 v[{S+8+4*m}:{S+8+4*m+1}], v[{S+8+4*m}:{S+8+4*m+1}], v[{S+8+4*m+2}:{S+8+4*m+3}]")
    for m in range(2):
        A(f"v_add_f32 v{S+16+2*m}, v{S+4*m}, v{S+4*m+1}\nv_add_f32 v{S+17+2*m}, v{S+8+4*m}, v{S+8+4*m+1}")
    X = S + 16
    for i in range(4): A(f"v_mov_b32 v{X+4+i}, v{X+i}")
    for i in range(4): A(f"v_permlane16_swap_b32 v{X+i}, v{X+4+i}")
    for i in range(4): A(f"v_add_f32 v{X+i}, v{X+i}, v{X+4+i}")
    for i in range(4): A(f"v_mov_b32 v{X+4+i}, v{X+i}")
    for i in range(4): A(f"v_permlane32_swap_b32 v{X+i}, v{X+4+i}")
    for i in range(4): A(f"v_add_f32 v{X+i}, v{X+i}, v{X+4+i}")
    A(f"v_and_b32 v14, 16, v0\nv_cmp_ne_u32 vcc, 0, v14\nv_cndmask_b32 v{X}, v{X}, v{X+2}, vcc\nv_cndmask_b32 v{X+1}, v{X+1}, v{X+3}, vcc")
    srd(A, 8, 32, SZ_ST, WS_ST)
    A("s_lshl_b32 s49, s49, 1\ns_add_u32 s49, s49, s21")
    A("s_lshl_b32 s22, s49, 15\ns_lshl_b32 s23, s48, 10\ns_add_u32 s22, s22, s23\ns_lshl_b32 s23, s20, 9\ns_add_u32 s22, s22, s23")
    A(f"s_add_u32 s24, s98, 1\nv_mov_b32 v{X+2}, s24\nv_mov_b32 v{X+3}, s99\nv_lshlrev_b32 v14, 4, v0")
    A("v_cmp_gt_u32 vcc, 32, v0\ns_and_saveexec_b64 s[24:25], vcc")
    A(f"buffer_store_dwordx4 v[{X}:{X+3}], v14, s[8:11], s22 offen sc1")
    A("s_mov_b64 exec, s[24:25]")
    st()
    PG = 240
    def poll_loads():
        for q in range(4):
            A(f"s_add_u32 s23, s27, {q*32768}")
            A(f"buffer_load_dwordx4 v[{PG+4*q}:{PG+3+4*q}], v15, s[8:11], s23 offen sc1")
    def poll_issue():
        A("s_lshl_b32 s27, s48, 10\ns_lshl_b32 s23, s20, 9\ns_add_u32 s27, s27, s23")
        A("v_and_b32 v15, 31, v0\nv_lshlrev_b32 v15, 4, v15\nv_lshrrev_b32 v14, 5, v0\nv_lshl_add_u32 v15, v14, 17, v15")
        poll_loads()
    def mid_normalise():
        G = TM
        A(f"s_add_u32 s24, s98, 1\nv_mov_b32 v12, s24\nv_mov_b32 v14, s99\ns_mov_b32 s24, 0\ns_branch K1_pollchk")
        A.label("K1_poll")
        A(f"s_sleep {O.sleep}")
        poll_loads()
        A.label("K1_pollchk")
        A("s_waitcnt vmcnt(0)")
        X = G + 32
        A(f"v_xor_b32 v{X}, v{PG+2}, v12\nv_xor_b32 v{X+1}, v{PG+3}, v14\nv_or_b32 v{X}, v{X}, v{X+1}")
        for q in range(1, 4): A(f"v_xor_b32 v{X+1}, v{PG+2+4*q}, v12\nv_xor_b32 v{X+2}, v{PG+3+4*q}, v14\nv_or3_b32 v{X}, v{X}, v{X+1}, v{X+2}")
        A(f"v_cmp_ne_u32 vcc, 0, v{X}\ns_add_u32 s24, s24, 1\ns_nop 3")
        A(f"s_cbranch_vccz K1_polled\ns_cmp_lt_u32 s24, 0x10000\ns_cbranch_scc1 K1_poll")
        A.label("K1_polled")
        A(f"v_add_f32 v{G}, v{PG}, v{PG+4}\nv_add_f32 v{G+1}, v{PG+1}, v{PG+5}\nv_add_f32 v{G+2}, v{PG+8}, v{PG+12}\nv_add_f32 v{G+3}, v{PG+9}, v{PG+13}")
        A(f"v_add_f32 v{G}, v{G}, v{G+2}\nv_add_f32 v{G+1}, v{G+1}, v{G+3}")
        A(f"v_mov_b32 v{G+2}, v{G}\nv_mov_b32 v{G+3}, v{G+1}")
        A(f"v_permlane32_swap_b32 v{G}, v{G+2}\nv_permlane32_swap_b32 v{G+1}, v{G+3}")
        A(f"v_add_f32 v{G}, v{G}, v{G+2}\nv_add_f32 v{G+1}, v{G+1}, v{G+3}")
        A(f"v_mul_f32 v{G}, {f2u(1/768)}, v{G}\nv_mul_f32 v{G+1}, {f2u(1/768)}, v{G+1}")
        A(f"v_fma_f32 v{G+1}, -v{G}, v{G}, v{G+1}\nv_max_f32 v{G+1}, 0, v{G+1}")
        A(f"v_add_f32 v{G+1}, {f2u(1e-5)}, v{G+1}\nv_rsq_f32 v{G+1}, v{G+1}")
        A(f"v_mul_f32 v{G}, v{G}, v{G+1}\nv_sub_f32 v{G}, 0, v{G}")
        A("v_and_b32 v13, 15, v0\nv_lshlrev_b32 v13, 2, v13")
        B = G + 8
        for m in range(2):
            A(f"v_add_u32 v12, {64*m}, v13")
            A(f"ds_bpermute_b32 v{B+2*m}, v12, v{G+1}\nds_bpermute_b32 v{B+1+2*m}, v12, v{G}")
        srd(A, 12, 32, SZ_Z2P, WS_Z2P)
        A("s_lshl_b32 s22, s49, 5\ns_add_u32 s22, s22, s48\ns_mul_i32 s22, s22, 12288\ns_lshl_b32 s23, s20, 10\ns_add_u32 s22, s22, s23")
        A("v_lshrrev_b32 v15, 4, v0\nv_and_b32 v12, 15, v0\nv_and_b32 v13, 3, v12\nv_and_b32 v14, 4, v12\nv_lshl_or_b32 v13, v14, 1, v13\nv_and_b32 v14, 8, v12\nv_lshrrev_b32 v14, 1, v14\nv_or_b32 v13, v13, v14")
        A("v_and_b32 v14, 1, v15\nv_lshl_add_u32 v13, v14, 4, v13\nv_lshlrev_b32 v13, 5, v13\nv_lshrrev_b32 v14, 1, v15\nv_lshl_add_u32 v13, v14, 4, v13")
        A("s_waitcnt lgkmcnt(0)")
        for m in range(2):
            for t in range(6):
                a_ = acc(0, m, t)
                for r in range(4): A(f"v_fma_f32 v{a_+r}, v{a_+r}, v{B+2*m}, v{B+1+2*m}")
        PK = G + 16
        for t in range(6):
            d = PK + 4*t; a0 = acc(0, 0, t); a1 = acc(0, 1, t)
            A(f"v_cvt_pk_bf16_f32 v{d}, v{a0}, v{a0+1}\nv_cvt_pk_bf16_f32 v{d+1}, v{a0+2}, v{a0+3}\nv_cvt_pk_bf16_f32 v{d+2}, v{a1}, v{a1+1}\nv_cvt_pk_bf16_f32 v{d+3}, v{a1+2}, v{a1+3}")
        for t in range(6):
            d = PK + 4*t
            A(f"v_permlane16_swap_b32 v{d}, v{d+2}\nv_permlane16_swap_b32 v{d+1}, v{d+3}")
        for t in range(6):
            A(f"s_add_u32 s23, s22, {t*2048}")
            A(f"buffer_store_dwordx4 v[{PK+4*t}:{PK+4*t+3}], v13, s[12:15], s23 offen sc1")
    def signal_z2():
        A("s_waitcnt vmcnt(0)")
        A(f"s_lshl_b32 s22, s21, 2\ns_add_u32 s22, s22, {ZFLG + 16}\nv_mov_b32 v12, s22\nv_mov_b32 v13, 1\ns_mov_b64 exec, 1")
        A("ds_add_rtn_u32 v13, v12, v13\ns_waitcnt lgkmcnt(0)\nv_readfirstlane_b32 s22, v13")
        A("s_cmp_lg_u32 s22, 1\ns_cbranch_scc1 K1_z2nosig")
        srd(A, 12, 32, SZ_FZ2, WS_FZ2)
        A("s_lshl_b32 s22, s49, 8\ns_lshl_b32 s23, s48, 3\ns_add_u32 s22, s22, s23\nv_mov_b32 v12, s22\ns_add_u32 s23, s98, 1\nv_mov_b32 v14, s23\nv_mov_b32 v15, s99")
        A("buffer_store_dwordx2 v[14:15], v12, s[12:15], 0 offen sc1")
        A.label("K1_z2nosig")
        A("s_mov_b64 exec, -1")
    G3 = lambda k: A(f"s_memtime s[{64+2*k}:{65+2*k}]") if O.gs3 else None
    G3(0)
    for i in range(10, 20):
        if i in (12, 14): G3(1 + (i - 12)//2)
        if i == O.zn - O.zp: poll_issue()
        if i == O.zn:
            assert i % 2 == 0
            G3(3); mid_normalise(); G3(4)
        if i == 18: G3(5)
        if i == O.zs: G3(6); signal_z2(); G3(7)
        beat(i, last=(i == 19))
    G3(8)
    if O.gs3: GS_flush(A, 9, 12, True)
    st(); GS(A, 2)
    A(f"v_mov_b32 v12, {f2u(C0)}\nv_mov_b32 v13, {f2u(C0)}")
    gelu_pk(A, [acc(1, m, t) + 2*q for m in range(2) for t in range(6) for q in range(2)], TM, 56, 12)
    srd(A, 4, 32, SZ_Z1, WS_Z1)
    A("s_lshl_b32 s22, s48, 1\ns_add_u32 s22, s22, s20\ns_mul_i32 s22, s22, 48\ns_mul_i32 s23, s49, 6\ns_add_u32 s22, s22, s23\ns_lshl_b32 s22, s22, 10")
    A("v_lshlrev_b32 v14, 4, v0")
    for t in range(6):
        d = 16 + 4*t; a0 = acc(1, 0, t); a1 = acc(1, 1, t)
        A(f"v_cvt_pk_bf16_f32 v{d}, v{a0}, v{a0+1}\nv_cvt_pk_bf16_f32 v{d+1}, v{a0+2}, v{a0+3}\nv_cvt_pk_bf16_f32 v{d+2}, v{a1}, v{a1+1}\nv_cvt_pk_bf16_f32 v{d+3}, v{a1+2}, v{a1+3}")
    for t in range(6):
        A(f"s_add_u32 s23, s22, {t*1024}")
        A(f"buffer_store_dwordx4 v[{16+4*t}:{19+4*t}], v14, s[4:7], s23 offen{O.k1st}")

def k1_compute_q(A, wm, wn, st):
    G = k1_geom('q'); PSLOT = G['PSLOT']; TSLOT = G['TSLOT']; TBASE = G['TBASE']
    tiles = list(range(0, 8)) if wn == 0 else list(range(8, 15))
    halo = {(0, 0): [5, 6], (1, 0): [7], (0, 1): [8, 9, 10, 11], (1, 1): [12, 13, 14]}[(wm, wn)]
    nT = len(tiles); mP = 5
    F = [16, 16 + 4*(5 + 8)]
    ACC = 16 + 8*(5 + 8)
    A("v_and_b32 v14, 15, v0\nv_lshrrev_b32 v15, 4, v0\nv_and_b32 v6, 7, v14\nv_xor_b32 v6, v15, v6\nv_lshlrev_b32 v14, 7, v14\nv_lshl_add_u32 v2, v6, 4, v14")
    A("v_xor_b32 v3, 64, v2")
    A("v_lshrrev_b32 v6, 1, v15\nv_lshlrev_b32 v6, 4, v6\nv_and_b32 v7, 1, v15\nv_lshl_add_u32 v6, v7, 2, v6")
    A("v_lshrrev_b32 v7, 2, v0\nv_and_b32 v7, 3, v7\nv_add_u32 v6, v6, v7\nv_mul_u32_u24 v6, 480, v6\nv_and_b32 v7, 3, v0\nv_lshl_add_u32 v6, v7, 3, v6")
    A(f"v_add_u32 v4, {TBASE}, v6\nv_add_u32 v5, {TBASE + 3*TSLOT}, v6")
    accs = {}
    n = ACC
    for m in range(4):
        for t in tiles: accs[(m, t)] = n; n += 4
    for t in halo: accs[('h', t)] = n; n += 4
    assert n <= 256, n
    for i in range(ACC, n): A(f"v_mov_b32 v{i}, 0")
    def fP(s, m): return F[s] + 4*m
    def fT(s, t): return F[s] + 4*(5 + tiles.index(t))
    def reads(b):
        s = b & 1; kk = b & 1; ps = (b//2) % 3; ts = b % 6
        r = []
        for m in range(4):
            f = fP(s, m); r.append(f"ds_read_b128 v[{f}:{f+3}], v{2+kk} offset:{ps*PSLOT + (16 + 64*wm + 16*m)*128}")
        f = fP(s, 4); r.append(f"ds_read_b128 v[{f}:{f+3}], v{2+kk} offset:{ps*PSLOT}")
        for t in tiles:
            f = fT(s, t)
            for h in range(2):
                hi = 1 if ts >= 3 else 0
                r.append(f"ds_read_b64_tr_b16 v[{f+2*h}:{f+2*h+1}], v{4+hi} offset:{(ts - 3*hi)*TSLOT + h*8*480 + t*32}")
        return r
    A("s_barrier")
    for x in reads(0): A(x)
    A("s_waitcnt lgkmcnt(0)")
    st(); GS(A, 1)
    A("s_barrier")
    def beat(b, last=False):
        s = b & 1
        mf = []
        for m in range(4):
            for t in tiles:
                a_ = accs[(m, t)]; mf.append(f"v_mfma_f32_16x16x32_bf16 v[{a_}:{a_+3}], v[{fT(s,t)}:{fT(s,t)+3}], v[{fP(s,m)}:{fP(s,m)+3}], v[{a_}:{a_+3}]")
        for t in halo:
            a_ = accs[('h', t)]; mf.append(f"v_mfma_f32_16x16x32_bf16 v[{a_}:{a_+3}], v[{fT(s,t)}:{fT(s,t)+3}], v[{fP(s,4)}:{fP(s,4)+3}], v[{a_}:{a_+3}]")
        rd = [] if last else reads(b + 1)
        nfront = len(mf) - 8
        for i, x in enumerate(mf):
            A(x)
            if rd: A(rd.pop(0))
            if i == nfront - 1:
                assert not rd, (len(rd), nfront)
                A("s_waitcnt lgkmcnt(0)\ns_barrier")
    L = f"K1q{wm}{wn}_cloop"
    A("s_mov_b32 s26, 0")
    A.label(L)
    it_top(A)
    for b in range(6):
        if O.itstamp: A(f"s_memtime s[76:77]\ns_waitcnt lgkmcnt(0)\ns_cmp_eq_u32 s26, 0\ns_cselect_b32 s{85+b}, s76, s{85+b}")
        beat(b)
    A(f"s_add_u32 s26, s26, 1\ns_cmp_lt_u32 s26, 3\ns_cbranch_scc1 {L}")
    it_mid(A)
    beat(18); beat(19, last=True)
    it_end(A, 14, 15)
    st(); GS(A, 2)
    A(f"v_and_b32 v6, 15, v0\nv_mul_u32_u24 v6, {QP}, v6\nv_lshrrev_b32 v7, 4, v0\nv_lshl_add_u32 v6, v7, 3, v6")
    k = 0
    items = list(accs.items())
    for (key, a_) in items:
        A(f"v_cvt_pk_bf16_f32 v{16+2*k}, v{a_}, v{a_+1}\nv_cvt_pk_bf16_f32 v{17+2*k}, v{a_+2}, v{a_+3}")
        k += 1
    A(f"v_add_u32 v7, 0x8000, v6")
    k = 0
    for (key, a_) in items:
        m, t = key
        row = 0 if m == 'h' else 16 + 64*wm + 16*m
        off = row*QP + t*32
        if off < 65536: A(f"ds_write_b64 v6, v[{16+2*k}:{17+2*k}] offset:{off}")
        else: A(f"ds_write_b64 v7, v[{16+2*k}:{17+2*k}] offset:{off - 0x8000}")
        k += 1

def rot_table(A):
    A(f"s_and_b32 s28, s28, 3\ns_lshl_b32 s28, s28, 2\ns_lshr_b32 s28, {O.rottab if O.rot else 0}, s28\ns_and_b32 s28, s28, 15")

def k1(A):
    name = NAME + "_kernel"
    kernel_begin(A, name)
    A("s_cmp_ge_u32 s2, 256\ns_cbranch_scc1 K34_end")
    load_ptr(A, 30, 'x'); load_ptr(A, 32, 'ws'); load_ptr(A, 34, 'wqkv'); load_ptr(A, 36, 'win')
    load_ptr(A, 38, 'gw'); load_ptr(A, 44, 'wo'); load_ptr(A, 46, 'wout'); load_ptr(A, 52, 'wsp'); load_ptr(A, 50, 'dbg')
    wave_lane(A, 16)
    hd_start(A)
    st = Stamps(A, 0); st()
    GS(A, 0)
    A("s_waitcnt lgkmcnt(0)")
    A(f"s_add_u32 s96, s32, {WS_EP}\ns_addc_u32 s97, s33, 0\ns_load_dwordx2 s[98:99], s[96:97], 0")
    A("s_and_b32 s40, s2, 7\ns_lshr_b32 s41, s2, 3\ns_and_b32 s48, s40, 1\ns_lshl_b32 s48, s48, 3\ns_and_b32 s42, s41, 7\ns_add_u32 s48, s48, s42")
    A("s_lshr_b32 s49, s40, 1\ns_lshl_b32 s49, s49, 1\ns_lshr_b32 s43, s41, 3\ns_and_b32 s43, s43, 1\ns_add_u32 s49, s49, s43")
    A("s_lshl_b32 s28, s43, 1\ns_add_u32 s28, s28, s42")
    rot_table(A)
    A("s_cmp_lt_u32 s41, 16\ns_cbranch_scc1 K1_ztype")
    A("s_cmp_lt_u32 s16, 4\ns_cbranch_scc1 K1_qcomp")
    srd(A, 4, 30, 2048*640*2); srd(A, 8, 34, 640*1920*2)
    A("s_cmp_eq_u32 s16, 7\ns_cbranch_scc1 K1_qload3")
    k1_loader_q(A, False)
    A("s_branch K1_att")
    A.label("K1_qload3")
    k1_loader_q(A, True)
    A("s_branch K1_att")
    A.label("K1_qcomp")
    st()

    A("s_cmp_eq_u32 s16, 1\ns_cbranch_scc1 K1_q10\ns_cmp_eq_u32 s16, 2\ns_cbranch_scc1 K1_q01\ns_cmp_eq_u32 s16, 3\ns_cbranch_scc1 K1_q11")
    for (wm, wn) in ((0, 0), (1, 0), (0, 1), (1, 1)):
        if (wm, wn) != (0, 0): A.label(f"K1_q{wm}{wn}")
        stv = Stamps(A, 0, 2)
        k1_compute_q(A, wm, wn, stv)
        if (wm, wn) != (1, 1): A("s_branch K1_att")
    A.label("K1_att")
    st3 = Stamps(A, 0, 4)
    AV = 100

    A(f"s_and_b32 s46, s16, 3\ns_lshr_b32 s47, s16, 2\ns_mul_i32 s45, s46, 40\ns_mul_i32 s43, s47, {64*QP}\ns_add_u32 s45, s45, s43")
    A("s_or_b32 s43, s48, s47")
    attention_prep(A, AV, 45)
    T = 86
    A(f"s_lshl_b32 s20, s16, 6\nv_add_u32 v{T}, s20, v0")
    for i in range(3):
        c, r, q, la, ga = T+1, T+2, T+3, T+4+2*i, T+5+2*i
        A(f"v_add_u32 v{c}, {512*i}, v{T}")
        A(f"v_mul_u32_u24 v{r}, 6554, v{c}\nv_lshrrev_b32 v{r}, 16, v{r}")
        A(f"v_mul_u32_u24 v{q}, 10, v{r}\nv_sub_u32 v{q}, v{c}, v{q}")
        A(f"v_mul_u32_u24 v{la}, {QP}, v{r}\nv_lshl_add_u32 v{la}, v{q}, 4, v{la}\nv_add_u32 v{la}, {16*QP}, v{la}")
        A(f"s_lshl_b32 s20, s48, 7\nv_add_u32 v{ga}, s20, v{r}\nv_mul_u32_u24 v{ga}, 2816, v{ga}\nv_lshl_add_u32 v{ga}, v{q}, 4, v{ga}")
        A(f"s_mul_i32 s20, s49, 160\nv_add_u32 v{ga}, s20, v{ga}")
        if i == 2:
            A(f"v_mov_b32 v{q}, {KILL}\nv_cmp_le_u32 vcc, 1280, v{c}\nv_cndmask_b32 v{ga}, v{ga}, v{q}, vcc")
            A(f"v_mov_b32 v{q}, 0\nv_cndmask_b32 v{la}, v{la}, v{q}, vcc")
    srd(A, 12, 32, SZ_AU, WS_AU)
    A("s_waitcnt lgkmcnt(0)\ns_barrier")
    st3()
    attention_main(A, AV, 43)
    A("s_waitcnt lgkmcnt(0)\ns_barrier")
    st3()
    D = 16
    for i in range(3):
        A(f"ds_read_b64 v[{D+4*i}:{D+4*i+1}], v{T+4+2*i}\nds_read_b64 v[{D+4*i+2}:{D+4*i+3}], v{T+4+2*i} offset:8")
    A("s_waitcnt lgkmcnt(0)")
    for i in range(3): A(f"buffer_store_dwordx4 v[{D+4*i}:{D+4*i+3}], v{T+5+2*i}, s[12:15], 0 offen{O.k1st}")
    if O.stamp:
        A("s_cmp_ge_u32 s16, 4\ns_cbranch_scc1 K1_qnost")
    st3(); st3.flush(16, 32)
    A.label("K1_qnost")
    GS(A, 3)
    A("s_and_b32 s60, s2, 1\ns_lshl_b32 s60, s60, 2\ns_lshr_b32 s61, s2, 6\ns_add_u32 s60, s60, s61")
    srd(A, 12, 32, SZ_FZ2, WS_FZ2)
    A("s_lshl_b32 s60, s60, 8\nv_and_b32 v14, 31, v0\nv_lshlrev_b32 v14, 3, v14\nv_add_u32 v14, s60, v14")
    Lp = A.newlabel("K1_nopre")
    A(f"s_cmp_lg_u32 s16, 4\ns_cbranch_scc1 {Lp}")
    A("buffer_load_dwordx2 v[18:19], v14, s[12:15], 0 offen sc1")
    A.label(Lp)
    A("s_waitcnt vmcnt(0)\ns_barrier")
    srd(A, 12, 32, SZ_FQ, WS_FQ)
    A("s_lshl_b32 s20, s48, 6\ns_lshl_b32 s21, s49, 3\ns_add_u32 s20, s20, s21")
    A("s_branch K1_flag")
    A.label("K1_ztype")
    A("s_and_b32 s48, s40, 1\ns_lshl_b32 s48, s48, 4\ns_and_b32 s42, s41, 15\ns_add_u32 s48, s48, s42\ns_lshr_b32 s49, s40, 1")
    A("s_and_b32 s28, s42, 3")
    rot_table(A)
    A(f"s_mul_i32 s17, s48, {64*1280}")
    A("s_mul_i32 s19, s49, 384\ns_add_u32 s18, s19, 1536")
    A("s_cmp_lt_u32 s16, 4\ns_cbranch_scc1 K1_zcomp")
    srd(A, 4, 30, 2048*640*2); srd(A, 8, 36, 640*1536*2)
    k1_loader_z(A)
    A("s_branch K1_znost")
    A.label("K1_zcomp")
    st2 = Stamps(A, 0, 1); st2()
    A(f"s_lshr_b32 s20, s16, 1\ns_lshl_b32 s20, s20, 2\ns_add_u32 s20, s20, {ZFLG + 16}\nv_mov_b32 v14, s20\nv_mov_b32 v15, 0\nds_write_b32 v14, v15")
    k1_compute_z(A, st2)
    if O.stamp:
        A("s_cmp_ge_u32 s16, 4\ns_cbranch_scc1 K1_znost")
    st2(); st2.flush(16, 32)
    A.label("K1_znost")
    GS(A, 3)
    A("s_and_b32 s60, s2, 1\ns_lshl_b32 s60, s60, 2\ns_lshr_b32 s61, s2, 6\ns_add_u32 s60, s60, s61")
    srd(A, 12, 32, SZ_FZ2, WS_FZ2)
    A("s_lshl_b32 s60, s60, 8\nv_and_b32 v14, 31, v0\nv_lshlrev_b32 v14, 3, v14\nv_add_u32 v14, s60, v14")
    Lp = A.newlabel("K1_nopre")
    A(f"s_cmp_lg_u32 s16, 4\ns_cbranch_scc1 {Lp}")
    A("buffer_load_dwordx2 v[18:19], v14, s[12:15], 0 offen sc1")
    A.label(Lp)
    A("s_waitcnt vmcnt(0)\ns_barrier")
    srd(A, 12, 32, SZ_FZ, WS_FZ)
    A("s_lshr_b32 s20, s49, 1\ns_lshl_b32 s21, s48, 2\ns_add_u32 s20, s20, s21\ns_lshl_b32 s20, s20, 3")
    A.label("K1_flag")
    A("s_cmp_lg_u32 s16, 0\ns_cbranch_scc1 K1_done")
    A("s_add_u32 s21, s98, 1\nv_mov_b32 v8, s21\nv_mov_b32 v9, s99\nv_mov_b32 v10, s20")
    A("s_mov_b64 exec, 1")
    A("buffer_store_dwordx2 v[8:9], v10, s[12:15], 0 offen sc1")
    A("s_mov_b64 exec, -1")
    A.label("K1_done")
    GS(A, 4)
    return name, 256, 512, 155648 + 64, 256

SLOT = 20480
class E2:
    def __init__(self, A, pfx, NT, nsteps, pitchP, wave_m, wave_n, NS=6):
        self.A = A; self.pfx = pfx; self.NT = NT; self.n = nsteps; self.pitchP = pitchP
        self.mP = wave_m; self.nT = wave_n; self.NS = NS
        self.F = [8, 8 + 8*(wave_m + wave_n)]
        self.ACC = 8 + 16*(wave_m + wave_n)
        self.vend = self.ACC + 4*wave_m*wave_n
    def fP(self, s, kk, m): return self.F[s] + 4*(kk*(self.mP+self.nT) + m)
    def fT(self, s, kk, t): return self.F[s] + 4*(kk*(self.mP+self.nT) + self.mP + t)
    def acc(self, m, t): return self.ACC + 4*(m*self.nT + t)
    def loader_setup(self):
        A = self.A
        A("s_sub_u32 s21, s16, 4")
        A("v_lshrrev_b32 v7, 3, v0\nv_and_b32 v2, 7, v0\nv_xor_b32 v2, v2, v7")
        A(f"s_mov_b32 s20, {self.pitchP}\nv_mul_lo_u32 v7, v7, s20\nv_lshl_add_u32 v2, v2, 4, v7\nv_lshlrev_b32 v3, 4, v0")
        A(f"s_mul_i32 s20, s21, {16*self.pitchP}\ns_add_u32 s23, s17, s20")
        A("s_mul_i32 s20, s21, 3072\ns_add_u32 s24, s18, s20\ns_add_u32 s26, s20, 8192\ns_lshl_b32 s27, s21, 11")
        A("s_mov_b32 s28, 0\ns_mov_b32 s29, 0")
        if 2*self.NT < 12:
            A(f"s_mul_i32 s20, s21, 3\ns_cmp_ge_u32 s20, {2*self.NT - 1}\ns_cselect_b32 s28, {KILL}, 0\ns_cmp_ge_u32 s20, {2*self.NT - 2}\ns_cselect_b32 s29, {KILL}, 0")
        A("s_mov_b32 s22, 0")
    def issue(self):
        A = self.A
        A("s_add_u32 m0, s22, s27")
        A(f"s_add_u32 s20, s23, {8*self.pitchP - 1024}")
        A("buffer_load_dwordx4 v2, s[4:7], s23 offen lds")
        A("buffer_load_dwordx4 v2, s[4:7], s20 offen offset:1024 lds")
        A("s_add_u32 m0, s22, s26")
        if 2*self.NT < 12:
            A("s_add_u32 s25, s24, s28\ns_add_u32 s15, s24, s29")
            A("buffer_load_dwordx4 v3, s[8:11], s24 offen lds")
            A("buffer_load_dwordx4 v3, s[8:11], s25 offen offset:1024 lds")
            A("buffer_load_dwordx4 v3, s[8:11], s15 offen offset:2048 lds")
        else:
            A(f"buffer_load_dwordx4 v3, s[8:11], s24 offen{O.xl} lds")
            A(f"buffer_load_dwordx4 v3, s[8:11], s24 offen offset:1024{O.xl} lds")
            A(f"buffer_load_dwordx4 v3, s[8:11], s24 offen offset:2048{O.xl} lds")
        A(f"s_add_u32 s23, s23, 128\ns_add_u32 s24, s24, {self.NT*2048}")
        A(f"s_add_u32 s22, s22, {SLOT}\ns_cmp_eq_u32 s22, {self.NS*SLOT}\ns_cselect_b32 s22, 0, s22")
    def loader_main(self, pre_issued):
        A = self.A; NS = self.NS; n = self.n
        for i in range(pre_issued, NS - 1): self.issue()
        A(f"s_waitcnt vmcnt({(NS - 2)*5})")
        A("s_barrier")
        self.issue()
        L = self.pfx + "_lloop"
        A("s_mov_b32 s14, 0")
        A.label(L)
        A(f"s_waitcnt vmcnt({(NS-2)*5})\ns_barrier")
        self.issue()
        A(f"s_add_u32 s14, s14, 1\ns_cmp_lt_u32 s14, {n - NS}\ns_cbranch_scc1 {L}")
        for t in range(NS):
            i = n - NS + t
            rem = max(0, (n - 1) - (i + 1))
            A(f"s_waitcnt vmcnt({rem*5})\ns_barrier")
    def compute_setup(self, s_row, s_tile):
        A = self.A
        A("v_and_b32 v4, 15, v0\nv_lshrrev_b32 v5, 4, v0\nv_and_b32 v6, 7, v4\nv_xor_b32 v5, v5, v6\nv_lshlrev_b32 v4, 7, v4\nv_lshl_add_u32 v4, v5, 4, v4")
        A(f"s_lshl_b32 s20, s{s_row}, 7\nv_add_u32 v2, s20, v4\nv_xor_b32 v3, 64, v2")
        A("v_and_b32 v6, 15, v0\nv_lshlrev_b32 v6, 3, v6\nv_and_b32 v7, 16, v0\nv_lshl_add_u32 v6, v7, 3, v6\nv_and_b32 v7, 32, v0\nv_lshl_add_u32 v6, v7, 4, v6")
        A(f"s_lshl_b32 s20, s{s_tile}, 11\ns_add_u32 s20, s20, 8192\nv_add_u32 v4, s20, v6")
        A(f"v_add_u32 v5, {3*SLOT}, v2\nv_add_u32 v6, {3*SLOT}, v3\nv_add_u32 v7, {3*SLOT}, v4")
        for i in range(self.ACC, self.vend): A(f"v_mov_b32 v{i}, 0")
    def reads(self, step):
        s = step & 1; sl = step % self.NS; hi = 3 if sl >= 3 else 0; so = (sl - hi)*SLOT
        b = 3 if hi else 0
        r = []
        for kk in range(2):
            for m in range(self.mP):
                f = self.fP(s, kk, m); r.append(f"ds_read_b128 v[{f}:{f+3}], v{2+kk+b} offset:{so + m*2048}")
            for t in range(self.nT):
                f = self.fT(s, kk, t)
                for h in range(2): r.append(f"ds_read_b64_tr_b16 v[{f+2*h}:{f+2*h+1}], v{4+b} offset:{so + t*2048 + kk*1024 + h*256}")
        return r
    def step(self, i, last=False):
        A = self.A; s = i & 1
        rd = [] if last else self.reads(i + 1)
        mf = [f"v_mfma_f32_16x16x32_bf16 v[{self.acc(m,t)}:{self.acc(m,t)+3}], v[{self.fT(s,kk,t)}:{self.fT(s,kk,t)+3}], v[{self.fP(s,kk,m)}:{self.fP(s,kk,m)+3}], v[{self.acc(m,t)}:{self.acc(m,t)+3}]"
              for kk in range(2) for m in range(self.mP) for t in range(self.nT)]
        A("s_barrier")
        per = (len(rd) + len(mf) - 1)//len(mf) if rd else 0
        for x in mf:
            for _ in range(per):
                if rd: A(rd.pop(0))
            A(x)
        A("s_waitcnt lgkmcnt(0)")
    def compute(self, st, unroll=False, hooks=None):
        A = self.A; NS = self.NS; n = self.n
        assert NS % 2 == 0
        A("s_barrier")
        for x in self.reads(0): A(x)
        A("s_waitcnt lgkmcnt(0)")
        st()
        if unroll:
            for i in range(n):
                self.step(i, last=(i == n - 1))
                if hooks and i in hooks: hooks[i]()
            return
        nfull = (n - 1)//NS
        L = self.pfx + "_cloop"
        A("s_mov_b32 s19, 0")
        A.label(L)
        for i in range(NS): self.step(i)
        A(f"s_add_u32 s19, s19, 1\ns_cmp_lt_u32 s19, {nfull}\ns_cbranch_scc1 {L}")
        for i in range(nfull*NS, n): self.step(i, last=(i == n - 1))

def tile_map(A):
    A("s_and_b32 s42, s2, 7\ns_lshr_b32 s43, s2, 3\ns_lshr_b32 s40, s42, 1\ns_lshl_b32 s40, s40, 3\ns_and_b32 s44, s43, 7\ns_add_u32 s40, s40, s44")
    A("s_and_b32 s41, s42, 1\ns_lshl_b32 s41, s41, 2\ns_lshr_b32 s44, s43, 3\ns_add_u32 s41, s41, s44")

ATT_LDS = 6*SLOT
def attention_regs(V):
    R = dict(aQ=V+1, aK=V+2, aV=V+3, t0=V+4, t1=V+5, t2=V+6, M20=V+7, M21=V+8, N20=V+9, N21=V+10)
    S = (V + 12 + 3)//4*4
    R.update(S=S, QF=S+12, KF=S+22, VF=S+52, OO=(S+82+3)//4*4)
    return R
def attention_prep(A, V, s_off):
    R = attention_regs(V); aQ, aK, aV, t0, t1, t2 = R['aQ'], R['aK'], R['aV'], R['t0'], R['t1'], R['t2']
    M20, M21, N20, N21, S, OO = R['M20'], R['M21'], R['N20'], R['N21'], R['S'], R['OO']
    A(f"v_lshrrev_b32 v{t0}, 3, v0\nv_lshlrev_b32 v{t0}, 2, v{t0}\nv_and_b32 v{t1}, 3, v0\nv_add_u32 v{t0}, v{t0}, v{t1}")
    A(f"v_lshrrev_b32 v{t1}, 2, v0\nv_and_b32 v{t1}, 1, v{t1}\nv_lshl_add_u32 v{t0}, v{t0}, 1, v{t1}")
    A(f"v_mul_u32_u24 v{t0}, {QP}, v{t0}\nv_add_u32 v{aK}, s{s_off}, v{t0}\nv_add_u32 v{aQ}, {16*QP}, v{aK}")
    A(f"v_lshrrev_b32 v{t1}, 4, v0\nv_lshlrev_b32 v{t1}, 2, v{t1}\nv_and_b32 v{t2}, 3, v0\nv_add_u32 v{t1}, v{t1}, v{t2}")
    A(f"v_lshrrev_b32 v{t2}, 1, v{t1}\nv_lshlrev_b32 v{t2}, 2, v{t2}\nv_and_b32 v{t1}, 1, v{t1}")
    A(f"v_lshrrev_b32 v{aV}, 2, v0\nv_and_b32 v{aV}, 3, v{aV}\nv_add_u32 v{aV}, v{aV}, v{t2}\nv_lshl_add_u32 v{aV}, v{aV}, 1, v{t1}")
    A(f"v_mul_u32_u24 v{aV}, {QP}, v{aV}\nv_add_u32 v{aV}, s{s_off}, v{aV}")
    A(f"v_and_b32 v{t1}, 3, v0")
    A(f"v_mov_b32 v{M20}, 0xffff\nv_mov_b32 v{t2}, -1\nv_cmp_le_u32 vcc, 1, v{t1}\nv_cndmask_b32 v{M20}, v{M20}, v{t2}, vcc")
    A(f"v_mov_b32 v{M21}, 0\nv_mov_b32 v{t2}, 0xffff\nv_cmp_le_u32 vcc, 2, v{t1}\nv_cndmask_b32 v{M21}, v{M21}, v{t2}, vcc")
    A(f"v_mov_b32 v{t2}, -1\nv_cmp_eq_u32 vcc, 3, v{t1}\nv_cndmask_b32 v{M21}, v{M21}, v{t2}, vcc")
    A(f"v_not_b32 v{N20}, v{M20}\nv_not_b32 v{N21}, v{M21}")
    for i in range(12): A(f"v_mov_b32 v{S+i}, 0")
    for i in range(20): A(f"v_mov_b32 v{OO+i}, 0")
    A("s_mov_b32 s22, 0xeeeeeeee\ns_mov_b32 s23, 0xeeeeeeee\ns_mov_b32 s24, 0xcccccccc\ns_mov_b32 s25, 0xcccccccc\ns_mov_b32 s26, 0x88888888\ns_mov_b32 s27, 0x88888888")
def attention_main(A, V, s_bound):
    R = attention_regs(V); aQ, aK, aV, t0, t1, t2 = R['aQ'], R['aK'], R['aV'], R['t0'], R['t1'], R['t2']
    M20, M21, N20, N21, S, QF, KF, VF, OO = R['M20'], R['M21'], R['N20'], R['N21'], R['S'], R['QF'], R['KF'], R['VF'], R['OO']
    for dg in range(5):
        A(f"ds_read_b64 v[{QF+2*dg}:{QF+2*dg+1}], v{aQ} offset:{8*dg}")
        for c in range(3): A(f"ds_read_b64 v[{KF+2*(5*c+dg)}:{KF+2*(5*c+dg)+1}], v{aK} offset:{8*c*QP + 160 + 8*dg}")
    for dg in range(5):
        if dg == 0:
            A("s_waitcnt lgkmcnt(15)")
        rem = 20 - 4*(dg+1)
        A(f"s_waitcnt lgkmcnt({min(rem, 15)})")
        for c in range(3):
            A(f"v_mfma_f32_4x4x4_16b_bf16 v[{S+4*c}:{S+4*c+3}], v[{KF+2*(5*c+dg)}:{KF+2*(5*c+dg)+1}], v[{QF+2*dg}:{QF+2*dg+1}], v[{S+4*c}:{S+4*c+3}]")
    for c in range(3):
        for dg in range(5): A(f"ds_read_b64_tr_b16 v[{VF+2*(5*c+dg)}:{VF+2*(5*c+dg)+1}], v{aV} offset:{8*c*QP + 320 + 8*dg}")
    Lb = A.newlabel("att_nomask")
    A(f"s_cmp_lg_u32 s{s_bound}, 0\ns_cbranch_scc1 {Lb}")
    A(f"v_mov_b32 v{t2}, {f2u(-1e30)}")
    A("v_cmp_gt_u32 vcc, 16, v0")
    for i in range(4): A(f"v_cndmask_b32 v{S+i}, v{S+i}, v{t2}, vcc")
    A("v_cmp_gt_u32 vcc, 8, v0")
    for i in range(4): A(f"v_cndmask_b32 v{S+4+i}, v{S+4+i}, v{t2}, vcc")
    A("s_nop 4")
    A.label(Lb)
    A("s_nop 4")
    for i in range(1, 4): A(f"v_cndmask_b32 v{S+8+i}, v{S+i}, v{S+8+i}, s[{20+2*i}:{21+2*i}]")
    vals = [S+4+i for i in range(8)]
    A(f"v_max3_f32 v{t0}, v{vals[0]}, v{vals[1]}, v{vals[2]}\nv_max3_f32 v{t1}, v{vals[3]}, v{vals[4]}, v{vals[5]}\nv_max3_f32 v{t0}, v{t0}, v{vals[6]}, v{vals[7]}\nv_max_f32 v{t0}, v{t0}, v{t1}")
    SC = (20 ** -0.5) * 1.4426950408889634
    A(f"s_mov_b32 s20, {f2u(SC)}")
    A(f"v_mul_f32 v{t0}, s20, v{t0}")
    for x in vals: A(f"v_fma_f32 v{x}, v{x}, s20, -v{t0}")
    for x in vals: A(f"v_exp_f32 v{x}, v{x}")
    A(f"v_add_f32 v{t0}, v{vals[0]}, v{vals[1]}\nv_add_f32 v{t1}, v{vals[2]}, v{vals[3]}\nv_add_f32 v{t2}, v{vals[4]}, v{vals[5]}\nv_add_f32 v{t0}, v{t0}, v{t1}")
    A(f"v_add_f32 v{t1}, v{vals[6]}, v{vals[7]}\nv_add_f32 v{t0}, v{t0}, v{t2}\nv_add_f32 v{t0}, v{t0}, v{t1}")
    A(f"v_rcp_f32 v{t0}, v{t0}")
    for x in vals: A(f"v_mul_f32 v{x}, v{x}, v{t0}")
    PP = QF
    A(f"v_cvt_pk_bf16_f32 v{PP+2}, v{S+4}, v{S+5}\nv_cvt_pk_bf16_f32 v{PP+3}, v{S+6}, v{S+7}")
    A(f"v_cvt_pk_bf16_f32 v{t1}, v{S+8}, v{S+9}\nv_cvt_pk_bf16_f32 v{t2}, v{S+10}, v{S+11}")
    A(f"v_and_b32 v{PP+4}, v{t1}, v{M20}\nv_and_b32 v{PP+5}, v{t2}, v{M21}\nv_and_b32 v{PP}, v{t1}, v{N20}\nv_and_b32 v{PP+1}, v{t2}, v{N21}")
    A("s_waitcnt lgkmcnt(0)")
    for c in (1, 0, 2):
        for dg in range(5):
            A(f"v_mfma_f32_4x4x4_16b_bf16 v[{OO+4*dg}:{OO+4*dg+3}], v[{VF+2*(5*c+dg)}:{VF+2*(5*c+dg)+1}], v[{PP+2*c}:{PP+2*c+1}], v[{OO+4*dg}:{OO+4*dg+3}]")
    for dg in range(5):
        A(f"v_cvt_pk_bf16_f32 v{KF+2*dg}, v{OO+4*dg}, v{OO+4*dg+1}\nv_cvt_pk_bf16_f32 v{KF+2*dg+1}, v{OO+4*dg+2}, v{OO+4*dg+3}")
    for dg in range(5): A(f"ds_write_b64 v{aQ}, v[{KF+2*dg}:{KF+2*dg+1}] offset:{8*dg}")

def k3(A):
    name = "k3_kernel"
    kernel_begin(A, name)
    A("s_cmp_ge_u32 s2, 256\ns_cbranch_scc1 K3_end")
    load_ptr(A, 30, 'wsp'); load_ptr(A, 32, 'ws'); load_ptr(A, 34, 'bsp')
    wave_lane(A, 16)
    tile_map(A)
    st = Stamps(A, 2); st()
    E = E2(A, "K3", 6, 32, 4096, 2, 3)
    A(f"s_mul_i32 s17, s40, {64*4096}\ns_mul_i32 s18, s41, {32*6*2048}")
    A("s_waitcnt lgkmcnt(0)")
    A("s_cmp_lt_u32 s16, 4\ns_cbranch_scc1 K3_comp")
    srd(A, 4, 30, 2048*2048*2); srd(A, 8, 32, SZ_Z2P, WS_Z2P)
    E.loader_setup()
    E.loader_main(0)
    A("s_branch K3_end")
    A.label("K3_comp")
    A("s_and_b32 s46, s16, 1\ns_lshl_b32 s46, s46, 5\ns_lshr_b32 s47, s16, 1\ns_mul_i32 s47, s47, 3")
    PF = 116
    srd(A, 4, 32, SZ_Z1, WS_Z1); srd(A, 8, 32, SZ_G, WS_G); srd(A, 12, 34, 2048*2)
    A("s_lshl_b32 s43, s40, 6\ns_add_u32 s43, s43, s46")
    A("v_and_b32 v112, 15, v0\nv_add_u32 v112, s43, v112\nv_lshrrev_b32 v113, 4, v0")
    A("s_lshr_b32 s48, s43, 5\ns_mul_i32 s48, s48, 48\ns_mul_i32 s49, s41, 6\ns_add_u32 s48, s48, s49\ns_add_u32 s48, s48, s47\ns_lshl_b32 s48, s48, 10")
    A("v_lshlrev_b32 v114, 4, v0")
    for t in range(3): A(f"buffer_load_dwordx4 v[{PF+4*t}:{PF+4*t+3}], v114, s[4:7], s48 offen offset:{t*1024}")
    A("v_lshlrev_b32 v115, 2, v112")
    A(f"buffer_load_dword v{PF+12}, v115, s[8:11], 0 offen\nbuffer_load_dword v{PF+13}, v115, s[8:11], 0 offen offset:64")
    A("v_lshlrev_b32 v115, 1, v112")
    A(f"buffer_load_ushort v{PF+14}, v115, s[12:15], 0 offen\nbuffer_load_ushort v{PF+15}, v115, s[12:15], 0 offen offset:32")
    E.compute_setup(46, 47)
    st()
    E.compute(st)
    st()
    A("s_waitcnt vmcnt(0)")
    srd(A, 12, 32, SZ_AU, WS_AU)
    for m in range(2): A(f"v_lshlrev_b32 v{PF+14+m}, 16, v{PF+14+m}\nv_sub_f32 v{PF+12+m}, 1.0, v{PF+12+m}")
    T = 132
    for m in range(2):
        for t in range(3):
            ac = E.acc(m, t)
            for q in range(2):
                z = PF + 4*t + 2*m + q
                A(f"v_lshlrev_b32 v{T}, 16, v{z}\nv_and_b32 v{T+1}, 0xffff0000, v{z}")
                A(f"v_add_f32 v{T+2}, v{ac+2*q}, v{PF+14+m}\nv_add_f32 v{T+3}, v{ac+2*q+1}, v{PF+14+m}")
                A(f"v_mul_f32 v{T}, v{T}, v{PF+12+m}\nv_mul_f32 v{T+1}, v{T+1}, v{PF+12+m}")
                A(f"v_mul_f32 v{T+2}, v{T+2}, v{T}\nv_mul_f32 v{T+3}, v{T+3}, v{T+1}")
                A(f"v_cvt_pk_bf16_f32 v{z}, v{T+2}, v{T+3}")
    A("s_mov_b32 s45, 2816\nv_mul_lo_u32 v114, v112, s45\nv_lshl_add_u32 v114, v113, 3, v114")
    A("s_mul_i32 s48, s41, 192\ns_lshl_b32 s49, s47, 5\ns_add_u32 s48, s48, s49\ns_add_u32 s48, s48, 1280\nv_add_u32 v114, s48, v114")
    A(f"s_mov_b32 s49, {16*2816}")
    for m in range(2):
        for t in range(3):
            z = PF + 4*t + 2*m
            A(f"buffer_store_dwordx2 v[{z}:{z+1}], v114, s[12:15], {'s49' if m else '0'} offen offset:{t*32}")
    st(); st.flush(16, 32)
    A.label("K3_end")
    A("s_endpgm")
    return name, 256, 512, 6*SLOT, 140

def k4(A):
    name = "k4_kernel"
    kernel_begin(A, name)
    A("s_cmp_ge_u32 s2, 256\ns_cbranch_scc1 K4_end")
    load_ptr(A, 30, 'out'); load_ptr(A, 32, 'ws')
    wave_lane(A, 16)
    tile_map(A)
    st = Stamps(A, 3); st()
    E = E2(A, "K4", 5, 22, 2816, 1, 5)
    A(f"s_mul_i32 s17, s40, {64*2816}\ns_mul_i32 s18, s41, {22*5*2048}")
    A("s_waitcnt lgkmcnt(0)")
    A("s_cmp_lt_u32 s16, 4\ns_cbranch_scc1 K4_comp")
    srd(A, 4, 32, SZ_AU, WS_AU); srd(A, 8, 32, SZ_WP, WS_WP)
    E.loader_setup()
    E.loader_main(0)
    A("s_branch K4_end")
    A.label("K4_comp")
    A("s_lshl_b32 s46, s16, 4\ns_mov_b32 s47, 0")
    srd(A, 8, 32, SZ_G, WS_G)
    A("s_lshl_b32 s43, s40, 6\ns_add_u32 s43, s43, s46\nv_and_b32 v126, 15, v0\nv_add_u32 v126, s43, v126\nv_lshlrev_b32 v126, 2, v126")
    A("buffer_load_dword v125, v126, s[8:11], 0 offen")
    E.compute_setup(46, 47)
    st()
    def scale():
        A("s_waitcnt vmcnt(0)")
        for t in range(5):
            for r in range(4): A(f"v_mul_f32 v{E.acc(0,t)+r}, v{E.acc(0,t)+r}, v125")
    E.compute(st, unroll=True, hooks={9: scale})
    st()
    A("s_lshl_b32 s43, s40, 6\ns_add_u32 s43, s43, s46\nv_and_b32 v2, 15, v0\nv_add_u32 v2, s43, v2\nv_lshrrev_b32 v3, 4, v0")
    srd(A, 12, 30, 2048*640*2)
    PK = 8
    for t in range(5):
        ac = E.acc(0, t)
        A(f"v_cvt_pk_bf16_f32 v{PK+2*t}, v{ac}, v{ac+1}\nv_cvt_pk_bf16_f32 v{PK+2*t+1}, v{ac+2}, v{ac+3}")
    A("s_mov_b32 s45, 1280\nv_mul_lo_u32 v4, v2, s45\nv_lshl_add_u32 v4, v3, 3, v4\ns_mul_i32 s46, s41, 160\nv_add_u32 v4, s46, v4")
    for t in range(5): A(f"buffer_store_dwordx2 v[{PK+2*t}:{PK+2*t+1}], v4, s[12:15], 0 offen offset:{t*32}")
    st(); st.flush(16, 32)
    A.label("K4_end")
    A("s_endpgm")
    return name, 256, 512, 6*SLOT, 128

def k34(A):
    name = "k34_kernel"
    NS = 6; N1 = 32; N2 = 22; N = N1 + N2
    USTG = NS*SLOT
    LCNT = USTG + 64*208
    load_ptr(A, 30, 'wsp'); load_ptr(A, 34, 'bsp'); load_ptr(A, 36, 'out'); load_ptr(A, 38, 'dbg')
    tile_map(A)
    hd_start(A)
    st = Stamps(A, 2); st()
    E1 = E2(A, "K34a", 6, N1, 4096, 2, 3)
    def wait_zflags(tag, va, vd):
        srd(A, 12, 32, SZ_FZ, WS_FZ)
        A(f"v_lshlrev_b32 v{va}, 4, v0\ns_add_u32 s45, s98, 1\ns_mov_b32 s47, 0")
        A.label(f"K34_zp{tag}")
        A(f"buffer_load_dwordx4 v[{vd}:{vd+3}], v{va}, s[12:15], 0 offen sc1\ns_waitcnt vmcnt(0)")
        A(f"v_xor_b32 v{vd}, s45, v{vd}\nv_xor_b32 v{vd+1}, s99, v{vd+1}\nv_xor_b32 v{vd+2}, s45, v{vd+2}\nv_xor_b32 v{vd+3}, s99, v{vd+3}")
        A(f"v_or3_b32 v{vd}, v{vd}, v{vd+1}, v{vd+2}\nv_or_b32 v{vd}, v{vd}, v{vd+3}\nv_cmp_ne_u32 vcc, 0, v{vd}\ns_add_u32 s47, s47, 1\ns_nop 3")
        A(f"s_cbranch_vccz K34_zok{tag}\ns_sleep {O.sleep}\ns_cmp_lt_u32 s47, 0x10000\ns_cbranch_scc1 K34_zp{tag}")
        A.label(f"K34_zok{tag}")
    A("s_waitcnt lgkmcnt(0)")
    A("s_cmp_lt_u32 s16, 4\ns_cbranch_scc1 K34_comp")
    srd(A, 4, 30, 2048*2048*2); srd(A, 8, 32, SZ_Z2P, WS_Z2P)
    A(f"s_mul_i32 s17, s40, {64*4096}\ns_mul_i32 s18, s41, {32*6*2048}")
    E1.loader_setup()
    A("v_lshrrev_b32 v7, 3, v0\nv_and_b32 v4, 7, v0\nv_xor_b32 v4, v4, v7\nv_mul_u32_u24 v7, 2816, v7\nv_lshl_add_u32 v4, v4, 4, v7")
    A("v_lshrrev_b32 v7, 3, v0\nv_and_b32 v5, 7, v0\nv_xor_b32 v5, v5, v7\nv_mul_u32_u24 v7, 384, v7\nv_lshl_add_u32 v10, v5, 4, v7")
    for i in range(NS - 1):
        A(f"s_add_u32 m0, s27, {i*SLOT}\ns_add_u32 s20, s23, {i*128}\ns_add_u32 s25, s23, {i*128 + 8*4096 - 1024}")
        A("buffer_load_dwordx4 v2, s[4:7], s20 offen lds\nbuffer_load_dwordx4 v2, s[4:7], s25 offen offset:1024 lds")
    A("s_cmp_lg_u32 s16, 4\ns_cbranch_scc1 K34_lf")
    srd(A, 12, 32, SZ_FZ2, WS_FZ2)
    A("s_lshl_b32 s46, s41, 8\nv_and_b32 v14, 31, v0\nv_lshlrev_b32 v14, 3, v14\nv_add_u32 v14, s46, v14\ns_add_u32 s45, s98, 1\ns_mov_b32 s47, 0")
    A("v_mov_b32 v16, v18\nv_mov_b32 v17, v19\ns_branch K34_zpC")
    A.label("K34_zpL")
    A("buffer_load_dwordx2 v[16:17], v14, s[12:15], 0 offen sc1\ns_waitcnt vmcnt(0)")
    A.label("K34_zpC")
    A("v_xor_b32 v16, s45, v16\nv_xor_b32 v17, s99, v17\nv_or_b32 v16, v16, v17\nv_cmp_ne_u32 vcc, 0, v16\ns_add_u32 s47, s47, 1\ns_nop 3")
    A(f"s_cbranch_vccz K34_lf\ns_sleep {O.sleep2}\ns_cmp_lt_u32 s47, 0x10000\ns_cbranch_scc1 K34_zpL")
    A.label("K34_lf")
    A("s_barrier")
    for i in range(NS - 1):
        A(f"s_add_u32 m0, s26, {i*SLOT}\ns_add_u32 s20, s24, {i*6*2048}")
        for q in range(3): A(f"buffer_load_dwordx4 v3, s[8:11], s20 offen offset:{q*1024}{O.xl} lds")
    A(f"s_add_u32 s23, s23, {(NS-1)*128}\ns_add_u32 s24, s24, {(NS-1)*6*2048}\ns_mov_b32 s22, {(NS-1)*SLOT}")
    A(f"s_waitcnt vmcnt({(NS - 2)*3})\ns_barrier")
    E1.issue()
    for i in range(NS - 2):
        rem = (NS - 2 - (i + 1))*3 + (i + 1)*5
        A(f"s_waitcnt vmcnt({rem})\ns_barrier")
        E1.issue()
    def issue_static(slot):
        A(f"s_add_u32 m0, s27, {slot*SLOT}\ns_add_u32 s20, s23, {8*4096 - 1024}")
        A("buffer_load_dwordx4 v2, s[4:7], s23 offen lds")
        A("buffer_load_dwordx4 v2, s[4:7], s20 offen offset:1024 lds")
        A(f"s_add_u32 m0, s26, {slot*SLOT}\ns_add_u32 s23, s23, 128")
        for q in range(3): A(f"buffer_load_dwordx4 v3, s[8:11], s24 offen offset:{q*1024}{O.xl} lds")
        A(f"s_add_u32 s24, s24, {6*2048}")
    def lstep(i):
        A(f"s_waitcnt vmcnt({(NS-2)*5})\ns_barrier")
        issue_static((i + NS) % NS)
    for i in (4, 5): lstep(i)
    A("s_mov_b32 s14, 0")
    A.label("K34_lloop")
    for i in range(6, 12): lstep(i)
    A("s_add_u32 s14, s14, 1\ns_cmp_lt_u32 s14, 3\ns_cbranch_scc1 K34_lloop")
    for i in (24, 25): lstep(i)
    srd(A, 4, 32, SZ_AU, WS_AU); srd(A, 8, 32, SZ_WP, WS_WP); srd(A, 12, 32, SZ_FL, WS_FL)
    A(f"s_mul_i32 s17, s40, {64*2816}\ns_mul_i32 s20, s21, {16*2816}\ns_add_u32 s23, s17, s20")
    A(f"s_mul_i32 s18, s41, {22*5*2048}\ns_mul_i32 s20, s21, 3072\ns_add_u32 s24, s18, s20")
    A(f"s_mul_i32 s20, s21, 3\ns_cmp_ge_u32 s20, 9\ns_cselect_b32 s28, {KILL}, 0\ns_cmp_ge_u32 s20, 8\ns_cselect_b32 s29, {KILL}, 0")
    A("s_lshl_b32 s44, s40, 7\nv_and_b32 v8, 7, v0\nv_lshlrev_b32 v8, 3, v8\nv_add_u32 v8, s44, v8\ns_add_u32 s53, s98, 1")
    srd(A, 48, 32, SZ_U, WS_U)
    A(f"s_mul_i32 s52, s40, {4*24576}\ns_mul_i32 s20, s21, {16*384}\ns_add_u32 s52, s52, s20")
    issued = [('S', s) for s in range(N1 - NS + 2 - 1, N1) for _ in range(5)]
    def issueP(s):
        sl = s % NS; s2_ = s - N1
        fl = " sc1" if (s2_ >= 10 and O.usc1) else ""
        A(f"s_add_u32 m0, s27, {sl*SLOT}")
        if s2_ < 10:
            A(f"s_add_u32 s20, s23, {s2_*128}\ns_add_u32 s25, s23, {s2_*128 + 8*2816 - 1024}")
            A(f"buffer_load_dwordx4 v4, s[4:7], s20 offen{O.xl} lds")
            A(f"buffer_load_dwordx4 v4, s[4:7], s25 offen offset:1024{O.xl} lds")
        else:
            a_, b_ = divmod(s2_ - 10, 3)
            A(f"s_add_u32 s20, s52, {a_*24576 + b_*128}\ns_add_u32 s25, s52, {a_*24576 + b_*128 + 8*384 - 1024}")
            A(f"buffer_load_dwordx4 v10, s[48:51], s20 offen{fl} lds")
            A(f"buffer_load_dwordx4 v10, s[48:51], s25 offen offset:1024{fl} lds")
        issued.extend([('P', s)]*2)
    def issueT(s):
        sl = s % NS; s2_ = s - N1
        A(f"s_add_u32 m0, s26, {sl*SLOT}")
        A(f"s_add_u32 s20, s24, {s2_*10240}\ns_add_u32 s25, s20, s28\ns_add_u32 s45, s20, s29")
        A(f"buffer_load_dwordx4 v3, s[8:11], s20 offen{O.xl} lds")
        A(f"buffer_load_dwordx4 v3, s[8:11], s25 offen offset:1024{O.xl} lds")
        A(f"buffer_load_dwordx4 v3, s[8:11], s45 offen offset:2048{O.xl} lds")
        issued.extend([('T', s)]*3)
    def wait_for(needs):
        last = -1
        for idx, tg in enumerate(issued):
            if tg in needs: last = idx
        if last < 0: return
        A(f"s_waitcnt vmcnt({min(len(issued) - 1 - last, 63)})")
    FIRSTU = N1 + 10
    POLL_I = O.poll_i
    deferred = []
    gate_open = False
    for i in range(N1 - NS, N):
        nxt = i + 1
        if nxt < N:
            wait_for([('S', nxt), ('P', nxt), ('T', nxt)])
        A("s_barrier")
        if i == POLL_I + 1:
            wait_for([('X', 0)])
            A("v_xor_b32 v12, s53, v12\nv_xor_b32 v13, s99, v13\nv_or_b32 v12, v12, v13\nv_cmp_ne_u32 vcc, 0, v12\ns_nop 4")
            A("s_cbranch_vccz K34_ready")
            A("s_mov_b32 s47, 0")
            A.label("K34_poll")
            A(f"s_sleep {O.sleep}")
            A("buffer_load_dwordx2 v[12:13], v8, s[12:15], 0 offen sc1")
            A("s_waitcnt vmcnt(0)")
            A("v_xor_b32 v12, s53, v12\nv_xor_b32 v13, s99, v13\nv_or_b32 v12, v12, v13\nv_cmp_ne_u32 vcc, 0, v12")
            A("s_add_u32 s47, s47, 1\ns_nop 3")
            A("s_cbranch_vccz K34_ready")
            A("s_cmp_lt_u32 s47, 0x40000\ns_cbranch_scc1 K34_poll")
            A.label("K34_ready")
            gate_open = True
            for s in deferred: issueP(s)
            deferred = []
        s = i + NS
        if s < N:
            issueT(s)
            if s >= FIRSTU and not gate_open: deferred.append(s)
            else: issueP(s)
        if i == POLL_I:
            A("buffer_load_dwordx2 v[12:13], v8, s[12:15], 0 offen sc1")
            issued.append(('X', 0))
    assert not deferred
    A("s_branch K34_end")
    A.label("K34_comp")
    A("s_and_b32 s46, s16, 1\ns_lshl_b32 s46, s46, 5\ns_lshr_b32 s47, s16, 1\ns_mul_i32 s47, s47, 3")
    PF = 116
    C1R = 212
    C1R = 140
    C1R = 188
    BB = 132
    A("s_and_b32 s46, s16, 1\ns_lshl_b32 s46, s46, 5\ns_lshr_b32 s47, s16, 1\ns_mul_i32 s47, s47, 3")
    COA = 88
    A(f"s_mov_b32 s53, {USTG}")
    A(f"v_mov_b32 v138, {LCNT}\nv_mov_b32 v139, 0\nds_write_b32 v138, v139")
    E1.compute_setup(46, 47)
    E2b = E2(A, "K34b", 5, N2, 2816, 1, 5)
    E2b.F = [140, 188]; E2b.ACC = 236; E2b.vend = 256
    st()
    LA = [128, 129, 130]; GA = [131, 138, 139]
    def late_flag_setup():
        srd(A, 12, 32, SZ_FZ, WS_FZ); srd(A, 4, 32, SZ_FQ, WS_FQ)
        A("v_lshlrev_b32 v112, 4, v0")
        A("s_lshr_b32 s48, s40, 1\ns_lshl_b32 s48, s48, 6\nv_and_b32 v113, 7, v0\nv_lshlrev_b32 v113, 3, v113\nv_add_u32 v113, s48, v113")
    def late_flag_issue():
        A("buffer_load_dwordx4 v[116:119], v112, s[12:15], 0 offen sc1")
        A("buffer_load_dwordx2 v[120:121], v113, s[4:7], 0 offen sc1")
    def late_flag_check():
        A("s_add_u32 s45, s98, 1\ns_mov_b32 s49, 0")
        A.label("K34_lc")
        A("s_waitcnt vmcnt(0)")
        A("v_xor_b32 v116, s45, v116\nv_xor_b32 v117, s99, v117\nv_xor_b32 v118, s45, v118\nv_xor_b32 v119, s99, v119\nv_xor_b32 v120, s45, v120\nv_xor_b32 v121, s99, v121")
        A("v_or3_b32 v116, v116, v117, v118\nv_or3_b32 v116, v116, v119, v120\nv_or_b32 v116, v116, v121\nv_cmp_ne_u32 vcc, 0, v116\ns_add_u32 s49, s49, 1\ns_nop 3")
        A("s_cbranch_vccz K34_lcok\ns_cmp_ge_u32 s49, 0x10000\ns_cbranch_scc1 K34_lcok")
        A("buffer_load_dwordx4 v[116:119], v112, s[12:15], 0 offen sc1\nbuffer_load_dwordx2 v[120:121], v113, s[4:7], 0 offen sc1\ns_branch K34_lc")
        A.label("K34_lcok")
    def late_loads():
        srd(A, 4, 32, SZ_Z1, WS_Z1); srd(A, 8, 32, SZ_G, WS_G); srd(A, 12, 34, 2048*2)
        A("s_lshl_b32 s43, s40, 6\ns_add_u32 s43, s43, s46")
        A("v_and_b32 v112, 15, v0\nv_add_u32 v112, s43, v112\nv_lshrrev_b32 v113, 4, v0")
        A("s_lshr_b32 s48, s43, 5\ns_mul_i32 s48, s48, 48\ns_mul_i32 s49, s41, 6\ns_add_u32 s48, s48, s49\ns_add_u32 s48, s48, s47\ns_lshl_b32 s48, s48, 10")
        A("v_lshlrev_b32 v114, 4, v0")
        for t in range(3): A(f"buffer_load_dwordx4 v[{PF+4*t}:{PF+4*t+3}], v114, s[4:7], s48 offen offset:{t*1024} sc1")
        A("v_lshlrev_b32 v115, 2, v112")
        A(f"buffer_load_dword v{PF+12}, v115, s[8:11], 0 offen sc1\nbuffer_load_dword v{PF+13}, v115, s[8:11], 0 offen offset:64 sc1")
        A("v_lshlrev_b32 v115, 1, v112")
        A(f"buffer_load_ushort v{PF+14}, v115, s[12:15], 0 offen\nbuffer_load_ushort v{PF+15}, v115, s[12:15], 0 offen offset:32")
        A("s_lshl_b32 s50, s40, 6\ns_lshl_b32 s51, s16, 4\ns_add_u32 s50, s50, s51\nv_and_b32 v137, 15, v0\nv_add_u32 v137, s50, v137\nv_lshlrev_b32 v138, 2, v137")
        A("buffer_load_dword v136, v138, s[8:11], 0 offen sc1")
    def late_pre():
        A("s_waitcnt vmcnt(0)")
        for m in range(2):
            A(f"v_lshlrev_b32 v{BB+2*m}, 16, v{PF+14+m}\nv_mov_b32 v{BB+2*m+1}, v{BB+2*m}\nv_sub_f32 v{PF+12+m}, 1.0, v{PF+12+m}")
        for m in range(2):
            for t in range(3):
                c = C1R + 4*(3*m + t)
                for q in range(2):
                    z = PF + 4*t + 2*m + q
                    A(f"v_lshlrev_b32 v{c+2*q}, 16, v{z}\nv_and_b32 v{c+2*q+1}, 0xffff0000, v{z}")
        for m in range(2):
            for t in range(3):
                c = C1R + 4*(3*m + t)
                for r in range(4): A(f"v_mul_f32 v{c+r}, v{c+r}, v{PF+12+m}")
        A("s_mul_i32 s20, s16, 192\nv_add_u32 v112, s20, v0")
        for q in range(3):
            A(f"v_add_u32 v115, {64*q}, v112\nv_mul_u32_u24 v114, 5462, v115\nv_lshrrev_b32 v114, 16, v114")
            A(f"v_mul_u32_u24 v{LA[q]}, 12, v114\nv_sub_u32 v115, v115, v{LA[q]}\nv_lshlrev_b32 v115, 4, v115")
            A(f"v_mul_u32_u24 v{LA[q]}, 208, v114\nv_add3_u32 v{LA[q]}, v{LA[q]}, v115, s53\nv_mul_u32_u24 v{GA[q]}, 384, v114\nv_add_u32 v{GA[q]}, v{GA[q]}, v115")
        A("v_and_b32 v114, 15, v0\nv_add_u32 v114, s46, v114\nv_mul_u32_u24 v114, 208, v114\nv_lshl_add_u32 v114, v113, 3, v114")
        A(f"s_lshl_b32 s48, s47, 5\ns_add_u32 s48, s48, {USTG}\nv_add_u32 v114, s48, v114")
        A("v_and_b32 v115, 15, v0\nv_add_u32 v115, s46, v115\nv_and_b32 v112, 1, v113\nv_lshl_add_u32 v115, v112, 4, v115\nv_mul_u32_u24 v115, 208, v115\nv_lshrrev_b32 v112, 1, v113\nv_lshl_add_u32 v115, v112, 4, v115\nv_add_u32 v115, s48, v115")
    A("s_barrier")
    GS(A, 5)
    A("s_barrier")
    GS(A, 6); G2(A, 0)
    for x in E1.reads(0): A(x)
    A("s_waitcnt lgkmcnt(0)")
    st()
    A("s_mov_b32 s19, 0")
    A.label("K34_cloop")
    for i in range(NS): E1.step(i)
    if O.gs2:
        A("s_memtime s[90:91]\ns_waitcnt lgkmcnt(0)")
        for k in range(3): A(f"s_cmp_eq_u32 s19, {k}\ns_cselect_b32 s{66+2*k}, s90, s{66+2*k}")
    A(f"s_add_u32 s19, s19, 1\ns_cmp_lt_u32 s19, {O.lf0//6}\ns_cbranch_scc1 K34_cloop")
    late_flag_setup()
    A("s_cmp_lg_u32 s16, 0\ns_cbranch_scc1 K34_nf1")
    late_flag_issue()
    A.label("K34_nf1")
    for i in range(O.lf0, O.lf0 + 2): E1.step(i)
    A("s_cmp_lg_u32 s16, 0\ns_cbranch_scc1 K34_nf2")
    late_flag_check()
    A.label("K34_nf2")
    G2(A, 4)
    E1.step(O.lf0 + 2)
    late_loads()
    G2(A, 5)
    for i in range(O.lf0 + 3, 30):
        E1.step(i)
        if i in (23, 26, 29): G2(A, 6 + (23, 26, 29).index(i))
    late_pre()
    G2(A, 9)
    E1.step(30)
    A("v_and_b32 v4, 15, v0\nv_lshrrev_b32 v5, 4, v0\nv_and_b32 v6, 7, v4\nv_xor_b32 v5, v5, v6\nv_lshlrev_b32 v4, 7, v4\nv_lshl_add_u32 v4, v5, 4, v4")
    A("s_lshl_b32 s20, s16, 11\nv_add_u32 v2, s20, v4\nv_xor_b32 v3, 64, v2")
    A("v_and_b32 v6, 15, v0\nv_lshlrev_b32 v6, 3, v6\nv_and_b32 v7, 16, v0\nv_lshl_add_u32 v6, v7, 3, v6\nv_and_b32 v7, 32, v0\nv_lshl_add_u32 v6, v7, 4, v6")
    A("v_add_u32 v4, 8192, v6")
    A(f"v_add_u32 v5, {3*SLOT}, v2\nv_add_u32 v6, {3*SLOT}, v3\nv_add_u32 v7, {3*SLOT}, v4")
    for i in range(236, 256): A(f"v_mov_b32 v{i}, 0")
    def mixed_step(Ecur, icur, Enext, inext, after_barrier=None):
        s = icur & 1
        rd = Enext.reads(inext) if Enext else []
        mf = [f"v_mfma_f32_16x16x32_bf16 v[{Ecur.acc(m,t)}:{Ecur.acc(m,t)+3}], v[{Ecur.fT(s,kk,t)}:{Ecur.fT(s,kk,t)+3}], v[{Ecur.fP(s,kk,m)}:{Ecur.fP(s,kk,m)+3}], v[{Ecur.acc(m,t)}:{Ecur.acc(m,t)+3}]"
              for kk in range(2) for m in range(Ecur.mP) for t in range(Ecur.nT)]
        A("s_barrier")
        if after_barrier: after_barrier()
        per = (len(rd) + len(mf) - 1)//len(mf) if rd else 0
        for x in mf:
            for _ in range(per):
                if rd: A(rd.pop(0))
            A(x)
        A("s_waitcnt lgkmcnt(0)")
    mixed_step(E1, 31, E2b, 32)
    st(); GS(A, 7); G2(A, 10)
    for m in range(2):
        for t in range(3):
            ac = E1.acc(m, t); c = C1R + 4*(3*m + t)
            for q in range(2):
                A(f"v_pk_add_f32 v[{ac+2*q}:{ac+2*q+1}], v[{ac+2*q}:{ac+2*q+1}], v[{PF+14+m-(PF+14+m)%2 if False else BB+2*m}:{BB+2*m+1}]")
    for m in range(2):
        for t in range(3):
            ac = E1.acc(m, t); c = C1R + 4*(3*m + t)
            for q in range(2):
                A(f"v_pk_mul_f32 v[{ac+2*q}:{ac+2*q+1}], v[{ac+2*q}:{ac+2*q+1}], v[{c+2*q}:{c+2*q+1}]")
    if O.fine2: st()
    for m in range(2):
        for t in range(3):
            ac = E1.acc(m, t); z = PF + 4*t + 2*m
            A(f"v_cvt_pk_bf16_f32 v{z}, v{ac}, v{ac+1}\nv_cvt_pk_bf16_f32 v{z+1}, v{ac+2}, v{ac+3}")
    if O.fine2: st()
    if O.stg128:
        for t in range(3):
            d = PF + 4*t
            A(f"v_permlane16_swap_b32 v{d}, v{d+2}\nv_permlane16_swap_b32 v{d+1}, v{d+3}")
        for t in range(3):
            A(f"ds_write_b128 v115, v[{PF+4*t}:{PF+4*t+3}] offset:{t*32}")
    else:
        for m in range(2):
            for t in range(3):
                z = PF + 4*t + 2*m
                A(f"ds_write_b64 v114, v[{z}:{z+1}] offset:{m*16*208 + t*32}")
    A("s_waitcnt lgkmcnt(0)")
    st()
    def signal():
        A("s_waitcnt vmcnt(0)")
        A(f"v_mov_b32 v138, {LCNT}\nv_mov_b32 v139, 1")
        A("s_mov_b64 exec, 1")
        A("ds_add_rtn_u32 v139, v138, v139")
        A("s_waitcnt lgkmcnt(0)")
        A("v_readfirstlane_b32 s20, v139")
        A("s_cmp_lg_u32 s20, 3\ns_cbranch_scc1 K34_nosig")
        srd(A, 12, 32, SZ_FL, WS_FL)
        A("s_lshl_b32 s20, s40, 7\ns_lshl_b32 s21, s41, 3\ns_add_u32 s20, s20, s21\nv_mov_b32 v112, s20\ns_add_u32 s21, s98, 1\nv_mov_b32 v138, s21\nv_mov_b32 v139, s99")
        A("buffer_store_dwordx2 v[138:139], v112, s[12:15], 0 offen sc1")
        A.label("K34_nosig")
        A("s_mov_b64 exec, -1")
    def copy_out():
        srd(A, 12, 32, SZ_U, WS_U)
        for q in range(3): A(f"ds_read_b128 v[{PF+4*q}:{PF+4*q+3}], v{LA[q]}")
        A("s_lshl_b32 s48, s40, 2\ns_lshr_b32 s49, s41, 1\ns_add_u32 s48, s48, s49\ns_mul_i32 s48, s48, 24576\ns_and_b32 s49, s41, 1\ns_mul_i32 s49, s49, 192\ns_add_u32 s48, s48, s49")
        A("s_waitcnt lgkmcnt(0)")
        for q in range(3): A(f"buffer_store_dwordx4 v[{PF+4*q}:{PF+4*q+3}], v{GA[q]}, s[12:15], s48 offen{O.ustore}")
    for i in range(N1, N):
        last = (i == N - 1)
        mixed_step(E2b, i, None if last else E2b, i + 1, after_barrier=(copy_out if i == N1 else None))
        if i in ((32, 33, 36, 40, 41) if O.fine2 else (32, 33, 34, 36, 38, 40, 41, 42, 45)): st()
        if i in (36, 40, 41, 45): GS(A, 8 + (36, 40, 41, 45).index(i))
        if i == O.sig_i: signal()
        if i == N1 + 9:
            for t in range(5):
                for r in range(4): A(f"v_mul_f32 v{E2b.acc(0,t)+r}, v{E2b.acc(0,t)+r}, v136")
    st()
    srd(A, 12, 36, 2048*640*2)
    PK = 8
    for t in range(5):
        ac = E2b.acc(0, t)
        A(f"v_cvt_pk_bf16_f32 v{PK+2*t}, v{ac}, v{ac+1}\nv_cvt_pk_bf16_f32 v{PK+2*t+1}, v{ac+2}, v{ac+3}")
    A("v_lshrrev_b32 v3, 4, v0\ns_mov_b32 s45, 1280\nv_mul_lo_u32 v4, v137, s45\nv_lshl_add_u32 v4, v3, 3, v4\ns_mul_i32 s46, s41, 160\nv_add_u32 v4, s46, v4")
    for t in range(5): A(f"buffer_store_dwordx2 v[{PK+2*t}:{PK+2*t+1}], v4, s[12:15], 0 offen offset:{t*32}{O.outst}")
    st(); st.flush(16, 32, 20)
    GS(A, 12); GS_flush(A, 13, 20)
    hd_end(A, 32, 2, 0, 60)
    if O.hdiag2:
        A("s_cmp_lg_u32 s2, 0\ns_cbranch_scc1 K34_end\ns_cmp_lg_u32 s16, 0\ns_cbranch_scc1 K34_end")
        A("s_waitcnt vmcnt(0)")
        srd(A, 84, 32, 0x100000, WS_TS); srd(A, 88, 38, 256)
        sel = [(0, 0, i) for i in (2, 3, 5, 7, 8, 9, 10)] + [(0, 128, i) for i in (2, 3, 4, 6)] + [(2, 0, i) for i in (2, 3, 11, 12, 15)]
        A("v_mov_b32 v60, 0\nv_mov_b32 v61, 0")
        for ln, (k, wg, i) in enumerate(sel):
            base = k*0x40000 + wg*4*128
            A(f"v_cmp_eq_u32 vcc, {ln}, v0\nv_mov_b32 v62, {base + 4*i}\nv_cndmask_b32 v60, v60, v62, vcc\nv_mov_b32 v62, {base}\nv_cndmask_b32 v61, v61, v62, vcc")
        A("v_cmp_gt_u32 vcc, 16, v0\ns_and_saveexec_b64 s[20:21], vcc")
        A("buffer_load_dword v63, v60, s[84:87], 0 offen sc1\nbuffer_load_dword v64, v61, s[84:87], 0 offen sc1\ns_waitcnt vmcnt(0)")
        A("v_sub_u32 v63, v63, v64\nv_lshlrev_b32 v60, 2, v0\nbuffer_store_dword v63, v60, s[88:91], 0 offen")
    if O.hdiag:
        A("s_cmp_lg_u32 s2, 0\ns_cbranch_scc1 K34_end\ns_cmp_lg_u32 s16, 0\ns_cbranch_scc1 K34_end")
        A("s_waitcnt vmcnt(0)")
        srd(A, 84, 32, 4096, WS_TS); srd(A, 88, 38, 256)
        A("v_lshlrev_b32 v60, 2, v0\nv_cmp_gt_u32 vcc, 12, v0\ns_and_saveexec_b64 s[20:21], vcc")
        A("buffer_load_dword v61, v60, s[84:87], 0 offen sc1\ns_waitcnt vmcnt(0)\nbuffer_store_dword v61, v60, s[88:91], 0 offen")
    A("s_or_b32 s20, s2, s16\ns_cmp_lg_u32 s20, 0\ns_cbranch_scc1 K34_end")
    srd(A, 12, 32, SZ_FQ, WS_FQ)
    A("v_lshlrev_b32 v14, 4, v0\ns_add_u32 s45, s98, 1\ns_mov_b32 s47, 0")
    A.label("K34_ep")
    A("buffer_load_dwordx4 v[16:19], v14, s[12:15], 0 offen sc1\ns_waitcnt vmcnt(0)")
    A("v_xor_b32 v16, s45, v16\nv_xor_b32 v17, s99, v17\nv_xor_b32 v18, s45, v18\nv_xor_b32 v19, s99, v19\nv_or3_b32 v16, v16, v17, v18\nv_or_b32 v16, v16, v19\nv_cmp_ne_u32 vcc, 0, v16\ns_add_u32 s47, s47, 1\ns_nop 3")
    A("s_cbranch_vccz K34_epok\ns_cmp_lt_u32 s47, 0x10000\ns_cbranch_scc1 K34_ep")
    A.label("K34_epok")
    srd(A, 12, 32, SZ_EP, WS_EP)
    A("v_mov_b32 v16, s45\nv_mov_b32 v17, s99\nv_mov_b32 v14, 0\ns_mov_b64 exec, 1")
    A("buffer_store_dwordx2 v[16:17], v14, s[12:15], 0 offen sc1")
    A.label("K34_end")
    A("s_endpgm")
    return name, 256, 512, NS*SLOT + 64*208 + 64, 256

def main(out):
    body = Asm()
    n, g, b, lds, vg = k1(body)
    k34(body)
    hdr = [f"; @launch grid=({g},1,1) block=({b},1,1) lds={lds}"]
    hdr.append('.amdgcn_target "amdgcn-amd-amdhsa--gfx950"'); hdr.append(".text")
    lines = hazard.fix(body.lines, verbose=True)
    txt = "\n".join(hdr) + "\n" + "\n".join(lines) + "\n" + '.section .rodata,"a"\n' + kernel_desc(n, 256, 102)
    open(out, "w").write(txt)
if __name__ == "__main__":
    if '--stamp' in sys.argv: O.stamp = True
    if '--norot' in sys.argv: O.rot = False
    if '--pfg' in sys.argv: O.pfg = True
    if '--nofull' in sys.argv: O.fullring = False
    for a_ in sys.argv:
        if a_.startswith('--tla='): O.tla = int(a_[6:])
    for a_ in sys.argv:
        if a_.startswith('--pfg2='): O.pfg2 = int(a_[7:])
    if '--itstamp' in sys.argv: O.itstamp = True
    if '--nowsp' in sys.argv: O.wsp_pf = False
    for a_ in sys.argv:
        if a_.startswith('--poll='): O.poll_i = int(a_[7:])
        if a_.startswith('--sig='): O.sig_i = int(a_[6:])
    if '--full' in sys.argv: O.fullring = True; O.tla = 6
    if '--nofuse' in sys.argv: O.fuse = False
    if '--nosc1' in sys.argv: O.usc1 = False
    if '--hdiag' in sys.argv: O.hdiag = True
    if '--fine2' in sys.argv: O.fine2 = True
    if '--gs' in sys.argv: O.gs = True
    if '--gs3' in sys.argv: O.gs3 = True
    for a_ in sys.argv:
        if a_.startswith('--zn='): O.zn = int(a_[5:])
        if a_.startswith('--sst='): O.sst = int(a_[6:])
        if a_.startswith('--zp='): O.zp = int(a_[5:])
        if a_.startswith('--zs='): O.zs = int(a_[5:])
    if '--gs2' in sys.argv: O.gs2 = True
    if '--lt' in sys.argv: O.lt = True
    if '--nodefer' in sys.argv: O.defer = False
    for a_ in sys.argv:
        if a_.startswith('--hb='): O.hb = int(a_[5:])
    if '--xlplain' in sys.argv: O.xl = ''
    if '--k1sc1' in sys.argv: O.k1st = ' sc1'
    if '--k1nt' in sys.argv: O.k1st = ' nt'
    if '--outsc1' in sys.argv: O.outst = ' sc1'
    if '--outnt' in sys.argv: O.outst = ' nt'
    if '--hdiag2' in sys.argv: O.hdiag2 = True; O.stamp = True
    if '--stg64' in sys.argv: O.stg128 = False
    if '--uplain' in sys.argv: O.ustore = ''
    if '--unt' in sys.argv: O.ustore = ' sc1 nt'
    if '--usc01' in sys.argv: O.ustore = ' sc0 sc1'
    for a_ in sys.argv:
        if a_.startswith('--rottab='): O.rottab = int(a_[9:], 16)
    for a_ in sys.argv:
        if a_.startswith('--sleep='): O.sleep = int(a_[8:])
    main(sys.argv[1])
```

```python
import sys, struct
from asmlib import *
import hazard
NAME = "gated_mix__sliding_local_dilated__mixer_gmlp__prompt"
KA = dict(x=0, wqkv=8, wo=16, bx=24, win=32, wsp=40, bsp=48, wout=56, gw=64, out=72, dbg=80, ws=88)
QP = 504
HGS = 2048*QP
WS_QKVG = 0;          SZ_QKVG = 8*HGS
WS_Z1  = 0x900000;    SZ_Z1 = 2048*768*2
WS_Z2P = 0xC00000;    SZ_Z2P = 2048*768*2
WS_AU  = 0xF00000;    SZ_AU = 2048*1408*2
WS_WP  = 0x1500000;   SZ_WP = 1408*640*2
WS_ST  = 0x1700000;   SZ_ST = 8*2048*16
WS_G   = 0x1740000;   SZ_G = 2048*4
WS_EP  = 0x1760000;   SZ_EP = 128
WS_FZ  = 0x1770000;   SZ_FZ = 8*128
WS_FZ2 = 0x1790000;   SZ_FZ2 = 8*256
WS_FQ  = 0x1780000;   SZ_FQ = 16*64
WS_FL  = 0x1750000;   SZ_FL = 32*128
WS_U   = 0x1800000;   SZ_U = 2048*768*2
WS_TS  = 0x2000000
KILL = 0x40000000
C0 = -2.0*0.7978845608028654*1.4426950408889634
C1 = C0*0.044715
def f2u(f): return struct.unpack('<I', struct.pack('<f', f))[0]
class Opt:
    stamp = False; rot = True; wsp_pf = True; la = 5; itstamp = False; pfg = False; pfg2 = 2; fullring = False; tla = 4; poll_i = 38; sig_i = 36; fuse = True; hdiag2 = False; k1st = ' sc1'; outst = ''; xl = ' sc1'; sleep2 = 8; lt = False; gs2 = False; sst = 18; zp = 1; zn = 12; zs = 16; zmid = 1; zrot = None; earlyp = True; wide_out = True; prio = ''; gs3 = False; lf0 = 18; hb = 16; defer = True; gs = False; fine2 = False; stg128 = True; usc1 = True; ustore = ' sc1'; hdiag = False; sleep = 8; rottab = 0x8530
O = Opt()

def load_ptr(A, sd, key): A(f"s_load_dwordx2 s[{sd}:{sd+1}], s[0:1], {KA[key]}")
def wave_lane(A, s_w):
    A("v_lshrrev_b32 v1, 6, v0")
    A(f"v_readfirstlane_b32 s{s_w}, v1")
    A("v_and_b32 v0, 63, v0")

class Stamps:
    def __init__(self, A, kidx, n0=0): self.A = A; self.n = n0; self.k = kidx
    def __call__(self):
        if not O.stamp: return
        assert self.n < 16
        self.A(f"s_memtime s[{60+2*self.n}:{61+2*self.n}]"); self.n += 1
    def flush(self, s_w, s_ws, vt=250):
        if not O.stamp: return
        A = self.A
        A("s_waitcnt vmcnt(0)")
        A("s_memrealtime s[92:93]")
        A("s_waitcnt lgkmcnt(0)")
        srd(A, 56, s_ws, 0x100000, WS_TS + self.k*0x40000)
        A(f"s_lshl_b32 s54, s2, 2\ns_add_u32 s54, s54, s{s_w}\ns_lshl_b32 s54, s54, 7")
        A("s_mov_b64 exec, 1")
        for i in range(self.n):
            A(f"v_mov_b32 v{vt}, s{60+2*i}\nv_mov_b32 v{vt+1}, {4*i}")
            A(f"buffer_store_dword v{vt}, v{vt+1}, s[56:59], s54 offen")
        A(f"v_mov_b32 v{vt}, s92\nv_mov_b32 v{vt+1}, 124")
        A(f"buffer_store_dword v{vt}, v{vt+1}, s[56:59], s54 offen")
        A("s_mov_b64 exec, -1")


def it_top(A):
    if not O.itstamp: return
    A("s_memtime s[76:77]\ns_waitcnt lgkmcnt(0)")
    for k in range(3): A(f"s_cmp_eq_u32 s26, {k}\ns_cselect_b32 s{80+k}, s76, s{80+k}")
def it_mid(A):
    if O.itstamp: A("s_memtime s[76:77]\ns_waitcnt lgkmcnt(0)\ns_mov_b32 s83, s76")
def it_end(A, va, vb):
    if not O.itstamp: return
    A("s_memtime s[76:77]\ns_waitcnt lgkmcnt(0)\ns_mov_b32 s84, s76")
    srd(A, 56, 32, 0x200000, WS_TS + 7*0x40000)
    A("s_lshl_b32 s54, s2, 2\ns_add_u32 s54, s54, s16\ns_lshl_b32 s54, s54, 7")
    A("s_mov_b64 exec, 1")
    for i in range(11):
        A(f"v_mov_b32 v{va}, s{80+i}\nv_mov_b32 v{vb}, {4*i}")
        A(f"buffer_store_dword v{va}, v{vb}, s[56:59], s54 offen")
    A("s_mov_b64 exec, -1")


def hd_start(A):
    if O.hdiag: A("s_memtime s[94:95]\ns_memrealtime s[92:93]\ns_waitcnt lgkmcnt(0)\ns_mov_b32 s90, s94\ns_mov_b32 s91, s92")
def hd_end(A, s_ws, slot_sreg_expr, cond_wg, vt):
    if not O.hdiag: return
    L = A.newlabel("hd")
    A(f"s_cmp_lg_u32 s2, {cond_wg}\ns_cbranch_scc1 {L}\ns_cmp_lg_u32 s16, 0\ns_cbranch_scc1 {L}")
    A("s_waitcnt vmcnt(0)\ns_memtime s[94:95]\ns_memrealtime s[92:93]\ns_waitcnt lgkmcnt(0)")
    A("s_sub_u32 s94, s94, s90\ns_sub_u32 s95, s92, s91")
    srd(A, 84, s_ws, 4096, WS_TS)
    A(f"v_mov_b32 v{vt}, s94\nv_mov_b32 v{vt+1}, s95\nv_mov_b32 v{vt+2}, s91\nv_mov_b32 v{vt+3}, s92\nv_mov_b32 v{vt+4}, {slot_sreg_expr*16}")
    A("s_mov_b64 exec, 1")
    A(f"buffer_store_dwordx4 v[{vt}:{vt+3}], v{vt+4}, s[84:87], 0 offen")
    A("s_mov_b64 exec, -1")
    A.label(L)


def GS(A, i):
    if O.gs: A(f"s_memtime s[{64+2*i}:{65+2*i}]")
def G2(A, i):
    if O.gs2: A(f"s_memtime s[{64+2*i}:{65+2*i}]")
def GS_flush(A, n, vt, force=False):
    if not (O.gs or O.gs2 or force): return
    A("s_waitcnt vmcnt(0) lgkmcnt(0)")
    srd(A, 56, 32, 0x100000, WS_TS)
    A("s_lshl_b32 s54, s2, 2\ns_add_u32 s54, s54, s16\ns_lshl_b32 s54, s54, 7")
    A("s_mov_b64 exec, 1")
    for i in range(n):
        A(f"v_mov_b32 v{vt}, s{64+2*i}\nv_mov_b32 v{vt+1}, {4*i}")
        A(f"buffer_store_dword v{vt}, v{vt+1}, s[56:59], s54 offen")
    A("s_mov_b64 exec, -1")

def gelu_pk(A, regs, tmp, sC, vC=6):
    n = len(regs)
    for i, r in enumerate(regs): A(f"v_pk_mul_f32 v[{tmp+2*i}:{tmp+2*i+1}], v[{r}:{r+1}], v[{r}:{r+1}]")
    for i, r in enumerate(regs): A(f"v_pk_fma_f32 v[{tmp+2*i}:{tmp+2*i+1}], v[{tmp+2*i}:{tmp+2*i+1}], s[{sC}:{sC+1}], v[{vC}:{vC+1}]")
    for i, r in enumerate(regs): A(f"v_pk_mul_f32 v[{tmp+2*i}:{tmp+2*i+1}], v[{tmp+2*i}:{tmp+2*i+1}], v[{r}:{r+1}]")
    for i in range(2*n): A(f"v_exp_f32 v{tmp+i}, v{tmp+i}")
    for i, r in enumerate(regs): A(f"v_pk_add_f32 v[{tmp+2*i}:{tmp+2*i+1}], v[{tmp+2*i}:{tmp+2*i+1}], 1.0 op_sel_hi:[1,0]")
    for i in range(2*n): A(f"v_rcp_f32 v{tmp+i}, v{tmp+i}")
    for i, r in enumerate(regs): A(f"v_pk_mul_f32 v[{r}:{r+1}], v[{r}:{r+1}], v[{tmp+2*i}:{tmp+2*i+1}]")

def k1_geom(typ):
    if typ == 'q':
        return dict(pitchW=3840, PROWS=144, PSLOT=144*128, NPS=3, TSLOT=15360, R=6, TBASE=3*144*128)
    return dict(pitchW=3072, PROWS=128, PSLOT=128*128, NPS=3, TSLOT=16384, R=6, TBASE=3*128*128)

def k1_wsp_prefetch(A, part):
    if part == 0:
        srd(A, 4, 52, 2048*2048*2)
        A("s_and_b32 s40, s2, 7\ns_lshr_b32 s40, s40, 1\ns_lshl_b32 s40, s40, 14")
        A("s_lshr_b32 s41, s2, 3\ns_and_b32 s41, s41, 15\ns_lshl_b32 s41, s41, 10\ns_add_u32 s40, s40, s41")
        A("s_sub_u32 s41, s16, 4\ns_lshl_b32 s41, s41, 8\ns_add_u32 s40, s40, s41")
        A("s_lshl_b32 s40, s40, 7")
        A("v_lshlrev_b32 v249, 7, v0")
    else:
        A("s_add_u32 s40, s40, 8192")
    A(f"buffer_load_dword v{250 + (part & 1)}, v249, s[4:7], s40 offen")

def pf_setup(A):
    A("s_cmp_lt_u32 s21, 2\ns_cselect_b32 s84, s30, s34\ns_cselect_b32 s85, s31, s35")
    A(f"s_mov_b32 s86, {640*1920*2}\ns_cselect_b32 s86, {2048*640*2}, s86")
    A("s_cmp_eq_u32 s21, 3\ns_cselect_b32 s84, s36, s84\ns_cselect_b32 s85, s37, s85")
    A(f"s_cselect_b32 s86, {640*1536*2}, s86\ns_mov_b32 s87, 0x20000")
    A("s_lshr_b32 s88, s2, 3\ns_and_b32 s89, s2, 7\ns_lshr_b32 s90, s89, 1\ns_and_b32 s89, s89, 1")
    A("s_lshl_b32 s91, s89, 10\ns_lshl_b32 s92, s88, 5\ns_add_u32 s91, s91, s92\ns_lshl_b32 s92, s21, 4\ns_add_u32 s91, s91, s92")
    A("v_lshrrev_b32 v20, 2, v0\nv_add_u32 v20, s91, v20\nv_mul_u32_u24 v20, 1280, v20\nv_and_b32 v21, 3, v0\nv_lshl_add_u32 v20, v21, 7, v20\nv_add_u32 v20, 384, v20")
    A("v_mul_u32_u24 v21, 57, v0\nv_lshrrev_b32 v21, 9, v21\nv_mul_u32_u24 v22, 9, v21\nv_sub_u32 v22, v0, v22")
    A("s_mul_i32 s91, s88, 7\ns_add_u32 s91, s91, 192\nv_add_u32 v21, s91, v21\nv_mul_u32_u24 v21, 3840, v21")
    A("v_mul_u32_u24 v23, 171, v22\nv_lshrrev_b32 v23, 9, v23\nv_mul_u32_u24 v25, 3, v23\nv_sub_u32 v22, v22, v25")
    A("s_lshl_b32 s91, s90, 2\ns_lshr_b32 s91, 0x7520, s91\ns_and_b32 s91, s91, 15")
    A("v_add_u32 v22, s91, v22\nv_lshlrev_b32 v22, 7, v22\nv_mul_u32_u24 v23, 1280, v23\nv_add3_u32 v21, v21, v22, v23")
    A(f"v_mov_b32 v25, {KILL}\nv_cmp_le_u32 vcc, 63, v0\nv_cndmask_b32 v21, v21, v25, vcc")
    A("v_mul_u32_u24 v22, 43, v0\nv_lshrrev_b32 v22, 8, v22\nv_mul_u32_u24 v23, 6, v22\nv_sub_u32 v23, v0, v23")
    A("s_mul_i32 s91, s88, 7\ns_add_u32 s91, s91, 192\nv_add_u32 v22, s91, v22\nv_mul_u32_u24 v22, 3072, v22")
    A("v_mul_u32_u24 v26, 171, v23\nv_lshrrev_b32 v26, 9, v26\nv_mul_u32_u24 v27, 3, v26\nv_sub_u32 v23, v23, v27")
    A("v_lshlrev_b32 v23, 7, v23\nv_mul_u32_u24 v26, 1536, v26\nv_add3_u32 v22, v22, v23, v26\ns_mul_i32 s91, s90, 384\nv_add_u32 v22, s91, v22")
    A("v_cmp_le_u32 vcc, 42, v0\nv_cndmask_b32 v22, v22, v25, vcc")
    A("s_cmp_lt_u32 s21, 2\ns_cselect_b64 s[90:91], -1, 0\ns_cselect_b32 s88, 384, 0")
    A("v_cndmask_b32 v24, v21, v20, s[90:91]")
    A(f"s_cmp_eq_u32 s21, 2\ns_cselect_b32 s88, {224*3840}, s88")
    A(f"s_cmp_eq_u32 s21, 3\ns_cselect_b32 s88, {224*3072}, s88\ns_cselect_b64 s[90:91], -1, 0")
    A("v_cndmask_b32 v24, v24, v22, s[90:91]")

def pf_group(A, g):
    if g == 0: A("buffer_load_dword v248, v24, s[84:87], 0 offen")
    else: A("buffer_load_dword v248, v24, s[84:87], s88 offen")

def run_loader_schedule(A, issueP, issueT, issued, hooks=None, wsp=False, NB=20, p0_done=False):
    NPS = 3; R = 6
    def wait_for(needs):
        last = -1
        for idx, tg in enumerate(issued):
            if tg in needs: last = idx
        if last < 0: return
        A(f"s_waitcnt vmcnt({min(len(issued) - 1 - last, 63)})")
    TLA = O.tla
    if not p0_done: issueP(0, 0); issueP(0, 1)
    issueT(0); issueT(1)
    issueP(1, 0); issueP(1, 1)
    for t in range(2, TLA): issueT(t)
    if O.fullring: issueP(2, 0); issueP(2, 1)
    if O.pfg:
        pf_setup(A); pf_group(A, 0); issued.append(('F', 0))
    wait_for([('P', 0), ('T', 0)])
    A("s_barrier")
    if not O.fullring: issueP(2, 0)
    for b in range(NB):
        needs = []
        if b + 1 < NB: needs = [('T', b+1), ('P', (b+1)//2)]
        if needs: wait_for(needs)
        A("s_barrier")
        if b + TLA < NB: issueT(b + TLA)
        if b == 0 and not O.fullring: issueP(2, 1)
        if b % 2 == 1:
            s = (b - 1)//2 + NPS
            if s < NB//2: issueP(s, 0)
        elif b >= 2:
            s = (b - 2)//2 + NPS
            if s < NB//2: issueP(s, 1)
        if O.pfg and b == O.pfg2: pf_group(A, 1); issued.append(('F', 1))
        if hooks and b in hooks: hooks[b](issued)
        W0 = max(14, 20 - TLA)
        if wsp and O.wsp_pf and W0 <= b < W0 + 4: k1_wsp_prefetch(A, b - W0); issued.append(('W', b))
    A("s_barrier")

def rot_stage(A, s, dst):
    A(f"s_add_u32 s{dst}, s28, {s}\ns_cmp_ge_u32 s{dst}, 10\ns_cselect_b32 s29, 10, 0\ns_sub_u32 s{dst}, s{dst}, s29")
def rot_beat(A, b, dst):
    A(f"s_lshl_b32 s{dst}, s28, 1\ns_add_u32 s{dst}, s{dst}, {b}\ns_cmp_ge_u32 s{dst}, 20\ns_cselect_b32 s29, 20, 0\ns_sub_u32 s{dst}, s{dst}, s29")

ZR = 3; ZTS = 24576; ZTB = 81920
def k1_loader_z(A):
    pitchW = 3072; lw = 21; N = 20; R = ZR
    A(f"s_sub_u32 s{lw}, s16, 4")
    A("v_lshrrev_b32 v7, 3, v0\nv_and_b32 v2, 7, v0\nv_xor_b32 v2, v2, v7\nv_mul_u32_u24 v7, 1280, v7\nv_lshl_add_u32 v2, v2, 4, v7")
    for g8 in range(2):
        for i in range(3):
            d = 3 + 3*g8 + i
            A(f"v_add_u32 v10, {64*i}, v0\nv_mul_u32_u24 v11, 2731, v10\nv_lshrrev_b32 v11, 16, v11")
            A(f"v_mul_u32_u24 v12, 24, v11\nv_sub_u32 v12, v10, v12\nv_and_b32 v13, 2, v11\nv_add_u32 v13, {4*g8}, v13\nv_xor_b32 v12, v12, v13")
            A(f"v_add_u32 v11, {8*g8}, v11\nv_mul_u32_u24 v11, {pitchW}, v11\nv_lshl_add_u32 v{d}, v12, 4, v11")
            if i: A(f"v_subrev_u32 v{d}, {1024*i}, v{d}")
    A(f"s_mul_i32 s20, s{lw}, {16*1280}\ns_add_u32 s22, s17, s20")
    A(f"s_lshl_b32 s23, s{lw}, 11")
    A(f"s_mul_i32 s20, s{lw}, {16*pitchW}\ns_add_u32 s24, s18, s20\ns_add_u32 s25, s19, s20")
    A(f"s_mul_i32 s26, s{lw}, 6144\ns_add_u32 s26, s26, {ZTB}")
    A("s_mov_b32 s58, s28")
    issued = []
    def issue(s):
        if s < 10:
            A(f"s_lshl_b32 s27, s58, 7\ns_add_u32 s27, s27, s22\ns_add_u32 m0, s23, {s*8192}\ns_add_u32 s20, s27, {8*1280 - 1024}")
            A("buffer_load_dwordx4 v2, s[4:7], s27 offen lds\nbuffer_load_dwordx4 v2, s[4:7], s20 offen offset:1024 lds")
            issued.extend([('S', s)]*2)
        A(f"s_mul_i32 s27, s58, {64*pitchW}\ns_add_u32 s27, s27, s{24 + s//10}\ns_add_u32 m0, s26, {(s % R)*ZTS}")
        A("s_add_u32 s58, s58, 1\ns_cmp_eq_u32 s58, 10")
        for g8 in range(2):
            for i in range(3):
                A(f"buffer_load_dwordx4 v{3+3*g8+i}, s[8:11], s27 offen offset:{1024*i} lds")
                if g8 == 0 and i == 0: A("s_cselect_b32 s58, 0, s58")
            if g8 == 0: A("s_add_u32 m0, m0, 3072\ns_nop 0")
        issued.extend([('S', s)]*6)
    def wait_for(s):
        last = max(i for i, t in enumerate(issued) if t == ('S', s))
        A(f"s_waitcnt vmcnt({min(len(issued) - 1 - last, 63)})")
    for s in range(R - 1): issue(s)
    wait_for(0)
    A("s_barrier")
    issue(R - 1)
    for i in range(N):
        if i + 1 < N: wait_for(i + 1)
        A("s_barrier")
        if i + R < N: issue(i + R)
        if i == 9:
            k1_pack_load(A); issued.extend([('K', 0)]*6)
            z_gate_load(A, "s_sub_u32 s47, s16, 4\ns_lshl_b32 s47, s47, 2"); issued.extend([('G', 0)]*10)
            srd(A, 4, 30, 2048*640*2)
        if i == 12:
            last = max(k for k, t in enumerate(issued) if t == ('G', 0))
            A(f"s_waitcnt vmcnt({len(issued) - 1 - last})")
            z_gate_compute(A)
        if i == O.sst:
            k1_pack_store(A); issued.extend([('W', 0)]*6)
            z_gate_store(A); issued.extend([('W', 0)]*4)

def k1_loader_q(A, last):
    G = k1_geom('q'); PSLOT = G['PSLOT']; TSLOT = G['TSLOT']; TBASE = G['TBASE']
    nP = 3 if last else 2
    nTi = 3 if last else 4
    A("s_sub_u32 s21, s16, 4")
    A("v_lshrrev_b32 v7, 3, v0\nv_and_b32 v6, 7, v0\nv_xor_b32 v6, v6, v7")
    A("s_lshl_b32 s20, s48, 7\ns_sub_u32 s20, s20, 16\ns_lshl_b32 s22, s21, 4\ns_add_u32 s20, s20, s22")
    A("v_add_u32 v7, s20, v7")
    A("v_mov_b32 v12, v7")
    A("s_mov_b32 s20, 1280\nv_mul_lo_u32 v7, v7, s20\nv_lshl_add_u32 v2, v6, 4, v7")
    for h2 in range(2):
        for i in range(nP):
            if h2 == 0 and i == 0: continue
            A(f"v_add_u32 v{2 + h2*3 + i}, {(72*h2 + 8*i)*1280}, v2")
    A(f"v_mov_b32 v13, {KILL}")
    for i in range(2):
        A(f"v_add_u32 v14, {8*i}, v12\nv_cmp_gt_i32 vcc, 0, v14\nv_cndmask_b32 v{2+i}, v{2+i}, v13, vcc")
    A("s_mul_i32 s24, s49, 160")
    A("s_lshl_b32 s23, s21, 11")
    A(f"s_lshl_b32 s26, s21, 12\ns_add_u32 s26, s26, {TBASE}")
    issued = []
    def issueP(s, h2):
        slot = s % 3
        rot_stage(A, s, 27)
        A("s_lshl_b32 s27, s27, 7")
        A(f"s_add_u32 m0, s23, {slot*PSLOT + h2*72*128}")
        for i in range(nP):
            if i: A("s_add_u32 m0, m0, 1024\ns_nop 0")
            A(f"buffer_load_dwordx4 v{2 + h2*3 + i}, s[4:7], s27 offen lds")
            issued.append(('P', s))
    early = O.earlyp
    if early:
        issueP(0, 0); issueP(0, 1)
    A("s_lshl_b32 s20, s21, 8")
    for i in range(nTi):
        d = 8 + i
        A(f"v_add_u32 v12, s20, v0\nv_add_u32 v12, {64*i}, v12")
        A("v_mul_u32_u24 v13, 2185, v12\nv_lshrrev_b32 v13, 16, v13")
        A("v_mul_u32_u24 v14, 30, v13\nv_sub_u32 v14, v12, v14")
        A("v_and_b32 v15, 0x13, v13\nv_and_b32 v16, 4, v13\nv_lshl_or_b32 v15, v16, 1, v15\nv_and_b32 v16, 8, v13\nv_lshrrev_b32 v16, 1, v16\nv_or_b32 v15, v15, v16")
        A("v_mul_u32_u24 v16, 205, v14\nv_lshrrev_b32 v16, 11, v16")
        A("v_mul_u32_u24 v17, 10, v16\nv_sub_u32 v14, v14, v17")
        A("v_mul_u32_u24 v15, 3840, v15\nv_mul_u32_u24 v16, 1280, v16\nv_lshlrev_b32 v14, 4, v14")
        A(f"v_add3_u32 v{d}, v15, v16, v14")
    def issueT(b):
        slot = b % 6
        rot_beat(A, b, 27)
        A(f"s_mul_i32 s27, s27, {32*3840}\ns_add_u32 s27, s27, s24")
        A(f"s_add_u32 m0, s26, {slot*TSLOT}")
        for i in range(nTi):
            if i: A("s_add_u32 m0, m0, 1024\ns_nop 0")
            A(f"buffer_load_dwordx4 v{8 + i}, s[8:11], s27 offen lds")
            issued.append(('T', b))
    run_loader_schedule(A, issueP, issueT, issued, None, True, 20, early)


OT = 212
def z_oldtags(A, r32_sreg):
    srd(A, 12, 32, SZ_EP, WS_EP)
    A(f"s_lshl_b32 s40, s48, 7\nv_mov_b32 v221, s40")
    A(f"buffer_load_dwordx2 v[{OT}:{OT+1}], v221, s[12:15], 0 offen sc1")
def z_r32(A, dst):
    A(f"s_and_b32 s{dst}, s16, 1\ns_lshl_b32 s{dst}, s{dst}, 1\ns_lshr_b32 s41, s16, 2\ns_add_u32 s{dst}, s{dst}, s41")


ZCMB = 131072
ZFLG = 155648
GX, GW, GA_, GT = 152, 184, 192, 146
def z_gate_load(A, rowoff):
    srd(A, 4, 30, 2048*640*2); srd(A, 12, 38, 640*2)
    A("s_lshl_b32 s60, s48, 7\ns_lshl_b32 s61, s49, 4\ns_add_u32 s60, s60, s61\ns_lshl_b32 s61, s16, 2\ns_add_u32 s60, s60, s61") if False else None
    A("s_lshl_b32 s86, s48, 6\ns_lshl_b32 s47, s49, 4\ns_add_u32 s86, s86, s47")
    A(rowoff)
    A("s_add_u32 s86, s86, s47")
    A(f"v_lshlrev_b32 v{GT}, 4, v0\nv_add_u32 v{GT+1}, 1024, v{GT}\nv_mov_b32 v{GT+2}, {KILL}\nv_cmp_le_u32 vcc, 16, v0\nv_cndmask_b32 v{GT+1}, v{GT+1}, v{GT+2}, vcc")
    A(f"buffer_load_dwordx4 v[{GW}:{GW+3}], v{GT}, s[12:15], 0 offen\nbuffer_load_dwordx4 v[{GW+4}:{GW+7}], v{GT+1}, s[12:15], 0 offen")
    A("s_mul_i32 s87, s86, 1280")
    for r in range(4):
        A(f"s_add_u32 s85, s87, {r*1280}")
        A(f"buffer_load_dwordx4 v[{160+8*r}:{163+8*r}], v{GT}, s[4:7], s85 offen\nbuffer_load_dwordx4 v[{164+8*r}:{167+8*r}], v{GT+1}, s[4:7], s85 offen") if False else A(f"buffer_load_dwordx4 v[{GX+8*r}:{GX+3+8*r}], v{GT}, s[4:7], s85 offen\nbuffer_load_dwordx4 v[{GX+4+8*r}:{GX+7+8*r}], v{GT+1}, s[4:7], s85 offen")
def z_gate_compute(A):
    for r in range(4):
        A(f"v_mov_b32 v{GA_+r}, 0")
        for q in range(4): A(f"v_dot2_f32_bf16 v{GA_+r}, v{GX+8*r+q}, v{GW+q}, v{GA_+r}")
        for q in range(4): A(f"v_dot2_f32_bf16 v{GA_+r}, v{GX+4+8*r+q}, v{GW+4+q}, v{GA_+r}")
    for ctl in ("row_shr:1 row_mask:0xf bank_mask:0xf bound_ctrl:0", "row_shr:2 row_mask:0xf bank_mask:0xf bound_ctrl:0", "row_shr:4 row_mask:0xf bank_mask:0xf bound_ctrl:0",
                "row_shr:8 row_mask:0xf bank_mask:0xf bound_ctrl:0", "row_bcast:15 row_mask:0xa bank_mask:0xf", "row_bcast:31 row_mask:0xc bank_mask:0xf"):
        for r in range(4): A(f"v_add_f32_dpp v{GA_+r}, v{GA_+r}, v{GA_+r} {ctl}")
    for r in range(4): A(f"v_mul_f32 v{GA_+r}, {f2u(-1.4426950408889634)}, v{GA_+r}")
    for r in range(4): A(f"v_exp_f32 v{GA_+r}, v{GA_+r}")
    for r in range(4): A(f"v_add_f32 v{GA_+r}, 1.0, v{GA_+r}")
    for r in range(4): A(f"v_rcp_f32 v{GA_+r}, v{GA_+r}")
def z_gate_store(A):
    srd(A, 4, 32, SZ_G, WS_G)
    A(f"s_lshl_b32 s86, s86, 2\nv_mov_b32 v{GT}, 0")
    A("s_mov_b32 s42, 0\ns_mov_b32 s43, 0x80000000\ns_mov_b64 exec, s[42:43]")
    for r in range(4): A(f"buffer_store_dword v{GA_+r}, v{GT}, s[4:7], s86 offen offset:{4*r} sc1")
    A("s_mov_b64 exec, -1")

def k1_pack_load(A):
    T = 28
    c, cc, t2, p_, k_, x_ = T+2, T+3, T+4, T+5, T+6, T+7
    A("s_sub_u32 s40, s16, 4\ns_lshl_b32 s40, s40, 6")
    A(f"v_add_u32 v{c}, s40, v0\nv_and_b32 v{cc}, 127, v{c}\nv_lshrrev_b32 v{t2}, 7, v{c}\nv_lshrrev_b32 v{p_}, 1, v{cc}")
    A(f"v_and_b32 v{k_}, 0x33, v{p_}\nv_and_b32 v{x_}, 4, v{p_}\nv_lshl_or_b32 v{k_}, v{x_}, 1, v{k_}")
    A(f"v_and_b32 v{x_}, 8, v{p_}\nv_lshrrev_b32 v{x_}, 1, v{x_}\nv_or_b32 v{k_}, v{k_}, v{x_}")
    A(f"v_mul_u32_u24 v{k_}, 1280, v{k_}\nv_and_b32 v{x_}, 1, v{cc}\nv_lshl_add_u32 v{k_}, v{x_}, 4, v{k_}\nv_lshl_add_u32 v{k_}, v{t2}, 5, v{k_}")
    A(f"v_lshlrev_b32 v252, 4, v{cc}\nv_lshl_add_u32 v252, v{t2}, 11, v252")
    A(f"v_mov_b32 v{x_}, {KILL}\nv_cmp_eq_u32 vcc, 1, v{t2}\nv_cndmask_b32 v253, v252, v{x_}, vcc\nv_cndmask_b32 v{p_}, v{k_}, v{x_}, vcc")
    A("s_lshl_b32 s54, s48, 2\ns_add_u32 s54, s54, s49")
    for u, D in ((0, 224), (1, 236)):
        A(f"s_add_u32 s55, s54, {128*u}")
        A(f"s_mul_hi_u32 s41, s55, {(2**32 + 21)//22}\ns_mul_i32 s42, s41, 22\ns_sub_u32 s42, s55, s42")
        A("s_cmp_lt_u32 s42, 10\ns_cselect_b32 s12, s44, s46\ns_cselect_b32 s13, s45, s47")
        A(f"s_mov_b32 s14, {768*640*2}\ns_cselect_b32 s14, {640*640*2}, s14\ns_mov_b32 s15, 0x20000")
        A("s_cselect_b32 s43, 0, 10\ns_sub_u32 s43, s42, s43")
        A(f"s_mul_i32 s43, s43, {64*1280}\ns_mul_i32 s40, s41, 160\ns_add_u32 s43, s43, s40")
        A(f"s_cmp_ge_u32 s55, 176\ns_cselect_b32 s40, {KILL}, 0\ns_add_u32 s43, s43, s40")
        A(f"buffer_load_dwordx4 v[{D}:{D+3}], v{k_}, s[12:15], s43 offen")
        A(f"buffer_load_dwordx4 v[{D+4}:{D+7}], v{k_}, s[12:15], s43 offen offset:64")
        A(f"buffer_load_dwordx4 v[{D+8}:{D+11}], v{p_}, s[12:15], s43 offen offset:128")

def k1_pack_store(A):
    srd(A, 12, 32, SZ_WP, WS_WP)
    for u, D in ((0, 224), (1, 236)):
        A(f"s_add_u32 s55, s54, {128*u}")
        A(f"s_mul_i32 s41, s55, {5*2048}\ns_cmp_ge_u32 s55, 176\ns_cselect_b32 s42, {KILL}, 0\ns_add_u32 s41, s41, s42")
        A("s_add_u32 s42, s41, 4096\ns_add_u32 s43, s41, 8192")
        A(f"buffer_store_dwordx4 v[{D}:{D+3}], v252, s[12:15], s41 offen{O.k1st}")
        A(f"buffer_store_dwordx4 v[{D+4}:{D+7}], v252, s[12:15], s42 offen{O.k1st}")
        A(f"buffer_store_dwordx4 v[{D+8}:{D+11}], v253, s[12:15], s43 offen{O.k1st}")

def k1_compute_z(A, st):
    mP = 2; nT = 6; R = ZR
    F = [16, 176]
    AC = [80, 128]
    A("s_and_b32 s20, s16, 1\ns_lshr_b32 s21, s16, 1")
    A("v_and_b32 v14, 15, v0\nv_lshrrev_b32 v15, 4, v0\nv_and_b32 v6, 7, v14\nv_xor_b32 v6, v15, v6\nv_lshlrev_b32 v14, 7, v14\nv_lshl_add_u32 v14, v6, 4, v14")
    A("s_lshl_b32 s22, s20, 12")
    A("v_add_u32 v2, s22, v14\nv_xor_b32 v3, 64, v2\nv_add_u32 v4, 0x10000, v2\nv_add_u32 v5, 0x10000, v3")
    A("v_lshrrev_b32 v14, 2, v0\nv_and_b32 v14, 3, v14\nv_lshl_add_u32 v13, v15, 3, v14\nv_mul_u32_u24 v13, 384, v13")
    A("v_and_b32 v12, 3, v0\nv_lshl_add_u32 v13, v12, 3, v13")
    A("v_lshrrev_b32 v14, 1, v14\nv_and_b32 v12, 1, v15\nv_lshl_add_u32 v14, v12, 1, v14")
    A(f"v_add_u32 v15, {ZTB}, v13\ns_mul_i32 s23, s21, 6")
    for t in range(6):
        A(f"s_add_u32 s22, s23, {t}\ns_and_b32 s24, s22, 3\ns_andn2_b32 s22, s22, 3\nv_xor_b32 v13, s24, v14\nv_add_u32 v13, s22, v13\nv_lshl_add_u32 v{6+t}, v13, 5, v15")
    for i in range(80, 176): A(f"v_mov_b32 v{i}, 0")
    def fP(s, kk, m): return F[s] + 4*(kk*8 + m)
    def fT(s, kk, t): return F[s] + 4*(kk*8 + 2 + t)
    def acc(p, m, t): return AC[p] + 4*(m*nT + t)
    def reads(i):
        s = i & 1; ps = i % 10; ts = i % R
        r = []
        for kk in range(2):
            for m in range(mP):
                off = ps*8192 + m*2048; hi = off >> 16
                r.append(f"ds_read_b128 v[{fP(s,kk,m)}:{fP(s,kk,m)+3}], v{2 + kk + 2*hi} offset:{off & 0xffff}")
            for t in range(nT):
                f = fT(s, kk, t)
                for h in range(2): r.append(f"ds_read_b64_tr_b16 v[{f+2*h}:{f+2*h+1}], v{6 + t} offset:{ts*ZTS + kk*32*384 + h*4*384}")
        return r
    def beat(i, last=False):
        s = i & 1; p = i // 10
        mf = [f"v_mfma_f32_16x16x32_bf16 v[{acc(p,m,t)}:{acc(p,m,t)+3}], v[{fT(s,kk,t)}:{fT(s,kk,t)+3}], v[{fP(s,kk,m)}:{fP(s,kk,m)+3}], v[{acc(p,m,t)}:{acc(p,m,t)+3}]"
              for kk in range(2) for m in range(mP) for t in range(nT)]
        rd = [] if last else reads(i + 1)
        A("s_barrier")
        for k, x in enumerate(mf):
            for _ in range(2 if k < 10 else 1):
                if rd: A(rd.pop(0))
            A(x)
        assert not rd
        A("s_waitcnt lgkmcnt(0)")
    A("s_barrier")
    for x in reads(0): A(x)
    A("s_waitcnt lgkmcnt(0)")
    st(); GS(A, 1)
    for i in range(10): beat(i)
    st()
    TM = 176
    A(f"s_mov_b32 s56, {f2u(C1)}\ns_mov_b32 s57, {f2u(C1)}")
    A(f"v_mov_b32 v12, {f2u(C0)}\nv_mov_b32 v13, {f2u(C0)}")
    gelu_pk(A, [acc(0, m, t) + 2*q for m in range(2) for t in range(6) for q in range(2)], TM, 56, 12)
    S = TM
    for m in range(2):
        vals = [acc(0, m, t) + r for t in range(6) for r in range(4)]
        for h in range(2):
            v0_ = vals[12*h:12*h+12]
            A(f"v_pk_add_f32 v[{S+4*m+2*h}:{S+4*m+2*h+1}], v[{v0_[0]}:{v0_[1]}], v[{v0_[2]}:{v0_[3]}]")
            A(f"v_pk_mul_f32 v[{S+8+4*m+2*h}:{S+8+4*m+2*h+1}], v[{v0_[0]}:{v0_[1]}], v[{v0_[0]}:{v0_[1]}]")
    for m in range(2):
        vals = [acc(0, m, t) + r for t in range(6) for r in range(4)]
        for h in range(2):
            v0_ = vals[12*h:12*h+12]
            A(f"v_pk_fma_f32 v[{S+8+4*m+2*h}:{S+8+4*m+2*h+1}], v[{v0_[2]}:{v0_[3]}], v[{v0_[2]}:{v0_[3]}], v[{S+8+4*m+2*h}:{S+8+4*m+2*h+1}]")
    for q in range(2, 6):
        for m in range(2):
            vals = [acc(0, m, t) + r for t in range(6) for r in range(4)]
            for h in range(2):
                v0_ = vals[12*h:12*h+12]
                A(f"v_pk_add_f32 v[{S+4*m+2*h}:{S+4*m+2*h+1}], v[{S+4*m+2*h}:{S+4*m+2*h+1}], v[{v0_[2*q]}:{v0_[2*q+1]}]")
                A(f"v_pk_fma_f32 v[{S+8+4*m+2*h}:{S+8+4*m+2*h+1}], v[{v0_[2*q]}:{v0_[2*q+1]}], v[{v0_[2*q]}:{v0_[2*q+1]}], v[{S+8+4*m+2*h}:{S+8+4*m+2*h+1}]")
    for m in range(2):
        A(f"v_pk_add_f32 v[{S+4*m}:{S+4*m+1}], v[{S+4*m}:{S+4*m+1}], v[{S+4*m+2}:{S+4*m+3}]")
        A(f"v_pk_add_f32 v[{S+8+4*m}:{S+8+4*m+1}], v[{S+8+4*m}:{S+8+4*m+1}], v[{S+8+4*m+2}:{S+8+4*m+3}]")
    for m in range(2):
        A(f"v_add_f32 v{S+16+2*m}, v{S+4*m}, v{S+4*m+1}\nv_add_f32 v{S+17+2*m}, v{S+8+4*m}, v{S+8+4*m+1}")
    X = S + 16
    for i in range(4): A(f"v_mov_b32 v{X+4+i}, v{X+i}")
    for i in range(4): A(f"v_permlane16_swap_b32 v{X+i}, v{X+4+i}")
    for i in range(4): A(f"v_add_f32 v{X+i}, v{X+i}, v{X+4+i}")
    for i in range(4): A(f"v_mov_b32 v{X+4+i}, v{X+i}")
    for i in range(4): A(f"v_permlane32_swap_b32 v{X+i}, v{X+4+i}")
    for i in range(4): A(f"v_add_f32 v{X+i}, v{X+i}, v{X+4+i}")
    A(f"v_and_b32 v14, 16, v0\nv_cmp_ne_u32 vcc, 0, v14\nv_cndmask_b32 v{X}, v{X}, v{X+2}, vcc\nv_cndmask_b32 v{X+1}, v{X+1}, v{X+3}, vcc")
    srd(A, 8, 32, SZ_ST, WS_ST)
    A("s_lshl_b32 s49, s49, 1\ns_add_u32 s49, s49, s21")
    A("s_lshl_b32 s22, s49, 15\ns_lshl_b32 s23, s48, 10\ns_add_u32 s22, s22, s23\ns_lshl_b32 s23, s20, 9\ns_add_u32 s22, s22, s23")
    A(f"s_add_u32 s24, s98, 1\nv_mov_b32 v{X+2}, s24\nv_mov_b32 v{X+3}, s99\nv_lshlrev_b32 v14, 4, v0")
    A("v_cmp_gt_u32 vcc, 32, v0\ns_and_saveexec_b64 s[24:25], vcc")
    A(f"buffer_store_dwordx4 v[{X}:{X+3}], v14, s[8:11], s22 offen sc1")
    A("s_mov_b64 exec, s[24:25]")
    st()
    PG = 240
    def poll_loads():
        for q in range(4):
            A(f"s_add_u32 s23, s27, {q*32768}")
            A(f"buffer_load_dwordx4 v[{PG+4*q}:{PG+3+4*q}], v15, s[8:11], s23 offen sc1")
    def poll_issue():
        A("s_lshl_b32 s27, s48, 10\ns_lshl_b32 s23, s20, 9\ns_add_u32 s27, s27, s23")
        A("v_and_b32 v15, 31, v0\nv_lshlrev_b32 v15, 4, v15\nv_lshrrev_b32 v14, 5, v0\nv_lshl_add_u32 v15, v14, 17, v15")
        poll_loads()
    def mid_normalise():
        G = TM
        A(f"s_add_u32 s24, s98, 1\nv_mov_b32 v12, s24\nv_mov_b32 v14, s99\ns_mov_b32 s24, 0\ns_branch K1_pollchk")
        A.label("K1_poll")
        A(f"s_sleep {O.sleep}")
        poll_loads()
        A.label("K1_pollchk")
        A("s_waitcnt vmcnt(0)")
        X = G + 32
        A(f"v_xor_b32 v{X}, v{PG+2}, v12\nv_xor_b32 v{X+1}, v{PG+3}, v14\nv_or_b32 v{X}, v{X}, v{X+1}")
        for q in range(1, 4): A(f"v_xor_b32 v{X+1}, v{PG+2+4*q}, v12\nv_xor_b32 v{X+2}, v{PG+3+4*q}, v14\nv_or3_b32 v{X}, v{X}, v{X+1}, v{X+2}")
        A(f"v_cmp_ne_u32 vcc, 0, v{X}\ns_add_u32 s24, s24, 1\ns_nop 3")
        A(f"s_cbranch_vccz K1_polled\ns_cmp_lt_u32 s24, 0x10000\ns_cbranch_scc1 K1_poll")
        A.label("K1_polled")
        A(f"v_add_f32 v{G}, v{PG}, v{PG+4}\nv_add_f32 v{G+1}, v{PG+1}, v{PG+5}\nv_add_f32 v{G+2}, v{PG+8}, v{PG+12}\nv_add_f32 v{G+3}, v{PG+9}, v{PG+13}")
        A(f"v_add_f32 v{G}, v{G}, v{G+2}\nv_add_f32 v{G+1}, v{G+1}, v{G+3}")
        A(f"v_mov_b32 v{G+2}, v{G}\nv_mov_b32 v{G+3}, v{G+1}")
        A(f"v_permlane32_swap_b32 v{G}, v{G+2}\nv_permlane32_swap_b32 v{G+1}, v{G+3}")
        A(f"v_add_f32 v{G}, v{G}, v{G+2}\nv_add_f32 v{G+1}, v{G+1}, v{G+3}")
        A(f"v_mul_f32 v{G}, {f2u(1/768)}, v{G}\nv_mul_f32 v{G+1}, {f2u(1/768)}, v{G+1}")
        A(f"v_fma_f32 v{G+1}, -v{G}, v{G}, v{G+1}\nv_max_f32 v{G+1}, 0, v{G+1}")
        A(f"v_add_f32 v{G+1}, {f2u(1e-5)}, v{G+1}\nv_rsq_f32 v{G+1}, v{G+1}")
        A(f"v_mul_f32 v{G}, v{G}, v{G+1}\nv_sub_f32 v{G}, 0, v{G}")
        A("v_and_b32 v13, 15, v0\nv_lshlrev_b32 v13, 2, v13")
        B = G + 8
        for m in range(2):
            A(f"v_add_u32 v12, {64*m}, v13")
            A(f"ds_bpermute_b32 v{B+2*m}, v12, v{G+1}\nds_bpermute_b32 v{B+1+2*m}, v12, v{G}")
        srd(A, 12, 32, SZ_Z2P, WS_Z2P)
        A("s_lshl_b32 s22, s49, 5\ns_add_u32 s22, s22, s48\ns_mul_i32 s22, s22, 12288\ns_lshl_b32 s23, s20, 10\ns_add_u32 s22, s22, s23")
        A("v_lshrrev_b32 v15, 4, v0\nv_and_b32 v12, 15, v0\nv_and_b32 v13, 3, v12\nv_and_b32 v14, 4, v12\nv_lshl_or_b32 v13, v14, 1, v13\nv_and_b32 v14, 8, v12\nv_lshrrev_b32 v14, 1, v14\nv_or_b32 v13, v13, v14")
        A("v_and_b32 v14, 1, v15\nv_lshl_add_u32 v13, v14, 4, v13\nv_lshlrev_b32 v13, 5, v13\nv_lshrrev_b32 v14, 1, v15\nv_lshl_add_u32 v13, v14, 4, v13")
        A("s_waitcnt lgkmcnt(0)")
        for m in range(2):
            for t in range(6):
                a_ = acc(0, m, t)
                for r in range(4): A(f"v_fma_f32 v{a_+r}, v{a_+r}, v{B+2*m}, v{B+1+2*m}")
        PK = G + 16
        for t in range(6):
            d = PK + 4*t; a0 = acc(0, 0, t); a1 = acc(0, 1, t)
            A(f"v_cvt_pk_bf16_f32 v{d}, v{a0}, v{a0+1}\nv_cvt_pk_bf16_f32 v{d+1}, v{a0+2}, v{a0+3}\nv_cvt_pk_bf16_f32 v{d+2}, v{a1}, v{a1+1}\nv_cvt_pk_bf16_f32 v{d+3}, v{a1+2}, v{a1+3}")
        for t in range(6):
            d = PK + 4*t
            A(f"v_permlane16_swap_b32 v{d}, v{d+2}\nv_permlane16_swap_b32 v{d+1}, v{d+3}")
        for t in range(6):
            A(f"s_add_u32 s23, s22, {t*2048}")
            A(f"buffer_store_dwordx4 v[{PK+4*t}:{PK+4*t+3}], v13, s[12:15], s23 offen sc1")
    def signal_z2():
        A("s_waitcnt vmcnt(0)")
        A(f"s_lshl_b32 s22, s21, 2\ns_add_u32 s22, s22, {ZFLG + 16}\nv_mov_b32 v12, s22\nv_mov_b32 v13, 1\ns_mov_b64 exec, 1")
        A("ds_add_rtn_u32 v13, v12, v13\ns_waitcnt lgkmcnt(0)\nv_readfirstlane_b32 s22, v13")
        A("s_cmp_lg_u32 s22, 1\ns_cbranch_scc1 K1_z2nosig")
        srd(A, 12, 32, SZ_FZ2, WS_FZ2)
        A("s_lshl_b32 s22, s49, 8\ns_lshl_b32 s23, s48, 3\ns_add_u32 s22, s22, s23\nv_mov_b32 v12, s22\ns_add_u32 s23, s98, 1\nv_mov_b32 v14, s23\nv_mov_b32 v15, s99")
        A("buffer_store_dwordx2 v[14:15], v12, s[12:15], 0 offen sc1")
        A.label("K1_z2nosig")
        A("s_mov_b64 exec, -1")
    G3 = lambda k: A(f"s_memtime s[{64+2*k}:{65+2*k}]") if O.gs3 else None
    G3(0)
    for i in range(10, 20):
        if i in (12, 14): G3(1 + (i - 12)//2)
        if i == O.zn - O.zp: poll_issue()
        if i == O.zn:
            assert i % 2 == 0
            G3(3); mid_normalise(); G3(4)
        if i == 18: G3(5)
        if i == O.zs: G3(6); signal_z2(); G3(7)
        beat(i, last=(i == 19))
    G3(8)
    if O.gs3: GS_flush(A, 9, 12, True)
    st(); GS(A, 2)
    A(f"v_mov_b32 v12, {f2u(C0)}\nv_mov_b32 v13, {f2u(C0)}")
    gelu_pk(A, [acc(1, m, t) + 2*q for m in range(2) for t in range(6) for q in range(2)], TM, 56, 12)
    srd(A, 4, 32, SZ_Z1, WS_Z1)
    A("s_lshl_b32 s22, s48, 1\ns_add_u32 s22, s22, s20\ns_mul_i32 s22, s22, 48\ns_mul_i32 s23, s49, 6\ns_add_u32 s22, s22, s23\ns_lshl_b32 s22, s22, 10")
    A("v_lshlrev_b32 v14, 4, v0")
    for t in range(6):
        d = 16 + 4*t; a0 = acc(1, 0, t); a1 = acc(1, 1, t)
        A(f"v_cvt_pk_bf16_f32 v{d}, v{a0}, v{a0+1}\nv_cvt_pk_bf16_f32 v{d+1}, v{a0+2}, v{a0+3}\nv_cvt_pk_bf16_f32 v{d+2}, v{a1}, v{a1+1}\nv_cvt_pk_bf16_f32 v{d+3}, v{a1+2}, v{a1+3}")
    for t in range(6):
        A(f"s_add_u32 s23, s22, {t*1024}")
        A(f"buffer_store_dwordx4 v[{16+4*t}:{19+4*t}], v14, s[4:7], s23 offen{O.k1st}")

def k1_compute_q(A, wm, wn, st):
    G = k1_geom('q'); PSLOT = G['PSLOT']; TSLOT = G['TSLOT']; TBASE = G['TBASE']
    tiles = list(range(0, 8)) if wn == 0 else list(range(8, 15))
    halo = {(0, 0): [5, 6], (1, 0): [7], (0, 1): [8, 9, 10, 11], (1, 1): [12, 13, 14]}[(wm, wn)]
    nT = len(tiles); mP = 5
    F = [16, 16 + 4*(5 + 8)]
    ACC = 16 + 8*(5 + 8)
    A("v_and_b32 v14, 15, v0\nv_lshrrev_b32 v15, 4, v0\nv_and_b32 v6, 7, v14\nv_xor_b32 v6, v15, v6\nv_lshlrev_b32 v14, 7, v14\nv_lshl_add_u32 v2, v6, 4, v14")
    A("v_xor_b32 v3, 64, v2")
    A("v_lshrrev_b32 v6, 1, v15\nv_lshlrev_b32 v6, 4, v6\nv_and_b32 v7, 1, v15\nv_lshl_add_u32 v6, v7, 2, v6")
    A("v_lshrrev_b32 v7, 2, v0\nv_and_b32 v7, 3, v7\nv_add_u32 v6, v6, v7\nv_mul_u32_u24 v6, 480, v6\nv_and_b32 v7, 3, v0\nv_lshl_add_u32 v6, v7, 3, v6")
    A(f"v_add_u32 v4, {TBASE}, v6\nv_add_u32 v5, {TBASE + 3*TSLOT}, v6")
    accs = {}
    n = ACC
    for m in range(4):
        for t in tiles: accs[(m, t)] = n; n += 4
    for t in halo: accs[('h', t)] = n; n += 4
    assert n <= 256, n
    for i in range(ACC, n): A(f"v_mov_b32 v{i}, 0")
    def fP(s, m): return F[s] + 4*m
    def fT(s, t): return F[s] + 4*(5 + tiles.index(t))
    def reads(b):
        s = b & 1; kk = b & 1; ps = (b//2) % 3; ts = b % 6
        r = []
        for m in range(4):
            f = fP(s, m); r.append(f"ds_read_b128 v[{f}:{f+3}], v{2+kk} offset:{ps*PSLOT + (16 + 64*wm + 16*m)*128}")
        f = fP(s, 4); r.append(f"ds_read_b128 v[{f}:{f+3}], v{2+kk} offset:{ps*PSLOT}")
        for t in tiles:
            f = fT(s, t)
            for h in range(2):
                hi = 1 if ts >= 3 else 0
                r.append(f"ds_read_b64_tr_b16 v[{f+2*h}:{f+2*h+1}], v{4+hi} offset:{(ts - 3*hi)*TSLOT + h*8*480 + t*32}")
        return r
    A("s_barrier")
    for x in reads(0): A(x)
    A("s_waitcnt lgkmcnt(0)")
    st(); GS(A, 1)
    A("s_barrier")
    def beat(b, last=False):
        s = b & 1
        mf = []
        for m in range(4):
            for t in tiles:
                a_ = accs[(m, t)]; mf.append(f"v_mfma_f32_16x16x32_bf16 v[{a_}:{a_+3}], v[{fT(s,t)}:{fT(s,t)+3}], v[{fP(s,m)}:{fP(s,m)+3}], v[{a_}:{a_+3}]")
        for t in halo:
            a_ = accs[('h', t)]; mf.append(f"v_mfma_f32_16x16x32_bf16 v[{a_}:{a_+3}], v[{fT(s,t)}:{fT(s,t)+3}], v[{fP(s,4)}:{fP(s,4)+3}], v[{a_}:{a_+3}]")
        rd = [] if last else reads(b + 1)
        nfront = len(mf) - 8
        for i, x in enumerate(mf):
            A(x)
            if rd: A(rd.pop(0))
            if i == nfront - 1:
                assert not rd, (len(rd), nfront)
                A("s_waitcnt lgkmcnt(0)\ns_barrier")
    L = f"K1q{wm}{wn}_cloop"
    A("s_mov_b32 s26, 0")
    A.label(L)
    it_top(A)
    for b in range(6):
        if O.itstamp: A(f"s_memtime s[76:77]\ns_waitcnt lgkmcnt(0)\ns_cmp_eq_u32 s26, 0\ns_cselect_b32 s{85+b}, s76, s{85+b}")
        beat(b)
    A(f"s_add_u32 s26, s26, 1\ns_cmp_lt_u32 s26, 3\ns_cbranch_scc1 {L}")
    it_mid(A)
    beat(18); beat(19, last=True)
    it_end(A, 14, 15)
    st(); GS(A, 2)
    A(f"v_and_b32 v6, 15, v0\nv_mul_u32_u24 v6, {QP}, v6\nv_lshrrev_b32 v7, 4, v0\nv_lshl_add_u32 v6, v7, 3, v6")
    k = 0
    items = list(accs.items())
    for (key, a_) in items:
        A(f"v_cvt_pk_bf16_f32 v{16+2*k}, v{a_}, v{a_+1}\nv_cvt_pk_bf16_f32 v{17+2*k}, v{a_+2}, v{a_+3}")
        k += 1
    A(f"v_add_u32 v7, 0x8000, v6")
    k = 0
    for (key, a_) in items:
        m, t = key
        row = 0 if m == 'h' else 16 + 64*wm + 16*m
        off = row*QP + t*32
        if off < 65536: A(f"ds_write_b64 v6, v[{16+2*k}:{17+2*k}] offset:{off}")
        else: A(f"ds_write_b64 v7, v[{16+2*k}:{17+2*k}] offset:{off - 0x8000}")
        k += 1

def rot_table(A):
    A(f"s_and_b32 s28, s28, 3\ns_lshl_b32 s28, s28, 2\ns_lshr_b32 s28, {O.rottab if O.rot else 0}, s28\ns_and_b32 s28, s28, 15")

def k1(A):
    name = NAME + "_kernel"
    kernel_begin(A, name)
    A("s_cmp_ge_u32 s2, 256\ns_cbranch_scc1 K34_end")
    load_ptr(A, 30, 'x'); load_ptr(A, 32, 'ws'); load_ptr(A, 34, 'wqkv'); load_ptr(A, 36, 'win')
    load_ptr(A, 38, 'gw'); load_ptr(A, 44, 'wo'); load_ptr(A, 46, 'wout'); load_ptr(A, 52, 'wsp'); load_ptr(A, 50, 'dbg')
    wave_lane(A, 16)
    hd_start(A)
    st = Stamps(A, 0); st()
    GS(A, 0)
    A("s_waitcnt lgkmcnt(0)")
    A(f"s_add_u32 s96, s32, {WS_EP}\ns_addc_u32 s97, s33, 0\ns_load_dwordx2 s[98:99], s[96:97], 0")
    A("s_and_b32 s40, s2, 7\ns_lshr_b32 s41, s2, 3\ns_and_b32 s48, s40, 1\ns_lshl_b32 s48, s48, 3\ns_and_b32 s42, s41, 7\ns_add_u32 s48, s48, s42")
    A("s_lshr_b32 s49, s40, 1\ns_lshl_b32 s49, s49, 1\ns_lshr_b32 s43, s41, 3\ns_and_b32 s43, s43, 1\ns_add_u32 s49, s49, s43")
    A("s_lshl_b32 s28, s43, 1\ns_add_u32 s28, s28, s42")
    rot_table(A)
    A("s_cmp_lt_u32 s41, 16\ns_cbranch_scc1 K1_ztype")
    A("s_cmp_lt_u32 s16, 4\ns_cbranch_scc1 K1_qcomp")
    srd(A, 4, 30, 2048*640*2); srd(A, 8, 34, 640*1920*2)
    if 'Q' in O.prio: A("s_setprio 2")
    A("s_cmp_eq_u32 s16, 7\ns_cbranch_scc1 K1_qload3")
    k1_loader_q(A, False)
    A("s_branch K1_att")
    A.label("K1_qload3")
    k1_loader_q(A, True)
    A("s_branch K1_att")
    A.label("K1_qcomp")
    if 'C' in O.prio: A("s_setprio 2")
    st()

    A("s_cmp_eq_u32 s16, 1\ns_cbranch_scc1 K1_q10\ns_cmp_eq_u32 s16, 2\ns_cbranch_scc1 K1_q01\ns_cmp_eq_u32 s16, 3\ns_cbranch_scc1 K1_q11")
    for (wm, wn) in ((0, 0), (1, 0), (0, 1), (1, 1)):
        if (wm, wn) != (0, 0): A.label(f"K1_q{wm}{wn}")
        stv = Stamps(A, 0, 2)
        k1_compute_q(A, wm, wn, stv)
        if (wm, wn) != (1, 1): A("s_branch K1_att")
    A.label("K1_att")
    if 'Q' in O.prio or 'C' in O.prio: A("s_setprio 0")
    st3 = Stamps(A, 0, 4)
    AV = 100

    A(f"s_and_b32 s46, s16, 3\ns_lshr_b32 s47, s16, 2\ns_mul_i32 s45, s46, 40\ns_mul_i32 s43, s47, {64*QP}\ns_add_u32 s45, s45, s43")
    A("s_or_b32 s43, s48, s47")
    attention_prep(A, AV, 45)
    T = 86
    A(f"s_lshl_b32 s20, s16, 6\nv_add_u32 v{T}, s20, v0")
    for i in range(3):
        c, r, q, la, ga = T+1, T+2, T+3, T+4+2*i, T+5+2*i
        A(f"v_add_u32 v{c}, {512*i}, v{T}")
        A(f"v_mul_u32_u24 v{r}, 6554, v{c}\nv_lshrrev_b32 v{r}, 16, v{r}")
        A(f"v_mul_u32_u24 v{q}, 10, v{r}\nv_sub_u32 v{q}, v{c}, v{q}")
        A(f"v_mul_u32_u24 v{la}, {QP}, v{r}\nv_lshl_add_u32 v{la}, v{q}, 4, v{la}\nv_add_u32 v{la}, {16*QP}, v{la}")
        A(f"s_lshl_b32 s20, s48, 7\nv_add_u32 v{ga}, s20, v{r}\nv_mul_u32_u24 v{ga}, 2816, v{ga}\nv_lshl_add_u32 v{ga}, v{q}, 4, v{ga}")
        A(f"s_mul_i32 s20, s49, 160\nv_add_u32 v{ga}, s20, v{ga}")
        if i == 2:
            A(f"v_mov_b32 v{q}, {KILL}\nv_cmp_le_u32 vcc, 1280, v{c}\nv_cndmask_b32 v{ga}, v{ga}, v{q}, vcc")
            A(f"v_mov_b32 v{q}, 0\nv_cndmask_b32 v{la}, v{la}, v{q}, vcc")
    srd(A, 12, 32, SZ_AU, WS_AU)
    A("s_waitcnt lgkmcnt(0)\ns_barrier")
    st3()
    attention_main(A, AV, 43)
    A("s_waitcnt lgkmcnt(0)\ns_barrier")
    st3()
    D = 16
    for i in range(3):
        A(f"ds_read_b64 v[{D+4*i}:{D+4*i+1}], v{T+4+2*i}\nds_read_b64 v[{D+4*i+2}:{D+4*i+3}], v{T+4+2*i} offset:8")
    A("s_waitcnt lgkmcnt(0)")
    for i in range(3): A(f"buffer_store_dwordx4 v[{D+4*i}:{D+4*i+3}], v{T+5+2*i}, s[12:15], 0 offen{O.k1st}")
    if O.stamp:
        A("s_cmp_ge_u32 s16, 4\ns_cbranch_scc1 K1_qnost")
    st3(); st3.flush(16, 32)
    A.label("K1_qnost")
    GS(A, 3)
    A("s_and_b32 s60, s2, 1\ns_lshl_b32 s60, s60, 2\ns_lshr_b32 s61, s2, 6\ns_add_u32 s60, s60, s61")
    srd(A, 12, 32, SZ_FZ2, WS_FZ2)
    A("s_lshl_b32 s60, s60, 8\nv_and_b32 v14, 31, v0\nv_lshlrev_b32 v14, 3, v14\nv_add_u32 v14, s60, v14")
    Lp = A.newlabel("K1_nopre")
    A(f"s_cmp_lg_u32 s16, 4\ns_cbranch_scc1 {Lp}")
    A("buffer_load_dwordx2 v[18:19], v14, s[12:15], 0 offen sc1")
    A.label(Lp)
    A("s_waitcnt vmcnt(0)\ns_barrier")
    srd(A, 12, 32, SZ_FQ, WS_FQ)
    A("s_lshl_b32 s20, s48, 6\ns_lshl_b32 s21, s49, 3\ns_add_u32 s20, s20, s21")
    A("s_branch K1_flag")
    A.label("K1_ztype")
    A("s_and_b32 s48, s40, 1\ns_lshl_b32 s48, s48, 4\ns_and_b32 s42, s41, 15\ns_add_u32 s48, s48, s42\ns_lshr_b32 s49, s40, 1")
    A("s_and_b32 s28, s42, 3")
    if O.zrot is None: rot_table(A)
    else: A(f"s_lshl_b32 s28, s28, 2\ns_lshr_b32 s28, {O.zrot}, s28\ns_and_b32 s28, s28, 15")
    A(f"s_mul_i32 s17, s48, {64*1280}")
    A("s_mul_i32 s19, s49, 384\ns_add_u32 s18, s19, 1536")
    A("s_cmp_lt_u32 s16, 4\ns_cbranch_scc1 K1_zcomp")
    srd(A, 4, 30, 2048*640*2); srd(A, 8, 36, 640*1536*2)
    if 'Z' in O.prio: A("s_setprio 2")
    k1_loader_z(A)
    if 'Z' in O.prio: A("s_setprio 0")
    A("s_branch K1_znost")
    A.label("K1_zcomp")
    st2 = Stamps(A, 0, 1); st2()
    A(f"s_lshr_b32 s20, s16, 1\ns_lshl_b32 s20, s20, 2\ns_add_u32 s20, s20, {ZFLG + 16}\nv_mov_b32 v14, s20\nv_mov_b32 v15, 0\nds_write_b32 v14, v15")
    k1_compute_z(A, st2)
    if O.stamp:
        A("s_cmp_ge_u32 s16, 4\ns_cbranch_scc1 K1_znost")
    st2(); st2.flush(16, 32)
    A.label("K1_znost")
    GS(A, 3)
    A("s_and_b32 s60, s2, 1\ns_lshl_b32 s60, s60, 2\ns_lshr_b32 s61, s2, 6\ns_add_u32 s60, s60, s61")
    srd(A, 12, 32, SZ_FZ2, WS_FZ2)
    A("s_lshl_b32 s60, s60, 8\nv_and_b32 v14, 31, v0\nv_lshlrev_b32 v14, 3, v14\nv_add_u32 v14, s60, v14")
    Lp = A.newlabel("K1_nopre")
    A(f"s_cmp_lg_u32 s16, 4\ns_cbranch_scc1 {Lp}")
    A("buffer_load_dwordx2 v[18:19], v14, s[12:15], 0 offen sc1")
    A.label(Lp)
    A("s_waitcnt vmcnt(0)\ns_barrier")
    srd(A, 12, 32, SZ_FZ, WS_FZ)
    A("s_lshr_b32 s20, s49, 1\ns_lshl_b32 s21, s48, 2\ns_add_u32 s20, s20, s21\ns_lshl_b32 s20, s20, 3")
    A.label("K1_flag")
    A("s_cmp_lg_u32 s16, 0\ns_cbranch_scc1 K1_done")
    A("s_add_u32 s21, s98, 1\nv_mov_b32 v8, s21\nv_mov_b32 v9, s99\nv_mov_b32 v10, s20")
    A("s_mov_b64 exec, 1")
    A("buffer_store_dwordx2 v[8:9], v10, s[12:15], 0 offen sc1")
    A("s_mov_b64 exec, -1")
    A.label("K1_done")
    GS(A, 4)
    return name, 256, 512, 155648 + 64, 256

SLOT = 20480
class E2:
    def __init__(self, A, pfx, NT, nsteps, pitchP, wave_m, wave_n, NS=6):
        self.A = A; self.pfx = pfx; self.NT = NT; self.n = nsteps; self.pitchP = pitchP
        self.mP = wave_m; self.nT = wave_n; self.NS = NS
        self.F = [8, 8 + 8*(wave_m + wave_n)]
        self.ACC = 8 + 16*(wave_m + wave_n)
        self.vend = self.ACC + 4*wave_m*wave_n
    def fP(self, s, kk, m): return self.F[s] + 4*(kk*(self.mP+self.nT) + m)
    def fT(self, s, kk, t): return self.F[s] + 4*(kk*(self.mP+self.nT) + self.mP + t)
    def acc(self, m, t): return self.ACC + 4*(m*self.nT + t)
    def loader_setup(self):
        A = self.A
        A("s_sub_u32 s21, s16, 4")
        A("v_lshrrev_b32 v7, 3, v0\nv_and_b32 v2, 7, v0\nv_xor_b32 v2, v2, v7")
        A(f"s_mov_b32 s20, {self.pitchP}\nv_mul_lo_u32 v7, v7, s20\nv_lshl_add_u32 v2, v2, 4, v7\nv_lshlrev_b32 v3, 4, v0")
        A(f"s_mul_i32 s20, s21, {16*self.pitchP}\ns_add_u32 s23, s17, s20")
        A("s_mul_i32 s20, s21, 3072\ns_add_u32 s24, s18, s20\ns_add_u32 s26, s20, 8192\ns_lshl_b32 s27, s21, 11")
        A("s_mov_b32 s28, 0\ns_mov_b32 s29, 0")
        if 2*self.NT < 12:
            A(f"s_mul_i32 s20, s21, 3\ns_cmp_ge_u32 s20, {2*self.NT - 1}\ns_cselect_b32 s28, {KILL}, 0\ns_cmp_ge_u32 s20, {2*self.NT - 2}\ns_cselect_b32 s29, {KILL}, 0")
        A("s_mov_b32 s22, 0")
    def issue(self):
        A = self.A
        A("s_add_u32 m0, s22, s27")
        A(f"s_add_u32 s20, s23, {8*self.pitchP - 1024}")
        A("buffer_load_dwordx4 v2, s[4:7], s23 offen lds")
        A("buffer_load_dwordx4 v2, s[4:7], s20 offen offset:1024 lds")
        A("s_add_u32 m0, s22, s26")
        if 2*self.NT < 12:
            A("s_add_u32 s25, s24, s28\ns_add_u32 s15, s24, s29")
            A("buffer_load_dwordx4 v3, s[8:11], s24 offen lds")
            A("buffer_load_dwordx4 v3, s[8:11], s25 offen offset:1024 lds")
            A("buffer_load_dwordx4 v3, s[8:11], s15 offen offset:2048 lds")
        else:
            A(f"buffer_load_dwordx4 v3, s[8:11], s24 offen{O.xl} lds")
            A(f"buffer_load_dwordx4 v3, s[8:11], s24 offen offset:1024{O.xl} lds")
            A(f"buffer_load_dwordx4 v3, s[8:11], s24 offen offset:2048{O.xl} lds")
        A(f"s_add_u32 s23, s23, 128\ns_add_u32 s24, s24, {self.NT*2048}")
        A(f"s_add_u32 s22, s22, {SLOT}\ns_cmp_eq_u32 s22, {self.NS*SLOT}\ns_cselect_b32 s22, 0, s22")
    def loader_main(self, pre_issued):
        A = self.A; NS = self.NS; n = self.n
        for i in range(pre_issued, NS - 1): self.issue()
        A(f"s_waitcnt vmcnt({(NS - 2)*5})")
        A("s_barrier")
        self.issue()
        L = self.pfx + "_lloop"
        A("s_mov_b32 s14, 0")
        A.label(L)
        A(f"s_waitcnt vmcnt({(NS-2)*5})\ns_barrier")
        self.issue()
        A(f"s_add_u32 s14, s14, 1\ns_cmp_lt_u32 s14, {n - NS}\ns_cbranch_scc1 {L}")
        for t in range(NS):
            i = n - NS + t
            rem = max(0, (n - 1) - (i + 1))
            A(f"s_waitcnt vmcnt({rem*5})\ns_barrier")
    def compute_setup(self, s_row, s_tile):
        A = self.A
        A("v_and_b32 v4, 15, v0\nv_lshrrev_b32 v5, 4, v0\nv_and_b32 v6, 7, v4\nv_xor_b32 v5, v5, v6\nv_lshlrev_b32 v4, 7, v4\nv_lshl_add_u32 v4, v5, 4, v4")
        A(f"s_lshl_b32 s20, s{s_row}, 7\nv_add_u32 v2, s20, v4\nv_xor_b32 v3, 64, v2")
        A("v_and_b32 v6, 15, v0\nv_lshlrev_b32 v6, 3, v6\nv_and_b32 v7, 16, v0\nv_lshl_add_u32 v6, v7, 3, v6\nv_and_b32 v7, 32, v0\nv_lshl_add_u32 v6, v7, 4, v6")
        A(f"s_lshl_b32 s20, s{s_tile}, 11\ns_add_u32 s20, s20, 8192\nv_add_u32 v4, s20, v6")
        A(f"v_add_u32 v5, {3*SLOT}, v2\nv_add_u32 v6, {3*SLOT}, v3\nv_add_u32 v7, {3*SLOT}, v4")
        for i in range(self.ACC, self.vend): A(f"v_mov_b32 v{i}, 0")
    def reads(self, step):
        s = step & 1; sl = step % self.NS; hi = 3 if sl >= 3 else 0; so = (sl - hi)*SLOT
        b = 3 if hi else 0
        r = []
        for kk in range(2):
            for m in range(self.mP):
                f = self.fP(s, kk, m); r.append(f"ds_read_b128 v[{f}:{f+3}], v{2+kk+b} offset:{so + m*2048}")
            for t in range(self.nT):
                f = self.fT(s, kk, t)
                for h in range(2): r.append(f"ds_read_b64_tr_b16 v[{f+2*h}:{f+2*h+1}], v{4+b} offset:{so + t*2048 + kk*1024 + h*256}")
        return r
    def step(self, i, last=False):
        A = self.A; s = i & 1
        rd = [] if last else self.reads(i + 1)
        mf = [f"v_mfma_f32_16x16x32_bf16 v[{self.acc(m,t)}:{self.acc(m,t)+3}], v[{self.fT(s,kk,t)}:{self.fT(s,kk,t)+3}], v[{self.fP(s,kk,m)}:{self.fP(s,kk,m)+3}], v[{self.acc(m,t)}:{self.acc(m,t)+3}]"
              for kk in range(2) for m in range(self.mP) for t in range(self.nT)]
        A("s_barrier")
        per = (len(rd) + len(mf) - 1)//len(mf) if rd else 0
        for x in mf:
            for _ in range(per):
                if rd: A(rd.pop(0))
            A(x)
        A("s_waitcnt lgkmcnt(0)")
    def compute(self, st, unroll=False, hooks=None):
        A = self.A; NS = self.NS; n = self.n
        assert NS % 2 == 0
        A("s_barrier")
        for x in self.reads(0): A(x)
        A("s_waitcnt lgkmcnt(0)")
        st()
        if unroll:
            for i in range(n):
                self.step(i, last=(i == n - 1))
                if hooks and i in hooks: hooks[i]()
            return
        nfull = (n - 1)//NS
        L = self.pfx + "_cloop"
        A("s_mov_b32 s19, 0")
        A.label(L)
        for i in range(NS): self.step(i)
        A(f"s_add_u32 s19, s19, 1\ns_cmp_lt_u32 s19, {nfull}\ns_cbranch_scc1 {L}")
        for i in range(nfull*NS, n): self.step(i, last=(i == n - 1))

def tile_map(A):
    A("s_and_b32 s42, s2, 7\ns_lshr_b32 s43, s2, 3\ns_lshr_b32 s40, s42, 1\ns_lshl_b32 s40, s40, 3\ns_and_b32 s44, s43, 7\ns_add_u32 s40, s40, s44")
    A("s_and_b32 s41, s42, 1\ns_lshl_b32 s41, s41, 2\ns_lshr_b32 s44, s43, 3\ns_add_u32 s41, s41, s44")

ATT_LDS = 6*SLOT
def attention_regs(V):
    R = dict(aQ=V+1, aK=V+2, aV=V+3, t0=V+4, t1=V+5, t2=V+6, M20=V+7, M21=V+8, N20=V+9, N21=V+10)
    S = (V + 12 + 3)//4*4
    R.update(S=S, QF=S+12, KF=S+22, VF=S+52, OO=(S+82+3)//4*4)
    return R
def attention_prep(A, V, s_off):
    R = attention_regs(V); aQ, aK, aV, t0, t1, t2 = R['aQ'], R['aK'], R['aV'], R['t0'], R['t1'], R['t2']
    M20, M21, N20, N21, S, OO = R['M20'], R['M21'], R['N20'], R['N21'], R['S'], R['OO']
    A(f"v_lshrrev_b32 v{t0}, 3, v0\nv_lshlrev_b32 v{t0}, 2, v{t0}\nv_and_b32 v{t1}, 3, v0\nv_add_u32 v{t0}, v{t0}, v{t1}")
    A(f"v_lshrrev_b32 v{t1}, 2, v0\nv_and_b32 v{t1}, 1, v{t1}\nv_lshl_add_u32 v{t0}, v{t0}, 1, v{t1}")
    A(f"v_mul_u32_u24 v{t0}, {QP}, v{t0}\nv_add_u32 v{aK}, s{s_off}, v{t0}\nv_add_u32 v{aQ}, {16*QP}, v{aK}")
    A(f"v_lshrrev_b32 v{t1}, 4, v0\nv_lshlrev_b32 v{t1}, 2, v{t1}\nv_and_b32 v{t2}, 3, v0\nv_add_u32 v{t1}, v{t1}, v{t2}")
    A(f"v_lshrrev_b32 v{t2}, 1, v{t1}\nv_lshlrev_b32 v{t2}, 2, v{t2}\nv_and_b32 v{t1}, 1, v{t1}")
    A(f"v_lshrrev_b32 v{aV}, 2, v0\nv_and_b32 v{aV}, 3, v{aV}\nv_add_u32 v{aV}, v{aV}, v{t2}\nv_lshl_add_u32 v{aV}, v{aV}, 1, v{t1}")
    A(f"v_mul_u32_u24 v{aV}, {QP}, v{aV}\nv_add_u32 v{aV}, s{s_off}, v{aV}")
    A(f"v_and_b32 v{t1}, 3, v0")
    A(f"v_mov_b32 v{M20}, 0xffff\nv_mov_b32 v{t2}, -1\nv_cmp_le_u32 vcc, 1, v{t1}\nv_cndmask_b32 v{M20}, v{M20}, v{t2}, vcc")
    A(f"v_mov_b32 v{M21}, 0\nv_mov_b32 v{t2}, 0xffff\nv_cmp_le_u32 vcc, 2, v{t1}\nv_cndmask_b32 v{M21}, v{M21}, v{t2}, vcc")
    A(f"v_mov_b32 v{t2}, -1\nv_cmp_eq_u32 vcc, 3, v{t1}\nv_cndmask_b32 v{M21}, v{M21}, v{t2}, vcc")
    A(f"v_not_b32 v{N20}, v{M20}\nv_not_b32 v{N21}, v{M21}")
    for i in range(12): A(f"v_mov_b32 v{S+i}, 0")
    for i in range(20): A(f"v_mov_b32 v{OO+i}, 0")
    A("s_mov_b32 s22, 0xeeeeeeee\ns_mov_b32 s23, 0xeeeeeeee\ns_mov_b32 s24, 0xcccccccc\ns_mov_b32 s25, 0xcccccccc\ns_mov_b32 s26, 0x88888888\ns_mov_b32 s27, 0x88888888")
def attention_main(A, V, s_bound):
    R = attention_regs(V); aQ, aK, aV, t0, t1, t2 = R['aQ'], R['aK'], R['aV'], R['t0'], R['t1'], R['t2']
    M20, M21, N20, N21, S, QF, KF, VF, OO = R['M20'], R['M21'], R['N20'], R['N21'], R['S'], R['QF'], R['KF'], R['VF'], R['OO']
    for dg in range(5):
        A(f"ds_read_b64 v[{QF+2*dg}:{QF+2*dg+1}], v{aQ} offset:{8*dg}")
        for c in range(3): A(f"ds_read_b64 v[{KF+2*(5*c+dg)}:{KF+2*(5*c+dg)+1}], v{aK} offset:{8*c*QP + 160 + 8*dg}")
    for dg in range(5):
        if dg == 0:
            A("s_waitcnt lgkmcnt(15)")
        rem = 20 - 4*(dg+1)
        A(f"s_waitcnt lgkmcnt({min(rem, 15)})")
        for c in range(3):
            A(f"v_mfma_f32_4x4x4_16b_bf16 v[{S+4*c}:{S+4*c+3}], v[{KF+2*(5*c+dg)}:{KF+2*(5*c+dg)+1}], v[{QF+2*dg}:{QF+2*dg+1}], v[{S+4*c}:{S+4*c+3}]")
    for c in range(3):
        for dg in range(5): A(f"ds_read_b64_tr_b16 v[{VF+2*(5*c+dg)}:{VF+2*(5*c+dg)+1}], v{aV} offset:{8*c*QP + 320 + 8*dg}")
    Lb = A.newlabel("att_nomask")
    A(f"s_cmp_lg_u32 s{s_bound}, 0\ns_cbranch_scc1 {Lb}")
    A(f"v_mov_b32 v{t2}, {f2u(-1e30)}")
    A("v_cmp_gt_u32 vcc, 16, v0")
    for i in range(4): A(f"v_cndmask_b32 v{S+i}, v{S+i}, v{t2}, vcc")
    A("v_cmp_gt_u32 vcc, 8, v0")
    for i in range(4): A(f"v_cndmask_b32 v{S+4+i}, v{S+4+i}, v{t2}, vcc")
    A("s_nop 4")
    A.label(Lb)
    A("s_nop 4")
    for i in range(1, 4): A(f"v_cndmask_b32 v{S+8+i}, v{S+i}, v{S+8+i}, s[{20+2*i}:{21+2*i}]")
    vals = [S+4+i for i in range(8)]
    A(f"v_max3_f32 v{t0}, v{vals[0]}, v{vals[1]}, v{vals[2]}\nv_max3_f32 v{t1}, v{vals[3]}, v{vals[4]}, v{vals[5]}\nv_max3_f32 v{t0}, v{t0}, v{vals[6]}, v{vals[7]}\nv_max_f32 v{t0}, v{t0}, v{t1}")
    SC = (20 ** -0.5) * 1.4426950408889634
    A(f"s_mov_b32 s20, {f2u(SC)}")
    A(f"v_mul_f32 v{t0}, s20, v{t0}")
    for x in vals: A(f"v_fma_f32 v{x}, v{x}, s20, -v{t0}")
    for x in vals: A(f"v_exp_f32 v{x}, v{x}")
    A(f"v_add_f32 v{t0}, v{vals[0]}, v{vals[1]}\nv_add_f32 v{t1}, v{vals[2]}, v{vals[3]}\nv_add_f32 v{t2}, v{vals[4]}, v{vals[5]}\nv_add_f32 v{t0}, v{t0}, v{t1}")
    A(f"v_add_f32 v{t1}, v{vals[6]}, v{vals[7]}\nv_add_f32 v{t0}, v{t0}, v{t2}\nv_add_f32 v{t0}, v{t0}, v{t1}")
    A(f"v_rcp_f32 v{t0}, v{t0}")
    for x in vals: A(f"v_mul_f32 v{x}, v{x}, v{t0}")
    PP = QF
    A(f"v_cvt_pk_bf16_f32 v{PP+2}, v{S+4}, v{S+5}\nv_cvt_pk_bf16_f32 v{PP+3}, v{S+6}, v{S+7}")
    A(f"v_cvt_pk_bf16_f32 v{t1}, v{S+8}, v{S+9}\nv_cvt_pk_bf16_f32 v{t2}, v{S+10}, v{S+11}")
    A(f"v_and_b32 v{PP+4}, v{t1}, v{M20}\nv_and_b32 v{PP+5}, v{t2}, v{M21}\nv_and_b32 v{PP}, v{t1}, v{N20}\nv_and_b32 v{PP+1}, v{t2}, v{N21}")
    A("s_waitcnt lgkmcnt(0)")
    for c in (1, 0, 2):
        for dg in range(5):
            A(f"v_mfma_f32_4x4x4_16b_bf16 v[{OO+4*dg}:{OO+4*dg+3}], v[{VF+2*(5*c+dg)}:{VF+2*(5*c+dg)+1}], v[{PP+2*c}:{PP+2*c+1}], v[{OO+4*dg}:{OO+4*dg+3}]")
    for dg in range(5):
        A(f"v_cvt_pk_bf16_f32 v{KF+2*dg}, v{OO+4*dg}, v{OO+4*dg+1}\nv_cvt_pk_bf16_f32 v{KF+2*dg+1}, v{OO+4*dg+2}, v{OO+4*dg+3}")
    for dg in range(5): A(f"ds_write_b64 v{aQ}, v[{KF+2*dg}:{KF+2*dg+1}] offset:{8*dg}")

def k3(A):
    name = "k3_kernel"
    kernel_begin(A, name)
    A("s_cmp_ge_u32 s2, 256\ns_cbranch_scc1 K3_end")
    load_ptr(A, 30, 'wsp'); load_ptr(A, 32, 'ws'); load_ptr(A, 34, 'bsp')
    wave_lane(A, 16)
    tile_map(A)
    st = Stamps(A, 2); st()
    E = E2(A, "K3", 6, 32, 4096, 2, 3)
    A(f"s_mul_i32 s17, s40, {64*4096}\ns_mul_i32 s18, s41, {32*6*2048}")
    A("s_waitcnt lgkmcnt(0)")
    A("s_cmp_lt_u32 s16, 4\ns_cbranch_scc1 K3_comp")
    srd(A, 4, 30, 2048*2048*2); srd(A, 8, 32, SZ_Z2P, WS_Z2P)
    E.loader_setup()
    E.loader_main(0)
    A("s_branch K3_end")
    A.label("K3_comp")
    A("s_and_b32 s46, s16, 1\ns_lshl_b32 s46, s46, 5\ns_lshr_b32 s47, s16, 1\ns_mul_i32 s47, s47, 3")
    PF = 116
    srd(A, 4, 32, SZ_Z1, WS_Z1); srd(A, 8, 32, SZ_G, WS_G); srd(A, 12, 34, 2048*2)
    A("s_lshl_b32 s43, s40, 6\ns_add_u32 s43, s43, s46")
    A("v_and_b32 v112, 15, v0\nv_add_u32 v112, s43, v112\nv_lshrrev_b32 v113, 4, v0")
    A("s_lshr_b32 s48, s43, 5\ns_mul_i32 s48, s48, 48\ns_mul_i32 s49, s41, 6\ns_add_u32 s48, s48, s49\ns_add_u32 s48, s48, s47\ns_lshl_b32 s48, s48, 10")
    A("v_lshlrev_b32 v114, 4, v0")
    for t in range(3): A(f"buffer_load_dwordx4 v[{PF+4*t}:{PF+4*t+3}], v114, s[4:7], s48 offen offset:{t*1024}")
    A("v_lshlrev_b32 v115, 2, v112")
    A(f"buffer_load_dword v{PF+12}, v115, s[8:11], 0 offen\nbuffer_load_dword v{PF+13}, v115, s[8:11], 0 offen offset:64")
    A("v_lshlrev_b32 v115, 1, v112")
    A(f"buffer_load_ushort v{PF+14}, v115, s[12:15], 0 offen\nbuffer_load_ushort v{PF+15}, v115, s[12:15], 0 offen offset:32")
    E.compute_setup(46, 47)
    st()
    E.compute(st)
    st()
    A("s_waitcnt vmcnt(0)")
    srd(A, 12, 32, SZ_AU, WS_AU)
    for m in range(2): A(f"v_lshlrev_b32 v{PF+14+m}, 16, v{PF+14+m}\nv_sub_f32 v{PF+12+m}, 1.0, v{PF+12+m}")
    T = 132
    for m in range(2):
        for t in range(3):
            ac = E.acc(m, t)
            for q in range(2):
                z = PF + 4*t + 2*m + q
                A(f"v_lshlrev_b32 v{T}, 16, v{z}\nv_and_b32 v{T+1}, 0xffff0000, v{z}")
                A(f"v_add_f32 v{T+2}, v{ac+2*q}, v{PF+14+m}\nv_add_f32 v{T+3}, v{ac+2*q+1}, v{PF+14+m}")
                A(f"v_mul_f32 v{T}, v{T}, v{PF+12+m}\nv_mul_f32 v{T+1}, v{T+1}, v{PF+12+m}")
                A(f"v_mul_f32 v{T+2}, v{T+2}, v{T}\nv_mul_f32 v{T+3}, v{T+3}, v{T+1}")
                A(f"v_cvt_pk_bf16_f32 v{z}, v{T+2}, v{T+3}")
    A("s_mov_b32 s45, 2816\nv_mul_lo_u32 v114, v112, s45\nv_lshl_add_u32 v114, v113, 3, v114")
    A("s_mul_i32 s48, s41, 192\ns_lshl_b32 s49, s47, 5\ns_add_u32 s48, s48, s49\ns_add_u32 s48, s48, 1280\nv_add_u32 v114, s48, v114")
    A(f"s_mov_b32 s49, {16*2816}")
    for m in range(2):
        for t in range(3):
            z = PF + 4*t + 2*m
            A(f"buffer_store_dwordx2 v[{z}:{z+1}], v114, s[12:15], {'s49' if m else '0'} offen offset:{t*32}")
    st(); st.flush(16, 32)
    A.label("K3_end")
    A("s_endpgm")
    return name, 256, 512, 6*SLOT, 140

def k4(A):
    name = "k4_kernel"
    kernel_begin(A, name)
    A("s_cmp_ge_u32 s2, 256\ns_cbranch_scc1 K4_end")
    load_ptr(A, 30, 'out'); load_ptr(A, 32, 'ws')
    wave_lane(A, 16)
    tile_map(A)
    st = Stamps(A, 3); st()
    E = E2(A, "K4", 5, 22, 2816, 1, 5)
    A(f"s_mul_i32 s17, s40, {64*2816}\ns_mul_i32 s18, s41, {22*5*2048}")
    A("s_waitcnt lgkmcnt(0)")
    A("s_cmp_lt_u32 s16, 4\ns_cbranch_scc1 K4_comp")
    srd(A, 4, 32, SZ_AU, WS_AU); srd(A, 8, 32, SZ_WP, WS_WP)
    E.loader_setup()
    E.loader_main(0)
    A("s_branch K4_end")
    A.label("K4_comp")
    A("s_lshl_b32 s46, s16, 4\ns_mov_b32 s47, 0")
    srd(A, 8, 32, SZ_G, WS_G)
    A("s_lshl_b32 s43, s40, 6\ns_add_u32 s43, s43, s46\nv_and_b32 v126, 15, v0\nv_add_u32 v126, s43, v126\nv_lshlrev_b32 v126, 2, v126")
    A("buffer_load_dword v125, v126, s[8:11], 0 offen")
    E.compute_setup(46, 47)
    st()
    def scale():
        A("s_waitcnt vmcnt(0)")
        for t in range(5):
            for r in range(4): A(f"v_mul_f32 v{E.acc(0,t)+r}, v{E.acc(0,t)+r}, v125")
    E.compute(st, unroll=True, hooks={9: scale})
    st()
    A("s_lshl_b32 s43, s40, 6\ns_add_u32 s43, s43, s46\nv_and_b32 v2, 15, v0\nv_add_u32 v2, s43, v2\nv_lshrrev_b32 v3, 4, v0")
    srd(A, 12, 30, 2048*640*2)
    PK = 8
    for t in range(5):
        ac = E.acc(0, t)
        A(f"v_cvt_pk_bf16_f32 v{PK+2*t}, v{ac}, v{ac+1}\nv_cvt_pk_bf16_f32 v{PK+2*t+1}, v{ac+2}, v{ac+3}")
    A("s_mov_b32 s45, 1280\nv_mul_lo_u32 v4, v2, s45\nv_lshl_add_u32 v4, v3, 3, v4\ns_mul_i32 s46, s41, 160\nv_add_u32 v4, s46, v4")
    for t in range(5): A(f"buffer_store_dwordx2 v[{PK+2*t}:{PK+2*t+1}], v4, s[12:15], 0 offen offset:{t*32}")
    st(); st.flush(16, 32)
    A.label("K4_end")
    A("s_endpgm")
    return name, 256, 512, 6*SLOT, 128

def k34(A):
    name = "k34_kernel"
    NS = 6; N1 = 32; N2 = 22; N = N1 + N2
    USTG = NS*SLOT
    LCNT = USTG + 64*208
    load_ptr(A, 30, 'wsp'); load_ptr(A, 34, 'bsp'); load_ptr(A, 36, 'out'); load_ptr(A, 38, 'dbg')
    tile_map(A)
    hd_start(A)
    st = Stamps(A, 2); st()
    E1 = E2(A, "K34a", 6, N1, 4096, 2, 3)
    def wait_zflags(tag, va, vd):
        srd(A, 12, 32, SZ_FZ, WS_FZ)
        A(f"v_lshlrev_b32 v{va}, 4, v0\ns_add_u32 s45, s98, 1\ns_mov_b32 s47, 0")
        A.label(f"K34_zp{tag}")
        A(f"buffer_load_dwordx4 v[{vd}:{vd+3}], v{va}, s[12:15], 0 offen sc1\ns_waitcnt vmcnt(0)")
        A(f"v_xor_b32 v{vd}, s45, v{vd}\nv_xor_b32 v{vd+1}, s99, v{vd+1}\nv_xor_b32 v{vd+2}, s45, v{vd+2}\nv_xor_b32 v{vd+3}, s99, v{vd+3}")
        A(f"v_or3_b32 v{vd}, v{vd}, v{vd+1}, v{vd+2}\nv_or_b32 v{vd}, v{vd}, v{vd+3}\nv_cmp_ne_u32 vcc, 0, v{vd}\ns_add_u32 s47, s47, 1\ns_nop 3")
        A(f"s_cbranch_vccz K34_zok{tag}\ns_sleep {O.sleep}\ns_cmp_lt_u32 s47, 0x10000\ns_cbranch_scc1 K34_zp{tag}")
        A.label(f"K34_zok{tag}")
    A("s_waitcnt lgkmcnt(0)")
    A("s_cmp_lt_u32 s16, 4\ns_cbranch_scc1 K34_comp")
    if 'B' in O.prio: A("s_setprio 2")
    srd(A, 4, 30, 2048*2048*2); srd(A, 8, 32, SZ_Z2P, WS_Z2P)
    A(f"s_mul_i32 s17, s40, {64*4096}\ns_mul_i32 s18, s41, {32*6*2048}")
    E1.loader_setup()
    A("v_lshrrev_b32 v7, 3, v0\nv_and_b32 v4, 7, v0\nv_xor_b32 v4, v4, v7\nv_mul_u32_u24 v7, 2816, v7\nv_lshl_add_u32 v4, v4, 4, v7")
    A("v_lshrrev_b32 v7, 3, v0\nv_and_b32 v5, 7, v0\nv_xor_b32 v5, v5, v7\nv_mul_u32_u24 v7, 384, v7\nv_lshl_add_u32 v10, v5, 4, v7")
    for i in range(NS - 1):
        A(f"s_add_u32 m0, s27, {i*SLOT}\ns_add_u32 s20, s23, {i*128}\ns_add_u32 s25, s23, {i*128 + 8*4096 - 1024}")
        A("buffer_load_dwordx4 v2, s[4:7], s20 offen lds\nbuffer_load_dwordx4 v2, s[4:7], s25 offen offset:1024 lds")
    A("s_cmp_lg_u32 s16, 4\ns_cbranch_scc1 K34_lf")
    srd(A, 12, 32, SZ_FZ2, WS_FZ2)
    A("s_lshl_b32 s46, s41, 8\nv_and_b32 v14, 31, v0\nv_lshlrev_b32 v14, 3, v14\nv_add_u32 v14, s46, v14\ns_add_u32 s45, s98, 1\ns_mov_b32 s47, 0")
    A("v_mov_b32 v16, v18\nv_mov_b32 v17, v19\ns_branch K34_zpC")
    A.label("K34_zpL")
    A("buffer_load_dwordx2 v[16:17], v14, s[12:15], 0 offen sc1\ns_waitcnt vmcnt(0)")
    A.label("K34_zpC")
    A("v_xor_b32 v16, s45, v16\nv_xor_b32 v17, s99, v17\nv_or_b32 v16, v16, v17\nv_cmp_ne_u32 vcc, 0, v16\ns_add_u32 s47, s47, 1\ns_nop 3")
    A(f"s_cbranch_vccz K34_lf\ns_sleep {O.sleep2}\ns_cmp_lt_u32 s47, 0x10000\ns_cbranch_scc1 K34_zpL")
    A.label("K34_lf")
    A("s_barrier")
    for i in range(NS - 1):
        A(f"s_add_u32 m0, s26, {i*SLOT}\ns_add_u32 s20, s24, {i*6*2048}")
        for q in range(3): A(f"buffer_load_dwordx4 v3, s[8:11], s20 offen offset:{q*1024}{O.xl} lds")
    A(f"s_add_u32 s23, s23, {(NS-1)*128}\ns_add_u32 s24, s24, {(NS-1)*6*2048}\ns_mov_b32 s22, {(NS-1)*SLOT}")
    A(f"s_waitcnt vmcnt({(NS - 2)*3})\ns_barrier")
    E1.issue()
    for i in range(NS - 2):
        rem = (NS - 2 - (i + 1))*3 + (i + 1)*5
        A(f"s_waitcnt vmcnt({rem})\ns_barrier")
        E1.issue()
    def issue_static(slot):
        A(f"s_add_u32 m0, s27, {slot*SLOT}\ns_add_u32 s20, s23, {8*4096 - 1024}")
        A("buffer_load_dwordx4 v2, s[4:7], s23 offen lds")
        A("buffer_load_dwordx4 v2, s[4:7], s20 offen offset:1024 lds")
        A(f"s_add_u32 m0, s26, {slot*SLOT}\ns_add_u32 s23, s23, 128")
        for q in range(3): A(f"buffer_load_dwordx4 v3, s[8:11], s24 offen offset:{q*1024}{O.xl} lds")
        A(f"s_add_u32 s24, s24, {6*2048}")
    def lstep(i):
        A(f"s_waitcnt vmcnt({(NS-2)*5})\ns_barrier")
        issue_static((i + NS) % NS)
    for i in (4, 5): lstep(i)
    A("s_mov_b32 s14, 0")
    A.label("K34_lloop")
    for i in range(6, 12): lstep(i)
    A("s_add_u32 s14, s14, 1\ns_cmp_lt_u32 s14, 3\ns_cbranch_scc1 K34_lloop")
    for i in (24, 25): lstep(i)
    srd(A, 4, 32, SZ_AU, WS_AU); srd(A, 8, 32, SZ_WP, WS_WP); srd(A, 12, 32, SZ_FL, WS_FL)
    A(f"s_mul_i32 s17, s40, {64*2816}\ns_mul_i32 s20, s21, {16*2816}\ns_add_u32 s23, s17, s20")
    A(f"s_mul_i32 s18, s41, {22*5*2048}\ns_mul_i32 s20, s21, 3072\ns_add_u32 s24, s18, s20")
    A(f"s_mul_i32 s20, s21, 3\ns_cmp_ge_u32 s20, 9\ns_cselect_b32 s28, {KILL}, 0\ns_cmp_ge_u32 s20, 8\ns_cselect_b32 s29, {KILL}, 0")
    A("s_lshl_b32 s44, s40, 7\nv_and_b32 v8, 7, v0\nv_lshlrev_b32 v8, 3, v8\nv_add_u32 v8, s44, v8\ns_add_u32 s53, s98, 1")
    srd(A, 48, 32, SZ_U, WS_U)
    A(f"s_mul_i32 s52, s40, {4*24576}\ns_mul_i32 s20, s21, {16*384}\ns_add_u32 s52, s52, s20")
    issued = [('S', s) for s in range(N1 - NS + 2 - 1, N1) for _ in range(5)]
    def issueP(s):
        sl = s % NS; s2_ = s - N1
        fl = " sc1" if (s2_ >= 10 and O.usc1) else ""
        A(f"s_add_u32 m0, s27, {sl*SLOT}")
        if s2_ < 10:
            A(f"s_add_u32 s20, s23, {s2_*128}\ns_add_u32 s25, s23, {s2_*128 + 8*2816 - 1024}")
            A(f"buffer_load_dwordx4 v4, s[4:7], s20 offen{O.xl} lds")
            A(f"buffer_load_dwordx4 v4, s[4:7], s25 offen offset:1024{O.xl} lds")
        else:
            a_, b_ = divmod(s2_ - 10, 3)
            A(f"s_add_u32 s20, s52, {a_*24576 + b_*128}\ns_add_u32 s25, s52, {a_*24576 + b_*128 + 8*384 - 1024}")
            A(f"buffer_load_dwordx4 v10, s[48:51], s20 offen{fl} lds")
            A(f"buffer_load_dwordx4 v10, s[48:51], s25 offen offset:1024{fl} lds")
        issued.extend([('P', s)]*2)
    def issueT(s):
        sl = s % NS; s2_ = s - N1
        A(f"s_add_u32 m0, s26, {sl*SLOT}")
        A(f"s_add_u32 s20, s24, {s2_*10240}\ns_add_u32 s25, s20, s28\ns_add_u32 s45, s20, s29")
        A(f"buffer_load_dwordx4 v3, s[8:11], s20 offen{O.xl} lds")
        A(f"buffer_load_dwordx4 v3, s[8:11], s25 offen offset:1024{O.xl} lds")
        A(f"buffer_load_dwordx4 v3, s[8:11], s45 offen offset:2048{O.xl} lds")
        issued.extend([('T', s)]*3)
    def wait_for(needs):
        last = -1
        for idx, tg in enumerate(issued):
            if tg in needs: last = idx
        if last < 0: return
        A(f"s_waitcnt vmcnt({min(len(issued) - 1 - last, 63)})")
    FIRSTU = N1 + 10
    POLL_I = O.poll_i
    deferred = []
    gate_open = False
    for i in range(N1 - NS, N):
        nxt = i + 1
        if nxt < N:
            wait_for([('S', nxt), ('P', nxt), ('T', nxt)])
        A("s_barrier")
        if i == POLL_I + 1:
            wait_for([('X', 0)])
            A("v_xor_b32 v12, s53, v12\nv_xor_b32 v13, s99, v13\nv_or_b32 v12, v12, v13\nv_cmp_ne_u32 vcc, 0, v12\ns_nop 4")
            A("s_cbranch_vccz K34_ready")
            A("s_mov_b32 s47, 0")
            A.label("K34_poll")
            A(f"s_sleep {O.sleep}")
            A("buffer_load_dwordx2 v[12:13], v8, s[12:15], 0 offen sc1")
            A("s_waitcnt vmcnt(0)")
            A("v_xor_b32 v12, s53, v12\nv_xor_b32 v13, s99, v13\nv_or_b32 v12, v12, v13\nv_cmp_ne_u32 vcc, 0, v12")
            A("s_add_u32 s47, s47, 1\ns_nop 3")
            A("s_cbranch_vccz K34_ready")
            A("s_cmp_lt_u32 s47, 0x40000\ns_cbranch_scc1 K34_poll")
            A.label("K34_ready")
            gate_open = True
            for s in deferred: issueP(s)
            deferred = []
        s = i + NS
        if s < N:
            issueT(s)
            if s >= FIRSTU and not gate_open: deferred.append(s)
            else: issueP(s)
        if i == POLL_I:
            A("buffer_load_dwordx2 v[12:13], v8, s[12:15], 0 offen sc1")
            issued.append(('X', 0))
    assert not deferred
    A("s_branch K34_end")
    A.label("K34_comp")
    A("s_and_b32 s46, s16, 1\ns_lshl_b32 s46, s46, 5\ns_lshr_b32 s47, s16, 1\ns_mul_i32 s47, s47, 3")
    PF = 116
    C1R = 212
    C1R = 140
    C1R = 188
    BB = 132
    A("s_and_b32 s46, s16, 1\ns_lshl_b32 s46, s46, 5\ns_lshr_b32 s47, s16, 1\ns_mul_i32 s47, s47, 3")
    COA = 88
    A(f"s_mov_b32 s53, {USTG}")
    A(f"v_mov_b32 v138, {LCNT}\nv_mov_b32 v139, 0\nds_write_b32 v138, v139")
    E1.compute_setup(46, 47)
    E2b = E2(A, "K34b", 5, N2, 2816, 1, 5)
    E2b.F = [140, 188]; E2b.ACC = 236; E2b.vend = 256
    st()
    LA = [128, 129, 130]; GA = [131, 138, 139]
    def late_flag_setup():
        srd(A, 12, 32, SZ_FZ, WS_FZ); srd(A, 4, 32, SZ_FQ, WS_FQ)
        A("v_lshlrev_b32 v112, 4, v0")
        A("s_lshr_b32 s48, s40, 1\ns_lshl_b32 s48, s48, 6\nv_and_b32 v113, 7, v0\nv_lshlrev_b32 v113, 3, v113\nv_add_u32 v113, s48, v113")
    def late_flag_issue():
        A("buffer_load_dwordx4 v[116:119], v112, s[12:15], 0 offen sc1")
        A("buffer_load_dwordx2 v[120:121], v113, s[4:7], 0 offen sc1")
    def late_flag_check():
        A("s_add_u32 s45, s98, 1\ns_mov_b32 s49, 0")
        A.label("K34_lc")
        A("s_waitcnt vmcnt(0)")
        A("v_xor_b32 v116, s45, v116\nv_xor_b32 v117, s99, v117\nv_xor_b32 v118, s45, v118\nv_xor_b32 v119, s99, v119\nv_xor_b32 v120, s45, v120\nv_xor_b32 v121, s99, v121")
        A("v_or3_b32 v116, v116, v117, v118\nv_or3_b32 v116, v116, v119, v120\nv_or_b32 v116, v116, v121\nv_cmp_ne_u32 vcc, 0, v116\ns_add_u32 s49, s49, 1\ns_nop 3")
        A("s_cbranch_vccz K34_lcok\ns_cmp_ge_u32 s49, 0x10000\ns_cbranch_scc1 K34_lcok")
        A("buffer_load_dwordx4 v[116:119], v112, s[12:15], 0 offen sc1\nbuffer_load_dwordx2 v[120:121], v113, s[4:7], 0 offen sc1\ns_branch K34_lc")
        A.label("K34_lcok")
    def late_loads():
        srd(A, 4, 32, SZ_Z1, WS_Z1); srd(A, 8, 32, SZ_G, WS_G); srd(A, 12, 34, 2048*2)
        A("s_lshl_b32 s43, s40, 6\ns_add_u32 s43, s43, s46")
        A("v_and_b32 v112, 15, v0\nv_add_u32 v112, s43, v112\nv_lshrrev_b32 v113, 4, v0")
        A("s_lshr_b32 s48, s43, 5\ns_mul_i32 s48, s48, 48\ns_mul_i32 s49, s41, 6\ns_add_u32 s48, s48, s49\ns_add_u32 s48, s48, s47\ns_lshl_b32 s48, s48, 10")
        A("v_lshlrev_b32 v114, 4, v0")
        for t in range(3): A(f"buffer_load_dwordx4 v[{PF+4*t}:{PF+4*t+3}], v114, s[4:7], s48 offen offset:{t*1024} sc1")
        A("v_lshlrev_b32 v115, 2, v112")
        A(f"buffer_load_dword v{PF+12}, v115, s[8:11], 0 offen sc1\nbuffer_load_dword v{PF+13}, v115, s[8:11], 0 offen offset:64 sc1")
        A("v_lshlrev_b32 v115, 1, v112")
        A(f"buffer_load_ushort v{PF+14}, v115, s[12:15], 0 offen\nbuffer_load_ushort v{PF+15}, v115, s[12:15], 0 offen offset:32")
        A("s_lshl_b32 s50, s40, 6\ns_lshl_b32 s51, s16, 4\ns_add_u32 s50, s50, s51\nv_and_b32 v137, 15, v0\nv_add_u32 v137, s50, v137\nv_lshlrev_b32 v138, 2, v137")
        A("buffer_load_dword v136, v138, s[8:11], 0 offen sc1")
    def late_pre():
        A("s_waitcnt vmcnt(0)")
        for m in range(2):
            A(f"v_lshlrev_b32 v{BB+2*m}, 16, v{PF+14+m}\nv_mov_b32 v{BB+2*m+1}, v{BB+2*m}\nv_sub_f32 v{PF+12+m}, 1.0, v{PF+12+m}")
        for m in range(2):
            for t in range(3):
                c = C1R + 4*(3*m + t)
                for q in range(2):
                    z = PF + 4*t + 2*m + q
                    A(f"v_lshlrev_b32 v{c+2*q}, 16, v{z}\nv_and_b32 v{c+2*q+1}, 0xffff0000, v{z}")
        for m in range(2):
            for t in range(3):
                c = C1R + 4*(3*m + t)
                for r in range(4): A(f"v_mul_f32 v{c+r}, v{c+r}, v{PF+12+m}")
        A("s_mul_i32 s20, s16, 192\nv_add_u32 v112, s20, v0")
        for q in range(3):
            A(f"v_add_u32 v115, {64*q}, v112\nv_mul_u32_u24 v114, 5462, v115\nv_lshrrev_b32 v114, 16, v114")
            A(f"v_mul_u32_u24 v{LA[q]}, 12, v114\nv_sub_u32 v115, v115, v{LA[q]}\nv_lshlrev_b32 v115, 4, v115")
            A(f"v_mul_u32_u24 v{LA[q]}, 208, v114\nv_add3_u32 v{LA[q]}, v{LA[q]}, v115, s53\nv_mul_u32_u24 v{GA[q]}, 384, v114\nv_add_u32 v{GA[q]}, v{GA[q]}, v115")
        A("v_and_b32 v114, 15, v0\nv_add_u32 v114, s46, v114\nv_mul_u32_u24 v114, 208, v114\nv_lshl_add_u32 v114, v113, 3, v114")
        A(f"s_lshl_b32 s48, s47, 5\ns_add_u32 s48, s48, {USTG}\nv_add_u32 v114, s48, v114")
        A("v_and_b32 v115, 15, v0\nv_add_u32 v115, s46, v115\nv_and_b32 v112, 1, v113\nv_lshl_add_u32 v115, v112, 4, v115\nv_mul_u32_u24 v115, 208, v115\nv_lshrrev_b32 v112, 1, v113\nv_lshl_add_u32 v115, v112, 4, v115\nv_add_u32 v115, s48, v115")
    A("s_barrier")
    GS(A, 5)
    A("s_barrier")
    GS(A, 6); G2(A, 0)
    for x in E1.reads(0): A(x)
    A("s_waitcnt lgkmcnt(0)")
    st()
    A("s_mov_b32 s19, 0")
    A.label("K34_cloop")
    for i in range(NS): E1.step(i)
    if O.gs2:
        A("s_memtime s[90:91]\ns_waitcnt lgkmcnt(0)")
        for k in range(3): A(f"s_cmp_eq_u32 s19, {k}\ns_cselect_b32 s{66+2*k}, s90, s{66+2*k}")
    A(f"s_add_u32 s19, s19, 1\ns_cmp_lt_u32 s19, {O.lf0//6}\ns_cbranch_scc1 K34_cloop")
    late_flag_setup()
    A("s_cmp_lg_u32 s16, 0\ns_cbranch_scc1 K34_nf1")
    late_flag_issue()
    A.label("K34_nf1")
    for i in range(O.lf0, O.lf0 + 2): E1.step(i)
    A("s_cmp_lg_u32 s16, 0\ns_cbranch_scc1 K34_nf2")
    late_flag_check()
    A.label("K34_nf2")
    G2(A, 4)
    E1.step(O.lf0 + 2)
    def capture(fn):
        n0 = len(A.lines); fn(); out = A.lines[n0:]; del A.lines[n0:]; return out
    def split_loads(lines):
        pieces = []; cur = []; nv = 0
        for l in lines:
            cur.append(l)
            if 'buffer_load' in l:
                nv += 1
                if nv == 2: pieces.append(cur); cur = []; nv = 0
        if cur: pieces.append(cur)
        return pieces
    LL = split_loads(capture(late_loads))
    PP_ = capture(late_pre)
    npre = 4
    PPs = [PP_[k*len(PP_)//npre:(k+1)*len(PP_)//npre] for k in range(npre)]
    sched = {}
    s0 = O.lf0 + 2
    for k, pc in enumerate(LL): sched.setdefault(s0 + k, []).extend(pc)
    assert s0 + len(LL) <= 25, (s0, len(LL))
    for k, pc in enumerate(PPs): sched.setdefault(26 + k, []).extend(pc)
    A.lines.extend(sched.get(s0, []))
    G2(A, 5)
    for i in range(O.lf0 + 3, 30):
        E1.step(i)
        A.lines.extend(sched.get(i, []))
        if i in (23, 26, 29): G2(A, 6 + (23, 26, 29).index(i))
    G2(A, 9)
    E1.step(30)
    A("v_and_b32 v4, 15, v0\nv_lshrrev_b32 v5, 4, v0\nv_and_b32 v6, 7, v4\nv_xor_b32 v5, v5, v6\nv_lshlrev_b32 v4, 7, v4\nv_lshl_add_u32 v4, v5, 4, v4")
    A("s_lshl_b32 s20, s16, 11\nv_add_u32 v2, s20, v4\nv_xor_b32 v3, 64, v2")
    A("v_and_b32 v6, 15, v0\nv_lshlrev_b32 v6, 3, v6\nv_and_b32 v7, 16, v0\nv_lshl_add_u32 v6, v7, 3, v6\nv_and_b32 v7, 32, v0\nv_lshl_add_u32 v6, v7, 4, v6")
    A("v_add_u32 v4, 8192, v6")
    A(f"v_add_u32 v5, {3*SLOT}, v2\nv_add_u32 v6, {3*SLOT}, v3\nv_add_u32 v7, {3*SLOT}, v4")
    for i in range(236, 256): A(f"v_mov_b32 v{i}, 0")
    def mixed_step(Ecur, icur, Enext, inext, after_barrier=None):
        s = icur & 1
        rd = Enext.reads(inext) if Enext else []
        mf = [f"v_mfma_f32_16x16x32_bf16 v[{Ecur.acc(m,t)}:{Ecur.acc(m,t)+3}], v[{Ecur.fT(s,kk,t)}:{Ecur.fT(s,kk,t)+3}], v[{Ecur.fP(s,kk,m)}:{Ecur.fP(s,kk,m)+3}], v[{Ecur.acc(m,t)}:{Ecur.acc(m,t)+3}]"
              for kk in range(2) for m in range(Ecur.mP) for t in range(Ecur.nT)]
        A("s_barrier")
        if after_barrier: after_barrier()
        per = (len(rd) + len(mf) - 1)//len(mf) if rd else 0
        for x in mf:
            for _ in range(per):
                if rd: A(rd.pop(0))
            A(x)
        A("s_waitcnt lgkmcnt(0)")
    mixed_step(E1, 31, E2b, 32)
    st(); GS(A, 7); G2(A, 10)
    for m in range(2):
        for t in range(3):
            ac = E1.acc(m, t); c = C1R + 4*(3*m + t)
            for q in range(2):
                A(f"v_pk_add_f32 v[{ac+2*q}:{ac+2*q+1}], v[{ac+2*q}:{ac+2*q+1}], v[{PF+14+m-(PF+14+m)%2 if False else BB+2*m}:{BB+2*m+1}]")
    for m in range(2):
        for t in range(3):
            ac = E1.acc(m, t); c = C1R + 4*(3*m + t)
            for q in range(2):
                A(f"v_pk_mul_f32 v[{ac+2*q}:{ac+2*q+1}], v[{ac+2*q}:{ac+2*q+1}], v[{c+2*q}:{c+2*q+1}]")
    if O.fine2: st()
    for m in range(2):
        for t in range(3):
            ac = E1.acc(m, t); z = PF + 4*t + 2*m
            A(f"v_cvt_pk_bf16_f32 v{z}, v{ac}, v{ac+1}\nv_cvt_pk_bf16_f32 v{z+1}, v{ac+2}, v{ac+3}")
    if O.fine2: st()
    if O.stg128:
        for t in range(3):
            d = PF + 4*t
            A(f"v_permlane16_swap_b32 v{d}, v{d+2}\nv_permlane16_swap_b32 v{d+1}, v{d+3}")
        for t in range(3):
            A(f"ds_write_b128 v115, v[{PF+4*t}:{PF+4*t+3}] offset:{t*32}")
    else:
        for m in range(2):
            for t in range(3):
                z = PF + 4*t + 2*m
                A(f"ds_write_b64 v114, v[{z}:{z+1}] offset:{m*16*208 + t*32}")
    A("s_waitcnt lgkmcnt(0)")
    st()
    def signal():
        A("s_waitcnt vmcnt(0)")
        A(f"v_mov_b32 v138, {LCNT}\nv_mov_b32 v139, 1")
        A("s_mov_b64 exec, 1")
        A("ds_add_rtn_u32 v139, v138, v139")
        A("s_waitcnt lgkmcnt(0)")
        A("v_readfirstlane_b32 s20, v139")
        A("s_cmp_lg_u32 s20, 3\ns_cbranch_scc1 K34_nosig")
        srd(A, 12, 32, SZ_FL, WS_FL)
        A("s_lshl_b32 s20, s40, 7\ns_lshl_b32 s21, s41, 3\ns_add_u32 s20, s20, s21\nv_mov_b32 v112, s20\ns_add_u32 s21, s98, 1\nv_mov_b32 v138, s21\nv_mov_b32 v139, s99")
        A("buffer_store_dwordx2 v[138:139], v112, s[12:15], 0 offen sc1")
        A.label("K34_nosig")
        A("s_mov_b64 exec, -1")
    def copy_out():
        srd(A, 12, 32, SZ_U, WS_U)
        for q in range(3): A(f"ds_read_b128 v[{PF+4*q}:{PF+4*q+3}], v{LA[q]}")
        A("s_lshl_b32 s48, s40, 2\ns_lshr_b32 s49, s41, 1\ns_add_u32 s48, s48, s49\ns_mul_i32 s48, s48, 24576\ns_and_b32 s49, s41, 1\ns_mul_i32 s49, s49, 192\ns_add_u32 s48, s48, s49")
        A("s_waitcnt lgkmcnt(0)")
        for q in range(3): A(f"buffer_store_dwordx4 v[{PF+4*q}:{PF+4*q+3}], v{GA[q]}, s[12:15], s48 offen{O.ustore}")
    for i in range(N1, N):
        last = (i == N - 1)
        mixed_step(E2b, i, None if last else E2b, i + 1, after_barrier=(copy_out if i == N1 else None))
        if i in ((32, 33, 36, 40, 41) if O.fine2 else (32, 33, 34, 36, 38, 40, 41, 42, 45)): st()
        if i in (36, 40, 41, 45): GS(A, 8 + (36, 40, 41, 45).index(i))
        if i == O.sig_i: signal()
        if i == N1 + 9:
            for t in range(5):
                for r in range(4): A(f"v_mul_f32 v{E2b.acc(0,t)+r}, v{E2b.acc(0,t)+r}, v136")
    st()
    srd(A, 12, 36, 2048*640*2)
    PK = 8
    for t in range(5):
        ac = E2b.acc(0, t)
        A(f"v_cvt_pk_bf16_f32 v{PK+2*t}, v{ac}, v{ac+1}\nv_cvt_pk_bf16_f32 v{PK+2*t+1}, v{ac+2}, v{ac+3}")
    A("v_lshrrev_b32 v3, 4, v0\ns_mov_b32 s45, 1280\nv_mul_lo_u32 v4, v137, s45\ns_mul_i32 s46, s41, 160\nv_add_u32 v4, s46, v4")
    if O.wide_out:
        A("v_and_b32 v5, 1, v3\nv_lshlrev_b32 v5, 5, v5\nv_lshrrev_b32 v6, 1, v3\nv_lshl_add_u32 v5, v6, 4, v5\nv_add_u32 v5, v5, v4\nv_lshl_add_u32 v4, v3, 3, v4")
        for p in range(2):
            d = PK + 4*p
            A(f"v_permlane16_swap_b32 v{d}, v{d+2}\nv_permlane16_swap_b32 v{d+1}, v{d+3}")
        for p in range(2): A(f"buffer_store_dwordx4 v[{PK+4*p}:{PK+4*p+3}], v5, s[12:15], 0 offen offset:{p*64}{O.outst}")
        A(f"buffer_store_dwordx2 v[{PK+8}:{PK+9}], v4, s[12:15], 0 offen offset:128{O.outst}")
    else:
        A("v_lshl_add_u32 v4, v3, 3, v4")
        for t in range(5): A(f"buffer_store_dwordx2 v[{PK+2*t}:{PK+2*t+1}], v4, s[12:15], 0 offen offset:{t*32}{O.outst}")
    st(); st.flush(16, 32, 20)
    GS(A, 12); GS_flush(A, 13, 20)
    hd_end(A, 32, 2, 0, 60)
    if O.hdiag2:
        A("s_cmp_lg_u32 s2, 0\ns_cbranch_scc1 K34_end\ns_cmp_lg_u32 s16, 0\ns_cbranch_scc1 K34_end")
        A("s_waitcnt vmcnt(0)")
        srd(A, 84, 32, 0x100000, WS_TS); srd(A, 88, 38, 256)
        sel = [(0, 0, i) for i in (2, 3, 5, 7, 8, 9, 10)] + [(0, 128, i) for i in (2, 3, 4, 6)] + [(2, 0, i) for i in (2, 3, 11, 12, 15)]
        A("v_mov_b32 v60, 0\nv_mov_b32 v61, 0")
        for ln, (k, wg, i) in enumerate(sel):
            base = k*0x40000 + wg*4*128
            A(f"v_cmp_eq_u32 vcc, {ln}, v0\nv_mov_b32 v62, {base + 4*i}\nv_cndmask_b32 v60, v60, v62, vcc\nv_mov_b32 v62, {base}\nv_cndmask_b32 v61, v61, v62, vcc")
        A("v_cmp_gt_u32 vcc, 16, v0\ns_and_saveexec_b64 s[20:21], vcc")
        A("buffer_load_dword v63, v60, s[84:87], 0 offen sc1\nbuffer_load_dword v64, v61, s[84:87], 0 offen sc1\ns_waitcnt vmcnt(0)")
        A("v_sub_u32 v63, v63, v64\nv_lshlrev_b32 v60, 2, v0\nbuffer_store_dword v63, v60, s[88:91], 0 offen")
    if O.hdiag:
        A("s_cmp_lg_u32 s2, 0\ns_cbranch_scc1 K34_end\ns_cmp_lg_u32 s16, 0\ns_cbranch_scc1 K34_end")
        A("s_waitcnt vmcnt(0)")
        srd(A, 84, 32, 4096, WS_TS); srd(A, 88, 38, 256)
        A("v_lshlrev_b32 v60, 2, v0\nv_cmp_gt_u32 vcc, 12, v0\ns_and_saveexec_b64 s[20:21], vcc")
        A("buffer_load_dword v61, v60, s[84:87], 0 offen sc1\ns_waitcnt vmcnt(0)\nbuffer_store_dword v61, v60, s[88:91], 0 offen")
    A("s_or_b32 s20, s2, s16\ns_cmp_lg_u32 s20, 0\ns_cbranch_scc1 K34_end")
    srd(A, 12, 32, SZ_FQ, WS_FQ)
    A("v_lshlrev_b32 v14, 4, v0\ns_add_u32 s45, s98, 1\ns_mov_b32 s47, 0")
    A.label("K34_ep")
    A("buffer_load_dwordx4 v[16:19], v14, s[12:15], 0 offen sc1\ns_waitcnt vmcnt(0)")
    A("v_xor_b32 v16, s45, v16\nv_xor_b32 v17, s99, v17\nv_xor_b32 v18, s45, v18\nv_xor_b32 v19, s99, v19\nv_or3_b32 v16, v16, v17, v18\nv_or_b32 v16, v16, v19\nv_cmp_ne_u32 vcc, 0, v16\ns_add_u32 s47, s47, 1\ns_nop 3")
    A("s_cbranch_vccz K34_epok\ns_cmp_lt_u32 s47, 0x10000\ns_cbranch_scc1 K34_ep")
    A.label("K34_epok")
    srd(A, 12, 32, SZ_EP, WS_EP)
    A("v_mov_b32 v16, s45\nv_mov_b32 v17, s99\nv_mov_b32 v14, 0\ns_mov_b64 exec, 1")
    A("buffer_store_dwordx2 v[16:17], v14, s[12:15], 0 offen sc1")
    A.label("K34_end")
    A("s_endpgm")
    return name, 256, 512, NS*SLOT + 64*208 + 64, 256

def main(out):
    body = Asm()
    n, g, b, lds, vg = k1(body)
    k34(body)
    hdr = [f"; @launch grid=({g},1,1) block=({b},1,1) lds={lds}"]
    hdr.append('.amdgcn_target "amdgcn-amd-amdhsa--gfx950"'); hdr.append(".text")
    lines = hazard.fix(body.lines, verbose=True)
    txt = "\n".join(hdr) + "\n" + "\n".join(lines) + "\n" + '.section .rodata,"a"\n' + kernel_desc(n, 256, 102)
    open(out, "w").write(txt)
if __name__ == "__main__":
    if '--stamp' in sys.argv: O.stamp = True
    if '--norot' in sys.argv: O.rot = False
    if '--pfg' in sys.argv: O.pfg = True
    if '--nofull' in sys.argv: O.fullring = False
    for a_ in sys.argv:
        if a_.startswith('--tla='): O.tla = int(a_[6:])
    for a_ in sys.argv:
        if a_.startswith('--pfg2='): O.pfg2 = int(a_[7:])
    if '--itstamp' in sys.argv: O.itstamp = True
    if '--nowsp' in sys.argv: O.wsp_pf = False
    for a_ in sys.argv:
        if a_.startswith('--poll='): O.poll_i = int(a_[7:])
        if a_.startswith('--sig='): O.sig_i = int(a_[6:])
    if '--full' in sys.argv: O.fullring = True; O.tla = 6
    if '--nofuse' in sys.argv: O.fuse = False
    if '--nosc1' in sys.argv: O.usc1 = False
    if '--hdiag' in sys.argv: O.hdiag = True
    if '--fine2' in sys.argv: O.fine2 = True
    if '--gs' in sys.argv: O.gs = True
    for a_ in sys.argv:
        if a_.startswith('--prio='): O.prio = a_[7:]
    for a_ in sys.argv:
        if a_.startswith('--zrot='): O.zrot = int(a_[7:], 16)
    if '--gs3' in sys.argv: O.gs3 = True
    for a_ in sys.argv:
        if a_.startswith('--zn='): O.zn = int(a_[5:])
        if a_.startswith('--sst='): O.sst = int(a_[6:])
        if a_.startswith('--zp='): O.zp = int(a_[5:])
        if a_.startswith('--zs='): O.zs = int(a_[5:])
    if '--gs2' in sys.argv: O.gs2 = True
    if '--lt' in sys.argv: O.lt = True
    if '--nodefer' in sys.argv: O.defer = False
    for a_ in sys.argv:
        if a_.startswith('--hb='): O.hb = int(a_[5:])
    if '--xlplain' in sys.argv: O.xl = ''
    if '--k1sc1' in sys.argv: O.k1st = ' sc1'
    if '--k1nt' in sys.argv: O.k1st = ' nt'
    if '--outsc1' in sys.argv: O.outst = ' sc1'
    if '--outnt' in sys.argv: O.outst = ' nt'
    if '--hdiag2' in sys.argv: O.hdiag2 = True; O.stamp = True
    if '--stg64' in sys.argv: O.stg128 = False
    if '--uplain' in sys.argv: O.ustore = ''
    if '--unt' in sys.argv: O.ustore = ' sc1 nt'
    if '--usc01' in sys.argv: O.ustore = ' sc0 sc1'
    for a_ in sys.argv:
        if a_.startswith('--rottab='): O.rottab = int(a_[9:], 16)
    for a_ in sys.argv:
        if a_.startswith('--sleep='): O.sleep = int(a_[8:])
    main(sys.argv[1])
```

```python
import sys, struct
from asmlib import *
import hazard
NAME = "gated_mix__sliding_local_dilated__mixer_gmlp__prompt"
KA = dict(x=0, wqkv=8, wo=16, bx=24, win=32, wsp=40, bsp=48, wout=56, gw=64, out=72, dbg=80, ws=88)
QP = 504
HGS = 2048*QP
WS_QKVG = 0;          SZ_QKVG = 8*HGS
WS_Z1  = 0x900000;    SZ_Z1 = 2048*768*2
WS_Z2P = 0xC00000;    SZ_Z2P = 2048*768*2
WS_AU  = 0xF00000;    SZ_AU = 2048*1408*2
WS_WP  = 0x1500000;   SZ_WP = 1408*640*2
WS_ST  = 0x1700000;   SZ_ST = 8*2048*16
WS_G   = 0x1740000;   SZ_G = 2048*4
WS_EP  = 0x1760000;   SZ_EP = 128
WS_FZ  = 0x1770000;   SZ_FZ = 8*128
WS_FZ2 = 0x1790000;   SZ_FZ2 = 8*256
WS_FQ  = 0x1780000;   SZ_FQ = 16*64
WS_FL  = 0x1750000;   SZ_FL = 32*128
WS_U   = 0x1800000;   SZ_U = 2048*768*2
WS_TS  = 0x2000000
KILL = 0x40000000
C0 = -2.0*0.7978845608028654*1.4426950408889634
C1 = C0*0.044715
def f2u(f): return struct.unpack('<I', struct.pack('<f', f))[0]
class Opt:
    stamp = False; rot = True; wsp_pf = True; la = 5; itstamp = False; pfg = False; pfg2 = 2; fullring = False; tla = 4; poll_i = 38; sig_i = 34; fuse = True; hdiag2 = False; k1st = ' sc1'; outst = ''; xl = ' sc1'; sleep2 = 8; lt = False; gs2 = False; sst = 18; zp = 1; zn = 12; zs = 16; zmid = 1; zrot = None; earlyp = True; wide_out = True; prio = ''; wpf = False; wpfb = 3; gs3 = False; lf0 = 18; hb = 16; defer = True; gs = False; fine2 = False; stg128 = True; usc1 = True; ustore = ' sc1'; hdiag = False; sleep = 8; rottab = 0x8530
O = Opt()

def load_ptr(A, sd, key): A(f"s_load_dwordx2 s[{sd}:{sd+1}], s[0:1], {KA[key]}")
def wave_lane(A, s_w):
    A("v_lshrrev_b32 v1, 6, v0")
    A(f"v_readfirstlane_b32 s{s_w}, v1")
    A("v_and_b32 v0, 63, v0")

class Stamps:
    def __init__(self, A, kidx, n0=0): self.A = A; self.n = n0; self.k = kidx
    def __call__(self):
        if not O.stamp: return
        assert self.n < 16
        self.A(f"s_memtime s[{60+2*self.n}:{61+2*self.n}]"); self.n += 1
    def flush(self, s_w, s_ws, vt=250):
        if not O.stamp: return
        A = self.A
        A("s_waitcnt vmcnt(0)")
        A("s_memrealtime s[92:93]")
        A("s_waitcnt lgkmcnt(0)")
        srd(A, 56, s_ws, 0x100000, WS_TS + self.k*0x40000)
        A(f"s_lshl_b32 s54, s2, 2\ns_add_u32 s54, s54, s{s_w}\ns_lshl_b32 s54, s54, 7")
        A("s_mov_b64 exec, 1")
        for i in range(self.n):
            A(f"v_mov_b32 v{vt}, s{60+2*i}\nv_mov_b32 v{vt+1}, {4*i}")
            A(f"buffer_store_dword v{vt}, v{vt+1}, s[56:59], s54 offen")
        A(f"v_mov_b32 v{vt}, s92\nv_mov_b32 v{vt+1}, 124")
        A(f"buffer_store_dword v{vt}, v{vt+1}, s[56:59], s54 offen")
        A("s_mov_b64 exec, -1")


def it_top(A):
    if not O.itstamp: return
    A("s_memtime s[76:77]\ns_waitcnt lgkmcnt(0)")
    for k in range(3): A(f"s_cmp_eq_u32 s26, {k}\ns_cselect_b32 s{80+k}, s76, s{80+k}")
def it_mid(A):
    if O.itstamp: A("s_memtime s[76:77]\ns_waitcnt lgkmcnt(0)\ns_mov_b32 s83, s76")
def it_end(A, va, vb):
    if not O.itstamp: return
    A("s_memtime s[76:77]\ns_waitcnt lgkmcnt(0)\ns_mov_b32 s84, s76")
    srd(A, 56, 32, 0x200000, WS_TS + 7*0x40000)
    A("s_lshl_b32 s54, s2, 2\ns_add_u32 s54, s54, s16\ns_lshl_b32 s54, s54, 7")
    A("s_mov_b64 exec, 1")
    for i in range(11):
        A(f"v_mov_b32 v{va}, s{80+i}\nv_mov_b32 v{vb}, {4*i}")
        A(f"buffer_store_dword v{va}, v{vb}, s[56:59], s54 offen")
    A("s_mov_b64 exec, -1")


def hd_start(A):
    if O.hdiag: A("s_memtime s[94:95]\ns_memrealtime s[92:93]\ns_waitcnt lgkmcnt(0)\ns_mov_b32 s90, s94\ns_mov_b32 s91, s92")
def hd_end(A, s_ws, slot_sreg_expr, cond_wg, vt):
    if not O.hdiag: return
    L = A.newlabel("hd")
    A(f"s_cmp_lg_u32 s2, {cond_wg}\ns_cbranch_scc1 {L}\ns_cmp_lg_u32 s16, 0\ns_cbranch_scc1 {L}")
    A("s_waitcnt vmcnt(0)\ns_memtime s[94:95]\ns_memrealtime s[92:93]\ns_waitcnt lgkmcnt(0)")
    A("s_sub_u32 s94, s94, s90\ns_sub_u32 s95, s92, s91")
    srd(A, 84, s_ws, 4096, WS_TS)
    A(f"v_mov_b32 v{vt}, s94\nv_mov_b32 v{vt+1}, s95\nv_mov_b32 v{vt+2}, s91\nv_mov_b32 v{vt+3}, s92\nv_mov_b32 v{vt+4}, {slot_sreg_expr*16}")
    A("s_mov_b64 exec, 1")
    A(f"buffer_store_dwordx4 v[{vt}:{vt+3}], v{vt+4}, s[84:87], 0 offen")
    A("s_mov_b64 exec, -1")
    A.label(L)


def GS(A, i):
    if O.gs: A(f"s_memtime s[{64+2*i}:{65+2*i}]")
def G2(A, i):
    if O.gs2: A(f"s_memtime s[{64+2*i}:{65+2*i}]")
def GS_flush(A, n, vt, force=False):
    if not (O.gs or O.gs2 or force): return
    A("s_waitcnt vmcnt(0) lgkmcnt(0)")
    srd(A, 56, 32, 0x100000, WS_TS)
    A("s_lshl_b32 s54, s2, 2\ns_add_u32 s54, s54, s16\ns_lshl_b32 s54, s54, 7")
    A("s_mov_b64 exec, 1")
    for i in range(n):
        A(f"v_mov_b32 v{vt}, s{64+2*i}\nv_mov_b32 v{vt+1}, {4*i}")
        A(f"buffer_store_dword v{vt}, v{vt+1}, s[56:59], s54 offen")
    A("s_mov_b64 exec, -1")

def gelu_pk(A, regs, tmp, sC, vC=6):
    n = len(regs)
    for i, r in enumerate(regs): A(f"v_pk_mul_f32 v[{tmp+2*i}:{tmp+2*i+1}], v[{r}:{r+1}], v[{r}:{r+1}]")
    for i, r in enumerate(regs): A(f"v_pk_fma_f32 v[{tmp+2*i}:{tmp+2*i+1}], v[{tmp+2*i}:{tmp+2*i+1}], s[{sC}:{sC+1}], v[{vC}:{vC+1}]")
    for i, r in enumerate(regs): A(f"v_pk_mul_f32 v[{tmp+2*i}:{tmp+2*i+1}], v[{tmp+2*i}:{tmp+2*i+1}], v[{r}:{r+1}]")
    for i in range(2*n): A(f"v_exp_f32 v{tmp+i}, v{tmp+i}")
    for i, r in enumerate(regs): A(f"v_pk_add_f32 v[{tmp+2*i}:{tmp+2*i+1}], v[{tmp+2*i}:{tmp+2*i+1}], 1.0 op_sel_hi:[1,0]")
    for i in range(2*n): A(f"v_rcp_f32 v{tmp+i}, v{tmp+i}")
    for i, r in enumerate(regs): A(f"v_pk_mul_f32 v[{r}:{r+1}], v[{r}:{r+1}], v[{tmp+2*i}:{tmp+2*i+1}]")

def k1_geom(typ):
    if typ == 'q':
        return dict(pitchW=3840, PROWS=144, PSLOT=144*128, NPS=3, TSLOT=15360, R=6, TBASE=3*144*128)
    return dict(pitchW=3072, PROWS=128, PSLOT=128*128, NPS=3, TSLOT=16384, R=6, TBASE=3*128*128)

def k1_wsp_prefetch(A, part):
    if part == 0:
        srd(A, 4, 52, 2048*2048*2)
        A("s_and_b32 s40, s2, 7\ns_lshr_b32 s40, s40, 1\ns_lshl_b32 s40, s40, 14")
        A("s_lshr_b32 s41, s2, 3\ns_and_b32 s41, s41, 15\ns_lshl_b32 s41, s41, 10\ns_add_u32 s40, s40, s41")
        A("s_sub_u32 s41, s16, 4\ns_lshl_b32 s41, s41, 8\ns_add_u32 s40, s40, s41")
        A("s_lshl_b32 s40, s40, 7")
        A("v_lshlrev_b32 v249, 7, v0")
    else:
        A("s_add_u32 s40, s40, 8192")
    A(f"buffer_load_dword v{250 + (part & 1)}, v249, s[4:7], s40 offen")

def pf_setup(A):
    A("s_cmp_lt_u32 s21, 2\ns_cselect_b32 s84, s30, s34\ns_cselect_b32 s85, s31, s35")
    A(f"s_mov_b32 s86, {640*1920*2}\ns_cselect_b32 s86, {2048*640*2}, s86")
    A("s_cmp_eq_u32 s21, 3\ns_cselect_b32 s84, s36, s84\ns_cselect_b32 s85, s37, s85")
    A(f"s_cselect_b32 s86, {640*1536*2}, s86\ns_mov_b32 s87, 0x20000")
    A("s_lshr_b32 s88, s2, 3\ns_and_b32 s89, s2, 7\ns_lshr_b32 s90, s89, 1\ns_and_b32 s89, s89, 1")
    A("s_lshl_b32 s91, s89, 10\ns_lshl_b32 s92, s88, 5\ns_add_u32 s91, s91, s92\ns_lshl_b32 s92, s21, 4\ns_add_u32 s91, s91, s92")
    A("v_lshrrev_b32 v20, 2, v0\nv_add_u32 v20, s91, v20\nv_mul_u32_u24 v20, 1280, v20\nv_and_b32 v21, 3, v0\nv_lshl_add_u32 v20, v21, 7, v20\nv_add_u32 v20, 384, v20")
    A("v_mul_u32_u24 v21, 57, v0\nv_lshrrev_b32 v21, 9, v21\nv_mul_u32_u24 v22, 9, v21\nv_sub_u32 v22, v0, v22")
    A("s_mul_i32 s91, s88, 7\ns_add_u32 s91, s91, 192\nv_add_u32 v21, s91, v21\nv_mul_u32_u24 v21, 3840, v21")
    A("v_mul_u32_u24 v23, 171, v22\nv_lshrrev_b32 v23, 9, v23\nv_mul_u32_u24 v25, 3, v23\nv_sub_u32 v22, v22, v25")
    A("s_lshl_b32 s91, s90, 2\ns_lshr_b32 s91, 0x7520, s91\ns_and_b32 s91, s91, 15")
    A("v_add_u32 v22, s91, v22\nv_lshlrev_b32 v22, 7, v22\nv_mul_u32_u24 v23, 1280, v23\nv_add3_u32 v21, v21, v22, v23")
    A(f"v_mov_b32 v25, {KILL}\nv_cmp_le_u32 vcc, 63, v0\nv_cndmask_b32 v21, v21, v25, vcc")
    A("v_mul_u32_u24 v22, 43, v0\nv_lshrrev_b32 v22, 8, v22\nv_mul_u32_u24 v23, 6, v22\nv_sub_u32 v23, v0, v23")
    A("s_mul_i32 s91, s88, 7\ns_add_u32 s91, s91, 192\nv_add_u32 v22, s91, v22\nv_mul_u32_u24 v22, 3072, v22")
    A("v_mul_u32_u24 v26, 171, v23\nv_lshrrev_b32 v26, 9, v26\nv_mul_u32_u24 v27, 3, v26\nv_sub_u32 v23, v23, v27")
    A("v_lshlrev_b32 v23, 7, v23\nv_mul_u32_u24 v26, 1536, v26\nv_add3_u32 v22, v22, v23, v26\ns_mul_i32 s91, s90, 384\nv_add_u32 v22, s91, v22")
    A("v_cmp_le_u32 vcc, 42, v0\nv_cndmask_b32 v22, v22, v25, vcc")
    A("s_cmp_lt_u32 s21, 2\ns_cselect_b64 s[90:91], -1, 0\ns_cselect_b32 s88, 384, 0")
    A("v_cndmask_b32 v24, v21, v20, s[90:91]")
    A(f"s_cmp_eq_u32 s21, 2\ns_cselect_b32 s88, {224*3840}, s88")
    A(f"s_cmp_eq_u32 s21, 3\ns_cselect_b32 s88, {224*3072}, s88\ns_cselect_b64 s[90:91], -1, 0")
    A("v_cndmask_b32 v24, v24, v22, s[90:91]")

def pf_group(A, g):
    if g == 0: A("buffer_load_dword v248, v24, s[84:87], 0 offen")
    else: A("buffer_load_dword v248, v24, s[84:87], s88 offen")

def run_loader_schedule(A, issueP, issueT, issued, hooks=None, wsp=False, NB=20, p0_done=False):
    NPS = 3; R = 6
    def wait_for(needs):
        last = -1
        for idx, tg in enumerate(issued):
            if tg in needs: last = idx
        if last < 0: return
        A(f"s_waitcnt vmcnt({min(len(issued) - 1 - last, 63)})")
    TLA = O.tla
    if not p0_done: issueP(0, 0); issueP(0, 1)
    issueT(0); issueT(1)
    issueP(1, 0); issueP(1, 1)
    for t in range(2, TLA): issueT(t)
    if O.fullring: issueP(2, 0); issueP(2, 1)
    if O.pfg:
        pf_setup(A); pf_group(A, 0); issued.append(('F', 0))
    wait_for([('P', 0), ('T', 0)])
    A("s_barrier")
    if not O.fullring: issueP(2, 0)
    for b in range(NB):
        needs = []
        if b + 1 < NB: needs = [('T', b+1), ('P', (b+1)//2)]
        if needs: wait_for(needs)
        A("s_barrier")
        if b + TLA < NB: issueT(b + TLA)
        if b == 0 and not O.fullring: issueP(2, 1)
        if b % 2 == 1:
            s = (b - 1)//2 + NPS
            if s < NB//2: issueP(s, 0)
        elif b >= 2:
            s = (b - 2)//2 + NPS
            if s < NB//2: issueP(s, 1)
        if O.pfg and b == O.pfg2: pf_group(A, 1); issued.append(('F', 1))
        if hooks and b in hooks: hooks[b](issued)
        W0 = max(14, 20 - TLA)
        if wsp and O.wsp_pf and W0 <= b < W0 + 4: k1_wsp_prefetch(A, b - W0); issued.append(('W', b))
    A("s_barrier")

def rot_stage(A, s, dst):
    A(f"s_add_u32 s{dst}, s28, {s}\ns_cmp_ge_u32 s{dst}, 10\ns_cselect_b32 s29, 10, 0\ns_sub_u32 s{dst}, s{dst}, s29")
def rot_beat(A, b, dst):
    A(f"s_lshl_b32 s{dst}, s28, 1\ns_add_u32 s{dst}, s{dst}, {b}\ns_cmp_ge_u32 s{dst}, 20\ns_cselect_b32 s29, 20, 0\ns_sub_u32 s{dst}, s{dst}, s29")

ZR = 3; ZTS = 24576; ZTB = 81920
def k1_loader_z(A):
    pitchW = 3072; lw = 21; N = 20; R = ZR
    A(f"s_sub_u32 s{lw}, s16, 4")
    A("v_lshrrev_b32 v7, 3, v0\nv_and_b32 v2, 7, v0\nv_xor_b32 v2, v2, v7\nv_mul_u32_u24 v7, 1280, v7\nv_lshl_add_u32 v2, v2, 4, v7")
    for g8 in range(2):
        for i in range(3):
            d = 3 + 3*g8 + i
            A(f"v_add_u32 v10, {64*i}, v0\nv_mul_u32_u24 v11, 2731, v10\nv_lshrrev_b32 v11, 16, v11")
            A(f"v_mul_u32_u24 v12, 24, v11\nv_sub_u32 v12, v10, v12\nv_and_b32 v13, 2, v11\nv_add_u32 v13, {4*g8}, v13\nv_xor_b32 v12, v12, v13")
            A(f"v_add_u32 v11, {8*g8}, v11\nv_mul_u32_u24 v11, {pitchW}, v11\nv_lshl_add_u32 v{d}, v12, 4, v11")
            if i: A(f"v_subrev_u32 v{d}, {1024*i}, v{d}")
    A(f"s_mul_i32 s20, s{lw}, {16*1280}\ns_add_u32 s22, s17, s20")
    A(f"s_lshl_b32 s23, s{lw}, 11")
    A(f"s_mul_i32 s20, s{lw}, {16*pitchW}\ns_add_u32 s24, s18, s20\ns_add_u32 s25, s19, s20")
    A(f"s_mul_i32 s26, s{lw}, 6144\ns_add_u32 s26, s26, {ZTB}")
    A("s_mov_b32 s58, s28")
    issued = []
    def issue(s):
        if s < 10:
            A(f"s_lshl_b32 s27, s58, 7\ns_add_u32 s27, s27, s22\ns_add_u32 m0, s23, {s*8192}\ns_add_u32 s20, s27, {8*1280 - 1024}")
            A("buffer_load_dwordx4 v2, s[4:7], s27 offen lds\nbuffer_load_dwordx4 v2, s[4:7], s20 offen offset:1024 lds")
            issued.extend([('S', s)]*2)
        A(f"s_mul_i32 s27, s58, {64*pitchW}\ns_add_u32 s27, s27, s{24 + s//10}\ns_add_u32 m0, s26, {(s % R)*ZTS}")
        A("s_add_u32 s58, s58, 1\ns_cmp_eq_u32 s58, 10")
        for g8 in range(2):
            for i in range(3):
                A(f"buffer_load_dwordx4 v{3+3*g8+i}, s[8:11], s27 offen offset:{1024*i} lds")
                if g8 == 0 and i == 0: A("s_cselect_b32 s58, 0, s58")
            if g8 == 0: A("s_add_u32 m0, m0, 3072\ns_nop 0")
        issued.extend([('S', s)]*6)
    def wait_for(s):
        last = max(i for i, t in enumerate(issued) if t == ('S', s))
        A(f"s_waitcnt vmcnt({min(len(issued) - 1 - last, 63)})")
    for s in range(R - 1): issue(s)
    wait_for(0)
    A("s_barrier")
    issue(R - 1)
    for i in range(N):
        if i + 1 < N: wait_for(i + 1)
        A("s_barrier")
        if i + R < N: issue(i + R)
        if i == 9:
            k1_pack_load(A); issued.extend([('K', 0)]*6)
            z_gate_load(A, "s_sub_u32 s47, s16, 4\ns_lshl_b32 s47, s47, 2"); issued.extend([('G', 0)]*10)
            srd(A, 4, 30, 2048*640*2)
        if i == 12:
            last = max(k for k, t in enumerate(issued) if t == ('G', 0))
            A(f"s_waitcnt vmcnt({len(issued) - 1 - last})")
            z_gate_compute(A)
        if i == O.sst:
            k1_pack_store(A); issued.extend([('W', 0)]*6)
            z_gate_store(A); issued.extend([('W', 0)]*4)

def k1_loader_q(A, last):
    G = k1_geom('q'); PSLOT = G['PSLOT']; TSLOT = G['TSLOT']; TBASE = G['TBASE']
    nP = 3 if last else 2
    nTi = 3 if last else 4
    A("s_sub_u32 s21, s16, 4")
    A("v_lshrrev_b32 v7, 3, v0\nv_and_b32 v6, 7, v0\nv_xor_b32 v6, v6, v7")
    A("s_lshl_b32 s20, s48, 7\ns_sub_u32 s20, s20, 16\ns_lshl_b32 s22, s21, 4\ns_add_u32 s20, s20, s22")
    A("v_add_u32 v7, s20, v7")
    A("v_mov_b32 v12, v7")
    A("s_mov_b32 s20, 1280\nv_mul_lo_u32 v7, v7, s20\nv_lshl_add_u32 v2, v6, 4, v7")
    for h2 in range(2):
        for i in range(nP):
            if h2 == 0 and i == 0: continue
            A(f"v_add_u32 v{2 + h2*3 + i}, {(72*h2 + 8*i)*1280}, v2")
    A(f"v_mov_b32 v13, {KILL}")
    for i in range(2):
        A(f"v_add_u32 v14, {8*i}, v12\nv_cmp_gt_i32 vcc, 0, v14\nv_cndmask_b32 v{2+i}, v{2+i}, v13, vcc")
    A("s_mul_i32 s24, s49, 160")
    A("s_lshl_b32 s23, s21, 11")
    A(f"s_lshl_b32 s26, s21, 12\ns_add_u32 s26, s26, {TBASE}")
    issued = []
    def issueP(s, h2):
        slot = s % 3
        rot_stage(A, s, 27)
        A("s_lshl_b32 s27, s27, 7")
        A(f"s_add_u32 m0, s23, {slot*PSLOT + h2*72*128}")
        for i in range(nP):
            if i: A("s_add_u32 m0, m0, 1024\ns_nop 0")
            A(f"buffer_load_dwordx4 v{2 + h2*3 + i}, s[4:7], s27 offen lds")
            issued.append(('P', s))
    early = O.earlyp
    if early:
        issueP(0, 0); issueP(0, 1)
    A("s_lshl_b32 s20, s21, 8")
    for i in range(nTi):
        d = 8 + i
        A(f"v_add_u32 v12, s20, v0\nv_add_u32 v12, {64*i}, v12")
        A("v_mul_u32_u24 v13, 2185, v12\nv_lshrrev_b32 v13, 16, v13")
        A("v_mul_u32_u24 v14, 30, v13\nv_sub_u32 v14, v12, v14")
        A("v_and_b32 v15, 0x13, v13\nv_and_b32 v16, 4, v13\nv_lshl_or_b32 v15, v16, 1, v15\nv_and_b32 v16, 8, v13\nv_lshrrev_b32 v16, 1, v16\nv_or_b32 v15, v15, v16")
        A("v_mul_u32_u24 v16, 205, v14\nv_lshrrev_b32 v16, 11, v16")
        A("v_mul_u32_u24 v17, 10, v16\nv_sub_u32 v14, v14, v17")
        A("v_mul_u32_u24 v15, 3840, v15\nv_mul_u32_u24 v16, 1280, v16\nv_lshlrev_b32 v14, 4, v14")
        A(f"v_add3_u32 v{d}, v15, v16, v14")
    def issueT(b):
        slot = b % 6
        rot_beat(A, b, 27)
        A(f"s_mul_i32 s27, s27, {32*3840}\ns_add_u32 s27, s27, s24")
        A(f"s_add_u32 m0, s26, {slot*TSLOT}")
        for i in range(nTi):
            if i: A("s_add_u32 m0, m0, 1024\ns_nop 0")
            A(f"buffer_load_dwordx4 v{8 + i}, s[8:11], s27 offen lds")
            issued.append(('T', b))
    def h_wpf(issued):
        load_ptr(A, 88, 'wo'); load_ptr(A, 92, 'wout')
        A("s_lshl_b32 s60, s48, 3\ns_add_u32 s60, s60, s49\ns_mul_i32 s60, s60, 110\nv_add_u32 v244, s60, v0\nv_lshlrev_b32 v244, 7, v244")
        A(f"v_mov_b32 v245, {KILL}\nv_cmp_le_u32 vcc, 55, v0\nv_cndmask_b32 v244, v244, v245, vcc\nv_add_u32 v245, {55*128}, v244")
        A(f"v_subrev_u32 v246, {6400*128}, v244\nv_subrev_u32 v247, {6400*128}, v245")
        A("s_waitcnt lgkmcnt(0)")
        A(f"s_mov_b32 s90, {640*640*2}\ns_mov_b32 s91, 0x20000\ns_mov_b32 s94, {768*640*2}\ns_mov_b32 s95, 0x20000")
        A("buffer_load_dword v248, v244, s[88:91], 0 offen\nbuffer_load_dword v248, v245, s[88:91], 0 offen")
        A("buffer_load_dword v248, v246, s[92:95], 0 offen\nbuffer_load_dword v248, v247, s[92:95], 0 offen")
        issued.extend([('F', 9)]*4)
    run_loader_schedule(A, issueP, issueT, issued, ({O.wpfb: h_wpf} if (O.wpf and last) else None), True, 20, early)


OT = 212
def z_oldtags(A, r32_sreg):
    srd(A, 12, 32, SZ_EP, WS_EP)
    A(f"s_lshl_b32 s40, s48, 7\nv_mov_b32 v221, s40")
    A(f"buffer_load_dwordx2 v[{OT}:{OT+1}], v221, s[12:15], 0 offen sc1")
def z_r32(A, dst):
    A(f"s_and_b32 s{dst}, s16, 1\ns_lshl_b32 s{dst}, s{dst}, 1\ns_lshr_b32 s41, s16, 2\ns_add_u32 s{dst}, s{dst}, s41")


ZCMB = 131072
ZFLG = 155648
GX, GW, GA_, GT = 152, 184, 192, 146
def z_gate_load(A, rowoff):
    srd(A, 4, 30, 2048*640*2); srd(A, 12, 38, 640*2)
    A("s_lshl_b32 s60, s48, 7\ns_lshl_b32 s61, s49, 4\ns_add_u32 s60, s60, s61\ns_lshl_b32 s61, s16, 2\ns_add_u32 s60, s60, s61") if False else None
    A("s_lshl_b32 s86, s48, 6\ns_lshl_b32 s47, s49, 4\ns_add_u32 s86, s86, s47")
    A(rowoff)
    A("s_add_u32 s86, s86, s47")
    A(f"v_lshlrev_b32 v{GT}, 4, v0\nv_add_u32 v{GT+1}, 1024, v{GT}\nv_mov_b32 v{GT+2}, {KILL}\nv_cmp_le_u32 vcc, 16, v0\nv_cndmask_b32 v{GT+1}, v{GT+1}, v{GT+2}, vcc")
    A(f"buffer_load_dwordx4 v[{GW}:{GW+3}], v{GT}, s[12:15], 0 offen\nbuffer_load_dwordx4 v[{GW+4}:{GW+7}], v{GT+1}, s[12:15], 0 offen")
    A("s_mul_i32 s87, s86, 1280")
    for r in range(4):
        A(f"s_add_u32 s85, s87, {r*1280}")
        A(f"buffer_load_dwordx4 v[{160+8*r}:{163+8*r}], v{GT}, s[4:7], s85 offen\nbuffer_load_dwordx4 v[{164+8*r}:{167+8*r}], v{GT+1}, s[4:7], s85 offen") if False else A(f"buffer_load_dwordx4 v[{GX+8*r}:{GX+3+8*r}], v{GT}, s[4:7], s85 offen\nbuffer_load_dwordx4 v[{GX+4+8*r}:{GX+7+8*r}], v{GT+1}, s[4:7], s85 offen")
def z_gate_compute(A):
    for r in range(4):
        A(f"v_mov_b32 v{GA_+r}, 0")
        for q in range(4): A(f"v_dot2_f32_bf16 v{GA_+r}, v{GX+8*r+q}, v{GW+q}, v{GA_+r}")
        for q in range(4): A(f"v_dot2_f32_bf16 v{GA_+r}, v{GX+4+8*r+q}, v{GW+4+q}, v{GA_+r}")
    for ctl in ("row_shr:1 row_mask:0xf bank_mask:0xf bound_ctrl:0", "row_shr:2 row_mask:0xf bank_mask:0xf bound_ctrl:0", "row_shr:4 row_mask:0xf bank_mask:0xf bound_ctrl:0",
                "row_shr:8 row_mask:0xf bank_mask:0xf bound_ctrl:0", "row_bcast:15 row_mask:0xa bank_mask:0xf", "row_bcast:31 row_mask:0xc bank_mask:0xf"):
        for r in range(4): A(f"v_add_f32_dpp v{GA_+r}, v{GA_+r}, v{GA_+r} {ctl}")
    for r in range(4): A(f"v_mul_f32 v{GA_+r}, {f2u(-1.4426950408889634)}, v{GA_+r}")
    for r in range(4): A(f"v_exp_f32 v{GA_+r}, v{GA_+r}")
    for r in range(4): A(f"v_add_f32 v{GA_+r}, 1.0, v{GA_+r}")
    for r in range(4): A(f"v_rcp_f32 v{GA_+r}, v{GA_+r}")
def z_gate_store(A):
    srd(A, 4, 32, SZ_G, WS_G)
    A(f"s_lshl_b32 s86, s86, 2\nv_mov_b32 v{GT}, 0")
    A("s_mov_b32 s42, 0\ns_mov_b32 s43, 0x80000000\ns_mov_b64 exec, s[42:43]")
    for r in range(4): A(f"buffer_store_dword v{GA_+r}, v{GT}, s[4:7], s86 offen offset:{4*r} sc1")
    A("s_mov_b64 exec, -1")

def k1_pack_load(A):
    T = 28
    c, cc, t2, p_, k_, x_ = T+2, T+3, T+4, T+5, T+6, T+7
    A("s_sub_u32 s40, s16, 4\ns_lshl_b32 s40, s40, 6")
    A(f"v_add_u32 v{c}, s40, v0\nv_and_b32 v{cc}, 127, v{c}\nv_lshrrev_b32 v{t2}, 7, v{c}\nv_lshrrev_b32 v{p_}, 1, v{cc}")
    A(f"v_and_b32 v{k_}, 0x33, v{p_}\nv_and_b32 v{x_}, 4, v{p_}\nv_lshl_or_b32 v{k_}, v{x_}, 1, v{k_}")
    A(f"v_and_b32 v{x_}, 8, v{p_}\nv_lshrrev_b32 v{x_}, 1, v{x_}\nv_or_b32 v{k_}, v{k_}, v{x_}")
    A(f"v_mul_u32_u24 v{k_}, 1280, v{k_}\nv_and_b32 v{x_}, 1, v{cc}\nv_lshl_add_u32 v{k_}, v{x_}, 4, v{k_}\nv_lshl_add_u32 v{k_}, v{t2}, 5, v{k_}")
    A(f"v_lshlrev_b32 v252, 4, v{cc}\nv_lshl_add_u32 v252, v{t2}, 11, v252")
    A(f"v_mov_b32 v{x_}, {KILL}\nv_cmp_eq_u32 vcc, 1, v{t2}\nv_cndmask_b32 v253, v252, v{x_}, vcc\nv_cndmask_b32 v{p_}, v{k_}, v{x_}, vcc")
    A("s_lshl_b32 s54, s48, 2\ns_add_u32 s54, s54, s49")
    for u, D in ((0, 224), (1, 236)):
        A(f"s_add_u32 s55, s54, {128*u}")
        A(f"s_mul_hi_u32 s41, s55, {(2**32 + 21)//22}\ns_mul_i32 s42, s41, 22\ns_sub_u32 s42, s55, s42")
        A("s_cmp_lt_u32 s42, 10\ns_cselect_b32 s12, s44, s46\ns_cselect_b32 s13, s45, s47")
        A(f"s_mov_b32 s14, {768*640*2}\ns_cselect_b32 s14, {640*640*2}, s14\ns_mov_b32 s15, 0x20000")
        A("s_cselect_b32 s43, 0, 10\ns_sub_u32 s43, s42, s43")
        A(f"s_mul_i32 s43, s43, {64*1280}\ns_mul_i32 s40, s41, 160\ns_add_u32 s43, s43, s40")
        A(f"s_cmp_ge_u32 s55, 176\ns_cselect_b32 s40, {KILL}, 0\ns_add_u32 s43, s43, s40")
        A(f"buffer_load_dwordx4 v[{D}:{D+3}], v{k_}, s[12:15], s43 offen")
        A(f"buffer_load_dwordx4 v[{D+4}:{D+7}], v{k_}, s[12:15], s43 offen offset:64")
        A(f"buffer_load_dwordx4 v[{D+8}:{D+11}], v{p_}, s[12:15], s43 offen offset:128")

def k1_pack_store(A):
    srd(A, 12, 32, SZ_WP, WS_WP)
    for u, D in ((0, 224), (1, 236)):
        A(f"s_add_u32 s55, s54, {128*u}")
        A(f"s_mul_i32 s41, s55, {5*2048}\ns_cmp_ge_u32 s55, 176\ns_cselect_b32 s42, {KILL}, 0\ns_add_u32 s41, s41, s42")
        A("s_add_u32 s42, s41, 4096\ns_add_u32 s43, s41, 8192")
        A(f"buffer_store_dwordx4 v[{D}:{D+3}], v252, s[12:15], s41 offen{O.k1st}")
        A(f"buffer_store_dwordx4 v[{D+4}:{D+7}], v252, s[12:15], s42 offen{O.k1st}")
        A(f"buffer_store_dwordx4 v[{D+8}:{D+11}], v253, s[12:15], s43 offen{O.k1st}")

def k1_compute_z(A, st):
    mP = 2; nT = 6; R = ZR
    F = [16, 176]
    AC = [80, 128]
    A("s_and_b32 s20, s16, 1\ns_lshr_b32 s21, s16, 1")
    A("v_and_b32 v14, 15, v0\nv_lshrrev_b32 v15, 4, v0\nv_and_b32 v6, 7, v14\nv_xor_b32 v6, v15, v6\nv_lshlrev_b32 v14, 7, v14\nv_lshl_add_u32 v14, v6, 4, v14")
    A("s_lshl_b32 s22, s20, 12")
    A("v_add_u32 v2, s22, v14\nv_xor_b32 v3, 64, v2\nv_add_u32 v4, 0x10000, v2\nv_add_u32 v5, 0x10000, v3")
    A("v_lshrrev_b32 v14, 2, v0\nv_and_b32 v14, 3, v14\nv_lshl_add_u32 v13, v15, 3, v14\nv_mul_u32_u24 v13, 384, v13")
    A("v_and_b32 v12, 3, v0\nv_lshl_add_u32 v13, v12, 3, v13")
    A("v_lshrrev_b32 v14, 1, v14\nv_and_b32 v12, 1, v15\nv_lshl_add_u32 v14, v12, 1, v14")
    A(f"v_add_u32 v15, {ZTB}, v13\ns_mul_i32 s23, s21, 6")
    for t in range(6):
        A(f"s_add_u32 s22, s23, {t}\ns_and_b32 s24, s22, 3\ns_andn2_b32 s22, s22, 3\nv_xor_b32 v13, s24, v14\nv_add_u32 v13, s22, v13\nv_lshl_add_u32 v{6+t}, v13, 5, v15")
    for i in range(80, 176): A(f"v_mov_b32 v{i}, 0")
    def fP(s, kk, m): return F[s] + 4*(kk*8 + m)
    def fT(s, kk, t): return F[s] + 4*(kk*8 + 2 + t)
    def acc(p, m, t): return AC[p] + 4*(m*nT + t)
    def reads(i):
        s = i & 1; ps = i % 10; ts = i % R
        r = []
        for kk in range(2):
            for m in range(mP):
                off = ps*8192 + m*2048; hi = off >> 16
                r.append(f"ds_read_b128 v[{fP(s,kk,m)}:{fP(s,kk,m)+3}], v{2 + kk + 2*hi} offset:{off & 0xffff}")
            for t in range(nT):
                f = fT(s, kk, t)
                for h in range(2): r.append(f"ds_read_b64_tr_b16 v[{f+2*h}:{f+2*h+1}], v{6 + t} offset:{ts*ZTS + kk*32*384 + h*4*384}")
        return r
    def beat(i, last=False):
        s = i & 1; p = i // 10
        mf = [f"v_mfma_f32_16x16x32_bf16 v[{acc(p,m,t)}:{acc(p,m,t)+3}], v[{fT(s,kk,t)}:{fT(s,kk,t)+3}], v[{fP(s,kk,m)}:{fP(s,kk,m)+3}], v[{acc(p,m,t)}:{acc(p,m,t)+3}]"
              for kk in range(2) for m in range(mP) for t in range(nT)]
        rd = [] if last else reads(i + 1)
        A("s_barrier")
        for k, x in enumerate(mf):
            for _ in range(2 if k < 10 else 1):
                if rd: A(rd.pop(0))
            A(x)
        assert not rd
        A("s_waitcnt lgkmcnt(0)")
    A("s_barrier")
    for x in reads(0): A(x)
    A("s_waitcnt lgkmcnt(0)")
    st(); GS(A, 1)
    for i in range(10): beat(i)
    st()
    TM = 176
    A(f"s_mov_b32 s56, {f2u(C1)}\ns_mov_b32 s57, {f2u(C1)}")
    A(f"v_mov_b32 v12, {f2u(C0)}\nv_mov_b32 v13, {f2u(C0)}")
    gelu_pk(A, [acc(0, m, t) + 2*q for m in range(2) for t in range(6) for q in range(2)], TM, 56, 12)
    S = TM
    for m in range(2):
        vals = [acc(0, m, t) + r for t in range(6) for r in range(4)]
        for h in range(2):
            v0_ = vals[12*h:12*h+12]
            A(f"v_pk_add_f32 v[{S+4*m+2*h}:{S+4*m+2*h+1}], v[{v0_[0]}:{v0_[1]}], v[{v0_[2]}:{v0_[3]}]")
            A(f"v_pk_mul_f32 v[{S+8+4*m+2*h}:{S+8+4*m+2*h+1}], v[{v0_[0]}:{v0_[1]}], v[{v0_[0]}:{v0_[1]}]")
    for m in range(2):
        vals = [acc(0, m, t) + r for t in range(6) for r in range(4)]
        for h in range(2):
            v0_ = vals[12*h:12*h+12]
            A(f"v_pk_fma_f32 v[{S+8+4*m+2*h}:{S+8+4*m+2*h+1}], v[{v0_[2]}:{v0_[3]}], v[{v0_[2]}:{v0_[3]}], v[{S+8+4*m+2*h}:{S+8+4*m+2*h+1}]")
    for q in range(2, 6):
        for m in range(2):
            vals = [acc(0, m, t) + r for t in range(6) for r in range(4)]
            for h in range(2):
                v0_ = vals[12*h:12*h+12]
                A(f"v_pk_add_f32 v[{S+4*m+2*h}:{S+4*m+2*h+1}], v[{S+4*m+2*h}:{S+4*m+2*h+1}], v[{v0_[2*q]}:{v0_[2*q+1]}]")
                A(f"v_pk_fma_f32 v[{S+8+4*m+2*h}:{S+8+4*m+2*h+1}], v[{v0_[2*q]}:{v0_[2*q+1]}], v[{v0_[2*q]}:{v0_[2*q+1]}], v[{S+8+4*m+2*h}:{S+8+4*m+2*h+1}]")
    for m in range(2):
        A(f"v_pk_add_f32 v[{S+4*m}:{S+4*m+1}], v[{S+4*m}:{S+4*m+1}], v[{S+4*m+2}:{S+4*m+3}]")
        A(f"v_pk_add_f32 v[{S+8+4*m}:{S+8+4*m+1}], v[{S+8+4*m}:{S+8+4*m+1}], v[{S+8+4*m+2}:{S+8+4*m+3}]")
    for m in range(2):
        A(f"v_add_f32 v{S+16+2*m}, v{S+4*m}, v{S+4*m+1}\nv_add_f32 v{S+17+2*m}, v{S+8+4*m}, v{S+8+4*m+1}")
    X = S + 16
    for i in range(4): A(f"v_mov_b32 v{X+4+i}, v{X+i}")
    for i in range(4): A(f"v_permlane16_swap_b32 v{X+i}, v{X+4+i}")
    for i in range(4): A(f"v_add_f32 v{X+i}, v{X+i}, v{X+4+i}")
    for i in range(4): A(f"v_mov_b32 v{X+4+i}, v{X+i}")
    for i in range(4): A(f"v_permlane32_swap_b32 v{X+i}, v{X+4+i}")
    for i in range(4): A(f"v_add_f32 v{X+i}, v{X+i}, v{X+4+i}")
    A(f"v_and_b32 v14, 16, v0\nv_cmp_ne_u32 vcc, 0, v14\nv_cndmask_b32 v{X}, v{X}, v{X+2}, vcc\nv_cndmask_b32 v{X+1}, v{X+1}, v{X+3}, vcc")
    srd(A, 8, 32, SZ_ST, WS_ST)
    A("s_lshl_b32 s49, s49, 1\ns_add_u32 s49, s49, s21")
    A("s_lshl_b32 s22, s49, 15\ns_lshl_b32 s23, s48, 10\ns_add_u32 s22, s22, s23\ns_lshl_b32 s23, s20, 9\ns_add_u32 s22, s22, s23")
    A(f"s_add_u32 s24, s98, 1\nv_mov_b32 v{X+2}, s24\nv_mov_b32 v{X+3}, s99\nv_lshlrev_b32 v14, 4, v0")
    A("v_cmp_gt_u32 vcc, 32, v0\ns_and_saveexec_b64 s[24:25], vcc")
    A(f"buffer_store_dwordx4 v[{X}:{X+3}], v14, s[8:11], s22 offen sc1")
    A("s_mov_b64 exec, s[24:25]")
    st()
    PG = 240
    def poll_loads():
        for q in range(4):
            A(f"s_add_u32 s23, s27, {q*32768}")
            A(f"buffer_load_dwordx4 v[{PG+4*q}:{PG+3+4*q}], v15, s[8:11], s23 offen sc1")
    def poll_issue():
        A("s_lshl_b32 s27, s48, 10\ns_lshl_b32 s23, s20, 9\ns_add_u32 s27, s27, s23")
        A("v_and_b32 v15, 31, v0\nv_lshlrev_b32 v15, 4, v15\nv_lshrrev_b32 v14, 5, v0\nv_lshl_add_u32 v15, v14, 17, v15")
        poll_loads()
    def mid_normalise():
        G = TM
        A(f"s_add_u32 s24, s98, 1\nv_mov_b32 v12, s24\nv_mov_b32 v14, s99\ns_mov_b32 s24, 0\ns_branch K1_pollchk")
        A.label("K1_poll")
        A(f"s_sleep {O.sleep}")
        poll_loads()
        A.label("K1_pollchk")
        A("s_waitcnt vmcnt(0)")
        X = G + 32
        A(f"v_xor_b32 v{X}, v{PG+2}, v12\nv_xor_b32 v{X+1}, v{PG+3}, v14\nv_or_b32 v{X}, v{X}, v{X+1}")
        for q in range(1, 4): A(f"v_xor_b32 v{X+1}, v{PG+2+4*q}, v12\nv_xor_b32 v{X+2}, v{PG+3+4*q}, v14\nv_or3_b32 v{X}, v{X}, v{X+1}, v{X+2}")
        A(f"v_cmp_ne_u32 vcc, 0, v{X}\ns_add_u32 s24, s24, 1\ns_nop 3")
        A(f"s_cbranch_vccz K1_polled\ns_cmp_lt_u32 s24, 0x10000\ns_cbranch_scc1 K1_poll")
        A.label("K1_polled")
        A(f"v_add_f32 v{G}, v{PG}, v{PG+4}\nv_add_f32 v{G+1}, v{PG+1}, v{PG+5}\nv_add_f32 v{G+2}, v{PG+8}, v{PG+12}\nv_add_f32 v{G+3}, v{PG+9}, v{PG+13}")
        A(f"v_add_f32 v{G}, v{G}, v{G+2}\nv_add_f32 v{G+1}, v{G+1}, v{G+3}")
        A(f"v_mov_b32 v{G+2}, v{G}\nv_mov_b32 v{G+3}, v{G+1}")
        A(f"v_permlane32_swap_b32 v{G}, v{G+2}\nv_permlane32_swap_b32 v{G+1}, v{G+3}")
        A(f"v_add_f32 v{G}, v{G}, v{G+2}\nv_add_f32 v{G+1}, v{G+1}, v{G+3}")
        A(f"v_mul_f32 v{G}, {f2u(1/768)}, v{G}\nv_mul_f32 v{G+1}, {f2u(1/768)}, v{G+1}")
        A(f"v_fma_f32 v{G+1}, -v{G}, v{G}, v{G+1}\nv_max_f32 v{G+1}, 0, v{G+1}")
        A(f"v_add_f32 v{G+1}, {f2u(1e-5)}, v{G+1}\nv_rsq_f32 v{G+1}, v{G+1}")
        A(f"v_mul_f32 v{G}, v{G}, v{G+1}\nv_sub_f32 v{G}, 0, v{G}")
        A("v_and_b32 v13, 15, v0\nv_lshlrev_b32 v13, 2, v13")
        B = G + 8
        for m in range(2):
            A(f"v_add_u32 v12, {64*m}, v13")
            A(f"ds_bpermute_b32 v{B+2*m}, v12, v{G+1}\nds_bpermute_b32 v{B+1+2*m}, v12, v{G}")
        srd(A, 12, 32, SZ_Z2P, WS_Z2P)
        A("s_lshl_b32 s22, s49, 5\ns_add_u32 s22, s22, s48\ns_mul_i32 s22, s22, 12288\ns_lshl_b32 s23, s20, 10\ns_add_u32 s22, s22, s23")
        A("v_lshrrev_b32 v15, 4, v0\nv_and_b32 v12, 15, v0\nv_and_b32 v13, 3, v12\nv_and_b32 v14, 4, v12\nv_lshl_or_b32 v13, v14, 1, v13\nv_and_b32 v14, 8, v12\nv_lshrrev_b32 v14, 1, v14\nv_or_b32 v13, v13, v14")
        A("v_and_b32 v14, 1, v15\nv_lshl_add_u32 v13, v14, 4, v13\nv_lshlrev_b32 v13, 5, v13\nv_lshrrev_b32 v14, 1, v15\nv_lshl_add_u32 v13, v14, 4, v13")
        A("s_waitcnt lgkmcnt(0)")
        for m in range(2):
            for t in range(6):
                a_ = acc(0, m, t)
                for r in range(4): A(f"v_fma_f32 v{a_+r}, v{a_+r}, v{B+2*m}, v{B+1+2*m}")
        PK = G + 16
        for t in range(6):
            d = PK + 4*t; a0 = acc(0, 0, t); a1 = acc(0, 1, t)
            A(f"v_cvt_pk_bf16_f32 v{d}, v{a0}, v{a0+1}\nv_cvt_pk_bf16_f32 v{d+1}, v{a0+2}, v{a0+3}\nv_cvt_pk_bf16_f32 v{d+2}, v{a1}, v{a1+1}\nv_cvt_pk_bf16_f32 v{d+3}, v{a1+2}, v{a1+3}")
        for t in range(6):
            d = PK + 4*t
            A(f"v_permlane16_swap_b32 v{d}, v{d+2}\nv_permlane16_swap_b32 v{d+1}, v{d+3}")
        for t in range(6):
            A(f"s_add_u32 s23, s22, {t*2048}")
            A(f"buffer_store_dwordx4 v[{PK+4*t}:{PK+4*t+3}], v13, s[12:15], s23 offen sc1")
    def signal_z2():
        A("s_waitcnt vmcnt(0)")
        A(f"s_lshl_b32 s22, s21, 2\ns_add_u32 s22, s22, {ZFLG + 16}\nv_mov_b32 v12, s22\nv_mov_b32 v13, 1\ns_mov_b64 exec, 1")
        A("ds_add_rtn_u32 v13, v12, v13\ns_waitcnt lgkmcnt(0)\nv_readfirstlane_b32 s22, v13")
        A("s_cmp_lg_u32 s22, 1\ns_cbranch_scc1 K1_z2nosig")
        srd(A, 12, 32, SZ_FZ2, WS_FZ2)
        A("s_lshl_b32 s22, s49, 8\ns_lshl_b32 s23, s48, 3\ns_add_u32 s22, s22, s23\nv_mov_b32 v12, s22\ns_add_u32 s23, s98, 1\nv_mov_b32 v14, s23\nv_mov_b32 v15, s99")
        A("buffer_store_dwordx2 v[14:15], v12, s[12:15], 0 offen sc1")
        A.label("K1_z2nosig")
        A("s_mov_b64 exec, -1")
    G3 = lambda k: A(f"s_memtime s[{64+2*k}:{65+2*k}]") if O.gs3 else None
    G3(0)
    for i in range(10, 20):
        if i in (12, 14): G3(1 + (i - 12)//2)
        if i == O.zn - O.zp: poll_issue()
        if i == O.zn:
            assert i % 2 == 0
            G3(3); mid_normalise(); G3(4)
        if i == 18: G3(5)
        if i == O.zs: G3(6); signal_z2(); G3(7)
        beat(i, last=(i == 19))
    G3(8)
    if O.gs3: GS_flush(A, 9, 12, True)
    st(); GS(A, 2)
    A(f"v_mov_b32 v12, {f2u(C0)}\nv_mov_b32 v13, {f2u(C0)}")
    gelu_pk(A, [acc(1, m, t) + 2*q for m in range(2) for t in range(6) for q in range(2)], TM, 56, 12)
    srd(A, 4, 32, SZ_Z1, WS_Z1)
    A("s_lshl_b32 s22, s48, 1\ns_add_u32 s22, s22, s20\ns_mul_i32 s22, s22, 48\ns_mul_i32 s23, s49, 6\ns_add_u32 s22, s22, s23\ns_lshl_b32 s22, s22, 10")
    A("v_lshlrev_b32 v14, 4, v0")
    for t in range(6):
        d = 16 + 4*t; a0 = acc(1, 0, t); a1 = acc(1, 1, t)
        A(f"v_cvt_pk_bf16_f32 v{d}, v{a0}, v{a0+1}\nv_cvt_pk_bf16_f32 v{d+1}, v{a0+2}, v{a0+3}\nv_cvt_pk_bf16_f32 v{d+2}, v{a1}, v{a1+1}\nv_cvt_pk_bf16_f32 v{d+3}, v{a1+2}, v{a1+3}")
    for t in range(6):
        A(f"s_add_u32 s23, s22, {t*1024}")
        A(f"buffer_store_dwordx4 v[{16+4*t}:{19+4*t}], v14, s[4:7], s23 offen{O.k1st}")

def k1_compute_q(A, wm, wn, st):
    G = k1_geom('q'); PSLOT = G['PSLOT']; TSLOT = G['TSLOT']; TBASE = G['TBASE']
    tiles = list(range(0, 8)) if wn == 0 else list(range(8, 15))
    halo = {(0, 0): [5, 6], (1, 0): [7], (0, 1): [8, 9, 10, 11], (1, 1): [12, 13, 14]}[(wm, wn)]
    nT = len(tiles); mP = 5
    F = [16, 16 + 4*(5 + 8)]
    ACC = 16 + 8*(5 + 8)
    A("v_and_b32 v14, 15, v0\nv_lshrrev_b32 v15, 4, v0\nv_and_b32 v6, 7, v14\nv_xor_b32 v6, v15, v6\nv_lshlrev_b32 v14, 7, v14\nv_lshl_add_u32 v2, v6, 4, v14")
    A("v_xor_b32 v3, 64, v2")
    A("v_lshrrev_b32 v6, 1, v15\nv_lshlrev_b32 v6, 4, v6\nv_and_b32 v7, 1, v15\nv_lshl_add_u32 v6, v7, 2, v6")
    A("v_lshrrev_b32 v7, 2, v0\nv_and_b32 v7, 3, v7\nv_add_u32 v6, v6, v7\nv_mul_u32_u24 v6, 480, v6\nv_and_b32 v7, 3, v0\nv_lshl_add_u32 v6, v7, 3, v6")
    A(f"v_add_u32 v4, {TBASE}, v6\nv_add_u32 v5, {TBASE + 3*TSLOT}, v6")
    accs = {}
    n = ACC
    for m in range(4):
        for t in tiles: accs[(m, t)] = n; n += 4
    for t in halo: accs[('h', t)] = n; n += 4
    assert n <= 256, n
    for i in range(ACC, n): A(f"v_mov_b32 v{i}, 0")
    def fP(s, m): return F[s] + 4*m
    def fT(s, t): return F[s] + 4*(5 + tiles.index(t))
    def reads(b):
        s = b & 1; kk = b & 1; ps = (b//2) % 3; ts = b % 6
        r = []
        for m in range(4):
            f = fP(s, m); r.append(f"ds_read_b128 v[{f}:{f+3}], v{2+kk} offset:{ps*PSLOT + (16 + 64*wm + 16*m)*128}")
        f = fP(s, 4); r.append(f"ds_read_b128 v[{f}:{f+3}], v{2+kk} offset:{ps*PSLOT}")
        for t in tiles:
            f = fT(s, t)
            for h in range(2):
                hi = 1 if ts >= 3 else 0
                r.append(f"ds_read_b64_tr_b16 v[{f+2*h}:{f+2*h+1}], v{4+hi} offset:{(ts - 3*hi)*TSLOT + h*8*480 + t*32}")
        return r
    A("s_barrier")
    for x in reads(0): A(x)
    A("s_waitcnt lgkmcnt(0)")
    st(); GS(A, 1)
    A("s_barrier")
    def beat(b, last=False):
        s = b & 1
        mf = []
        for m in range(4):
            for t in tiles:
                a_ = accs[(m, t)]; mf.append(f"v_mfma_f32_16x16x32_bf16 v[{a_}:{a_+3}], v[{fT(s,t)}:{fT(s,t)+3}], v[{fP(s,m)}:{fP(s,m)+3}], v[{a_}:{a_+3}]")
        for t in halo:
            a_ = accs[('h', t)]; mf.append(f"v_mfma_f32_16x16x32_bf16 v[{a_}:{a_+3}], v[{fT(s,t)}:{fT(s,t)+3}], v[{fP(s,4)}:{fP(s,4)+3}], v[{a_}:{a_+3}]")
        rd = [] if last else reads(b + 1)
        nfront = len(mf) - 8
        for i, x in enumerate(mf):
            A(x)
            if rd: A(rd.pop(0))
            if i == nfront - 1:
                assert not rd, (len(rd), nfront)
                A("s_waitcnt lgkmcnt(0)\ns_barrier")
    L = f"K1q{wm}{wn}_cloop"
    A("s_mov_b32 s26, 0")
    A.label(L)
    it_top(A)
    for b in range(6):
        if O.itstamp: A(f"s_memtime s[76:77]\ns_waitcnt lgkmcnt(0)\ns_cmp_eq_u32 s26, 0\ns_cselect_b32 s{85+b}, s76, s{85+b}")
        beat(b)
    A(f"s_add_u32 s26, s26, 1\ns_cmp_lt_u32 s26, 3\ns_cbranch_scc1 {L}")
    it_mid(A)
    beat(18); beat(19, last=True)
    it_end(A, 14, 15)
    st(); GS(A, 2)
    A(f"v_and_b32 v6, 15, v0\nv_mul_u32_u24 v6, {QP}, v6\nv_lshrrev_b32 v7, 4, v0\nv_lshl_add_u32 v6, v7, 3, v6")
    k = 0
    items = list(accs.items())
    for (key, a_) in items:
        A(f"v_cvt_pk_bf16_f32 v{16+2*k}, v{a_}, v{a_+1}\nv_cvt_pk_bf16_f32 v{17+2*k}, v{a_+2}, v{a_+3}")
        k += 1
    A(f"v_add_u32 v7, 0x8000, v6")
    k = 0
    for (key, a_) in items:
        m, t = key
        row = 0 if m == 'h' else 16 + 64*wm + 16*m
        off = row*QP + t*32
        if off < 65536: A(f"ds_write_b64 v6, v[{16+2*k}:{17+2*k}] offset:{off}")
        else: A(f"ds_write_b64 v7, v[{16+2*k}:{17+2*k}] offset:{off - 0x8000}")
        k += 1

def rot_table(A):
    A(f"s_and_b32 s28, s28, 3\ns_lshl_b32 s28, s28, 2\ns_lshr_b32 s28, {O.rottab if O.rot else 0}, s28\ns_and_b32 s28, s28, 15")

def k1(A):
    name = NAME + "_kernel"
    kernel_begin(A, name)
    A("s_cmp_ge_u32 s2, 256\ns_cbranch_scc1 K34_end")
    load_ptr(A, 30, 'x'); load_ptr(A, 32, 'ws'); load_ptr(A, 34, 'wqkv'); load_ptr(A, 36, 'win')
    load_ptr(A, 38, 'gw'); load_ptr(A, 44, 'wo'); load_ptr(A, 46, 'wout'); load_ptr(A, 52, 'wsp'); load_ptr(A, 50, 'dbg')
    wave_lane(A, 16)
    hd_start(A)
    st = Stamps(A, 0); st()
    GS(A, 0)
    A("s_waitcnt lgkmcnt(0)")
    A(f"s_add_u32 s96, s32, {WS_EP}\ns_addc_u32 s97, s33, 0\ns_load_dwordx2 s[98:99], s[96:97], 0")
    A("s_and_b32 s40, s2, 7\ns_lshr_b32 s41, s2, 3\ns_and_b32 s48, s40, 1\ns_lshl_b32 s48, s48, 3\ns_and_b32 s42, s41, 7\ns_add_u32 s48, s48, s42")
    A("s_lshr_b32 s49, s40, 1\ns_lshl_b32 s49, s49, 1\ns_lshr_b32 s43, s41, 3\ns_and_b32 s43, s43, 1\ns_add_u32 s49, s49, s43")
    A("s_lshl_b32 s28, s43, 1\ns_add_u32 s28, s28, s42")
    rot_table(A)
    A("s_cmp_lt_u32 s41, 16\ns_cbranch_scc1 K1_ztype")
    A("s_cmp_lt_u32 s16, 4\ns_cbranch_scc1 K1_qcomp")
    srd(A, 4, 30, 2048*640*2); srd(A, 8, 34, 640*1920*2)
    if 'Q' in O.prio: A("s_setprio 2")
    A("s_cmp_eq_u32 s16, 7\ns_cbranch_scc1 K1_qload3")
    k1_loader_q(A, False)
    A("s_branch K1_att")
    A.label("K1_qload3")
    k1_loader_q(A, True)
    A("s_branch K1_att")
    A.label("K1_qcomp")
    if 'C' in O.prio: A("s_setprio 2")
    st()

    A("s_cmp_eq_u32 s16, 1\ns_cbranch_scc1 K1_q10\ns_cmp_eq_u32 s16, 2\ns_cbranch_scc1 K1_q01\ns_cmp_eq_u32 s16, 3\ns_cbranch_scc1 K1_q11")
    for (wm, wn) in ((0, 0), (1, 0), (0, 1), (1, 1)):
        if (wm, wn) != (0, 0): A.label(f"K1_q{wm}{wn}")
        stv = Stamps(A, 0, 2)
        k1_compute_q(A, wm, wn, stv)
        if (wm, wn) != (1, 1): A("s_branch K1_att")
    A.label("K1_att")
    if 'Q' in O.prio or 'C' in O.prio: A("s_setprio 0")
    st3 = Stamps(A, 0, 4)
    AV = 100

    A(f"s_and_b32 s46, s16, 3\ns_lshr_b32 s47, s16, 2\ns_mul_i32 s45, s46, 40\ns_mul_i32 s43, s47, {64*QP}\ns_add_u32 s45, s45, s43")
    A("s_or_b32 s43, s48, s47")
    attention_prep(A, AV, 45)
    T = 86
    A(f"s_lshl_b32 s20, s16, 6\nv_add_u32 v{T}, s20, v0")
    for i in range(3):
        c, r, q, la, ga = T+1, T+2, T+3, T+4+2*i, T+5+2*i
        A(f"v_add_u32 v{c}, {512*i}, v{T}")
        A(f"v_mul_u32_u24 v{r}, 6554, v{c}\nv_lshrrev_b32 v{r}, 16, v{r}")
        A(f"v_mul_u32_u24 v{q}, 10, v{r}\nv_sub_u32 v{q}, v{c}, v{q}")
        A(f"v_mul_u32_u24 v{la}, {QP}, v{r}\nv_lshl_add_u32 v{la}, v{q}, 4, v{la}\nv_add_u32 v{la}, {16*QP}, v{la}")
        A(f"s_lshl_b32 s20, s48, 7\nv_add_u32 v{ga}, s20, v{r}\nv_mul_u32_u24 v{ga}, 2816, v{ga}\nv_lshl_add_u32 v{ga}, v{q}, 4, v{ga}")
        A(f"s_mul_i32 s20, s49, 160\nv_add_u32 v{ga}, s20, v{ga}")
        if i == 2:
            A(f"v_mov_b32 v{q}, {KILL}\nv_cmp_le_u32 vcc, 1280, v{c}\nv_cndmask_b32 v{ga}, v{ga}, v{q}, vcc")
            A(f"v_mov_b32 v{q}, 0\nv_cndmask_b32 v{la}, v{la}, v{q}, vcc")
    srd(A, 12, 32, SZ_AU, WS_AU)
    A("s_waitcnt lgkmcnt(0)\ns_barrier")
    st3()
    attention_main(A, AV, 43)
    A("s_waitcnt lgkmcnt(0)\ns_barrier")
    st3()
    D = 16
    for i in range(3):
        A(f"ds_read_b64 v[{D+4*i}:{D+4*i+1}], v{T+4+2*i}\nds_read_b64 v[{D+4*i+2}:{D+4*i+3}], v{T+4+2*i} offset:8")
    A("s_waitcnt lgkmcnt(0)")
    for i in range(3): A(f"buffer_store_dwordx4 v[{D+4*i}:{D+4*i+3}], v{T+5+2*i}, s[12:15], 0 offen{O.k1st}")
    if O.stamp:
        A("s_cmp_ge_u32 s16, 4\ns_cbranch_scc1 K1_qnost")
    st3(); st3.flush(16, 32)
    A.label("K1_qnost")
    GS(A, 3)
    A("s_and_b32 s60, s2, 1\ns_lshl_b32 s60, s60, 2\ns_lshr_b32 s61, s2, 6\ns_add_u32 s60, s60, s61")
    srd(A, 12, 32, SZ_FZ2, WS_FZ2)
    A("s_lshl_b32 s60, s60, 8\nv_and_b32 v14, 31, v0\nv_lshlrev_b32 v14, 3, v14\nv_add_u32 v14, s60, v14")
    Lp = A.newlabel("K1_nopre")
    A(f"s_cmp_lg_u32 s16, 4\ns_cbranch_scc1 {Lp}")
    A("buffer_load_dwordx2 v[18:19], v14, s[12:15], 0 offen sc1")
    A.label(Lp)
    A("s_waitcnt vmcnt(0)\ns_barrier")
    srd(A, 12, 32, SZ_FQ, WS_FQ)
    A("s_lshl_b32 s20, s48, 6\ns_lshl_b32 s21, s49, 3\ns_add_u32 s20, s20, s21")
    A("s_branch K1_flag")
    A.label("K1_ztype")
    A("s_and_b32 s48, s40, 1\ns_lshl_b32 s48, s48, 4\ns_and_b32 s42, s41, 15\ns_add_u32 s48, s48, s42\ns_lshr_b32 s49, s40, 1")
    A("s_and_b32 s28, s42, 3")
    if O.zrot is None: rot_table(A)
    else: A(f"s_lshl_b32 s28, s28, 2\ns_lshr_b32 s28, {O.zrot}, s28\ns_and_b32 s28, s28, 15")
    A(f"s_mul_i32 s17, s48, {64*1280}")
    A("s_mul_i32 s19, s49, 384\ns_add_u32 s18, s19, 1536")
    A("s_cmp_lt_u32 s16, 4\ns_cbranch_scc1 K1_zcomp")
    srd(A, 4, 30, 2048*640*2); srd(A, 8, 36, 640*1536*2)
    if 'Z' in O.prio: A("s_setprio 2")
    k1_loader_z(A)
    if 'Z' in O.prio: A("s_setprio 0")
    A("s_branch K1_znost")
    A.label("K1_zcomp")
    st2 = Stamps(A, 0, 1); st2()
    A(f"s_lshr_b32 s20, s16, 1\ns_lshl_b32 s20, s20, 2\ns_add_u32 s20, s20, {ZFLG + 16}\nv_mov_b32 v14, s20\nv_mov_b32 v15, 0\nds_write_b32 v14, v15")
    k1_compute_z(A, st2)
    if O.stamp:
        A("s_cmp_ge_u32 s16, 4\ns_cbranch_scc1 K1_znost")
    st2(); st2.flush(16, 32)
    A.label("K1_znost")
    GS(A, 3)
    A("s_and_b32 s60, s2, 1\ns_lshl_b32 s60, s60, 2\ns_lshr_b32 s61, s2, 6\ns_add_u32 s60, s60, s61")
    srd(A, 12, 32, SZ_FZ2, WS_FZ2)
    A("s_lshl_b32 s60, s60, 8\nv_and_b32 v14, 31, v0\nv_lshlrev_b32 v14, 3, v14\nv_add_u32 v14, s60, v14")
    Lp = A.newlabel("K1_nopre")
    A(f"s_cmp_lg_u32 s16, 4\ns_cbranch_scc1 {Lp}")
    A("buffer_load_dwordx2 v[18:19], v14, s[12:15], 0 offen sc1")
    A.label(Lp)
    A("s_waitcnt vmcnt(0)\ns_barrier")
    srd(A, 12, 32, SZ_FZ, WS_FZ)
    A("s_lshr_b32 s20, s49, 1\ns_lshl_b32 s21, s48, 2\ns_add_u32 s20, s20, s21\ns_lshl_b32 s20, s20, 3")
    A.label("K1_flag")
    A("s_cmp_lg_u32 s16, 0\ns_cbranch_scc1 K1_done")
    A("s_add_u32 s21, s98, 1\nv_mov_b32 v8, s21\nv_mov_b32 v9, s99\nv_mov_b32 v10, s20")
    A("s_mov_b64 exec, 1")
    A("buffer_store_dwordx2 v[8:9], v10, s[12:15], 0 offen sc1")
    A("s_mov_b64 exec, -1")
    A.label("K1_done")
    GS(A, 4)
    return name, 256, 512, 155648 + 64, 256

SLOT = 20480
class E2:
    def __init__(self, A, pfx, NT, nsteps, pitchP, wave_m, wave_n, NS=6):
        self.A = A; self.pfx = pfx; self.NT = NT; self.n = nsteps; self.pitchP = pitchP
        self.mP = wave_m; self.nT = wave_n; self.NS = NS
        self.F = [8, 8 + 8*(wave_m + wave_n)]
        self.ACC = 8 + 16*(wave_m + wave_n)
        self.vend = self.ACC + 4*wave_m*wave_n
    def fP(self, s, kk, m): return self.F[s] + 4*(kk*(self.mP+self.nT) + m)
    def fT(self, s, kk, t): return self.F[s] + 4*(kk*(self.mP+self.nT) + self.mP + t)
    def acc(self, m, t): return self.ACC + 4*(m*self.nT + t)
    def loader_setup(self):
        A = self.A
        A("s_sub_u32 s21, s16, 4")
        A("v_lshrrev_b32 v7, 3, v0\nv_and_b32 v2, 7, v0\nv_xor_b32 v2, v2, v7")
        A(f"s_mov_b32 s20, {self.pitchP}\nv_mul_lo_u32 v7, v7, s20\nv_lshl_add_u32 v2, v2, 4, v7\nv_lshlrev_b32 v3, 4, v0")
        A(f"s_mul_i32 s20, s21, {16*self.pitchP}\ns_add_u32 s23, s17, s20")
        A("s_mul_i32 s20, s21, 3072\ns_add_u32 s24, s18, s20\ns_add_u32 s26, s20, 8192\ns_lshl_b32 s27, s21, 11")
        A("s_mov_b32 s28, 0\ns_mov_b32 s29, 0")
        if 2*self.NT < 12:
            A(f"s_mul_i32 s20, s21, 3\ns_cmp_ge_u32 s20, {2*self.NT - 1}\ns_cselect_b32 s28, {KILL}, 0\ns_cmp_ge_u32 s20, {2*self.NT - 2}\ns_cselect_b32 s29, {KILL}, 0")
        A("s_mov_b32 s22, 0")
    def issue(self):
        A = self.A
        A("s_add_u32 m0, s22, s27")
        A(f"s_add_u32 s20, s23, {8*self.pitchP - 1024}")
        A("buffer_load_dwordx4 v2, s[4:7], s23 offen lds")
        A("buffer_load_dwordx4 v2, s[4:7], s20 offen offset:1024 lds")
        A("s_add_u32 m0, s22, s26")
        if 2*self.NT < 12:
            A("s_add_u32 s25, s24, s28\ns_add_u32 s15, s24, s29")
            A("buffer_load_dwordx4 v3, s[8:11], s24 offen lds")
            A("buffer_load_dwordx4 v3, s[8:11], s25 offen offset:1024 lds")
            A("buffer_load_dwordx4 v3, s[8:11], s15 offen offset:2048 lds")
        else:
            A(f"buffer_load_dwordx4 v3, s[8:11], s24 offen{O.xl} lds")
            A(f"buffer_load_dwordx4 v3, s[8:11], s24 offen offset:1024{O.xl} lds")
            A(f"buffer_load_dwordx4 v3, s[8:11], s24 offen offset:2048{O.xl} lds")
        A(f"s_add_u32 s23, s23, 128\ns_add_u32 s24, s24, {self.NT*2048}")
        A(f"s_add_u32 s22, s22, {SLOT}\ns_cmp_eq_u32 s22, {self.NS*SLOT}\ns_cselect_b32 s22, 0, s22")
    def loader_main(self, pre_issued):
        A = self.A; NS = self.NS; n = self.n
        for i in range(pre_issued, NS - 1): self.issue()
        A(f"s_waitcnt vmcnt({(NS - 2)*5})")
        A("s_barrier")
        self.issue()
        L = self.pfx + "_lloop"
        A("s_mov_b32 s14, 0")
        A.label(L)
        A(f"s_waitcnt vmcnt({(NS-2)*5})\ns_barrier")
        self.issue()
        A(f"s_add_u32 s14, s14, 1\ns_cmp_lt_u32 s14, {n - NS}\ns_cbranch_scc1 {L}")
        for t in range(NS):
            i = n - NS + t
            rem = max(0, (n - 1) - (i + 1))
            A(f"s_waitcnt vmcnt({rem*5})\ns_barrier")
    def compute_setup(self, s_row, s_tile):
        A = self.A
        A("v_and_b32 v4, 15, v0\nv_lshrrev_b32 v5, 4, v0\nv_and_b32 v6, 7, v4\nv_xor_b32 v5, v5, v6\nv_lshlrev_b32 v4, 7, v4\nv_lshl_add_u32 v4, v5, 4, v4")
        A(f"s_lshl_b32 s20, s{s_row}, 7\nv_add_u32 v2, s20, v4\nv_xor_b32 v3, 64, v2")
        A("v_and_b32 v6, 15, v0\nv_lshlrev_b32 v6, 3, v6\nv_and_b32 v7, 16, v0\nv_lshl_add_u32 v6, v7, 3, v6\nv_and_b32 v7, 32, v0\nv_lshl_add_u32 v6, v7, 4, v6")
        A(f"s_lshl_b32 s20, s{s_tile}, 11\ns_add_u32 s20, s20, 8192\nv_add_u32 v4, s20, v6")
        A(f"v_add_u32 v5, {3*SLOT}, v2\nv_add_u32 v6, {3*SLOT}, v3\nv_add_u32 v7, {3*SLOT}, v4")
        for i in range(self.ACC, self.vend): A(f"v_mov_b32 v{i}, 0")
    def reads(self, step):
        s = step & 1; sl = step % self.NS; hi = 3 if sl >= 3 else 0; so = (sl - hi)*SLOT
        b = 3 if hi else 0
        r = []
        for kk in range(2):
            for m in range(self.mP):
                f = self.fP(s, kk, m); r.append(f"ds_read_b128 v[{f}:{f+3}], v{2+kk+b} offset:{so + m*2048}")
            for t in range(self.nT):
                f = self.fT(s, kk, t)
                for h in range(2): r.append(f"ds_read_b64_tr_b16 v[{f+2*h}:{f+2*h+1}], v{4+b} offset:{so + t*2048 + kk*1024 + h*256}")
        return r
    def step(self, i, last=False):
        A = self.A; s = i & 1
        rd = [] if last else self.reads(i + 1)
        mf = [f"v_mfma_f32_16x16x32_bf16 v[{self.acc(m,t)}:{self.acc(m,t)+3}], v[{self.fT(s,kk,t)}:{self.fT(s,kk,t)+3}], v[{self.fP(s,kk,m)}:{self.fP(s,kk,m)+3}], v[{self.acc(m,t)}:{self.acc(m,t)+3}]"
              for kk in range(2) for m in range(self.mP) for t in range(self.nT)]
        A("s_barrier")
        per = (len(rd) + len(mf) - 1)//len(mf) if rd else 0
        for x in mf:
            for _ in range(per):
                if rd: A(rd.pop(0))
            A(x)
        A("s_waitcnt lgkmcnt(0)")
    def compute(self, st, unroll=False, hooks=None):
        A = self.A; NS = self.NS; n = self.n
        assert NS % 2 == 0
        A("s_barrier")
        for x in self.reads(0): A(x)
        A("s_waitcnt lgkmcnt(0)")
        st()
        if unroll:
            for i in range(n):
                self.step(i, last=(i == n - 1))
                if hooks and i in hooks: hooks[i]()
            return
        nfull = (n - 1)//NS
        L = self.pfx + "_cloop"
        A("s_mov_b32 s19, 0")
        A.label(L)
        for i in range(NS): self.step(i)
        A(f"s_add_u32 s19, s19, 1\ns_cmp_lt_u32 s19, {nfull}\ns_cbranch_scc1 {L}")
        for i in range(nfull*NS, n): self.step(i, last=(i == n - 1))

def tile_map(A):
    A("s_and_b32 s42, s2, 7\ns_lshr_b32 s43, s2, 3\ns_lshr_b32 s40, s42, 1\ns_lshl_b32 s40, s40, 3\ns_and_b32 s44, s43, 7\ns_add_u32 s40, s40, s44")
    A("s_and_b32 s41, s42, 1\ns_lshl_b32 s41, s41, 2\ns_lshr_b32 s44, s43, 3\ns_add_u32 s41, s41, s44")

ATT_LDS = 6*SLOT
def attention_regs(V):
    R = dict(aQ=V+1, aK=V+2, aV=V+3, t0=V+4, t1=V+5, t2=V+6, M20=V+7, M21=V+8, N20=V+9, N21=V+10)
    S = (V + 12 + 3)//4*4
    R.update(S=S, QF=S+12, KF=S+22, VF=S+52, OO=(S+82+3)//4*4)
    return R
def attention_prep(A, V, s_off):
    R = attention_regs(V); aQ, aK, aV, t0, t1, t2 = R['aQ'], R['aK'], R['aV'], R['t0'], R['t1'], R['t2']
    M20, M21, N20, N21, S, OO = R['M20'], R['M21'], R['N20'], R['N21'], R['S'], R['OO']
    A(f"v_lshrrev_b32 v{t0}, 3, v0\nv_lshlrev_b32 v{t0}, 2, v{t0}\nv_and_b32 v{t1}, 3, v0\nv_add_u32 v{t0}, v{t0}, v{t1}")
    A(f"v_lshrrev_b32 v{t1}, 2, v0\nv_and_b32 v{t1}, 1, v{t1}\nv_lshl_add_u32 v{t0}, v{t0}, 1, v{t1}")
    A(f"v_mul_u32_u24 v{t0}, {QP}, v{t0}\nv_add_u32 v{aK}, s{s_off}, v{t0}\nv_add_u32 v{aQ}, {16*QP}, v{aK}")
    A(f"v_lshrrev_b32 v{t1}, 4, v0\nv_lshlrev_b32 v{t1}, 2, v{t1}\nv_and_b32 v{t2}, 3, v0\nv_add_u32 v{t1}, v{t1}, v{t2}")
    A(f"v_lshrrev_b32 v{t2}, 1, v{t1}\nv_lshlrev_b32 v{t2}, 2, v{t2}\nv_and_b32 v{t1}, 1, v{t1}")
    A(f"v_lshrrev_b32 v{aV}, 2, v0\nv_and_b32 v{aV}, 3, v{aV}\nv_add_u32 v{aV}, v{aV}, v{t2}\nv_lshl_add_u32 v{aV}, v{aV}, 1, v{t1}")
    A(f"v_mul_u32_u24 v{aV}, {QP}, v{aV}\nv_add_u32 v{aV}, s{s_off}, v{aV}")
    A(f"v_and_b32 v{t1}, 3, v0")
    A(f"v_mov_b32 v{M20}, 0xffff\nv_mov_b32 v{t2}, -1\nv_cmp_le_u32 vcc, 1, v{t1}\nv_cndmask_b32 v{M20}, v{M20}, v{t2}, vcc")
    A(f"v_mov_b32 v{M21}, 0\nv_mov_b32 v{t2}, 0xffff\nv_cmp_le_u32 vcc, 2, v{t1}\nv_cndmask_b32 v{M21}, v{M21}, v{t2}, vcc")
    A(f"v_mov_b32 v{t2}, -1\nv_cmp_eq_u32 vcc, 3, v{t1}\nv_cndmask_b32 v{M21}, v{M21}, v{t2}, vcc")
    A(f"v_not_b32 v{N20}, v{M20}\nv_not_b32 v{N21}, v{M21}")
    for i in range(12): A(f"v_mov_b32 v{S+i}, 0")
    for i in range(20): A(f"v_mov_b32 v{OO+i}, 0")
    A("s_mov_b32 s22, 0xeeeeeeee\ns_mov_b32 s23, 0xeeeeeeee\ns_mov_b32 s24, 0xcccccccc\ns_mov_b32 s25, 0xcccccccc\ns_mov_b32 s26, 0x88888888\ns_mov_b32 s27, 0x88888888")
def attention_main(A, V, s_bound):
    R = attention_regs(V); aQ, aK, aV, t0, t1, t2 = R['aQ'], R['aK'], R['aV'], R['t0'], R['t1'], R['t2']
    M20, M21, N20, N21, S, QF, KF, VF, OO = R['M20'], R['M21'], R['N20'], R['N21'], R['S'], R['QF'], R['KF'], R['VF'], R['OO']
    for dg in range(5):
        A(f"ds_read_b64 v[{QF+2*dg}:{QF+2*dg+1}], v{aQ} offset:{8*dg}")
        for c in range(3): A(f"ds_read_b64 v[{KF+2*(5*c+dg)}:{KF+2*(5*c+dg)+1}], v{aK} offset:{8*c*QP + 160 + 8*dg}")
    for dg in range(5):
        if dg == 0:
            A("s_waitcnt lgkmcnt(15)")
        rem = 20 - 4*(dg+1)
        A(f"s_waitcnt lgkmcnt({min(rem, 15)})")
        for c in range(3):
            A(f"v_mfma_f32_4x4x4_16b_bf16 v[{S+4*c}:{S+4*c+3}], v[{KF+2*(5*c+dg)}:{KF+2*(5*c+dg)+1}], v[{QF+2*dg}:{QF+2*dg+1}], v[{S+4*c}:{S+4*c+3}]")
    for c in range(3):
        for dg in range(5): A(f"ds_read_b64_tr_b16 v[{VF+2*(5*c+dg)}:{VF+2*(5*c+dg)+1}], v{aV} offset:{8*c*QP + 320 + 8*dg}")
    Lb = A.newlabel("att_nomask")
    A(f"s_cmp_lg_u32 s{s_bound}, 0\ns_cbranch_scc1 {Lb}")
    A(f"v_mov_b32 v{t2}, {f2u(-1e30)}")
    A("v_cmp_gt_u32 vcc, 16, v0")
    for i in range(4): A(f"v_cndmask_b32 v{S+i}, v{S+i}, v{t2}, vcc")
    A("v_cmp_gt_u32 vcc, 8, v0")
    for i in range(4): A(f"v_cndmask_b32 v{S+4+i}, v{S+4+i}, v{t2}, vcc")
    A("s_nop 4")
    A.label(Lb)
    A("s_nop 4")
    for i in range(1, 4): A(f"v_cndmask_b32 v{S+8+i}, v{S+i}, v{S+8+i}, s[{20+2*i}:{21+2*i}]")
    vals = [S+4+i for i in range(8)]
    A(f"v_max3_f32 v{t0}, v{vals[0]}, v{vals[1]}, v{vals[2]}\nv_max3_f32 v{t1}, v{vals[3]}, v{vals[4]}, v{vals[5]}\nv_max3_f32 v{t0}, v{t0}, v{vals[6]}, v{vals[7]}\nv_max_f32 v{t0}, v{t0}, v{t1}")
    SC = (20 ** -0.5) * 1.4426950408889634
    A(f"s_mov_b32 s20, {f2u(SC)}")
    A(f"v_mul_f32 v{t0}, s20, v{t0}")
    for x in vals: A(f"v_fma_f32 v{x}, v{x}, s20, -v{t0}")
    for x in vals: A(f"v_exp_f32 v{x}, v{x}")
    A(f"v_add_f32 v{t0}, v{vals[0]}, v{vals[1]}\nv_add_f32 v{t1}, v{vals[2]}, v{vals[3]}\nv_add_f32 v{t2}, v{vals[4]}, v{vals[5]}\nv_add_f32 v{t0}, v{t0}, v{t1}")
    A(f"v_add_f32 v{t1}, v{vals[6]}, v{vals[7]}\nv_add_f32 v{t0}, v{t0}, v{t2}\nv_add_f32 v{t0}, v{t0}, v{t1}")
    A(f"v_rcp_f32 v{t0}, v{t0}")
    for x in vals: A(f"v_mul_f32 v{x}, v{x}, v{t0}")
    PP = QF
    A(f"v_cvt_pk_bf16_f32 v{PP+2}, v{S+4}, v{S+5}\nv_cvt_pk_bf16_f32 v{PP+3}, v{S+6}, v{S+7}")
    A(f"v_cvt_pk_bf16_f32 v{t1}, v{S+8}, v{S+9}\nv_cvt_pk_bf16_f32 v{t2}, v{S+10}, v{S+11}")
    A(f"v_and_b32 v{PP+4}, v{t1}, v{M20}\nv_and_b32 v{PP+5}, v{t2}, v{M21}\nv_and_b32 v{PP}, v{t1}, v{N20}\nv_and_b32 v{PP+1}, v{t2}, v{N21}")
    A("s_waitcnt lgkmcnt(0)")
    for c in (1, 0, 2):
        for dg in range(5):
            A(f"v_mfma_f32_4x4x4_16b_bf16 v[{OO+4*dg}:{OO+4*dg+3}], v[{VF+2*(5*c+dg)}:{VF+2*(5*c+dg)+1}], v[{PP+2*c}:{PP+2*c+1}], v[{OO+4*dg}:{OO+4*dg+3}]")
    for dg in range(5):
        A(f"v_cvt_pk_bf16_f32 v{KF+2*dg}, v{OO+4*dg}, v{OO+4*dg+1}\nv_cvt_pk_bf16_f32 v{KF+2*dg+1}, v{OO+4*dg+2}, v{OO+4*dg+3}")
    for dg in range(5): A(f"ds_write_b64 v{aQ}, v[{KF+2*dg}:{KF+2*dg+1}] offset:{8*dg}")

def k3(A):
    name = "k3_kernel"
    kernel_begin(A, name)
    A("s_cmp_ge_u32 s2, 256\ns_cbranch_scc1 K3_end")
    load_ptr(A, 30, 'wsp'); load_ptr(A, 32, 'ws'); load_ptr(A, 34, 'bsp')
    wave_lane(A, 16)
    tile_map(A)
    st = Stamps(A, 2); st()
    E = E2(A, "K3", 6, 32, 4096, 2, 3)
    A(f"s_mul_i32 s17, s40, {64*4096}\ns_mul_i32 s18, s41, {32*6*2048}")
    A("s_waitcnt lgkmcnt(0)")
    A("s_cmp_lt_u32 s16, 4\ns_cbranch_scc1 K3_comp")
    srd(A, 4, 30, 2048*2048*2); srd(A, 8, 32, SZ_Z2P, WS_Z2P)
    E.loader_setup()
    E.loader_main(0)
    A("s_branch K3_end")
    A.label("K3_comp")
    A("s_and_b32 s46, s16, 1\ns_lshl_b32 s46, s46, 5\ns_lshr_b32 s47, s16, 1\ns_mul_i32 s47, s47, 3")
    PF = 116
    srd(A, 4, 32, SZ_Z1, WS_Z1); srd(A, 8, 32, SZ_G, WS_G); srd(A, 12, 34, 2048*2)
    A("s_lshl_b32 s43, s40, 6\ns_add_u32 s43, s43, s46")
    A("v_and_b32 v112, 15, v0\nv_add_u32 v112, s43, v112\nv_lshrrev_b32 v113, 4, v0")
    A("s_lshr_b32 s48, s43, 5\ns_mul_i32 s48, s48, 48\ns_mul_i32 s49, s41, 6\ns_add_u32 s48, s48, s49\ns_add_u32 s48, s48, s47\ns_lshl_b32 s48, s48, 10")
    A("v_lshlrev_b32 v114, 4, v0")
    for t in range(3): A(f"buffer_load_dwordx4 v[{PF+4*t}:{PF+4*t+3}], v114, s[4:7], s48 offen offset:{t*1024}")
    A("v_lshlrev_b32 v115, 2, v112")
    A(f"buffer_load_dword v{PF+12}, v115, s[8:11], 0 offen\nbuffer_load_dword v{PF+13}, v115, s[8:11], 0 offen offset:64")
    A("v_lshlrev_b32 v115, 1, v112")
    A(f"buffer_load_ushort v{PF+14}, v115, s[12:15], 0 offen\nbuffer_load_ushort v{PF+15}, v115, s[12:15], 0 offen offset:32")
    E.compute_setup(46, 47)
    st()
    E.compute(st)
    st()
    A("s_waitcnt vmcnt(0)")
    srd(A, 12, 32, SZ_AU, WS_AU)
    for m in range(2): A(f"v_lshlrev_b32 v{PF+14+m}, 16, v{PF+14+m}\nv_sub_f32 v{PF+12+m}, 1.0, v{PF+12+m}")
    T = 132
    for m in range(2):
        for t in range(3):
            ac = E.acc(m, t)
            for q in range(2):
                z = PF + 4*t + 2*m + q
                A(f"v_lshlrev_b32 v{T}, 16, v{z}\nv_and_b32 v{T+1}, 0xffff0000, v{z}")
                A(f"v_add_f32 v{T+2}, v{ac+2*q}, v{PF+14+m}\nv_add_f32 v{T+3}, v{ac+2*q+1}, v{PF+14+m}")
                A(f"v_mul_f32 v{T}, v{T}, v{PF+12+m}\nv_mul_f32 v{T+1}, v{T+1}, v{PF+12+m}")
                A(f"v_mul_f32 v{T+2}, v{T+2}, v{T}\nv_mul_f32 v{T+3}, v{T+3}, v{T+1}")
                A(f"v_cvt_pk_bf16_f32 v{z}, v{T+2}, v{T+3}")
    A("s_mov_b32 s45, 2816\nv_mul_lo_u32 v114, v112, s45\nv_lshl_add_u32 v114, v113, 3, v114")
    A("s_mul_i32 s48, s41, 192\ns_lshl_b32 s49, s47, 5\ns_add_u32 s48, s48, s49\ns_add_u32 s48, s48, 1280\nv_add_u32 v114, s48, v114")
    A(f"s_mov_b32 s49, {16*2816}")
    for m in range(2):
        for t in range(3):
            z = PF + 4*t + 2*m
            A(f"buffer_store_dwordx2 v[{z}:{z+1}], v114, s[12:15], {'s49' if m else '0'} offen offset:{t*32}")
    st(); st.flush(16, 32)
    A.label("K3_end")
    A("s_endpgm")
    return name, 256, 512, 6*SLOT, 140

def k4(A):
    name = "k4_kernel"
    kernel_begin(A, name)
    A("s_cmp_ge_u32 s2, 256\ns_cbranch_scc1 K4_end")
    load_ptr(A, 30, 'out'); load_ptr(A, 32, 'ws')
    wave_lane(A, 16)
    tile_map(A)
    st = Stamps(A, 3); st()
    E = E2(A, "K4", 5, 22, 2816, 1, 5)
    A(f"s_mul_i32 s17, s40, {64*2816}\ns_mul_i32 s18, s41, {22*5*2048}")
    A("s_waitcnt lgkmcnt(0)")
    A("s_cmp_lt_u32 s16, 4\ns_cbranch_scc1 K4_comp")
    srd(A, 4, 32, SZ_AU, WS_AU); srd(A, 8, 32, SZ_WP, WS_WP)
    E.loader_setup()
    E.loader_main(0)
    A("s_branch K4_end")
    A.label("K4_comp")
    A("s_lshl_b32 s46, s16, 4\ns_mov_b32 s47, 0")
    srd(A, 8, 32, SZ_G, WS_G)
    A("s_lshl_b32 s43, s40, 6\ns_add_u32 s43, s43, s46\nv_and_b32 v126, 15, v0\nv_add_u32 v126, s43, v126\nv_lshlrev_b32 v126, 2, v126")
    A("buffer_load_dword v125, v126, s[8:11], 0 offen")
    E.compute_setup(46, 47)
    st()
    def scale():
        A("s_waitcnt vmcnt(0)")
        for t in range(5):
            for r in range(4): A(f"v_mul_f32 v{E.acc(0,t)+r}, v{E.acc(0,t)+r}, v125")
    E.compute(st, unroll=True, hooks={9: scale})
    st()
    A("s_lshl_b32 s43, s40, 6\ns_add_u32 s43, s43, s46\nv_and_b32 v2, 15, v0\nv_add_u32 v2, s43, v2\nv_lshrrev_b32 v3, 4, v0")
    srd(A, 12, 30, 2048*640*2)
    PK = 8
    for t in range(5):
        ac = E.acc(0, t)
        A(f"v_cvt_pk_bf16_f32 v{PK+2*t}, v{ac}, v{ac+1}\nv_cvt_pk_bf16_f32 v{PK+2*t+1}, v{ac+2}, v{ac+3}")
    A("s_mov_b32 s45, 1280\nv_mul_lo_u32 v4, v2, s45\nv_lshl_add_u32 v4, v3, 3, v4\ns_mul_i32 s46, s41, 160\nv_add_u32 v4, s46, v4")
    for t in range(5): A(f"buffer_store_dwordx2 v[{PK+2*t}:{PK+2*t+1}], v4, s[12:15], 0 offen offset:{t*32}")
    st(); st.flush(16, 32)
    A.label("K4_end")
    A("s_endpgm")
    return name, 256, 512, 6*SLOT, 128

def k34(A):
    name = "k34_kernel"
    NS = 6; N1 = 32; N2 = 22; N = N1 + N2
    USTG = NS*SLOT
    LCNT = USTG + 64*208
    load_ptr(A, 30, 'wsp'); load_ptr(A, 34, 'bsp'); load_ptr(A, 36, 'out'); load_ptr(A, 38, 'dbg')
    tile_map(A)
    hd_start(A)
    st = Stamps(A, 2); st()
    E1 = E2(A, "K34a", 6, N1, 4096, 2, 3)
    def wait_zflags(tag, va, vd):
        srd(A, 12, 32, SZ_FZ, WS_FZ)
        A(f"v_lshlrev_b32 v{va}, 4, v0\ns_add_u32 s45, s98, 1\ns_mov_b32 s47, 0")
        A.label(f"K34_zp{tag}")
        A(f"buffer_load_dwordx4 v[{vd}:{vd+3}], v{va}, s[12:15], 0 offen sc1\ns_waitcnt vmcnt(0)")
        A(f"v_xor_b32 v{vd}, s45, v{vd}\nv_xor_b32 v{vd+1}, s99, v{vd+1}\nv_xor_b32 v{vd+2}, s45, v{vd+2}\nv_xor_b32 v{vd+3}, s99, v{vd+3}")
        A(f"v_or3_b32 v{vd}, v{vd}, v{vd+1}, v{vd+2}\nv_or_b32 v{vd}, v{vd}, v{vd+3}\nv_cmp_ne_u32 vcc, 0, v{vd}\ns_add_u32 s47, s47, 1\ns_nop 3")
        A(f"s_cbranch_vccz K34_zok{tag}\ns_sleep {O.sleep}\ns_cmp_lt_u32 s47, 0x10000\ns_cbranch_scc1 K34_zp{tag}")
        A.label(f"K34_zok{tag}")
    A("s_waitcnt lgkmcnt(0)")
    A("s_cmp_lt_u32 s16, 4\ns_cbranch_scc1 K34_comp")
    if 'B' in O.prio: A("s_setprio 2")
    srd(A, 4, 30, 2048*2048*2); srd(A, 8, 32, SZ_Z2P, WS_Z2P)
    A(f"s_mul_i32 s17, s40, {64*4096}\ns_mul_i32 s18, s41, {32*6*2048}")
    E1.loader_setup()
    A("v_lshrrev_b32 v7, 3, v0\nv_and_b32 v4, 7, v0\nv_xor_b32 v4, v4, v7\nv_mul_u32_u24 v7, 2816, v7\nv_lshl_add_u32 v4, v4, 4, v7")
    A("v_lshrrev_b32 v7, 3, v0\nv_and_b32 v5, 7, v0\nv_xor_b32 v5, v5, v7\nv_mul_u32_u24 v7, 384, v7\nv_lshl_add_u32 v10, v5, 4, v7")
    for i in range(NS - 1):
        A(f"s_add_u32 m0, s27, {i*SLOT}\ns_add_u32 s20, s23, {i*128}\ns_add_u32 s25, s23, {i*128 + 8*4096 - 1024}")
        A("buffer_load_dwordx4 v2, s[4:7], s20 offen lds\nbuffer_load_dwordx4 v2, s[4:7], s25 offen offset:1024 lds")
    A("s_cmp_lg_u32 s16, 4\ns_cbranch_scc1 K34_lf")
    srd(A, 12, 32, SZ_FZ2, WS_FZ2)
    A("s_lshl_b32 s46, s41, 8\nv_and_b32 v14, 31, v0\nv_lshlrev_b32 v14, 3, v14\nv_add_u32 v14, s46, v14\ns_add_u32 s45, s98, 1\ns_mov_b32 s47, 0")
    A("v_mov_b32 v16, v18\nv_mov_b32 v17, v19\ns_branch K34_zpC")
    A.label("K34_zpL")
    A("buffer_load_dwordx2 v[16:17], v14, s[12:15], 0 offen sc1\ns_waitcnt vmcnt(0)")
    A.label("K34_zpC")
    A("v_xor_b32 v16, s45, v16\nv_xor_b32 v17, s99, v17\nv_or_b32 v16, v16, v17\nv_cmp_ne_u32 vcc, 0, v16\ns_add_u32 s47, s47, 1\ns_nop 3")
    A(f"s_cbranch_vccz K34_lf\ns_sleep {O.sleep2}\ns_cmp_lt_u32 s47, 0x10000\ns_cbranch_scc1 K34_zpL")
    A.label("K34_lf")
    A("s_barrier")
    for i in range(NS - 1):
        A(f"s_add_u32 m0, s26, {i*SLOT}\ns_add_u32 s20, s24, {i*6*2048}")
        for q in range(3): A(f"buffer_load_dwordx4 v3, s[8:11], s20 offen offset:{q*1024}{O.xl} lds")
    A(f"s_add_u32 s23, s23, {(NS-1)*128}\ns_add_u32 s24, s24, {(NS-1)*6*2048}\ns_mov_b32 s22, {(NS-1)*SLOT}")
    A(f"s_waitcnt vmcnt({(NS - 2)*3})\ns_barrier")
    E1.issue()
    for i in range(NS - 2):
        rem = (NS - 2 - (i + 1))*3 + (i + 1)*5
        A(f"s_waitcnt vmcnt({rem})\ns_barrier")
        E1.issue()
    def issue_static(slot):
        A(f"s_add_u32 m0, s27, {slot*SLOT}\ns_add_u32 s20, s23, {8*4096 - 1024}")
        A("buffer_load_dwordx4 v2, s[4:7], s23 offen lds")
        A("buffer_load_dwordx4 v2, s[4:7], s20 offen offset:1024 lds")
        A(f"s_add_u32 m0, s26, {slot*SLOT}\ns_add_u32 s23, s23, 128")
        for q in range(3): A(f"buffer_load_dwordx4 v3, s[8:11], s24 offen offset:{q*1024}{O.xl} lds")
        A(f"s_add_u32 s24, s24, {6*2048}")
    def lstep(i):
        A(f"s_waitcnt vmcnt({(NS-2)*5})\ns_barrier")
        issue_static((i + NS) % NS)
    for i in (4, 5): lstep(i)
    A("s_mov_b32 s14, 0")
    A.label("K34_lloop")
    for i in range(6, 12): lstep(i)
    A("s_add_u32 s14, s14, 1\ns_cmp_lt_u32 s14, 3\ns_cbranch_scc1 K34_lloop")
    for i in (24, 25): lstep(i)
    srd(A, 4, 32, SZ_AU, WS_AU); srd(A, 8, 32, SZ_WP, WS_WP); srd(A, 12, 32, SZ_FL, WS_FL)
    A(f"s_mul_i32 s17, s40, {64*2816}\ns_mul_i32 s20, s21, {16*2816}\ns_add_u32 s23, s17, s20")
    A(f"s_mul_i32 s18, s41, {22*5*2048}\ns_mul_i32 s20, s21, 3072\ns_add_u32 s24, s18, s20")
    A(f"s_mul_i32 s20, s21, 3\ns_cmp_ge_u32 s20, 9\ns_cselect_b32 s28, {KILL}, 0\ns_cmp_ge_u32 s20, 8\ns_cselect_b32 s29, {KILL}, 0")
    A("s_lshl_b32 s44, s40, 7\nv_and_b32 v8, 7, v0\nv_lshlrev_b32 v8, 3, v8\nv_add_u32 v8, s44, v8\ns_add_u32 s53, s98, 1")
    srd(A, 48, 32, SZ_U, WS_U)
    A(f"s_mul_i32 s52, s40, {4*24576}\ns_mul_i32 s20, s21, {16*384}\ns_add_u32 s52, s52, s20")
    issued = [('S', s) for s in range(N1 - NS + 2 - 1, N1) for _ in range(5)]
    def issueP(s):
        sl = s % NS; s2_ = s - N1
        fl = " sc1" if (s2_ >= 10 and O.usc1) else ""
        A(f"s_add_u32 m0, s27, {sl*SLOT}")
        if s2_ < 10:
            A(f"s_add_u32 s20, s23, {s2_*128}\ns_add_u32 s25, s23, {s2_*128 + 8*2816 - 1024}")
            A(f"buffer_load_dwordx4 v4, s[4:7], s20 offen{O.xl} lds")
            A(f"buffer_load_dwordx4 v4, s[4:7], s25 offen offset:1024{O.xl} lds")
        else:
            a_, b_ = divmod(s2_ - 10, 3)
            A(f"s_add_u32 s20, s52, {a_*24576 + b_*128}\ns_add_u32 s25, s52, {a_*24576 + b_*128 + 8*384 - 1024}")
            A(f"buffer_load_dwordx4 v10, s[48:51], s20 offen{fl} lds")
            A(f"buffer_load_dwordx4 v10, s[48:51], s25 offen offset:1024{fl} lds")
        issued.extend([('P', s)]*2)
    def issueT(s):
        sl = s % NS; s2_ = s - N1
        A(f"s_add_u32 m0, s26, {sl*SLOT}")
        A(f"s_add_u32 s20, s24, {s2_*10240}\ns_add_u32 s25, s20, s28\ns_add_u32 s45, s20, s29")
        A(f"buffer_load_dwordx4 v3, s[8:11], s20 offen{O.xl} lds")
        A(f"buffer_load_dwordx4 v3, s[8:11], s25 offen offset:1024{O.xl} lds")
        A(f"buffer_load_dwordx4 v3, s[8:11], s45 offen offset:2048{O.xl} lds")
        issued.extend([('T', s)]*3)
    def wait_for(needs):
        last = -1
        for idx, tg in enumerate(issued):
            if tg in needs: last = idx
        if last < 0: return
        A(f"s_waitcnt vmcnt({min(len(issued) - 1 - last, 63)})")
    FIRSTU = N1 + 10
    POLL_I = O.poll_i
    deferred = []
    gate_open = False
    for i in range(N1 - NS, N):
        nxt = i + 1
        if nxt < N:
            wait_for([('S', nxt), ('P', nxt), ('T', nxt)])
        A("s_barrier")
        if i == POLL_I + 1:
            wait_for([('X', 0)])
            A("v_xor_b32 v12, s53, v12\nv_xor_b32 v13, s99, v13\nv_or_b32 v12, v12, v13\nv_cmp_ne_u32 vcc, 0, v12\ns_nop 4")
            A("s_cbranch_vccz K34_ready")
            A("s_mov_b32 s47, 0")
            A.label("K34_poll")
            A(f"s_sleep {O.sleep}")
            A("buffer_load_dwordx2 v[12:13], v8, s[12:15], 0 offen sc1")
            A("s_waitcnt vmcnt(0)")
            A("v_xor_b32 v12, s53, v12\nv_xor_b32 v13, s99, v13\nv_or_b32 v12, v12, v13\nv_cmp_ne_u32 vcc, 0, v12")
            A("s_add_u32 s47, s47, 1\ns_nop 3")
            A("s_cbranch_vccz K34_ready")
            A("s_cmp_lt_u32 s47, 0x40000\ns_cbranch_scc1 K34_poll")
            A.label("K34_ready")
            gate_open = True
            for s in deferred: issueP(s)
            deferred = []
        s = i + NS
        if s < N:
            issueT(s)
            if s >= FIRSTU and not gate_open: deferred.append(s)
            else: issueP(s)
        if i == POLL_I:
            A("buffer_load_dwordx2 v[12:13], v8, s[12:15], 0 offen sc1")
            issued.append(('X', 0))
    assert not deferred
    A("s_branch K34_end")
    A.label("K34_comp")
    A("s_and_b32 s46, s16, 1\ns_lshl_b32 s46, s46, 5\ns_lshr_b32 s47, s16, 1\ns_mul_i32 s47, s47, 3")
    PF = 116
    C1R = 212
    C1R = 140
    C1R = 188
    BB = 132
    A("s_and_b32 s46, s16, 1\ns_lshl_b32 s46, s46, 5\ns_lshr_b32 s47, s16, 1\ns_mul_i32 s47, s47, 3")
    COA = 88
    A(f"s_mov_b32 s53, {USTG}")
    A(f"v_mov_b32 v138, {LCNT}\nv_mov_b32 v139, 0\nds_write_b32 v138, v139")
    E1.compute_setup(46, 47)
    E2b = E2(A, "K34b", 5, N2, 2816, 1, 5)
    E2b.F = [140, 188]; E2b.ACC = 236; E2b.vend = 256
    st()
    LA = [128, 129, 130]; GA = [131, 138, 139]
    def late_flag_setup():
        srd(A, 12, 32, SZ_FZ, WS_FZ); srd(A, 4, 32, SZ_FQ, WS_FQ)
        A("v_lshlrev_b32 v112, 4, v0")
        A("s_lshr_b32 s48, s40, 1\ns_lshl_b32 s48, s48, 6\nv_and_b32 v113, 7, v0\nv_lshlrev_b32 v113, 3, v113\nv_add_u32 v113, s48, v113")
    def late_flag_issue():
        A("buffer_load_dwordx4 v[116:119], v112, s[12:15], 0 offen sc1")
        A("buffer_load_dwordx2 v[120:121], v113, s[4:7], 0 offen sc1")
    def late_flag_check():
        A("s_add_u32 s45, s98, 1\ns_mov_b32 s49, 0")
        A.label("K34_lc")
        A("s_waitcnt vmcnt(0)")
        A("v_xor_b32 v116, s45, v116\nv_xor_b32 v117, s99, v117\nv_xor_b32 v118, s45, v118\nv_xor_b32 v119, s99, v119\nv_xor_b32 v120, s45, v120\nv_xor_b32 v121, s99, v121")
        A("v_or3_b32 v116, v116, v117, v118\nv_or3_b32 v116, v116, v119, v120\nv_or_b32 v116, v116, v121\nv_cmp_ne_u32 vcc, 0, v116\ns_add_u32 s49, s49, 1\ns_nop 3")
        A("s_cbranch_vccz K34_lcok\ns_cmp_ge_u32 s49, 0x10000\ns_cbranch_scc1 K34_lcok")
        A("buffer_load_dwordx4 v[116:119], v112, s[12:15], 0 offen sc1\nbuffer_load_dwordx2 v[120:121], v113, s[4:7], 0 offen sc1\ns_branch K34_lc")
        A.label("K34_lcok")
    def late_loads():
        srd(A, 4, 32, SZ_Z1, WS_Z1); srd(A, 8, 32, SZ_G, WS_G); srd(A, 12, 34, 2048*2)
        A("s_lshl_b32 s43, s40, 6\ns_add_u32 s43, s43, s46")
        A("v_and_b32 v112, 15, v0\nv_add_u32 v112, s43, v112\nv_lshrrev_b32 v113, 4, v0")
        A("s_lshr_b32 s48, s43, 5\ns_mul_i32 s48, s48, 48\ns_mul_i32 s49, s41, 6\ns_add_u32 s48, s48, s49\ns_add_u32 s48, s48, s47\ns_lshl_b32 s48, s48, 10")
        A("v_lshlrev_b32 v114, 4, v0")
        for t in range(3): A(f"buffer_load_dwordx4 v[{PF+4*t}:{PF+4*t+3}], v114, s[4:7], s48 offen offset:{t*1024} sc1")
        A("v_lshlrev_b32 v115, 2, v112")
        A(f"buffer_load_dword v{PF+12}, v115, s[8:11], 0 offen sc1\nbuffer_load_dword v{PF+13}, v115, s[8:11], 0 offen offset:64 sc1")
        A("v_lshlrev_b32 v115, 1, v112")
        A(f"buffer_load_ushort v{PF+14}, v115, s[12:15], 0 offen\nbuffer_load_ushort v{PF+15}, v115, s[12:15], 0 offen offset:32")
        A("s_lshl_b32 s50, s40, 6\ns_lshl_b32 s51, s16, 4\ns_add_u32 s50, s50, s51\nv_and_b32 v137, 15, v0\nv_add_u32 v137, s50, v137\nv_lshlrev_b32 v138, 2, v137")
        A("buffer_load_dword v136, v138, s[8:11], 0 offen sc1")
    def late_pre():
        A("s_waitcnt vmcnt(0)")
        for m in range(2):
            A(f"v_lshlrev_b32 v{BB+2*m}, 16, v{PF+14+m}\nv_mov_b32 v{BB+2*m+1}, v{BB+2*m}\nv_sub_f32 v{PF+12+m}, 1.0, v{PF+12+m}")
        for m in range(2):
            for t in range(3):
                c = C1R + 4*(3*m + t)
                for q in range(2):
                    z = PF + 4*t + 2*m + q
                    A(f"v_lshlrev_b32 v{c+2*q}, 16, v{z}\nv_and_b32 v{c+2*q+1}, 0xffff0000, v{z}")
        for m in range(2):
            for t in range(3):
                c = C1R + 4*(3*m + t)
                for r in range(4): A(f"v_mul_f32 v{c+r}, v{c+r}, v{PF+12+m}")
        A("s_mul_i32 s20, s16, 192\nv_add_u32 v112, s20, v0")
        for q in range(3):
            A(f"v_add_u32 v115, {64*q}, v112\nv_mul_u32_u24 v114, 5462, v115\nv_lshrrev_b32 v114, 16, v114")
            A(f"v_mul_u32_u24 v{LA[q]}, 12, v114\nv_sub_u32 v115, v115, v{LA[q]}\nv_lshlrev_b32 v115, 4, v115")
            A(f"v_mul_u32_u24 v{LA[q]}, 208, v114\nv_add3_u32 v{LA[q]}, v{LA[q]}, v115, s53\nv_mul_u32_u24 v{GA[q]}, 384, v114\nv_add_u32 v{GA[q]}, v{GA[q]}, v115")
        A("v_and_b32 v114, 15, v0\nv_add_u32 v114, s46, v114\nv_mul_u32_u24 v114, 208, v114\nv_lshl_add_u32 v114, v113, 3, v114")
        A(f"s_lshl_b32 s48, s47, 5\ns_add_u32 s48, s48, {USTG}\nv_add_u32 v114, s48, v114")
        A("v_and_b32 v115, 15, v0\nv_add_u32 v115, s46, v115\nv_and_b32 v112, 1, v113\nv_lshl_add_u32 v115, v112, 4, v115\nv_mul_u32_u24 v115, 208, v115\nv_lshrrev_b32 v112, 1, v113\nv_lshl_add_u32 v115, v112, 4, v115\nv_add_u32 v115, s48, v115")
    A("s_barrier")
    GS(A, 5)
    A("s_barrier")
    GS(A, 6); G2(A, 0)
    for x in E1.reads(0): A(x)
    A("s_waitcnt lgkmcnt(0)")
    st()
    A("s_mov_b32 s19, 0")
    A.label("K34_cloop")
    for i in range(NS): E1.step(i)
    if O.gs2:
        A("s_memtime s[90:91]\ns_waitcnt lgkmcnt(0)")
        for k in range(3): A(f"s_cmp_eq_u32 s19, {k}\ns_cselect_b32 s{66+2*k}, s90, s{66+2*k}")
    A(f"s_add_u32 s19, s19, 1\ns_cmp_lt_u32 s19, {O.lf0//6}\ns_cbranch_scc1 K34_cloop")
    late_flag_setup()
    A("s_cmp_lg_u32 s16, 0\ns_cbranch_scc1 K34_nf1")
    late_flag_issue()
    A.label("K34_nf1")
    for i in range(O.lf0, O.lf0 + 2): E1.step(i)
    A("s_cmp_lg_u32 s16, 0\ns_cbranch_scc1 K34_nf2")
    late_flag_check()
    A.label("K34_nf2")
    G2(A, 4)
    E1.step(O.lf0 + 2)
    def capture(fn):
        n0 = len(A.lines); fn(); out = A.lines[n0:]; del A.lines[n0:]; return out
    def split_loads(lines):
        pieces = []; cur = []; nv = 0
        for l in lines:
            cur.append(l)
            if 'buffer_load' in l:
                nv += 1
                if nv == 2: pieces.append(cur); cur = []; nv = 0
        if cur: pieces.append(cur)
        return pieces
    LL = split_loads(capture(late_loads))
    PP_ = capture(late_pre)
    npre = 4
    PPs = [PP_[k*len(PP_)//npre:(k+1)*len(PP_)//npre] for k in range(npre)]
    sched = {}
    s0 = O.lf0 + 2
    for k, pc in enumerate(LL): sched.setdefault(s0 + k, []).extend(pc)
    assert s0 + len(LL) <= 25, (s0, len(LL))
    for k, pc in enumerate(PPs): sched.setdefault(26 + k, []).extend(pc)
    A.lines.extend(sched.get(s0, []))
    G2(A, 5)
    for i in range(O.lf0 + 3, 30):
        E1.step(i)
        A.lines.extend(sched.get(i, []))
        if i in (23, 26, 29): G2(A, 6 + (23, 26, 29).index(i))
    G2(A, 9)
    E1.step(30)
    A("v_and_b32 v4, 15, v0\nv_lshrrev_b32 v5, 4, v0\nv_and_b32 v6, 7, v4\nv_xor_b32 v5, v5, v6\nv_lshlrev_b32 v4, 7, v4\nv_lshl_add_u32 v4, v5, 4, v4")
    A("s_lshl_b32 s20, s16, 11\nv_add_u32 v2, s20, v4\nv_xor_b32 v3, 64, v2")
    A("v_and_b32 v6, 15, v0\nv_lshlrev_b32 v6, 3, v6\nv_and_b32 v7, 16, v0\nv_lshl_add_u32 v6, v7, 3, v6\nv_and_b32 v7, 32, v0\nv_lshl_add_u32 v6, v7, 4, v6")
    A("v_add_u32 v4, 8192, v6")
    A(f"v_add_u32 v5, {3*SLOT}, v2\nv_add_u32 v6, {3*SLOT}, v3\nv_add_u32 v7, {3*SLOT}, v4")
    for i in range(236, 256): A(f"v_mov_b32 v{i}, 0")
    def mixed_step(Ecur, icur, Enext, inext, after_barrier=None):
        s = icur & 1
        rd = Enext.reads(inext) if Enext else []
        mf = [f"v_mfma_f32_16x16x32_bf16 v[{Ecur.acc(m,t)}:{Ecur.acc(m,t)+3}], v[{Ecur.fT(s,kk,t)}:{Ecur.fT(s,kk,t)+3}], v[{Ecur.fP(s,kk,m)}:{Ecur.fP(s,kk,m)+3}], v[{Ecur.acc(m,t)}:{Ecur.acc(m,t)+3}]"
              for kk in range(2) for m in range(Ecur.mP) for t in range(Ecur.nT)]
        A("s_barrier")
        if after_barrier: after_barrier()
        per = (len(rd) + len(mf) - 1)//len(mf) if rd else 0
        for x in mf:
            for _ in range(per):
                if rd: A(rd.pop(0))
            A(x)
        A("s_waitcnt lgkmcnt(0)")
    mixed_step(E1, 31, E2b, 32)
    st(); GS(A, 7); G2(A, 10)
    for m in range(2):
        for t in range(3):
            ac = E1.acc(m, t); c = C1R + 4*(3*m + t)
            for q in range(2):
                A(f"v_pk_add_f32 v[{ac+2*q}:{ac+2*q+1}], v[{ac+2*q}:{ac+2*q+1}], v[{PF+14+m-(PF+14+m)%2 if False else BB+2*m}:{BB+2*m+1}]")
    for m in range(2):
        for t in range(3):
            ac = E1.acc(m, t); c = C1R + 4*(3*m + t)
            for q in range(2):
                A(f"v_pk_mul_f32 v[{ac+2*q}:{ac+2*q+1}], v[{ac+2*q}:{ac+2*q+1}], v[{c+2*q}:{c+2*q+1}]")
    if O.fine2: st()
    for m in range(2):
        for t in range(3):
            ac = E1.acc(m, t); z = PF + 4*t + 2*m
            A(f"v_cvt_pk_bf16_f32 v{z}, v{ac}, v{ac+1}\nv_cvt_pk_bf16_f32 v{z+1}, v{ac+2}, v{ac+3}")
    if O.fine2: st()
    if O.stg128:
        for t in range(3):
            d = PF + 4*t
            A(f"v_permlane16_swap_b32 v{d}, v{d+2}\nv_permlane16_swap_b32 v{d+1}, v{d+3}")
        for t in range(3):
            A(f"ds_write_b128 v115, v[{PF+4*t}:{PF+4*t+3}] offset:{t*32}")
    else:
        for m in range(2):
            for t in range(3):
                z = PF + 4*t + 2*m
                A(f"ds_write_b64 v114, v[{z}:{z+1}] offset:{m*16*208 + t*32}")
    A("s_waitcnt lgkmcnt(0)")
    st()
    def signal():
        A("s_waitcnt vmcnt(0)")
        A(f"v_mov_b32 v138, {LCNT}\nv_mov_b32 v139, 1")
        A("s_mov_b64 exec, 1")
        A("ds_add_rtn_u32 v139, v138, v139")
        A("s_waitcnt lgkmcnt(0)")
        A("v_readfirstlane_b32 s20, v139")
        A("s_cmp_lg_u32 s20, 3\ns_cbranch_scc1 K34_nosig")
        srd(A, 12, 32, SZ_FL, WS_FL)
        A("s_lshl_b32 s20, s40, 7\ns_lshl_b32 s21, s41, 3\ns_add_u32 s20, s20, s21\nv_mov_b32 v112, s20\ns_add_u32 s21, s98, 1\nv_mov_b32 v138, s21\nv_mov_b32 v139, s99")
        A("buffer_store_dwordx2 v[138:139], v112, s[12:15], 0 offen sc1")
        A.label("K34_nosig")
        A("s_mov_b64 exec, -1")
    def copy_out():
        srd(A, 12, 32, SZ_U, WS_U)
        for q in range(3): A(f"ds_read_b128 v[{PF+4*q}:{PF+4*q+3}], v{LA[q]}")
        A("s_lshl_b32 s48, s40, 2\ns_lshr_b32 s49, s41, 1\ns_add_u32 s48, s48, s49\ns_mul_i32 s48, s48, 24576\ns_and_b32 s49, s41, 1\ns_mul_i32 s49, s49, 192\ns_add_u32 s48, s48, s49")
        A("s_waitcnt lgkmcnt(0)")
        for q in range(3): A(f"buffer_store_dwordx4 v[{PF+4*q}:{PF+4*q+3}], v{GA[q]}, s[12:15], s48 offen{O.ustore}")
    for i in range(N1, N):
        last = (i == N - 1)
        mixed_step(E2b, i, None if last else E2b, i + 1, after_barrier=(copy_out if i == N1 else None))
        if i in ((32, 33, 36, 40, 41) if O.fine2 else (32, 33, 34, 36, 38, 40, 41, 42, 45)): st()
        if i in (36, 40, 41, 45): GS(A, 8 + (36, 40, 41, 45).index(i))
        if i == O.sig_i: signal()
        if i == N1 + 9:
            for t in range(5):
                for r in range(4): A(f"v_mul_f32 v{E2b.acc(0,t)+r}, v{E2b.acc(0,t)+r}, v136")
    st()
    srd(A, 12, 36, 2048*640*2)
    PK = 8
    for t in range(5):
        ac = E2b.acc(0, t)
        A(f"v_cvt_pk_bf16_f32 v{PK+2*t}, v{ac}, v{ac+1}\nv_cvt_pk_bf16_f32 v{PK+2*t+1}, v{ac+2}, v{ac+3}")
    A("v_lshrrev_b32 v3, 4, v0\ns_mov_b32 s45, 1280\nv_mul_lo_u32 v4, v137, s45\ns_mul_i32 s46, s41, 160\nv_add_u32 v4, s46, v4")
    if O.wide_out:
        A("v_and_b32 v5, 1, v3\nv_lshlrev_b32 v5, 5, v5\nv_lshrrev_b32 v6, 1, v3\nv_lshl_add_u32 v5, v6, 4, v5\nv_add_u32 v5, v5, v4\nv_lshl_add_u32 v4, v3, 3, v4")
        for p in range(2):
            d = PK + 4*p
            A(f"v_permlane16_swap_b32 v{d}, v{d+2}\nv_permlane16_swap_b32 v{d+1}, v{d+3}")
        for p in range(2): A(f"buffer_store_dwordx4 v[{PK+4*p}:{PK+4*p+3}], v5, s[12:15], 0 offen offset:{p*64}{O.outst}")
        A(f"buffer_store_dwordx2 v[{PK+8}:{PK+9}], v4, s[12:15], 0 offen offset:128{O.outst}")
    else:
        A("v_lshl_add_u32 v4, v3, 3, v4")
        for t in range(5): A(f"buffer_store_dwordx2 v[{PK+2*t}:{PK+2*t+1}], v4, s[12:15], 0 offen offset:{t*32}{O.outst}")
    st(); st.flush(16, 32, 20)
    GS(A, 12); GS_flush(A, 13, 20)
    hd_end(A, 32, 2, 0, 60)
    if O.hdiag2:
        A("s_cmp_lg_u32 s2, 0\ns_cbranch_scc1 K34_end\ns_cmp_lg_u32 s16, 0\ns_cbranch_scc1 K34_end")
        A("s_waitcnt vmcnt(0)")
        srd(A, 84, 32, 0x100000, WS_TS); srd(A, 88, 38, 256)
        sel = [(0, 0, i) for i in (2, 3, 5, 7, 8, 9, 10)] + [(0, 128, i) for i in (2, 3, 4, 6)] + [(2, 0, i) for i in (2, 3, 11, 12, 15)]
        A("v_mov_b32 v60, 0\nv_mov_b32 v61, 0")
        for ln, (k, wg, i) in enumerate(sel):
            base = k*0x40000 + wg*4*128
            A(f"v_cmp_eq_u32 vcc, {ln}, v0\nv_mov_b32 v62, {base + 4*i}\nv_cndmask_b32 v60, v60, v62, vcc\nv_mov_b32 v62, {base}\nv_cndmask_b32 v61, v61, v62, vcc")
        A("v_cmp_gt_u32 vcc, 16, v0\ns_and_saveexec_b64 s[20:21], vcc")
        A("buffer_load_dword v63, v60, s[84:87], 0 offen sc1\nbuffer_load_dword v64, v61, s[84:87], 0 offen sc1\ns_waitcnt vmcnt(0)")
        A("v_sub_u32 v63, v63, v64\nv_lshlrev_b32 v60, 2, v0\nbuffer_store_dword v63, v60, s[88:91], 0 offen")
    if O.hdiag:
        A("s_cmp_lg_u32 s2, 0\ns_cbranch_scc1 K34_end\ns_cmp_lg_u32 s16, 0\ns_cbranch_scc1 K34_end")
        A("s_waitcnt vmcnt(0)")
        srd(A, 84, 32, 4096, WS_TS); srd(A, 88, 38, 256)
        A("v_lshlrev_b32 v60, 2, v0\nv_cmp_gt_u32 vcc, 12, v0\ns_and_saveexec_b64 s[20:21], vcc")
        A("buffer_load_dword v61, v60, s[84:87], 0 offen sc1\ns_waitcnt vmcnt(0)\nbuffer_store_dword v61, v60, s[88:91], 0 offen")
    A("s_or_b32 s20, s2, s16\ns_cmp_lg_u32 s20, 0\ns_cbranch_scc1 K34_end")
    srd(A, 12, 32, SZ_FQ, WS_FQ)
    A("v_lshlrev_b32 v14, 4, v0\ns_add_u32 s45, s98, 1\ns_mov_b32 s47, 0")
    A.label("K34_ep")
    A("buffer_load_dwordx4 v[16:19], v14, s[12:15], 0 offen sc1\ns_waitcnt vmcnt(0)")
    A("v_xor_b32 v16, s45, v16\nv_xor_b32 v17, s99, v17\nv_xor_b32 v18, s45, v18\nv_xor_b32 v19, s99, v19\nv_or3_b32 v16, v16, v17, v18\nv_or_b32 v16, v16, v19\nv_cmp_ne_u32 vcc, 0, v16\ns_add_u32 s47, s47, 1\ns_nop 3")
    A("s_cbranch_vccz K34_epok\ns_cmp_lt_u32 s47, 0x10000\ns_cbranch_scc1 K34_ep")
    A.label("K34_epok")
    srd(A, 12, 32, SZ_EP, WS_EP)
    A("v_mov_b32 v16, s45\nv_mov_b32 v17, s99\nv_mov_b32 v14, 0\ns_mov_b64 exec, 1")
    A("buffer_store_dwordx2 v[16:17], v14, s[12:15], 0 offen sc1")
    A.label("K34_end")
    A("s_endpgm")
    return name, 256, 512, NS*SLOT + 64*208 + 64, 256

def main(out):
    body = Asm()
    n, g, b, lds, vg = k1(body)
    k34(body)
    hdr = [f"; @launch grid=({g},1,1) block=({b},1,1) lds={lds}"]
    hdr.append('.amdgcn_target "amdgcn-amd-amdhsa--gfx950"'); hdr.append(".text")
    lines = hazard.fix(body.lines, verbose=True)
    txt = "\n".join(hdr) + "\n" + "\n".join(lines) + "\n" + '.section .rodata,"a"\n' + kernel_desc(n, 256, 102)
    open(out, "w").write(txt)
if __name__ == "__main__":
    if '--stamp' in sys.argv: O.stamp = True
    if '--norot' in sys.argv: O.rot = False
    if '--pfg' in sys.argv: O.pfg = True
    if '--nofull' in sys.argv: O.fullring = False
    for a_ in sys.argv:
        if a_.startswith('--tla='): O.tla = int(a_[6:])
    for a_ in sys.argv:
        if a_.startswith('--pfg2='): O.pfg2 = int(a_[7:])
    if '--itstamp' in sys.argv: O.itstamp = True
    if '--nowsp' in sys.argv: O.wsp_pf = False
    for a_ in sys.argv:
        if a_.startswith('--poll='): O.poll_i = int(a_[7:])
        if a_.startswith('--sig='): O.sig_i = int(a_[6:])
    if '--full' in sys.argv: O.fullring = True; O.tla = 6
    if '--nofuse' in sys.argv: O.fuse = False
    if '--nosc1' in sys.argv: O.usc1 = False
    if '--hdiag' in sys.argv: O.hdiag = True
    if '--fine2' in sys.argv: O.fine2 = True
    if '--gs' in sys.argv: O.gs = True
    if '--wpf' in sys.argv: O.wpf = True
    for a_ in sys.argv:
        if a_.startswith('--wpfb='): O.wpfb = int(a_[7:])
    for a_ in sys.argv:
        if a_.startswith('--prio='): O.prio = a_[7:]
    for a_ in sys.argv:
        if a_.startswith('--zrot='): O.zrot = int(a_[7:], 16)
    if '--gs3' in sys.argv: O.gs3 = True
    for a_ in sys.argv:
        if a_.startswith('--zn='): O.zn = int(a_[5:])
        if a_.startswith('--sst='): O.sst = int(a_[6:])
        if a_.startswith('--zp='): O.zp = int(a_[5:])
        if a_.startswith('--zs='): O.zs = int(a_[5:])
    if '--gs2' in sys.argv: O.gs2 = True
    if '--lt' in sys.argv: O.lt = True
    if '--nodefer' in sys.argv: O.defer = False
    for a_ in sys.argv:
        if a_.startswith('--hb='): O.hb = int(a_[5:])
    if '--xlplain' in sys.argv: O.xl = ''
    if '--k1sc1' in sys.argv: O.k1st = ' sc1'
    if '--k1nt' in sys.argv: O.k1st = ' nt'
    if '--outsc1' in sys.argv: O.outst = ' sc1'
    if '--outnt' in sys.argv: O.outst = ' nt'
    if '--hdiag2' in sys.argv: O.hdiag2 = True; O.stamp = True
    if '--stg64' in sys.argv: O.stg128 = False
    if '--uplain' in sys.argv: O.ustore = ''
    if '--unt' in sys.argv: O.ustore = ' sc1 nt'
    if '--usc01' in sys.argv: O.ustore = ' sc0 sc1'
    for a_ in sys.argv:
        if a_.startswith('--rottab='): O.rottab = int(a_[9:], 16)
    for a_ in sys.argv:
        if a_.startswith('--sleep='): O.sleep = int(a_[8:])
    main(sys.argv[1])
```

```python
import sys, struct
from asmlib import *
import hazard
NAME = "gated_mix__sliding_local_dilated__mixer_gmlp__prompt"
KA = dict(x=0, wqkv=8, wo=16, bx=24, win=32, wsp=40, bsp=48, wout=56, gw=64, out=72, dbg=80, ws=88)
QP = 504
HGS = 2048*QP
WS_QKVG = 0;          SZ_QKVG = 8*HGS
WS_Z1  = 0x900000;    SZ_Z1 = 2048*768*2
WS_Z2P = 0xC00000;    SZ_Z2P = 2048*768*2
WS_AU  = 0xF00000;    SZ_AU = 2048*1408*2
WS_WP  = 0x1500000;   SZ_WP = 1408*640*2
WS_ST  = 0x1700000;   SZ_ST = 8*2048*16
WS_G   = 0x1740000;   SZ_G = 2048*4
WS_EP  = 0x1760000;   SZ_EP = 128
WS_FZ  = 0x1770000;   SZ_FZ = 8*128
WS_FZ2 = 0x1790000;   SZ_FZ2 = 8*256
WS_FQ  = 0x1780000;   SZ_FQ = 16*64
WS_FL  = 0x1750000;   SZ_FL = 32*128
WS_U   = 0x1800000;   SZ_U = 2048*768*2
WS_TS  = 0x2000000
KILL = 0x40000000
C0 = -2.0*0.7978845608028654*1.4426950408889634
C1 = C0*0.044715
def f2u(f): return struct.unpack('<I', struct.pack('<f', f))[0]
class Opt:
    stamp = False; rot = True; wsp_pf = True; la = 5; itstamp = False; pfg = False; pfg2 = 2; fullring = False; tla = 4; poll_i = 38; sig_i = 34; fuse = True; hdiag2 = False; k1st = ' sc1'; outst = ''; xl = ' sc1'; sleep2 = 8; lt = False; gs2 = False; sst = 18; zp = 1; zn = 12; zs = 16; zmid = 1; zrot = None; earlyp = True; wide_out = True; prio = ''; wpf = False; wpfb = 3; gs3 = False; lf0 = 18; hb = 16; defer = True; gs = False; fine2 = False; stg128 = True; usc1 = True; ustore = ' sc1'; hdiag = False; sleep = 8; rottab = 0x8530
O = Opt()

def load_ptr(A, sd, key): A(f"s_load_dwordx2 s[{sd}:{sd+1}], s[0:1], {KA[key]}")
def wave_lane(A, s_w):
    A("v_lshrrev_b32 v1, 6, v0")
    A(f"v_readfirstlane_b32 s{s_w}, v1")
    A("v_and_b32 v0, 63, v0")

class Stamps:
    def __init__(self, A, kidx, n0=0): self.A = A; self.n = n0; self.k = kidx
    def __call__(self):
        if not O.stamp: return
        assert self.n < 16
        self.A(f"s_memtime s[{60+2*self.n}:{61+2*self.n}]"); self.n += 1
    def flush(self, s_w, s_ws, vt=250):
        if not O.stamp: return
        A = self.A
        A("s_waitcnt vmcnt(0)")
        A("s_memrealtime s[92:93]")
        A("s_waitcnt lgkmcnt(0)")
        srd(A, 56, s_ws, 0x100000, WS_TS + self.k*0x40000)
        A(f"s_lshl_b32 s54, s2, 2\ns_add_u32 s54, s54, s{s_w}\ns_lshl_b32 s54, s54, 7")
        A("s_mov_b64 exec, 1")
        for i in range(self.n):
            A(f"v_mov_b32 v{vt}, s{60+2*i}\nv_mov_b32 v{vt+1}, {4*i}")
            A(f"buffer_store_dword v{vt}, v{vt+1}, s[56:59], s54 offen")
        A(f"v_mov_b32 v{vt}, s92\nv_mov_b32 v{vt+1}, 124")
        A(f"buffer_store_dword v{vt}, v{vt+1}, s[56:59], s54 offen")
        A("s_mov_b64 exec, -1")


def it_top(A):
    if not O.itstamp: return
    A("s_memtime s[76:77]\ns_waitcnt lgkmcnt(0)")
    for k in range(3): A(f"s_cmp_eq_u32 s26, {k}\ns_cselect_b32 s{80+k}, s76, s{80+k}")
def it_mid(A):
    if O.itstamp: A("s_memtime s[76:77]\ns_waitcnt lgkmcnt(0)\ns_mov_b32 s83, s76")
def it_end(A, va, vb):
    if not O.itstamp: return
    A("s_memtime s[76:77]\ns_waitcnt lgkmcnt(0)\ns_mov_b32 s84, s76")
    srd(A, 56, 32, 0x200000, WS_TS + 7*0x40000)
    A("s_lshl_b32 s54, s2, 2\ns_add_u32 s54, s54, s16\ns_lshl_b32 s54, s54, 7")
    A("s_mov_b64 exec, 1")
    for i in range(11):
        A(f"v_mov_b32 v{va}, s{80+i}\nv_mov_b32 v{vb}, {4*i}")
        A(f"buffer_store_dword v{va}, v{vb}, s[56:59], s54 offen")
    A("s_mov_b64 exec, -1")


def hd_start(A):
    if O.hdiag: A("s_memtime s[94:95]\ns_memrealtime s[92:93]\ns_waitcnt lgkmcnt(0)\ns_mov_b32 s90, s94\ns_mov_b32 s91, s92")
def hd_end(A, s_ws, slot_sreg_expr, cond_wg, vt):
    if not O.hdiag: return
    L = A.newlabel("hd")
    A(f"s_cmp_lg_u32 s2, {cond_wg}\ns_cbranch_scc1 {L}\ns_cmp_lg_u32 s16, 0\ns_cbranch_scc1 {L}")
    A("s_waitcnt vmcnt(0)\ns_memtime s[94:95]\ns_memrealtime s[92:93]\ns_waitcnt lgkmcnt(0)")
    A("s_sub_u32 s94, s94, s90\ns_sub_u32 s95, s92, s91")
    srd(A, 84, s_ws, 4096, WS_TS)
    A(f"v_mov_b32 v{vt}, s94\nv_mov_b32 v{vt+1}, s95\nv_mov_b32 v{vt+2}, s91\nv_mov_b32 v{vt+3}, s92\nv_mov_b32 v{vt+4}, {slot_sreg_expr*16}")
    A("s_mov_b64 exec, 1")
    A(f"buffer_store_dwordx4 v[{vt}:{vt+3}], v{vt+4}, s[84:87], 0 offen")
    A("s_mov_b64 exec, -1")
    A.label(L)


def GS(A, i):
    if O.gs: A(f"s_memtime s[{64+2*i}:{65+2*i}]")
def G2(A, i):
    if O.gs2: A(f"s_memtime s[{64+2*i}:{65+2*i}]")
def GS_flush(A, n, vt, force=False):
    if not (O.gs or O.gs2 or force): return
    A("s_waitcnt vmcnt(0) lgkmcnt(0)")
    srd(A, 56, 32, 0x100000, WS_TS)
    A("s_lshl_b32 s54, s2, 2\ns_add_u32 s54, s54, s16\ns_lshl_b32 s54, s54, 7")
    A("s_mov_b64 exec, 1")
    for i in range(n):
        A(f"v_mov_b32 v{vt}, s{64+2*i}\nv_mov_b32 v{vt+1}, {4*i}")
        A(f"buffer_store_dword v{vt}, v{vt+1}, s[56:59], s54 offen")
    A("s_mov_b64 exec, -1")

def gelu_pk(A, regs, tmp, sC, vC=6):
    n = len(regs)
    for i, r in enumerate(regs): A(f"v_pk_mul_f32 v[{tmp+2*i}:{tmp+2*i+1}], v[{r}:{r+1}], v[{r}:{r+1}]")
    for i, r in enumerate(regs): A(f"v_pk_fma_f32 v[{tmp+2*i}:{tmp+2*i+1}], v[{tmp+2*i}:{tmp+2*i+1}], s[{sC}:{sC+1}], v[{vC}:{vC+1}]")
    for i, r in enumerate(regs): A(f"v_pk_mul_f32 v[{tmp+2*i}:{tmp+2*i+1}], v[{tmp+2*i}:{tmp+2*i+1}], v[{r}:{r+1}]")
    for i in range(2*n): A(f"v_exp_f32 v{tmp+i}, v{tmp+i}")
    for i, r in enumerate(regs): A(f"v_pk_add_f32 v[{tmp+2*i}:{tmp+2*i+1}], v[{tmp+2*i}:{tmp+2*i+1}], 1.0 op_sel_hi:[1,0]")
    for i in range(2*n): A(f"v_rcp_f32 v{tmp+i}, v{tmp+i}")
    for i, r in enumerate(regs): A(f"v_pk_mul_f32 v[{r}:{r+1}], v[{r}:{r+1}], v[{tmp+2*i}:{tmp+2*i+1}]")

def k1_geom(typ):
    if typ == 'q':
        return dict(pitchW=3840, PROWS=144, PSLOT=144*128, NPS=3, TSLOT=15360, R=6, TBASE=3*144*128)
    return dict(pitchW=3072, PROWS=128, PSLOT=128*128, NPS=3, TSLOT=16384, R=6, TBASE=3*128*128)

def k1_wsp_prefetch(A, part):
    if part == 0:
        srd(A, 4, 52, 2048*2048*2)
        A("s_and_b32 s40, s2, 7\ns_lshr_b32 s40, s40, 1\ns_lshl_b32 s40, s40, 14")
        A("s_lshr_b32 s41, s2, 3\ns_and_b32 s41, s41, 15\ns_lshl_b32 s41, s41, 10\ns_add_u32 s40, s40, s41")
        A("s_sub_u32 s41, s16, 4\ns_lshl_b32 s41, s41, 8\ns_add_u32 s40, s40, s41")
        A("s_lshl_b32 s40, s40, 7")
        A("v_lshlrev_b32 v249, 7, v0")
    else:
        A("s_add_u32 s40, s40, 8192")
    A(f"buffer_load_dword v{250 + (part & 1)}, v249, s[4:7], s40 offen")

def pf_setup(A):
    A("s_cmp_lt_u32 s21, 2\ns_cselect_b32 s84, s30, s34\ns_cselect_b32 s85, s31, s35")
    A(f"s_mov_b32 s86, {640*1920*2}\ns_cselect_b32 s86, {2048*640*2}, s86")
    A("s_cmp_eq_u32 s21, 3\ns_cselect_b32 s84, s36, s84\ns_cselect_b32 s85, s37, s85")
    A(f"s_cselect_b32 s86, {640*1536*2}, s86\ns_mov_b32 s87, 0x20000")
    A("s_lshr_b32 s88, s2, 3\ns_and_b32 s89, s2, 7\ns_lshr_b32 s90, s89, 1\ns_and_b32 s89, s89, 1")
    A("s_lshl_b32 s91, s89, 10\ns_lshl_b32 s92, s88, 5\ns_add_u32 s91, s91, s92\ns_lshl_b32 s92, s21, 4\ns_add_u32 s91, s91, s92")
    A("v_lshrrev_b32 v20, 2, v0\nv_add_u32 v20, s91, v20\nv_mul_u32_u24 v20, 1280, v20\nv_and_b32 v21, 3, v0\nv_lshl_add_u32 v20, v21, 7, v20\nv_add_u32 v20, 384, v20")
    A("v_mul_u32_u24 v21, 57, v0\nv_lshrrev_b32 v21, 9, v21\nv_mul_u32_u24 v22, 9, v21\nv_sub_u32 v22, v0, v22")
    A("s_mul_i32 s91, s88, 7\ns_add_u32 s91, s91, 192\nv_add_u32 v21, s91, v21\nv_mul_u32_u24 v21, 3840, v21")
    A("v_mul_u32_u24 v23, 171, v22\nv_lshrrev_b32 v23, 9, v23\nv_mul_u32_u24 v25, 3, v23\nv_sub_u32 v22, v22, v25")
    A("s_lshl_b32 s91, s90, 2\ns_lshr_b32 s91, 0x7520, s91\ns_and_b32 s91, s91, 15")
    A("v_add_u32 v22, s91, v22\nv_lshlrev_b32 v22, 7, v22\nv_mul_u32_u24 v23, 1280, v23\nv_add3_u32 v21, v21, v22, v23")
    A(f"v_mov_b32 v25, {KILL}\nv_cmp_le_u32 vcc, 63, v0\nv_cndmask_b32 v21, v21, v25, vcc")
    A("v_mul_u32_u24 v22, 43, v0\nv_lshrrev_b32 v22, 8, v22\nv_mul_u32_u24 v23, 6, v22\nv_sub_u32 v23, v0, v23")
    A("s_mul_i32 s91, s88, 7\ns_add_u32 s91, s91, 192\nv_add_u32 v22, s91, v22\nv_mul_u32_u24 v22, 3072, v22")
    A("v_mul_u32_u24 v26, 171, v23\nv_lshrrev_b32 v26, 9, v26\nv_mul_u32_u24 v27, 3, v26\nv_sub_u32 v23, v23, v27")
    A("v_lshlrev_b32 v23, 7, v23\nv_mul_u32_u24 v26, 1536, v26\nv_add3_u32 v22, v22, v23, v26\ns_mul_i32 s91, s90, 384\nv_add_u32 v22, s91, v22")
    A("v_cmp_le_u32 vcc, 42, v0\nv_cndmask_b32 v22, v22, v25, vcc")
    A("s_cmp_lt_u32 s21, 2\ns_cselect_b64 s[90:91], -1, 0\ns_cselect_b32 s88, 384, 0")
    A("v_cndmask_b32 v24, v21, v20, s[90:91]")
    A(f"s_cmp_eq_u32 s21, 2\ns_cselect_b32 s88, {224*3840}, s88")
    A(f"s_cmp_eq_u32 s21, 3\ns_cselect_b32 s88, {224*3072}, s88\ns_cselect_b64 s[90:91], -1, 0")
    A("v_cndmask_b32 v24, v24, v22, s[90:91]")

def pf_group(A, g):
    if g == 0: A("buffer_load_dword v248, v24, s[84:87], 0 offen")
    else: A("buffer_load_dword v248, v24, s[84:87], s88 offen")

def run_loader_schedule(A, issueP, issueT, issued, hooks=None, wsp=False, NB=20, p0_done=False):
    NPS = 3; R = 6
    def wait_for(needs):
        last = -1
        for idx, tg in enumerate(issued):
            if tg in needs: last = idx
        if last < 0: return
        A(f"s_waitcnt vmcnt({min(len(issued) - 1 - last, 63)})")
    TLA = O.tla
    if not p0_done: issueP(0, 0); issueP(0, 1)
    issueT(0); issueT(1)
    issueP(1, 0); issueP(1, 1)
    for t in range(2, TLA): issueT(t)
    if O.fullring: issueP(2, 0); issueP(2, 1)
    if O.pfg:
        pf_setup(A); pf_group(A, 0); issued.append(('F', 0))
    wait_for([('P', 0), ('T', 0)])
    A("s_barrier")
    if not O.fullring: issueP(2, 0)
    for b in range(NB):
        needs = []
        if b + 1 < NB: needs = [('T', b+1), ('P', (b+1)//2)]
        if needs: wait_for(needs)
        A("s_barrier")
        if b + TLA < NB: issueT(b + TLA)
        if b == 0 and not O.fullring: issueP(2, 1)
        if b % 2 == 1:
            s = (b - 1)//2 + NPS
            if s < NB//2: issueP(s, 0)
        elif b >= 2:
            s = (b - 2)//2 + NPS
            if s < NB//2: issueP(s, 1)
        if O.pfg and b == O.pfg2: pf_group(A, 1); issued.append(('F', 1))
        if hooks and b in hooks: hooks[b](issued)
        W0 = max(14, 20 - TLA)
        if wsp and O.wsp_pf and W0 <= b < W0 + 4: k1_wsp_prefetch(A, b - W0); issued.append(('W', b))
    A("s_barrier")

def rot_stage(A, s, dst):
    A(f"s_add_u32 s{dst}, s28, {s}\ns_cmp_ge_u32 s{dst}, 10\ns_cselect_b32 s29, 10, 0\ns_sub_u32 s{dst}, s{dst}, s29")
def rot_beat(A, b, dst):
    A(f"s_lshl_b32 s{dst}, s28, 1\ns_add_u32 s{dst}, s{dst}, {b}\ns_cmp_ge_u32 s{dst}, 20\ns_cselect_b32 s29, 20, 0\ns_sub_u32 s{dst}, s{dst}, s29")

ZR = 3; ZTS = 24576; ZTB = 81920
def k1_loader_z(A):
    pitchW = 3072; lw = 21; N = 20; R = ZR
    A(f"s_sub_u32 s{lw}, s16, 4")
    A("v_lshrrev_b32 v7, 3, v0\nv_and_b32 v2, 7, v0\nv_xor_b32 v2, v2, v7\nv_mul_u32_u24 v7, 1280, v7\nv_lshl_add_u32 v2, v2, 4, v7")
    for g8 in range(2):
        for i in range(3):
            d = 3 + 3*g8 + i
            A(f"v_add_u32 v10, {64*i}, v0\nv_mul_u32_u24 v11, 2731, v10\nv_lshrrev_b32 v11, 16, v11")
            A(f"v_mul_u32_u24 v12, 24, v11\nv_sub_u32 v12, v10, v12\nv_and_b32 v13, 2, v11\nv_add_u32 v13, {4*g8}, v13\nv_xor_b32 v12, v12, v13")
            A(f"v_add_u32 v11, {8*g8}, v11\nv_mul_u32_u24 v11, {pitchW}, v11\nv_lshl_add_u32 v{d}, v12, 4, v11")
            if i: A(f"v_subrev_u32 v{d}, {1024*i}, v{d}")
    A(f"s_mul_i32 s20, s{lw}, {16*1280}\ns_add_u32 s22, s17, s20")
    A(f"s_lshl_b32 s23, s{lw}, 11")
    A(f"s_mul_i32 s20, s{lw}, {16*pitchW}\ns_add_u32 s24, s18, s20\ns_add_u32 s25, s19, s20")
    A(f"s_mul_i32 s26, s{lw}, 6144\ns_add_u32 s26, s26, {ZTB}")
    A("s_mov_b32 s58, s28")
    issued = []
    def issue(s):
        if s < 10:
            A(f"s_lshl_b32 s27, s58, 7\ns_add_u32 s27, s27, s22\ns_add_u32 m0, s23, {s*8192}\ns_add_u32 s20, s27, {8*1280 - 1024}")
            A("buffer_load_dwordx4 v2, s[4:7], s27 offen lds\nbuffer_load_dwordx4 v2, s[4:7], s20 offen offset:1024 lds")
            issued.extend([('S', s)]*2)
        A(f"s_mul_i32 s27, s58, {64*pitchW}\ns_add_u32 s27, s27, s{24 + s//10}\ns_add_u32 m0, s26, {(s % R)*ZTS}")
        A("s_add_u32 s58, s58, 1\ns_cmp_eq_u32 s58, 10")
        for g8 in range(2):
            for i in range(3):
                A(f"buffer_load_dwordx4 v{3+3*g8+i}, s[8:11], s27 offen offset:{1024*i} lds")
                if g8 == 0 and i == 0: A("s_cselect_b32 s58, 0, s58")
            if g8 == 0: A("s_add_u32 m0, m0, 3072\ns_nop 0")
        issued.extend([('S', s)]*6)
    def wait_for(s):
        last = max(i for i, t in enumerate(issued) if t == ('S', s))
        A(f"s_waitcnt vmcnt({min(len(issued) - 1 - last, 63)})")
    for s in range(R - 1): issue(s)
    wait_for(0)
    A("s_barrier")
    issue(R - 1)
    for i in range(N):
        if i + 1 < N: wait_for(i + 1)
        A("s_barrier")
        if i + R < N: issue(i + R)
        if i == 9:
            k1_pack_load(A); issued.extend([('K', 0)]*6)
            z_gate_load(A, "s_sub_u32 s47, s16, 4\ns_lshl_b32 s47, s47, 2"); issued.extend([('G', 0)]*10)
            srd(A, 4, 30, 2048*640*2)
        if i == 12:
            last = max(k for k, t in enumerate(issued) if t == ('G', 0))
            A(f"s_waitcnt vmcnt({len(issued) - 1 - last})")
            z_gate_compute(A)
        if i == O.sst:
            k1_pack_store(A); issued.extend([('W', 0)]*6)
            z_gate_store(A); issued.extend([('W', 0)]*4)

def k1_loader_q(A, last):
    G = k1_geom('q'); PSLOT = G['PSLOT']; TSLOT = G['TSLOT']; TBASE = G['TBASE']
    nP = 3 if last else 2
    nTi = 3 if last else 4
    A("s_sub_u32 s21, s16, 4")
    A("v_lshrrev_b32 v7, 3, v0\nv_and_b32 v6, 7, v0\nv_xor_b32 v6, v6, v7")
    A("s_lshl_b32 s20, s48, 7\ns_sub_u32 s20, s20, 16\ns_lshl_b32 s22, s21, 4\ns_add_u32 s20, s20, s22")
    A("v_add_u32 v7, s20, v7")
    A("v_mov_b32 v12, v7")
    A("s_mov_b32 s20, 1280\nv_mul_lo_u32 v7, v7, s20\nv_lshl_add_u32 v2, v6, 4, v7")
    for h2 in range(2):
        for i in range(nP):
            if h2 == 0 and i == 0: continue
            A(f"v_add_u32 v{2 + h2*3 + i}, {(72*h2 + 8*i)*1280}, v2")
    A(f"v_mov_b32 v13, {KILL}")
    for i in range(2):
        A(f"v_add_u32 v14, {8*i}, v12\nv_cmp_gt_i32 vcc, 0, v14\nv_cndmask_b32 v{2+i}, v{2+i}, v13, vcc")
    A("s_mul_i32 s24, s49, 160")
    A("s_lshl_b32 s23, s21, 11")
    A(f"s_lshl_b32 s26, s21, 12\ns_add_u32 s26, s26, {TBASE}")
    issued = []
    def issueP(s, h2):
        slot = s % 3
        rot_stage(A, s, 27)
        A("s_lshl_b32 s27, s27, 7")
        A(f"s_add_u32 m0, s23, {slot*PSLOT + h2*72*128}")
        for i in range(nP):
            if i: A("s_add_u32 m0, m0, 1024\ns_nop 0")
            A(f"buffer_load_dwordx4 v{2 + h2*3 + i}, s[4:7], s27 offen lds")
            issued.append(('P', s))
    early = O.earlyp
    if early:
        issueP(0, 0); issueP(0, 1)
    A("s_lshl_b32 s20, s21, 8")
    for i in range(nTi):
        d = 8 + i
        A(f"v_add_u32 v12, s20, v0\nv_add_u32 v12, {64*i}, v12")
        A("v_mul_u32_u24 v13, 2185, v12\nv_lshrrev_b32 v13, 16, v13")
        A("v_mul_u32_u24 v14, 30, v13\nv_sub_u32 v14, v12, v14")
        A("v_and_b32 v15, 0x13, v13\nv_and_b32 v16, 4, v13\nv_lshl_or_b32 v15, v16, 1, v15\nv_and_b32 v16, 8, v13\nv_lshrrev_b32 v16, 1, v16\nv_or_b32 v15, v15, v16")
        A("v_mul_u32_u24 v16, 205, v14\nv_lshrrev_b32 v16, 11, v16")
        A("v_mul_u32_u24 v17, 10, v16\nv_sub_u32 v14, v14, v17")
        A("v_mul_u32_u24 v15, 3840, v15\nv_mul_u32_u24 v16, 1280, v16\nv_lshlrev_b32 v14, 4, v14")
        A(f"v_add3_u32 v{d}, v15, v16, v14")
    def issueT(b):
        slot = b % 6
        rot_beat(A, b, 27)
        A(f"s_mul_i32 s27, s27, {32*3840}\ns_add_u32 s27, s27, s24")
        A(f"s_add_u32 m0, s26, {slot*TSLOT}")
        for i in range(nTi):
            if i: A("s_add_u32 m0, m0, 1024\ns_nop 0")
            A(f"buffer_load_dwordx4 v{8 + i}, s[8:11], s27 offen lds")
            issued.append(('T', b))
    def h_wpf(issued):
        load_ptr(A, 88, 'wo'); load_ptr(A, 92, 'wout')
        A("s_lshl_b32 s60, s48, 3\ns_add_u32 s60, s60, s49\ns_mul_i32 s60, s60, 110\nv_add_u32 v244, s60, v0\nv_lshlrev_b32 v244, 7, v244")
        A(f"v_mov_b32 v245, {KILL}\nv_cmp_le_u32 vcc, 55, v0\nv_cndmask_b32 v244, v244, v245, vcc\nv_add_u32 v245, {55*128}, v244")
        A(f"v_subrev_u32 v246, {6400*128}, v244\nv_subrev_u32 v247, {6400*128}, v245")
        A("s_waitcnt lgkmcnt(0)")
        A(f"s_mov_b32 s90, {640*640*2}\ns_mov_b32 s91, 0x20000\ns_mov_b32 s94, {768*640*2}\ns_mov_b32 s95, 0x20000")
        A("buffer_load_dword v248, v244, s[88:91], 0 offen\nbuffer_load_dword v248, v245, s[88:91], 0 offen")
        A("buffer_load_dword v248, v246, s[92:95], 0 offen\nbuffer_load_dword v248, v247, s[92:95], 0 offen")
        issued.extend([('F', 9)]*4)
    run_loader_schedule(A, issueP, issueT, issued, ({O.wpfb: h_wpf} if (O.wpf and last) else None), True, 20, early)


OT = 212
def z_oldtags(A, r32_sreg):
    srd(A, 12, 32, SZ_EP, WS_EP)
    A(f"s_lshl_b32 s40, s48, 7\nv_mov_b32 v221, s40")
    A(f"buffer_load_dwordx2 v[{OT}:{OT+1}], v221, s[12:15], 0 offen sc1")
def z_r32(A, dst):
    A(f"s_and_b32 s{dst}, s16, 1\ns_lshl_b32 s{dst}, s{dst}, 1\ns_lshr_b32 s41, s16, 2\ns_add_u32 s{dst}, s{dst}, s41")


ZCMB = 131072
ZFLG = 155648
GX, GW, GA_, GT = 152, 184, 192, 146
def z_gate_load(A, rowoff):
    srd(A, 4, 30, 2048*640*2); srd(A, 12, 38, 640*2)
    A("s_lshl_b32 s60, s48, 7\ns_lshl_b32 s61, s49, 4\ns_add_u32 s60, s60, s61\ns_lshl_b32 s61, s16, 2\ns_add_u32 s60, s60, s61") if False else None
    A("s_lshl_b32 s86, s48, 6\ns_lshl_b32 s47, s49, 4\ns_add_u32 s86, s86, s47")
    A(rowoff)
    A("s_add_u32 s86, s86, s47")
    A(f"v_lshlrev_b32 v{GT}, 4, v0\nv_add_u32 v{GT+1}, 1024, v{GT}\nv_mov_b32 v{GT+2}, {KILL}\nv_cmp_le_u32 vcc, 16, v0\nv_cndmask_b32 v{GT+1}, v{GT+1}, v{GT+2}, vcc")
    A(f"buffer_load_dwordx4 v[{GW}:{GW+3}], v{GT}, s[12:15], 0 offen\nbuffer_load_dwordx4 v[{GW+4}:{GW+7}], v{GT+1}, s[12:15], 0 offen")
    A("s_mul_i32 s87, s86, 1280")
    for r in range(4):
        A(f"s_add_u32 s85, s87, {r*1280}")
        A(f"buffer_load_dwordx4 v[{160+8*r}:{163+8*r}], v{GT}, s[4:7], s85 offen\nbuffer_load_dwordx4 v[{164+8*r}:{167+8*r}], v{GT+1}, s[4:7], s85 offen") if False else A(f"buffer_load_dwordx4 v[{GX+8*r}:{GX+3+8*r}], v{GT}, s[4:7], s85 offen\nbuffer_load_dwordx4 v[{GX+4+8*r}:{GX+7+8*r}], v{GT+1}, s[4:7], s85 offen")
def z_gate_compute(A):
    for r in range(4):
        A(f"v_mov_b32 v{GA_+r}, 0")
        for q in range(4): A(f"v_dot2_f32_bf16 v{GA_+r}, v{GX+8*r+q}, v{GW+q}, v{GA_+r}")
        for q in range(4): A(f"v_dot2_f32_bf16 v{GA_+r}, v{GX+4+8*r+q}, v{GW+4+q}, v{GA_+r}")
    for ctl in ("row_shr:1 row_mask:0xf bank_mask:0xf bound_ctrl:0", "row_shr:2 row_mask:0xf bank_mask:0xf bound_ctrl:0", "row_shr:4 row_mask:0xf bank_mask:0xf bound_ctrl:0",
                "row_shr:8 row_mask:0xf bank_mask:0xf bound_ctrl:0", "row_bcast:15 row_mask:0xa bank_mask:0xf", "row_bcast:31 row_mask:0xc bank_mask:0xf"):
        for r in range(4): A(f"v_add_f32_dpp v{GA_+r}, v{GA_+r}, v{GA_+r} {ctl}")
    for r in range(4): A(f"v_mul_f32 v{GA_+r}, {f2u(-1.4426950408889634)}, v{GA_+r}")
    for r in range(4): A(f"v_exp_f32 v{GA_+r}, v{GA_+r}")
    for r in range(4): A(f"v_add_f32 v{GA_+r}, 1.0, v{GA_+r}")
    for r in range(4): A(f"v_rcp_f32 v{GA_+r}, v{GA_+r}")
def z_gate_store(A):
    srd(A, 4, 32, SZ_G, WS_G)
    A(f"s_lshl_b32 s86, s86, 2\nv_mov_b32 v{GT}, 0")
    A("s_mov_b32 s42, 0\ns_mov_b32 s43, 0x80000000\ns_mov_b64 exec, s[42:43]")
    for r in range(4): A(f"buffer_store_dword v{GA_+r}, v{GT}, s[4:7], s86 offen offset:{4*r} sc1")
    A("s_mov_b64 exec, -1")

def k1_pack_load(A):
    T = 28
    c, cc, t2, p_, k_, x_ = T+2, T+3, T+4, T+5, T+6, T+7
    A("s_sub_u32 s40, s16, 4\ns_lshl_b32 s40, s40, 6")
    A(f"v_add_u32 v{c}, s40, v0\nv_and_b32 v{cc}, 127, v{c}\nv_lshrrev_b32 v{t2}, 7, v{c}\nv_lshrrev_b32 v{p_}, 1, v{cc}")
    A(f"v_and_b32 v{k_}, 0x33, v{p_}\nv_and_b32 v{x_}, 4, v{p_}\nv_lshl_or_b32 v{k_}, v{x_}, 1, v{k_}")
    A(f"v_and_b32 v{x_}, 8, v{p_}\nv_lshrrev_b32 v{x_}, 1, v{x_}\nv_or_b32 v{k_}, v{k_}, v{x_}")
    A(f"v_mul_u32_u24 v{k_}, 1280, v{k_}\nv_and_b32 v{x_}, 1, v{cc}\nv_lshl_add_u32 v{k_}, v{x_}, 4, v{k_}\nv_lshl_add_u32 v{k_}, v{t2}, 5, v{k_}")
    A(f"v_lshlrev_b32 v252, 4, v{cc}\nv_lshl_add_u32 v252, v{t2}, 11, v252")
    A(f"v_mov_b32 v{x_}, {KILL}\nv_cmp_eq_u32 vcc, 1, v{t2}\nv_cndmask_b32 v253, v252, v{x_}, vcc\nv_cndmask_b32 v{p_}, v{k_}, v{x_}, vcc")
    A("s_lshl_b32 s54, s48, 2\ns_add_u32 s54, s54, s49")
    for u, D in ((0, 224), (1, 236)):
        A(f"s_add_u32 s55, s54, {128*u}")
        A(f"s_mul_hi_u32 s41, s55, {(2**32 + 21)//22}\ns_mul_i32 s42, s41, 22\ns_sub_u32 s42, s55, s42")
        A("s_cmp_lt_u32 s42, 10\ns_cselect_b32 s12, s44, s46\ns_cselect_b32 s13, s45, s47")
        A(f"s_mov_b32 s14, {768*640*2}\ns_cselect_b32 s14, {640*640*2}, s14\ns_mov_b32 s15, 0x20000")
        A("s_cselect_b32 s43, 0, 10\ns_sub_u32 s43, s42, s43")
        A(f"s_mul_i32 s43, s43, {64*1280}\ns_mul_i32 s40, s41, 160\ns_add_u32 s43, s43, s40")
        A(f"s_cmp_ge_u32 s55, 176\ns_cselect_b32 s40, {KILL}, 0\ns_add_u32 s43, s43, s40")
        A(f"buffer_load_dwordx4 v[{D}:{D+3}], v{k_}, s[12:15], s43 offen")
        A(f"buffer_load_dwordx4 v[{D+4}:{D+7}], v{k_}, s[12:15], s43 offen offset:64")
        A(f"buffer_load_dwordx4 v[{D+8}:{D+11}], v{p_}, s[12:15], s43 offen offset:128")

def k1_pack_store(A):
    srd(A, 12, 32, SZ_WP, WS_WP)
    for u, D in ((0, 224), (1, 236)):
        A(f"s_add_u32 s55, s54, {128*u}")
        A(f"s_mul_i32 s41, s55, {5*2048}\ns_cmp_ge_u32 s55, 176\ns_cselect_b32 s42, {KILL}, 0\ns_add_u32 s41, s41, s42")
        A("s_add_u32 s42, s41, 4096\ns_add_u32 s43, s41, 8192")
        A(f"buffer_store_dwordx4 v[{D}:{D+3}], v252, s[12:15], s41 offen{O.k1st}")
        A(f"buffer_store_dwordx4 v[{D+4}:{D+7}], v252, s[12:15], s42 offen{O.k1st}")
        A(f"buffer_store_dwordx4 v[{D+8}:{D+11}], v253, s[12:15], s43 offen{O.k1st}")

def k1_compute_z(A, st):
    mP = 2; nT = 6; R = ZR
    F = [16, 176]
    AC = [80, 128]
    A("s_and_b32 s20, s16, 1\ns_lshr_b32 s21, s16, 1")
    A("v_and_b32 v14, 15, v0\nv_lshrrev_b32 v15, 4, v0\nv_and_b32 v6, 7, v14\nv_xor_b32 v6, v15, v6\nv_lshlrev_b32 v14, 7, v14\nv_lshl_add_u32 v14, v6, 4, v14")
    A("s_lshl_b32 s22, s20, 12")
    A("v_add_u32 v2, s22, v14\nv_xor_b32 v3, 64, v2\nv_add_u32 v4, 0x10000, v2\nv_add_u32 v5, 0x10000, v3")
    A("v_lshrrev_b32 v14, 2, v0\nv_and_b32 v14, 3, v14\nv_lshl_add_u32 v13, v15, 3, v14\nv_mul_u32_u24 v13, 384, v13")
    A("v_and_b32 v12, 3, v0\nv_lshl_add_u32 v13, v12, 3, v13")
    A("v_lshrrev_b32 v14, 1, v14\nv_and_b32 v12, 1, v15\nv_lshl_add_u32 v14, v12, 1, v14")
    A(f"v_add_u32 v15, {ZTB}, v13\ns_mul_i32 s23, s21, 6")
    for t in range(6):
        A(f"s_add_u32 s22, s23, {t}\ns_and_b32 s24, s22, 3\ns_andn2_b32 s22, s22, 3\nv_xor_b32 v13, s24, v14\nv_add_u32 v13, s22, v13\nv_lshl_add_u32 v{6+t}, v13, 5, v15")
    for i in range(80, 176): A(f"v_mov_b32 v{i}, 0")
    def fP(s, kk, m): return F[s] + 4*(kk*8 + m)
    def fT(s, kk, t): return F[s] + 4*(kk*8 + 2 + t)
    def acc(p, m, t): return AC[p] + 4*(m*nT + t)
    def reads(i):
        s = i & 1; ps = i % 10; ts = i % R
        r = []
        for kk in range(2):
            for m in range(mP):
                off = ps*8192 + m*2048; hi = off >> 16
                r.append(f"ds_read_b128 v[{fP(s,kk,m)}:{fP(s,kk,m)+3}], v{2 + kk + 2*hi} offset:{off & 0xffff}")
            for t in range(nT):
                f = fT(s, kk, t)
                for h in range(2): r.append(f"ds_read_b64_tr_b16 v[{f+2*h}:{f+2*h+1}], v{6 + t} offset:{ts*ZTS + kk*32*384 + h*4*384}")
        return r
    def beat(i, last=False):
        s = i & 1; p = i // 10
        mf = [f"v_mfma_f32_16x16x32_bf16 v[{acc(p,m,t)}:{acc(p,m,t)+3}], v[{fT(s,kk,t)}:{fT(s,kk,t)+3}], v[{fP(s,kk,m)}:{fP(s,kk,m)+3}], v[{acc(p,m,t)}:{acc(p,m,t)+3}]"
              for kk in range(2) for m in range(mP) for t in range(nT)]
        rd = [] if last else reads(i + 1)
        A("s_barrier")
        for k, x in enumerate(mf):
            for _ in range(2 if k < 10 else 1):
                if rd: A(rd.pop(0))
            A(x)
        assert not rd
        A("s_waitcnt lgkmcnt(0)")
    A("s_barrier")
    for x in reads(0): A(x)
    A("s_waitcnt lgkmcnt(0)")
    st(); GS(A, 1)
    for i in range(10): beat(i)
    st()
    TM = 176
    A(f"s_mov_b32 s56, {f2u(C1)}\ns_mov_b32 s57, {f2u(C1)}")
    A(f"v_mov_b32 v12, {f2u(C0)}\nv_mov_b32 v13, {f2u(C0)}")
    gelu_pk(A, [acc(0, m, t) + 2*q for m in range(2) for t in range(6) for q in range(2)], TM, 56, 12)
    S = TM
    for m in range(2):
        vals = [acc(0, m, t) + r for t in range(6) for r in range(4)]
        for h in range(2):
            v0_ = vals[12*h:12*h+12]
            A(f"v_pk_add_f32 v[{S+4*m+2*h}:{S+4*m+2*h+1}], v[{v0_[0]}:{v0_[1]}], v[{v0_[2]}:{v0_[3]}]")
            A(f"v_pk_mul_f32 v[{S+8+4*m+2*h}:{S+8+4*m+2*h+1}], v[{v0_[0]}:{v0_[1]}], v[{v0_[0]}:{v0_[1]}]")
    for m in range(2):
        vals = [acc(0, m, t) + r for t in range(6) for r in range(4)]
        for h in range(2):
            v0_ = vals[12*h:12*h+12]
            A(f"v_pk_fma_f32 v[{S+8+4*m+2*h}:{S+8+4*m+2*h+1}], v[{v0_[2]}:{v0_[3]}], v[{v0_[2]}:{v0_[3]}], v[{S+8+4*m+2*h}:{S+8+4*m+2*h+1}]")
    for q in range(2, 6):
        for m in range(2):
            vals = [acc(0, m, t) + r for t in range(6) for r in range(4)]
            for h in range(2):
                v0_ = vals[12*h:12*h+12]
                A(f"v_pk_add_f32 v[{S+4*m+2*h}:{S+4*m+2*h+1}], v[{S+4*m+2*h}:{S+4*m+2*h+1}], v[{v0_[2*q]}:{v0_[2*q+1]}]")
                A(f"v_pk_fma_f32 v[{S+8+4*m+2*h}:{S+8+4*m+2*h+1}], v[{v0_[2*q]}:{v0_[2*q+1]}], v[{v0_[2*q]}:{v0_[2*q+1]}], v[{S+8+4*m+2*h}:{S+8+4*m+2*h+1}]")
    for m in range(2):
        A(f"v_pk_add_f32 v[{S+4*m}:{S+4*m+1}], v[{S+4*m}:{S+4*m+1}], v[{S+4*m+2}:{S+4*m+3}]")
        A(f"v_pk_add_f32 v[{S+8+4*m}:{S+8+4*m+1}], v[{S+8+4*m}:{S+8+4*m+1}], v[{S+8+4*m+2}:{S+8+4*m+3}]")
    for m in range(2):
        A(f"v_add_f32 v{S+16+2*m}, v{S+4*m}, v{S+4*m+1}\nv_add_f32 v{S+17+2*m}, v{S+8+4*m}, v{S+8+4*m+1}")
    X = S + 16
    for i in range(4): A(f"v_mov_b32 v{X+4+i}, v{X+i}")
    for i in range(4): A(f"v_permlane16_swap_b32 v{X+i}, v{X+4+i}")
    for i in range(4): A(f"v_add_f32 v{X+i}, v{X+i}, v{X+4+i}")
    for i in range(4): A(f"v_mov_b32 v{X+4+i}, v{X+i}")
    for i in range(4): A(f"v_permlane32_swap_b32 v{X+i}, v{X+4+i}")
    for i in range(4): A(f"v_add_f32 v{X+i}, v{X+i}, v{X+4+i}")
    A(f"v_and_b32 v14, 16, v0\nv_cmp_ne_u32 vcc, 0, v14\nv_cndmask_b32 v{X}, v{X}, v{X+2}, vcc\nv_cndmask_b32 v{X+1}, v{X+1}, v{X+3}, vcc")
    srd(A, 8, 32, SZ_ST, WS_ST)
    A("s_lshl_b32 s49, s49, 1\ns_add_u32 s49, s49, s21")
    A("s_lshl_b32 s22, s49, 15\ns_lshl_b32 s23, s48, 10\ns_add_u32 s22, s22, s23\ns_lshl_b32 s23, s20, 9\ns_add_u32 s22, s22, s23")
    A(f"s_add_u32 s24, s98, 1\nv_mov_b32 v{X+2}, s24\nv_mov_b32 v{X+3}, s99\nv_lshlrev_b32 v14, 4, v0")
    A("v_cmp_gt_u32 vcc, 32, v0\ns_and_saveexec_b64 s[24:25], vcc")
    A(f"buffer_store_dwordx4 v[{X}:{X+3}], v14, s[8:11], s22 offen sc1")
    A("s_mov_b64 exec, s[24:25]")
    st()
    PG = 240
    def poll_loads():
        for q in range(4):
            A(f"s_add_u32 s23, s27, {q*32768}")
            A(f"buffer_load_dwordx4 v[{PG+4*q}:{PG+3+4*q}], v15, s[8:11], s23 offen sc1")
    def poll_issue():
        A("s_lshl_b32 s27, s48, 10\ns_lshl_b32 s23, s20, 9\ns_add_u32 s27, s27, s23")
        A("v_and_b32 v15, 31, v0\nv_lshlrev_b32 v15, 4, v15\nv_lshrrev_b32 v14, 5, v0\nv_lshl_add_u32 v15, v14, 17, v15")
        poll_loads()
    def mid_normalise():
        G = TM
        A(f"s_add_u32 s24, s98, 1\nv_mov_b32 v12, s24\nv_mov_b32 v14, s99\ns_mov_b32 s24, 0\ns_branch K1_pollchk")
        A.label("K1_poll")
        A(f"s_sleep {O.sleep}")
        poll_loads()
        A.label("K1_pollchk")
        A("s_waitcnt vmcnt(0)")
        X = G + 32
        A(f"v_xor_b32 v{X}, v{PG+2}, v12\nv_xor_b32 v{X+1}, v{PG+3}, v14\nv_or_b32 v{X}, v{X}, v{X+1}")
        for q in range(1, 4): A(f"v_xor_b32 v{X+1}, v{PG+2+4*q}, v12\nv_xor_b32 v{X+2}, v{PG+3+4*q}, v14\nv_or3_b32 v{X}, v{X}, v{X+1}, v{X+2}")
        A(f"v_cmp_ne_u32 vcc, 0, v{X}\ns_add_u32 s24, s24, 1\ns_nop 3")
        A(f"s_cbranch_vccz K1_polled\ns_cmp_lt_u32 s24, 0x10000\ns_cbranch_scc1 K1_poll")
        A.label("K1_polled")
        A(f"v_add_f32 v{G}, v{PG}, v{PG+4}\nv_add_f32 v{G+1}, v{PG+1}, v{PG+5}\nv_add_f32 v{G+2}, v{PG+8}, v{PG+12}\nv_add_f32 v{G+3}, v{PG+9}, v{PG+13}")
        A(f"v_add_f32 v{G}, v{G}, v{G+2}\nv_add_f32 v{G+1}, v{G+1}, v{G+3}")
        A(f"v_mov_b32 v{G+2}, v{G}\nv_mov_b32 v{G+3}, v{G+1}")
        A(f"v_permlane32_swap_b32 v{G}, v{G+2}\nv_permlane32_swap_b32 v{G+1}, v{G+3}")
        A(f"v_add_f32 v{G}, v{G}, v{G+2}\nv_add_f32 v{G+1}, v{G+1}, v{G+3}")
        A(f"v_mul_f32 v{G}, {f2u(1/768)}, v{G}\nv_mul_f32 v{G+1}, {f2u(1/768)}, v{G+1}")
        A(f"v_fma_f32 v{G+1}, -v{G}, v{G}, v{G+1}\nv_max_f32 v{G+1}, 0, v{G+1}")
        A(f"v_add_f32 v{G+1}, {f2u(1e-5)}, v{G+1}\nv_rsq_f32 v{G+1}, v{G+1}")
        A(f"v_mul_f32 v{G}, v{G}, v{G+1}\nv_sub_f32 v{G}, 0, v{G}")
        A("v_and_b32 v13, 15, v0\nv_lshlrev_b32 v13, 2, v13")
        B = G + 8
        for m in range(2):
            A(f"v_add_u32 v12, {64*m}, v13")
            A(f"ds_bpermute_b32 v{B+2*m}, v12, v{G+1}\nds_bpermute_b32 v{B+1+2*m}, v12, v{G}")
        srd(A, 12, 32, SZ_Z2P, WS_Z2P)
        A("s_lshl_b32 s22, s49, 5\ns_add_u32 s22, s22, s48\ns_mul_i32 s22, s22, 12288\ns_lshl_b32 s23, s20, 10\ns_add_u32 s22, s22, s23")
        A("v_lshrrev_b32 v15, 4, v0\nv_and_b32 v12, 15, v0\nv_and_b32 v13, 3, v12\nv_and_b32 v14, 4, v12\nv_lshl_or_b32 v13, v14, 1, v13\nv_and_b32 v14, 8, v12\nv_lshrrev_b32 v14, 1, v14\nv_or_b32 v13, v13, v14")
        A("v_and_b32 v14, 1, v15\nv_lshl_add_u32 v13, v14, 4, v13\nv_lshlrev_b32 v13, 5, v13\nv_lshrrev_b32 v14, 1, v15\nv_lshl_add_u32 v13, v14, 4, v13")
        A("s_waitcnt lgkmcnt(0)")
        for m in range(2):
            for t in range(6):
                a_ = acc(0, m, t)
                for r in range(4): A(f"v_fma_f32 v{a_+r}, v{a_+r}, v{B+2*m}, v{B+1+2*m}")
        PK = G + 16
        for t in range(6):
            d = PK + 4*t; a0 = acc(0, 0, t); a1 = acc(0, 1, t)
            A(f"v_cvt_pk_bf16_f32 v{d}, v{a0}, v{a0+1}\nv_cvt_pk_bf16_f32 v{d+1}, v{a0+2}, v{a0+3}\nv_cvt_pk_bf16_f32 v{d+2}, v{a1}, v{a1+1}\nv_cvt_pk_bf16_f32 v{d+3}, v{a1+2}, v{a1+3}")
        for t in range(6):
            d = PK + 4*t
            A(f"v_permlane16_swap_b32 v{d}, v{d+2}\nv_permlane16_swap_b32 v{d+1}, v{d+3}")
        for t in range(6):
            A(f"s_add_u32 s23, s22, {t*2048}")
            A(f"buffer_store_dwordx4 v[{PK+4*t}:{PK+4*t+3}], v13, s[12:15], s23 offen sc1")
    def signal_z2():
        A("s_waitcnt vmcnt(0)")
        A(f"s_lshl_b32 s22, s21, 2\ns_add_u32 s22, s22, {ZFLG + 16}\nv_mov_b32 v12, s22\nv_mov_b32 v13, 1\ns_mov_b64 exec, 1")
        A("ds_add_rtn_u32 v13, v12, v13\ns_waitcnt lgkmcnt(0)\nv_readfirstlane_b32 s22, v13")
        A("s_cmp_lg_u32 s22, 1\ns_cbranch_scc1 K1_z2nosig")
        srd(A, 12, 32, SZ_FZ2, WS_FZ2)
        A("s_lshl_b32 s22, s49, 8\ns_lshl_b32 s23, s48, 3\ns_add_u32 s22, s22, s23\nv_mov_b32 v12, s22\ns_add_u32 s23, s98, 1\nv_mov_b32 v14, s23\nv_mov_b32 v15, s99")
        A("buffer_store_dwordx2 v[14:15], v12, s[12:15], 0 offen sc1")
        A.label("K1_z2nosig")
        A("s_mov_b64 exec, -1")
    G3 = lambda k: A(f"s_memtime s[{64+2*k}:{65+2*k}]") if O.gs3 else None
    G3(0)
    for i in range(10, 20):
        if i in (12, 14): G3(1 + (i - 12)//2)
        if i == O.zn - O.zp: poll_issue()
        if i == O.zn:
            assert i % 2 == 0
            G3(3); mid_normalise(); G3(4)
        if i == 18: G3(5)
        if i == O.zs: G3(6); signal_z2(); G3(7)
        beat(i, last=(i == 19))
    G3(8)
    if O.gs3: GS_flush(A, 9, 12, True)
    st(); GS(A, 2)
    A(f"v_mov_b32 v12, {f2u(C0)}\nv_mov_b32 v13, {f2u(C0)}")
    gelu_pk(A, [acc(1, m, t) + 2*q for m in range(2) for t in range(6) for q in range(2)], TM, 56, 12)
    srd(A, 4, 32, SZ_Z1, WS_Z1)
    A("s_lshl_b32 s22, s48, 1\ns_add_u32 s22, s22, s20\ns_mul_i32 s22, s22, 48\ns_mul_i32 s23, s49, 6\ns_add_u32 s22, s22, s23\ns_lshl_b32 s22, s22, 10")
    A("v_lshlrev_b32 v14, 4, v0")
    for t in range(6):
        d = 16 + 4*t; a0 = acc(1, 0, t); a1 = acc(1, 1, t)
        A(f"v_cvt_pk_bf16_f32 v{d}, v{a0}, v{a0+1}\nv_cvt_pk_bf16_f32 v{d+1}, v{a0+2}, v{a0+3}\nv_cvt_pk_bf16_f32 v{d+2}, v{a1}, v{a1+1}\nv_cvt_pk_bf16_f32 v{d+3}, v{a1+2}, v{a1+3}")
    for t in range(6):
        A(f"s_add_u32 s23, s22, {t*1024}")
        A(f"buffer_store_dwordx4 v[{16+4*t}:{19+4*t}], v14, s[4:7], s23 offen{O.k1st}")

def k1_compute_q(A, wm, wn, st):
    G = k1_geom('q'); PSLOT = G['PSLOT']; TSLOT = G['TSLOT']; TBASE = G['TBASE']
    tiles = list(range(0, 8)) if wn == 0 else list(range(8, 15))
    halo = {(0, 0): [5, 6], (1, 0): [7], (0, 1): [8, 9, 10, 11], (1, 1): [12, 13, 14]}[(wm, wn)]
    nT = len(tiles); mP = 5
    F = [16, 16 + 4*(5 + 8)]
    ACC = 16 + 8*(5 + 8)
    A("v_and_b32 v14, 15, v0\nv_lshrrev_b32 v15, 4, v0\nv_and_b32 v6, 7, v14\nv_xor_b32 v6, v15, v6\nv_lshlrev_b32 v14, 7, v14\nv_lshl_add_u32 v2, v6, 4, v14")
    A("v_xor_b32 v3, 64, v2")
    A("v_lshrrev_b32 v6, 1, v15\nv_lshlrev_b32 v6, 4, v6\nv_and_b32 v7, 1, v15\nv_lshl_add_u32 v6, v7, 2, v6")
    A("v_lshrrev_b32 v7, 2, v0\nv_and_b32 v7, 3, v7\nv_add_u32 v6, v6, v7\nv_mul_u32_u24 v6, 480, v6\nv_and_b32 v7, 3, v0\nv_lshl_add_u32 v6, v7, 3, v6")
    A(f"v_add_u32 v4, {TBASE}, v6\nv_add_u32 v5, {TBASE + 3*TSLOT}, v6")
    accs = {}
    n = ACC
    for m in range(4):
        for t in tiles: accs[(m, t)] = n; n += 4
    for t in halo: accs[('h', t)] = n; n += 4
    assert n <= 256, n
    for i in range(ACC, n): A(f"v_mov_b32 v{i}, 0")
    def fP(s, m): return F[s] + 4*m
    def fT(s, t): return F[s] + 4*(5 + tiles.index(t))
    def reads(b):
        s = b & 1; kk = b & 1; ps = (b//2) % 3; ts = b % 6
        r = []
        for m in range(4):
            f = fP(s, m); r.append(f"ds_read_b128 v[{f}:{f+3}], v{2+kk} offset:{ps*PSLOT + (16 + 64*wm + 16*m)*128}")
        f = fP(s, 4); r.append(f"ds_read_b128 v[{f}:{f+3}], v{2+kk} offset:{ps*PSLOT}")
        for t in tiles:
            f = fT(s, t)
            for h in range(2):
                hi = 1 if ts >= 3 else 0
                r.append(f"ds_read_b64_tr_b16 v[{f+2*h}:{f+2*h+1}], v{4+hi} offset:{(ts - 3*hi)*TSLOT + h*8*480 + t*32}")
        return r
    A("s_barrier")
    for x in reads(0): A(x)
    A("s_waitcnt lgkmcnt(0)")
    st(); GS(A, 1)
    A("s_barrier")
    def beat(b, last=False):
        s = b & 1
        mf = []
        for m in range(4):
            for t in tiles:
                a_ = accs[(m, t)]; mf.append(f"v_mfma_f32_16x16x32_bf16 v[{a_}:{a_+3}], v[{fT(s,t)}:{fT(s,t)+3}], v[{fP(s,m)}:{fP(s,m)+3}], v[{a_}:{a_+3}]")
        for t in halo:
            a_ = accs[('h', t)]; mf.append(f"v_mfma_f32_16x16x32_bf16 v[{a_}:{a_+3}], v[{fT(s,t)}:{fT(s,t)+3}], v[{fP(s,4)}:{fP(s,4)+3}], v[{a_}:{a_+3}]")
        rd = [] if last else reads(b + 1)
        nfront = len(mf) - 8
        for i, x in enumerate(mf):
            A(x)
            if rd: A(rd.pop(0))
            if i == nfront - 1:
                assert not rd, (len(rd), nfront)
                A("s_waitcnt lgkmcnt(0)\ns_barrier")
    L = f"K1q{wm}{wn}_cloop"
    A("s_mov_b32 s26, 0")
    A.label(L)
    it_top(A)
    for b in range(6):
        if O.itstamp: A(f"s_memtime s[76:77]\ns_waitcnt lgkmcnt(0)\ns_cmp_eq_u32 s26, 0\ns_cselect_b32 s{85+b}, s76, s{85+b}")
        beat(b)
    A(f"s_add_u32 s26, s26, 1\ns_cmp_lt_u32 s26, 3\ns_cbranch_scc1 {L}")
    it_mid(A)
    beat(18); beat(19, last=True)
    it_end(A, 14, 15)
    st(); GS(A, 2)
    A(f"v_and_b32 v6, 15, v0\nv_mul_u32_u24 v6, {QP}, v6\nv_lshrrev_b32 v7, 4, v0\nv_lshl_add_u32 v6, v7, 3, v6")
    k = 0
    items = list(accs.items())
    for (key, a_) in items:
        A(f"v_cvt_pk_bf16_f32 v{16+2*k}, v{a_}, v{a_+1}\nv_cvt_pk_bf16_f32 v{17+2*k}, v{a_+2}, v{a_+3}")
        k += 1
    A(f"v_add_u32 v7, 0x8000, v6")
    k = 0
    for (key, a_) in items:
        m, t = key
        row = 0 if m == 'h' else 16 + 64*wm + 16*m
        off = row*QP + t*32
        if off < 65536: A(f"ds_write_b64 v6, v[{16+2*k}:{17+2*k}] offset:{off}")
        else: A(f"ds_write_b64 v7, v[{16+2*k}:{17+2*k}] offset:{off - 0x8000}")
        k += 1

def rot_table(A):
    A(f"s_and_b32 s28, s28, 3\ns_lshl_b32 s28, s28, 2\ns_lshr_b32 s28, {O.rottab if O.rot else 0}, s28\ns_and_b32 s28, s28, 15")

def k1(A):
    name = NAME + "_kernel"
    kernel_begin(A, name)
    A("s_cmp_ge_u32 s2, 256\ns_cbranch_scc1 K34_end")
    load_ptr(A, 30, 'x'); load_ptr(A, 32, 'ws'); load_ptr(A, 34, 'wqkv'); load_ptr(A, 36, 'win')
    load_ptr(A, 38, 'gw'); load_ptr(A, 44, 'wo'); load_ptr(A, 46, 'wout'); load_ptr(A, 52, 'wsp'); load_ptr(A, 50, 'dbg')
    wave_lane(A, 16)
    hd_start(A)
    st = Stamps(A, 0); st()
    GS(A, 0)
    A("s_waitcnt lgkmcnt(0)")
    A(f"s_add_u32 s96, s32, {WS_EP}\ns_addc_u32 s97, s33, 0\ns_load_dwordx2 s[98:99], s[96:97], 0")
    A("s_and_b32 s40, s2, 7\ns_lshr_b32 s41, s2, 3\ns_and_b32 s48, s40, 1\ns_lshl_b32 s48, s48, 3\ns_and_b32 s42, s41, 7\ns_add_u32 s48, s48, s42")
    A("s_lshr_b32 s49, s40, 1\ns_lshl_b32 s49, s49, 1\ns_lshr_b32 s43, s41, 3\ns_and_b32 s43, s43, 1\ns_add_u32 s49, s49, s43")
    A("s_lshl_b32 s28, s43, 1\ns_add_u32 s28, s28, s42")
    rot_table(A)
    A("s_cmp_lt_u32 s41, 16\ns_cbranch_scc1 K1_ztype")
    A("s_cmp_lt_u32 s16, 4\ns_cbranch_scc1 K1_qcomp")
    srd(A, 4, 30, 2048*640*2); srd(A, 8, 34, 640*1920*2)
    if 'Q' in O.prio: A("s_setprio 2")
    A("s_cmp_eq_u32 s16, 7\ns_cbranch_scc1 K1_qload3")
    k1_loader_q(A, False)
    A("s_branch K1_att")
    A.label("K1_qload3")
    k1_loader_q(A, True)
    A("s_branch K1_att")
    A.label("K1_qcomp")
    if 'C' in O.prio: A("s_setprio 2")
    st()

    A("s_cmp_eq_u32 s16, 1\ns_cbranch_scc1 K1_q10\ns_cmp_eq_u32 s16, 2\ns_cbranch_scc1 K1_q01\ns_cmp_eq_u32 s16, 3\ns_cbranch_scc1 K1_q11")
    for (wm, wn) in ((0, 0), (1, 0), (0, 1), (1, 1)):
        if (wm, wn) != (0, 0): A.label(f"K1_q{wm}{wn}")
        stv = Stamps(A, 0, 2)
        k1_compute_q(A, wm, wn, stv)
        if (wm, wn) != (1, 1): A("s_branch K1_att")
    A.label("K1_att")
    if 'Q' in O.prio or 'C' in O.prio: A("s_setprio 0")
    st3 = Stamps(A, 0, 4)
    AV = 100

    A(f"s_and_b32 s46, s16, 3\ns_lshr_b32 s47, s16, 2\ns_mul_i32 s45, s46, 40\ns_mul_i32 s43, s47, {64*QP}\ns_add_u32 s45, s45, s43")
    A("s_or_b32 s43, s48, s47")
    attention_prep(A, AV, 45)
    T = 86
    A(f"s_lshl_b32 s20, s16, 6\nv_add_u32 v{T}, s20, v0")
    for i in range(3):
        c, r, q, la, ga = T+1, T+2, T+3, T+4+2*i, T+5+2*i
        A(f"v_add_u32 v{c}, {512*i}, v{T}")
        A(f"v_mul_u32_u24 v{r}, 6554, v{c}\nv_lshrrev_b32 v{r}, 16, v{r}")
        A(f"v_mul_u32_u24 v{q}, 10, v{r}\nv_sub_u32 v{q}, v{c}, v{q}")
        A(f"v_mul_u32_u24 v{la}, {QP}, v{r}\nv_lshl_add_u32 v{la}, v{q}, 4, v{la}\nv_add_u32 v{la}, {16*QP}, v{la}")
        A(f"s_lshl_b32 s20, s48, 7\nv_add_u32 v{ga}, s20, v{r}\nv_mul_u32_u24 v{ga}, 2816, v{ga}\nv_lshl_add_u32 v{ga}, v{q}, 4, v{ga}")
        A(f"s_mul_i32 s20, s49, 160\nv_add_u32 v{ga}, s20, v{ga}")
        if i == 2:
            A(f"v_mov_b32 v{q}, {KILL}\nv_cmp_le_u32 vcc, 1280, v{c}\nv_cndmask_b32 v{ga}, v{ga}, v{q}, vcc")
            A(f"v_mov_b32 v{q}, 0\nv_cndmask_b32 v{la}, v{la}, v{q}, vcc")
    srd(A, 12, 32, SZ_AU, WS_AU)
    A("s_waitcnt lgkmcnt(0)\ns_barrier")
    st3()
    attention_main(A, AV, 43)
    A("s_waitcnt lgkmcnt(0)\ns_barrier")
    st3()
    D = 16
    for i in range(3):
        A(f"ds_read_b64 v[{D+4*i}:{D+4*i+1}], v{T+4+2*i}\nds_read_b64 v[{D+4*i+2}:{D+4*i+3}], v{T+4+2*i} offset:8")
    A("s_waitcnt lgkmcnt(0)")
    for i in range(3): A(f"buffer_store_dwordx4 v[{D+4*i}:{D+4*i+3}], v{T+5+2*i}, s[12:15], 0 offen{O.k1st}")
    if O.stamp:
        A("s_cmp_ge_u32 s16, 4\ns_cbranch_scc1 K1_qnost")
    st3(); st3.flush(16, 32)
    A.label("K1_qnost")
    GS(A, 3)
    load_ptr(A, 30, 'wsp'); load_ptr(A, 34, 'bsp'); load_ptr(A, 36, 'out'); load_ptr(A, 38, 'dbg')
    A("s_and_b32 s60, s2, 1\ns_lshl_b32 s60, s60, 2\ns_lshr_b32 s61, s2, 6\ns_add_u32 s60, s60, s61")
    srd(A, 12, 32, SZ_FZ2, WS_FZ2)
    A("s_lshl_b32 s60, s60, 8\nv_and_b32 v14, 31, v0\nv_lshlrev_b32 v14, 3, v14\nv_add_u32 v14, s60, v14")
    Lp = A.newlabel("K1_nopre")
    A(f"s_cmp_lg_u32 s16, 4\ns_cbranch_scc1 {Lp}")
    A("buffer_load_dwordx2 v[18:19], v14, s[12:15], 0 offen sc1")
    A.label(Lp)
    A("s_waitcnt vmcnt(0)\ns_barrier")
    srd(A, 12, 32, SZ_FQ, WS_FQ)
    A("s_lshl_b32 s20, s48, 6\ns_lshl_b32 s21, s49, 3\ns_add_u32 s20, s20, s21")
    A("s_branch K1_flag")
    A.label("K1_ztype")
    A("s_and_b32 s48, s40, 1\ns_lshl_b32 s48, s48, 4\ns_and_b32 s42, s41, 15\ns_add_u32 s48, s48, s42\ns_lshr_b32 s49, s40, 1")
    A("s_and_b32 s28, s42, 3")
    if O.zrot is None: rot_table(A)
    else: A(f"s_lshl_b32 s28, s28, 2\ns_lshr_b32 s28, {O.zrot}, s28\ns_and_b32 s28, s28, 15")
    A(f"s_mul_i32 s17, s48, {64*1280}")
    A("s_mul_i32 s19, s49, 384\ns_add_u32 s18, s19, 1536")
    A("s_cmp_lt_u32 s16, 4\ns_cbranch_scc1 K1_zcomp")
    srd(A, 4, 30, 2048*640*2); srd(A, 8, 36, 640*1536*2)
    if 'Z' in O.prio: A("s_setprio 2")
    k1_loader_z(A)
    if 'Z' in O.prio: A("s_setprio 0")
    A("s_branch K1_znost")
    A.label("K1_zcomp")
    st2 = Stamps(A, 0, 1); st2()
    A(f"s_lshr_b32 s20, s16, 1\ns_lshl_b32 s20, s20, 2\ns_add_u32 s20, s20, {ZFLG + 16}\nv_mov_b32 v14, s20\nv_mov_b32 v15, 0\nds_write_b32 v14, v15")
    k1_compute_z(A, st2)
    if O.stamp:
        A("s_cmp_ge_u32 s16, 4\ns_cbranch_scc1 K1_znost")
    st2(); st2.flush(16, 32)
    A.label("K1_znost")
    GS(A, 3)
    load_ptr(A, 30, 'wsp'); load_ptr(A, 34, 'bsp'); load_ptr(A, 36, 'out'); load_ptr(A, 38, 'dbg')
    A("s_and_b32 s60, s2, 1\ns_lshl_b32 s60, s60, 2\ns_lshr_b32 s61, s2, 6\ns_add_u32 s60, s60, s61")
    srd(A, 12, 32, SZ_FZ2, WS_FZ2)
    A("s_lshl_b32 s60, s60, 8\nv_and_b32 v14, 31, v0\nv_lshlrev_b32 v14, 3, v14\nv_add_u32 v14, s60, v14")
    Lp = A.newlabel("K1_nopre")
    A(f"s_cmp_lg_u32 s16, 4\ns_cbranch_scc1 {Lp}")
    A("buffer_load_dwordx2 v[18:19], v14, s[12:15], 0 offen sc1")
    A.label(Lp)
    A("s_waitcnt vmcnt(0)\ns_barrier")
    srd(A, 12, 32, SZ_FZ, WS_FZ)
    A("s_lshr_b32 s20, s49, 1\ns_lshl_b32 s21, s48, 2\ns_add_u32 s20, s20, s21\ns_lshl_b32 s20, s20, 3")
    A.label("K1_flag")
    A("s_cmp_lg_u32 s16, 0\ns_cbranch_scc1 K1_done")
    A("s_add_u32 s21, s98, 1\nv_mov_b32 v8, s21\nv_mov_b32 v9, s99\nv_mov_b32 v10, s20")
    A("s_mov_b64 exec, 1")
    A("buffer_store_dwordx2 v[8:9], v10, s[12:15], 0 offen sc1")
    A("s_mov_b64 exec, -1")
    A.label("K1_done")
    GS(A, 4)
    return name, 256, 512, 155648 + 64, 256

SLOT = 20480
class E2:
    def __init__(self, A, pfx, NT, nsteps, pitchP, wave_m, wave_n, NS=6):
        self.A = A; self.pfx = pfx; self.NT = NT; self.n = nsteps; self.pitchP = pitchP
        self.mP = wave_m; self.nT = wave_n; self.NS = NS
        self.F = [8, 8 + 8*(wave_m + wave_n)]
        self.ACC = 8 + 16*(wave_m + wave_n)
        self.vend = self.ACC + 4*wave_m*wave_n
    def fP(self, s, kk, m): return self.F[s] + 4*(kk*(self.mP+self.nT) + m)
    def fT(self, s, kk, t): return self.F[s] + 4*(kk*(self.mP+self.nT) + self.mP + t)
    def acc(self, m, t): return self.ACC + 4*(m*self.nT + t)
    def loader_setup(self):
        A = self.A
        A("s_sub_u32 s21, s16, 4")
        A("v_lshrrev_b32 v7, 3, v0\nv_and_b32 v2, 7, v0\nv_xor_b32 v2, v2, v7")
        A(f"s_mov_b32 s20, {self.pitchP}\nv_mul_lo_u32 v7, v7, s20\nv_lshl_add_u32 v2, v2, 4, v7\nv_lshlrev_b32 v3, 4, v0")
        A(f"s_mul_i32 s20, s21, {16*self.pitchP}\ns_add_u32 s23, s17, s20")
        A("s_mul_i32 s20, s21, 3072\ns_add_u32 s24, s18, s20\ns_add_u32 s26, s20, 8192\ns_lshl_b32 s27, s21, 11")
        A("s_mov_b32 s28, 0\ns_mov_b32 s29, 0")
        if 2*self.NT < 12:
            A(f"s_mul_i32 s20, s21, 3\ns_cmp_ge_u32 s20, {2*self.NT - 1}\ns_cselect_b32 s28, {KILL}, 0\ns_cmp_ge_u32 s20, {2*self.NT - 2}\ns_cselect_b32 s29, {KILL}, 0")
        A("s_mov_b32 s22, 0")
    def issue(self):
        A = self.A
        A("s_add_u32 m0, s22, s27")
        A(f"s_add_u32 s20, s23, {8*self.pitchP - 1024}")
        A("buffer_load_dwordx4 v2, s[4:7], s23 offen lds")
        A("buffer_load_dwordx4 v2, s[4:7], s20 offen offset:1024 lds")
        A("s_add_u32 m0, s22, s26")
        if 2*self.NT < 12:
            A("s_add_u32 s25, s24, s28\ns_add_u32 s15, s24, s29")
            A("buffer_load_dwordx4 v3, s[8:11], s24 offen lds")
            A("buffer_load_dwordx4 v3, s[8:11], s25 offen offset:1024 lds")
            A("buffer_load_dwordx4 v3, s[8:11], s15 offen offset:2048 lds")
        else:
            A(f"buffer_load_dwordx4 v3, s[8:11], s24 offen{O.xl} lds")
            A(f"buffer_load_dwordx4 v3, s[8:11], s24 offen offset:1024{O.xl} lds")
            A(f"buffer_load_dwordx4 v3, s[8:11], s24 offen offset:2048{O.xl} lds")
        A(f"s_add_u32 s23, s23, 128\ns_add_u32 s24, s24, {self.NT*2048}")
        A(f"s_add_u32 s22, s22, {SLOT}\ns_cmp_eq_u32 s22, {self.NS*SLOT}\ns_cselect_b32 s22, 0, s22")
    def loader_main(self, pre_issued):
        A = self.A; NS = self.NS; n = self.n
        for i in range(pre_issued, NS - 1): self.issue()
        A(f"s_waitcnt vmcnt({(NS - 2)*5})")
        A("s_barrier")
        self.issue()
        L = self.pfx + "_lloop"
        A("s_mov_b32 s14, 0")
        A.label(L)
        A(f"s_waitcnt vmcnt({(NS-2)*5})\ns_barrier")
        self.issue()
        A(f"s_add_u32 s14, s14, 1\ns_cmp_lt_u32 s14, {n - NS}\ns_cbranch_scc1 {L}")
        for t in range(NS):
            i = n - NS + t
            rem = max(0, (n - 1) - (i + 1))
            A(f"s_waitcnt vmcnt({rem*5})\ns_barrier")
    def compute_setup(self, s_row, s_tile):
        A = self.A
        A("v_and_b32 v4, 15, v0\nv_lshrrev_b32 v5, 4, v0\nv_and_b32 v6, 7, v4\nv_xor_b32 v5, v5, v6\nv_lshlrev_b32 v4, 7, v4\nv_lshl_add_u32 v4, v5, 4, v4")
        A(f"s_lshl_b32 s20, s{s_row}, 7\nv_add_u32 v2, s20, v4\nv_xor_b32 v3, 64, v2")
        A("v_and_b32 v6, 15, v0\nv_lshlrev_b32 v6, 3, v6\nv_and_b32 v7, 16, v0\nv_lshl_add_u32 v6, v7, 3, v6\nv_and_b32 v7, 32, v0\nv_lshl_add_u32 v6, v7, 4, v6")
        A(f"s_lshl_b32 s20, s{s_tile}, 11\ns_add_u32 s20, s20, 8192\nv_add_u32 v4, s20, v6")
        A(f"v_add_u32 v5, {3*SLOT}, v2\nv_add_u32 v6, {3*SLOT}, v3\nv_add_u32 v7, {3*SLOT}, v4")
        for i in range(self.ACC, self.vend): A(f"v_mov_b32 v{i}, 0")
    def reads(self, step):
        s = step & 1; sl = step % self.NS; hi = 3 if sl >= 3 else 0; so = (sl - hi)*SLOT
        b = 3 if hi else 0
        r = []
        for kk in range(2):
            for m in range(self.mP):
                f = self.fP(s, kk, m); r.append(f"ds_read_b128 v[{f}:{f+3}], v{2+kk+b} offset:{so + m*2048}")
            for t in range(self.nT):
                f = self.fT(s, kk, t)
                for h in range(2): r.append(f"ds_read_b64_tr_b16 v[{f+2*h}:{f+2*h+1}], v{4+b} offset:{so + t*2048 + kk*1024 + h*256}")
        return r
    def step(self, i, last=False):
        A = self.A; s = i & 1
        rd = [] if last else self.reads(i + 1)
        mf = [f"v_mfma_f32_16x16x32_bf16 v[{self.acc(m,t)}:{self.acc(m,t)+3}], v[{self.fT(s,kk,t)}:{self.fT(s,kk,t)+3}], v[{self.fP(s,kk,m)}:{self.fP(s,kk,m)+3}], v[{self.acc(m,t)}:{self.acc(m,t)+3}]"
              for kk in range(2) for m in range(self.mP) for t in range(self.nT)]
        A("s_barrier")
        per = (len(rd) + len(mf) - 1)//len(mf) if rd else 0
        for x in mf:
            for _ in range(per):
                if rd: A(rd.pop(0))
            A(x)
        A("s_waitcnt lgkmcnt(0)")
    def compute(self, st, unroll=False, hooks=None):
        A = self.A; NS = self.NS; n = self.n
        assert NS % 2 == 0
        A("s_barrier")
        for x in self.reads(0): A(x)
        A("s_waitcnt lgkmcnt(0)")
        st()
        if unroll:
            for i in range(n):
                self.step(i, last=(i == n - 1))
                if hooks and i in hooks: hooks[i]()
            return
        nfull = (n - 1)//NS
        L = self.pfx + "_cloop"
        A("s_mov_b32 s19, 0")
        A.label(L)
        for i in range(NS): self.step(i)
        A(f"s_add_u32 s19, s19, 1\ns_cmp_lt_u32 s19, {nfull}\ns_cbranch_scc1 {L}")
        for i in range(nfull*NS, n): self.step(i, last=(i == n - 1))

def tile_map(A):
    A("s_and_b32 s42, s2, 7\ns_lshr_b32 s43, s2, 3\ns_lshr_b32 s40, s42, 1\ns_lshl_b32 s40, s40, 3\ns_and_b32 s44, s43, 7\ns_add_u32 s40, s40, s44")
    A("s_and_b32 s41, s42, 1\ns_lshl_b32 s41, s41, 2\ns_lshr_b32 s44, s43, 3\ns_add_u32 s41, s41, s44")

ATT_LDS = 6*SLOT
def attention_regs(V):
    R = dict(aQ=V+1, aK=V+2, aV=V+3, t0=V+4, t1=V+5, t2=V+6, M20=V+7, M21=V+8, N20=V+9, N21=V+10)
    S = (V + 12 + 3)//4*4
    R.update(S=S, QF=S+12, KF=S+22, VF=S+52, OO=(S+82+3)//4*4)
    return R
def attention_prep(A, V, s_off):
    R = attention_regs(V); aQ, aK, aV, t0, t1, t2 = R['aQ'], R['aK'], R['aV'], R['t0'], R['t1'], R['t2']
    M20, M21, N20, N21, S, OO = R['M20'], R['M21'], R['N20'], R['N21'], R['S'], R['OO']
    A(f"v_lshrrev_b32 v{t0}, 3, v0\nv_lshlrev_b32 v{t0}, 2, v{t0}\nv_and_b32 v{t1}, 3, v0\nv_add_u32 v{t0}, v{t0}, v{t1}")
    A(f"v_lshrrev_b32 v{t1}, 2, v0\nv_and_b32 v{t1}, 1, v{t1}\nv_lshl_add_u32 v{t0}, v{t0}, 1, v{t1}")
    A(f"v_mul_u32_u24 v{t0}, {QP}, v{t0}\nv_add_u32 v{aK}, s{s_off}, v{t0}\nv_add_u32 v{aQ}, {16*QP}, v{aK}")
    A(f"v_lshrrev_b32 v{t1}, 4, v0\nv_lshlrev_b32 v{t1}, 2, v{t1}\nv_and_b32 v{t2}, 3, v0\nv_add_u32 v{t1}, v{t1}, v{t2}")
    A(f"v_lshrrev_b32 v{t2}, 1, v{t1}\nv_lshlrev_b32 v{t2}, 2, v{t2}\nv_and_b32 v{t1}, 1, v{t1}")
    A(f"v_lshrrev_b32 v{aV}, 2, v0\nv_and_b32 v{aV}, 3, v{aV}\nv_add_u32 v{aV}, v{aV}, v{t2}\nv_lshl_add_u32 v{aV}, v{aV}, 1, v{t1}")
    A(f"v_mul_u32_u24 v{aV}, {QP}, v{aV}\nv_add_u32 v{aV}, s{s_off}, v{aV}")
    A(f"v_and_b32 v{t1}, 3, v0")
    A(f"v_mov_b32 v{M20}, 0xffff\nv_mov_b32 v{t2}, -1\nv_cmp_le_u32 vcc, 1, v{t1}\nv_cndmask_b32 v{M20}, v{M20}, v{t2}, vcc")
    A(f"v_mov_b32 v{M21}, 0\nv_mov_b32 v{t2}, 0xffff\nv_cmp_le_u32 vcc, 2, v{t1}\nv_cndmask_b32 v{M21}, v{M21}, v{t2}, vcc")
    A(f"v_mov_b32 v{t2}, -1\nv_cmp_eq_u32 vcc, 3, v{t1}\nv_cndmask_b32 v{M21}, v{M21}, v{t2}, vcc")
    A(f"v_not_b32 v{N20}, v{M20}\nv_not_b32 v{N21}, v{M21}")
    for i in range(12): A(f"v_mov_b32 v{S+i}, 0")
    for i in range(20): A(f"v_mov_b32 v{OO+i}, 0")
    A("s_mov_b32 s22, 0xeeeeeeee\ns_mov_b32 s23, 0xeeeeeeee\ns_mov_b32 s24, 0xcccccccc\ns_mov_b32 s25, 0xcccccccc\ns_mov_b32 s26, 0x88888888\ns_mov_b32 s27, 0x88888888")
def attention_main(A, V, s_bound):
    R = attention_regs(V); aQ, aK, aV, t0, t1, t2 = R['aQ'], R['aK'], R['aV'], R['t0'], R['t1'], R['t2']
    M20, M21, N20, N21, S, QF, KF, VF, OO = R['M20'], R['M21'], R['N20'], R['N21'], R['S'], R['QF'], R['KF'], R['VF'], R['OO']
    for dg in range(5):
        A(f"ds_read_b64 v[{QF+2*dg}:{QF+2*dg+1}], v{aQ} offset:{8*dg}")
        for c in range(3): A(f"ds_read_b64 v[{KF+2*(5*c+dg)}:{KF+2*(5*c+dg)+1}], v{aK} offset:{8*c*QP + 160 + 8*dg}")
    for dg in range(5):
        if dg == 0:
            A("s_waitcnt lgkmcnt(15)")
        rem = 20 - 4*(dg+1)
        A(f"s_waitcnt lgkmcnt({min(rem, 15)})")
        for c in range(3):
            A(f"v_mfma_f32_4x4x4_16b_bf16 v[{S+4*c}:{S+4*c+3}], v[{KF+2*(5*c+dg)}:{KF+2*(5*c+dg)+1}], v[{QF+2*dg}:{QF+2*dg+1}], v[{S+4*c}:{S+4*c+3}]")
    for c in range(3):
        for dg in range(5): A(f"ds_read_b64_tr_b16 v[{VF+2*(5*c+dg)}:{VF+2*(5*c+dg)+1}], v{aV} offset:{8*c*QP + 320 + 8*dg}")
    Lb = A.newlabel("att_nomask")
    A(f"s_cmp_lg_u32 s{s_bound}, 0\ns_cbranch_scc1 {Lb}")
    A(f"v_mov_b32 v{t2}, {f2u(-1e30)}")
    A("v_cmp_gt_u32 vcc, 16, v0")
    for i in range(4): A(f"v_cndmask_b32 v{S+i}, v{S+i}, v{t2}, vcc")
    A("v_cmp_gt_u32 vcc, 8, v0")
    for i in range(4): A(f"v_cndmask_b32 v{S+4+i}, v{S+4+i}, v{t2}, vcc")
    A("s_nop 4")
    A.label(Lb)
    A("s_nop 4")
    for i in range(1, 4): A(f"v_cndmask_b32 v{S+8+i}, v{S+i}, v{S+8+i}, s[{20+2*i}:{21+2*i}]")
    vals = [S+4+i for i in range(8)]
    A(f"v_max3_f32 v{t0}, v{vals[0]}, v{vals[1]}, v{vals[2]}\nv_max3_f32 v{t1}, v{vals[3]}, v{vals[4]}, v{vals[5]}\nv_max3_f32 v{t0}, v{t0}, v{vals[6]}, v{vals[7]}\nv_max_f32 v{t0}, v{t0}, v{t1}")
    SC = (20 ** -0.5) * 1.4426950408889634
    A(f"s_mov_b32 s20, {f2u(SC)}")
    A(f"v_mul_f32 v{t0}, s20, v{t0}")
    for x in vals: A(f"v_fma_f32 v{x}, v{x}, s20, -v{t0}")
    for x in vals: A(f"v_exp_f32 v{x}, v{x}")
    A(f"v_add_f32 v{t0}, v{vals[0]}, v{vals[1]}\nv_add_f32 v{t1}, v{vals[2]}, v{vals[3]}\nv_add_f32 v{t2}, v{vals[4]}, v{vals[5]}\nv_add_f32 v{t0}, v{t0}, v{t1}")
    A(f"v_add_f32 v{t1}, v{vals[6]}, v{vals[7]}\nv_add_f32 v{t0}, v{t0}, v{t2}\nv_add_f32 v{t0}, v{t0}, v{t1}")
    A(f"v_rcp_f32 v{t0}, v{t0}")
    for x in vals: A(f"v_mul_f32 v{x}, v{x}, v{t0}")
    PP = QF
    A(f"v_cvt_pk_bf16_f32 v{PP+2}, v{S+4}, v{S+5}\nv_cvt_pk_bf16_f32 v{PP+3}, v{S+6}, v{S+7}")
    A(f"v_cvt_pk_bf16_f32 v{t1}, v{S+8}, v{S+9}\nv_cvt_pk_bf16_f32 v{t2}, v{S+10}, v{S+11}")
    A(f"v_and_b32 v{PP+4}, v{t1}, v{M20}\nv_and_b32 v{PP+5}, v{t2}, v{M21}\nv_and_b32 v{PP}, v{t1}, v{N20}\nv_and_b32 v{PP+1}, v{t2}, v{N21}")
    A("s_waitcnt lgkmcnt(0)")
    for c in (1, 0, 2):
        for dg in range(5):
            A(f"v_mfma_f32_4x4x4_16b_bf16 v[{OO+4*dg}:{OO+4*dg+3}], v[{VF+2*(5*c+dg)}:{VF+2*(5*c+dg)+1}], v[{PP+2*c}:{PP+2*c+1}], v[{OO+4*dg}:{OO+4*dg+3}]")
    for dg in range(5):
        A(f"v_cvt_pk_bf16_f32 v{KF+2*dg}, v{OO+4*dg}, v{OO+4*dg+1}\nv_cvt_pk_bf16_f32 v{KF+2*dg+1}, v{OO+4*dg+2}, v{OO+4*dg+3}")
    for dg in range(5): A(f"ds_write_b64 v{aQ}, v[{KF+2*dg}:{KF+2*dg+1}] offset:{8*dg}")

def k3(A):
    name = "k3_kernel"
    kernel_begin(A, name)
    A("s_cmp_ge_u32 s2, 256\ns_cbranch_scc1 K3_end")
    load_ptr(A, 30, 'wsp'); load_ptr(A, 32, 'ws'); load_ptr(A, 34, 'bsp')
    wave_lane(A, 16)
    tile_map(A)
    st = Stamps(A, 2); st()
    E = E2(A, "K3", 6, 32, 4096, 2, 3)
    A(f"s_mul_i32 s17, s40, {64*4096}\ns_mul_i32 s18, s41, {32*6*2048}")
    A("s_waitcnt lgkmcnt(0)")
    A("s_cmp_lt_u32 s16, 4\ns_cbranch_scc1 K3_comp")
    srd(A, 4, 30, 2048*2048*2); srd(A, 8, 32, SZ_Z2P, WS_Z2P)
    E.loader_setup()
    E.loader_main(0)
    A("s_branch K3_end")
    A.label("K3_comp")
    A("s_and_b32 s46, s16, 1\ns_lshl_b32 s46, s46, 5\ns_lshr_b32 s47, s16, 1\ns_mul_i32 s47, s47, 3")
    PF = 116
    srd(A, 4, 32, SZ_Z1, WS_Z1); srd(A, 8, 32, SZ_G, WS_G); srd(A, 12, 34, 2048*2)
    A("s_lshl_b32 s43, s40, 6\ns_add_u32 s43, s43, s46")
    A("v_and_b32 v112, 15, v0\nv_add_u32 v112, s43, v112\nv_lshrrev_b32 v113, 4, v0")
    A("s_lshr_b32 s48, s43, 5\ns_mul_i32 s48, s48, 48\ns_mul_i32 s49, s41, 6\ns_add_u32 s48, s48, s49\ns_add_u32 s48, s48, s47\ns_lshl_b32 s48, s48, 10")
    A("v_lshlrev_b32 v114, 4, v0")
    for t in range(3): A(f"buffer_load_dwordx4 v[{PF+4*t}:{PF+4*t+3}], v114, s[4:7], s48 offen offset:{t*1024}")
    A("v_lshlrev_b32 v115, 2, v112")
    A(f"buffer_load_dword v{PF+12}, v115, s[8:11], 0 offen\nbuffer_load_dword v{PF+13}, v115, s[8:11], 0 offen offset:64")
    A("v_lshlrev_b32 v115, 1, v112")
    A(f"buffer_load_ushort v{PF+14}, v115, s[12:15], 0 offen\nbuffer_load_ushort v{PF+15}, v115, s[12:15], 0 offen offset:32")
    E.compute_setup(46, 47)
    st()
    E.compute(st)
    st()
    A("s_waitcnt vmcnt(0)")
    srd(A, 12, 32, SZ_AU, WS_AU)
    for m in range(2): A(f"v_lshlrev_b32 v{PF+14+m}, 16, v{PF+14+m}\nv_sub_f32 v{PF+12+m}, 1.0, v{PF+12+m}")
    T = 132
    for m in range(2):
        for t in range(3):
            ac = E.acc(m, t)
            for q in range(2):
                z = PF + 4*t + 2*m + q
                A(f"v_lshlrev_b32 v{T}, 16, v{z}\nv_and_b32 v{T+1}, 0xffff0000, v{z}")
                A(f"v_add_f32 v{T+2}, v{ac+2*q}, v{PF+14+m}\nv_add_f32 v{T+3}, v{ac+2*q+1}, v{PF+14+m}")
                A(f"v_mul_f32 v{T}, v{T}, v{PF+12+m}\nv_mul_f32 v{T+1}, v{T+1}, v{PF+12+m}")
                A(f"v_mul_f32 v{T+2}, v{T+2}, v{T}\nv_mul_f32 v{T+3}, v{T+3}, v{T+1}")
                A(f"v_cvt_pk_bf16_f32 v{z}, v{T+2}, v{T+3}")
    A("s_mov_b32 s45, 2816\nv_mul_lo_u32 v114, v112, s45\nv_lshl_add_u32 v114, v113, 3, v114")
    A("s_mul_i32 s48, s41, 192\ns_lshl_b32 s49, s47, 5\ns_add_u32 s48, s48, s49\ns_add_u32 s48, s48, 1280\nv_add_u32 v114, s48, v114")
    A(f"s_mov_b32 s49, {16*2816}")
    for m in range(2):
        for t in range(3):
            z = PF + 4*t + 2*m
            A(f"buffer_store_dwordx2 v[{z}:{z+1}], v114, s[12:15], {'s49' if m else '0'} offen offset:{t*32}")
    st(); st.flush(16, 32)
    A.label("K3_end")
    A("s_endpgm")
    return name, 256, 512, 6*SLOT, 140

def k4(A):
    name = "k4_kernel"
    kernel_begin(A, name)
    A("s_cmp_ge_u32 s2, 256\ns_cbranch_scc1 K4_end")
    load_ptr(A, 30, 'out'); load_ptr(A, 32, 'ws')
    wave_lane(A, 16)
    tile_map(A)
    st = Stamps(A, 3); st()
    E = E2(A, "K4", 5, 22, 2816, 1, 5)
    A(f"s_mul_i32 s17, s40, {64*2816}\ns_mul_i32 s18, s41, {22*5*2048}")
    A("s_waitcnt lgkmcnt(0)")
    A("s_cmp_lt_u32 s16, 4\ns_cbranch_scc1 K4_comp")
    srd(A, 4, 32, SZ_AU, WS_AU); srd(A, 8, 32, SZ_WP, WS_WP)
    E.loader_setup()
    E.loader_main(0)
    A("s_branch K4_end")
    A.label("K4_comp")
    A("s_lshl_b32 s46, s16, 4\ns_mov_b32 s47, 0")
    srd(A, 8, 32, SZ_G, WS_G)
    A("s_lshl_b32 s43, s40, 6\ns_add_u32 s43, s43, s46\nv_and_b32 v126, 15, v0\nv_add_u32 v126, s43, v126\nv_lshlrev_b32 v126, 2, v126")
    A("buffer_load_dword v125, v126, s[8:11], 0 offen")
    E.compute_setup(46, 47)
    st()
    def scale():
        A("s_waitcnt vmcnt(0)")
        for t in range(5):
            for r in range(4): A(f"v_mul_f32 v{E.acc(0,t)+r}, v{E.acc(0,t)+r}, v125")
    E.compute(st, unroll=True, hooks={9: scale})
    st()
    A("s_lshl_b32 s43, s40, 6\ns_add_u32 s43, s43, s46\nv_and_b32 v2, 15, v0\nv_add_u32 v2, s43, v2\nv_lshrrev_b32 v3, 4, v0")
    srd(A, 12, 30, 2048*640*2)
    PK = 8
    for t in range(5):
        ac = E.acc(0, t)
        A(f"v_cvt_pk_bf16_f32 v{PK+2*t}, v{ac}, v{ac+1}\nv_cvt_pk_bf16_f32 v{PK+2*t+1}, v{ac+2}, v{ac+3}")
    A("s_mov_b32 s45, 1280\nv_mul_lo_u32 v4, v2, s45\nv_lshl_add_u32 v4, v3, 3, v4\ns_mul_i32 s46, s41, 160\nv_add_u32 v4, s46, v4")
    for t in range(5): A(f"buffer_store_dwordx2 v[{PK+2*t}:{PK+2*t+1}], v4, s[12:15], 0 offen offset:{t*32}")
    st(); st.flush(16, 32)
    A.label("K4_end")
    A("s_endpgm")
    return name, 256, 512, 6*SLOT, 128

def k34(A):
    name = "k34_kernel"
    NS = 6; N1 = 32; N2 = 22; N = N1 + N2
    USTG = NS*SLOT
    LCNT = USTG + 64*208
    tile_map(A)
    hd_start(A)
    st = Stamps(A, 2); st()
    E1 = E2(A, "K34a", 6, N1, 4096, 2, 3)
    def wait_zflags(tag, va, vd):
        srd(A, 12, 32, SZ_FZ, WS_FZ)
        A(f"v_lshlrev_b32 v{va}, 4, v0\ns_add_u32 s45, s98, 1\ns_mov_b32 s47, 0")
        A.label(f"K34_zp{tag}")
        A(f"buffer_load_dwordx4 v[{vd}:{vd+3}], v{va}, s[12:15], 0 offen sc1\ns_waitcnt vmcnt(0)")
        A(f"v_xor_b32 v{vd}, s45, v{vd}\nv_xor_b32 v{vd+1}, s99, v{vd+1}\nv_xor_b32 v{vd+2}, s45, v{vd+2}\nv_xor_b32 v{vd+3}, s99, v{vd+3}")
        A(f"v_or3_b32 v{vd}, v{vd}, v{vd+1}, v{vd+2}\nv_or_b32 v{vd}, v{vd}, v{vd+3}\nv_cmp_ne_u32 vcc, 0, v{vd}\ns_add_u32 s47, s47, 1\ns_nop 3")
        A(f"s_cbranch_vccz K34_zok{tag}\ns_sleep {O.sleep}\ns_cmp_lt_u32 s47, 0x10000\ns_cbranch_scc1 K34_zp{tag}")
        A.label(f"K34_zok{tag}")
    A("s_waitcnt lgkmcnt(0)")
    A("s_cmp_lt_u32 s16, 4\ns_cbranch_scc1 K34_comp")
    if 'B' in O.prio: A("s_setprio 2")
    srd(A, 4, 30, 2048*2048*2); srd(A, 8, 32, SZ_Z2P, WS_Z2P)
    A(f"s_mul_i32 s17, s40, {64*4096}\ns_mul_i32 s18, s41, {32*6*2048}")
    E1.loader_setup()
    A("v_lshrrev_b32 v7, 3, v0\nv_and_b32 v4, 7, v0\nv_xor_b32 v4, v4, v7\nv_mul_u32_u24 v7, 2816, v7\nv_lshl_add_u32 v4, v4, 4, v7")
    A("v_lshrrev_b32 v7, 3, v0\nv_and_b32 v5, 7, v0\nv_xor_b32 v5, v5, v7\nv_mul_u32_u24 v7, 384, v7\nv_lshl_add_u32 v10, v5, 4, v7")
    def proP(i):
        A(f"s_add_u32 m0, s27, {i*SLOT}\ns_add_u32 s20, s23, {i*128}\ns_add_u32 s25, s23, {i*128 + 8*4096 - 1024}")
        A("buffer_load_dwordx4 v2, s[4:7], s20 offen lds\nbuffer_load_dwordx4 v2, s[4:7], s25 offen offset:1024 lds")
    def proT(i):
        A(f"s_add_u32 m0, s26, {i*SLOT}\ns_add_u32 s20, s24, {i*6*2048}")
        for q in range(3): A(f"buffer_load_dwordx4 v3, s[8:11], s20 offen offset:{q*1024}{O.xl} lds")
    proP(0); proP(1)
    A("s_cmp_lg_u32 s16, 4\ns_cbranch_scc1 K34_lf")
    srd(A, 12, 32, SZ_FZ2, WS_FZ2)
    A("s_lshl_b32 s46, s41, 8\nv_and_b32 v14, 31, v0\nv_lshlrev_b32 v14, 3, v14\nv_add_u32 v14, s46, v14\ns_add_u32 s45, s98, 1\ns_mov_b32 s47, 0")
    A("v_mov_b32 v16, v18\nv_mov_b32 v17, v19\ns_branch K34_zpC")
    A.label("K34_zpL")
    A("buffer_load_dwordx2 v[16:17], v14, s[12:15], 0 offen sc1\ns_waitcnt vmcnt(0)")
    A.label("K34_zpC")
    A("v_xor_b32 v16, s45, v16\nv_xor_b32 v17, s99, v17\nv_or_b32 v16, v16, v17\nv_cmp_ne_u32 vcc, 0, v16\ns_add_u32 s47, s47, 1\ns_nop 3")
    A(f"s_cbranch_vccz K34_lf\ns_sleep {O.sleep2}\ns_cmp_lt_u32 s47, 0x10000\ns_cbranch_scc1 K34_zpL")
    A.label("K34_lf")
    A("s_barrier")
    proT(0); proT(1)
    for i in range(2, NS - 1): proP(i); proT(i)
    A(f"s_add_u32 s23, s23, {(NS-1)*128}\ns_add_u32 s24, s24, {(NS-1)*6*2048}\ns_mov_b32 s22, {(NS-1)*SLOT}")
    A("s_waitcnt vmcnt(18)\ns_barrier")
    E1.issue()
    for i in range(NS - 2):
        A(f"s_waitcnt vmcnt({(NS-2)*5})\ns_barrier")
        E1.issue()
    def issue_static(slot):
        A(f"s_add_u32 m0, s27, {slot*SLOT}\ns_add_u32 s20, s23, {8*4096 - 1024}")
        A("buffer_load_dwordx4 v2, s[4:7], s23 offen lds")
        A("buffer_load_dwordx4 v2, s[4:7], s20 offen offset:1024 lds")
        A(f"s_add_u32 m0, s26, {slot*SLOT}\ns_add_u32 s23, s23, 128")
        for q in range(3): A(f"buffer_load_dwordx4 v3, s[8:11], s24 offen offset:{q*1024}{O.xl} lds")
        A(f"s_add_u32 s24, s24, {6*2048}")
    def lstep(i):
        A(f"s_waitcnt vmcnt({(NS-2)*5})\ns_barrier")
        issue_static((i + NS) % NS)
    for i in (4, 5): lstep(i)
    A("s_mov_b32 s14, 0")
    A.label("K34_lloop")
    for i in range(6, 12): lstep(i)
    A("s_add_u32 s14, s14, 1\ns_cmp_lt_u32 s14, 3\ns_cbranch_scc1 K34_lloop")
    for i in (24, 25): lstep(i)
    srd(A, 4, 32, SZ_AU, WS_AU); srd(A, 8, 32, SZ_WP, WS_WP); srd(A, 12, 32, SZ_FL, WS_FL)
    A(f"s_mul_i32 s17, s40, {64*2816}\ns_mul_i32 s20, s21, {16*2816}\ns_add_u32 s23, s17, s20")
    A(f"s_mul_i32 s18, s41, {22*5*2048}\ns_mul_i32 s20, s21, 3072\ns_add_u32 s24, s18, s20")
    A(f"s_mul_i32 s20, s21, 3\ns_cmp_ge_u32 s20, 9\ns_cselect_b32 s28, {KILL}, 0\ns_cmp_ge_u32 s20, 8\ns_cselect_b32 s29, {KILL}, 0")
    A("s_lshl_b32 s44, s40, 7\nv_and_b32 v8, 7, v0\nv_lshlrev_b32 v8, 3, v8\nv_add_u32 v8, s44, v8\ns_add_u32 s53, s98, 1")
    srd(A, 48, 32, SZ_U, WS_U)
    A(f"s_mul_i32 s52, s40, {4*24576}\ns_mul_i32 s20, s21, {16*384}\ns_add_u32 s52, s52, s20")
    issued = [('S', s) for s in range(N1 - NS + 2 - 1, N1) for _ in range(5)]
    def issueP(s):
        sl = s % NS; s2_ = s - N1
        fl = " sc1" if (s2_ >= 10 and O.usc1) else ""
        A(f"s_add_u32 m0, s27, {sl*SLOT}")
        if s2_ < 10:
            A(f"s_add_u32 s20, s23, {s2_*128}\ns_add_u32 s25, s23, {s2_*128 + 8*2816 - 1024}")
            A(f"buffer_load_dwordx4 v4, s[4:7], s20 offen{O.xl} lds")
            A(f"buffer_load_dwordx4 v4, s[4:7], s25 offen offset:1024{O.xl} lds")
        else:
            a_, b_ = divmod(s2_ - 10, 3)
            A(f"s_add_u32 s20, s52, {a_*24576 + b_*128}\ns_add_u32 s25, s52, {a_*24576 + b_*128 + 8*384 - 1024}")
            A(f"buffer_load_dwordx4 v10, s[48:51], s20 offen{fl} lds")
            A(f"buffer_load_dwordx4 v10, s[48:51], s25 offen offset:1024{fl} lds")
        issued.extend([('P', s)]*2)
    def issueT(s):
        sl = s % NS; s2_ = s - N1
        A(f"s_add_u32 m0, s26, {sl*SLOT}")
        A(f"s_add_u32 s20, s24, {s2_*10240}\ns_add_u32 s25, s20, s28\ns_add_u32 s45, s20, s29")
        A(f"buffer_load_dwordx4 v3, s[8:11], s20 offen{O.xl} lds")
        A(f"buffer_load_dwordx4 v3, s[8:11], s25 offen offset:1024{O.xl} lds")
        A(f"buffer_load_dwordx4 v3, s[8:11], s45 offen offset:2048{O.xl} lds")
        issued.extend([('T', s)]*3)
    def wait_for(needs):
        last = -1
        for idx, tg in enumerate(issued):
            if tg in needs: last = idx
        if last < 0: return
        A(f"s_waitcnt vmcnt({min(len(issued) - 1 - last, 63)})")
    FIRSTU = N1 + 10
    POLL_I = O.poll_i
    deferred = []
    gate_open = False
    for i in range(N1 - NS, N):
        nxt = i + 1
        if nxt < N:
            wait_for([('S', nxt), ('P', nxt), ('T', nxt)])
        A("s_barrier")
        if i == POLL_I + 1:
            wait_for([('X', 0)])
            A("v_xor_b32 v12, s53, v12\nv_xor_b32 v13, s99, v13\nv_or_b32 v12, v12, v13\nv_cmp_ne_u32 vcc, 0, v12\ns_nop 4")
            A("s_cbranch_vccz K34_ready")
            A("s_mov_b32 s47, 0")
            A.label("K34_poll")
            A(f"s_sleep {O.sleep}")
            A("buffer_load_dwordx2 v[12:13], v8, s[12:15], 0 offen sc1")
            A("s_waitcnt vmcnt(0)")
            A("v_xor_b32 v12, s53, v12\nv_xor_b32 v13, s99, v13\nv_or_b32 v12, v12, v13\nv_cmp_ne_u32 vcc, 0, v12")
            A("s_add_u32 s47, s47, 1\ns_nop 3")
            A("s_cbranch_vccz K34_ready")
            A("s_cmp_lt_u32 s47, 0x40000\ns_cbranch_scc1 K34_poll")
            A.label("K34_ready")
            gate_open = True
            for s in deferred: issueP(s)
            deferred = []
        s = i + NS
        if s < N:
            issueT(s)
            if s >= FIRSTU and not gate_open: deferred.append(s)
            else: issueP(s)
        if i == POLL_I:
            A("buffer_load_dwordx2 v[12:13], v8, s[12:15], 0 offen sc1")
            issued.append(('X', 0))
    assert not deferred
    A("s_branch K34_end")
    A.label("K34_comp")
    A("s_and_b32 s46, s16, 1\ns_lshl_b32 s46, s46, 5\ns_lshr_b32 s47, s16, 1\ns_mul_i32 s47, s47, 3")
    PF = 116
    C1R = 212
    C1R = 140
    C1R = 188
    BB = 132
    A("s_and_b32 s46, s16, 1\ns_lshl_b32 s46, s46, 5\ns_lshr_b32 s47, s16, 1\ns_mul_i32 s47, s47, 3")
    COA = 88
    A(f"s_mov_b32 s53, {USTG}")
    A(f"v_mov_b32 v138, {LCNT}\nv_mov_b32 v139, 0\nds_write_b32 v138, v139")
    E1.compute_setup(46, 47)
    E2b = E2(A, "K34b", 5, N2, 2816, 1, 5)
    E2b.F = [140, 188]; E2b.ACC = 236; E2b.vend = 256
    st()
    LA = [128, 129, 130]; GA = [131, 138, 139]
    def late_flag_setup():
        srd(A, 12, 32, SZ_FZ, WS_FZ); srd(A, 4, 32, SZ_FQ, WS_FQ)
        A("v_lshlrev_b32 v112, 4, v0")
        A("s_lshr_b32 s48, s40, 1\ns_lshl_b32 s48, s48, 6\nv_and_b32 v113, 7, v0\nv_lshlrev_b32 v113, 3, v113\nv_add_u32 v113, s48, v113")
    def late_flag_issue():
        A("buffer_load_dwordx4 v[116:119], v112, s[12:15], 0 offen sc1")
        A("buffer_load_dwordx2 v[120:121], v113, s[4:7], 0 offen sc1")
    def late_flag_check():
        A("s_add_u32 s45, s98, 1\ns_mov_b32 s49, 0")
        A.label("K34_lc")
        A("s_waitcnt vmcnt(0)")
        A("v_xor_b32 v116, s45, v116\nv_xor_b32 v117, s99, v117\nv_xor_b32 v118, s45, v118\nv_xor_b32 v119, s99, v119\nv_xor_b32 v120, s45, v120\nv_xor_b32 v121, s99, v121")
        A("v_or3_b32 v116, v116, v117, v118\nv_or3_b32 v116, v116, v119, v120\nv_or_b32 v116, v116, v121\nv_cmp_ne_u32 vcc, 0, v116\ns_add_u32 s49, s49, 1\ns_nop 3")
        A("s_cbranch_vccz K34_lcok\ns_cmp_ge_u32 s49, 0x10000\ns_cbranch_scc1 K34_lcok")
        A("buffer_load_dwordx4 v[116:119], v112, s[12:15], 0 offen sc1\nbuffer_load_dwordx2 v[120:121], v113, s[4:7], 0 offen sc1\ns_branch K34_lc")
        A.label("K34_lcok")
    def late_loads():
        srd(A, 4, 32, SZ_Z1, WS_Z1); srd(A, 8, 32, SZ_G, WS_G); srd(A, 12, 34, 2048*2)
        A("s_lshl_b32 s43, s40, 6\ns_add_u32 s43, s43, s46")
        A("v_and_b32 v112, 15, v0\nv_add_u32 v112, s43, v112\nv_lshrrev_b32 v113, 4, v0")
        A("s_lshr_b32 s48, s43, 5\ns_mul_i32 s48, s48, 48\ns_mul_i32 s49, s41, 6\ns_add_u32 s48, s48, s49\ns_add_u32 s48, s48, s47\ns_lshl_b32 s48, s48, 10")
        A("v_lshlrev_b32 v114, 4, v0")
        for t in range(3): A(f"buffer_load_dwordx4 v[{PF+4*t}:{PF+4*t+3}], v114, s[4:7], s48 offen offset:{t*1024} sc1")
        A("v_lshlrev_b32 v115, 2, v112")
        A(f"buffer_load_dword v{PF+12}, v115, s[8:11], 0 offen sc1\nbuffer_load_dword v{PF+13}, v115, s[8:11], 0 offen offset:64 sc1")
        A("v_lshlrev_b32 v115, 1, v112")
        A(f"buffer_load_ushort v{PF+14}, v115, s[12:15], 0 offen\nbuffer_load_ushort v{PF+15}, v115, s[12:15], 0 offen offset:32")
        A("s_lshl_b32 s50, s40, 6\ns_lshl_b32 s51, s16, 4\ns_add_u32 s50, s50, s51\nv_and_b32 v137, 15, v0\nv_add_u32 v137, s50, v137\nv_lshlrev_b32 v138, 2, v137")
        A("buffer_load_dword v136, v138, s[8:11], 0 offen sc1")
    def late_pre():
        A("s_waitcnt vmcnt(0)")
        for m in range(2):
            A(f"v_lshlrev_b32 v{BB+2*m}, 16, v{PF+14+m}\nv_mov_b32 v{BB+2*m+1}, v{BB+2*m}\nv_sub_f32 v{PF+12+m}, 1.0, v{PF+12+m}")
        for m in range(2):
            for t in range(3):
                c = C1R + 4*(3*m + t)
                for q in range(2):
                    z = PF + 4*t + 2*m + q
                    A(f"v_lshlrev_b32 v{c+2*q}, 16, v{z}\nv_and_b32 v{c+2*q+1}, 0xffff0000, v{z}")
        for m in range(2):
            for t in range(3):
                c = C1R + 4*(3*m + t)
                for r in range(4): A(f"v_mul_f32 v{c+r}, v{c+r}, v{PF+12+m}")
        A("s_mul_i32 s20, s16, 192\nv_add_u32 v112, s20, v0")
        for q in range(3):
            A(f"v_add_u32 v115, {64*q}, v112\nv_mul_u32_u24 v114, 5462, v115\nv_lshrrev_b32 v114, 16, v114")
            A(f"v_mul_u32_u24 v{LA[q]}, 12, v114\nv_sub_u32 v115, v115, v{LA[q]}\nv_lshlrev_b32 v115, 4, v115")
            A(f"v_mul_u32_u24 v{LA[q]}, 208, v114\nv_add3_u32 v{LA[q]}, v{LA[q]}, v115, s53\nv_mul_u32_u24 v{GA[q]}, 384, v114\nv_add_u32 v{GA[q]}, v{GA[q]}, v115")
        A("v_and_b32 v114, 15, v0\nv_add_u32 v114, s46, v114\nv_mul_u32_u24 v114, 208, v114\nv_lshl_add_u32 v114, v113, 3, v114")
        A(f"s_lshl_b32 s48, s47, 5\ns_add_u32 s48, s48, {USTG}\nv_add_u32 v114, s48, v114")
        A("v_and_b32 v115, 15, v0\nv_add_u32 v115, s46, v115\nv_and_b32 v112, 1, v113\nv_lshl_add_u32 v115, v112, 4, v115\nv_mul_u32_u24 v115, 208, v115\nv_lshrrev_b32 v112, 1, v113\nv_lshl_add_u32 v115, v112, 4, v115\nv_add_u32 v115, s48, v115")
    A("s_barrier")
    GS(A, 5)
    A("s_barrier")
    GS(A, 6); G2(A, 0)
    for x in E1.reads(0): A(x)
    A("s_waitcnt lgkmcnt(0)")
    st()
    A("s_mov_b32 s19, 0")
    A.label("K34_cloop")
    for i in range(NS): E1.step(i)
    if O.gs2:
        A("s_memtime s[90:91]\ns_waitcnt lgkmcnt(0)")
        for k in range(3): A(f"s_cmp_eq_u32 s19, {k}\ns_cselect_b32 s{66+2*k}, s90, s{66+2*k}")
    A(f"s_add_u32 s19, s19, 1\ns_cmp_lt_u32 s19, {O.lf0//6}\ns_cbranch_scc1 K34_cloop")
    late_flag_setup()
    A("s_cmp_lg_u32 s16, 0\ns_cbranch_scc1 K34_nf1")
    late_flag_issue()
    A.label("K34_nf1")
    for i in range(O.lf0, O.lf0 + 2): E1.step(i)
    A("s_cmp_lg_u32 s16, 0\ns_cbranch_scc1 K34_nf2")
    late_flag_check()
    A.label("K34_nf2")
    G2(A, 4)
    E1.step(O.lf0 + 2)
    def capture(fn):
        n0 = len(A.lines); fn(); out = A.lines[n0:]; del A.lines[n0:]; return out
    def split_loads(lines):
        pieces = []; cur = []; nv = 0
        for l in lines:
            cur.append(l)
            if 'buffer_load' in l:
                nv += 1
                if nv == 2: pieces.append(cur); cur = []; nv = 0
        if cur: pieces.append(cur)
        return pieces
    LL = split_loads(capture(late_loads))
    PP_ = capture(late_pre)
    npre = 4
    PPs = [PP_[k*len(PP_)//npre:(k+1)*len(PP_)//npre] for k in range(npre)]
    sched = {}
    s0 = O.lf0 + 2
    for k, pc in enumerate(LL): sched.setdefault(s0 + k, []).extend(pc)
    assert s0 + len(LL) <= 25, (s0, len(LL))
    for k, pc in enumerate(PPs): sched.setdefault(26 + k, []).extend(pc)
    A.lines.extend(sched.get(s0, []))
    G2(A, 5)
    for i in range(O.lf0 + 3, 30):
        E1.step(i)
        A.lines.extend(sched.get(i, []))
        if i in (23, 26, 29): G2(A, 6 + (23, 26, 29).index(i))
    G2(A, 9)
    E1.step(30)
    A("v_and_b32 v4, 15, v0\nv_lshrrev_b32 v5, 4, v0\nv_and_b32 v6, 7, v4\nv_xor_b32 v5, v5, v6\nv_lshlrev_b32 v4, 7, v4\nv_lshl_add_u32 v4, v5, 4, v4")
    A("s_lshl_b32 s20, s16, 11\nv_add_u32 v2, s20, v4\nv_xor_b32 v3, 64, v2")
    A("v_and_b32 v6, 15, v0\nv_lshlrev_b32 v6, 3, v6\nv_and_b32 v7, 16, v0\nv_lshl_add_u32 v6, v7, 3, v6\nv_and_b32 v7, 32, v0\nv_lshl_add_u32 v6, v7, 4, v6")
    A("v_add_u32 v4, 8192, v6")
    A(f"v_add_u32 v5, {3*SLOT}, v2\nv_add_u32 v6, {3*SLOT}, v3\nv_add_u32 v7, {3*SLOT}, v4")
    for i in range(236, 256): A(f"v_mov_b32 v{i}, 0")
    def mixed_step(Ecur, icur, Enext, inext, after_barrier=None):
        s = icur & 1
        rd = Enext.reads(inext) if Enext else []
        mf = [f"v_mfma_f32_16x16x32_bf16 v[{Ecur.acc(m,t)}:{Ecur.acc(m,t)+3}], v[{Ecur.fT(s,kk,t)}:{Ecur.fT(s,kk,t)+3}], v[{Ecur.fP(s,kk,m)}:{Ecur.fP(s,kk,m)+3}], v[{Ecur.acc(m,t)}:{Ecur.acc(m,t)+3}]"
              for kk in range(2) for m in range(Ecur.mP) for t in range(Ecur.nT)]
        A("s_barrier")
        if after_barrier: after_barrier()
        per = (len(rd) + len(mf) - 1)//len(mf) if rd else 0
        for x in mf:
            for _ in range(per):
                if rd: A(rd.pop(0))
            A(x)
        A("s_waitcnt lgkmcnt(0)")
    mixed_step(E1, 31, E2b, 32)
    st(); GS(A, 7); G2(A, 10)
    for m in range(2):
        for t in range(3):
            ac = E1.acc(m, t); c = C1R + 4*(3*m + t)
            for q in range(2):
                A(f"v_pk_add_f32 v[{ac+2*q}:{ac+2*q+1}], v[{ac+2*q}:{ac+2*q+1}], v[{PF+14+m-(PF+14+m)%2 if False else BB+2*m}:{BB+2*m+1}]")
    for m in range(2):
        for t in range(3):
            ac = E1.acc(m, t); c = C1R + 4*(3*m + t)
            for q in range(2):
                A(f"v_pk_mul_f32 v[{ac+2*q}:{ac+2*q+1}], v[{ac+2*q}:{ac+2*q+1}], v[{c+2*q}:{c+2*q+1}]")
    if O.fine2: st()
    for m in range(2):
        for t in range(3):
            ac = E1.acc(m, t); z = PF + 4*t + 2*m
            A(f"v_cvt_pk_bf16_f32 v{z}, v{ac}, v{ac+1}\nv_cvt_pk_bf16_f32 v{z+1}, v{ac+2}, v{ac+3}")
    if O.fine2: st()
    if O.stg128:
        for t in range(3):
            d = PF + 4*t
            A(f"v_permlane16_swap_b32 v{d}, v{d+2}\nv_permlane16_swap_b32 v{d+1}, v{d+3}")
        for t in range(3):
            A(f"ds_write_b128 v115, v[{PF+4*t}:{PF+4*t+3}] offset:{t*32}")
    else:
        for m in range(2):
            for t in range(3):
                z = PF + 4*t + 2*m
                A(f"ds_write_b64 v114, v[{z}:{z+1}] offset:{m*16*208 + t*32}")
    A("s_waitcnt lgkmcnt(0)")
    st()
    def signal():
        A("s_waitcnt vmcnt(0)")
        A(f"v_mov_b32 v138, {LCNT}\nv_mov_b32 v139, 1")
        A("s_mov_b64 exec, 1")
        A("ds_add_rtn_u32 v139, v138, v139")
        A("s_waitcnt lgkmcnt(0)")
        A("v_readfirstlane_b32 s20, v139")
        A("s_cmp_lg_u32 s20, 3\ns_cbranch_scc1 K34_nosig")
        srd(A, 12, 32, SZ_FL, WS_FL)
        A("s_lshl_b32 s20, s40, 7\ns_lshl_b32 s21, s41, 3\ns_add_u32 s20, s20, s21\nv_mov_b32 v112, s20\ns_add_u32 s21, s98, 1\nv_mov_b32 v138, s21\nv_mov_b32 v139, s99")
        A("buffer_store_dwordx2 v[138:139], v112, s[12:15], 0 offen sc1")
        A.label("K34_nosig")
        A("s_mov_b64 exec, -1")
    def copy_out():
        srd(A, 12, 32, SZ_U, WS_U)
        for q in range(3): A(f"ds_read_b128 v[{PF+4*q}:{PF+4*q+3}], v{LA[q]}")
        A("s_lshl_b32 s48, s40, 2\ns_lshr_b32 s49, s41, 1\ns_add_u32 s48, s48, s49\ns_mul_i32 s48, s48, 24576\ns_and_b32 s49, s41, 1\ns_mul_i32 s49, s49, 192\ns_add_u32 s48, s48, s49")
        A("s_waitcnt lgkmcnt(0)")
        for q in range(3): A(f"buffer_store_dwordx4 v[{PF+4*q}:{PF+4*q+3}], v{GA[q]}, s[12:15], s48 offen{O.ustore}")
    for i in range(N1, N):
        last = (i == N - 1)
        mixed_step(E2b, i, None if last else E2b, i + 1, after_barrier=(copy_out if i == N1 else None))
        if i in ((32, 33, 36, 40, 41) if O.fine2 else (32, 33, 34, 36, 38, 40, 41, 42, 45)): st()
        if i in (36, 40, 41, 45): GS(A, 8 + (36, 40, 41, 45).index(i))
        if i == O.sig_i: signal()
        if i == N1 + 9:
            for t in range(5):
                for r in range(4): A(f"v_mul_f32 v{E2b.acc(0,t)+r}, v{E2b.acc(0,t)+r}, v136")
    st()
    srd(A, 12, 36, 2048*640*2)
    PK = 8
    for t in range(5):
        ac = E2b.acc(0, t)
        A(f"v_cvt_pk_bf16_f32 v{PK+2*t}, v{ac}, v{ac+1}\nv_cvt_pk_bf16_f32 v{PK+2*t+1}, v{ac+2}, v{ac+3}")
    A("v_lshrrev_b32 v3, 4, v0\ns_mov_b32 s45, 1280\nv_mul_lo_u32 v4, v137, s45\ns_mul_i32 s46, s41, 160\nv_add_u32 v4, s46, v4")
    if O.wide_out:
        A("v_and_b32 v5, 1, v3\nv_lshlrev_b32 v5, 5, v5\nv_lshrrev_b32 v6, 1, v3\nv_lshl_add_u32 v5, v6, 4, v5\nv_add_u32 v5, v5, v4\nv_lshl_add_u32 v4, v3, 3, v4")
        for p in range(2):
            d = PK + 4*p
            A(f"v_permlane16_swap_b32 v{d}, v{d+2}\nv_permlane16_swap_b32 v{d+1}, v{d+3}")
        for p in range(2): A(f"buffer_store_dwordx4 v[{PK+4*p}:{PK+4*p+3}], v5, s[12:15], 0 offen offset:{p*64}{O.outst}")
        A(f"buffer_store_dwordx2 v[{PK+8}:{PK+9}], v4, s[12:15], 0 offen offset:128{O.outst}")
    else:
        A("v_lshl_add_u32 v4, v3, 3, v4")
        for t in range(5): A(f"buffer_store_dwordx2 v[{PK+2*t}:{PK+2*t+1}], v4, s[12:15], 0 offen offset:{t*32}{O.outst}")
    st(); st.flush(16, 32, 20)
    GS(A, 12); GS_flush(A, 13, 20)
    hd_end(A, 32, 2, 0, 60)
    if O.hdiag2:
        A("s_cmp_lg_u32 s2, 0\ns_cbranch_scc1 K34_end\ns_cmp_lg_u32 s16, 0\ns_cbranch_scc1 K34_end")
        A("s_waitcnt vmcnt(0)")
        srd(A, 84, 32, 0x100000, WS_TS); srd(A, 88, 38, 256)
        sel = [(0, 0, i) for i in (2, 3, 5, 7, 8, 9, 10)] + [(0, 128, i) for i in (2, 3, 4, 6)] + [(2, 0, i) for i in (2, 3, 11, 12, 15)]
        A("v_mov_b32 v60, 0\nv_mov_b32 v61, 0")
        for ln, (k, wg, i) in enumerate(sel):
            base = k*0x40000 + wg*4*128
            A(f"v_cmp_eq_u32 vcc, {ln}, v0\nv_mov_b32 v62, {base + 4*i}\nv_cndmask_b32 v60, v60, v62, vcc\nv_mov_b32 v62, {base}\nv_cndmask_b32 v61, v61, v62, vcc")
        A("v_cmp_gt_u32 vcc, 16, v0\ns_and_saveexec_b64 s[20:21], vcc")
        A("buffer_load_dword v63, v60, s[84:87], 0 offen sc1\nbuffer_load_dword v64, v61, s[84:87], 0 offen sc1\ns_waitcnt vmcnt(0)")
        A("v_sub_u32 v63, v63, v64\nv_lshlrev_b32 v60, 2, v0\nbuffer_store_dword v63, v60, s[88:91], 0 offen")
    if O.hdiag:
        A("s_cmp_lg_u32 s2, 0\ns_cbranch_scc1 K34_end\ns_cmp_lg_u32 s16, 0\ns_cbranch_scc1 K34_end")
        A("s_waitcnt vmcnt(0)")
        srd(A, 84, 32, 4096, WS_TS); srd(A, 88, 38, 256)
        A("v_lshlrev_b32 v60, 2, v0\nv_cmp_gt_u32 vcc, 12, v0\ns_and_saveexec_b64 s[20:21], vcc")
        A("buffer_load_dword v61, v60, s[84:87], 0 offen sc1\ns_waitcnt vmcnt(0)\nbuffer_store_dword v61, v60, s[88:91], 0 offen")
    A("s_or_b32 s20, s2, s16\ns_cmp_lg_u32 s20, 0\ns_cbranch_scc1 K34_end")
    srd(A, 12, 32, SZ_FQ, WS_FQ)
    A("v_lshlrev_b32 v14, 4, v0\ns_add_u32 s45, s98, 1\ns_mov_b32 s47, 0")
    A.label("K34_ep")
    A("buffer_load_dwordx4 v[16:19], v14, s[12:15], 0 offen sc1\ns_waitcnt vmcnt(0)")
    A("v_xor_b32 v16, s45, v16\nv_xor_b32 v17, s99, v17\nv_xor_b32 v18, s45, v18\nv_xor_b32 v19, s99, v19\nv_or3_b32 v16, v16, v17, v18\nv_or_b32 v16, v16, v19\nv_cmp_ne_u32 vcc, 0, v16\ns_add_u32 s47, s47, 1\ns_nop 3")
    A("s_cbranch_vccz K34_epok\ns_cmp_lt_u32 s47, 0x10000\ns_cbranch_scc1 K34_ep")
    A.label("K34_epok")
    srd(A, 12, 32, SZ_EP, WS_EP)
    A("v_mov_b32 v16, s45\nv_mov_b32 v17, s99\nv_mov_b32 v14, 0\ns_mov_b64 exec, 1")
    A("buffer_store_dwordx2 v[16:17], v14, s[12:15], 0 offen sc1")
    A.label("K34_end")
    A("s_endpgm")
    return name, 256, 512, NS*SLOT + 64*208 + 64, 256

def main(out):
    body = Asm()
    n, g, b, lds, vg = k1(body)
    k34(body)
    hdr = [f"; @launch grid=({g},1,1) block=({b},1,1) lds={lds}"]
    hdr.append('.amdgcn_target "amdgcn-amd-amdhsa--gfx950"'); hdr.append(".text")
    lines = hazard.fix(body.lines, verbose=True)
    txt = "\n".join(hdr) + "\n" + "\n".join(lines) + "\n" + '.section .rodata,"a"\n' + kernel_desc(n, 256, 102)
    open(out, "w").write(txt)
if __name__ == "__main__":
    if '--stamp' in sys.argv: O.stamp = True
    if '--norot' in sys.argv: O.rot = False
    if '--pfg' in sys.argv: O.pfg = True
    if '--nofull' in sys.argv: O.fullring = False
    for a_ in sys.argv:
        if a_.startswith('--tla='): O.tla = int(a_[6:])
    for a_ in sys.argv:
        if a_.startswith('--pfg2='): O.pfg2 = int(a_[7:])
    if '--itstamp' in sys.argv: O.itstamp = True
    if '--nowsp' in sys.argv: O.wsp_pf = False
    for a_ in sys.argv:
        if a_.startswith('--poll='): O.poll_i = int(a_[7:])
        if a_.startswith('--sig='): O.sig_i = int(a_[6:])
    if '--full' in sys.argv: O.fullring = True; O.tla = 6
    if '--nofuse' in sys.argv: O.fuse = False
    if '--nosc1' in sys.argv: O.usc1 = False
    if '--hdiag' in sys.argv: O.hdiag = True
    if '--fine2' in sys.argv: O.fine2 = True
    if '--gs' in sys.argv: O.gs = True
    if '--wpf' in sys.argv: O.wpf = True
    for a_ in sys.argv:
        if a_.startswith('--wpfb='): O.wpfb = int(a_[7:])
    for a_ in sys.argv:
        if a_.startswith('--prio='): O.prio = a_[7:]
    for a_ in sys.argv:
        if a_.startswith('--zrot='): O.zrot = int(a_[7:], 16)
    if '--gs3' in sys.argv: O.gs3 = True
    for a_ in sys.argv:
        if a_.startswith('--zn='): O.zn = int(a_[5:])
        if a_.startswith('--sst='): O.sst = int(a_[6:])
        if a_.startswith('--zp='): O.zp = int(a_[5:])
        if a_.startswith('--zs='): O.zs = int(a_[5:])
    if '--gs2' in sys.argv: O.gs2 = True
    if '--lt' in sys.argv: O.lt = True
    if '--nodefer' in sys.argv: O.defer = False
    for a_ in sys.argv:
        if a_.startswith('--hb='): O.hb = int(a_[5:])
    if '--xlplain' in sys.argv: O.xl = ''
    if '--k1sc1' in sys.argv: O.k1st = ' sc1'
    if '--k1nt' in sys.argv: O.k1st = ' nt'
    if '--outsc1' in sys.argv: O.outst = ' sc1'
    if '--outnt' in sys.argv: O.outst = ' nt'
    if '--hdiag2' in sys.argv: O.hdiag2 = True; O.stamp = True
    if '--stg64' in sys.argv: O.stg128 = False
    if '--uplain' in sys.argv: O.ustore = ''
    if '--unt' in sys.argv: O.ustore = ' sc1 nt'
    if '--usc01' in sys.argv: O.ustore = ' sc0 sc1'
    for a_ in sys.argv:
        if a_.startswith('--rottab='): O.rottab = int(a_[9:], 16)
    for a_ in sys.argv:
        if a_.startswith('--sleep='): O.sleep = int(a_[8:])
    main(sys.argv[1])
```
